```python
import torch

def _softmax(x, axis=-1):
    return torch.softmax(x, dim=axis)
def _gelu(x):
    return torch.nn.functional.gelu(x, approximate="tanh")
def _silu(x):
    return torch.nn.functional.silu(x)
def _sigmoid(x):
    return torch.sigmoid(x)
def _layernorm(x, axis=-1, eps=1e-5):
    m = x.mean(dim=axis, keepdim=True)
    v = x.var(dim=axis, keepdim=True, unbiased=False)
    return (x - m) / torch.sqrt(v + eps)
def _scatter_add(tgt, idx, src, axis=0):
    return tgt.clone().index_add_(axis, idx, src)
def _segment_sum(src, seg, n):
    out = torch.zeros((n,) + src.shape[1:], dtype=src.dtype)
    return out.index_add_(0, seg, src)
def _pad(x, pw):
    flat = tuple(v for pair in reversed(pw) for v in pair)
    return torch.nn.functional.pad(x, flat)

kernel_name = 'interleave_layers__sliding_local_dilated__dense_activation_gelu__prompt'

def setup_inputs():

    _w = (lambda a: (lambda t: t.to(torch.bfloat16) if t.is_floating_point() else t)(torch.as_tensor(a)))
    def _A_setup():
        B, S, D = 1, 2048, 576
        return {
            "x": _w((lambda *s: torch.randn(*s, dtype=torch.bfloat16) * 0.05)(B, S, D)),
            "wqkv": _w((lambda *s: torch.randn(*s, dtype=torch.bfloat16) * 0.05)(D, 3 * D)),
            "wo": _w((lambda *s: torch.randn(*s, dtype=torch.bfloat16) * 0.05)(D, D)),
        }
    _A_in = _A_setup()

    def _B_setup():
        B, S, D, F = 1, 2048, 576, 4608
        return {
            "x": _w((lambda *s: torch.randn(*s, dtype=torch.bfloat16) * 0.05)(B, S, D)),
            "w1": _w((lambda *s: torch.randn(*s, dtype=torch.bfloat16) * 0.8)(D, F) * (D ** -0.5)),
            "b1": _w((lambda *s: torch.randn(*s, dtype=torch.bfloat16) * 0.8)(F) * 0.01),
            "w2": _w((lambda *s: torch.randn(*s, dtype=torch.bfloat16) * 0.8)(F, D) * (F ** -0.5)),
            "b2": _w((lambda *s: torch.randn(*s, dtype=torch.bfloat16) * 0.8)(D) * 0.01),
        }
    _B_in = _B_setup()

    return {
        "A_x": _A_in["x"],
        "A_wqkv": _A_in["wqkv"],
        "A_wo": _A_in["wo"],
        "B_x": _B_in["x"],
        "B_w1": _B_in["w1"],
        "B_b1": _B_in["b1"],
        "B_w2": _B_in["w2"],
        "B_b2": _B_in["b2"],
    }

def reference(A_x, A_wqkv, A_wo, B_x, B_w1, B_b1, B_w2, B_b2):
    def _A_ref(x, wqkv, wo):
        B, S, D = x.shape
        H = 32; Dh = D // H
        W, dil = 8, 2
        qkv = (lambda x, *d: x.permute(*d))((x @ wqkv).reshape(B, S, 3, H, Dh), 2, 0, 3, 1, 4)
        q, k, v = qkv[0], qkv[1], qkv[2]
        scale = Dh ** -0.5
        pos = torch.arange(S)
        off = torch.arange(W) * dil
        idx = pos[:, None] - off[None, :]
        mask = idx >= 0
        idx_c = torch.where(mask, idx, 0).reshape(-1)
        kg = k[:, :, idx_c, :].reshape(B, H, S, W, Dh)
        vg = v[:, :, idx_c, :].reshape(B, H, S, W, Dh)
        logits = torch.einsum("bhsd,bhswd->bhsw", q, kg) * scale
        logits = torch.where(mask[None, None, :, :], logits, -1e9)
        attn = _softmax(logits, axis=-1)
        o = torch.einsum("bhsw,bhswd->bhsd", attn, vg)
        return (lambda x, *d: x.permute(*d))(o, 0, 2, 1, 3).reshape(B, S, D) @ wo

    def _B_ref(x, w1, b1, w2, b2):
        h = torch.einsum("bsd,df->bsf", x, w1) + b1
        h = _gelu(h)
        return torch.einsum("bsf,fd->bsd", h, w2) + b2

    x = A_x
    x = x + _A_ref(_layernorm(x, axis=-1), A_wqkv, A_wo)
    x = x + _B_ref(_layernorm(x, axis=-1), B_w1, B_b1, B_w2, B_b2)
    x = x + _A_ref(_layernorm(x, axis=-1), A_wqkv, A_wo)
    x = x + _B_ref(_layernorm(x, axis=-1), B_w1, B_b1, B_w2, B_b2)
    return x
```

```python
class K:
    def __init__(self):
        self.lines = []
        self.vm = []
        self.lg = []
        self.uid = 0
    def e(self, s):
        self.lines.append("  " + s)
    def c(self, s):
        self.lines.append("  ; " + s)
    def label(self, l):
        self.lines.append(l + ":")
    def newlabel(self, p="L"):
        self.uid += 1
        return f"{p}_{self.uid}"
    def vmem(self, s, tag=None):
        self.e(s); self.vm.append(tag)
    def lds(self, s, tag=None):
        self.e(s); self.lg.append(tag)
    def _n_after(self, lst, tags):
        idx = -1
        for i, t in enumerate(lst):
            if t in tags: idx = i
        if idx < 0: return None
        return len(lst) - 1 - idx
    def wait(self, vm=(), lg=(), vm0=False, lg0=False):
        parts = []
        if vm0:
            parts.append("vmcnt(0)"); self.vm = []
        elif vm:
            n = self._n_after(self.vm, set(vm))
            if n is not None:
                n = min(n, 63)
                parts.append(f"vmcnt({n})")
                self.vm = self.vm[len(self.vm)-n:] if n else []
        if lg0:
            parts.append("lgkmcnt(0)"); self.lg = []
        elif lg:
            n = self._n_after(self.lg, set(lg))
            if n is not None:
                n = min(n, 15)
                parts.append(f"lgkmcnt({n})")
                self.lg = self.lg[len(self.lg)-n:] if n else []
        if parts:
            self.e("s_waitcnt " + " ".join(parts))
    def snapshot(self):
        return (list(self.vm), list(self.lg))
    def restore(self, s):
        self.vm, self.lg = list(s[0]), list(s[1])
    def text(self):
        return "\n".join(self.lines) + "\n"

def vr(a, n=1):
    return f"v{a}" if n == 1 else f"v[{a}:{a+n-1}]"
def sr(a, n=1):
    return f"s{a}" if n == 1 else f"s[{a}:{a+n-1}]"

def magic(d, nmax):
    for sh in range(8, 31):
        m = (1 << sh) // d + 1
        if m >= (1 << 24) or m * (nmax - 1) >= (1 << 32): continue
        if all((x * m) >> sh == x // d for x in range(nmax)):
            return m, sh
    raise ValueError
```

```python
import sys, struct, math
from asmlib import *

NAME = "interleave_layers__sliding_local_dilated__dense_activation_gelu__prompt"
ROWB = 1152
XB = 2048 * ROWB
WQF, WOF, WFF = 0x0, 0x200000, 0x300000
O1, X1A, X2, O2, X1B, P1, P2 = 0x1000000, 0x1400000, 0x1800000, 0x1C00000, 0x2000000, 0x2400000, 0x3800000
WQF_SZ, WOF_SZ, WFF_SZ = 8*14*18*1024, 8*5*18*1024, 8*12*36*3072
KA = dict(x=0, wqkv=8, wo=16, w1=32, b1=40, w2=48, b2=56, out=64, dbg=72, ws=80)

def f32(x):
    return "0x%08x" % struct.unpack("<I", struct.pack("<f", x))[0]

def srd(k, d, b, add, size):
    if add:
        k.e(f"s_add_u32 s{d}, s{b}, 0x{add:x}")
        k.e(f"s_addc_u32 s{d+1}, s{b+1}, 0")
    else:
        k.e(f"s_mov_b32 s{d}, s{b}")
        k.e(f"s_mov_b32 s{d+1}, s{b+1}")
    k.e(f"s_mov_b32 s{d+2}, 0x{size:x}")
    k.e(f"s_mov_b32 s{d+3}, 0x20000")

def header(k, name, nwg):
    k.lines.append(f".globl {name}\n.p2align 8\n.type {name},@function\n{name}:")
    k.e(f"s_cmp_ge_u32 s2, {nwg}")
    k.e(f"s_cbranch_scc1 L_{name}_end")

def footer(k, name):
    k.label(f"L_{name}_end")
    k.e("s_endpgm")

def desc(name, vgpr, sgpr=96):
    acc = (vgpr + 3) // 4 * 4
    return f""".section .rodata,"a"
.p2align 6
.amdhsa_kernel {name}
  .amdhsa_next_free_vgpr {vgpr}
  .amdhsa_next_free_sgpr {sgpr}
  .amdhsa_accum_offset {acc}
  .amdhsa_group_segment_fixed_size 0
  .amdhsa_kernarg_size 88
  .amdhsa_user_sgpr_count 2
  .amdhsa_user_sgpr_kernarg_segment_ptr 1
  .amdhsa_system_sgpr_workgroup_id_x 1
  .amdhsa_float_denorm_mode_32 3
.end_amdhsa_kernel
.text
"""

def divmod_const(k, q, rem, x, d, nmax, stmp):
    m, sh = magic(d, nmax)
    k.e(f"s_mov_b32 s{stmp}, {m}")
    k.e(f"v_mul_u32_u24 v{q}, s{stmp}, v{x}") if m*(nmax-1) < (1<<32) else None
    k.e(f"v_lshrrev_b32 v{q}, {sh}, v{q}")
    if rem is not None:
        k.e(f"v_mul_u32_u24 v{rem}, {d}, v{q}")
        k.e(f"v_sub_u32 v{rem}, v{x}, v{rem}")

def wave_lane(k, vlane, swave):
    k.e(f"v_lshrrev_b32 v{vlane}, 6, v0")
    k.e("s_nop 0")
    k.e(f"v_readfirstlane_b32 s{swave}, v{vlane}")
    k.e(f"v_and_b32 v{vlane}, 63, v0")

def gen_prep():
    name = "prep_kernel"
    k = K(); header(k, name, 432)
    k.e("s_load_dwordx4 s[4:7], s[0:1], 8")
    k.e("s_load_dwordx2 s[8:9], s[0:1], 32")
    k.e("s_load_dwordx2 s[10:11], s[0:1], 48")
    k.e("s_load_dwordx2 s[12:13], s[0:1], 80")
    L, W = 1, 14
    wave_lane(k, L, W)
    k.e("s_and_b32 s15, s2, 7")
    k.e("s_lshr_b32 s16, s2, 3")
    k.e("v_lshrrev_b32 v2, 4, v1")
    k.e("v_bfe_u32 v3, v1, 2, 2")
    k.e("v_and_b32 v4, 3, v1")
    k.e("v_lshlrev_b32 v5, 4, v1")
    k.e("s_waitcnt lgkmcnt(0)")
    srd(k, 20, 12, 0, 0x1000000)
    srd(k, 24, 8, 0, 576*4608*2)
    srd(k, 28, 10, 0, 576*4608*2)
    srd(k, 32, 4, 0, 576*1728*2)
    srd(k, 36, 6, 0, 576*576*2)
    k.e("s_cmp_ge_u32 s16, 36"); k.e("s_cbranch_scc1 L_prep_qo")
    k.e("s_cmp_ge_u32 s16, 18"); k.e("s_cbranch_scc1 L_prep_w2")
    k.c("W1 job")
    k.e("s_mul_i32 s17, s16, %d" % (32*9216)); k.e("s_mul_i32 s18, s15, 1152"); k.e("s_add_u32 s17, s17, s18")
    k.e("s_mul_i32 s18, s14, 192")
    for i in range(3):
        k.e(f"v_add_u32 v6, s18, v1")
        if i: k.e(f"v_add_u32 v6, {64*i}, v6")
        divmod_const(k, 7, 8, 6, 72, 2304, 19)
        k.e("s_mov_b32 s19, 9216")
        k.e("v_mul_u32_u24 v7, s19, v7")
        k.e("v_lshl_add_u32 v7, v8, 4, v7")
        k.e("s_mul_i32 s19, s14, 3072")
        if i: k.e(f"s_add_u32 s19, s19, {1024*i}")
        k.e("s_mov_b32 m0, s19")
        k.e("s_nop 0")
        k.e("buffer_load_dwordx4 v7, s[24:27], s17 offen lds")
    k.e("v_lshl_add_u32 v6, v2, 3, v3")
    k.e("s_mov_b32 s19, 1152"); k.e("v_mul_u32_u24 v6, s19, v6")
    k.e("v_mul_u32_u24 v7, 24, v4"); k.e("v_add_u32 v6, v6, v7")
    k.e("s_mul_i32 s19, s14, 96"); k.e("v_add_u32 v6, s19, v6")
    k.e("v_add_u32 v9, %d, v6" % (4*1152))
    k.e("s_mul_i32 s17, s15, 12"); k.e("s_add_u32 s17, s17, s14"); k.e("s_mul_i32 s17, s17, 36"); k.e("s_add_u32 s17, s17, s16")
    k.e("s_mul_i32 s17, s17, 3072"); k.e(f"s_add_u32 s17, s17, 0x{WFF:x}")
    k.e("s_branch L_prep_tr3")
    k.label("L_prep_w2")
    k.e("s_sub_u32 s16, s16, 18")
    k.e("s_mul_i32 s40, s16, 43"); k.e("s_lshr_b32 s40, s40, 7")
    k.e("s_mul_i32 s41, s40, 3"); k.e("s_sub_u32 s41, s16, s41")
    k.e("s_mul_i32 s17, s15, 576"); k.e("s_mul_i32 s18, s40, 96"); k.e("s_add_u32 s17, s17, s18")
    k.e("s_mul_i32 s17, s17, 1152"); k.e("s_mul_i32 s18, s41, 384"); k.e("s_add_u32 s17, s17, s18")
    k.e("s_mul_i32 s18, s14, 192")
    for i in range(3):
        k.e(f"v_add_u32 v6, s18, v1")
        if i: k.e(f"v_add_u32 v6, {64*i}, v6")
        divmod_const(k, 7, 8, 6, 24, 2304, 19)
        k.e("s_mov_b32 s19, 1152")
        k.e("v_mul_u32_u24 v7, s19, v7")
        k.e("v_lshl_add_u32 v7, v8, 4, v7")
        k.e("s_mul_i32 s19, s14, 3072")
        if i: k.e(f"s_add_u32 s19, s19, {1024*i}")
        k.e("s_mov_b32 m0, s19")
        k.e("s_nop 0")
        k.e("buffer_load_dwordx4 v7, s[28:31], s17 offen lds")
    k.e("s_lshr_b32 s42, s14, 2")
    k.e("s_and_b32 s43, s14, 3")
    k.e("s_cmp_eq_u32 s42, 1"); k.e("s_cselect_b32 s44, 48, 0")
    k.e("s_movk_i32 s45, %d" % (4*384)); k.e("s_cmp_eq_u32 s42, 2"); k.e("s_cselect_b32 s44, 8, s44"); k.e("s_cselect_b32 s45, %d, s45" % (48*384))
    k.e("v_mul_u32_u24 v6, 12, v2"); k.e("v_add_u32 v6, v6, v3"); k.e("v_add_u32 v6, s44, v6")
    k.e("s_movk_i32 s19, 384"); k.e("v_mul_u32_u24 v6, s19, v6")
    k.e("v_mul_u32_u24 v7, 24, v4"); k.e("v_add_u32 v6, v6, v7")
    k.e("s_mul_i32 s19, s43, 96"); k.e("v_add_u32 v6, s19, v6")
    k.e("v_add_u32 v9, s45, v6")
    k.e("s_mul_i32 s17, s15, 12"); k.e("s_lshl_b32 s18, s41, 2"); k.e("s_add_u32 s17, s17, s18"); k.e("s_add_u32 s17, s17, s43")
    k.e("s_mul_i32 s17, s17, 36"); k.e("s_mul_i32 s18, s40, 3"); k.e("s_add_u32 s17, s17, s18"); k.e("s_add_u32 s17, s17, s42")
    k.e("s_add_u32 s17, s17, 18")
    k.e("s_mul_i32 s17, s17, 3072"); k.e(f"s_add_u32 s17, s17, 0x{WFF:x}")
    k.label("L_prep_tr3")
    k.e("s_waitcnt vmcnt(0)")
    k.e("s_barrier")
    for t in range(3):
        k.e(f"ds_read_b64_tr_b16 v[{12+4*t}:{13+4*t}], v6 offset:{8*t}")
        k.e(f"ds_read_b64_tr_b16 v[{14+4*t}:{15+4*t}], v9 offset:{8*t}")
    for t in range(3):
        k.e(f"s_waitcnt lgkmcnt({4-2*t})")
        k.e(f"buffer_store_dwordx4 v[{12+4*t}:{15+4*t}], v5, s[20:23], s17 offen offset:{1024*t}")
    k.e(f"s_branch L_{name}_end")
    k.label("L_prep_qo")
    k.e("s_sub_u32 s16, s16, 36")
    k.e("s_mul_i32 s17, s16, %d" % (32*3456)); k.e("s_mul_i32 s18, s15, 144"); k.e("s_add_u32 s17, s17, s18")
    k.e("s_mul_i32 s40, s16, %d" % (32*1152)); k.e("s_add_u32 s40, s40, s18")
    def qload(sidx):
        k.e(f"s_lshl_b32 s18, s{sidx}, 6")
        k.e("v_add_u32 v6, s18, v1")
        divmod_const(k, 7, 8, 6, 27, 896, 19)
        divmod_const(k, 10, 11, 8, 9, 27, 19)
        k.e("s_movk_i32 s19, 3456"); k.e("v_mul_u32_u24 v7, s19, v7")
        k.e("s_movk_i32 s19, 1152"); k.e("v_mul_u32_u24 v10, s19, v10")
        k.e("v_add_u32 v7, v7, v10")
        k.e("v_lshl_add_u32 v7, v11, 4, v7")
        k.e(f"s_lshl_b32 s19, s{sidx}, 10")
        k.e("s_mov_b32 m0, s19")
        k.e("s_nop 0")
        k.e("buffer_load_dwordx4 v7, s[32:35], s17 offen lds")
    qload(14)
    k.e("s_cmp_ge_u32 s14, 2"); k.e("s_cbranch_scc1 L_prep_qo2")
    k.e("s_add_u32 s41, s14, 12")
    qload(41)
    k.e("s_branch L_prep_qo3")
    k.label("L_prep_qo2")
    k.e("s_cmp_ge_u32 s14, 7"); k.e("s_cbranch_scc1 L_prep_qo3")
    k.e("s_sub_u32 s41, s14, 2")
    k.e("s_lshl_b32 s18, s41, 6")
    k.e("v_add_u32 v6, s18, v1")
    divmod_const(k, 7, 8, 6, 9, 320, 19)
    k.e("s_movk_i32 s19, 1152"); k.e("v_mul_u32_u24 v7, s19, v7")
    k.e("v_lshl_add_u32 v7, v8, 4, v7")
    k.e("s_lshl_b32 s19, s41, 10"); k.e("s_add_u32 s19, s19, 14336")
    k.e("s_mov_b32 m0, s19")
    k.e("s_nop 0")
    k.e("buffer_load_dwordx4 v7, s[36:39], s40 offen lds")
    k.label("L_prep_qo3")
    k.e("v_lshl_add_u32 v10, v2, 3, v3")
    k.e("v_lshlrev_b32 v11, 3, v4")
    k.e("s_waitcnt vmcnt(0)")
    k.e("s_barrier")
    k.e("s_mov_b32 s41, s14")
    k.label("L_prep_qo_loop")
    k.e("s_movk_i32 s42, 144")
    k.e("s_cmp_lt_u32 s41, 14")
    k.e("s_cselect_b32 s42, 432, s42")
    k.e("s_cselect_b32 s43, 0, %d" % (14336 - 14*32))
    k.e("s_cselect_b32 s44, 14, 5")
    k.e(f"s_cselect_b32 s45, 0x{WQF:x}, 0x{WOF - 14*18*1024:x}")
    k.e("s_lshl_b32 s46, s41, 5"); k.e("s_add_u32 s43, s43, s46")
    k.e("v_mul_u32_u24 v6, s42, v10"); k.e("v_add_u32 v6, v6, v11"); k.e("v_add_u32 v6, s43, v6")
    k.e("s_lshl_b32 s42, s42, 2"); k.e("v_add_u32 v9, s42, v6")
    k.e("ds_read_b64_tr_b16 v[12:13], v6")
    k.e("ds_read_b64_tr_b16 v[14:15], v9")
    k.e("s_mul_i32 s44, s44, s15"); k.e("s_add_u32 s44, s44, s41"); k.e("s_mul_i32 s44, s44, 18"); k.e("s_add_u32 s44, s44, s16")
    k.e("s_lshl_b32 s44, s44, 10"); k.e("s_add_u32 s44, s44, s45")
    k.e("s_waitcnt lgkmcnt(0)")
    k.e("buffer_store_dwordx4 v[12:15], v5, s[20:23], s44 offen")
    k.e("s_add_u32 s41, s41, 12")
    k.e("s_cmp_lt_u32 s41, 19")
    k.e("s_waitcnt vmcnt(0)")
    k.e("s_cbranch_scc1 L_prep_qo_loop")
    footer(k, name)
    return name, k.text(), desc(name, 32), (432, 768, 40960)

def emit_ln_loads(k, xs, voff, raw):
    for i in range(9):
        k.vmem(f"buffer_load_dwordx4 {vr(raw[i],4)}, v{voff}, s[{xs}:{xs+3}], 0 offen offset:{128*i}", "x")

def emit_ln(k, raw, t, sones, vaddr, istep):
    regs = [raw[i] + j for i in range(9) for j in range(4)]
    s0, s1, q0, q1, a, b, rs, nm = t[4], t[5], t[6], t[7], t[0], t[1], t[2], t[3]
    k.wait(vm=["x"])
    for n, r in enumerate(regs):
        s_ = s0 if n % 2 == 0 else s1
        q_ = q0 if n % 2 == 0 else q1
        if n < 2:
            k.e(f"v_dot2_f32_bf16 v{s_}, v{r}, s{sones}, 0")
            k.e(f"v_dot2_f32_bf16 v{q_}, v{r}, v{r}, 0")
        else:
            k.e(f"v_dot2_f32_bf16 v{s_}, v{r}, s{sones}, v{s_}")
            k.e(f"v_dot2_f32_bf16 v{q_}, v{r}, v{r}, v{q_}")
    k.e("s_nop 2")
    k.e(f"v_add_f32 v{s0}, v{s0}, v{s1}")
    k.e(f"v_add_f32 v{q0}, v{q0}, v{q1}")
    for dpp in ("quad_perm:[1,0,3,2]", "quad_perm:[2,3,0,1]", "row_half_mirror"):
        k.e("s_nop 1")
        k.e(f"v_add_f32_dpp v{s0}, v{s0}, v{s0} {dpp} row_mask:0xf bank_mask:0xf")
        k.e(f"v_add_f32_dpp v{q0}, v{q0}, v{q0} {dpp} row_mask:0xf bank_mask:0xf")
    k.e(f"v_mul_f32 v{s0}, {f32(1/576)}, v{s0}")
    k.e(f"v_mul_f32 v{q0}, {f32(1/576)}, v{q0}")
    k.e(f"v_fma_f32 v{q0}, -v{s0}, v{s0}, v{q0}")
    k.e(f"v_max_f32 v{q0}, 0, v{q0}")
    k.e(f"v_add_f32 v{q0}, {f32(1e-5)}, v{q0}")
    k.e(f"v_rsq_f32 v{rs}, v{q0}")
    k.e("s_nop 0")
    k.e(f"v_mul_f32 v{nm}, v{s0}, v{rs}")
    k.e(f"v_sub_f32 v{nm}, 0, v{nm}")
    cur = 0
    for i in range(9):
        for j in range(4):
            r = raw[i] + j
            k.e(f"v_lshlrev_b32 v{a}, 16, v{r}")
            k.e(f"v_and_b32 v{b}, 0xffff0000, v{r}")
            k.e(f"v_fma_f32 v{a}, v{a}, v{rs}, v{nm}")
            k.e(f"v_fma_f32 v{b}, v{b}, v{rs}, v{nm}")
            k.e(f"v_cvt_pk_bf16_f32 v{r}, v{a}, v{b}")
        off = i * istep - cur
        if off > 65535:
            k.e(f"v_add_u32 v{vaddr}, {i*istep - cur}, v{vaddr}"); cur = i * istep; off = 0
        k.lds(f"ds_write_b128 v{vaddr}, {vr(raw[i],4)} offset:{off}", "lnw")

def emit_ln_addr(k, L, W, nmt, vx, vw, t0, t1, srow0, stmp):
    k.e(f"v_lshrrev_b32 v{t0}, 3, v{L}")
    k.e(f"s_lshl_b32 s{stmp}, s{W}, 3")
    k.e(f"v_add_u32 v{t0}, s{stmp}, v{t0}")
    k.e(f"v_and_b32 v{t1}, 7, v{L}")
    k.e(f"v_add_u32 v{vx}, s{srow0}, v{t0}")
    k.e(f"s_movk_i32 s{stmp}, 1152")
    k.e(f"v_mul_lo_u32 v{vx}, v{vx}, s{stmp}")
    k.e(f"v_lshl_add_u32 v{vx}, v{t1}, 4, v{vx}")
    k.e(f"v_lshrrev_b32 v{vw}, 2, v{t1}")
    k.e(f"v_mul_u32_u24 v{vw}, {nmt}, v{vw}")
    k.e(f"v_lshrrev_b32 v{L+0 if False else t1+0}, 0, v{t1}") if False else None
    return

def ln_addr2(k, L, W, nmt, vx, vw, t, srow0, stmp):
    t0, t1, t2, t3 = t[:4]
    k.e(f"v_lshrrev_b32 v{t0}, 3, v{L}")
    k.e(f"s_lshl_b32 s{stmp}, s{W}, 3")
    k.e(f"v_add_u32 v{t0}, s{stmp}, v{t0}")
    k.e(f"v_and_b32 v{t1}, 7, v{L}")
    k.e(f"v_add_u32 v{vx}, s{srow0}, v{t0}")
    k.e(f"s_movk_i32 s{stmp}, 1152")
    k.e(f"v_mul_lo_u32 v{vx}, v{vx}, s{stmp}")
    k.e(f"v_lshl_add_u32 v{vx}, v{t1}, 4, v{vx}")
    k.e(f"v_lshrrev_b32 v{t2}, 2, v{t1}")
    k.e(f"v_mul_u32_u24 v{vw}, {nmt}, v{t2}")
    k.e(f"v_lshrrev_b32 v{t3}, 4, v{t0}")
    k.e(f"v_add_u32 v{vw}, v{vw}, v{t3}")
    k.e(f"v_lshlrev_b32 v{vw}, 6, v{vw}")
    k.e(f"v_mul_u32_u24 v{t2}, 12, v{t2}")
    k.e(f"v_and_b32 v{t1}, 3, v{t1}")
    k.e(f"v_or_b32 v{t2}, v{t2}, v{t1}")
    k.e(f"v_and_b32 v{t0}, 15, v{t0}")
    k.e(f"v_xor_b32 v{t0}, v{t0}, v{t2}")
    k.e(f"v_lshl_add_u32 v{t0}, v{t1}, 4, v{t0}")
    k.e(f"v_add_u32 v{vw}, v{vw}, v{t0}")
    k.e(f"v_lshlrev_b32 v{vw}, 4, v{vw}")

def bread_addr(k, L, vE, vO, t):
    t0, t1 = t[:2]
    k.e(f"v_lshrrev_b32 v{t0}, 4, v{L}")
    k.e(f"v_and_b32 v{t1}, 15, v{L}")
    k.e(f"v_xor_b32 v{t1}, v{t1}, v{t0}")
    k.e(f"v_lshl_add_u32 v{vE}, v{t0}, 4, v{t1}")
    k.e(f"v_xor_b32 v{vO}, 12, v{vE}")
    k.e(f"v_lshlrev_b32 v{vE}, 4, v{vE}")
    k.e(f"v_lshlrev_b32 v{vO}, 4, v{vO}")

def gemm_loop(k, nks, NT, mts, acc, bbuf, aslot, D, bread, aload, first_c, ks0=0, nstream=None):
    nm = len(mts)
    for mi in range(nm): bread(0, mi, bbuf(0, mi))
    for ks in range(nks):
        par = ks & 1
        if ks + 1 < nks:
            for mi in range(nm): bread(ks + 1, mi, bbuf(par ^ 1, mi))
        k.wait(vm=[("a", ks0 + ks)], lg=[("b", ks)])
        slot = (ks0 + ks) % D
        for t in range(NT):
            for mi in range(nm):
                c = vr(acc(mi, t), 4)
                if ks == 0 and first_c is not None: c = first_c(mi, t)
                k.e(f"v_mfma_f32_16x16x32_bf16 {vr(acc(mi,t),4)}, {vr(aslot(slot,t),4)}, {vr(bbuf(par,mi),4)}, {c}")
        nxt = ks0 + ks + D
        if nxt < nstream: aload(nxt, slot)

QKVB = 92160
TSTR = 80 * 208
def gen_attn(layer):
    name = f"attn{layer}_kernel"
    k = K(); header(k, name, 256)
    k.e("s_load_dwordx2 s[4:5], s[0:1], 0")
    k.e("s_load_dwordx2 s[6:7], s[0:1], 80")
    L, W = 1, 14
    wave_lane(k, L, W)
    k.e("s_and_b32 s15, s2, 7")
    k.e("s_lshr_b32 s16, s2, 3")
    k.e("s_lshl_b32 s17, s16, 6"); k.e("s_sub_u32 s17, s17, 16")
    k.e("s_mov_b32 s18, 0x3f803f80")
    VX, VW, VE, VO, VL16 = 2, 3, 4, 5, 6
    ln_addr2(k, L, W, 5, VX, VW, [8, 9, 10, 11], 17, 19)
    bread_addr(k, L, VE, VO, [8, 9])
    k.e(f"v_lshlrev_b32 v{VL16}, 4, v{L}")
    k.e("s_waitcnt lgkmcnt(0)")
    if layer == 1: srd(k, 20, 4, 0, XB)
    else: srd(k, 20, 6, X2, XB)
    srd(k, 24, 6, WQF, WQF_SZ)
    srd(k, 28, 6, O1 if layer == 1 else O2, XB)
    ACC, BB, AR = 8, 40, 80
    raw = [8 + 4*i for i in range(9)]
    tmp = [44, 45, 46, 47, 48, 49, 50, 51]
    k.e("s_cmp_ge_u32 s14, 10"); k.e(f"s_cbranch_scc1 L_{name}_nox")
    emit_ln_loads(k, 20, VX, raw)
    k.label(f"L_{name}_nox")
    k.e("s_lshl_b32 s19, s14, 1"); k.e("s_add_u32 s32, s14, 2"); k.e("s_cmp_lt_u32 s14, 2"); k.e("s_cselect_b32 s32, s19, s32")
    k.e("s_mul_i32 s33, s15, 14"); k.e("s_add_u32 s33, s33, s32"); k.e("s_mul_i32 s33, s33, %d" % (18*1024))
    k.e("s_cbranch_scc1 L_%s_w2" % name) if False else None
    k.e("s_cmp_lt_u32 s14, 2"); k.e(f"s_cbranch_scc1 L_{name}_dbl0")
    snap = k.snapshot()
    def aload1(i, slot):
        if i % 4 == 0:
            k.e(f"s_add_u32 s34, s33, {i*1024}")
        k.vmem(f"buffer_load_dwordx4 {vr(AR+4*slot,4)}, v{VL16}, s[24:27], s34 offen offset:{(i%4)*1024}", ("a", i))
    for i in range(18): aload1(i, i)
    k.e(f"s_branch L_{name}_ln")
    snap1 = k.snapshot()
    k.restore(snap)
    k.label(f"L_{name}_dbl0")
    def aload2(i, slot):
        k.e(f"s_add_u32 s34, s33, {i*1024}")
        k.e(f"s_add_u32 s35, s33, {(18+i)*1024}")
        k.vmem(f"buffer_load_dwordx4 {vr(AR+8*slot,4)}, v{VL16}, s[24:27], s34 offen", ("a0", i))
        k.vmem(f"buffer_load_dwordx4 {vr(AR+8*slot+4,4)}, v{VL16}, s[24:27], s35 offen", ("a", i))
    for i in range(9): aload2(i, i)
    snap2 = k.snapshot()
    assert len(snap1[0]) == len(snap2[0])
    k.label(f"L_{name}_ln")
    k.e("s_cmp_ge_u32 s14, 10"); k.e(f"s_cbranch_scc1 L_{name}_noln")
    emit_ln(k, raw, tmp, 18, VW, 2*5*1024)
    k.wait(lg0=True)
    k.label(f"L_{name}_noln")
    k.e("s_barrier")
    VE2, VO2 = 2, 3
    k.e(f"v_add_u32 v{VE2}, 51200, v{VE}"); k.e(f"v_add_u32 v{VO2}, 51200, v{VO}")
    def mk_bread(mts):
        def bread(ks, mi, reg):
            off = (ks*5 + mts[mi]) * 1024
            base = (VE, VO)[ks & 1]
            if off >= 51200:
                off -= 51200; base = (VE2, VO2)[ks & 1]
            k.lds(f"ds_read_b128 {vr(reg,4)}, v{base} offset:{off}", ("b", ks))
        return bread
    def qkv_store(T_sgpr_add, mts, accf):
        a0, a1, p, H, t = 152, 153, 154, 155, 156
        k.e(f"v_lshrrev_b32 v{p}, 4, v{L}")
        k.e(f"v_lshlrev_b32 v{p}, 2, v{p}")
        k.e(f"s_add_u32 s19, s32, {T_sgpr_add}"); k.e("s_lshl_b32 s19, s19, 4")
        k.e(f"v_add_u32 v{p}, s19, v{p}")
        for a in (a0, a1):
            divmod_const(k, H, None, p, 18, 232, 19)
            k.e(f"v_lshrrev_b32 v{t}, 2, v{H}")
            k.e(f"s_movk_i32 s19, {TSTR-192}")
            k.e(f"v_mul_u32_u24 v{a}, s19, v{t}")
            k.e(f"v_mul_u32_u24 v{t}, 12, v{H}")
            k.e(f"v_add_u32 v{a}, v{a}, v{t}")
            k.e(f"v_lshl_add_u32 v{a}, v{p}, 1, v{a}")
            k.e(f"v_and_b32 v{t}, 15, v{L}")
            k.e(f"v_mul_u32_u24 v{t}, 208, v{t}")
            k.e(f"v_add3_u32 v{a}, v{a}, v{t}, s36")
            if a == a0: k.e(f"v_add_u32 v{p}, 2, v{p}")
        for mi, mt in enumerate(mts):
            r = accf(mi)
            k.e(f"v_cvt_pk_bf16_f32 v{r}, v{r}, v{r+1}")
            k.e(f"v_cvt_pk_bf16_f32 v{r+2}, v{r+2}, v{r+3}")
            k.lds(f"ds_write_b32 v{a0}, v{r} offset:{mt*16*208}", "qw")
            k.lds(f"ds_write_b32 v{a1}, v{r+2} offset:{mt*16*208}", "qw")
    k.e(f"s_mov_b32 s36, {QKVB}")
    k.e("s_cmp_lt_u32 s14, 2"); k.e(f"s_cbranch_scc1 L_{name}_dbl1")
    k.vm = [t for t in snap1[0] if t != "x"]; k.lg = []
    mts = [0, 1, 2, 3, 4]
    gemm_loop(k, 18, 1, mts, lambda mi, t: ACC + 4*mi, lambda par, mi: BB + 20*par + 4*mi, lambda s_, t: AR + 4*s_, 18,
              mk_bread(mts), aload1, lambda mi, t: "0", 0, 18)
    qkv_store(0, mts, lambda mi: ACC + 4*mi)
    k.e(f"s_branch L_{name}_att")
    k.label(f"L_{name}_dbl1")
    k.vm = [t for t in snap2[0] if t != "x"]; k.lg = []
    mts = [1, 2, 3, 4]
    gemm_loop(k, 18, 2, mts, lambda mi, t: ACC + 16*t + 4*mi, lambda par, mi: BB + 20*par + 4*mi, lambda s_, t: AR + 8*s_ + 4*t, 9,
              mk_bread(mts), aload2, lambda mi, t: "0", 0, 18)
    qkv_store(0, mts, lambda mi: ACC + 4*mi)
    qkv_store(1, mts, lambda mi: ACC + 16 + 4*mi)
    k.label(f"L_{name}_att")
    k.vm = []; k.lg = []
    k.e("s_waitcnt lgkmcnt(0)")
    k.e("s_barrier")
    k.e("s_cmp_ge_u32 s14, 4"); k.e(f"s_cbranch_scc1 L_{name}_end")
    VB, VG = 2, 3
    Q, KK, VV, OA, PP, T0 = 8, 18, 98, 138, 156, 164
    k.e(f"v_mul_u32_u24 v{VB}, 208, v{L}")
    k.e("s_mul_i32 s19, s14, 48"); k.e(f"s_add_u32 s19, s19, {QKVB + 2*208}")
    k.e(f"v_add_u32 v{VB}, s19, v{VB}")
    def rdvec(reg, off, tag):
        k.lds(f"ds_read_b128 {vr(reg,4)}, v{VB} offset:{off}", tag)
        k.lds(f"ds_read_b128 {vr(reg+4,4)}, v{VB} offset:{off+16}", tag)
        k.lds(f"ds_read_b32 v{reg+8}, v{VB} offset:{off+32}", tag)
    rdvec(Q, 14*208, "q")
    for w in range(8): rdvec(KK + 10*w, TSTR + (14 - 2*w)*208, ("k", w))
    for w in range(4): rdvec(VV + 10*w, 2*TSTR + (14 - 2*w)*208, ("v", w))
    k.e(f"s_lshl_b32 s19, s16, 6"); k.e(f"v_add_u32 v{VG}, s19, v{L}")
    for w in range(1, 8):
        k.e(f"v_cmp_le_u32 s[{40+2*w}:{41+2*w}], {2*w}, v{VG}")
    for half in range(2):
        ws_ = range(4*half, 4*half+4)
        k.wait(lg=["q"] + [("k", w) for w in ws_])
        for j in range(9):
            for w in ws_:
                c = "0" if j == 0 else f"v{PP+w}"
                k.e(f"v_dot2_f32_bf16 v{PP+w}, v{Q+j}, v{KK+10*w+j}, {c}")
    k.e("s_nop 2")
    for w in range(4, 8): rdvec(KK + 10*(w-4), 2*TSTR + (14 - 2*w)*208, ("v", w))
    sc = (18 ** -0.5) * math.log2(math.e)
    k.e(f"v_mov_b32 v{T0}, {f32(-1e30)}")
    for w in range(8):
        k.e(f"v_mul_f32 v{PP+w}, {f32(sc)}, v{PP+w}")
    for w in range(1, 8):
        k.e(f"v_cndmask_b32 v{PP+w}, v{T0}, v{PP+w}, s[{40+2*w}:{41+2*w}]")
    k.e(f"v_max3_f32 v{T0}, v{PP}, v{PP+1}, v{PP+2}")
    k.e(f"v_max3_f32 v{T0+1}, v{PP+3}, v{PP+4}, v{PP+5}")
    k.e(f"v_max3_f32 v{T0}, v{T0}, v{PP+6}, v{PP+7}")
    k.e(f"v_max_f32 v{T0}, v{T0}, v{T0+1}")
    for w in range(8): k.e(f"v_sub_f32 v{PP+w}, v{PP+w}, v{T0}")
    for w in range(8): k.e(f"v_exp_f32 v{PP+w}, v{PP+w}")
    k.e("s_nop 0")
    k.e(f"v_add_f32 v{Q}, v{PP}, v{PP+1}"); k.e(f"v_add_f32 v{Q+1}, v{PP+2}, v{PP+3}")
    k.e(f"v_add_f32 v{Q+2}, v{PP+4}, v{PP+5}"); k.e(f"v_add_f32 v{Q+3}, v{PP+6}, v{PP+7}")
    k.e(f"v_add_f32 v{Q}, v{Q}, v{Q+1}"); k.e(f"v_add_f32 v{Q+2}, v{Q+2}, v{Q+3}"); k.e(f"v_add_f32 v{Q}, v{Q}, v{Q+2}")
    k.e(f"v_rcp_f32 v{Q}, v{Q}")
    for w in range(8):
        base = VV + 10*w if w < 4 else KK + 10*(w-4)
        k.wait(lg=[("v", w)])
        for j in range(9):
            k.e(f"v_lshlrev_b32 v{T0}, 16, v{base+j}")
            k.e(f"v_and_b32 v{T0+1}, 0xffff0000, v{base+j}")
            if w == 0:
                k.e(f"v_mul_f32 v{OA+2*j}, v{PP}, v{T0}")
                k.e(f"v_mul_f32 v{OA+2*j+1}, v{PP}, v{T0+1}")
            else:
                k.e(f"v_fmac_f32 v{OA+2*j}, v{PP+w}, v{T0}")
                k.e(f"v_fmac_f32 v{OA+2*j+1}, v{PP+w}, v{T0+1}")
    for j in range(18): k.e(f"v_mul_f32 v{OA+j}, v{OA+j}, v{Q}")
    for j in range(9): k.e(f"v_cvt_pk_bf16_f32 v{KK+j}, v{OA+2*j}, v{OA+2*j+1}")
    k.e("s_movk_i32 s19, 1152"); k.e(f"v_mul_lo_u32 v{VG}, v{VG}, s19")
    k.e("s_mul_i32 s19, s15, 144"); k.e("s_mul_i32 s37, s14, 36"); k.e("s_add_u32 s19, s19, s37")
    k.e(f"buffer_store_dwordx3 {vr(KK,3)}, v{VG}, s[28:31], s19 offen")
    k.e(f"v_mov_b32 v{KK+12}, v{KK+3}"); k.e(f"v_mov_b32 v{KK+13}, v{KK+4}"); k.e(f"v_mov_b32 v{KK+14}, v{KK+5}")
    k.e(f"buffer_store_dwordx3 {vr(KK+12,3)}, v{VG}, s[28:31], s19 offen offset:12")
    k.e(f"buffer_store_dwordx3 {vr(KK+6,3)}, v{VG}, s[28:31], s19 offen offset:24")
    footer(k, name)
    return name, k.text(), desc(name, 168), (256, 768, QKVB + 4*TSTR)

def gen_wo(layer):
    name = f"wo{layer}_kernel"
    k = K(); header(k, name, 256)
    k.e("s_load_dwordx2 s[4:5], s[0:1], 0")
    k.e("s_load_dwordx2 s[6:7], s[0:1], 80")
    L, W = 1, 14
    wave_lane(k, L, W)
    k.e("s_and_b32 s15, s2, 7")
    k.e("s_lshr_b32 s16, s2, 3")
    VM, VG, VL16, VOFF, VR_ = 2, 3, 4, 5, 6
    k.e(f"v_and_b32 v{VM}, 15, v{L}"); k.e(f"v_lshrrev_b32 v{VG}, 4, v{L}"); k.e(f"v_lshlrev_b32 v{VL16}, 4, v{L}")
    k.e("s_movk_i32 s19, 1152")
    k.e(f"v_mul_u32_u24 v{VOFF}, s19, v{VM}")
    k.e(f"v_lshl_add_u32 v{VR_}, v{VG}, 3, v{VOFF}")
    k.e(f"v_lshl_add_u32 v{VOFF}, v{VG}, 4, v{VOFF}")
    k.e("s_waitcnt lgkmcnt(0)")
    srd(k, 20, 6, O1 if layer == 1 else O2, XB)
    srd(k, 24, 6, WOF, WOF_SZ)
    if layer == 1: srd(k, 28, 4, 0, XB)
    else: srd(k, 28, 6, X2, XB)
    srd(k, 32, 6, X1A if layer == 1 else X1B, XB)
    k.e("s_and_b32 s17, s14, 3"); k.e("s_lshr_b32 s18, s14, 2"); k.e("s_mul_i32 s18, s18, 6")
    k.e("s_lshl_b32 s36, s16, 2"); k.e("s_add_u32 s36, s36, s17"); k.e("s_mul_i32 s36, s36, %d" % (16*1152))
    k.e("s_lshl_b32 s37, s18, 6"); k.e("s_add_u32 s36, s36, s37")
    k.e("s_lshl_b32 s37, s18, 2"); k.e("s_add_u32 s37, s37, s17"); k.e("s_lshl_b32 s37, s37, 10")
    for i in range(6):
        k.e(f"s_add_u32 m0, s37, {i*4096}")
        k.e(f"s_add_u32 s38, s36, {i*64}")
        k.vmem(f"buffer_load_dwordx4 v{VOFF}, s[20:23], s38 offen lds", "o")
    k.e("s_cmp_ge_u32 s14, 10"); k.e(f"s_cbranch_scc1 L_{name}_idle")
    k.e("s_cmp_ge_u32 s14, 5"); k.e("s_cselect_b32 s40, 1, 0"); k.e("s_mul_i32 s41, s40, 5"); k.e("s_sub_u32 s41, s14, s41")
    k.e("s_mul_i32 s42, s15, 5"); k.e("s_add_u32 s42, s42, s41"); k.e("s_mul_i32 s42, s42, %d" % (18*1024))
    ACC, BB, AR, RX = 8, 16, 32, 104
    def aload(i, slot):
        if i % 4 == 0: k.e(f"s_add_u32 s43, s42, {i*1024}")
        k.vmem(f"buffer_load_dwordx4 {vr(AR+4*slot,4)}, v{VL16}, s[24:27], s43 offen offset:{(i%4)*1024}", ("a", i))
    for i in range(18): aload(i, i)
    k.e("s_lshl_b32 s44, s16, 1"); k.e("s_add_u32 s44, s44, s40"); k.e("s_mul_i32 s44, s44, %d" % (32*1152))
    k.e("s_mul_i32 s45, s15, 144"); k.e("s_add_u32 s44, s44, s45"); k.e("s_lshl_b32 s45, s41, 5"); k.e("s_add_u32 s44, s44, s45")
    k.e("s_cmp_eq_u32 s41, 4"); k.e("s_cselect_b32 s45, 2, 4")
    k.e(f"v_cmp_gt_u32 vcc, s45, v{VG}")
    k.e(f"v_mov_b32 v7, 0x7fffffff")
    k.e("s_nop 1")
    k.e(f"v_cndmask_b32 v{VR_}, v7, v{VR_}, vcc")
    k.e("s_add_u32 s45, s44, %d" % (16*1152))
    k.vmem(f"buffer_load_dwordx2 {vr(RX,2)}, v{VR_}, s[28:31], s44 offen", "r")
    k.vmem(f"buffer_load_dwordx2 {vr(RX+2,2)}, v{VR_}, s[28:31], s45 offen", "r")
    k.e("s_lshl_b32 s46, s40, 11"); k.e(f"v_add_u32 v{VOFF}, s46, v{VL16}"); k.e(f"v_add_u32 v7, 49152, v{VOFF}")
    k.wait(vm=["o"])
    k.e("s_barrier")
    def bread(ks, mi, reg):
        off = (ks*4 + mi) * 1024; base = VOFF
        if off >= 49152: off -= 49152; base = 7
        k.lds(f"ds_read_b128 {vr(reg,4)}, v{base} offset:{off}", ("b", ks))
    gemm_loop(k, 18, 1, [0, 1], lambda mi, t: ACC + 4*mi, lambda par, mi: BB + 8*par + 4*mi, lambda s_, t: AR + 4*s_, 18,
              bread, aload, lambda mi, t: "0", 0, 18)
    k.wait(vm=["r"])
    k.e("s_nop 7")
    for mi in range(2):
        a = ACC + 4*mi; r = RX + 2*mi
        for j in range(2):
            k.e(f"v_lshlrev_b32 v{BB}, 16, v{r+j}"); k.e(f"v_and_b32 v{BB+1}, 0xffff0000, v{r+j}")
            k.e(f"v_add_f32 v{a+2*j}, v{a+2*j}, v{BB}"); k.e(f"v_add_f32 v{a+2*j+1}, v{a+2*j+1}, v{BB+1}")
            k.e(f"v_cvt_pk_bf16_f32 v{r+j}, v{a+2*j}, v{a+2*j+1}")
        k.e(f"buffer_store_dwordx2 {vr(r,2)}, v{VR_}, s[32:35], s{44+mi} offen")
    k.e(f"s_branch L_{name}_end")
    k.label(f"L_{name}_idle")
    k.e("s_waitcnt vmcnt(0)")
    k.e("s_barrier")
    footer(k, name)
    return name, k.text(), desc(name, 112), (256, 768, 73728)

def gen_ffn(layer):
    name = f"ffn{layer}_kernel"
    k = K(); header(k, name, 256)
    k.e("s_load_dwordx2 s[4:5], s[0:1], 40")
    k.e("s_load_dwordx2 s[6:7], s[0:1], 80")
    L, W = 1, 14
    wave_lane(k, L, W)
    k.e("s_and_b32 s15, s2, 7")
    k.e("s_lshr_b32 s16, s2, 3")
    k.e("s_lshl_b32 s17, s16, 6")
    k.e("s_mov_b32 s18, 0x3f803f80")
    VX, VW, VE, VO, VL16, VT = 2, 3, 4, 5, 6, 7
    ACC, BB, AR, EX = 8, 56, 88, 160
    D = 6
    ln_addr2(k, L, W, 4, VX, VW, [8, 9, 10, 11], 17, 19)
    bread_addr(k, L, VE, VO, [8, 9])
    k.e(f"v_lshlrev_b32 v{VL16}, 4, v{L}")
    k.e(f"v_lshrrev_b32 v{VT}, 4, v{L}"); k.e(f"v_mul_u32_u24 v{VT}, 24, v{VT}")
    k.e("s_waitcnt lgkmcnt(0)")
    srd(k, 20, 6, X1A if layer == 1 else X1B, XB)
    srd(k, 24, 6, WFF, WFF_SZ)
    srd(k, 28, 4, 0, 4608*2)
    srd(k, 32, 6, P1 if layer == 1 else P2, 8*XB)
    raw = [BB + 4*i for i in range(8)] + [EX]
    tmp = [EX+4, EX+5, EX+6, EX+7, 48, 49, 50, 51]
    k.e("s_cmp_ge_u32 s14, 8"); k.e(f"s_cbranch_scc1 L_{name}_nox")
    emit_ln_loads(k, 20, VX, raw)
    k.label(f"L_{name}_nox")
    k.e("s_mul_i32 s36, s15, 1152"); k.e("s_mul_i32 s37, s14, 96"); k.e("s_add_u32 s36, s36, s37")
    k.vmem(f"buffer_load_dwordx3 v[40:42], v{VT}, s[28:31], s36 offen", "bias")
    k.vmem(f"buffer_load_dwordx3 v[44:46], v{VT}, s[28:31], s36 offen offset:12", "bias")
    k.e("s_mul_i32 s38, s15, 12"); k.e("s_add_u32 s38, s38, s14"); k.e("s_mul_i32 s38, s38, %d" % (36*3072))
    def aload(i, slot):
        k.e(f"s_add_u32 s39, s38, {i*3072}")
        for t in range(3):
            k.vmem(f"buffer_load_dwordx4 {vr(AR+12*slot+4*t,4)}, v{VL16}, s[24:27], s39 offen offset:{1024*t}", ("a", i) if t == 2 else ("a_", i))
    for i in range(D): aload(i, i)
    k.e("s_cmp_ge_u32 s14, 8"); k.e(f"s_cbranch_scc1 L_{name}_noln")
    emit_ln(k, raw, tmp, 18, VW, 2*4*1024)
    k.label(f"L_{name}_noln")
    k.wait(vm=["bias"])
    src = [40, 41, 42, 44, 45, 46]
    for j in range(6):
        k.e(f"v_lshlrev_b32 v{ACC+2*j}, 16, v{src[j]}")
        k.e(f"v_and_b32 v{ACC+2*j+1}, 0xffff0000, v{src[j]}")
    k.wait(lg0=True)
    k.e("s_barrier")
    VE2, VO2 = 2, 3
    k.e(f"v_add_u32 v{VE2}, 49152, v{VE}"); k.e(f"v_add_u32 v{VO2}, 49152, v{VO}")
    def bread1(ks, mi, reg):
        off = (ks*4 + mi) * 1024; base = (VE, VO)[ks & 1]
        if off >= 49152: off -= 49152; base = (VE2, VO2)[ks & 1]
        k.lds(f"ds_read_b128 {vr(reg,4)}, v{base} offset:{off}", ("b", ks))
    accf = lambda mi, t: ACC + 12*mi + 4*t
    bbf = lambda par, mi: BB + 16*par + 4*mi
    asf = lambda s_, t: AR + 12*s_ + 4*t
    def gemm(nks, bread, first_c, ks0):
        nm = 4
        for mi in range(nm): bread(0, mi, bbf(0, mi))
        for ks in range(nks):
            par = ks & 1
            if ks + 1 < nks:
                for mi in range(nm): bread(ks + 1, mi, bbf(par ^ 1, mi))
            k.wait(vm=[("a", ks0 + ks)], lg=[("b", ks)])
            slot = (ks0 + ks) % D
            for mi in (3, 2, 1, 0):
                for t in range(3):
                    c = vr(accf(mi, t), 4)
                    if ks == 0: c = first_c(mi, t)
                    k.e(f"v_mfma_f32_16x16x32_bf16 {vr(accf(mi,t),4)}, {vr(asf(slot,t),4)}, {vr(bbf(par,mi),4)}, {c}")
            nxt = ks0 + ks + D
            if nxt < 36: aload(nxt, slot)
    gemm(18, bread1, lambda mi, t: vr(accf(0, t), 4), 0)
    HB = 73728
    k.e("s_lshr_b32 s40, s14, 1"); k.e("s_and_b32 s41, s14, 1"); k.e("s_mul_i32 s40, s40, 3")
    k.e("s_add_u32 s42, s40, s41"); k.e("s_lshl_b32 s42, s42, 12"); k.e(f"s_add_u32 s42, s42, {HB}")
    k.e("s_add_u32 s43, s40, 2"); k.e("s_lshl_b32 s43, s43, 12"); k.e("s_lshl_b32 s41, s41, 3"); k.e("s_add_u32 s43, s43, s41"); k.e(f"s_add_u32 s43, s43, {HB}")
    k.e(f"v_add_u32 v{VE}, s42, v{VL16}"); k.e(f"v_add_u32 v{VO}, s43, v{VL16}")
    c0 = -2.0 * math.sqrt(2.0/math.pi) * math.log2(math.e)
    c1 = c0 * 0.044715
    k.e(f"s_mov_b32 s44, {f32(c1)}"); k.e(f"v_mov_b32 v{EX}, {f32(c0)}")
    k.e("s_nop 4")
    for mi in (3, 2, 1, 0):
        a = accf(mi, 0); T = BB
        for j in range(12): k.e(f"v_mul_f32 v{T+j}, v{a+j}, v{a+j}")
        for j in range(12): k.e(f"v_fma_f32 v{T+j}, v{T+j}, s44, v{EX}")
        for j in range(12): k.e(f"v_mul_f32 v{T+j}, v{T+j}, v{a+j}")
        for j in range(12): k.e(f"v_exp_f32 v{T+j}, v{T+j}")
        for j in range(12): k.e(f"v_add_f32 v{T+j}, 1.0, v{T+j}")
        for j in range(12): k.e(f"v_rcp_f32 v{T+j}, v{T+j}")
        for j in range(12): k.e(f"v_mul_f32 v{T+j}, v{T+j}, v{a+j}")
        for j in range(6): k.e(f"v_cvt_pk_bf16_f32 v{a+j}, v{T+2*j}, v{T+2*j+1}")
        k.lds(f"ds_write_b128 v{VE}, {vr(a,4)} offset:{mi*1024}", "hw")
        k.lds(f"ds_write_b64 v{VO}, {vr(a+4,2)} offset:{mi*1024}", "hw")
    k.e(f"v_add_u32 v{VE}, {HB}, v{VL16}"); k.e(f"v_add_u32 v{VO}, {HB+49152}, v{VL16}")
    k.wait(lg0=True)
    k.e("s_barrier")
    def bread2(ks, mi, reg):
        off = (ks*4 + mi) * 1024; base = VE
        if off >= 49152: off -= 49152; base = VO
        k.lds(f"ds_read_b128 {vr(reg,4)}, v{base} offset:{off}", ("b", ks))
    gemm(18, bread2, lambda mi, t: "0", 18)
    k.e(f"v_and_b32 v{VE}, 15, v{L}"); k.e("s_movk_i32 s19, 1152"); k.e(f"v_mul_u32_u24 v{VE}, s19, v{VE}"); k.e(f"v_add_u32 v{VE}, v{VE}, v{VT}")
    k.e(f"s_mul_i32 s40, s15, {XB}"); k.e("s_mul_i32 s41, s16, %d" % (64*1152)); k.e("s_add_u32 s40, s40, s41"); k.e("s_add_u32 s40, s40, s37")
    k.e("s_nop 2")
    for mi in (3, 2, 1, 0):
        a = accf(mi, 0); T = BB + 8*mi
        for j in range(3): k.e(f"v_cvt_pk_bf16_f32 v{T+j}, v{a+2*j}, v{a+2*j+1}")
        for j in range(3): k.e(f"v_cvt_pk_bf16_f32 v{T+4+j}, v{a+6+2*j}, v{a+6+2*j+1}")
        k.e(f"s_add_u32 s41, s40, {mi*16*1152}")
        k.e(f"buffer_store_dwordx3 {vr(T,3)}, v{VE}, s[32:35], s41 offen")
        k.e(f"buffer_store_dwordx3 {vr(T+4,3)}, v{VE}, s[32:35], s41 offen offset:12")
    footer(k, name)
    return name, k.text(), desc(name, 168), (256, 768, 147456)

def gen_red(layer):
    name = f"red{layer}_kernel"
    k = K(); header(k, name, 256)
    k.e("s_load_dwordx4 s[4:7], s[0:1], 56")
    k.e("s_load_dwordx2 s[8:9], s[0:1], 80")
    k.e("v_lshlrev_b32 v1, 4, v0")
    divmod_const(k, 2, 3, 0, 72, 576, 19)
    k.e("v_lshlrev_b32 v3, 4, v3")
    k.e("s_mul_i32 s16, s2, 9216")
    k.e("s_mov_b32 s17, 0x3f80"); k.e("s_mov_b32 s18, 0x3f800000")
    k.e("s_waitcnt lgkmcnt(0)")
    srd(k, 20, 8, P1 if layer == 1 else P2, 8*XB)
    srd(k, 24, 8, X1A if layer == 1 else X1B, XB)
    srd(k, 28, 4, 0, 1152)
    if layer == 1: srd(k, 32, 8, X2, XB)
    else: srd(k, 32, 6, 0, XB)
    for s in range(8):
        k.e(f"s_add_u32 s19, s16, {s*XB}")
        k.vmem(f"buffer_load_dwordx4 {vr(8+4*s,4)}, v1, s[20:23], s19 offen", s)
    k.vmem(f"buffer_load_dwordx4 v[40:43], v1, s[24:27], s16 offen", 8)
    k.vmem(f"buffer_load_dwordx4 v[44:47], v3, s[28:31], 0 offen", 9)
    for s in range(10):
        k.wait(vm=[s])
        for j in range(4):
            r = 8 + 4*s + j
            if s == 0:
                k.e(f"v_lshlrev_b32 v{48+2*j}, 16, v{r}"); k.e(f"v_and_b32 v{49+2*j}, 0xffff0000, v{r}")
            else:
                k.e(f"v_lshlrev_b32 v4, 16, v{r}"); k.e(f"v_and_b32 v5, 0xffff0000, v{r}")
                k.e(f"v_add_f32 v{48+2*j}, v{48+2*j}, v4"); k.e(f"v_add_f32 v{49+2*j}, v{49+2*j}, v5")
    for j in range(4): k.e(f"v_cvt_pk_bf16_f32 v{8+j}, v{48+2*j}, v{49+2*j}")
    k.e("buffer_store_dwordx4 v[8:11], v1, s[32:35], s16 offen")
    footer(k, name)
    return name, k.text(), desc(name, 56), (256, 576, 0)

def main(out):
    ks = [gen_prep()]
    for l in (1, 2):
        ks += [gen_attn(l), gen_wo(l), gen_ffn(l), gen_red(l)]
    ref = open(f"cdna_kernels/{NAME}.s.ref").read().splitlines()
    hdr = [l for l in ref if l.startswith(";") and "@launch" not in l and "Override" not in l and "grid=ceil" not in l]
    s = "\n".join(hdr) + "\n"
    for n, _, _, (g, b, lds) in ks:
        s += f"; @launch kernel={n} grid=({g},1,1) block=({b},1,1) lds={lds}\n"
    s += '.amdgcn_target "amdgcn-amd-amdhsa--gfx950"\n.text\n'
    for _, t, _, _ in ks: s += t
    for _, _, d, _ in ks: s += d
    open(out, "w").write(s)

if __name__ == "__main__":
    main(sys.argv[1] if len(sys.argv) > 1 else f"cdna_kernels/{NAME}.s")
```

```python
import sys, struct, math, os
from asmlib import *

NAME = "interleave_layers__sliding_local_dilated__dense_activation_gelu__prompt"
XB = 2048 * 1152
TILEB = 73728
WQF, WOF, WFF = 0x0, 0x200000, 0x300000
CS1, CSQ = 0xE00000, 0xE10000
ST0, ST1A, ST2, ST1B = 0xE40000, 0xE80000, 0xEC0000, 0xF00000
X0P = 0x4C00000
O1, X1A, X2, O2, X1B, P1, P2 = 0x1000000, 0x1400000, 0x1800000, 0x1C00000, 0x2000000, 0x2400000, 0x3800000
WQF_SZ, WOF_SZ, WFF_SZ = 8*14*18*1024, 8*5*18*1024, 8*12*36*3072
ST_SZ = 32*8*64*8
ENV = lambda n, d: int(os.environ.get(n, str(d)))
STAMP = ENV("STAMP", 0)
STAMP_BASE = 0x8000000

def f32(x):
    return "0x%08x" % struct.unpack("<I", struct.pack("<f", x))[0]

def srd(k, d, b, add, size):
    if add:
        k.e(f"s_add_u32 s{d}, s{b}, 0x{add:x}")
        k.e(f"s_addc_u32 s{d+1}, s{b+1}, 0")
    else:
        k.e(f"s_mov_b32 s{d}, s{b}")
        k.e(f"s_mov_b32 s{d+1}, s{b+1}")
    k.e(f"s_mov_b32 s{d+2}, 0x{size:x}")
    k.e(f"s_mov_b32 s{d+3}, 0x20000")

def stamp(k, i):
    if not STAMP: return
    k.e("s_waitcnt lgkmcnt(0)"); k.lg = []
    k.e(f"s_memtime s[84:85]")
    k.e(f"s_memrealtime s[86:87]")
    k.e("s_waitcnt lgkmcnt(0)")
    k.e(f"s_mov_b32 s{64+i}, s84"); k.e(f"s_mov_b32 s{74+i}, s86")
def stamp_begin(k):
    if not STAMP: return
    for i in range(1, 9):
        k.e(f"s_mov_b32 s{64+i}, 0"); k.e(f"s_mov_b32 s{74+i}, 0")
    stamp(k, 0)
def stamp_end(k, kidx):
    if not STAMP: return
    k.e("s_waitcnt vmcnt(0)")
    stamp(k, 8)
    k.e("s_load_dwordx2 s[88:89], s[0:1], 80")
    k.e("s_getreg_b32 s90, hwreg(HW_REG_XCC_ID)")
    k.e("s_waitcnt lgkmcnt(0)")
    k.e("s_mov_b64 exec, 1")
    k.e(f"s_add_u32 s88, s88, 0x{STAMP_BASE:x}"); k.e("s_addc_u32 s89, s89, 0")
    k.e(f"s_add_u32 s91, s2, {kidx*512}"); k.e("s_lshl_b32 s91, s91, 4")
    k.e("v_lshrrev_b32 v1, 6, v0"); k.e("v_add_u32 v1, s91, v1"); k.e("v_lshlrev_b32 v1, 7, v1")
    vals = [64+i for i in range(9)] + [90] + [74+i for i in range(9)] + [90]
    for j, sreg in enumerate(vals):
        k.e(f"v_mov_b32 v{2+j}, s{sreg}")
    for j in range(0, 20, 4):
        k.e(f"global_store_dwordx4 v1, v[{2+j}:{5+j}], s[88:89] offset:{4*j}")

KIDX = [0]
def header(k, name, nwg):
    k.lines.append(f".globl {name}\n.p2align 8\n.type {name},@function\n{name}:")
    k.e(f"s_cmp_ge_u32 s2, {nwg}")
    k.e(f"s_cbranch_scc1 L_{name}_exit")
    stamp_begin(k)
def footer(k, name):
    k.label(f"L_{name}_end")
    stamp_end(k, KIDX[0]); KIDX[0] += 1
    k.label(f"L_{name}_exit")
    k.e("s_endpgm")

def desc(name, vgpr, sgpr=96):
    acc = (vgpr + 3) // 4 * 4
    return f""".section .rodata,"a"
.p2align 6
.amdhsa_kernel {name}
  .amdhsa_next_free_vgpr {vgpr}
  .amdhsa_next_free_sgpr {sgpr}
  .amdhsa_accum_offset {acc}
  .amdhsa_group_segment_fixed_size 0
  .amdhsa_kernarg_size 88
  .amdhsa_user_sgpr_count 2
  .amdhsa_user_sgpr_kernarg_segment_ptr 1
  .amdhsa_system_sgpr_workgroup_id_x 1
  .amdhsa_float_denorm_mode_32 3
.end_amdhsa_kernel
.text
"""

def divmod_const(k, q, rem, x, d, nmax, stmp):
    m, sh = magic(d, nmax)
    k.e(f"s_mov_b32 s{stmp}, {m}")
    k.e(f"v_mul_u32_u24 v{q}, s{stmp}, v{x}")
    k.e(f"v_lshrrev_b32 v{q}, {sh}, v{q}")
    if rem is not None:
        if d <= 64:
            k.e(f"v_mul_u32_u24 v{rem}, {d}, v{q}")
        else:
            k.e(f"v_mul_u32_u24 v{rem}, 0x{d:x}, v{q}")
        k.e(f"v_sub_u32 v{rem}, v{x}, v{rem}")

def sdivmod(k, q, rem, x, d, nmax):
    m, sh = magic(d, nmax)
    k.e(f"s_mul_i32 s{q}, s{x}, {m}"); k.e(f"s_lshr_b32 s{q}, s{q}, {sh}")
    if rem is not None:
        k.e(f"s_mul_i32 s{rem}, s{q}, {d}"); k.e(f"s_sub_u32 s{rem}, s{x}, s{rem}")

MAP = dict(attn=ENV("SX_A", 4), wo=ENV("SX_B", 8), ffn=ENV("SX_C", 2))
def mapping(k, Sx, ss=15, sr_=16, sidx=12):
    R = 32 // Sx; ng = 8 // Sx
    lg = lambda x: x.bit_length() - 1
    k.e("s_and_b32 s10, s2, 7")
    k.e("s_lshr_b32 s11, s2, 3")
    k.e(f"s_and_b32 s{ss}, s10, {ng-1}")
    k.e(f"s_lshl_b32 s{ss}, s{ss}, {lg(Sx)}")
    k.e(f"s_and_b32 s13, s11, {Sx-1}")
    k.e(f"s_add_u32 s{ss}, s{ss}, s13")
    k.e(f"s_lshr_b32 s{sr_}, s10, {lg(ng)}")
    k.e(f"s_lshl_b32 s{sr_}, s{sr_}, {lg(R)}")
    k.e(f"s_lshr_b32 s{sidx}, s11, {lg(Sx)}")
    k.e(f"s_add_u32 s{sr_}, s{sr_}, s{sidx}")

def rot18(k, sidx, srot, R):
    if not ENV("ROT", 1):
        k.e(f"s_mov_b32 s{srot}, 0"); return
    if R <= 16:
        mult = {4: 4, 8: 2, 16: 1}[R]
        k.e(f"s_mul_i32 s{srot}, s{sidx}, {mult}")
    else:
        k.e(f"s_sub_u32 s{srot}, s{sidx}, 18"); k.e(f"s_cmp_ge_u32 s{sidx}, 18"); k.e(f"s_cselect_b32 s{srot}, s{srot}, s{sidx}")

def wave_lane(k, vlane, swave):
    k.e(f"v_lshrrev_b32 v{vlane}, 6, v0")
    k.e("s_nop 0")
    k.e(f"v_readfirstlane_b32 s{swave}, v{vlane}")
    k.e(f"v_and_b32 v{vlane}, 63, v0")

def touch(k, srd_, L, n_instr, swave_idx, nwaves, per_slab, slab_stride, sbase, nslab, t, dummy, gran=64):
    t0, t1, t2 = t[:3]
    nmax = 32 * nwaves * n_instr * 64
    k.e(f"s_lshr_b32 s58, s2, 3"); k.e(f"s_mul_i32 s58, s58, {nwaves}"); k.e(f"s_add_u32 s58, s58, s{swave_idx}"); k.e(f"s_mul_i32 s58, s58, {n_instr*64}")
    for j in range(n_instr):
        k.e(f"v_add_u32 v{t0}, s58, v{L}")
        if j: k.e(f"v_add_u32 v{t0}, {64*j}, v{t0}")
        m, sh = magic2(per_slab, nmax)
        k.e(f"s_mov_b32 s59, {m}"); k.e(f"v_mul_hi_u32 v{t1}, v{t0}, s59")
        if sh: k.e(f"v_lshrrev_b32 v{t1}, {sh}, v{t1}")
        k.e(f"s_mov_b32 s59, {per_slab}"); k.e(f"v_mul_u32_u24 v{t2}, s59, v{t1}"); k.e(f"v_sub_u32 v{t0}, v{t0}, v{t2}")
        k.e(f"s_mov_b32 s59, {slab_stride}"); k.e(f"v_mul_u32_u24 v{t2}, s59, v{t1}")
        k.e(f"v_lshl_add_u32 v{t0}, v{t0}, {gran.bit_length()-1}, v{t2}")
        k.e(f"v_cmp_gt_u32 vcc, {nslab}, v{t1}")
        k.e(f"v_mov_b32 v{t2}, 0x7ff00000")
        k.e("s_nop 0")
        k.e(f"v_cndmask_b32 v{t0}, v{t2}, v{t0}, vcc")
        k.vmem(f"buffer_load_dword v{dummy}, v{t0}, s[{srd_}:{srd_+3}], s{sbase} offen", "touch")

def magic2(d, nmax):
    for sh in range(0, 12):
        m = (1 << (32 + sh)) // d + 1
        if m >= (1 << 32): continue
        if all((x * m) >> (32 + sh) == x // d for x in range(0, nmax, 1)):
            return m, sh
    raise ValueError

def dma(k, m0expr, voff, srd_, soff, tag=None):
    for l in m0expr: k.e(l)
    k.e("s_nop 0")
    k.vmem(f"buffer_load_dwordx4 v{voff}, s[{srd_}:{srd_+3}], {soff} offen lds", tag)

NJ_W1, NJ_W2, NJ_WQ, NJ_WO, NJ_X0, NJ_C1, NJ_CQ = 144, 144, 72, 16, 32, 72, 27
FLG = 0xF80000
FLG_LAYER = 4*32*128
def gen_prep():
    name = "prep_kernel"
    NT = NJ_W1 + NJ_W2 + NJ_WQ + NJ_WO + NJ_X0 + NJ_C1 + NJ_CQ
    k = K(); header(k, name, NT)
    k.e("s_load_dwordx4 s[4:7], s[0:1], 8")
    k.e("s_load_dwordx2 s[8:9], s[0:1], 32")
    k.e("s_load_dwordx2 s[10:11], s[0:1], 48")
    k.e("s_load_dwordx2 s[12:13], s[0:1], 80")
    k.e("s_load_dwordx2 s[48:49], s[0:1], 0")
    wave_lane(k, 1, 14)
    k.e("s_and_b32 s15, s2, 7")
    k.e("s_lshr_b32 s16, s2, 3")
    k.e("v_lshrrev_b32 v2, 4, v1")
    k.e("v_bfe_u32 v3, v1, 2, 2")
    k.e("v_and_b32 v4, 3, v1")
    k.e("v_lshlrev_b32 v5, 4, v1")
    k.e("s_waitcnt lgkmcnt(0)")
    srd(k, 20, 12, 0, 0x5000000)
    srd(k, 24, 8, 0, 576*4608*2)
    srd(k, 28, 10, 0, 576*4608*2)
    srd(k, 32, 4, 0, 576*1728*2)
    srd(k, 36, 6, 0, 576*576*2)
    srd(k, 52, 48, 0, XB)
    b = [0]
    for n in (NJ_X0, NJ_WO, NJ_WQ, NJ_C1, NJ_W1, NJ_W2): b.append(b[-1] + n)
    for bound, lab in ((b[1], "x0"), (b[2], "wo"), (b[3], "wq"), (b[4], "c1"), (b[5], "w1"), (b[6], "w2")):
        k.e(f"s_cmp_lt_u32 s2, {bound}"); k.e(f"s_cbranch_scc1 L_prep_{lab}")
    k.e("s_branch L_prep_cq")
    def lin_dma(n_i, per_row, nmax, pitch, srd_, soff):
        k.e(f"s_mul_i32 s18, s14, {64*n_i}")
        for i in range(n_i):
            k.e(f"v_add_u32 v6, s18, v1")
            if i: k.e(f"v_add_u32 v6, {64*i}, v6")
            divmod_const(k, 7, 8, 6, per_row, nmax, 19)
            k.e(f"s_mov_b32 s19, {pitch}")
            k.e("v_mul_u32_u24 v7, s19, v7")
            k.e("v_lshl_add_u32 v7, v8, 4, v7")
            dma(k, [f"s_mul_i32 s19, s14, {1024*n_i}", f"s_add_u32 m0, s19, {1024*i}"], 7, srd_, soff)
    k.label("L_prep_w1")
    k.e(f"s_sub_u32 s16, s16, {b[4]//8}")
    k.e("s_mul_i32 s17, s16, %d" % (32*9216)); k.e("s_mul_i32 s18, s15, 1152"); k.e("s_add_u32 s17, s17, s18")
    lin_dma(3, 72, 2304, 9216, 24, "s17")
    k.e("v_lshl_add_u32 v6, v2, 3, v3")
    k.e("s_mov_b32 s19, 1152"); k.e("v_mul_u32_u24 v6, s19, v6")
    k.e("v_mul_u32_u24 v7, 24, v4"); k.e("v_add_u32 v6, v6, v7")
    k.e("s_mul_i32 s19, s14, 96"); k.e("v_add_u32 v6, s19, v6")
    k.e("v_add_u32 v9, %d, v6" % (4*1152))
    k.e("v_add_u32 v10, 16, v6"); k.e("v_add_u32 v11, 16, v9")
    k.e("s_mul_i32 s17, s15, 12"); k.e("s_add_u32 s17, s17, s14"); k.e("s_mul_i32 s17, s17, 36"); k.e("s_add_u32 s17, s17, s16")
    k.e("s_mul_i32 s17, s17, 3072"); k.e(f"s_add_u32 s17, s17, 0x{WFF:x}")
    k.e("s_branch L_prep_tr3")
    k.label("L_prep_w2")
    k.e(f"s_sub_u32 s16, s16, {b[5]//8}")
    sdivmod(k, 40, 41, 16, 3, 18)
    k.e("s_mul_i32 s17, s15, 576"); k.e("s_mul_i32 s18, s40, 96"); k.e("s_add_u32 s17, s17, s18")
    k.e("s_mul_i32 s17, s17, 1152"); k.e("s_mul_i32 s18, s41, 384"); k.e("s_add_u32 s17, s17, s18")
    lin_dma(3, 24, 2304, 1152, 28, "s17")
    k.e("s_lshr_b32 s42, s14, 2")
    k.e("s_and_b32 s43, s14, 3")
    k.e("s_cmp_eq_u32 s42, 1"); k.e("s_cselect_b32 s44, 48, 0")
    k.e("s_movk_i32 s45, %d" % (4*384)); k.e("s_cmp_eq_u32 s42, 2"); k.e("s_cselect_b32 s44, 8, s44"); k.e("s_cselect_b32 s45, %d, s45" % (48*384))
    k.e("v_mul_u32_u24 v6, 12, v2"); k.e("v_add_u32 v6, v6, v3"); k.e("v_add_u32 v6, s44, v6")
    k.e("s_movk_i32 s19, 384"); k.e("v_mul_u32_u24 v6, s19, v6")
    k.e("s_mul_i32 s19, s43, 96"); k.e("v_add_u32 v6, s19, v6")
    k.e("v_lshl_add_u32 v10, v4, 3, v6"); k.e("v_add_u32 v10, 64, v10")
    k.e("v_lshl_add_u32 v6, v4, 4, v6")
    k.e("v_add_u32 v9, s45, v6"); k.e("v_add_u32 v11, s45, v10")
    k.e("s_mul_i32 s17, s15, 12"); k.e("s_lshl_b32 s18, s41, 2"); k.e("s_add_u32 s17, s17, s18"); k.e("s_add_u32 s17, s17, s43")
    k.e("s_mul_i32 s17, s17, 36"); k.e("s_mul_i32 s18, s40, 3"); k.e("s_add_u32 s17, s17, s18"); k.e("s_add_u32 s17, s17, s42")
    k.e("s_add_u32 s17, s17, 18")
    k.e("s_mul_i32 s17, s17, 3072"); k.e(f"s_add_u32 s17, s17, 0x{WFF:x}")
    k.label("L_prep_tr3")
    k.e("s_waitcnt vmcnt(0)")
    k.e("s_barrier")
    for t in range(2):
        k.e(f"ds_read_b64_tr_b16 v[{12+4*t}:{13+4*t}], v6 offset:{8*t}")
        k.e(f"ds_read_b64_tr_b16 v[{14+4*t}:{15+4*t}], v9 offset:{8*t}")
    k.e(f"ds_read_b64_tr_b16 v[20:21], v10")
    k.e(f"ds_read_b64_tr_b16 v[22:23], v11")
    for t in range(3):
        k.e(f"s_waitcnt lgkmcnt({4-2*t})")
        k.e(f"buffer_store_dwordx4 v[{12+4*t}:{15+4*t}], v5, s[20:23], s17 offen offset:{1024*t}")
    k.e(f"s_branch L_{name}_end")
    k.label("L_prep_wq")
    k.e(f"s_sub_u32 s16, s16, {b[2]//8}")
    k.e("s_mul_i32 s17, s16, %d" % (64*3456)); k.e("s_mul_i32 s18, s15, 144"); k.e("s_add_u32 s17, s17, s18")
    k.e("s_cmp_ge_u32 s14, 10"); k.e("s_cbranch_scc1 L_prep_wq2")
    k.e("s_mul_i32 s18, s14, 192")
    for i in range(3):
        k.e(f"v_add_u32 v6, s18, v1")
        if i: k.e(f"v_add_u32 v6, {64*i}, v6")
        divmod_const(k, 7, 8, 6, 27, 1920, 19)
        divmod_const(k, 10, 11, 8, 9, 27, 19)
        k.e("s_movk_i32 s19, 3456"); k.e("v_mul_u32_u24 v7, s19, v7")
        k.e("s_movk_i32 s19, 1152"); k.e("v_mul_u32_u24 v10, s19, v10")
        k.e("v_add_u32 v7, v7, v10")
        k.e("v_lshl_add_u32 v7, v11, 4, v7")
        dma(k, ["s_mul_i32 s19, s14, 3072", f"s_add_u32 m0, s19, {1024*i}"], 7, 32, "s17")
    k.label("L_prep_wq2")
    k.e("v_lshl_add_u32 v10, v2, 3, v3")
    k.e("s_movk_i32 s19, 432"); k.e("v_mul_u32_u24 v10, s19, v10")
    k.e("v_lshl_add_u32 v10, v4, 3, v10")
    k.e("s_waitcnt vmcnt(0)")
    k.e("s_barrier")
    k.e("s_mov_b32 s41, s14")
    k.label("L_prep_wq_loop")
    k.e("s_cmp_ge_u32 s41, 14"); k.e("s_cselect_b32 s42, 1, 0"); k.e("s_mul_i32 s43, s42, 14"); k.e("s_sub_u32 s43, s41, s43")
    k.e("s_mul_i32 s44, s42, %d" % (32*432)); k.e("s_lshl_b32 s45, s43, 5"); k.e("s_add_u32 s44, s44, s45")
    k.e("v_add_u32 v6, s44, v10")
    k.e("ds_read_b64_tr_b16 v[12:13], v6")
    k.e("ds_read_b64_tr_b16 v[14:15], v6 offset:%d" % (4*432))
    k.e("s_mul_i32 s44, s15, 14"); k.e("s_add_u32 s44, s44, s43"); k.e("s_mul_i32 s44, s44, 18")
    k.e("s_lshl_b32 s45, s16, 1"); k.e("s_add_u32 s44, s44, s45"); k.e("s_add_u32 s44, s44, s42"); k.e("s_lshl_b32 s44, s44, 10")
    k.e("s_waitcnt lgkmcnt(0)")
    k.e("buffer_store_dwordx4 v[12:15], v5, s[20:23], s44 offen")
    k.e("s_add_u32 s41, s41, 12")
    k.e("s_cmp_lt_u32 s41, 28")
    k.e("s_nop 1")
    k.e("s_cbranch_scc1 L_prep_wq_loop")
    k.e(f"s_branch L_{name}_end")
    k.label("L_prep_wo")
    k.e(f"s_sub_u32 s16, s16, {b[1]//8}")
    k.e("s_mul_i32 s17, s16, %d" % (288*1152)); k.e("s_mul_i32 s18, s15, 144"); k.e("s_add_u32 s17, s17, s18")
    lin_dma(4, 9, 3072, 1152, 36, "s17")
    k.e("s_waitcnt vmcnt(0)")
    k.e("s_barrier")
    k.e("s_mov_b32 s41, s14")
    k.label("L_prep_wo_loop")
    sdivmod(k, 42, 43, 41, 5, 48)
    k.e("s_lshl_b32 s44, s42, 2"); k.e("v_add_u32 v6, s44, v2")
    divmod_const(k, 7, 8, 6, 9, 36, 19)
    k.e("v_mul_u32_u24 v7, 0x48, v7")
    k.e("v_lshrrev_b32 v9, 1, v8"); k.e("v_mul_u32_u24 v9, 18, v9")
    k.e("v_and_b32 v10, 1, v8"); k.e("v_lshl_add_u32 v9, v10, 3, v9")
    k.e("v_add_u32 v9, v9, v3")
    k.e("v_add_u32 v10, 4, v9")
    k.e("v_lshrrev_b32 v11, 1, v3"); k.e("v_mul_u32_u24 v11, 18, v11"); k.e("v_and_b32 v16, 1, v3")
    k.e("v_add3_u32 v11, v11, v16, 16")
    k.e("v_add_u32 v16, 36, v11")
    k.e("v_cmp_eq_u32 vcc, 8, v8")
    k.e("s_nop 1")
    k.e("v_cndmask_b32 v9, v9, v11, vcc"); k.e("v_cndmask_b32 v10, v10, v16, vcc")
    k.e("v_add_u32 v9, v9, v7"); k.e("v_add_u32 v10, v10, v7")
    k.e("s_movk_i32 s19, 144"); k.e("v_mul_u32_u24 v9, s19, v9"); k.e("v_mul_u32_u24 v10, s19, v10")
    k.e("s_lshl_b32 s44, s43, 5")
    k.e("v_lshl_add_u32 v9, v4, 3, v9"); k.e("v_lshl_add_u32 v10, v4, 3, v10")
    k.e("v_add_u32 v9, s44, v9"); k.e("v_add_u32 v10, s44, v10")
    k.e("ds_read_b64_tr_b16 v[12:13], v9")
    k.e("ds_read_b64_tr_b16 v[14:15], v10")
    k.e("s_mul_i32 s44, s15, 5"); k.e("s_add_u32 s44, s44, s43"); k.e("s_mul_i32 s44, s44, 18")
    k.e("s_mul_i32 s45, s16, 9"); k.e("s_add_u32 s44, s44, s45"); k.e("s_add_u32 s44, s44, s42"); k.e("s_lshl_b32 s44, s44, 10")
    k.e(f"s_add_u32 s44, s44, 0x{WOF:x}")
    k.e("s_waitcnt lgkmcnt(0)")
    k.e("buffer_store_dwordx4 v[12:15], v5, s[20:23], s44 offen")
    k.e("s_add_u32 s41, s41, 12")
    k.e("s_cmp_lt_u32 s41, 45")
    k.e("s_nop 1")
    k.e("s_cbranch_scc1 L_prep_wo_loop")
    k.e(f"s_branch L_{name}_end")
    k.label("L_prep_x0")
    k.e("s_lshl_b32 s17, s15, 2"); k.e("s_add_u32 s17, s17, s16")
    k.e("s_cmp_lg_u32 s14, 11"); k.e("s_cbranch_scc1 L_prep_x0b")
    for j in range(4): k.e(f"v_mov_b32 v{40+j}, 0")
    k.e("s_lshl_b32 s18, s17, 10"); k.e(f"s_add_u32 s18, s18, 0x{FLG:x}")
    k.e("buffer_store_dwordx4 v[40:43], v5, s[20:23], s18 offen")
    k.label("L_prep_x0b")
    k.e("v_lshrrev_b32 v6, 3, v1"); k.e("v_and_b32 v7, 7, v1")
    k.e("s_movk_i32 s19, 1152"); k.e("v_mul_u32_u24 v8, s19, v6"); k.e("v_lshl_add_u32 v8, v7, 4, v8")
    k.e("v_lshlrev_b32 v9, 10, v7"); k.e("v_lshl_add_u32 v9, v6, 4, v9")
    k.e("s_mul_i32 s18, s17, %d" % TILEB)
    for i in range(6):
        k.e(f"s_add_u32 s40, s14, {12*i}")
        sdivmod(k, 41, 42, 40, 9, 72)
        k.e("s_mul_i32 s43, s41, 9216"); k.e("s_lshl_b32 s44, s42, 7"); k.e("s_add_u32 s43, s43, s44"); k.e("s_add_u32 s43, s43, s18")
        k.e(f"buffer_load_dwordx4 v[{12+4*i}:{15+4*i}], v8, s[52:55], s43 offen")
        k.e("s_lshl_b32 s43, s42, 13"); k.e("s_lshl_b32 s44, s41, 7"); k.e("s_add_u32 s43, s43, s44"); k.e("s_add_u32 s43, s43, s18")
        k.e(f"s_add_u32 s{56+i}, s43, 0x{X0P:x}")
    for i in range(6):
        k.e(f"s_waitcnt vmcnt(5)")
        k.e(f"buffer_store_dwordx4 v[{12+4*i}:{15+4*i}], v9, s[20:23], s{56+i} offen")
    k.e(f"s_branch L_{name}_end")
    def colsum(lab, base_job, pitch, srd_, final):
        k.label(lab)
        k.e(f"s_sub_u32 s16, s2, {base_job}")
        k.e("v_lshrrev_b32 v6, 3, v1"); k.e("v_and_b32 v7, 7, v1")
        k.e(f"s_mov_b32 s19, {pitch}"); k.e("v_mul_u32_u24 v8, s19, v6"); k.e("v_lshl_add_u32 v8, v7, 4, v8")
        k.e(f"s_mul_i32 s17, s14, {48*pitch}"); k.e("s_lshl_b32 s18, s16, 7"); k.e("s_add_u32 s17, s17, s18")
        for i in range(6):
            k.e(f"buffer_load_dwordx4 v[{12+4*i}:{15+4*i}], v8, s[{srd_}:{srd_+3}], s17 offen")
            k.e(f"s_add_u32 s17, s17, {8*pitch}")
        for i in range(6):
            k.e(f"s_waitcnt vmcnt({5-i})")
            for j in range(4):
                r = 12 + 4*i + j
                if i == 0:
                    k.e(f"v_lshlrev_b32 v{40+2*j}, 16, v{r}"); k.e(f"v_and_b32 v{41+2*j}, 0xffff0000, v{r}")
                else:
                    k.e(f"v_lshlrev_b32 v9, 16, v{r}"); k.e(f"v_and_b32 v10, 0xffff0000, v{r}")
                    k.e(f"v_add_f32 v{40+2*j}, v{40+2*j}, v9"); k.e(f"v_add_f32 v{41+2*j}, v{41+2*j}, v10")
        k.e("v_lshlrev_b32 v8, 5, v0")
        k.e("ds_write_b128 v8, v[40:43]"); k.e("ds_write_b128 v8, v[44:47] offset:16")
        k.e("s_lshl_b32 s17, s14, 11"); k.e("v_lshlrev_b32 v9, 2, v1"); k.e("v_add_u32 v10, s17, v9")
        k.e("s_waitcnt lgkmcnt(0)")
        for i in range(8): k.e(f"ds_read_b32 v{12+i}, v10 offset:{256*i}")
        k.e("s_waitcnt lgkmcnt(0)")
        for i in range(1, 8): k.e(f"v_add_f32 v12, v12, v{12+i}")
        k.e("s_lshl_b32 s17, s14, 8"); k.e("v_add_u32 v10, s17, v9")
        k.e("ds_write_b32 v10, v12 offset:24576")
        k.e("s_waitcnt lgkmcnt(0)")
        k.e("s_barrier")
        k.e("s_cmp_lg_u32 s14, 0"); k.e(f"s_cbranch_scc1 L_{name}_end")
        for i in range(12): k.e(f"ds_read_b32 v{12+i}, v9 offset:{24576+256*i}")
        k.e("s_waitcnt lgkmcnt(0)")
        for i in range(1, 12): k.e(f"v_add_f32 v12, v12, v{12+i}")
        k.e("s_lshl_b32 s17, s16, 6"); k.e("v_add_u32 v6, s17, v1")
        final()
        k.e(f"s_branch L_{name}_end")
    def fin1():
        k.e("v_lshlrev_b32 v6, 2, v6"); k.e(f"s_mov_b32 s17, 0x{CS1:x}")
        k.e("buffer_store_dword v12, v6, s[20:23], s17 offen")
    def finq():
        divmod_const(k, 7, 8, 6, 576, 1728, 19)
        divmod_const(k, 9, 10, 8, 72, 576, 19)
        k.e("v_mul_u32_u24 v9, 0xe0, v9"); k.e("v_mul_u32_u24 v7, 0x48, v7"); k.e("v_add3_u32 v6, v9, v7, v10")
        k.e("v_lshlrev_b32 v6, 2, v6"); k.e(f"s_mov_b32 s17, 0x{CSQ:x}")
        k.e("buffer_store_dword v12, v6, s[20:23], s17 offen")
    colsum("L_prep_c1", b[3], 9216, 24, fin1)
    colsum("L_prep_cq", b[6], 3456, 32, finq)
    footer(k, name)
    return name, k.text(), desc(name, 48), (NT, 768, 49152)


def gemm_loop(k, nks, order, acc, bbuf, aslot, bread, ks0, nm, after=None, pre=None, BD=1, atag=None, gate=None):
    atag = atag or (lambda ks: ("a", ks0 + ks))
    nb = BD + 1
    for d in range(min(BD, nks)):
        if gate: gate(d)
        for mi in range(nm): bread(d, mi, bbuf(d % nb, mi))
    if pre: pre()
    for ks in range(nks):
        late = gate is not None and ks + BD < nks and gate(ks + BD, True)
        if ks + BD < nks and not late:
            for mi in range(nm): bread(ks + BD, mi, bbuf((ks + BD) % nb, mi))
        k.wait(vm=[atag(ks)], lg=[("b", ks)])
        for (mi, t) in order:
            c = "0" if ks == 0 else vr(acc(mi, t), 4)
            k.e(f"v_mfma_f32_16x16x32_bf16 {vr(acc(mi,t),4)}, {vr(aslot(ks0+ks,t),4)}, {vr(bbuf(ks % nb,mi),4)}, {c}")
        if after: after(ks)
        if late:
            gate(ks + BD)
            for mi in range(nm): bread(ks + BD, mi, bbuf((ks + BD) % nb, mi))

FS = os.environ.get("FS", "")
A_HL = 73728
A_QK = 92160
TSTR = 80 * 208
A_VP = A_QK + 2*TSTR
VPP = 336
A_ST = A_VP + 82*VPP
A_PM, A_PH = A_QK, A_QK + 6144
B_XB = 73728
C_HB = 73728
C_CS = 147456
C_B1 = C_CS + 3072
C_ST = C_B1 + 2048
C_PM = C_HB
CNT = 163328
LDS_TOTAL = 163840
CA_ST, CA_DONE, CB_DONE, CC_ST, CC_W1, CC_H0, CC_DONE, CD_DONE = 0, 1, 2, 3, 4, 5, 8, 9
WSZ = 0x5000000
SXC = MAP["ffn"]

S_W, S_LAY, S_XIN, S_O, S_X1, S_P, S_FL, S_R, S_S, S_RC, S_SC, S_IDX, S_CNT, S_ROT, S_ROT2 = 3, 22, 23, 24, 25, 26, 28, 29, 30, 31, 32, 33, 27, 34, 35
WS = "s[8:11]"
V_L, V_L16, V_G, V_M = 1, 2, 3, 4
AR, EX = 88, 160

def lds_signal(k, slot, vt):
    k.e(f"s_add_u32 s36, s{S_CNT}, {4*slot}")
    k.e(f"v_mov_b32 v{vt}, s36"); k.e(f"v_mov_b32 v{vt+1}, 1")
    k.e("s_mov_b64 exec, 1")
    k.lds(f"ds_add_u32 v{vt}, v{vt+1}", "cnt")
    k.e("s_mov_b64 exec, -1")

def lds_wait(k, slot, n, vt, sleep=2):
    lab = k.newlabel("L_lw")
    k.e(f"s_add_u32 s36, s{S_CNT}, {4*slot}"); k.e(f"v_mov_b32 v{vt}, s36")
    k.label(lab)
    k.e(f"ds_read_b32 v{vt+1}, v{vt}")
    k.e("s_waitcnt lgkmcnt(0)"); k.lg = []
    k.e(f"v_readfirstlane_b32 s36, v{vt+1}")
    k.e("s_nop 3")
    k.e(f"s_cmp_ge_u32 s36, {n}"); k.e(f"s_cbranch_scc1 {lab}_ok")
    k.e(f"s_sleep {sleep}")
    k.e(f"s_branch {lab}")
    k.label(f"{lab}_ok")

def publish(k, slot, n, phase, s_r, s_s, vt):
    lab = k.newlabel("L_pub")
    k.e("s_waitcnt vmcnt(0)"); k.vm = []
    k.e(f"s_add_u32 s36, s{S_CNT}, {4*slot}")
    k.e(f"v_mov_b32 v{vt}, s36"); k.e(f"v_mov_b32 v{vt+1}, 1")
    k.e("s_mov_b64 exec, 1")
    k.e(f"ds_add_rtn_u32 v{vt}, v{vt}, v{vt+1}")
    k.e(f"s_lshl_b32 s37, s{s_r}, 7"); k.e(f"s_lshl_b32 s38, s{s_s}, 2"); k.e("s_add_u32 s37, s37, s38")
    k.e(f"s_add_u32 s37, s37, s{S_FL}"); k.e(f"s_add_u32 s37, s37, {phase*4096}")
    k.e("s_waitcnt lgkmcnt(0)"); k.lg = []
    k.e(f"v_readfirstlane_b32 s36, v{vt}")
    k.e(f"v_mov_b32 v{vt}, 0")
    k.e("s_nop 2")
    k.e(f"s_cmp_lg_u32 s36, {n-1}"); k.e(f"s_cbranch_scc1 {lab}")
    k.e(f"buffer_store_dword v{vt+1}, v{vt}, {WS}, s37 offen sc1")
    k.label(lab)
    k.e("s_mov_b64 exec, -1")

def await_flags(k, s_fl, phase, s_r, two, vt):
    lab = k.newlabel("L_aw")
    k.e(f"s_cmp_lg_u32 s{S_W}, 0"); k.e(f"s_cbranch_scc1 {lab}_bar")
    k.e(f"s_lshl_b32 s37, s{s_r}, 7"); k.e(f"s_add_u32 s37, s37, s{s_fl}"); k.e(f"s_add_u32 s37, s37, {phase*4096}")
    k.e(f"v_and_b32 v{vt}, 7, v{V_L}"); k.e(f"v_lshlrev_b32 v{vt}, 2, v{vt}")
    if two:
        k.e(f"s_cmp_eq_u32 s{s_r}, 0"); k.e("s_cselect_b32 s38, 0, 128"); k.e("s_sub_u32 s37, s37, s38")
        k.e(f"v_and_b32 v{vt+1}, 8, v{V_L}"); k.e(f"v_cmp_eq_u32 vcc, 0, v{vt+1}"); k.e(f"v_mov_b32 v{vt+1}, s38")
        k.e("s_nop 0")
        k.e(f"v_cndmask_b32 v{vt+1}, 0, v{vt+1}, vcc"); k.e(f"v_add_u32 v{vt}, v{vt}, v{vt+1}")
    k.e("s_mov_b64 exec, 0xffff")
    k.e("s_mov_b32 s38, 0x20000")
    k.label(lab)
    k.e(f"buffer_load_dword v{vt+1}, v{vt}, {WS}, s37 offen sc1")
    k.e("s_waitcnt vmcnt(0)")
    k.e(f"v_cmp_ne_u32 vcc, 1, v{vt+1}")
    k.e("s_sub_u32 s38, s38, 1")
    k.e("s_nop 3")
    k.e(f"s_cbranch_vccz {lab}_ok")
    k.e("s_cmp_eq_u32 s38, 0"); k.e(f"s_cbranch_scc1 {lab}_ok")
    k.e(f"s_sleep {ENV('PSLEEP', 1)}")
    k.e(f"s_branch {lab}")
    k.label(f"{lab}_ok")
    k.e("s_mov_b64 exec, -1")
    k.label(f"{lab}_bar")
    k.e("s_barrier")

def stats_acc(k, r4, va, first, sones):
    for j in range(4):
        c0 = "0" if (first and j == 0) else f"v{va}"
        c1 = "0" if (first and j == 0) else f"v{va+1}"
        k.e(f"v_dot2_f32_bf16 v{va}, v{r4+j}, s{sones}, {c0}")
        k.e(f"v_dot2_f32_bf16 v{va+1}, v{r4+j}, v{r4+j}, {c1}")

def stats_combine(k, src, R, vt, dst, halo):
    k.e(f"v_lshlrev_b32 v{vt}, 3, v{V_L}"); k.e(f"v_add_u32 v{vt+1}, {src}, v{vt}")
    for p in range(12): k.e(f"ds_read_b64 {vr(R+2*p,2)}, v{vt+1} offset:{512*p}")
    k.e("s_waitcnt lgkmcnt(0)")
    n = 12
    while n > 1:
        h = n // 2
        for j in range(h):
            k.e(f"v_add_f32 v{R+2*j}, v{R+2*j}, v{R+2*(n-1-j)}"); k.e(f"v_add_f32 v{R+2*j+1}, v{R+2*j+1}, v{R+2*(n-1-j)+1}")
        n -= h
    if halo:
        for op in ("v_permlane32_swap_b32", "v_permlane16_swap_b32"):
            k.e(f"v_mov_b32 v{R+2}, v{R}"); k.e(f"v_mov_b32 v{R+3}, v{R+1}")
            k.e("s_nop 1")
            k.e(f"{op} v{R}, v{R+2}"); k.e(f"{op} v{R+1}, v{R+3}")
            k.e("s_nop 1")
            k.e(f"v_add_f32 v{R}, v{R}, v{R+2}"); k.e(f"v_add_f32 v{R+1}, v{R+1}, v{R+3}")
        k.e(f"v_lshlrev_b32 v{vt}, 3, v{V_M}")
    k.e(f"v_mul_f32 v{R}, {f32(1/576)}, v{R}")
    k.e(f"v_mul_f32 v{R+1}, {f32(1/576)}, v{R+1}")
    k.e(f"v_fma_f32 v{R+1}, -v{R}, v{R}, v{R+1}")
    k.e(f"v_max_f32 v{R+1}, 0, v{R+1}")
    k.e(f"v_add_f32 v{R+1}, {f32(1e-5)}, v{R+1}")
    k.e(f"v_rsq_f32 v{R+2}, v{R+1}")
    k.e(f"v_add_u32 v{vt}, {dst}, v{vt}")
    k.e(f"v_mul_f32 v{R+3}, v{R}, v{R+2}")
    k.e(f"v_sub_f32 v{R+3}, 0, v{R+3}")
    k.e(f"ds_write_b64 v{vt}, {vr(R+2,2)}")
    k.e("s_waitcnt lgkmcnt(0)")

def a_tile_setup(k):
    k.e(f"s_lshl_b32 s41, s{S_W}, 1"); k.e(f"s_add_u32 s40, s{S_W}, 2"); k.e(f"s_cmp_lt_u32 s{S_W}, 2"); k.e("s_cselect_b32 s40, s41, s40")
    k.e(f"s_mul_i32 s41, s{S_S}, 14"); k.e("s_add_u32 s41, s41, s40")
    k.e("s_lshl_b32 s42, s41, 6"); k.e(f"s_add_u32 s42, s42, 0x{CSQ:x}")
    k.e("s_mul_i32 s41, s41, %d" % (18*1024))
    if WQF: k.e(f"s_add_u32 s41, s41, 0x{WQF:x}")

def a_prefetch(k):
    a_tile_setup(k)
    lab = k.newlabel("L_apf")
    k.e(f"v_lshlrev_b32 v6, 4, v{V_G}")
    k.e(f"buffer_load_dwordx4 {vr(EX,4)}, v6, {WS}, s42 offen")
    k.e(f"buffer_load_dwordx4 {vr(EX+4,4)}, v6, {WS}, s42 offen offset:64")
    k.e(f"s_cmp_lt_u32 s{S_W}, 2"); k.e(f"s_cbranch_scc1 {lab}_d")
    for i in range(18):
        if i % 4 == 0: k.e(f"s_add_u32 s43, s41, {i*1024}")
        k.e(f"buffer_load_dwordx4 {vr(AR+4*i,4)}, v{V_L16}, {WS}, s43 offen offset:{(i%4)*1024}")
    k.e(f"s_branch {lab}_e")
    k.label(f"{lab}_d")
    for i in range(9):
        k.e(f"s_add_u32 s43, s41, {i*1024}"); k.e(f"s_add_u32 s44, s41, {(18+i)*1024}")
        k.e(f"buffer_load_dwordx4 {vr(AR+8*i,4)}, v{V_L16}, {WS}, s43 offen")
        k.e(f"buffer_load_dwordx4 {vr(AR+8*i+4,4)}, v{V_L16}, {WS}, s44 offen")
    k.label(f"{lab}_e")

def b_setup(k):
    k.e(f"s_min_u32 s59, s{S_W}, 9")
    k.e(f"s_cmp_ge_u32 s59, 5"); k.e("s_cselect_b32 s45, 1, 0"); k.e("s_mul_i32 s46, s45, 5"); k.e(f"s_sub_u32 s46, s59, s46")
    k.e(f"s_mul_i32 s58, s{S_S}, 5"); k.e("s_add_u32 s58, s58, s46"); k.e("s_mul_i32 s58, s58, %d" % (18*1024))
    k.e("s_mul_i32 s59, s45, 9216"); k.e("s_add_u32 s58, s58, s59"); k.e(f"s_add_u32 s58, s58, 0x{WOF:x}")
def b_load(k, i):
    if i and i % 4 == 0: k.e(f"s_add_u32 s58, s58, 4096")
    k.vmem(f"buffer_load_dwordx4 {vr(124+4*i,4)}, v{V_L16}, {WS}, s58 offen offset:{(i%4)*1024}", ("wb", i))

def c_stream_init(k):
    k.e(f"s_mul_i32 s47, s{S_SC}, 12"); k.e(f"s_add_u32 s47, s47, s{S_W}"); k.e("s_mul_i32 s47, s47, %d" % (36*3072)); k.e(f"s_add_u32 s47, s47, 0x{WFF:x}")
    k.e(f"s_mul_i32 s48, s{S_ROT}, 3072"); k.e("s_add_u32 s48, s48, s47")
    k.e("s_add_u32 s49, s47, %d" % (18*3072))
def c_aload(k, i, tg="a"):
    if i >= 18 and (i - 18) % 6 == 0:
        k.e("s_mov_b32 s47, s49"); k.e(f"s_mul_i32 s48, s{S_ROT2}, 3072"); k.e("s_add_u32 s48, s48, s47"); k.e("s_add_u32 s49, s47, %d" % (6*3072))
    slot = i % 6
    for t in range(3):
        k.vmem(f"buffer_load_dwordx4 {vr(AR+12*slot+4*t,4)}, v{V_L16}, {WS}, s48 offen offset:{1024*t}", (tg, i) if t == 2 else (tg + "_", i))
    k.e("s_add_u32 s48, s48, 3072"); k.e("s_cmp_eq_u32 s48, s49"); k.e("s_cselect_b32 s48, s47, s48")

def touch_w(k, swidx, nwaves, t, dummy):
    G = ENV("TGRAN", 128)
    total = SXC * 12 * 36 * 3072 // G
    ni = -(-total // (32 * nwaves * 64))
    ng = 8 // SXC
    k.e(f"s_and_b32 s36, s2, {ng-1}"); k.e(f"s_mul_i32 s36, s36, {SXC*12*36*3072}"); k.e(f"s_add_u32 s36, s36, 0x{WFF:x}")
    k.e("s_lshr_b32 s37, s2, 3"); k.e(f"s_mul_i32 s37, s37, {nwaves}"); k.e(f"s_add_u32 s37, s37, s{swidx}"); k.e(f"s_mul_i32 s37, s37, {ni*64}")
    k.e(f"s_mov_b32 s38, {total}")
    for j in range(ni):
        k.e(f"v_add_u32 v{t}, s37, v{V_L}")
        if j: k.e(f"v_add_u32 v{t}, {64*j}, v{t}")
        k.e(f"v_min_u32 v{t}, s38, v{t}")
        k.e(f"v_lshlrev_b32 v{t}, {G.bit_length()-1}, v{t}")
        k.vmem(f"buffer_load_dword v{dummy}, v{t}, {WS}, s36 offen", "touch")

def phase_A(k):
    k.c("================ phase A")
    ACC, BB = 8, 28
    VB1, VB2, VH = 5, 6, 7
    k.e(f"s_cmp_eq_u32 s{S_LAY}, 0"); k.e("s_cbranch_scc1 L_A_nowait")
    k.e(f"s_sub_u32 s39, s{S_FL}, {FLG_LAYER}")
    await_flags(k, 39, 3, S_R, True, 8)
    k.label("L_A_nowait")
    if FS in ("", "A"): stamp(k, 1)
    k.e(f"s_mul_i32 s39, s{S_R}, {TILEB}"); k.e(f"s_add_u32 s39, s39, s{S_XIN}")
    k.e(f"s_lshl_b32 s36, s{S_W}, 10"); k.e("s_add_u32 s37, s39, s36")
    k.vm = []
    for i in range(6):
        k.vmem(f"buffer_load_dwordx4 {vr(8+4*i,4)}, v{V_L16}, {WS}, s37 offen sc1", ("x", i))
        if i < 5: k.e("s_add_u32 s37, s37, 12288")
    k.e(f"v_lshlrev_b32 v{VB1}, 10, v{V_G}"); k.e(f"v_lshl_add_u32 v{VB1}, v{V_M}, 4, v{VB1}")
    k.e(f"s_cmp_eq_u32 s{S_R}, 0"); k.e("s_cselect_b32 s38, 0x70000000, 0")
    k.e(f"v_add_u32 v{VH}, s38, v{VB1}")
    k.e(f"s_lshl_b32 s37, s{S_W}, 12"); k.e("s_add_u32 s37, s37, s39"); k.e(f"s_sub_u32 s37, s37, {TILEB-768}")
    k.vmem(f"buffer_load_dwordx4 {vr(32,4)}, v{VH}, {WS}, s37 offen sc1", ("x", 6))
    k.e(f"s_cmp_ge_u32 s{S_W}, 6"); k.e("s_cselect_b32 s38, 0x70000000, 0"); k.e(f"v_or_b32 v{VB2}, s38, v{VH}")
    k.e(f"s_add_u32 s37, s37, {12*4096}")
    k.vmem(f"buffer_load_dwordx4 {vr(36,4)}, v{VB2}, {WS}, s37 offen sc1", ("x", 7))
    k.e(f"s_cmp_lg_u32 s{S_LAY}, 0"); k.e("s_cbranch_scc1 L_A_nopf")
    k.e("s_barrier")
    a_prefetch(k)
    sv = k.snapshot()
    def xstage(extra):
        k.e("s_mov_b32 s38, 0x3f803f80")
        k.e(f"v_add_u32 v{VB2}, s36, v{V_L16}")
        for i in range(8):
            k.e(f"s_waitcnt vmcnt({7-i+extra})")
            if i < 6:
                k.e(f"ds_write_b128 v{VB2}, {vr(8+4*i,4)} offset:{12288*i}")
                stats_acc(k, 8+4*i, 40, i == 0, 38)
            else:
                if i == 6: k.e(f"v_add_u32 v{VB2}, {A_HL}, v{VB2}")
                if i == 6: k.e(f"ds_write_b128 v{VB2}, {vr(8+4*i,4)}")
                stats_acc(k, 8+4*i, 42, i == 6, 38)
        lab = k.newlabel("L_xs")
        k.e(f"s_cmp_ge_u32 s{S_W}, 6"); k.e(f"s_cbranch_scc1 {lab}")
        k.e(f"ds_write_b128 v{VB2}, {vr(36,4)} offset:12288")
        k.label(lab)
    xstage(20)
    k.e("s_branch L_A_xdone")
    k.label("L_A_nopf")
    xstage(0)
    k.label("L_A_xdone")
    k.e(f"s_lshl_b32 s37, s{S_W}, 9"); k.e(f"v_lshlrev_b32 v{VB2}, 3, v{V_L}"); k.e(f"v_add_u32 v{VB2}, s37, v{VB2}"); k.e(f"v_add_u32 v{VB2}, {A_PM}, v{VB2}")
    k.e(f"ds_write_b64 v{VB2}, v[40:41]"); k.e(f"ds_write_b64 v{VB2}, v[42:43] offset:6144")
    k.e("s_waitcnt lgkmcnt(0)")
    if FS in ("", "A"): stamp(k, 2)
    k.e("s_barrier")
    k.lg = []
    k.e(f"s_cmp_lt_u32 s{S_W}, 10"); k.e("s_cbranch_scc1 L_A_nocomb")
    k.e(f"s_cmp_eq_u32 s{S_W}, 11"); k.e("s_cbranch_scc1 L_A_combh")
    stats_combine(k, A_PM, 8, VB2, A_ST + 128, False)
    k.e("s_branch L_A_combd")
    k.label("L_A_combh")
    stats_combine(k, A_PH, 8, VB2, A_ST, True)
    k.label("L_A_combd")
    lds_signal(k, CA_ST, 8)
    k.e("s_waitcnt lgkmcnt(0)"); k.lg = []
    k.label("L_A_nocomb")
    a_tile_setup(k)
    b_setup(k)
    c_stream_init(k)
    k.e(f"v_add_u32 v{VB2}, 49152, v{VB1}")
    k.e(f"v_add_u32 v{VH}, {A_HL}, v{V_L16}")
    def mk_bread(mts):
        def bread(ks, mi, reg):
            mt = mts[mi]
            if mt == 0:
                k.lds(f"ds_read_b128 {vr(reg,4)}, v{VH} offset:{ks*1024}", ("b", ks))
            else:
                off = ks*4096 + (mt-1)*256; base = VB1
                if off >= 49152: off -= 49152; base = VB2
                k.lds(f"ds_read_b128 {vr(reg,4)}, v{base} offset:{off}", ("b", ks))
        return bread
    def epilogue(tadd, mts, accf, csr, vpath, T):
        a0, a1, p, H, t, sa = T, T+1, T+2, T+3, T+4, T+5
        ST = T + 6
        k.e(f"v_lshlrev_b32 v{sa}, 3, v{V_M}"); k.e(f"v_add_u32 v{sa}, {A_ST}, v{sa}")
        for mi, mt in enumerate(mts):
            k.lds(f"ds_read_b64 {vr(ST+2*mi,2)}, v{sa} offset:{mt*128}", "str")
        k.e(f"v_lshlrev_b32 v{p}, 2, v{V_G}")
        k.e(f"s_add_u32 s36, s40, {tadd}"); k.e("s_lshl_b32 s36, s36, 4")
        k.e(f"v_add_u32 v{p}, s36, v{p}")
        for a in (a0, a1):
            divmod_const(k, H, None, p, 18, 232, 36)
            if not vpath:
                k.e(f"v_lshrrev_b32 v{t}, 2, v{H}")
                k.e(f"s_movk_i32 s36, {TSTR-192}")
                k.e(f"v_mul_u32_u24 v{a}, s36, v{t}")
                k.e(f"v_mul_u32_u24 v{t}, 12, v{H}")
                k.e(f"v_add_u32 v{a}, v{a}, v{t}")
                k.e(f"v_lshl_add_u32 v{a}, v{p}, 1, v{a}")
                k.e(f"v_mul_u32_u24 v{t}, 0xd0, v{V_M}")
                k.e(f"s_mov_b32 s36, {A_QK}")
            else:
                k.e(f"v_lshlrev_b32 v{a}, 3, v{H}")
                k.e(f"v_lshl_add_u32 v{a}, v{p}, 2, v{a}")
                k.e(f"v_mul_u32_u24 v{t}, 0x{VPP:x}, v{V_M}")
                k.e(f"s_mov_b32 s36, {A_VP - 640}")
            k.e(f"v_add3_u32 v{a}, v{a}, v{t}, s36")
            if a == a0: k.e(f"v_add_u32 v{p}, 2, v{p}")
        k.wait(lg=["str"])
        for mi, mt in enumerate(mts):
            r = accf(mi)
            for j in range(4):
                k.e(f"v_mul_f32 v{r+j}, v{r+j}, v{ST+2*mi}")
                k.e(f"v_fmac_f32 v{r+j}, v{ST+2*mi+1}, v{csr+j}")
            k.e(f"v_cvt_pk_bf16_f32 v{r}, v{r}, v{r+1}")
            k.e(f"v_cvt_pk_bf16_f32 v{r+2}, v{r+2}, v{r+3}")
            if not vpath:
                k.lds(f"ds_write_b32 v{a0}, v{r} offset:{mt*16*208}", "qw")
                k.lds(f"ds_write_b32 v{a1}, v{r+2} offset:{mt*16*208}", "qw")
            else:
                o = mt*16*VPP
                for a, rr in ((a0, r), (a1, r+2)):
                    k.lds(f"ds_write_b16 v{a}, v{rr} offset:{o}", "qw")
                    k.lds(f"ds_write_b16_d16_hi v{a}, v{rr} offset:{o+4}", "qw")
                    k.lds(f"ds_write_b16 v{a}, v{rr} offset:{o+2*VPP+2}", "qw")
                    k.lds(f"ds_write_b16_d16_hi v{a}, v{rr} offset:{o+2*VPP+6}", "qw")
    k.e(f"s_cmp_lt_u32 s{S_W}, 2"); k.e("s_cbranch_scc1 L_A_dbl")
    k.vm = ["cs", "cs"] + [("a", i) for i in range(18)]
    if ENV("TOUCH", 0):
        k.e(f"s_sub_u32 s44, s{S_W}, 2")
        touch_w(k, 44, 10, 8, 0)
    mts = [0, 1, 2, 3, 4]
    TD = []
    if ENV("TOUCH", 0):
        pass
    def after1(ks):
        if ks in (2, 5, 8): c_aload(k, ks // 3, "c")
        if ks >= 9: b_load(k, ks - 9)
    gemm_loop(k, 18, [(mi, 0) for mi in range(5)], lambda mi, t: ACC + 4*mi, lambda par, mi: BB + 20*par + 4*mi,
              lambda i_, t: AR + 4*i_, mk_bread(mts), 0, 5, after1, None, BD=2)
    lds_wait(k, CA_ST, 2, 28)
    sv = k.snapshot()
    k.e("s_cmp_ge_u32 s40, 9"); k.e("s_cbranch_scc1 L_A_vp")
    epilogue(0, mts, lambda mi: ACC + 4*mi, EX, False, 28)
    k.e("s_branch L_A_att")
    k.label("L_A_vp")
    k.restore(sv)
    k.e("s_cmp_eq_u32 s40, 13"); k.e("s_cselect_b32 exec_hi, 0, -1")
    epilogue(0, mts, lambda mi: ACC + 4*mi, EX, True, 28)
    k.e("s_mov_b64 exec, -1")
    k.e("s_branch L_A_att")
    k.label("L_A_dbl")
    k.lg = []
    k.vm = ["cs", "cs"] + [x for i in range(9) for x in (("a0", i), ("a", i))]
    mts2 = [1, 2, 3, 4]
    def after2(ks):
        i = ks + 9
        if i < 18:
            k.e(f"s_add_u32 s43, s41, {i*1024}"); k.e(f"s_add_u32 s44, s41, {(18+i)*1024}")
            k.vmem(f"buffer_load_dwordx4 {vr(AR+8*(i%9),4)}, v{V_L16}, {WS}, s43 offen", ("a0", i))
            k.vmem(f"buffer_load_dwordx4 {vr(AR+8*(i%9)+4,4)}, v{V_L16}, {WS}, s44 offen", ("a", i))
        else:
            free = 8*(ks - 8)
            while st2["c"] < 3 and 12*(st2["c"]+1) <= free:
                c_aload(k, st2["c"], "c"); st2["c"] += 1
            while st2["b"] < 9 and 36 + 4*(st2["b"]+1) <= free:
                b_load(k, st2["b"]); st2["b"] += 1
    st2 = dict(c=0, b=0)
    gemm_loop(k, 18, [(mi, t) for t in range(2) for mi in range(4)], lambda mi, t: 8 + 16*t + 4*mi, lambda par, mi: 40 + 16*par + 4*mi,
              lambda i_, t: AR + 8*(i_ % 9) + 4*t, mk_bread(mts2), 0, 4, after2, None, BD=2)
    assert st2 == dict(c=3, b=9)
    lds_wait(k, CA_ST, 2, 40)
    epilogue(0, mts2, lambda mi: 8 + 4*mi, EX, False, 40)
    epilogue(1, mts2, lambda mi: 24 + 4*mi, EX+4, False, 40)
    k.label("L_A_att")
    k.vm = []; k.lg = []
    k.e("s_waitcnt lgkmcnt(0)")
    if FS in ("", "A"): stamp(k, 3)
    k.e("s_barrier")
    if FS == "A": stamp(k, 4)
    k.e(f"s_cmp_ge_u32 s{S_W}, 8"); k.e("s_cbranch_scc1 L_A_end")
    VI, VHH, VQ, VK, VV = 5, 6, 7, 82, 83
    Q, KK, VP_, OA, PP, T0 = 8, 18, 18, 58, 76, 80
    k.e(f"s_and_b32 s40, s{S_W}, 3"); k.e(f"s_lshr_b32 s41, s{S_W}, 2"); k.e("s_lshl_b32 s41, s41, 5")
    k.e(f"v_and_b32 v{VI}, 31, v{V_L}"); k.e(f"v_add_u32 v{VI}, s41, v{VI}")
    k.e(f"v_lshrrev_b32 v{VHH}, 5, v{V_L}")
    k.e(f"v_mul_u32_u24 v{VQ}, 0xd0, v{VI}")
    k.e("s_mul_i32 s36, s40, 48"); k.e(f"s_add_u32 s36, s36, {A_QK + 16*208}")
    k.e(f"v_add_u32 v{VQ}, s36, v{VQ}")
    k.e(f"v_mul_u32_u24 v{VK}, 0x{8*208:x}, v{VHH}"); k.e(f"v_sub_u32 v{VK}, v{VQ}, v{VK}")
    k.e(f"v_lshlrev_b32 v{T0}, 3, v{VHH}"); k.e(f"v_sub_u32 v{T0}, v{VI}, v{T0}")
    k.e(f"v_add_u32 v{VV}, 12, v{T0}"); k.e(f"v_mul_u32_u24 v{VV}, 0x{VPP:x}, v{VV}")
    k.e("s_mul_i32 s36, s40, 80"); k.e(f"s_add_u32 s36, s36, {A_VP}"); k.e(f"v_add_u32 v{VV}, s36, v{VV}")
    def rdvec(reg, va, off, tag):
        k.lds(f"ds_read_b128 {vr(reg,4)}, v{va} offset:{off}", tag)
        k.lds(f"ds_read_b128 {vr(reg+4,4)}, v{va} offset:{off+16}", tag)
        k.lds(f"ds_read_b32 v{reg+8}, v{va} offset:{off+32}", tag)
    rdvec(Q, VQ, 0, "q")
    for j in range(4): rdvec(KK + 10*j, VK, TSTR - 2*j*208, ("k", j))
    k.e(f"s_lshl_b32 s36, s{S_R}, 6"); k.e(f"v_add_u32 v{T0}, s36, v{T0}")
    for j in range(4):
        k.e(f"v_cmp_le_i32 s[{50+2*j}:{51+2*j}], {2*j}, v{T0}")
    k.wait(lg=["q", ("k", 1)])
    for jj in range(9):
        for j in range(2):
            c = "0" if jj == 0 else f"v{PP+j}"
            k.e(f"v_dot2_f32_bf16 v{PP+j}, v{Q+jj}, v{KK+10*j+jj}, {c}")
    def rdvp(pr):
        off = (4*VPP if pr == 0 else 0)
        for q4 in range(4):
            k.lds(f"ds_read_b128 {vr(VP_+20*pr+4*q4,4)}, v{VV} offset:{off+16*q4}", ("v", pr))
        k.lds(f"ds_read_b64 {vr(VP_+20*pr+16,2)}, v{VV} offset:{off+64}", ("v", pr))
    rdvp(0)
    k.wait(lg=[("k", 3)])
    for jj in range(9):
        for j in range(2, 4):
            c = "0" if jj == 0 else f"v{PP+j}"
            k.e(f"v_dot2_f32_bf16 v{PP+j}, v{Q+jj}, v{KK+10*j+jj}, {c}")
    rdvp(1)
    sc = (18 ** -0.5) * math.log2(math.e)
    k.e(f"v_mov_b32 v{T0}, {f32(-1e30)}")
    k.e("s_nop 1")
    for j in range(4): k.e(f"v_mul_f32 v{PP+j}, {f32(sc)}, v{PP+j}")
    for j in range(4): k.e(f"v_cndmask_b32 v{PP+j}, v{T0}, v{PP+j}, s[{50+2*j}:{51+2*j}]")
    k.e(f"v_max3_f32 v{T0}, v{PP}, v{PP+1}, v{PP+2}")
    k.e(f"v_max_f32 v{T0}, v{T0}, v{PP+3}")
    k.e(f"v_mov_b32 v{T0+1}, v{T0}")
    k.e("s_nop 1")
    k.e(f"v_permlane32_swap_b32 v{T0}, v{T0+1}")
    k.e("s_nop 1")
    k.e(f"v_max_f32 v{T0}, v{T0}, v{T0+1}")
    for j in range(4): k.e(f"v_sub_f32 v{PP+j}, v{PP+j}, v{T0}")
    for j in range(4): k.e(f"v_exp_f32 v{PP+j}, v{PP+j}")
    k.e("s_nop 0")
    k.e(f"v_cvt_pk_bf16_f32 v{PP}, v{PP}, v{PP+1}")
    k.e(f"v_cvt_pk_bf16_f32 v{PP+2}, v{PP+2}, v{PP+3}")
    k.e("s_mov_b32 s36, 0x3f803f80")
    k.e(f"v_dot2_f32_bf16 v{T0}, v{PP}, s36, 0")
    k.e(f"v_dot2_f32_bf16 v{T0}, v{PP+2}, s36, v{T0}")
    k.wait(lg=[("v", 0)])
    for d in range(18): k.e(f"v_dot2_f32_bf16 v{OA+d}, v{VP_+d}, v{PP}, 0")
    k.e(f"v_mov_b32 v{T0+1}, v{T0}")
    k.wait(lg=[("v", 1)])
    for d in range(18): k.e(f"v_dot2_f32_bf16 v{OA+d}, v{VP_+20+d}, v{PP+2}, v{OA+d}")
    k.e(f"v_permlane32_swap_b32 v{T0}, v{T0+1}")
    k.e("s_nop 1")
    k.e(f"v_add_f32 v{T0}, v{T0}, v{T0+1}")
    k.e(f"v_rcp_f32 v{T0}, v{T0}")
    pairs = [(d, d+8) for d in range(8)] + [(16, 17)]
    for a, b_ in pairs: k.e(f"v_permlane32_swap_b32 v{OA+a}, v{OA+b_}")
    k.e("s_nop 1")
    for a, b_ in pairs: k.e(f"v_add_f32 v{OA+a}, v{OA+a}, v{OA+b_}")
    for a, b_ in pairs: k.e(f"v_mul_f32 v{OA+a}, v{OA+a}, v{T0}")
    for j in range(4): k.e(f"v_cvt_pk_bf16_f32 v{Q+j}, v{OA+2*j}, v{OA+2*j+1}")
    k.e(f"v_cvt_pk_bf16_f32 v{Q+4}, v{OA+16}, v{OA+16}")
    k.e(f"v_lshlrev_b32 v{VI}, 4, v{VI}")
    k.e(f"v_lshl_add_u32 v{VQ}, v{VHH}, 10, v{VI}")
    k.e(f"v_lshl_add_u32 v{VK}, v{VHH}, 1, v{VI}")
    k.e(f"s_mul_i32 s36, s{S_S}, 9216"); k.e(f"s_mul_i32 s37, s{S_R}, {TILEB}"); k.e("s_add_u32 s36, s36, s37"); k.e(f"s_add_u32 s36, s36, s{S_O}")
    k.e("s_lshl_b32 s37, s40, 11"); k.e("s_add_u32 s37, s37, s36")
    k.e("s_lshl_b32 s38, s40, 2"); k.e("s_add_u32 s38, s38, s36"); k.e("s_add_u32 s38, s38, 8192")
    if FS == "A": stamp(k, 5)
    k.e(f"buffer_store_dwordx4 {vr(Q,4)}, v{VQ}, {WS}, s37 offen sc1")
    k.e(f"buffer_store_short v{Q+4}, v{VK}, {WS}, s38 offen sc1")
    publish(k, CA_DONE, 8, 0, S_R, S_S, 14)
    if FS == "A": stamp(k, 6)
    k.label("L_A_end")

def phase_B(k):
    k.c("================ phase B")
    VB1, VB2, VR_ = 5, 6, 7
    ACC, BB, RX, WB = 8, 24, 72, 124
    await_flags(k, S_FL, 0, S_R, False, 8)
    if FS in ("", "A", "B"): stamp(k, {"A": 7, "B": 1}.get(FS, 4))
    k.vm = []; k.lg = []
    k.e(f"s_mul_i32 s39, s{S_R}, {TILEB}")
    k.e(f"s_lshl_b32 s36, s{S_W}, 10"); k.e("s_add_u32 s37, s39, s36"); k.e(f"s_add_u32 s37, s37, s{S_O}")
    for i in range(6):
        k.e(f"s_add_u32 m0, s36, {12288*i}")
        k.e("s_nop 0")
        k.vmem(f"buffer_load_dwordx4 v{V_L16}, {WS}, s37 offen sc1 lds", "o")
        if i < 5: k.e("s_add_u32 s37, s37, 12288")
    k.e(f"s_cmp_ge_u32 s{S_W}, 5"); k.e("s_cselect_b32 s45, 1, 0"); k.e("s_mul_i32 s46, s45, 5"); k.e(f"s_sub_u32 s46, s{S_W}, s46")
    k.e(f"v_lshrrev_b32 v{VR_}, 1, v{V_G}"); k.e(f"v_lshlrev_b32 v{VR_}, 10, v{VR_}")
    k.e(f"v_and_b32 v{VB2}, 31, v{V_L}"); k.e(f"v_lshl_add_u32 v{VR_}, v{VB2}, 4, v{VR_}")
    k.e(f"s_mul_i32 s40, s{S_S}, 9216"); k.e("s_add_u32 s40, s40, s39"); k.e("s_lshl_b32 s41, s46, 11"); k.e("s_add_u32 s40, s40, s41")
    k.e("s_lshl_b32 s41, s45, 9"); k.e("s_add_u32 s40, s40, s41")
    k.e("s_cmp_eq_u32 s46, 4"); k.e("s_cselect_b32 s41, 2, 4"); k.e("s_cmp_gt_u32 s46, 4"); k.e("s_cselect_b32 s41, 0, s41")
    k.e(f"v_cmp_gt_u32 vcc, s41, v{V_G}")
    k.e(f"v_mov_b32 v{VB2}, 0x70000000")
    k.e(f"s_add_u32 s41, s40, s{S_XIN}")
    k.e(f"v_cndmask_b32 v{VR_}, v{VB2}, v{VR_}, vcc")
    k.vmem(f"buffer_load_dwordx4 {vr(RX,4)}, v{VR_}, {WS}, s41 offen sc1", "r")
    NP1 = 3
    k.e(f"v_lshlrev_b32 v{VB1}, 10, v{V_G}"); k.e(f"v_lshl_add_u32 v{VB1}, v{V_M}, 4, v{VB1}")
    k.e("s_mul_i32 s41, s45, %d" % (9*4096)); k.e(f"v_add_u32 v{VB1}, s41, v{VB1}")
    k.e("s_lshl_b32 s41, s45, 9"); k.e("s_xor_b32 s42, s41, 512")
    k.e(f"v_add_u32 v{VB2}, s42, v{VB1}"); k.e(f"v_add_u32 v{VB1}, s41, v{VB1}")
    k.wait(vm=["o", "r"])
    if FS == "B": stamp(k, 2)
    k.e("s_barrier")
    if FS == "B": stamp(k, 3)
    vm_keep = list(k.vm)
    k.e(f"s_cmp_ge_u32 s{S_W}, 10"); k.e("s_cbranch_scc1 L_B_idle")
    def bread(ks, mi, reg):
        k.lds(f"ds_read_b128 {vr(reg,4)}, v{VB1 if mi < 2 else VB2} offset:{ks*4096 + (mi&1)*256}", ("b", ks))
    gemm_loop(k, 9, [(2, 0), (3, 0), (0, 0), (1, 0)], lambda mi, t: ACC + 4*mi, lambda par, mi: BB + 16*par + 4*mi, lambda i_, t: WB + 4*i_,
              bread, 0, 4, None, None, BD=2, atag=lambda ks: "none")
    k.e(f"s_lshl_b32 s41, s{S_W}, 11"); k.e(f"s_add_u32 s41, s41, {B_XB}"); k.e(f"v_add_u32 v{VB1}, s41, v{V_L16}")
    k.e(f"s_add_u32 s42, s{S_W}, 5"); k.e(f"s_sub_u32 s43, s{S_W}, 5"); k.e(f"s_cmp_ge_u32 s{S_W}, 5"); k.e("s_cselect_b32 s42, s43, s42")
    k.e("s_lshl_b32 s42, s42, 11"); k.e(f"s_add_u32 s42, s42, {B_XB}"); k.e(f"v_add_u32 v{VB2}, s42, v{V_L16}")
    k.e("s_nop 0")
    if FS == "B": stamp(k, 4)
    k.e(f"ds_write_b128 v{VB1}, {vr(ACC+8,4)}"); k.e(f"ds_write_b128 v{VB1}, {vr(ACC+12,4)} offset:1024")
    k.e("s_waitcnt lgkmcnt(0)")
    k.e("s_barrier")
    k.e(f"ds_read_b128 {vr(ACC+8,4)}, v{VB2}"); k.e(f"ds_read_b128 {vr(ACC+12,4)}, v{VB2} offset:1024")
    k.e(f"s_add_u32 s41, s40, s{S_X1}")
    k.e("s_waitcnt lgkmcnt(0)")
    for j in range(8): k.e(f"v_add_f32 v{ACC+j}, v{ACC+j}, v{ACC+8+j}")
    k.e("s_nop 1")
    for j in range(4): k.e(f"v_permlane16_swap_b32 v{ACC+j}, v{ACC+4+j}")
    k.e("s_nop 1")
    for j in range(4):
        k.e(f"v_lshlrev_b32 v{BB}, 16, v{RX+j}"); k.e(f"v_and_b32 v{BB+1}, 0xffff0000, v{RX+j}")
        k.e(f"v_add_f32 v{ACC+2*j}, v{ACC+2*j}, v{BB}"); k.e(f"v_add_f32 v{ACC+2*j+1}, v{ACC+2*j+1}, v{BB+1}")
        k.e(f"v_cvt_pk_bf16_f32 v{RX+j}, v{ACC+2*j}, v{ACC+2*j+1}")
    if FS == "B": stamp(k, 5)
    k.e(f"buffer_store_dwordx4 {vr(RX,4)}, v{VR_}, {WS}, s41 offen sc1")
    publish(k, CB_DONE, 10, 1, S_R, S_S, 24)
    if FS == "B": stamp(k, 6)
    k.e("s_branch L_B_end")
    k.label("L_B_idle")
    k.e("s_barrier")
    k.label("L_B_end")
    k.vm = vm_keep; k.lg = []
    NP2 = ENV("NP2", 3)
    for i in range(NP1, NP2): c_aload(k, i)
    return NP2

def phase_C(k, npre):
    k.c("================ phase C")
    VB1, VB2, VT = 5, 6, 7
    ACC, BB = 8, 56
    D = 6
    await_flags(k, S_FL, 1, S_RC, False, 8)
    if FS in ("", "B", "C"): stamp(k, {"B": 7, "C": 1}.get(FS, 5))
    k.e(f"s_mul_i32 s39, s{S_RC}, {TILEB}")
    k.e(f"s_lshl_b32 s36, s{S_W}, 10")
    k.e(f"s_lshl_b32 s37, s{S_ROT}, 12"); k.e("s_add_u32 s37, s37, s36")
    k.e(f"s_add_u32 s40, s39, s{S_X1}")
    for i in range(6):
        k.e(f"s_sub_u32 s38, s37, {TILEB}"); k.e(f"s_cmp_ge_u32 s37, {TILEB}"); k.e("s_cselect_b32 s37, s38, s37")
        k.e("s_add_u32 s38, s37, s40")
        k.vmem(f"buffer_load_dwordx4 {vr(8+4*i,4)}, v{V_L16}, {WS}, s38 offen sc1", ("x", i))
        if i < 5: k.e("s_add_u32 s37, s37, 12288")
    k.e(f"s_cmp_ge_u32 s{S_W}, 3"); k.e("s_cbranch_scc1 L_C_s1")
    k.e(f"s_mul_i32 s38, s{S_SC}, 2304"); k.e("s_add_u32 s38, s38, s36"); k.e(f"s_add_u32 s38, s38, 0x{CS1:x}"); k.e(f"s_add_u32 m0, s36, {C_CS}"); k.e("s_nop 0")
    k.e(f"buffer_load_dwordx4 v{V_L16}, {WS}, s38 offen lds")
    k.e("s_branch L_C_s2w")
    k.label("L_C_s1")
    k.e(f"s_cmp_ge_u32 s{S_W}, 5"); k.e("s_cbranch_scc1 L_C_s3")
    k.e(f"s_mul_i32 s38, s{S_SC}, 1152"); k.e("s_add_u32 s38, s38, s36"); k.e("s_sub_u32 s38, s38, 3072"); k.e(f"s_add_u32 m0, s36, {C_B1 - 3072}"); k.e("s_nop 0")
    k.e(f"buffer_load_dwordx4 v{V_L16}, s[12:15], s38 offen lds")
    k.label("L_C_s2w")
    def xstage(extra):
        k.e("s_mov_b32 s38, 0x3f803f80")
        k.e(f"v_add_u32 v{VB2}, s36, v{V_L16}")
        for i in range(6):
            k.e(f"s_waitcnt vmcnt({5-i+extra})")
            k.e(f"ds_write_b128 v{VB2}, {vr(8+4*i,4)} offset:{12288*i}")
            stats_acc(k, 8+4*i, 40, i == 0, 38)
        k.e("s_waitcnt vmcnt(0)")
    xstage(1)
    k.e("s_branch L_C_s4")
    k.label("L_C_s3")
    xstage(0)
    k.label("L_C_s4")
    k.vm = []
    k.e(f"s_lshl_b32 s37, s{S_W}, 9"); k.e(f"v_lshlrev_b32 v{VB2}, 3, v{V_L}"); k.e(f"v_add_u32 v{VB2}, s37, v{VB2}"); k.e(f"v_add_u32 v{VB2}, {C_PM}, v{VB2}")
    k.e(f"ds_write_b64 v{VB2}, v[40:41]")
    k.e(f"v_lshlrev_b32 v{VB1}, 10, v{V_G}"); k.e(f"v_lshl_add_u32 v{VB1}, v{V_M}, 4, v{VB1}")
    k.e("s_waitcnt lgkmcnt(0)")
    k.e("s_barrier")
    if FS in ("", "C"): stamp(k, {"C": 2}.get(FS, 6))
    k.lg = []
    k.e(f"s_cmp_lg_u32 s{S_W}, 11"); k.e("s_cbranch_scc1 L_C_nocomb")
    stats_combine(k, C_PM, 8, VB2, C_ST, False)
    lds_signal(k, CC_ST, 8)
    k.e("s_waitcnt lgkmcnt(0)"); k.lg = []
    k.label("L_C_nocomb")
    k.e(f"v_add_u32 v{VB2}, 49152, v{VB1}")
    def bread1(ks, mi, reg):
        off = ks*4096 + mi*256; base = VB1
        if off >= 49152: off -= 49152; base = VB2
        k.lds(f"ds_read_b128 {vr(reg,4)}, v{base} offset:{off}", ("b", ks))
    accf = lambda mi, t: ACC + 12*mi + 4*t
    bbf = lambda par, mi: BB + 16*par + 4*mi
    asf = lambda i_, t: AR + 12*(i_ % D) + 4*t
    order = [(mi, t) for mi in range(4) for t in range(3)]
    DEFER = ENV("DEFER", 1)
    state = dict(n=npre)
    lim1 = ENV("LIM1", 18) if DEFER else 24
    def after1(ks):
        tgt = min(ks + 1 + D, lim1, state["n"] + 2)
        while state["n"] < tgt:
            c_aload(k, state["n"]); state["n"] += 1
            if DEFER == 1 and state["n"] == 18: lds_signal(k, CC_W1, EX)
    k.e(f"s_setprio {ENV('P1PRIO', 2)}")
    gemm_loop(k, 18, order, accf, bbf, asf, bread1, 0, 4, after1)
    k.e(f"s_setprio {ENV('GPRIO', 3)}")
    if FS == "C": stamp(k, 3)
    DEFN = ENV('DEFN', 12)
    sv2 = k.snapshot()
    def w2_check(final=False, first=False):
        if DEFER != 1: return
        lab = k.newlabel("L_w2")
        if not first:
            k.e("s_cmp_lg_u32 s56, 0"); k.e(f"s_cbranch_scc1 {lab}")
        else:
            k.e("s_mov_b32 s56, 0")
        k.e(f"s_add_u32 s36, s{S_CNT}, {4*CC_W1}")
        k.label(lab + "_p")
        k.e(f"v_mov_b32 v0, s36")
        k.e(f"ds_read_b32 v0, v0")
        k.e("s_waitcnt lgkmcnt(0)"); k.lg = []
        k.e(f"v_readfirstlane_b32 s37, v0")
        k.e("s_nop 3")
        k.e(f"s_cmp_ge_u32 s37, {DEFN}"); k.e(f"s_cbranch_scc1 {lab}_go")
        if final:
            k.e("s_sleep 4"); k.e(f"s_branch {lab}_p")
        else:
            k.e(f"s_branch {lab}")
        k.label(lab + "_go")
        k.vm = list(sv2[0])
        for i in range(18, 24): c_aload(k, i)
        k.e("s_mov_b32 s56, 1")
        k.label(lab)
    w2_check(first=True)
    lds_wait(k, CC_ST, 1, EX)
    CSR, B1R, T, STR = BB, BB+12, BB+24, EX
    k.e(f"v_mul_u32_u24 v{VT}, 48, v{V_G}"); k.e(f"s_mul_i32 s40, s{S_W}, 192"); k.e(f"s_add_u32 s40, s40, {C_CS}"); k.e(f"v_add_u32 v{VB1}, s40, v{VT}")
    for j in range(3): k.lds(f"ds_read_b128 {vr(CSR+4*j,4)}, v{VB1} offset:{16*j}", "cs")
    k.e(f"v_mul_u32_u24 v{VT}, 24, v{V_G}"); k.e(f"s_mul_i32 s40, s{S_W}, 96"); k.e(f"s_add_u32 s40, s40, {C_B1}"); k.e(f"v_add_u32 v{VB1}, s40, v{VT}")
    for j in range(3): k.lds(f"ds_read_b64 {vr(T+2*j,2)}, v{VB1} offset:{8*j}", "cs")
    k.e(f"v_lshlrev_b32 v{VB1}, 3, v{V_M}"); k.e(f"v_add_u32 v{VB1}, {C_ST}, v{VB1}")
    for mi in range(4): k.lds(f"ds_read_b64 {vr(STR+2*mi,2)}, v{VB1} offset:{128*mi}", "cs")
    k.e(f"s_bfe_u32 s40, s{S_W}, 0x10001"); k.e(f"s_and_b32 s41, s{S_W}, 1"); k.e("s_mul_i32 s40, s40, 3")
    k.e(f"s_sub_u32 s40, s40, s{S_ROT2}"); k.e("s_add_u32 s40, s40, 6")
    k.e(f"s_lshr_b32 s55, s{S_W}, 2"); k.e("s_mul_i32 s54, s55, 6")
    k.e("s_add_u32 s42, s40, s41"); k.e("s_sub_u32 s44, s42, 6"); k.e("s_cmp_ge_u32 s42, 6"); k.e("s_cselect_b32 s42, s44, s42")
    k.e("s_add_u32 s42, s42, s54"); k.e("s_lshl_b32 s42, s42, 12"); k.e(f"s_add_u32 s42, s42, {C_HB}")
    k.e("s_add_u32 s43, s40, 2"); k.e("s_sub_u32 s44, s43, 6"); k.e("s_cmp_ge_u32 s43, 6"); k.e("s_cselect_b32 s43, s44, s43")
    k.e("s_add_u32 s43, s43, s54"); k.e("s_lshl_b32 s43, s43, 12"); k.e("s_lshl_b32 s41, s41, 3"); k.e("s_add_u32 s43, s43, s41"); k.e(f"s_add_u32 s43, s43, {C_HB}")
    k.e(f"v_add_u32 v{VB1}, s42, v{V_L16}"); k.e(f"v_add_u32 v{VB2}, s43, v{V_L16}")
    c0 = -2.0 * math.sqrt(2.0/math.pi) * math.log2(math.e)
    c1 = c0 * 0.044715
    k.e(f"s_mov_b32 s44, {f32(c1)}"); k.e(f"v_mov_b32 v{VT}, {f32(c0)}")
    k.wait(lg=["cs"])
    for j in range(6):
        k.e(f"v_lshlrev_b32 v{B1R+2*j}, 16, v{T+j}"); k.e(f"v_and_b32 v{B1R+2*j+1}, 0xffff0000, v{T+j}")
    PK = ENV("PK", 0)
    if PK:
        k.e(f"s_mov_b32 s45, {f32(c1)}"); k.e(f"s_mov_b32 s50, {f32(c0)}"); k.e(f"s_mov_b32 s51, {f32(c0)}")
    for mi in range(4):
        a = accf(mi, 0)
        for (j0, n) in ((0, 8), (8, 4)):
            js = range(j0, j0+n)
            if ENV("NOGELU", 0) == 1:
                for j in js: k.e(f"v_mul_f32 v{T+j-j0}, v{a+j}, v{STR+2*mi}")
            elif ENV("NOGELU", 0) == 2:
                for j in js: k.e(f"v_fma_f32 v{T+j-j0}, v{STR+2*mi+1}, v{CSR+j}, v{B1R+j}")
                for j in js: k.e(f"v_fma_f32 v{a+j}, v{a+j}, v{STR+2*mi}, v{T+j-j0}")
                for j in js: k.e(f"v_mul_f32 v{T+j-j0}, v{a+j}, v{a+j}")
                for j in js: k.e(f"v_fma_f32 v{T+j-j0}, v{T+j-j0}, s44, v{VT}")
                for j in js: k.e(f"v_mul_f32 v{T+j-j0}, v{T+j-j0}, v{a+j}")
                for j in js: k.e(f"v_add_f32 v{T+j-j0}, 1.0, v{T+j-j0}")
                for j in js: k.e(f"v_mul_f32 v{T+j-j0}, 0.5, v{a+j}")
            elif not PK:
                for j in js: k.e(f"v_fma_f32 v{T+j-j0}, v{STR+2*mi+1}, v{CSR+j}, v{B1R+j}")
                for j in js: k.e(f"v_fma_f32 v{a+j}, v{a+j}, v{STR+2*mi}, v{T+j-j0}")
                for j in js: k.e(f"v_mul_f32 v{T+j-j0}, v{a+j}, v{a+j}")
                for j in js: k.e(f"v_fma_f32 v{T+j-j0}, v{T+j-j0}, s44, v{VT}")
                for j in js: k.e(f"v_mul_f32 v{T+j-j0}, v{T+j-j0}, v{a+j}")
                for j in js: k.e(f"v_exp_f32 v{T+j-j0}, v{T+j-j0}")
                for j in js: k.e(f"v_add_f32 v{T+j-j0}, 1.0, v{T+j-j0}")
                for j in js: k.e(f"v_rcp_f32 v{T+j-j0}, v{T+j-j0}")
                for j in js: k.e(f"v_mul_f32 v{T+j-j0}, v{T+j-j0}, v{a+j}")
            else:
                jp = range(j0, j0+n, 2)
                P = lambda r: vr(r, 2)
                st = P(STR+2*mi)
                for j in jp: k.e(f"v_pk_fma_f32 {P(T+j-j0)}, {st}, {P(CSR+j)}, {P(B1R+j)} op_sel:[1,0,0] op_sel_hi:[1,1,1]")
                for j in jp: k.e(f"v_pk_fma_f32 {P(a+j)}, {P(a+j)}, {st}, {P(T+j-j0)} op_sel:[0,0,0] op_sel_hi:[1,0,1]")
                for j in jp: k.e(f"v_pk_mul_f32 {P(T+j-j0)}, {P(a+j)}, s[44:45]")
                for j in jp: k.e(f"v_pk_fma_f32 {P(T+j-j0)}, {P(T+j-j0)}, {P(a+j)}, s[50:51]")
                for j in jp: k.e(f"v_pk_mul_f32 {P(T+j-j0)}, {P(T+j-j0)}, {P(a+j)}")
                for j in js: k.e(f"v_exp_f32 v{T+j-j0}, v{T+j-j0}")
                for j in jp: k.e(f"v_pk_add_f32 {P(T+j-j0)}, {P(T+j-j0)}, 1.0 op_sel_hi:[1,0]")
                for j in js: k.e(f"v_rcp_f32 v{T+j-j0}, v{T+j-j0}")
                for j in jp: k.e(f"v_pk_mul_f32 {P(T+j-j0)}, {P(T+j-j0)}, {P(a+j)}")
            for j in range(n//2): k.e(f"v_cvt_pk_bf16_f32 v{a+j0+j}, v{T+2*j}, v{T+2*j+1}")
            if j0 == 0: k.lds(f"ds_write_b128 v{VB1}, {vr(a,4)} offset:{mi*1024}", "hw")
            else: k.lds(f"ds_write_b64 v{VB2}, {vr(a+8,2)} offset:{mi*1024}", "hw")
            if DEFER == 2 and state["n"] < 24:
                c_aload(k, state["n"]); state["n"] += 1
        if mi < 3: w2_check()
    k.e(f"v_add_u32 v{VB1}, {C_HB}, v{V_L16}"); k.e(f"v_add_u32 v{VB2}, {C_HB+49152}, v{V_L16}")
    k.e("s_lshl_b32 s55, s55, 2"); k.e(f"s_add_u32 s55, s55, s{S_CNT}"); k.e(f"s_add_u32 s55, s55, {4*CC_H0}")
    k.e(f"v_mov_b32 v{EX+2}, s55"); k.e(f"v_mov_b32 v{EX+3}, 1")
    k.wait(lg0=True)
    k.e("s_mov_b64 exec, 1")
    k.e(f"ds_add_u32 v{EX+2}, v{EX+3}")
    k.e("s_mov_b64 exec, -1")
    k.e(f"s_setprio {ENV('P2PRIO', 0)}")
    if FS == "C": stamp(k, 4)
    w2_check(final=True)
    if FS == "C": stamp(k, 5)
    def gate(ks, query=False):
        if ks % 6: return False
        if query: return True
        lds_wait(k, CC_H0 + ks//6, 4, EX)
    def bread2(ks, mi, reg):
        off = (ks*4 + mi) * 1024; base = VB1
        if off >= 49152: off -= 49152; base = VB2
        k.lds(f"ds_read_b128 {vr(reg,4)}, v{base} offset:{off}", ("b", ks))
    def after2(ks):
        if 18 + ks + D < 36: c_aload(k, 18 + ks + D)
    gemm_loop(k, 18, order, accf, bbf, asf, bread2, 18, 4, after2, gate=gate)
    k.e("s_setprio 0")
    if FS == "C": stamp(k, 6)
    if FS == "D": stamp(k, 1)
    k.e(f"v_lshlrev_b32 v{VB1}, 10, v{V_G}"); k.e(f"v_lshl_add_u32 v{VB1}, v{V_M}, 4, v{VB1}")
    k.e(f"v_lshrrev_b32 v{VB2}, 1, v{V_G}"); k.e(f"v_lshlrev_b32 v{VB2}, 10, v{VB2}"); k.e(f"v_and_b32 v{VT}, 31, v{V_L}")
    k.e(f"v_lshl_add_u32 v{VB2}, v{VT}, 4, v{VB2}")
    k.e(f"s_mul_i32 s40, s{S_SC}, {XB}"); k.e("s_add_u32 s40, s40, s39"); k.e(f"s_mul_i32 s41, s{S_W}, 6144"); k.e("s_add_u32 s40, s40, s41")
    k.e(f"s_add_u32 s40, s40, s{S_P}")
    k.e("s_add_u32 s41, s40, 4096")
    for mp in range(2):
        T2 = BB + 16 + 4*mp
        for mi in (2*mp, 2*mp+1):
            a = accf(mi, 0); T_ = BB + 4*mi
            for j in range(4): k.e(f"v_cvt_pk_bf16_f32 v{T_+j}, v{a+2*j}, v{a+2*j+1}")
            for j in range(2): k.e(f"v_cvt_pk_bf16_f32 v{T2+2*(mi&1)+j}, v{a+8+2*j}, v{a+8+2*j+1}")
            k.e(f"buffer_store_dwordx4 {vr(T_,4)}, v{VB1}, {WS}, s40 offen offset:{256*mi} sc1")
        k.e("s_nop 0")
        k.e(f"v_permlane16_swap_b32 v{T2}, v{T2+2}"); k.e(f"v_permlane16_swap_b32 v{T2+1}, v{T2+3}")
        k.e("s_nop 0")
        k.e(f"buffer_store_dwordx4 {vr(T2,4)}, v{VB2}, {WS}, s41 offen offset:{512*mp} sc1")
    publish(k, CC_DONE, 12, 2, S_RC, S_SC, 8)
    if FS in ("", "C", "D"): stamp(k, {"D": 2}.get(FS, 7))
    if ENV("APF_EARLY", 1):
        k.e(f"s_cmp_lg_u32 s{S_LAY}, 0"); k.e("s_cbranch_scc1 L_C_noapf")
        a_prefetch(k)
        k.label("L_C_noapf")

def phase_D(k):
    k.c("================ phase D")
    k.e(f"s_mul_i32 s40, s{S_S}, 9"); k.e(f"s_add_u32 s40, s40, s{S_W}"); k.e("s_min_u32 s40, s40, 71"); k.e("s_lshl_b32 s40, s40, 4")
    k.e("s_load_dwordx4 s[52:55], s[20:21], s40")
    await_flags(k, S_FL, 2, S_R, False, 8)
    if FS == "D": stamp(k, 3)
    k.e(f"s_cmp_ge_u32 s{S_W}, 9"); k.e("s_cbranch_scc1 L_D_idle")
    k.vm = []
    k.e(f"s_mul_i32 s39, s{S_R}, {TILEB}"); k.e("s_lshl_b32 s41, s40, 6"); k.e("s_add_u32 s41, s41, s39")
    k.e(f"s_add_u32 s42, s41, s{S_P}")
    for s in range(8):
        k.vmem(f"buffer_load_dwordx4 {vr(8+4*s,4)}, v{V_L16}, {WS}, s42 offen sc1", s)
        if s < 7: k.e(f"s_add_u32 s42, s42, {XB}")
    k.e(f"s_add_u32 s42, s41, s{S_X1}")
    k.vmem(f"buffer_load_dwordx4 v[40:43], v{V_L16}, {WS}, s42 offen sc1", 8)
    k.e("s_waitcnt lgkmcnt(0)")
    for j in range(4):
        k.e(f"s_lshl_b32 s43, s{52+j}, 16"); k.e(f"s_and_b32 s44, s{52+j}, 0xffff0000")
        k.e(f"v_mov_b32 v{48+2*j}, s43"); k.e(f"v_mov_b32 v{49+2*j}, s44")
    for s in range(9):
        k.wait(vm=[s])
        for j in range(4):
            r = 8 + 4*s + j
            k.e(f"v_lshlrev_b32 v5, 16, v{r}"); k.e(f"v_and_b32 v6, 0xffff0000, v{r}")
            k.e(f"v_add_f32 v{48+2*j}, v{48+2*j}, v5"); k.e(f"v_add_f32 v{49+2*j}, v{49+2*j}, v6")
    for j in range(4): k.e(f"v_cvt_pk_bf16_f32 v{8+j}, v{48+2*j}, v{49+2*j}")
    if FS == "D": stamp(k, 4)
    k.e(f"s_cmp_lg_u32 s{S_LAY}, 0"); k.e("s_cbranch_scc1 L_D_final")
    k.e(f"s_add_u32 s42, s41, 0x{X2:x}")
    k.e(f"buffer_store_dwordx4 v[8:11], v{V_L16}, {WS}, s42 offen sc1")
    publish(k, CD_DONE, 9, 3, S_R, S_S, 14)
    k.e("s_branch L_D_idle")
    k.label("L_D_final")
    k.e("s_movk_i32 s42, 1152"); k.e(f"v_mul_u32_u24 v5, s42, v{V_L}")
    k.e("s_add_u32 s42, s39, s40")
    k.e("buffer_store_dwordx4 v[8:11], v5, s[16:19], s42 offen")
    k.label("L_D_idle")
    k.e("s_waitcnt lgkmcnt(0)")
    if not ENV("APF_EARLY", 1):
        k.e(f"s_cmp_lg_u32 s{S_LAY}, 0"); k.e("s_cbranch_scc1 L_D_noapf")
        a_prefetch(k)
        k.label("L_D_noapf")

def gen_main():
    name = "main_kernel"
    k = K(); header(k, name, 256)
    k.e("s_load_dwordx2 s[4:5], s[0:1], 40")
    k.e("s_load_dwordx4 s[20:23], s[0:1], 56")
    k.e("s_load_dwordx2 s[6:7], s[0:1], 80")
    wave_lane(k, V_L, S_W)
    k.e(f"v_lshlrev_b32 v{V_L16}, 4, v{V_L}")
    k.e(f"v_lshrrev_b32 v{V_G}, 4, v{V_L}"); k.e(f"v_and_b32 v{V_M}, 15, v{V_L}")
    k.e(f"s_cmp_lg_u32 s{S_W}, 0"); k.e("s_cbranch_scc1 L_M_nz")
    k.e(f"v_lshlrev_b32 v5, 2, v{V_L}"); k.e(f"v_add_u32 v5, {CNT}, v5"); k.e("v_mov_b32 v6, 0"); k.e("ds_write_b32 v5, v6")
    k.label("L_M_nz")
    def mapping2(Sx, ss, sr_, sidx):
        R = 32 // Sx; ng = 8 // Sx; lg = lambda x: x.bit_length() - 1
        k.e("s_and_b32 s36, s2, 7"); k.e("s_lshr_b32 s37, s2, 3")
        k.e(f"s_and_b32 s{ss}, s36, {ng-1}"); k.e(f"s_lshl_b32 s{ss}, s{ss}, {lg(Sx)}")
        k.e(f"s_and_b32 s38, s37, {Sx-1}"); k.e(f"s_add_u32 s{ss}, s{ss}, s38")
        k.e(f"s_lshr_b32 s{sr_}, s36, {lg(ng)}"); k.e(f"s_lshl_b32 s{sr_}, s{sr_}, {lg(R)}")
        k.e(f"s_lshr_b32 s{sidx}, s37, {lg(Sx)}"); k.e(f"s_add_u32 s{sr_}, s{sr_}, s{sidx}")
    mapping2(8, S_S, S_R, S_IDX)
    mapping2(SXC, S_SC, S_RC, S_IDX)
    rot18(k, S_IDX, S_ROT, 32 // SXC)
    sdivmod(k, 36, S_ROT2, S_IDX, 6, 32)
    if not ENV("ROT2", 1): k.e(f"s_mov_b32 s{S_ROT2}, 0")
    k.e("s_waitcnt lgkmcnt(0)")
    srd(k, 8, 6, 0, WSZ)
    srd(k, 12, 4, 0, 4608*2)
    srd(k, 16, 22, 0, XB)
    k.e(f"s_mov_b32 s{S_LAY}, 0")
    k.e(f"s_mov_b32 s{S_XIN}, 0x{X0P:x}"); k.e(f"s_mov_b32 s{S_O}, 0x{O1:x}"); k.e(f"s_mov_b32 s{S_X1}, 0x{X1A:x}"); k.e(f"s_mov_b32 s{S_P}, 0x{P1:x}")
    k.e(f"s_mov_b32 s{S_FL}, 0x{FLG:x}"); k.e(f"s_mov_b32 s{S_CNT}, {CNT}")
    k.label("L_layer")
    phase_A(k)
    npre = phase_B(k)
    phase_C(k, npre)
    phase_D(k)
    k.e(f"s_cmp_lg_u32 s{S_LAY}, 0"); k.e(f"s_cbranch_scc1 L_{name}_end")
    if STAMP and ENV("STAMP_L1", 0):
        k.e(f"s_branch L_{name}_end")
    k.e(f"s_mov_b32 s{S_LAY}, 1")
    k.e(f"s_mov_b32 s{S_XIN}, 0x{X2:x}"); k.e(f"s_mov_b32 s{S_O}, 0x{O2:x}"); k.e(f"s_mov_b32 s{S_X1}, 0x{X1B:x}"); k.e(f"s_mov_b32 s{S_P}, 0x{P2:x}")
    k.e(f"s_mov_b32 s{S_FL}, 0x{FLG+FLG_LAYER:x}"); k.e(f"s_mov_b32 s{S_CNT}, {CNT+64}")
    if STAMP: stamp(k, 0)
    k.e("s_branch L_layer")
    k.label(f"L_{name}_end")
    if STAMP:
        k.e("s_waitcnt vmcnt(0)")
        k.e(f"s_lshl_b32 s36, s{S_W}, 6"); k.e("v_mov_b32 v0, s36")
    stamp_end(k, KIDX[0]); KIDX[0] += 1
    k.label(f"L_{name}_exit")
    k.e("s_endpgm")
    return name, k.text(), desc(name, 168), (256, 768, LDS_TOTAL)

def main(out):
    ks = [gen_prep(), gen_main()]
    ref = open(f"cdna_kernels/{NAME}.s.ref").read().splitlines()
    hdr = [l for l in ref if l.startswith(";") and "@launch" not in l and "Override" not in l and "grid=ceil" not in l]
    s = "\n".join(hdr) + "\n"
    for n, _, _, (g, b, lds) in ks:
        s += f"; @launch kernel={n} grid=({g},1,1) block=({b},1,1) lds={lds}\n"
    s += '.amdgcn_target "amdgcn-amd-amdhsa--gfx950"\n.text\n'
    for _, t, _, _ in ks: s += t
    for _, _, d, _ in ks: s += d
    open(out, "w").write(s)

if __name__ == "__main__":
    main(sys.argv[1] if len(sys.argv) > 1 else f"cdna_kernels/{NAME}.s")
```

```python
import sys, struct, math, os
from asmlib import *

NAME = "interleave_layers__sliding_local_dilated__dense_activation_gelu__prompt"
XB = 2048 * 1152
TILEB = 73728
WQF, WOF, WFF = 0x0, 0x200000, 0x300000
CS1, CSQ = 0xE00000, 0xE10000
ST0, ST1A, ST2, ST1B = 0xE40000, 0xE80000, 0xEC0000, 0xF00000
X0P = 0x4C00000
O1, X1A, X2, O2, X1B, P1, P2 = 0x1000000, 0x1400000, 0x1800000, 0x1C00000, 0x2000000, 0x2400000, 0x3800000
WQF_SZ, WOF_SZ, WFF_SZ = 8*14*18*1024, 8*5*18*1024, 8*12*36*3072
ST_SZ = 32*8*64*8
ENV = lambda n, d: int(os.environ.get(n, str(d)))
STAMP = ENV("STAMP", 0)
STAMP_BASE = 0x8000000

def f32(x):
    return "0x%08x" % struct.unpack("<I", struct.pack("<f", x))[0]

def srd(k, d, b, add, size):
    if add:
        k.e(f"s_add_u32 s{d}, s{b}, 0x{add:x}")
        k.e(f"s_addc_u32 s{d+1}, s{b+1}, 0")
    else:
        k.e(f"s_mov_b32 s{d}, s{b}")
        k.e(f"s_mov_b32 s{d+1}, s{b+1}")
    k.e(f"s_mov_b32 s{d+2}, 0x{size:x}")
    k.e(f"s_mov_b32 s{d+3}, 0x20000")

def stamp(k, i):
    if not STAMP: return
    k.e("s_waitcnt lgkmcnt(0)"); k.lg = []
    k.e(f"s_memtime s[84:85]")
    k.e(f"s_memrealtime s[86:87]")
    k.e("s_waitcnt lgkmcnt(0)")
    k.e(f"s_mov_b32 s{64+i}, s84"); k.e(f"s_mov_b32 s{74+i}, s86")
def stamp_begin(k):
    if not STAMP: return
    for i in range(1, 9):
        k.e(f"s_mov_b32 s{64+i}, 0"); k.e(f"s_mov_b32 s{74+i}, 0")
    stamp(k, 0)
def stamp_end(k, kidx):
    if not STAMP: return
    k.e("s_waitcnt vmcnt(0)")
    stamp(k, 8)
    k.e("s_load_dwordx2 s[88:89], s[0:1], 80")
    k.e("s_getreg_b32 s90, hwreg(HW_REG_XCC_ID)")
    k.e("s_waitcnt lgkmcnt(0)")
    k.e("s_mov_b64 exec, 1")
    k.e(f"s_add_u32 s88, s88, 0x{STAMP_BASE:x}"); k.e("s_addc_u32 s89, s89, 0")
    k.e(f"s_add_u32 s91, s2, {kidx*512}"); k.e("s_lshl_b32 s91, s91, 4")
    k.e("v_lshrrev_b32 v1, 6, v0"); k.e("v_add_u32 v1, s91, v1"); k.e("v_lshlrev_b32 v1, 7, v1")
    vals = [64+i for i in range(9)] + [90] + [74+i for i in range(9)] + [90]
    for j, sreg in enumerate(vals):
        k.e(f"v_mov_b32 v{2+j}, s{sreg}")
    for j in range(0, 20, 4):
        k.e(f"global_store_dwordx4 v1, v[{2+j}:{5+j}], s[88:89] offset:{4*j}")

KIDX = [0]
def header(k, name, nwg):
    k.lines.append(f".globl {name}\n.p2align 8\n.type {name},@function\n{name}:")
    k.e(f"s_cmp_ge_u32 s2, {nwg}")
    k.e(f"s_cbranch_scc1 L_{name}_exit")
    stamp_begin(k)
def footer(k, name):
    k.label(f"L_{name}_end")
    stamp_end(k, KIDX[0]); KIDX[0] += 1
    k.label(f"L_{name}_exit")
    k.e("s_endpgm")

def desc(name, vgpr, sgpr=96):
    acc = (vgpr + 3) // 4 * 4
    return f""".section .rodata,"a"
.p2align 6
.amdhsa_kernel {name}
  .amdhsa_next_free_vgpr {vgpr}
  .amdhsa_next_free_sgpr {sgpr}
  .amdhsa_accum_offset {acc}
  .amdhsa_group_segment_fixed_size 0
  .amdhsa_kernarg_size 88
  .amdhsa_user_sgpr_count 2
  .amdhsa_user_sgpr_kernarg_segment_ptr 1
  .amdhsa_system_sgpr_workgroup_id_x 1
  .amdhsa_float_denorm_mode_32 3
.end_amdhsa_kernel
.text
"""

def divmod_const(k, q, rem, x, d, nmax, stmp):
    m, sh = magic(d, nmax)
    k.e(f"s_mov_b32 s{stmp}, {m}")
    k.e(f"v_mul_u32_u24 v{q}, s{stmp}, v{x}")
    k.e(f"v_lshrrev_b32 v{q}, {sh}, v{q}")
    if rem is not None:
        if d <= 64:
            k.e(f"v_mul_u32_u24 v{rem}, {d}, v{q}")
        else:
            k.e(f"v_mul_u32_u24 v{rem}, 0x{d:x}, v{q}")
        k.e(f"v_sub_u32 v{rem}, v{x}, v{rem}")

def sdivmod(k, q, rem, x, d, nmax):
    m, sh = magic(d, nmax)
    k.e(f"s_mul_i32 s{q}, s{x}, {m}"); k.e(f"s_lshr_b32 s{q}, s{q}, {sh}")
    if rem is not None:
        k.e(f"s_mul_i32 s{rem}, s{q}, {d}"); k.e(f"s_sub_u32 s{rem}, s{x}, s{rem}")

MAP = dict(attn=ENV("SX_A", 4), wo=ENV("SX_B", 8), ffn=ENV("SX_C", 2))
def mapping(k, Sx, ss=15, sr_=16, sidx=12):
    R = 32 // Sx; ng = 8 // Sx
    lg = lambda x: x.bit_length() - 1
    k.e("s_and_b32 s10, s2, 7")
    k.e("s_lshr_b32 s11, s2, 3")
    k.e(f"s_and_b32 s{ss}, s10, {ng-1}")
    k.e(f"s_lshl_b32 s{ss}, s{ss}, {lg(Sx)}")
    k.e(f"s_and_b32 s13, s11, {Sx-1}")
    k.e(f"s_add_u32 s{ss}, s{ss}, s13")
    k.e(f"s_lshr_b32 s{sr_}, s10, {lg(ng)}")
    k.e(f"s_lshl_b32 s{sr_}, s{sr_}, {lg(R)}")
    k.e(f"s_lshr_b32 s{sidx}, s11, {lg(Sx)}")
    k.e(f"s_add_u32 s{sr_}, s{sr_}, s{sidx}")

def rot18(k, sidx, srot, R):
    if not ENV("ROT", 0):
        k.e(f"s_mov_b32 s{srot}, 0"); return
    if R <= 16:
        mult = {4: 4, 8: 2, 16: 1}[R]
        k.e(f"s_mul_i32 s{srot}, s{sidx}, {mult}")
    else:
        k.e(f"s_sub_u32 s{srot}, s{sidx}, 18"); k.e(f"s_cmp_ge_u32 s{sidx}, 18"); k.e(f"s_cselect_b32 s{srot}, s{srot}, s{sidx}")

def wave_lane(k, vlane, swave):
    k.e(f"v_lshrrev_b32 v{vlane}, 6, v0")
    k.e("s_nop 0")
    k.e(f"v_readfirstlane_b32 s{swave}, v{vlane}")
    k.e(f"v_and_b32 v{vlane}, 63, v0")

def touch(k, srd_, L, n_instr, swave_idx, nwaves, per_slab, slab_stride, sbase, nslab, t, dummy, gran=64):
    t0, t1, t2 = t[:3]
    nmax = 32 * nwaves * n_instr * 64
    k.e(f"s_lshr_b32 s58, s2, 3"); k.e(f"s_mul_i32 s58, s58, {nwaves}"); k.e(f"s_add_u32 s58, s58, s{swave_idx}"); k.e(f"s_mul_i32 s58, s58, {n_instr*64}")
    for j in range(n_instr):
        k.e(f"v_add_u32 v{t0}, s58, v{L}")
        if j: k.e(f"v_add_u32 v{t0}, {64*j}, v{t0}")
        m, sh = magic2(per_slab, nmax)
        k.e(f"s_mov_b32 s59, {m}"); k.e(f"v_mul_hi_u32 v{t1}, v{t0}, s59")
        if sh: k.e(f"v_lshrrev_b32 v{t1}, {sh}, v{t1}")
        k.e(f"s_mov_b32 s59, {per_slab}"); k.e(f"v_mul_u32_u24 v{t2}, s59, v{t1}"); k.e(f"v_sub_u32 v{t0}, v{t0}, v{t2}")
        k.e(f"s_mov_b32 s59, {slab_stride}"); k.e(f"v_mul_u32_u24 v{t2}, s59, v{t1}")
        k.e(f"v_lshl_add_u32 v{t0}, v{t0}, {gran.bit_length()-1}, v{t2}")
        k.e(f"v_cmp_gt_u32 vcc, {nslab}, v{t1}")
        k.e(f"v_mov_b32 v{t2}, 0x7ff00000")
        k.e("s_nop 0")
        k.e(f"v_cndmask_b32 v{t0}, v{t2}, v{t0}, vcc")
        k.vmem(f"buffer_load_dword v{dummy}, v{t0}, s[{srd_}:{srd_+3}], s{sbase} offen", "touch")

def magic2(d, nmax):
    for sh in range(0, 12):
        m = (1 << (32 + sh)) // d + 1
        if m >= (1 << 32): continue
        if all((x * m) >> (32 + sh) == x // d for x in range(0, nmax, 1)):
            return m, sh
    raise ValueError

def dma(k, m0expr, voff, srd_, soff, tag=None):
    for l in m0expr: k.e(l)
    k.e("s_nop 0")
    k.vmem(f"buffer_load_dwordx4 v{voff}, s[{srd_}:{srd_+3}], {soff} offen{os.environ.get('PLD', ' nt')} lds", tag)

NJ_W1, NJ_WO, NJ_WQ, NJ_X0, NJ_W2 = 144, 64, 56, 64, 144
CSQP = 0xEA0000
CSP = 0xE40000
FLG = 0xF80000
FLG_LAYER = 32768
F_A, F_B, F_C, F_D = 0, 4096, 8192, 20480
PSC = os.environ.get("PST", "")
def gen_prep():
    name = "prep_kernel"
    NT = NJ_W1 + NJ_WO + NJ_WQ + NJ_X0 + NJ_W2
    k = K(); header(k, name, NT)
    k.e("s_load_dwordx4 s[4:7], s[0:1], 8")
    k.e("s_load_dwordx2 s[8:9], s[0:1], 32")
    k.e("s_load_dwordx2 s[10:11], s[0:1], 48")
    k.e("s_load_dwordx2 s[12:13], s[0:1], 80")
    k.e("s_load_dwordx2 s[48:49], s[0:1], 0")
    wave_lane(k, 1, 14)
    k.e("s_and_b32 s15, s2, 7")
    k.e("s_lshr_b32 s16, s2, 3")
    k.e("v_lshrrev_b32 v2, 4, v1")
    k.e("v_bfe_u32 v3, v1, 2, 2")
    k.e("v_and_b32 v4, 3, v1")
    k.e("v_lshlrev_b32 v5, 4, v1")
    k.e("s_waitcnt lgkmcnt(0)")
    srd(k, 20, 12, 0, 0x5000000)
    srd(k, 24, 8, 0, 576*4608*2)
    srd(k, 28, 10, 0, 576*4608*2)
    srd(k, 32, 4, 0, 576*1728*2)
    srd(k, 36, 6, 0, 576*576*2)
    srd(k, 52, 48, 0, XB)
    b = [0]
    for n in (NJ_WQ, NJ_X0, NJ_W1, NJ_W2): b.append(b[-1] + n)
    for bound, lab in ((b[1], "wq"), (b[2], "x0"), (b[3], "w1"), (b[4], "w2")):
        k.e(f"s_cmp_lt_u32 s2, {bound}"); k.e(f"s_cbranch_scc1 L_prep_{lab}")
    k.e("s_branch L_prep_wo")
    def lin_dma(n_i, per_row, nmax, pitch, srd_, soff):
        k.e(f"s_lshl_b32 s18, s14, 6")
        for i in range(n_i):
            k.e(f"v_add_u32 v6, s18, v1")
            if i: k.e(f"v_add_u32 v6, {768*i}, v6")
            divmod_const(k, 7, 8, 6, per_row, nmax, 19)
            k.e(f"s_mov_b32 s19, {pitch}")
            k.e("v_mul_u32_u24 v7, s19, v7")
            k.e("v_lshl_add_u32 v7, v8, 4, v7")
            dma(k, [f"s_lshl_b32 s19, s14, 10", f"s_add_u32 m0, s19, {12288*i}"], 7, srd_, soff)
    k.label("L_prep_w1")
    k.e(f"s_sub_u32 s16, s16, {b[2]//8}")
    k.e("s_mul_i32 s17, s16, %d" % (32*9216)); k.e("s_mul_i32 s18, s15, 1152"); k.e("s_add_u32 s17, s17, s18")
    lin_dma(3, 72, 2304, 9216, 24, "s17")
    k.e("s_lshr_b32 s40, s14, 1"); k.e("s_and_b32 s41, s14, 1"); k.e("s_mul_i32 s40, s40, 96")
    k.e("s_lshl_b32 s42, s41, 5"); k.e("s_add_u32 s42, s42, s40")
    k.e("s_lshl_b32 s43, s41, 4"); k.e("s_add_u32 s43, s43, s40"); k.e("s_add_u32 s43, s43, 64")
    k.e("v_lshl_add_u32 v7, v2, 3, v3"); k.e("s_movk_i32 s19, 1152"); k.e("v_mul_u32_u24 v7, s19, v7")
    k.e("s_lshl_b32 s44, s42, 1"); k.e("v_lshl_add_u32 v6, v4, 4, v7"); k.e("v_add_u32 v6, s44, v6")
    k.e("s_lshl_b32 s44, s43, 1"); k.e("v_lshl_add_u32 v10, v4, 3, v7"); k.e("v_add_u32 v10, s44, v10")
    k.e("v_add_u32 v9, %d, v6" % (4*1152)); k.e("v_add_u32 v11, %d, v10" % (4*1152))
    k.e("s_mul_i32 s17, s15, 12"); k.e("s_add_u32 s17, s17, s14"); k.e("s_mul_i32 s17, s17, 36"); k.e("s_add_u32 s17, s17, s16")
    k.e("s_mul_i32 s17, s17, 3072"); k.e(f"s_add_u32 s17, s17, 0x{WFF:x}")
    k.e("s_mul_i32 s44, s16, 4608"); k.e("s_mul_i32 s45, s15, 576"); k.e("s_add_u32 s44, s44, s45")
    k.e("s_add_u32 s42, s42, s44"); k.e("s_lshl_b32 s42, s42, 2"); k.e(f"s_add_u32 s42, s42, 0x{CSP:x}")
    k.e("s_add_u32 s43, s43, s44"); k.e("s_lshl_b32 s43, s43, 2"); k.e(f"s_add_u32 s43, s43, 0x{CSP:x}")
    k.e("v_lshlrev_b32 v7, 5, v2"); k.e("v_lshlrev_b32 v8, 4, v2")
    for j in range(4): k.e(f"v_mov_b32 v{40+j}, 0x3f803f80")
    k.e("s_waitcnt vmcnt(0)")
    k.e("s_barrier")
    for t in range(2):
        k.e(f"ds_read_b64_tr_b16 v[{12+4*t}:{13+4*t}], v6 offset:{8*t}")
        k.e(f"ds_read_b64_tr_b16 v[{14+4*t}:{15+4*t}], v9 offset:{8*t}")
    k.e(f"ds_read_b64_tr_b16 v[20:21], v10")
    k.e(f"ds_read_b64_tr_b16 v[22:23], v11")
    for t in range(3):
        k.e(f"s_waitcnt lgkmcnt({4-2*t})")
        k.e(f"buffer_store_dwordx4 v[{12+4*t}:{15+4*t}], v5, s[20:23], s17 offen offset:{1024*t}{PSC}")
        k.e(f"v_mfma_f32_16x16x32_bf16 v[{28+4*t}:{31+4*t}], v[{12+4*t}:{15+4*t}], v[40:43], 0")
    k.e("s_mov_b32 exec_lo, 0x00010001"); k.e("s_mov_b32 exec_hi, 0x00010001")
    k.e("s_nop 7")
    k.e(f"buffer_store_dwordx4 v[28:31], v7, s[20:23], s42 offen{PSC}")
    k.e(f"buffer_store_dwordx4 v[32:35], v7, s[20:23], s42 offen offset:16{PSC}")
    k.e(f"buffer_store_dwordx4 v[36:39], v8, s[20:23], s43 offen{PSC}")
    k.e("s_mov_b64 exec, -1")
    k.e(f"s_branch L_{name}_end")
    k.label("L_prep_wq")
    k.e("s_cmp_ge_u32 s2, 54"); k.e(f"s_cbranch_scc1 L_{name}_end")
    sdivmod(k, 16, 15, 2, 3, 56)
    k.e("s_mul_i32 s17, s16, %d" % (32*3456)); k.e("s_mul_i32 s18, s15, 1152"); k.e("s_add_u32 s17, s17, s18")
    lin_dma(3, 72, 2304, 3456, 32, "s17")
    k.e("v_lshl_add_u32 v6, v2, 3, v3"); k.e("s_movk_i32 s19, 1152"); k.e("v_mul_u32_u24 v6, s19, v6")
    k.e("v_lshl_add_u32 v6, v4, 3, v6"); k.e("s_mul_i32 s19, s14, 96"); k.e("v_add_u32 v6, s19, v6")
    for j in range(4): k.e(f"v_mov_b32 v{40+j}, 0x3f803f80")
    k.e("s_mul_i32 s40, s15, 9")
    for t in range(3):
        k.e("v_bfe_u32 v7, v1, 3, 1"); k.e("s_mul_i32 s19, s14, 6"); k.e(f"s_add_u32 s19, s19, {2*t}"); k.e("v_add_u32 v7, s19, v7")
        divmod_const(k, 8, 9, 7, 9, 72, 19)
        k.e("v_add_u32 v9, s40, v9")
        k.e("v_mul_u32_u24 v8, 28, v8"); k.e("v_add_u32 v8, v8, v9")
        k.e("v_lshrrev_b32 v9, 1, v8"); k.e("s_movk_i32 s19, %d" % (18*1024)); k.e("v_mul_u32_u24 v9, s19, v9")
        k.e("v_and_b32 v8, 1, v8"); k.e("v_lshl_add_u32 v9, v8, 7, v9")
        k.e("v_lshl_add_u32 v9, v2, 8, v9"); k.e("v_and_b32 v8, 7, v1"); k.e(f"v_lshl_add_u32 v{24+t}, v8, 4, v9")
        k.e("v_lshrrev_b32 v7, 1, v2"); k.e("s_mul_i32 s19, s14, 6"); k.e(f"s_add_u32 s19, s19, {2*t}"); k.e("v_add_u32 v7, s19, v7")
        divmod_const(k, 8, 9, 7, 9, 72, 19)
        k.e("v_add_u32 v9, s40, v9"); k.e("v_mul_u32_u24 v8, 28, v8"); k.e("v_add_u32 v8, v8, v9")
        k.e("v_and_b32 v9, 1, v2"); k.e("v_lshlrev_b32 v9, 4, v9"); k.e(f"v_lshl_add_u32 v{44+t}, v8, 5, v9")
    k.e("s_lshl_b32 s17, s16, 10")
    if WQF: k.e(f"s_add_u32 s17, s17, 0x{WQF:x}")
    k.e("s_mul_i32 s42, s16, %d" % (8*224*4)); k.e(f"s_add_u32 s42, s42, 0x{CSQP:x}")
    k.e("s_waitcnt vmcnt(0)")
    k.e("s_barrier")
    for t in range(3):
        k.e(f"ds_read_b64_tr_b16 v[{12+4*t}:{13+4*t}], v6 offset:{32*t}")
        k.e(f"ds_read_b64_tr_b16 v[{14+4*t}:{15+4*t}], v6 offset:{32*t+4*1152}")
    for t in range(3):
        k.e(f"s_waitcnt lgkmcnt({4-2*t})")
        k.e(f"buffer_store_dwordx4 v[{12+4*t}:{15+4*t}], v{24+t}, s[20:23], s17 offen{PSC}")
        k.e(f"v_mfma_f32_16x16x32_bf16 v[{28+4*t}:{31+4*t}], v[{12+4*t}:{15+4*t}], v[40:43], 0")
    k.e("s_mov_b32 exec_lo, 0x00010001"); k.e("s_mov_b32 exec_hi, 0x00010001")
    k.e("s_nop 7")
    for t in range(3):
        k.e(f"buffer_store_dwordx4 v[{28+4*t}:{31+4*t}], v{44+t}, s[20:23], s42 offen{PSC}")
    k.e("s_mov_b64 exec, -1")
    k.e(f"s_branch L_{name}_end")
    k.label("L_prep_w2")
    k.e(f"s_sub_u32 s16, s16, {b[3]//8}")
    k.e("s_mul_i32 s17, s15, 18"); k.e("s_add_u32 s17, s17, s16"); k.e("s_mul_i32 s17, s17, 36864")
    k.e("s_lshl_b32 s19, s14, 10"); k.e("s_add_u32 s17, s17, s19")
    for i in range(3):
        dma(k, [f"s_add_u32 m0, s19, {12288*i}"], 5, 28, "s17")
        if i < 2: k.e("s_add_u32 s17, s17, 12288")
    sdivmod(k, 40, 41, 16, 3, 18)
    k.e("s_cmp_eq_u32 s41, 2"); k.e("s_cselect_b32 s44, 2, 3"); k.e("s_movk_i32 s45, %d" % (4*1152)); k.e("s_cselect_b32 s45, %d, s45" % (16*1152))
    k.e("v_lshlrev_b32 v6, s44, v2"); k.e("v_add_u32 v6, v6, v3")
    k.e("s_movk_i32 s19, 1152"); k.e("v_mul_u32_u24 v6, s19, v6")
    k.e("s_mul_i32 s19, s14, 96"); k.e("v_add_u32 v6, s19, v6")
    k.e("v_lshl_add_u32 v10, v4, 3, v6"); k.e("v_add_u32 v10, 64, v10")
    k.e("v_lshl_add_u32 v6, v4, 4, v6")
    k.e("v_add_u32 v9, s45, v6"); k.e("v_add_u32 v11, s45, v10")
    k.e("s_mul_i32 s17, s15, 12"); k.e("s_add_u32 s17, s17, s14"); k.e("s_mul_i32 s17, s17, 36"); k.e("s_add_u32 s17, s17, s16"); k.e("s_add_u32 s17, s17, 18")
    k.e("s_mul_i32 s17, s17, 3072"); k.e(f"s_add_u32 s17, s17, 0x{WFF:x}")
    k.e("s_waitcnt vmcnt(0)")
    k.e("s_barrier")
    for t in range(2):
        k.e(f"ds_read_b64_tr_b16 v[{12+4*t}:{13+4*t}], v6 offset:{8*t}")
        k.e(f"ds_read_b64_tr_b16 v[{14+4*t}:{15+4*t}], v9 offset:{8*t}")
    k.e(f"ds_read_b64_tr_b16 v[20:21], v10")
    k.e(f"ds_read_b64_tr_b16 v[22:23], v11")
    for t in range(3):
        k.e(f"s_waitcnt lgkmcnt({4-2*t})")
        k.e(f"buffer_store_dwordx4 v[{12+4*t}:{15+4*t}], v5, s[20:23], s17 offen offset:{1024*t}{PSC}")
    k.e(f"s_branch L_{name}_end")
    k.label("L_prep_wo")
    k.e(f"s_sub_u32 s16, s16, {b[4]//8}")
    k.e("s_mul_i32 s17, s16, %d" % (72*1152)); k.e("s_mul_i32 s18, s15, 144"); k.e("s_add_u32 s17, s17, s18")
    lin_dma(1, 9, 768, 1152, 36, "s17")
    k.e("s_lshl_b32 s44, s14, 2"); k.e("v_add_u32 v6, s44, v2"); k.e("v_min_u32 v6, 44, v6")
    divmod_const(k, 8, 7, 6, 5, 48, 19)
    k.e("v_lshrrev_b32 v9, 1, v8"); k.e("v_mul_u32_u24 v9, 18, v9")
    k.e("v_and_b32 v10, 1, v8"); k.e("v_lshl_add_u32 v9, v10, 3, v9")
    k.e("v_add_u32 v9, v9, v3")
    k.e("v_add_u32 v10, 4, v9")
    k.e("v_lshrrev_b32 v11, 1, v3"); k.e("v_mul_u32_u24 v11, 18, v11"); k.e("v_and_b32 v16, 1, v3")
    k.e("v_add3_u32 v11, v11, v16, 16")
    k.e("v_add_u32 v16, 36, v11")
    k.e("v_cmp_eq_u32 vcc, 8, v8")
    k.e("s_nop 1")
    k.e("v_cndmask_b32 v9, v9, v11, vcc"); k.e("v_cndmask_b32 v10, v10, v16, vcc")
    k.e("s_movk_i32 s19, 144"); k.e("v_mul_u32_u24 v9, s19, v9"); k.e("v_mul_u32_u24 v10, s19, v10")
    k.e("v_lshlrev_b32 v11, 5, v7"); k.e("v_lshl_add_u32 v11, v4, 3, v11")
    k.e("v_add_u32 v9, v9, v11"); k.e("v_add_u32 v10, v10, v11")
    k.e("s_movk_i32 s19, %d" % (18*1024)); k.e("v_mul_u32_u24 v7, s19, v7")
    k.e("s_mul_i32 s19, s16, 9"); k.e("v_add_u32 v8, s19, v8"); k.e("v_lshl_add_u32 v7, v8, 8, v7")
    k.e("v_and_b32 v8, 15, v1"); k.e("v_lshl_add_u32 v7, v8, 4, v7")
    k.e("s_mul_i32 s44, s15, %d" % (5*18*1024)); k.e(f"s_add_u32 s44, s44, 0x{WOF:x}")
    k.e("s_waitcnt vmcnt(0)")
    k.e("s_barrier")
    k.e("ds_read_b64_tr_b16 v[12:13], v9")
    k.e("ds_read_b64_tr_b16 v[14:15], v10")
    k.e("s_waitcnt lgkmcnt(0)")
    k.e(f"buffer_store_dwordx4 v[12:15], v7, s[20:23], s44 offen{PSC}")
    k.e(f"s_branch L_{name}_end")
    k.label("L_prep_x0")
    k.e(f"s_sub_u32 s16, s16, {b[1]//8}")
    k.e("s_lshl_b32 s17, s15, 3"); k.e("s_add_u32 s17, s17, s16")
    k.e("s_mul_i32 s18, s17, 36864"); k.e("s_lshl_b32 s19, s14, 10"); k.e("s_add_u32 s40, s18, s19")
    for i in range(3):
        dma(k, [f"s_add_u32 m0, s19, {12288*i}"], 5, 52, "s40")
        if i < 2: k.e("s_add_u32 s40, s40, 12288")
    k.e("s_cmp_lg_u32 s14, 11"); k.e("s_cbranch_scc1 L_prep_x0b")
    for j in range(4): k.e(f"v_mov_b32 v{40+j}, 0")
    k.e("s_lshl_b32 s18, s17, 10"); k.e(f"s_add_u32 s18, s18, 0x{FLG:x}")
    k.e(f"buffer_store_dwordx4 v[40:43], v5, s[20:23], s18 offen{PSC}")
    k.label("L_prep_x0b")
    k.e("v_and_b32 v6, 31, v1"); k.e("v_lshrrev_b32 v7, 5, v1")
    k.e("s_movk_i32 s19, 1152"); k.e("v_mul_u32_u24 v8, s19, v6"); k.e("v_lshl_add_u32 v8, v7, 4, v8")
    k.e("s_mul_i32 s19, s14, 96"); k.e("v_add_u32 v8, s19, v8")
    k.e("v_lshlrev_b32 v9, 10, v7"); k.e("v_lshl_add_u32 v9, v6, 4, v9")
    k.e("s_lshr_b32 s40, s17, 1"); k.e(f"s_mul_i32 s40, s40, {TILEB}"); k.e("s_and_b32 s41, s17, 1"); k.e("s_lshl_b32 s41, s41, 9"); k.e("s_add_u32 s40, s40, s41")
    k.e("s_mul_i32 s41, s14, 6144"); k.e("s_add_u32 s40, s40, s41"); k.e(f"s_add_u32 s40, s40, 0x{X0P:x}"); k.e("s_add_u32 s41, s40, 4096")
    k.e("s_waitcnt vmcnt(0)")
    k.e("s_barrier")
    for i in range(3): k.e(f"ds_read_b128 v[{12+4*i}:{15+4*i}], v8 offset:{32*i}")
    for i in range(3):
        k.e(f"s_waitcnt lgkmcnt({2-i})")
        k.e(f"buffer_store_dwordx4 v[{12+4*i}:{15+4*i}], v9, s[20:23], s{40 if i < 2 else 41} offen offset:{2048*(i%2)}{PSC}")
    footer(k, name)
    return name, k.text(), desc(name, 48), (NT, 768, 36864)


def gemm_loop(k, nks, order, acc, bbuf, aslot, bread, ks0, nm, after=None, pre=None, BD=1, atag=None, gate=None):
    atag = atag or (lambda ks: ("a", ks0 + ks))
    nb = BD + 1
    for d in range(min(BD, nks)):
        if gate: gate(d)
        for mi in range(nm): bread(d, mi, bbuf(d % nb, mi))
    if pre: pre()
    for ks in range(nks):
        late = gate is not None and ks + BD < nks and gate(ks + BD, True)
        if ks + BD < nks and not late:
            for mi in range(nm): bread(ks + BD, mi, bbuf((ks + BD) % nb, mi))
        k.wait(vm=[atag(ks)], lg=[("b", ks)])
        for (mi, t) in order:
            c = "0" if ks == 0 else vr(acc(mi, t), 4)
            k.e(f"v_mfma_f32_16x16x32_bf16 {vr(acc(mi,t),4)}, {vr(aslot(ks0+ks,t),4)}, {vr(bbuf(ks % nb,mi),4)}, {c}")
        if after: after(ks)
        if late:
            gate(ks + BD)
            for mi in range(nm): bread(ks + BD, mi, bbuf((ks + BD) % nb, mi))

FS = os.environ.get("FS", "")
A_HL = 73728
A_QK = 92160
QP, QPL = 48, 3968
TSTR = 4 * QPL
A_VP = A_QK + 2*TSTR
VPP, VPL = 80, 6784
A_ST = A_VP + 4*VPL
A_PM, A_PH = A_QK, A_QK + 6144
B_XB = 73728
C_HB = 73728
C_CS = 155648
C_B1 = C_CS + 3072
A_CQ = C_B1 + 2048
C_ST = 147456
A_PQ = A_QK + 12288
C_PM = 98304
A_SCR = A_ST + 640
CNT = 163328
LDS_TOTAL = 163840
CA_ST, CA_DONE, CB_DONE, CC_ST, CC_W1, CC_H0, CC_DONE, CD_DONE, CC_K2, CD_GO, CA_GO, CA_W = 0, 1, 2, 3, 4, 5, 8, 11, 14, 16, 20, 15
S_CL, S_WL, S_EARLY = 60, 61, 57
WSZ = 0x5000000
SXC = MAP["ffn"]

S_W, S_LAY, S_XIN, S_O, S_X1, S_P, S_FL, S_R, S_S, S_RC, S_SC, S_IDX, S_CNT, S_ROT, S_ROT2 = 3, 22, 23, 24, 25, 26, 28, 29, 30, 31, 32, 33, 27, 34, 35
WS = "s[8:11]"
V_L, V_L16, V_G, V_M = 1, 2, 3, 4
AR, EX = 88, 160

def lds_signal(k, slot, vt, byclass=False):
    k.e(f"s_add_u32 s36, s{S_CNT}, {4*slot}")
    if byclass:
        k.e(f"s_lshl_b32 s37, s{S_CL}, 2"); k.e("s_add_u32 s36, s36, s37")
    k.e(f"v_mov_b32 v{vt}, s36"); k.e(f"v_mov_b32 v{vt+1}, 1")
    k.e("s_mov_b64 exec, 1")
    k.lds(f"ds_add_u32 v{vt}, v{vt+1}", "cnt")
    k.e("s_mov_b64 exec, -1")

def lds_wait(k, slot, n, vt, sleep=2, byclass=False):
    lab = k.newlabel("L_lw")
    k.e(f"s_add_u32 s36, s{S_CNT}, {4*slot}")
    if byclass:
        k.e(f"s_lshl_b32 s37, s{S_CL}, 2"); k.e("s_add_u32 s36, s36, s37")
    k.e(f"v_mov_b32 v{vt}, s36")
    k.label(lab)
    k.e(f"ds_read_b32 v{vt+1}, v{vt}")
    k.e("s_waitcnt lgkmcnt(0)"); k.lg = []
    k.e(f"v_readfirstlane_b32 s36, v{vt+1}")
    k.e("s_nop 3")
    k.e(f"s_cmp_ge_u32 s36, {n}"); k.e(f"s_cbranch_scc1 {lab}_ok")
    k.e(f"s_sleep {sleep}")
    k.e(f"s_branch {lab}")
    k.label(f"{lab}_ok")

def publish(k, slot, n, fbase, s_r, s_s, vt, byclass=False):
    lab = k.newlabel("L_pub")
    k.e(f"s_add_u32 s36, s{S_CNT}, {4*slot}")
    k.e(f"s_lshl_b32 s37, s{s_r}, 7"); k.e(f"s_lshl_b32 s38, s{s_s}, 2"); k.e("s_add_u32 s37, s37, s38")
    k.e(f"s_add_u32 s37, s37, s{S_FL}"); k.e(f"s_add_u32 s37, s37, {fbase}")
    if byclass:
        k.e(f"s_lshl_b32 s38, s{S_CL}, 2"); k.e("s_add_u32 s36, s36, s38")
        k.e(f"s_lshl_b32 s38, s{S_CL}, 12"); k.e("s_add_u32 s37, s37, s38")
    k.e("s_waitcnt vmcnt(0)"); k.vm = []
    k.e(f"v_mov_b32 v{vt}, s36"); k.e(f"v_mov_b32 v{vt+1}, 1")
    k.e("s_mov_b64 exec, 1")
    k.e(f"ds_add_rtn_u32 v{vt}, v{vt}, v{vt+1}")
    k.e("s_waitcnt lgkmcnt(0)"); k.lg = []
    k.e(f"v_readfirstlane_b32 s36, v{vt}")
    k.e(f"v_mov_b32 v{vt}, 0")
    k.e("s_nop 2")
    k.e(f"s_cmp_lg_u32 s36, {n-1}"); k.e(f"s_cbranch_scc1 {lab}")
    k.e(f"buffer_store_dword v{vt+1}, v{vt}, {WS}, s37 offen sc1")
    k.label(lab)
    k.e("s_mov_b64 exec, -1")

def poll(k, voff, soff, mask, vt):
    lab = k.newlabel("L_aw")
    k.e(f"s_mov_b64 exec, 0x{mask:x}")
    k.e("s_mov_b32 s38, 0x20000")
    k.label(lab)
    k.e(f"buffer_load_dword v{vt}, v{voff}, {WS}, s{soff} offen sc1")
    k.e("s_waitcnt vmcnt(0)"); k.vm = []
    k.e(f"v_cmp_ne_u32 vcc, 1, v{vt}")
    k.e("s_sub_u32 s38, s38, 1")
    k.e("s_nop 3")
    k.e(f"s_cbranch_vccz {lab}_ok")
    k.e("s_cmp_eq_u32 s38, 0"); k.e(f"s_cbranch_scc1 {lab}_ok")
    k.e(f"s_sleep {ENV('PSLEEP', 1)}")
    k.e(f"s_branch {lab}")
    k.label(f"{lab}_ok")
    k.e("s_mov_b64 exec, -1")

def await_flags(k, fbase, s_r, vt):
    lab = k.newlabel("L_af")
    k.e(f"s_cmp_lg_u32 s{S_W}, {ENV('POLLW', 0)}"); k.e(f"s_cbranch_scc1 {lab}")
    k.e(f"s_lshl_b32 s37, s{s_r}, 7"); k.e(f"s_add_u32 s37, s37, s{S_FL}"); k.e(f"s_add_u32 s37, s37, {fbase}")
    k.e(f"v_lshlrev_b32 v{vt}, 2, v{V_L}")
    sv = k.snapshot()
    poll(k, vt, 37, 0xff, vt+1)
    k.restore(sv)
    k.label(lab)
    k.e("s_barrier")

def poll_one(k, fbase, s_r, s_idx, vt):
    k.e(f"s_lshl_b32 s37, s{s_r}, 7"); k.e(f"s_lshl_b32 s38, s{s_idx}, 2"); k.e("s_add_u32 s37, s37, s38")
    k.e(f"s_add_u32 s37, s37, s{S_FL}"); k.e(f"s_add_u32 s37, s37, {fbase}")
    k.e(f"v_mov_b32 v{vt}, 0")
    poll(k, vt, 37, 1, vt+1)

def stats_acc(k, r4, va, first, sones):
    for j in range(4):
        c0 = "0" if (first and j == 0) else f"v{va}"
        c1 = "0" if (first and j == 0) else f"v{va+1}"
        k.e(f"v_dot2_f32_bf16 v{va}, v{r4+j}, s{sones}, {c0}")
        k.e(f"v_dot2_f32_bf16 v{va+1}, v{r4+j}, v{r4+j}, {c1}")

def stats_combine(k, src, R, vt, dst, halo, NP=12):
    k.e(f"v_lshlrev_b32 v{vt}, 3, v{V_L}"); k.e(f"v_add_u32 v{vt+1}, {src}, v{vt}")
    for p in range(NP): k.e(f"ds_read_b64 {vr(R+2*p,2)}, v{vt+1} offset:{512*p}")
    k.e("s_waitcnt lgkmcnt(0)")
    n = NP
    while n > 1:
        h = n // 2
        for j in range(h):
            k.e(f"v_add_f32 v{R+2*j}, v{R+2*j}, v{R+2*(n-1-j)}"); k.e(f"v_add_f32 v{R+2*j+1}, v{R+2*j+1}, v{R+2*(n-1-j)+1}")
        n -= h
    if halo:
        for op in ("v_permlane32_swap_b32", "v_permlane16_swap_b32"):
            k.e(f"v_mov_b32 v{R+2}, v{R}"); k.e(f"v_mov_b32 v{R+3}, v{R+1}")
            k.e("s_nop 1")
            k.e(f"{op} v{R}, v{R+2}"); k.e(f"{op} v{R+1}, v{R+3}")
            k.e("s_nop 1")
            k.e(f"v_add_f32 v{R}, v{R}, v{R+2}"); k.e(f"v_add_f32 v{R+1}, v{R+1}, v{R+3}")
        k.e(f"v_lshlrev_b32 v{vt}, 3, v{V_M}")
    k.e(f"v_mul_f32 v{R}, {f32(1/576)}, v{R}")
    k.e(f"v_mul_f32 v{R+1}, {f32(1/576)}, v{R+1}")
    k.e(f"v_fma_f32 v{R+1}, -v{R}, v{R}, v{R+1}")
    k.e(f"v_max_f32 v{R+1}, 0, v{R+1}")
    k.e(f"v_add_f32 v{R+1}, {f32(1e-5)}, v{R+1}")
    k.e(f"v_rsq_f32 v{R+2}, v{R+1}")
    k.e(f"v_add_u32 v{vt}, {dst}, v{vt}")
    k.e(f"v_mul_f32 v{R+3}, v{R}, v{R+2}")
    k.e(f"v_sub_f32 v{R+3}, 0, v{R+3}")
    k.e(f"ds_write_b64 v{vt}, {vr(R+2,2)}")
    k.e("s_waitcnt lgkmcnt(0)")

A_TILES = [0, 2, 9, 10, 4, 5, 11, 12, 6, 7, 13, 8]
def a_tile_setup(k):
    tab = sum(t << (4*i) for i, t in enumerate(A_TILES))
    k.e(f"s_mov_b32 s40, 0x{tab & 0xffffffff:x}"); k.e(f"s_mov_b32 s41, 0x{tab >> 32:x}")
    k.e(f"s_lshl_b32 s42, s{S_W}, 2"); k.e("s_lshr_b64 s[40:41], s[40:41], s42"); k.e("s_and_b32 s40, s40, 15")
    k.e(f"s_mul_i32 s41, s{S_S}, 14"); k.e("s_add_u32 s41, s41, s40")
    k.e(f"s_mul_i32 s42, s{S_W}, {2*8*224*4}"); k.e(f"s_mul_i32 s43, s{S_S}, 896"); k.e("s_add_u32 s42, s42, s43"); k.e(f"s_add_u32 s42, s42, 0x{CSQP:x}")
    k.e("s_mul_i32 s41, s41, %d" % (18*1024))
    if WQF: k.e(f"s_add_u32 s41, s41, 0x{WQF:x}")
DA = ENV("DA", 6)
def a_load1(k, i):
    k.e(f"s_add_u32 s43, s41, {i*1024}")
    k.vmem(f"buffer_load_dwordx4 {vr(AR+4*i,4)}, v{V_L16}, {WS}, s43 offen", ("a", i))
def a_load2(k, i):
    k.e(f"s_add_u32 s43, s41, {i*1024}"); k.e(f"s_add_u32 s44, s41, {(18+i)*1024}")
    k.vmem(f"buffer_load_dwordx4 {vr(AR+8*(i%9),4)}, v{V_L16}, {WS}, s43 offen", ("a0", i))
    k.vmem(f"buffer_load_dwordx4 {vr(AR+8*(i%9)+4,4)}, v{V_L16}, {WS}, s44 offen", ("a", i))
def a_prefetch(k, lo1, hi1, lo2, hi2, cs):
    lab = k.newlabel("L_apf")
    sv = k.snapshot()
    if cs:
        k.e(f"s_cmp_lt_u32 s{S_W}, 9"); k.e("s_cselect_b32 s43, 0, 0x70000000"); k.e(f"s_cmp_eq_u32 s{S_LAY}, 0"); k.e("s_cselect_b32 s43, s43, 0x70000000")
        k.e(f"v_or_b32 v6, s43, v{V_L16}")
        k.e(f"s_add_u32 s43, s42, {8*224*4}")
        k.e(f"buffer_load_dwordx4 {vr(EX,4)}, v6, {WS}, s42 offen")
        k.e(f"buffer_load_dwordx4 {vr(EX+4,4)}, v6, {WS}, s43 offen")
    k.e(f"s_cmp_lt_u32 s{S_W}, 2"); k.e(f"s_cbranch_scc1 {lab}_d")
    for i in range(lo1, hi1): a_load1(k, i)
    k.e(f"s_branch {lab}_e")
    k.label(f"{lab}_d")
    for i in range(lo2, hi2): a_load2(k, i)
    k.label(f"{lab}_e")
    k.restore(sv)

def b_setup(k):
    k.e(f"s_min_u32 s59, s{S_W}, 9")
    k.e(f"s_cmp_ge_u32 s59, 5"); k.e("s_cselect_b32 s45, 1, 0"); k.e("s_mul_i32 s46, s45, 5"); k.e(f"s_sub_u32 s46, s59, s46")
    k.e(f"s_mul_i32 s58, s{S_S}, 5"); k.e("s_add_u32 s58, s58, s46"); k.e("s_mul_i32 s58, s58, %d" % (18*1024))
    k.e("s_mul_i32 s59, s45, 9216"); k.e("s_add_u32 s58, s58, s59"); k.e(f"s_add_u32 s58, s58, 0x{WOF:x}")
def b_load(k, i):
    if i and i % 4 == 0: k.e(f"s_add_u32 s58, s58, 4096")
    k.vmem(f"buffer_load_dwordx4 {vr(124+4*i,4)}, v{V_L16}, {WS}, s58 offen offset:{(i%4)*1024}", ("wb", i))

def c_stream_init(k):
    k.e(f"s_mul_i32 s47, s{S_SC}, 12"); k.e(f"s_add_u32 s47, s47, s{S_W}"); k.e("s_mul_i32 s47, s47, %d" % (36*3072)); k.e(f"s_add_u32 s47, s47, 0x{WFF:x}")
    k.e(f"s_mul_i32 s48, s{S_ROT}, 3072"); k.e("s_add_u32 s48, s48, s47")
    k.e("s_add_u32 s49, s47, %d" % (18*3072))
def c_aload(k, i, tg="a"):
    if i >= 18 and (i - 18) % 6 == 0:
        k.e("s_mov_b32 s47, s49"); k.e(f"s_mul_i32 s48, s{S_ROT2}, 3072"); k.e("s_add_u32 s48, s48, s47"); k.e("s_add_u32 s49, s47, %d" % (6*3072))
    slot = i % 6
    for t in range(3):
        k.vmem(f"buffer_load_dwordx4 {vr(AR+12*slot+4*t,4)}, v{V_L16}, {WS}, s48 offen offset:{1024*t}", (tg, i) if t == 2 else (tg + "_", i))
    k.e("s_add_u32 s48, s48, 3072"); k.e("s_cmp_eq_u32 s48, s49"); k.e("s_cselect_b32 s48, s47, s48")

def touch_w(k, swidx, nwaves, t, dummy):
    G = ENV("TGRAN", 128)
    total = SXC * 12 * 36 * 3072 // G
    ni = -(-total // (32 * nwaves * 64))
    ng = 8 // SXC
    k.e(f"s_and_b32 s36, s2, {ng-1}"); k.e(f"s_mul_i32 s36, s36, {SXC*12*36*3072}"); k.e(f"s_add_u32 s36, s36, 0x{WFF:x}")
    k.e("s_lshr_b32 s37, s2, 3"); k.e(f"s_mul_i32 s37, s37, {nwaves}"); k.e(f"s_add_u32 s37, s37, s{swidx}"); k.e(f"s_mul_i32 s37, s37, {ni*64}")
    k.e(f"s_mov_b32 s38, {total}")
    for j in range(ni):
        k.e(f"v_add_u32 v{t}, s37, v{V_L}")
        if j: k.e(f"v_add_u32 v{t}, {64*j}, v{t}")
        k.e(f"v_min_u32 v{t}, s38, v{t}")
        k.e(f"v_lshlrev_b32 v{t}, {G.bit_length()-1}, v{t}")
        k.vmem(f"buffer_load_dword v{dummy}, v{t}, {WS}, s36 offen", "touch")

def phase_A(k):
    k.c("================ phase A")
    ACC, BB = 8, 28
    VB1, VB2, VH = 5, 6, 7
    if FS in ("", "A"): stamp(k, 1)
    k.e(f"s_mul_i32 s39, s{S_R}, {TILEB}"); k.e(f"s_add_u32 s39, s39, s{S_XIN}")
    k.e(f"s_mul_i32 s36, s{S_W}, 6144"); k.e("s_add_u32 s37, s39, s36"); k.e("s_add_u32 s38, s37, 4096")
    k.vm = []
    for i in range(6):
        k.vmem(f"buffer_load_dwordx4 {vr(8+4*i,4)}, v{V_L16}, {WS}, s{37 if i < 4 else 38} offen offset:{(i%4)*1024} sc1", ("x", i))
    k.e(f"v_lshlrev_b32 v{VB1}, 10, v{V_G}"); k.e(f"v_lshl_add_u32 v{VB1}, v{V_M}, 4, v{VB1}")
    k.e(f"s_cmp_eq_u32 s{S_R}, 0"); k.e("s_cselect_b32 s38, 0x70000000, 0")
    k.e(f"v_add_u32 v{VH}, s38, v{VB1}")
    k.e(f"s_mul_i32 s45, s{S_CL}, 6"); k.e(f"s_add_u32 s45, s45, s{S_WL}")
    k.e("s_lshl_b32 s37, s45, 12"); k.e("s_add_u32 s37, s37, s39"); k.e(f"s_sub_u32 s37, s37, {TILEB-768}")
    k.vmem(f"buffer_load_dwordx4 {vr(32,4)}, v{VH}, {WS}, s37 offen sc1", ("x", 6))
    k.e(f"s_cmp_ge_u32 s{S_WL}, 2"); k.e("s_cselect_b32 s38, 0x70000000, 0"); k.e(f"v_or_b32 v{VB2}, s38, v{VH}")
    k.e(f"s_add_u32 s37, s37, {4*4096}")
    k.vmem(f"buffer_load_dwordx4 {vr(36,4)}, v{VB2}, {WS}, s37 offen sc1", ("x", 7))
    a_tile_setup(k)
    PA = ENV("PA", 2)
    k.e(f"s_cmp_eq_u32 s{S_EARLY}, 0"); k.e("s_cbranch_scc1 L_A_late")
    a_prefetch(k, 0, 18, 0, 9, True)
    k.e("s_waitcnt vmcnt(0)")
    k.e("s_barrier")
    k.e("s_branch L_A_st")
    k.label("L_A_late")
    k.e("s_barrier")
    a_prefetch(k, 0, PA, 0, PA//2, True)
    k.label("L_A_st")
    extra = PA + 2
    k.e("s_mov_b32 s38, 0x3f803f80")
    k.e(f"v_add_u32 v{VB2}, s36, v{V_L16}")
    for i in range(8):
        k.e(f"s_waitcnt vmcnt({7-i+extra})")
        if i < 6:
            k.e(f"ds_write_b128 v{VB2}, {vr(8+4*i,4)} offset:{1024*i}")
            stats_acc(k, 8+4*i, 40, i == 0, 38)
        else:
            if i == 6:
                k.e("s_lshl_b32 s37, s45, 10"); k.e(f"s_add_u32 s37, s37, {A_HL}"); k.e(f"v_add_u32 v{VB2}, s37, v{V_L16}")
                k.e(f"ds_write_b128 v{VB2}, {vr(8+4*i,4)}")
            stats_acc(k, 8+4*i, 42, i == 6, 38)
    k.e(f"s_cmp_ge_u32 s{S_WL}, 2"); k.e("s_cbranch_scc1 L_A_xs")
    k.e(f"ds_write_b128 v{VB2}, {vr(36,4)} offset:4096")
    k.label("L_A_xs")
    k.e(f"s_lshl_b32 s37, s{S_W}, 9"); k.e(f"v_lshlrev_b32 v{VB2}, 3, v{V_L}"); k.e(f"v_add_u32 v{VB2}, s37, v{VB2}"); k.e(f"v_add_u32 v{VB2}, {A_PM}, v{VB2}")
    k.e(f"ds_write_b64 v{VB2}, v[40:41]"); k.e(f"ds_write_b64 v{VB2}, v[42:43] offset:6144")
    k.e(f"s_cmp_lg_u32 s{S_LAY}, 0"); k.e("s_cbranch_scc1 L_A_nocq")
    k.e(f"s_waitcnt vmcnt({PA})")
    for j in range(4): k.e(f"v_add_f32 v{EX+j}, v{EX+j}, v{EX+4+j}")
    k.e(f"s_lshl_b32 s37, s{S_W}, 10"); k.e(f"s_add_u32 s37, s37, {A_PQ}"); k.e(f"v_add_u32 v{VB2}, s37, v{V_L16}")
    k.e(f"ds_write_b128 v{VB2}, {vr(EX,4)}")
    k.label("L_A_nocq")
    k.e("s_waitcnt lgkmcnt(0)")
    if FS in ("", "A"): stamp(k, 2)
    k.e("s_barrier")
    k.lg = []
    k.e(f"s_cmp_lt_u32 s{S_W}, 10"); k.e("s_cbranch_scc1 L_A_nocomb")
    k.e(f"s_cmp_eq_u32 s{S_W}, 11"); k.e("s_cbranch_scc1 L_A_combh")
    stats_combine(k, A_PM, 8, VB2, A_ST + 128, False)
    k.e("s_branch L_A_combd")
    k.label("L_A_combh")
    stats_combine(k, A_PH, 8, VB2, A_ST, True)
    k.e(f"s_cmp_lg_u32 s{S_LAY}, 0"); k.e("s_cbranch_scc1 L_A_combd")
    k.e(f"v_add_u32 v{VB2}, {A_PQ}, v{V_L16}")
    for p in range(9): k.e(f"ds_read_b128 {vr(8+4*p,4)}, v{VB2} offset:{1024*p}")
    k.e(f"v_add_u32 v{VB2}, {A_CQ}, v{V_L16}")
    k.e("s_waitcnt lgkmcnt(0)")
    for p in range(1, 9):
        for j in range(4): k.e(f"v_add_f32 v{8+j}, v{8+j}, v{8+4*p+j}")
    k.e(f"ds_write_b128 v{VB2}, v[8:11]")
    k.e("s_waitcnt lgkmcnt(0)")
    k.label("L_A_combd")
    lds_signal(k, CA_ST, 8)
    k.e("s_waitcnt lgkmcnt(0)"); k.lg = []
    k.label("L_A_nocomb")
    b_setup(k)
    c_stream_init(k)
    k.e(f"v_add_u32 v{VB2}, 49152, v{VB1}")
    k.e(f"v_add_u32 v{VH}, {A_HL}, v{V_L16}")
    def mk_bread(mts):
        def bread(ks, mi, reg):
            mt = mts[mi]
            if mt == 0:
                k.lds(f"ds_read_b128 {vr(reg,4)}, v{VH} offset:{ks*1024}", ("b", ks))
            else:
                off = ks*4096 + (mt-1)*256; base = VB1
                if off >= 49152: off -= 49152; base = VB2
                k.lds(f"ds_read_b128 {vr(reg,4)}, v{base} offset:{off}", ("b", ks))
        return bread
    def epilogue(tadd, mts, accf, csr, vpath, T):
        a0, a1, p, H, t, sa = T, T+1, T+2, T+3, T+4, T+5
        ST = T + 6
        k.e(f"v_lshlrev_b32 v{sa}, 3, v{V_M}"); k.e(f"v_add_u32 v{sa}, {A_ST}, v{sa}")
        for mi, mt in enumerate(mts):
            k.lds(f"ds_read_b64 {vr(ST+2*mi,2)}, v{sa} offset:{mt*128}", "str")
        k.e(f"v_lshlrev_b32 v{p}, 2, v{V_G}")
        k.e(f"s_add_u32 s36, s40, {tadd}"); k.e("s_lshl_b32 s36, s36, 4")
        k.e(f"v_add_u32 v{p}, s36, v{p}")
        k.e(f"s_mov_b32 s36, {A_CQ}"); k.e(f"v_lshl_add_u32 v{sa}, v{p}, 2, s36")
        k.lds(f"ds_read_b128 {vr(csr,4)}, v{sa}", "str")
        for a in (a0, a1):
            divmod_const(k, H, None, p, 18, 232, 36)
            if not vpath:
                k.e(f"s_movk_i32 s36, {QPL-36}")
                k.e(f"v_mul_u32_u24 v{a}, s36, v{H}")
                k.e(f"v_lshl_add_u32 v{a}, v{p}, 1, v{a}")
                k.e(f"v_mul_u32_u24 v{t}, {QP}, v{V_M}")
                k.e(f"s_mov_b32 s36, {A_QK}")
            else:
                k.e(f"s_movk_i32 s36, {VPL-72}")
                k.e(f"v_mul_u32_u24 v{a}, s36, v{H}")
                k.e(f"v_lshl_add_u32 v{a}, v{p}, 2, v{a}")
                k.e(f"v_mul_u32_u24 v{t}, 0x{VPP:x}, v{V_M}")
                k.e(f"s_mov_b32 s36, {A_VP - 8*VPL}")
            k.e(f"v_add3_u32 v{a}, v{a}, v{t}, s36")
            if a == a0: k.e(f"v_add_u32 v{p}, 2, v{p}")
        k.wait(lg=["str"])
        for mi, mt in enumerate(mts):
            r = accf(mi)
            for j in range(4):
                k.e(f"v_mul_f32 v{r+j}, v{r+j}, v{ST+2*mi}")
                k.e(f"v_fmac_f32 v{r+j}, v{ST+2*mi+1}, v{csr+j}")
            k.e(f"v_cvt_pk_bf16_f32 v{r}, v{r}, v{r+1}")
            k.e(f"v_cvt_pk_bf16_f32 v{r+2}, v{r+2}, v{r+3}")
            if not vpath:
                k.lds(f"ds_write_b32 v{a0}, v{r} offset:{mt*16*QP}", "qw")
                k.lds(f"ds_write_b32 v{a1}, v{r+2} offset:{mt*16*QP}", "qw")
            else:
                o = mt*16*VPP
                for a, rr in ((a0, r), (a1, r+2)):
                    k.lds(f"ds_write_b16 v{a}, v{rr} offset:{o}", "qw")
                    k.lds(f"ds_write_b16_d16_hi v{a}, v{rr} offset:{o+4}", "qw")
                    k.lds(f"ds_write_b16 v{a}, v{rr} offset:{o+2*VPP+2}", "qw")
                    k.lds(f"ds_write_b16_d16_hi v{a}, v{rr} offset:{o+2*VPP+6}", "qw")
    k.e(f"s_cmp_lt_u32 s{S_W}, 2"); k.e("s_cbranch_scc1 L_A_dbl")
    k.vm = ["cs", "cs"] + [("a", i) for i in range(PA)]
    mts = [0, 1, 2, 3, 4]
    PF = ENV("PF", 0)
    def late(fn):
        lab = k.newlabel("L_lt")
        k.e(f"s_cmp_lg_u32 s{S_EARLY}, 0"); k.e(f"s_cbranch_scc1 {lab}")
        fn()
        k.label(lab)
    def pre1():
        late(lambda: [a_load1(k, i) for i in range(PA, DA)])
    def after1(ks):
        if ks + DA < 18: late(lambda: a_load1(k, ks + DA))
        CK = [int(x) for x in os.environ.get("CK", "2,5,8").split(",")]
        if PF:
            if ks + DA == 17: lds_signal(k, CA_W, EX)
            return
        if ks in CK: c_aload(k, CK.index(ks), "c")
        if ks >= 9: b_load(k, ks - 9)
    gemm_loop(k, 18, [(mi, 0) for mi in range(5)], lambda mi, t: ACC + 4*mi, lambda par, mi: BB + 20*par + 4*mi,
              lambda i_, t: AR + 4*i_, mk_bread(mts), 0, 5, after1, pre1, BD=2)
    lds_wait(k, CA_ST, 2, 28)
    sv = k.snapshot()
    k.e("s_cmp_ge_u32 s40, 9"); k.e("s_cbranch_scc1 L_A_vp")
    epilogue(0, mts, lambda mi: ACC + 4*mi, EX, False, 28)
    k.e("s_branch L_A_att")
    k.label("L_A_vp")
    k.restore(sv)
    k.e("s_cmp_eq_u32 s40, 13"); k.e("s_cselect_b32 exec_hi, 0, -1")
    epilogue(0, mts, lambda mi: ACC + 4*mi, EX, True, 28)
    k.e("s_mov_b64 exec, -1")
    k.e("s_branch L_A_att")
    k.label("L_A_dbl")
    k.lg = []
    k.vm = ["cs", "cs"] + [x for i in range(PA//2) for x in (("a0", i), ("a", i))]
    mts2 = [1, 2, 3, 4]
    def pre2():
        late(lambda: [a_load2(k, i) for i in range(PA//2, 9)])
    def after2(ks):
        i = ks + 9
        if i < 18:
            a_load2(k, i)
            if PF and i == 17: lds_signal(k, CA_W, EX)
        elif not PF:
            free = 8*(ks - 8)
            while st2["c"] < 3 and 12*(st2["c"]+1) <= free:
                c_aload(k, st2["c"], "c"); st2["c"] += 1
            while st2["b"] < 9 and 36 + 4*(st2["b"]+1) <= free:
                b_load(k, st2["b"]); st2["b"] += 1
    st2 = dict(c=0, b=0)
    gemm_loop(k, 18, [(mi, t) for t in range(2) for mi in range(4)], lambda mi, t: 8 + 16*t + 4*mi, lambda par, mi: 40 + 16*par + 4*mi,
              lambda i_, t: AR + 8*(i_ % 9) + 4*t, mk_bread(mts2), 0, 4, after2, pre2, BD=2)
    assert PF or st2 == dict(c=3, b=9)
    lds_wait(k, CA_ST, 2, 40)
    epilogue(0, mts2, lambda mi: 8 + 4*mi, EX, False, 40)
    epilogue(1, mts2, lambda mi: 24 + 4*mi, EX+4, False, 40)
    k.label("L_A_att")
    k.vm = []; k.lg = []
    k.e("s_waitcnt lgkmcnt(0)")
    if FS in ("", "A"): stamp(k, 3)
    def nextpf(skipb=False):
        if skipb:
            lab = k.newlabel("L_nb")
            k.e(f"s_cmp_ge_u32 s{S_W}, 10"); k.e(f"s_cbranch_scc1 {lab}")
        for i in range(9): b_load(k, i)
        if skipb: k.label(lab)
        for i in range(3): c_aload(k, i, "c")
        k.vm = []
    if PF:
        k.e(f"s_cmp_ge_u32 s{S_W}, 8"); k.e("s_cbranch_scc1 L_A_pf2")
        lds_wait(k, CA_W, 12, 8)
        nextpf()
        k.label("L_A_pf2")
    k.e("s_barrier")
    if FS == "A": stamp(k, 4)
    k.e(f"s_cmp_ge_u32 s{S_W}, 8"); k.e("s_cbranch_scc1 L_A_cs")
    VI, VHH, VQ, VK, VV = 5, 6, 7, 86, 87
    Q, KK, VP_, OA, PP, T0 = 8, 20, 20, 68, EX, EX+4
    VHD = EX+6
    k.e(f"s_lshl_b32 s41, s{S_W}, 3")
    k.e(f"v_and_b32 v{VI}, 7, v{V_L}"); k.e(f"v_add_u32 v{VI}, s41, v{VI}")
    k.e(f"v_lshrrev_b32 v{VHH}, 5, v{V_L}")
    k.e(f"v_bfe_u32 v{VHD}, v{V_L}, 3, 2")
    k.e(f"v_mul_u32_u24 v{VQ}, {QP}, v{VI}")
    k.e(f"v_mul_u32_u24 v{VK}, 0x{QPL:x}, v{VHD}")
    k.e(f"s_mov_b32 s36, {A_QK + 16*QP}")
    k.e(f"v_add3_u32 v{VQ}, v{VQ}, v{VK}, s36")
    k.e(f"v_mul_u32_u24 v{VK}, 0x{8*QP:x}, v{VHH}"); k.e(f"v_sub_u32 v{VK}, v{VQ}, v{VK}")
    k.e(f"v_lshlrev_b32 v{T0}, 3, v{VHH}"); k.e(f"v_sub_u32 v{T0}, v{VI}, v{T0}")
    k.e(f"v_add_u32 v{VV}, 12, v{T0}"); k.e(f"v_mul_u32_u24 v{VV}, 0x{VPP:x}, v{VV}")
    k.e(f"v_mul_u32_u24 v{T0+1}, 0x{VPL:x}, v{VHD}"); k.e(f"s_mov_b32 s36, {A_VP}"); k.e(f"v_add3_u32 v{VV}, v{VV}, v{T0+1}, s36")
    def rdvec(reg, va, off, tag):
        k.lds(f"ds_read_b128 {vr(reg,4)}, v{va} offset:{off}", tag)
        k.lds(f"ds_read_b128 {vr(reg+4,4)}, v{va} offset:{off+16}", tag)
        k.lds(f"ds_read_b128 {vr(reg+8,4)}, v{va} offset:{off+32}", tag)
    rdvec(Q, VQ, 0, "q")
    for j in range(4): rdvec(KK + 12*j, VK, TSTR - 2*j*QP, ("k", j))
    k.e(f"s_lshl_b32 s36, s{S_R}, 6"); k.e(f"v_add_u32 v{T0}, s36, v{T0}")
    for j in range(4):
        k.e(f"v_cmp_le_i32 s[{50+2*j}:{51+2*j}], {2*j}, v{T0}")
    k.wait(lg=["q", ("k", 1)])
    for jj in range(9):
        for j in range(2):
            c = "0" if jj == 0 else f"v{PP+j}"
            k.e(f"v_dot2_f32_bf16 v{PP+j}, v{Q+jj}, v{KK+12*j+jj}, {c}")
    def rdvp(pr):
        off = (4*VPP if pr == 0 else 0)
        for q4 in range(5):
            k.lds(f"ds_read_b128 {vr(VP_+24*pr+4*q4,4)}, v{VV} offset:{off+16*q4}", ("v", pr))
    rdvp(0)
    k.wait(lg=[("k", 3)])
    for jj in range(9):
        for j in range(2, 4):
            c = "0" if jj == 0 else f"v{PP+j}"
            k.e(f"v_dot2_f32_bf16 v{PP+j}, v{Q+jj}, v{KK+12*j+jj}, {c}")
    rdvp(1)
    sc = (18 ** -0.5) * math.log2(math.e)
    k.e(f"v_mov_b32 v{T0}, {f32(-1e30)}")
    k.e("s_nop 1")
    for j in range(4): k.e(f"v_mul_f32 v{PP+j}, {f32(sc)}, v{PP+j}")
    for j in range(4): k.e(f"v_cndmask_b32 v{PP+j}, v{T0}, v{PP+j}, s[{50+2*j}:{51+2*j}]")
    k.e(f"v_max3_f32 v{T0}, v{PP}, v{PP+1}, v{PP+2}")
    k.e(f"v_max_f32 v{T0}, v{T0}, v{PP+3}")
    k.e(f"v_mov_b32 v{T0+1}, v{T0}")
    k.e("s_nop 1")
    k.e(f"v_permlane32_swap_b32 v{T0}, v{T0+1}")
    k.e("s_nop 1")
    k.e(f"v_max_f32 v{T0}, v{T0}, v{T0+1}")
    for j in range(4): k.e(f"v_sub_f32 v{PP+j}, v{PP+j}, v{T0}")
    for j in range(4): k.e(f"v_exp_f32 v{PP+j}, v{PP+j}")
    k.e("s_nop 0")
    k.e(f"v_cvt_pk_bf16_f32 v{PP}, v{PP}, v{PP+1}")
    k.e(f"v_cvt_pk_bf16_f32 v{PP+2}, v{PP+2}, v{PP+3}")
    k.e("s_mov_b32 s36, 0x3f803f80")
    k.e(f"v_dot2_f32_bf16 v{T0}, v{PP}, s36, 0")
    k.e(f"v_dot2_f32_bf16 v{T0}, v{PP+2}, s36, v{T0}")
    k.wait(lg=[("v", 0)])
    for d in range(18): k.e(f"v_dot2_f32_bf16 v{OA+d}, v{VP_+d}, v{PP}, 0")
    k.e(f"v_mov_b32 v{T0+1}, v{T0}")
    k.wait(lg=[("v", 1)])
    for d in range(18): k.e(f"v_dot2_f32_bf16 v{OA+d}, v{VP_+24+d}, v{PP+2}, v{OA+d}")
    k.e(f"v_permlane32_swap_b32 v{T0}, v{T0+1}")
    k.e("s_nop 1")
    k.e(f"v_add_f32 v{T0}, v{T0}, v{T0+1}")
    k.e(f"v_rcp_f32 v{T0}, v{T0}")
    pairs = [(d, d+8) for d in range(8)] + [(16, 17)]
    for a, b_ in pairs: k.e(f"v_permlane32_swap_b32 v{OA+a}, v{OA+b_}")
    k.e("s_nop 1")
    for a, b_ in pairs: k.e(f"v_add_f32 v{OA+a}, v{OA+a}, v{OA+b_}")
    for a, b_ in pairs: k.e(f"v_mul_f32 v{OA+a}, v{OA+a}, v{T0}")
    k.e(f"v_cvt_pk_bf16_f32 v{Q+4}, v{OA+16}, v{OA+16}")
    k.e(f"v_lshlrev_b32 v{VI}, 4, v{VI}")
    k.e(f"v_lshl_add_u32 v{VHD}, v{VHD}, 1, v{VHH}")
    k.e(f"v_lshl_add_u32 v{VK}, v{VHD}, 1, v{VI}"); k.e(f"v_add_u32 v{VK}, {A_SCR}, v{VK}")
    k.e(f"ds_write_b16 v{VK}, v{Q+4}")
    k.e(f"v_add_u32 v{VV}, {A_SCR}, v{VI}")
    for j in range(4): k.e(f"v_cvt_pk_bf16_f32 v{Q+j}, v{OA+2*j}, v{OA+2*j+1}")
    k.e("s_waitcnt lgkmcnt(0)")
    k.e(f"ds_read_b128 {vr(Q+4,4)}, v{VV}")
    k.e(f"v_lshl_add_u32 v{VQ}, v{VHD}, 10, v{VI}")
    k.e(f"s_mul_i32 s36, s{S_S}, 9216"); k.e(f"s_mul_i32 s37, s{S_R}, {TILEB}"); k.e("s_add_u32 s36, s36, s37"); k.e(f"s_add_u32 s36, s36, s{S_O}")
    k.e("s_add_u32 s38, s36, 8192")
    if FS == "A": stamp(k, 5)
    k.e(f"buffer_store_dwordx4 {vr(Q,4)}, v{VQ}, {WS}, s36 offen sc1")
    k.e("s_mov_b64 exec, 0xff")
    k.e("s_waitcnt lgkmcnt(0)")
    k.e(f"buffer_store_dwordx4 {vr(Q+4,4)}, v{VI}, {WS}, s38 offen sc1")
    k.e("s_mov_b64 exec, -1")
    publish(k, CA_DONE, 8, F_A, S_R, S_S, 20)
    if FS == "A": stamp(k, 6)
    k.e("s_branch L_A_end")
    k.label("L_A_cs")
    if PF: nextpf(True)
    k.e(f"s_cmp_lg_u32 s{S_LAY}, 0"); k.e("s_cbranch_scc1 L_A_end")
    k.e(f"s_cmp_eq_u32 s{S_WL}, 3"); k.e("s_cbranch_scc1 L_A_b1")
    k.e(f"s_mul_i32 s36, s{S_SC}, 2304"); k.e(f"s_lshl_b32 s37, s{S_WL}, 10"); k.e("s_add_u32 s36, s36, s37"); k.e(f"s_add_u32 s36, s36, 0x{CSP:x}")
    for i in range(18):
        k.e(f"buffer_load_dwordx4 {vr(8+4*i,4)}, v{V_L16}, {WS}, s36 offen")
        if i < 17: k.e(f"s_add_u32 s36, s36, {4608*4}")
    k.e(f"s_add_u32 s37, s37, {C_CS}"); k.e(f"v_add_u32 v5, s37, v{V_L16}")
    k.e("s_waitcnt vmcnt(0)")
    for i in range(17):
        for j in range(4): k.e(f"v_add_f32 v{76+j}, v{76+j}, v{8+4*i+j}")
    k.e("ds_write_b128 v5, v[76:79]")
    k.e("s_waitcnt lgkmcnt(0)")
    k.e("s_branch L_A_end")
    k.label("L_A_b1")
    k.e(f"s_mul_i32 s38, s{S_SC}, 1152"); k.e(f"s_mov_b32 m0, {C_B1}"); k.e("s_nop 0")
    k.e(f"buffer_load_dwordx4 v{V_L16}, s[12:15], s38 offen lds")
    k.e(f"buffer_load_dwordx4 v{V_L16}, s[12:15], s38 offen offset:1024 lds")
    k.e("s_waitcnt vmcnt(0)")
    k.label("L_A_end")

def phase_B(k):
    k.c("================ phase B")
    VB1, VB2, VR_ = 5, 6, 7
    ACC, BB, RX, WB = 8, 24, 72, 124
    k.vm = []; k.lg = []
    k.e(f"s_mul_i32 s39, s{S_R}, {TILEB}")
    k.e(f"s_cmp_ge_u32 s{S_W}, 5"); k.e("s_cselect_b32 s45, 1, 0"); k.e("s_mul_i32 s46, s45, 5"); k.e(f"s_sub_u32 s46, s{S_W}, s46")
    k.e(f"v_lshrrev_b32 v{VR_}, 1, v{V_G}"); k.e(f"v_lshlrev_b32 v{VR_}, 10, v{VR_}")
    k.e(f"v_and_b32 v{VB2}, 31, v{V_L}"); k.e(f"v_lshl_add_u32 v{VR_}, v{VB2}, 4, v{VR_}")
    k.e(f"s_mul_i32 s40, s{S_S}, 9216"); k.e("s_add_u32 s40, s40, s39"); k.e("s_lshl_b32 s41, s46, 11"); k.e("s_add_u32 s40, s40, s41")
    k.e("s_lshl_b32 s41, s45, 9"); k.e("s_add_u32 s40, s40, s41")
    k.e("s_cmp_eq_u32 s46, 4"); k.e("s_cselect_b32 s41, 2, 4"); k.e("s_cmp_gt_u32 s46, 4"); k.e("s_cselect_b32 s41, 0, s41")
    k.e(f"v_cmp_gt_u32 vcc, s41, v{V_G}")
    k.e(f"v_mov_b32 v{VB2}, 0x70000000")
    k.e(f"s_add_u32 s41, s40, s{S_XIN}")
    k.e(f"v_cndmask_b32 v{VR_}, v{VB2}, v{VR_}, vcc")
    k.vmem(f"buffer_load_dwordx4 {vr(RX,4)}, v{VR_}, {WS}, s41 offen sc1", "r")
    NP1 = 3
    await_flags(k, F_A, S_R, 8)
    if FS in ("", "A", "B"): stamp(k, {"A": 7, "B": 1}.get(FS, 4))
    k.e(f"s_mul_i32 s36, s{S_W}, 6144"); k.e("s_add_u32 s37, s39, s36"); k.e(f"s_add_u32 s37, s37, s{S_O}")
    for i in range(6):
        if i % 4 == 0:
            k.e(f"s_add_u32 m0, s36, {1024*i}")
            k.e("s_nop 0") if i == 0 else k.e("s_add_u32 s37, s37, 4096")
        k.vmem(f"buffer_load_dwordx4 v{V_L16}, {WS}, s37 offen offset:{(i%4)*1024} sc1 lds", "o")
    k.e(f"v_lshlrev_b32 v{VB1}, 10, v{V_G}"); k.e(f"v_lshl_add_u32 v{VB1}, v{V_M}, 4, v{VB1}")
    k.e("s_mul_i32 s41, s45, %d" % (9*4096)); k.e(f"v_add_u32 v{VB1}, s41, v{VB1}")
    k.e("s_lshl_b32 s41, s45, 9"); k.e("s_xor_b32 s42, s41, 512")
    k.e(f"v_add_u32 v{VB2}, s42, v{VB1}"); k.e(f"v_add_u32 v{VB1}, s41, v{VB1}")
    k.wait(vm0=True)
    if FS == "B": stamp(k, 2)
    k.e("s_barrier")
    if FS == "B": stamp(k, 3)
    vm_keep = list(k.vm)
    k.e(f"s_cmp_ge_u32 s{S_W}, 10"); k.e("s_cbranch_scc1 L_B_idle")
    def bread(ks, mi, reg):
        k.lds(f"ds_read_b128 {vr(reg,4)}, v{VB1 if mi < 2 else VB2} offset:{ks*4096 + (mi&1)*256}", ("b", ks))
    gemm_loop(k, 9, [(2, 0), (3, 0), (0, 0), (1, 0)], lambda mi, t: ACC + 4*mi, lambda par, mi: BB + 16*par + 4*mi, lambda i_, t: WB + 4*i_,
              bread, 0, 4, None, None, BD=2, atag=lambda ks: "none")
    k.e(f"s_lshl_b32 s41, s{S_W}, 11"); k.e(f"s_add_u32 s41, s41, {B_XB}"); k.e(f"v_add_u32 v{VB1}, s41, v{V_L16}")
    k.e(f"s_add_u32 s42, s{S_W}, 5"); k.e(f"s_sub_u32 s43, s{S_W}, 5"); k.e(f"s_cmp_ge_u32 s{S_W}, 5"); k.e("s_cselect_b32 s42, s43, s42")
    k.e("s_lshl_b32 s42, s42, 11"); k.e(f"s_add_u32 s42, s42, {B_XB}"); k.e(f"v_add_u32 v{VB2}, s42, v{V_L16}")
    k.e("s_nop 0")
    if FS == "B": stamp(k, 4)
    k.e(f"ds_write_b128 v{VB1}, {vr(ACC+8,4)}"); k.e(f"ds_write_b128 v{VB1}, {vr(ACC+12,4)} offset:1024")
    k.e("s_waitcnt lgkmcnt(0)")
    k.e("s_barrier")
    k.e(f"ds_read_b128 {vr(ACC+8,4)}, v{VB2}"); k.e(f"ds_read_b128 {vr(ACC+12,4)}, v{VB2} offset:1024")
    k.e(f"s_add_u32 s41, s40, s{S_X1}")
    k.e("s_waitcnt lgkmcnt(0)")
    for j in range(8): k.e(f"v_add_f32 v{ACC+j}, v{ACC+j}, v{ACC+8+j}")
    k.e("s_nop 1")
    for j in range(4): k.e(f"v_permlane16_swap_b32 v{ACC+j}, v{ACC+4+j}")
    k.e("s_nop 1")
    for j in range(4):
        k.e(f"v_lshlrev_b32 v{BB}, 16, v{RX+j}"); k.e(f"v_and_b32 v{BB+1}, 0xffff0000, v{RX+j}")
        k.e(f"v_add_f32 v{ACC+2*j}, v{ACC+2*j}, v{BB}"); k.e(f"v_add_f32 v{ACC+2*j+1}, v{ACC+2*j+1}, v{BB+1}")
        k.e(f"v_cvt_pk_bf16_f32 v{RX+j}, v{ACC+2*j}, v{ACC+2*j+1}")
    if FS == "B": stamp(k, 5)
    k.e(f"buffer_store_dwordx4 {vr(RX,4)}, v{VR_}, {WS}, s41 offen sc1")
    publish(k, CB_DONE, 10, F_B, S_R, S_S, 24)
    if FS == "B": stamp(k, 6)
    k.e("s_branch L_B_end")
    k.label("L_B_idle")
    k.e("s_barrier")
    k.label("L_B_end")
    k.vm = vm_keep; k.lg = []
    NP2 = ENV("NP2", 3)
    for i in range(NP1, NP2): c_aload(k, i)
    return NP2

def phase_C(k, npre):
    k.c("================ phase C")
    VB1, VB2, VT = 5, 6, 7
    ACC, BB = 8, 56
    D = 6
    k.e(f"s_mul_i32 s39, s{S_RC}, {TILEB}")
    await_flags(k, F_B, S_RC, 8)
    if FS in ("", "B", "C"): stamp(k, {"B": 7, "C": 1}.get(FS, 5))
    k.e(f"s_mul_i32 s36, s{S_W}, 6144"); k.e("s_add_u32 s37, s36, s39"); k.e(f"s_add_u32 s37, s37, s{S_X1}")
    for i in range(6):
        if i and i % 4 == 0: k.e("s_add_u32 s37, s37, 4096")
        k.e(f"buffer_load_dwordx4 {vr(8+4*i,4)}, v{V_L16}, {WS}, s37 offen offset:{(i%4)*1024} sc1")
    k.e(f"s_lshl_b32 s37, s{S_ROT}, 12"); k.e("s_sub_u32 s36, s36, s37"); k.e(f"s_add_u32 s36, s36, {TILEB}")
    k.e("s_mov_b32 s38, 0x3f803f80")
    for i in range(6):
        k.e(f"s_sub_u32 s37, s36, {TILEB}"); k.e(f"s_cmp_ge_u32 s36, {TILEB}"); k.e("s_cselect_b32 s36, s37, s36")
        k.e(f"v_add_u32 v{VB2}, s36, v{V_L16}")
        k.e(f"s_waitcnt vmcnt({5-i})")
        k.e(f"ds_write_b128 v{VB2}, {vr(8+4*i,4)}")
        stats_acc(k, 8+4*i, 44, i == 0, 38)
        k.e("s_add_u32 s36, s36, 1024")
    k.e(f"s_lshl_b32 s37, s{S_W}, 9"); k.e(f"v_lshlrev_b32 v{VB2}, 3, v{V_L}"); k.e(f"v_add_u32 v{VB2}, s37, v{VB2}"); k.e(f"v_add_u32 v{VB2}, {C_PM}, v{VB2}")
    k.e(f"ds_write_b64 v{VB2}, v[44:45]")
    k.label("L_C_s4")
    k.vm = []
    k.e(f"v_lshlrev_b32 v{VB1}, 10, v{V_G}"); k.e(f"v_lshl_add_u32 v{VB1}, v{V_M}, 4, v{VB1}")
    k.e("s_waitcnt lgkmcnt(0)")
    k.e("s_barrier")
    if FS in ("", "C"): stamp(k, {"C": 2}.get(FS, 6))
    k.lg = []
    k.e(f"s_cmp_lg_u32 s{S_W}, 11"); k.e("s_cbranch_scc1 L_C_nocomb")
    stats_combine(k, C_PM, 8, VB2, C_ST, False, 12)
    lds_signal(k, CC_ST, 8)
    k.e("s_waitcnt lgkmcnt(0)"); k.lg = []
    k.label("L_C_nocomb")
    k.e(f"v_add_u32 v{VB2}, 49152, v{VB1}")
    def bread1(ks, mi, reg):
        off = ks*4096 + mi*256; base = VB1
        if off >= 49152: off -= 49152; base = VB2
        k.lds(f"ds_read_b128 {vr(reg,4)}, v{base} offset:{off}", ("b", ks))
    accf = lambda mi, t: ACC + 12*mi + 4*t
    bbf = lambda par, mi: BB + 16*par + 4*mi
    asf = lambda i_, t: AR + 12*(i_ % D) + 4*t
    order = [(mi, t) for mi in range(4) for t in range(3)]
    DEFER = ENV("DEFER", 2)
    state = dict(n=npre)
    lim1 = ENV("LIM1", 18) if DEFER else 24
    def after1(ks):
        tgt = min(ks + 1 + D, lim1, state["n"] + 2)
        while state["n"] < tgt:
            c_aload(k, state["n"]); state["n"] += 1
            if DEFER == 1 and state["n"] == 18: lds_signal(k, CC_W1, EX)
    k.e(f"s_setprio {ENV('P1PRIO', 2)}")
    gemm_loop(k, 18, order, accf, bbf, asf, bread1, 0, 4, after1)
    k.e(f"s_setprio {ENV('GPRIO', 3)}")
    if FS == "C": stamp(k, 3)
    DEFN = ENV('DEFN', 12)
    sv2 = k.snapshot()
    def w2_check(final=False, first=False):
        if DEFER != 1: return
        lab = k.newlabel("L_w2")
        if not first:
            k.e("s_cmp_lg_u32 s56, 0"); k.e(f"s_cbranch_scc1 {lab}")
        else:
            k.e("s_mov_b32 s56, 0")
        k.e(f"s_add_u32 s36, s{S_CNT}, {4*CC_W1}")
        k.label(lab + "_p")
        k.e(f"v_mov_b32 v0, s36")
        k.e(f"ds_read_b32 v0, v0")
        k.e("s_waitcnt lgkmcnt(0)"); k.lg = []
        k.e(f"v_readfirstlane_b32 s37, v0")
        k.e("s_nop 3")
        k.e(f"s_cmp_ge_u32 s37, {DEFN}"); k.e(f"s_cbranch_scc1 {lab}_go")
        if final:
            k.e("s_sleep 4"); k.e(f"s_branch {lab}_p")
        else:
            k.e(f"s_branch {lab}")
        k.label(lab + "_go")
        k.vm = list(sv2[0])
        for i in range(18, 24): c_aload(k, i)
        k.e("s_mov_b32 s56, 1")
        k.label(lab)
    w2_check(first=True)
    lds_wait(k, CC_ST, 1, EX)
    CSR, B1R, T, STR = BB, BB+12, BB+24, EX
    k.e(f"s_lshr_b32 s40, s{S_W}, 1"); k.e(f"s_and_b32 s41, s{S_W}, 1"); k.e("s_mul_i32 s40, s40, 96")
    k.e("s_lshl_b32 s42, s41, 5"); k.e("s_add_u32 s42, s42, s40")
    k.e("s_lshl_b32 s43, s41, 4"); k.e("s_add_u32 s43, s43, s40"); k.e("s_add_u32 s43, s43, 64")
    k.e(f"v_lshlrev_b32 v{VB1}, 3, v{V_G}"); k.e(f"v_add_u32 v{VB1}, s42, v{VB1}")
    k.e(f"v_lshlrev_b32 v{VB2}, 2, v{V_G}"); k.e(f"v_add_u32 v{VB2}, s43, v{VB2}")
    k.e(f"s_mov_b32 s40, {C_CS}"); k.e(f"s_mov_b32 s41, {C_B1}")
    k.e(f"v_lshl_add_u32 v{VT}, v{VB1}, 2, s40")
    for j in range(2): k.lds(f"ds_read_b128 {vr(CSR+4*j,4)}, v{VT} offset:{16*j}", "cs")
    k.e(f"v_lshl_add_u32 v{VT}, v{VB2}, 2, s40")
    k.lds(f"ds_read_b128 {vr(CSR+8,4)}, v{VT}", "cs")
    k.e(f"v_lshl_add_u32 v{VT}, v{VB1}, 1, s41")
    k.lds(f"ds_read_b128 {vr(T,4)}, v{VT}", "cs")
    k.e(f"v_lshl_add_u32 v{VT}, v{VB2}, 1, s41")
    k.lds(f"ds_read_b64 {vr(T+4,2)}, v{VT}", "cs")
    k.e(f"v_lshlrev_b32 v{VB1}, 3, v{V_M}"); k.e(f"v_add_u32 v{VB1}, {C_ST}, v{VB1}")
    for mi in range(4): k.lds(f"ds_read_b64 {vr(STR+2*mi,2)}, v{VB1} offset:{128*mi}", "cs")
    k.e(f"s_bfe_u32 s40, s{S_W}, 0x10001"); k.e(f"s_and_b32 s41, s{S_W}, 1"); k.e("s_mul_i32 s40, s40, 3")
    k.e(f"s_sub_u32 s40, s40, s{S_ROT2}"); k.e("s_add_u32 s40, s40, 6")
    k.e(f"s_lshr_b32 s55, s{S_W}, 2"); k.e("s_mul_i32 s54, s55, 6")
    k.e("s_add_u32 s42, s40, s41"); k.e("s_sub_u32 s44, s42, 6"); k.e("s_cmp_ge_u32 s42, 6"); k.e("s_cselect_b32 s42, s44, s42")
    k.e("s_add_u32 s42, s42, s54"); k.e("s_lshl_b32 s42, s42, 12"); k.e(f"s_add_u32 s42, s42, {C_HB}")
    k.e("s_add_u32 s43, s40, 2"); k.e("s_sub_u32 s44, s43, 6"); k.e("s_cmp_ge_u32 s43, 6"); k.e("s_cselect_b32 s43, s44, s43")
    k.e("s_add_u32 s43, s43, s54"); k.e("s_lshl_b32 s43, s43, 12"); k.e("s_lshl_b32 s41, s41, 3"); k.e("s_add_u32 s43, s43, s41"); k.e(f"s_add_u32 s43, s43, {C_HB}")
    k.e(f"v_add_u32 v{VB1}, s42, v{V_L16}"); k.e(f"v_add_u32 v{VB2}, s43, v{V_L16}")
    c0 = -2.0 * math.sqrt(2.0/math.pi) * math.log2(math.e)
    c1 = c0 * 0.044715
    k.e(f"s_mov_b32 s44, {f32(c1)}"); k.e(f"v_mov_b32 v{VT}, {f32(c0)}")
    k.wait(lg=["cs"])
    for j in range(6):
        k.e(f"v_lshlrev_b32 v{B1R+2*j}, 16, v{T+j}"); k.e(f"v_and_b32 v{B1R+2*j+1}, 0xffff0000, v{T+j}")
    PK = ENV("PK", 0)
    if PK:
        k.e(f"s_mov_b32 s45, {f32(c1)}"); k.e(f"s_mov_b32 s50, {f32(c0)}"); k.e(f"s_mov_b32 s51, {f32(c0)}")
    for mi in range(4):
        a = accf(mi, 0)
        for (j0, n) in ((0, 8), (8, 4)):
            js = range(j0, j0+n)
            if ENV("NOGELU", 0) == 1:
                for j in js: k.e(f"v_mul_f32 v{T+j-j0}, v{a+j}, v{STR+2*mi}")
            elif ENV("NOGELU", 0) == 2:
                for j in js: k.e(f"v_fma_f32 v{T+j-j0}, v{STR+2*mi+1}, v{CSR+j}, v{B1R+j}")
                for j in js: k.e(f"v_fma_f32 v{a+j}, v{a+j}, v{STR+2*mi}, v{T+j-j0}")
                for j in js: k.e(f"v_mul_f32 v{T+j-j0}, v{a+j}, v{a+j}")
                for j in js: k.e(f"v_fma_f32 v{T+j-j0}, v{T+j-j0}, s44, v{VT}")
                for j in js: k.e(f"v_mul_f32 v{T+j-j0}, v{T+j-j0}, v{a+j}")
                for j in js: k.e(f"v_add_f32 v{T+j-j0}, 1.0, v{T+j-j0}")
                for j in js: k.e(f"v_mul_f32 v{T+j-j0}, 0.5, v{a+j}")
            elif not PK:
                for j in js: k.e(f"v_fma_f32 v{T+j-j0}, v{STR+2*mi+1}, v{CSR+j}, v{B1R+j}")
                for j in js: k.e(f"v_fma_f32 v{a+j}, v{a+j}, v{STR+2*mi}, v{T+j-j0}")
                for j in js: k.e(f"v_mul_f32 v{T+j-j0}, v{a+j}, v{a+j}")
                for j in js: k.e(f"v_fma_f32 v{T+j-j0}, v{T+j-j0}, s44, v{VT}")
                for j in js: k.e(f"v_mul_f32 v{T+j-j0}, v{T+j-j0}, v{a+j}")
                for j in js: k.e(f"v_exp_f32 v{T+j-j0}, v{T+j-j0}")
                for j in js: k.e(f"v_add_f32 v{T+j-j0}, 1.0, v{T+j-j0}")
                for j in js: k.e(f"v_rcp_f32 v{T+j-j0}, v{T+j-j0}")
                for j in js: k.e(f"v_mul_f32 v{T+j-j0}, v{T+j-j0}, v{a+j}")
            else:
                jp = range(j0, j0+n, 2)
                P = lambda r: vr(r, 2)
                st = P(STR+2*mi)
                for j in jp: k.e(f"v_pk_fma_f32 {P(T+j-j0)}, {st}, {P(CSR+j)}, {P(B1R+j)} op_sel:[1,0,0] op_sel_hi:[1,1,1]")
                for j in jp: k.e(f"v_pk_fma_f32 {P(a+j)}, {P(a+j)}, {st}, {P(T+j-j0)} op_sel:[0,0,0] op_sel_hi:[1,0,1]")
                for j in jp: k.e(f"v_pk_mul_f32 {P(T+j-j0)}, {P(a+j)}, s[44:45]")
                for j in jp: k.e(f"v_pk_fma_f32 {P(T+j-j0)}, {P(T+j-j0)}, {P(a+j)}, s[50:51]")
                for j in jp: k.e(f"v_pk_mul_f32 {P(T+j-j0)}, {P(T+j-j0)}, {P(a+j)}")
                for j in js: k.e(f"v_exp_f32 v{T+j-j0}, v{T+j-j0}")
                for j in jp: k.e(f"v_pk_add_f32 {P(T+j-j0)}, {P(T+j-j0)}, 1.0 op_sel_hi:[1,0]")
                for j in js: k.e(f"v_rcp_f32 v{T+j-j0}, v{T+j-j0}")
                for j in jp: k.e(f"v_pk_mul_f32 {P(T+j-j0)}, {P(T+j-j0)}, {P(a+j)}")
            for j in range(n//2): k.e(f"v_cvt_pk_bf16_f32 v{a+j0+j}, v{T+2*j}, v{T+2*j+1}")
            if j0 == 0: k.lds(f"ds_write_b128 v{VB1}, {vr(a,4)} offset:{mi*1024}", "hw")
            else: k.lds(f"ds_write_b64 v{VB2}, {vr(a+8,2)} offset:{mi*1024}", "hw")
            if DEFER == 2 and state["n"] < 24:
                c_aload(k, state["n"]); state["n"] += 1
        if mi < 3: w2_check()
    k.e(f"v_add_u32 v{VB1}, {C_HB}, v{V_L16}"); k.e(f"v_add_u32 v{VB2}, {C_HB+49152}, v{V_L16}")
    k.e("s_lshl_b32 s55, s55, 2"); k.e(f"s_add_u32 s55, s55, s{S_CNT}"); k.e(f"s_add_u32 s55, s55, {4*CC_H0}")
    k.e(f"v_mov_b32 v{EX+2}, s55"); k.e(f"v_mov_b32 v{EX+3}, 1")
    k.wait(lg0=True)
    k.e("s_mov_b64 exec, 1")
    k.e(f"ds_add_u32 v{EX+2}, v{EX+3}")
    k.e("s_mov_b64 exec, -1")
    k.e(f"s_setprio {ENV('P2PRIO', 0)}")
    if FS == "C": stamp(k, 4)
    w2_check(final=True)
    if FS == "C": stamp(k, 5)
    def gate(ks, query=False):
        if ks % 6: return False
        if query: return True
        lds_wait(k, CC_H0 + ks//6, 4, EX)
    def bread2(ks, mi, reg):
        off = (ks*4 + mi) * 1024; base = VB1
        if off >= 49152: off -= 49152; base = VB2
        k.lds(f"ds_read_b128 {vr(reg,4)}, v{base} offset:{off}", ("b", ks))
    def after2(ks):
        if 18 + ks + D < 36: c_aload(k, 18 + ks + D)
    gemm_loop(k, 18, order, accf, bbf, asf, bread2, 18, 4, after2, gate=gate)
    k.e("s_setprio 0")
    if FS == "C": stamp(k, 6)
    if FS == "D": stamp(k, 1)
    k.e(f"v_lshlrev_b32 v{VB1}, 10, v{V_G}"); k.e(f"v_lshl_add_u32 v{VB1}, v{V_M}, 4, v{VB1}")
    k.e(f"v_lshrrev_b32 v{VB2}, 1, v{V_G}"); k.e(f"v_lshlrev_b32 v{VB2}, 10, v{VB2}"); k.e(f"v_and_b32 v{VT}, 31, v{V_L}")
    k.e(f"v_lshl_add_u32 v{VB2}, v{VT}, 4, v{VB2}")
    k.e(f"s_mul_i32 s40, s{S_SC}, {XB}"); k.e("s_add_u32 s40, s40, s39"); k.e(f"s_mul_i32 s41, s{S_W}, 6144"); k.e("s_add_u32 s40, s40, s41")
    k.e(f"s_add_u32 s40, s40, s{S_P}")
    k.e("s_add_u32 s41, s40, 4096")
    for mp in range(2):
        T2 = BB + 16 + 4*mp
        for mi in (2*mp, 2*mp+1):
            a = accf(mi, 0); T_ = BB + 4*mi
            for j in range(4): k.e(f"v_cvt_pk_bf16_f32 v{T_+j}, v{a+2*j}, v{a+2*j+1}")
            for j in range(2): k.e(f"v_cvt_pk_bf16_f32 v{T2+2*(mi&1)+j}, v{a+8+2*j}, v{a+8+2*j+1}")
            k.e(f"buffer_store_dwordx4 {vr(T_,4)}, v{VB1}, {WS}, s40 offen offset:{256*mi} sc1")
        k.e("s_nop 0")
        k.e(f"v_permlane16_swap_b32 v{T2}, v{T2+2}"); k.e(f"v_permlane16_swap_b32 v{T2+1}, v{T2+3}")
        k.e("s_nop 0")
        k.e(f"buffer_store_dwordx4 {vr(T2,4)}, v{VB2}, {WS}, s41 offen offset:{512*mp} sc1")
    k.e(f"s_mul_i32 s40, s{S_CL}, 24"); k.e(f"s_mul_i32 s41, s{S_S}, 3"); k.e("s_add_u32 s40, s40, s41"); k.e(f"s_add_u32 s40, s40, s{S_WL}")
    k.e("s_min_u32 s40, s40, 71"); k.e("s_lshl_b32 s40, s40, 4")
    k.e("s_load_dwordx4 s[52:55], s[20:21], s40")
    k.e(f"s_cmp_lg_u32 s{S_CL}, 2"); k.e("s_cbranch_scc1 L_C_nok2")
    lds_signal(k, CC_K2, 8)
    k.label("L_C_nok2")
    publish(k, CC_DONE, 4, F_C, S_RC, S_SC, 8, byclass=True)
    if FS in ("", "C", "D"): stamp(k, {"D": 2}.get(FS, 7))

def phase_D(k):
    k.c("================ phase D (per class)")
    k.e(f"s_cmp_lg_u32 s{S_WL}, 3"); k.e("s_cbranch_scc1 L_D_work")
    G0 = ENV("G0", 1)
    k.e(f"s_cmp_lg_u32 s{S_CL}, 0"); k.e("s_cbranch_scc1 L_D_g1")
    if G0 == 1: lds_wait(k, CC_DONE + 1, 4, 8, 8)
    else: lds_wait(k, CC_K2, 4, 8, 8)
    k.e("s_branch L_D_g2")
    k.label("L_D_g1")
    lds_wait(k, CC_K2, 4, 8, 4)
    k.label("L_D_g2")
    k.e(f"s_lshl_b32 s39, s{S_R}, 7"); k.e(f"s_lshl_b32 s38, s{S_CL}, 12"); k.e("s_add_u32 s39, s39, s38"); k.e(f"s_add_u32 s39, s39, s{S_FL}")
    k.e(f"s_add_u32 s37, s39, {F_C}")
    k.e(f"v_lshlrev_b32 v8, 2, v{V_L}")
    poll(k, 8, 37, 0xff, 9)
    lds_signal(k, CD_GO, 10, byclass=True)
    k.e(f"s_cmp_lg_u32 s{S_LAY}, 0"); k.e("s_cbranch_scc1 L_D_idle")
    lds_wait(k, CD_DONE, 3, 10, 2, byclass=True)
    lds_wait(k, CC_K2, 4, 10, 8)
    k.e(f"s_add_u32 s37, s39, {F_D}")
    k.e(f"s_cmp_eq_u32 s{S_R}, 0"); k.e("s_cselect_b32 s38, 0, 128"); k.e("s_sub_u32 s37, s37, s38"); k.e("s_sub_u32 s38, s38, 32")
    k.e(f"v_cmp_le_u32 vcc, 8, v{V_L}"); k.e("v_mov_b32 v9, s38")
    k.e("s_nop 0")
    k.e("v_cndmask_b32 v9, 0, v9, vcc"); k.e("v_add_u32 v8, v8, v9")
    poll(k, 8, 37, 0xffff, 9)
    lds_signal(k, CA_GO, 10, byclass=True)
    k.e("s_waitcnt lgkmcnt(0)")
    k.e("s_branch L_D_idle")
    k.label("L_D_work")
    k.e(f"s_mul_i32 s39, s{S_R}, {TILEB}"); k.e("s_lshl_b32 s41, s40, 6"); k.e("s_add_u32 s41, s41, s39")
    lds_wait(k, CD_GO, 1, 8, 2, byclass=True)
    if FS == "D": stamp(k, 3)
    k.vm = []
    k.e(f"s_add_u32 s42, s41, s{S_X1}")
    k.vmem(f"buffer_load_dwordx4 v[40:43], v{V_L16}, {WS}, s42 offen sc1", "x1")
    k.e(f"s_add_u32 s42, s41, s{S_P}")
    for s in range(8):
        k.vmem(f"buffer_load_dwordx4 {vr(8+4*s,4)}, v{V_L16}, {WS}, s42 offen sc1", s)
        if s < 7: k.e(f"s_add_u32 s42, s42, {XB}")
    k.wait(vm=["x1"])
    for j in range(4):
        k.e(f"s_lshl_b32 s43, s{52+j}, 16"); k.e(f"s_and_b32 s44, s{52+j}, 0xffff0000")
        k.e(f"v_lshlrev_b32 v{48+2*j}, 16, v{40+j}"); k.e(f"v_and_b32 v{49+2*j}, 0xffff0000, v{40+j}")
        k.e(f"v_add_f32 v{48+2*j}, s43, v{48+2*j}"); k.e(f"v_add_f32 v{49+2*j}, s44, v{49+2*j}")
    for s in range(8):
        k.wait(vm=[s])
        for j in range(4):
            r = 8 + 4*s + j
            k.e(f"v_lshlrev_b32 v5, 16, v{r}"); k.e(f"v_and_b32 v6, 0xffff0000, v{r}")
            k.e(f"v_add_f32 v{48+2*j}, v{48+2*j}, v5"); k.e(f"v_add_f32 v{49+2*j}, v{49+2*j}, v6")
    for j in range(4): k.e(f"v_cvt_pk_bf16_f32 v{8+j}, v{48+2*j}, v{49+2*j}")
    if FS == "D": stamp(k, 4)
    k.e(f"s_cmp_lg_u32 s{S_LAY}, 0"); k.e("s_cbranch_scc1 L_D_final")
    k.e(f"s_add_u32 s42, s41, 0x{X2:x}")
    k.e(f"buffer_store_dwordx4 v[8:11], v{V_L16}, {WS}, s42 offen sc1")
    publish(k, CD_DONE, 3, F_D, S_R, S_S, 14, byclass=True)
    if FS == "D": stamp(k, 5)
    lds_wait(k, CA_GO, 1, 8, 2, byclass=True)
    if FS == "D": stamp(k, 6)
    k.e("s_branch L_D_idle")
    k.label("L_D_final")
    k.e("s_movk_i32 s42, 1152"); k.e(f"v_mul_u32_u24 v5, s42, v{V_L}")
    k.e("s_add_u32 s42, s39, s40")
    k.e("buffer_store_dwordx4 v[8:11], v5, s[16:19], s42 offen")
    k.label("L_D_idle")

def gen_main():
    name = "main_kernel"
    k = K(); header(k, name, 256)
    k.e("s_load_dwordx2 s[4:5], s[0:1], 40")
    k.e("s_load_dwordx4 s[20:23], s[0:1], 56")
    k.e("s_load_dwordx2 s[6:7], s[0:1], 80")
    wave_lane(k, V_L, S_W)
    k.e(f"v_lshlrev_b32 v{V_L16}, 4, v{V_L}")
    k.e(f"v_lshrrev_b32 v{V_G}, 4, v{V_L}"); k.e(f"v_and_b32 v{V_M}, 15, v{V_L}")
    k.e(f"s_cmp_lg_u32 s{S_W}, 0"); k.e("s_cbranch_scc1 L_M_nz")
    k.e(f"v_lshlrev_b32 v5, 2, v{V_L}"); k.e(f"v_add_u32 v5, {CNT}, v5"); k.e("v_mov_b32 v6, 0"); k.e("ds_write_b32 v5, v6")
    k.label("L_M_nz")
    def mapping2(Sx, ss, sr_, sidx):
        R = 32 // Sx; ng = 8 // Sx; lg = lambda x: x.bit_length() - 1
        k.e("s_and_b32 s36, s2, 7"); k.e("s_lshr_b32 s37, s2, 3")
        k.e(f"s_and_b32 s{ss}, s36, {ng-1}"); k.e(f"s_lshl_b32 s{ss}, s{ss}, {lg(Sx)}")
        k.e(f"s_and_b32 s38, s37, {Sx-1}"); k.e(f"s_add_u32 s{ss}, s{ss}, s38")
        k.e(f"s_lshr_b32 s{sr_}, s36, {lg(ng)}"); k.e(f"s_lshl_b32 s{sr_}, s{sr_}, {lg(R)}")
        k.e(f"s_lshr_b32 s{sidx}, s37, {lg(Sx)}"); k.e(f"s_add_u32 s{sr_}, s{sr_}, s{sidx}")
    mapping2(ENV('SX_L', 4), S_S, S_R, S_IDX)
    mapping2(SXC, S_SC, S_RC, S_IDX)
    rot18(k, S_IDX, S_ROT, 32 // SXC)
    sdivmod(k, 36, S_ROT2, S_IDX, 6, 32)
    if not ENV("ROT2", 1): k.e(f"s_mov_b32 s{S_ROT2}, 0")
    k.e("s_waitcnt lgkmcnt(0)")
    srd(k, 8, 6, 0, WSZ)
    srd(k, 12, 4, 0, 4608*2)
    srd(k, 16, 22, 0, XB)
    k.e(f"s_lshr_b32 s{S_CL}, s{S_W}, 2"); k.e(f"s_and_b32 s{S_WL}, s{S_W}, 3"); k.e(f"s_mov_b32 s{S_EARLY}, 0")
    k.e(f"s_mov_b32 s{S_LAY}, 0")
    k.e(f"s_mov_b32 s{S_XIN}, 0x{X0P:x}"); k.e(f"s_mov_b32 s{S_O}, 0x{O1:x}"); k.e(f"s_mov_b32 s{S_X1}, 0x{X1A:x}"); k.e(f"s_mov_b32 s{S_P}, 0x{P1:x}")
    k.e(f"s_mov_b32 s{S_FL}, 0x{FLG:x}"); k.e(f"s_mov_b32 s{S_CNT}, {CNT}")
    k.label("L_layer")
    phase_A(k)
    npre = phase_B(k)
    phase_C(k, npre)
    phase_D(k)
    k.e(f"s_cmp_lg_u32 s{S_LAY}, 0"); k.e(f"s_cbranch_scc1 L_{name}_end")
    if STAMP and ENV("STAMP_L1", 0):
        k.e(f"s_branch L_{name}_end")
    k.e(f"s_mov_b32 s{S_LAY}, 1")
    k.e(f"s_cmp_lt_u32 s{S_CL}, {ENV('NEARLY', 0)}"); k.e(f"s_cselect_b32 s{S_EARLY}, 1, 0")
    k.e(f"s_mov_b32 s{S_XIN}, 0x{X2:x}"); k.e(f"s_mov_b32 s{S_O}, 0x{O2:x}"); k.e(f"s_mov_b32 s{S_X1}, 0x{X1B:x}"); k.e(f"s_mov_b32 s{S_P}, 0x{P2:x}")
    k.e(f"s_mov_b32 s{S_FL}, 0x{FLG+FLG_LAYER:x}"); k.e(f"s_mov_b32 s{S_CNT}, {CNT+128}")
    if STAMP: stamp(k, 0)
    k.e("s_branch L_layer")
    k.label(f"L_{name}_end")
    if STAMP:
        k.e("s_waitcnt vmcnt(0)")
        k.e(f"s_lshl_b32 s36, s{S_W}, 6"); k.e("v_mov_b32 v0, s36")
    stamp_end(k, KIDX[0]); KIDX[0] += 1
    k.label(f"L_{name}_exit")
    k.e("s_endpgm")
    return name, k.text(), desc(name, 168), (256, 768, LDS_TOTAL)

def main(out):
    ks = [gen_prep(), gen_main()]
    ref = open(f"cdna_kernels/{NAME}.s.ref").read().splitlines()
    hdr = [l for l in ref if l.startswith(";") and "@launch" not in l and "Override" not in l and "grid=ceil" not in l]
    s = "\n".join(hdr) + "\n"
    for n, _, _, (g, b, lds) in ks:
        s += f"; @launch kernel={n} grid=({g},1,1) block=({b},1,1) lds={lds}\n"
    s += '.amdgcn_target "amdgcn-amd-amdhsa--gfx950"\n.text\n'
    for _, t, _, _ in ks: s += t
    for _, _, d, _ in ks: s += d
    open(out, "w").write(s)

if __name__ == "__main__":
    main(sys.argv[1] if len(sys.argv) > 1 else f"cdna_kernels/{NAME}.s")
```

```python
import sys, struct, math, os
from asmlib import *

NAME = "interleave_layers__sliding_local_dilated__dense_activation_gelu__prompt"
XB = 2048 * 1152
TILEB = 73728
WQF, WOF, WFF = 0x0, 0x200000, 0x300000
CS1, CSQ = 0xE00000, 0xE10000
ST0, ST1A, ST2, ST1B = 0xE40000, 0xE80000, 0xEC0000, 0xF00000
X0P = 0x4C00000
O1, X1A, X2, O2, X1B, P1, P2 = 0x1000000, 0x1400000, 0x1800000, 0x1C00000, 0x2000000, 0x2400000, 0x3800000
WQF_SZ, WOF_SZ, WFF_SZ = 8*14*18*1024, 8*5*18*1024, 8*12*36*3072
ST_SZ = 32*8*64*8
ENV = lambda n, d: int(os.environ.get(n, str(d)))
STAMP = ENV("STAMP", 0)
STAMP_BASE = 0x8000000

def f32(x):
    return "0x%08x" % struct.unpack("<I", struct.pack("<f", x))[0]

def srd(k, d, b, add, size):
    if add:
        k.e(f"s_add_u32 s{d}, s{b}, 0x{add:x}")
        k.e(f"s_addc_u32 s{d+1}, s{b+1}, 0")
    else:
        k.e(f"s_mov_b32 s{d}, s{b}")
        k.e(f"s_mov_b32 s{d+1}, s{b+1}")
    k.e(f"s_mov_b32 s{d+2}, 0x{size:x}")
    k.e(f"s_mov_b32 s{d+3}, 0x20000")

def stamp(k, i):
    if not STAMP: return
    k.e("s_waitcnt lgkmcnt(0)"); k.lg = []
    k.e(f"s_memtime s[84:85]")
    k.e(f"s_memrealtime s[86:87]")
    k.e("s_waitcnt lgkmcnt(0)")
    k.e(f"s_mov_b32 s{64+i}, s84"); k.e(f"s_mov_b32 s{74+i}, s86")
def stamp_begin(k):
    if not STAMP: return
    for i in range(1, 9):
        k.e(f"s_mov_b32 s{64+i}, 0"); k.e(f"s_mov_b32 s{74+i}, 0")
    stamp(k, 0)
def stamp_end(k, kidx):
    if not STAMP: return
    k.e("s_waitcnt vmcnt(0)")
    stamp(k, 8)
    k.e("s_load_dwordx2 s[88:89], s[0:1], 80")
    k.e("s_getreg_b32 s90, hwreg(HW_REG_XCC_ID)")
    k.e("s_waitcnt lgkmcnt(0)")
    k.e("s_mov_b64 exec, 1")
    k.e(f"s_add_u32 s88, s88, 0x{STAMP_BASE:x}"); k.e("s_addc_u32 s89, s89, 0")
    k.e(f"s_add_u32 s91, s2, {kidx*512}"); k.e("s_lshl_b32 s91, s91, 4")
    k.e("v_lshrrev_b32 v1, 6, v0"); k.e("v_add_u32 v1, s91, v1"); k.e("v_lshlrev_b32 v1, 7, v1")
    vals = [64+i for i in range(9)] + [90] + [74+i for i in range(9)] + [90]
    for j, sreg in enumerate(vals):
        k.e(f"v_mov_b32 v{2+j}, s{sreg}")
    for j in range(0, 20, 4):
        k.e(f"global_store_dwordx4 v1, v[{2+j}:{5+j}], s[88:89] offset:{4*j}")

KIDX = [0]
def header(k, name, nwg):
    k.lines.append(f".globl {name}\n.p2align 8\n.type {name},@function\n{name}:")
    k.e(f"s_cmp_ge_u32 s2, {nwg}")
    k.e(f"s_cbranch_scc1 L_{name}_exit")
    stamp_begin(k)
def footer(k, name):
    k.label(f"L_{name}_end")
    stamp_end(k, KIDX[0]); KIDX[0] += 1
    k.label(f"L_{name}_exit")
    k.e("s_endpgm")

def desc(name, vgpr, sgpr=96):
    acc = (vgpr + 3) // 4 * 4
    return f""".section .rodata,"a"
.p2align 6
.amdhsa_kernel {name}
  .amdhsa_next_free_vgpr {vgpr}
  .amdhsa_next_free_sgpr {sgpr}
  .amdhsa_accum_offset {acc}
  .amdhsa_group_segment_fixed_size 0
  .amdhsa_kernarg_size 88
  .amdhsa_user_sgpr_count 2
  .amdhsa_user_sgpr_kernarg_segment_ptr 1
  .amdhsa_system_sgpr_workgroup_id_x 1
  .amdhsa_float_denorm_mode_32 3
.end_amdhsa_kernel
.text
"""

def divmod_const(k, q, rem, x, d, nmax, stmp):
    m, sh = magic(d, nmax)
    k.e(f"s_mov_b32 s{stmp}, {m}")
    k.e(f"v_mul_u32_u24 v{q}, s{stmp}, v{x}")
    k.e(f"v_lshrrev_b32 v{q}, {sh}, v{q}")
    if rem is not None:
        if d <= 64:
            k.e(f"v_mul_u32_u24 v{rem}, {d}, v{q}")
        else:
            k.e(f"v_mul_u32_u24 v{rem}, 0x{d:x}, v{q}")
        k.e(f"v_sub_u32 v{rem}, v{x}, v{rem}")

def sdivmod(k, q, rem, x, d, nmax):
    m, sh = magic(d, nmax)
    k.e(f"s_mul_i32 s{q}, s{x}, {m}"); k.e(f"s_lshr_b32 s{q}, s{q}, {sh}")
    if rem is not None:
        k.e(f"s_mul_i32 s{rem}, s{q}, {d}"); k.e(f"s_sub_u32 s{rem}, s{x}, s{rem}")

MAP = dict(attn=ENV("SX_A", 4), wo=ENV("SX_B", 8), ffn=ENV("SX_C", 2))
def mapping(k, Sx, ss=15, sr_=16, sidx=12):
    R = 32 // Sx; ng = 8 // Sx
    lg = lambda x: x.bit_length() - 1
    k.e("s_and_b32 s10, s2, 7")
    k.e("s_lshr_b32 s11, s2, 3")
    k.e(f"s_and_b32 s{ss}, s10, {ng-1}")
    k.e(f"s_lshl_b32 s{ss}, s{ss}, {lg(Sx)}")
    k.e(f"s_and_b32 s13, s11, {Sx-1}")
    k.e(f"s_add_u32 s{ss}, s{ss}, s13")
    k.e(f"s_lshr_b32 s{sr_}, s10, {lg(ng)}")
    k.e(f"s_lshl_b32 s{sr_}, s{sr_}, {lg(R)}")
    k.e(f"s_lshr_b32 s{sidx}, s11, {lg(Sx)}")
    k.e(f"s_add_u32 s{sr_}, s{sr_}, s{sidx}")

def rot18(k, sidx, srot, R):
    if not ENV("ROT", 0):
        k.e(f"s_mov_b32 s{srot}, 0"); return
    if R <= 16:
        mult = {4: 4, 8: 2, 16: 1}[R]
        k.e(f"s_mul_i32 s{srot}, s{sidx}, {mult}")
    else:
        k.e(f"s_sub_u32 s{srot}, s{sidx}, 18"); k.e(f"s_cmp_ge_u32 s{sidx}, 18"); k.e(f"s_cselect_b32 s{srot}, s{srot}, s{sidx}")

def wave_lane(k, vlane, swave):
    k.e(f"v_lshrrev_b32 v{vlane}, 6, v0")
    k.e("s_nop 0")
    k.e(f"v_readfirstlane_b32 s{swave}, v{vlane}")
    k.e(f"v_and_b32 v{vlane}, 63, v0")

def touch(k, srd_, L, n_instr, swave_idx, nwaves, per_slab, slab_stride, sbase, nslab, t, dummy, gran=64):
    t0, t1, t2 = t[:3]
    nmax = 32 * nwaves * n_instr * 64
    k.e(f"s_lshr_b32 s58, s2, 3"); k.e(f"s_mul_i32 s58, s58, {nwaves}"); k.e(f"s_add_u32 s58, s58, s{swave_idx}"); k.e(f"s_mul_i32 s58, s58, {n_instr*64}")
    for j in range(n_instr):
        k.e(f"v_add_u32 v{t0}, s58, v{L}")
        if j: k.e(f"v_add_u32 v{t0}, {64*j}, v{t0}")
        m, sh = magic2(per_slab, nmax)
        k.e(f"s_mov_b32 s59, {m}"); k.e(f"v_mul_hi_u32 v{t1}, v{t0}, s59")
        if sh: k.e(f"v_lshrrev_b32 v{t1}, {sh}, v{t1}")
        k.e(f"s_mov_b32 s59, {per_slab}"); k.e(f"v_mul_u32_u24 v{t2}, s59, v{t1}"); k.e(f"v_sub_u32 v{t0}, v{t0}, v{t2}")
        k.e(f"s_mov_b32 s59, {slab_stride}"); k.e(f"v_mul_u32_u24 v{t2}, s59, v{t1}")
        k.e(f"v_lshl_add_u32 v{t0}, v{t0}, {gran.bit_length()-1}, v{t2}")
        k.e(f"v_cmp_gt_u32 vcc, {nslab}, v{t1}")
        k.e(f"v_mov_b32 v{t2}, 0x7ff00000")
        k.e("s_nop 0")
        k.e(f"v_cndmask_b32 v{t0}, v{t2}, v{t0}, vcc")
        k.vmem(f"buffer_load_dword v{dummy}, v{t0}, s[{srd_}:{srd_+3}], s{sbase} offen", "touch")

def magic2(d, nmax):
    for sh in range(0, 12):
        m = (1 << (32 + sh)) // d + 1
        if m >= (1 << 32): continue
        if all((x * m) >> (32 + sh) == x // d for x in range(0, nmax, 1)):
            return m, sh
    raise ValueError

def dma(k, m0expr, voff, srd_, soff, tag=None):
    for l in m0expr: k.e(l)
    k.e("s_nop 0")
    k.vmem(f"buffer_load_dwordx4 v{voff}, s[{srd_}:{srd_+3}], {soff} offen{os.environ.get('PLD', ' nt')} lds", tag)

NJ_W1, NJ_WO, NJ_WQ, NJ_X0, NJ_W2 = 144, 64, 56, 64, 144
CSQP = 0xEA0000
CSP = 0xE40000
FLG = 0xF80000
FLG_LAYER = 32768
F_A, F_B, F_C, F_D = 0, 4096, 8192, 20480
PSC = os.environ.get("PST", "")
def gen_prep():
    name = "prep_kernel"
    NT = NJ_W1 + NJ_WO + NJ_WQ + NJ_X0 + NJ_W2
    k = K(); header(k, name, NT)
    k.e("s_load_dwordx4 s[4:7], s[0:1], 8")
    k.e("s_load_dwordx2 s[8:9], s[0:1], 32")
    k.e("s_load_dwordx2 s[10:11], s[0:1], 48")
    k.e("s_load_dwordx2 s[12:13], s[0:1], 80")
    k.e("s_load_dwordx2 s[48:49], s[0:1], 0")
    wave_lane(k, 1, 14)
    k.e("s_and_b32 s15, s2, 7")
    k.e("s_lshr_b32 s16, s2, 3")
    k.e("v_lshrrev_b32 v2, 4, v1")
    k.e("v_bfe_u32 v3, v1, 2, 2")
    k.e("v_and_b32 v4, 3, v1")
    k.e("v_lshlrev_b32 v5, 4, v1")
    k.e("s_waitcnt lgkmcnt(0)")
    srd(k, 20, 12, 0, 0x5000000)
    srd(k, 24, 8, 0, 576*4608*2)
    srd(k, 28, 10, 0, 576*4608*2)
    srd(k, 32, 4, 0, 576*1728*2)
    srd(k, 36, 6, 0, 576*576*2)
    srd(k, 52, 48, 0, XB)
    b = [0]
    for n in (NJ_WQ, NJ_X0, NJ_W1, NJ_W2): b.append(b[-1] + n)
    for bound, lab in ((b[1], "wq"), (b[2], "x0"), (b[3], "w1"), (b[4], "w2")):
        k.e(f"s_cmp_lt_u32 s2, {bound}"); k.e(f"s_cbranch_scc1 L_prep_{lab}")
    k.e("s_branch L_prep_wo")
    def lin_dma(n_i, per_row, nmax, pitch, srd_, soff):
        k.e(f"s_lshl_b32 s18, s14, 6")
        for i in range(n_i):
            k.e(f"v_add_u32 v6, s18, v1")
            if i: k.e(f"v_add_u32 v6, {768*i}, v6")
            divmod_const(k, 7, 8, 6, per_row, nmax, 19)
            k.e(f"s_mov_b32 s19, {pitch}")
            k.e("v_mul_u32_u24 v7, s19, v7")
            k.e("v_lshl_add_u32 v7, v8, 4, v7")
            dma(k, [f"s_lshl_b32 s19, s14, 10", f"s_add_u32 m0, s19, {12288*i}"], 7, srd_, soff)
    k.label("L_prep_w1")
    k.e(f"s_sub_u32 s16, s16, {b[2]//8}")
    k.e("s_mul_i32 s17, s16, %d" % (32*9216)); k.e("s_mul_i32 s18, s15, 1152"); k.e("s_add_u32 s17, s17, s18")
    lin_dma(3, 72, 2304, 9216, 24, "s17")
    k.e("s_lshr_b32 s40, s14, 1"); k.e("s_and_b32 s41, s14, 1"); k.e("s_mul_i32 s40, s40, 96")
    k.e("s_lshl_b32 s42, s41, 5"); k.e("s_add_u32 s42, s42, s40")
    k.e("s_lshl_b32 s43, s41, 4"); k.e("s_add_u32 s43, s43, s40"); k.e("s_add_u32 s43, s43, 64")
    k.e("v_lshl_add_u32 v7, v2, 3, v3"); k.e("s_movk_i32 s19, 1152"); k.e("v_mul_u32_u24 v7, s19, v7")
    k.e("s_lshl_b32 s44, s42, 1"); k.e("v_lshl_add_u32 v6, v4, 4, v7"); k.e("v_add_u32 v6, s44, v6")
    k.e("s_lshl_b32 s44, s43, 1"); k.e("v_lshl_add_u32 v10, v4, 3, v7"); k.e("v_add_u32 v10, s44, v10")
    k.e("v_add_u32 v9, %d, v6" % (4*1152)); k.e("v_add_u32 v11, %d, v10" % (4*1152))
    k.e("s_mul_i32 s17, s15, 12"); k.e("s_add_u32 s17, s17, s14"); k.e("s_mul_i32 s17, s17, 36"); k.e("s_add_u32 s17, s17, s16")
    k.e("s_mul_i32 s17, s17, 3072"); k.e(f"s_add_u32 s17, s17, 0x{WFF:x}")
    k.e("s_mul_i32 s44, s16, 4608"); k.e("s_mul_i32 s45, s15, 576"); k.e("s_add_u32 s44, s44, s45")
    k.e("s_add_u32 s42, s42, s44"); k.e("s_lshl_b32 s42, s42, 2"); k.e(f"s_add_u32 s42, s42, 0x{CSP:x}")
    k.e("s_add_u32 s43, s43, s44"); k.e("s_lshl_b32 s43, s43, 2"); k.e(f"s_add_u32 s43, s43, 0x{CSP:x}")
    k.e("v_lshlrev_b32 v7, 5, v2"); k.e("v_lshlrev_b32 v8, 4, v2")
    for j in range(4): k.e(f"v_mov_b32 v{40+j}, 0x3f803f80")
    k.e("s_waitcnt vmcnt(0)")
    k.e("s_barrier")
    for t in range(2):
        k.e(f"ds_read_b64_tr_b16 v[{12+4*t}:{13+4*t}], v6 offset:{8*t}")
        k.e(f"ds_read_b64_tr_b16 v[{14+4*t}:{15+4*t}], v9 offset:{8*t}")
    k.e(f"ds_read_b64_tr_b16 v[20:21], v10")
    k.e(f"ds_read_b64_tr_b16 v[22:23], v11")
    for t in range(3):
        k.e(f"s_waitcnt lgkmcnt({4-2*t})")
        k.e(f"buffer_store_dwordx4 v[{12+4*t}:{15+4*t}], v5, s[20:23], s17 offen offset:{1024*t}{PSC}")
        k.e(f"v_mfma_f32_16x16x32_bf16 v[{28+4*t}:{31+4*t}], v[{12+4*t}:{15+4*t}], v[40:43], 0")
    k.e("s_mov_b32 exec_lo, 0x00010001"); k.e("s_mov_b32 exec_hi, 0x00010001")
    k.e("s_nop 7")
    k.e(f"buffer_store_dwordx4 v[28:31], v7, s[20:23], s42 offen{PSC}")
    k.e(f"buffer_store_dwordx4 v[32:35], v7, s[20:23], s42 offen offset:16{PSC}")
    k.e(f"buffer_store_dwordx4 v[36:39], v8, s[20:23], s43 offen{PSC}")
    k.e("s_mov_b64 exec, -1")
    k.e(f"s_branch L_{name}_end")
    k.label("L_prep_wq")
    k.e("s_cmp_ge_u32 s2, 54"); k.e(f"s_cbranch_scc1 L_{name}_end")
    sdivmod(k, 16, 15, 2, 3, 56)
    k.e("s_mul_i32 s17, s16, %d" % (32*3456)); k.e("s_mul_i32 s18, s15, 1152"); k.e("s_add_u32 s17, s17, s18")
    lin_dma(3, 72, 2304, 3456, 32, "s17")
    k.e("v_lshl_add_u32 v6, v2, 3, v3"); k.e("s_movk_i32 s19, 1152"); k.e("v_mul_u32_u24 v6, s19, v6")
    k.e("v_lshl_add_u32 v6, v4, 3, v6"); k.e("s_mul_i32 s19, s14, 96"); k.e("v_add_u32 v6, s19, v6")
    for j in range(4): k.e(f"v_mov_b32 v{40+j}, 0x3f803f80")
    k.e("s_mul_i32 s40, s15, 9")
    for t in range(3):
        k.e("v_bfe_u32 v7, v1, 3, 1"); k.e("s_mul_i32 s19, s14, 6"); k.e(f"s_add_u32 s19, s19, {2*t}"); k.e("v_add_u32 v7, s19, v7")
        divmod_const(k, 8, 9, 7, 9, 72, 19)
        k.e("v_add_u32 v9, s40, v9")
        k.e("v_mul_u32_u24 v8, 28, v8"); k.e("v_add_u32 v8, v8, v9")
        k.e("v_lshrrev_b32 v9, 1, v8"); k.e("s_movk_i32 s19, %d" % (18*1024)); k.e("v_mul_u32_u24 v9, s19, v9")
        k.e("v_and_b32 v8, 1, v8"); k.e("v_lshl_add_u32 v9, v8, 7, v9")
        k.e("v_lshl_add_u32 v9, v2, 8, v9"); k.e("v_and_b32 v8, 7, v1"); k.e(f"v_lshl_add_u32 v{24+t}, v8, 4, v9")
        k.e("v_lshrrev_b32 v7, 1, v2"); k.e("s_mul_i32 s19, s14, 6"); k.e(f"s_add_u32 s19, s19, {2*t}"); k.e("v_add_u32 v7, s19, v7")
        divmod_const(k, 8, 9, 7, 9, 72, 19)
        k.e("v_add_u32 v9, s40, v9"); k.e("v_mul_u32_u24 v8, 28, v8"); k.e("v_add_u32 v8, v8, v9")
        k.e("v_and_b32 v9, 1, v2"); k.e("v_lshlrev_b32 v9, 4, v9"); k.e(f"v_lshl_add_u32 v{44+t}, v8, 5, v9")
    k.e("s_lshl_b32 s17, s16, 10")
    if WQF: k.e(f"s_add_u32 s17, s17, 0x{WQF:x}")
    k.e("s_mul_i32 s42, s16, %d" % (8*224*4)); k.e(f"s_add_u32 s42, s42, 0x{CSQP:x}")
    k.e("s_waitcnt vmcnt(0)")
    k.e("s_barrier")
    for t in range(3):
        k.e(f"ds_read_b64_tr_b16 v[{12+4*t}:{13+4*t}], v6 offset:{32*t}")
        k.e(f"ds_read_b64_tr_b16 v[{14+4*t}:{15+4*t}], v6 offset:{32*t+4*1152}")
    for t in range(3):
        k.e(f"s_waitcnt lgkmcnt({4-2*t})")
        k.e(f"buffer_store_dwordx4 v[{12+4*t}:{15+4*t}], v{24+t}, s[20:23], s17 offen{PSC}")
        k.e(f"v_mfma_f32_16x16x32_bf16 v[{28+4*t}:{31+4*t}], v[{12+4*t}:{15+4*t}], v[40:43], 0")
    k.e("s_mov_b32 exec_lo, 0x00010001"); k.e("s_mov_b32 exec_hi, 0x00010001")
    k.e("s_nop 7")
    for t in range(3):
        k.e(f"buffer_store_dwordx4 v[{28+4*t}:{31+4*t}], v{44+t}, s[20:23], s42 offen{PSC}")
    k.e("s_mov_b64 exec, -1")
    k.e(f"s_branch L_{name}_end")
    k.label("L_prep_w2")
    k.e(f"s_sub_u32 s16, s16, {b[3]//8}")
    k.e("s_mul_i32 s17, s15, 18"); k.e("s_add_u32 s17, s17, s16"); k.e("s_mul_i32 s17, s17, 36864")
    k.e("s_lshl_b32 s19, s14, 10"); k.e("s_add_u32 s17, s17, s19")
    for i in range(3):
        dma(k, [f"s_add_u32 m0, s19, {12288*i}"], 5, 28, "s17")
        if i < 2: k.e("s_add_u32 s17, s17, 12288")
    sdivmod(k, 40, 41, 16, 3, 18)
    k.e("s_cmp_eq_u32 s41, 2"); k.e("s_cselect_b32 s44, 2, 3"); k.e("s_movk_i32 s45, %d" % (4*1152)); k.e("s_cselect_b32 s45, %d, s45" % (16*1152))
    k.e("v_lshlrev_b32 v6, s44, v2"); k.e("v_add_u32 v6, v6, v3")
    k.e("s_movk_i32 s19, 1152"); k.e("v_mul_u32_u24 v6, s19, v6")
    k.e("s_mul_i32 s19, s14, 96"); k.e("v_add_u32 v6, s19, v6")
    k.e("v_lshl_add_u32 v10, v4, 3, v6"); k.e("v_add_u32 v10, 64, v10")
    k.e("v_lshl_add_u32 v6, v4, 4, v6")
    k.e("v_add_u32 v9, s45, v6"); k.e("v_add_u32 v11, s45, v10")
    k.e("s_mul_i32 s17, s15, 12"); k.e("s_add_u32 s17, s17, s14"); k.e("s_mul_i32 s17, s17, 36"); k.e("s_add_u32 s17, s17, s16"); k.e("s_add_u32 s17, s17, 18")
    k.e("s_mul_i32 s17, s17, 3072"); k.e(f"s_add_u32 s17, s17, 0x{WFF:x}")
    k.e("s_waitcnt vmcnt(0)")
    k.e("s_barrier")
    for t in range(2):
        k.e(f"ds_read_b64_tr_b16 v[{12+4*t}:{13+4*t}], v6 offset:{8*t}")
        k.e(f"ds_read_b64_tr_b16 v[{14+4*t}:{15+4*t}], v9 offset:{8*t}")
    k.e(f"ds_read_b64_tr_b16 v[20:21], v10")
    k.e(f"ds_read_b64_tr_b16 v[22:23], v11")
    for t in range(3):
        k.e(f"s_waitcnt lgkmcnt({4-2*t})")
        k.e(f"buffer_store_dwordx4 v[{12+4*t}:{15+4*t}], v5, s[20:23], s17 offen offset:{1024*t}{PSC}")
    k.e(f"s_branch L_{name}_end")
    k.label("L_prep_wo")
    k.e(f"s_sub_u32 s16, s16, {b[4]//8}")
    k.e("s_mul_i32 s17, s16, %d" % (72*1152)); k.e("s_mul_i32 s18, s15, 144"); k.e("s_add_u32 s17, s17, s18")
    lin_dma(1, 9, 768, 1152, 36, "s17")
    k.e("s_lshl_b32 s44, s14, 2"); k.e("v_add_u32 v6, s44, v2"); k.e("v_min_u32 v6, 44, v6")
    divmod_const(k, 8, 7, 6, 5, 48, 19)
    k.e("v_lshrrev_b32 v9, 1, v8"); k.e("v_mul_u32_u24 v9, 18, v9")
    k.e("v_and_b32 v10, 1, v8"); k.e("v_lshl_add_u32 v9, v10, 3, v9")
    k.e("v_add_u32 v9, v9, v3")
    k.e("v_add_u32 v10, 4, v9")
    k.e("v_lshrrev_b32 v11, 1, v3"); k.e("v_mul_u32_u24 v11, 18, v11"); k.e("v_and_b32 v16, 1, v3")
    k.e("v_add3_u32 v11, v11, v16, 16")
    k.e("v_add_u32 v16, 36, v11")
    k.e("v_cmp_eq_u32 vcc, 8, v8")
    k.e("s_nop 1")
    k.e("v_cndmask_b32 v9, v9, v11, vcc"); k.e("v_cndmask_b32 v10, v10, v16, vcc")
    k.e("s_movk_i32 s19, 144"); k.e("v_mul_u32_u24 v9, s19, v9"); k.e("v_mul_u32_u24 v10, s19, v10")
    k.e("v_lshlrev_b32 v11, 5, v7"); k.e("v_lshl_add_u32 v11, v4, 3, v11")
    k.e("v_add_u32 v9, v9, v11"); k.e("v_add_u32 v10, v10, v11")
    k.e("s_movk_i32 s19, %d" % (18*1024)); k.e("v_mul_u32_u24 v7, s19, v7")
    k.e("s_mul_i32 s19, s16, 9"); k.e("v_add_u32 v8, s19, v8"); k.e("v_lshl_add_u32 v7, v8, 8, v7")
    k.e("v_and_b32 v8, 15, v1"); k.e("v_lshl_add_u32 v7, v8, 4, v7")
    k.e("s_mul_i32 s44, s15, %d" % (5*18*1024)); k.e(f"s_add_u32 s44, s44, 0x{WOF:x}")
    k.e("s_waitcnt vmcnt(0)")
    k.e("s_barrier")
    k.e("ds_read_b64_tr_b16 v[12:13], v9")
    k.e("ds_read_b64_tr_b16 v[14:15], v10")
    k.e("s_waitcnt lgkmcnt(0)")
    k.e(f"buffer_store_dwordx4 v[12:15], v7, s[20:23], s44 offen{PSC}")
    k.e(f"s_branch L_{name}_end")
    k.label("L_prep_x0")
    k.e(f"s_sub_u32 s16, s16, {b[1]//8}")
    k.e("s_lshl_b32 s17, s15, 3"); k.e("s_add_u32 s17, s17, s16")
    k.e("s_mul_i32 s18, s17, 36864"); k.e("s_lshl_b32 s19, s14, 10"); k.e("s_add_u32 s40, s18, s19")
    for i in range(3):
        dma(k, [f"s_add_u32 m0, s19, {12288*i}"], 5, 52, "s40")
        if i < 2: k.e("s_add_u32 s40, s40, 12288")
    k.e("s_cmp_lg_u32 s14, 11"); k.e("s_cbranch_scc1 L_prep_x0b")
    for j in range(4): k.e(f"v_mov_b32 v{40+j}, 0")
    k.e("s_lshl_b32 s18, s17, 10"); k.e(f"s_add_u32 s18, s18, 0x{FLG:x}")
    k.e(f"buffer_store_dwordx4 v[40:43], v5, s[20:23], s18 offen{PSC}")
    k.label("L_prep_x0b")
    k.e("v_and_b32 v6, 31, v1"); k.e("v_lshrrev_b32 v7, 5, v1")
    k.e("s_movk_i32 s19, 1152"); k.e("v_mul_u32_u24 v8, s19, v6"); k.e("v_lshl_add_u32 v8, v7, 4, v8")
    k.e("s_mul_i32 s19, s14, 96"); k.e("v_add_u32 v8, s19, v8")
    k.e("v_lshlrev_b32 v9, 10, v7"); k.e("v_lshl_add_u32 v9, v6, 4, v9")
    k.e("s_lshr_b32 s40, s17, 1"); k.e(f"s_mul_i32 s40, s40, {TILEB}"); k.e("s_and_b32 s41, s17, 1"); k.e("s_lshl_b32 s41, s41, 9"); k.e("s_add_u32 s40, s40, s41")
    k.e("s_mul_i32 s41, s14, 6144"); k.e("s_add_u32 s40, s40, s41"); k.e(f"s_add_u32 s40, s40, 0x{X0P:x}"); k.e("s_add_u32 s41, s40, 4096")
    k.e("s_waitcnt vmcnt(0)")
    k.e("s_barrier")
    for i in range(3): k.e(f"ds_read_b128 v[{12+4*i}:{15+4*i}], v8 offset:{32*i}")
    for i in range(3):
        k.e(f"s_waitcnt lgkmcnt({2-i})")
        k.e(f"buffer_store_dwordx4 v[{12+4*i}:{15+4*i}], v9, s[20:23], s{40 if i < 2 else 41} offen offset:{2048*(i%2)}{PSC}")
    footer(k, name)
    return name, k.text(), desc(name, 48), (NT, 768, 36864)


def gemm_loop(k, nks, order, acc, bbuf, aslot, bread, ks0, nm, after=None, pre=None, BD=1, atag=None, gate=None):
    atag = atag or (lambda ks: ("a", ks0 + ks))
    nb = BD + 1
    for d in range(min(BD, nks)):
        if gate: gate(d)
        for mi in range(nm): bread(d, mi, bbuf(d % nb, mi))
    if pre: pre()
    for ks in range(nks):
        late = gate is not None and ks + BD < nks and gate(ks + BD, True)
        if ks + BD < nks and not late:
            for mi in range(nm): bread(ks + BD, mi, bbuf((ks + BD) % nb, mi))
        k.wait(vm=[atag(ks)], lg=[("b", ks)])
        for (mi, t) in order:
            c = "0" if ks == 0 else vr(acc(mi, t), 4)
            k.e(f"v_mfma_f32_16x16x32_bf16 {vr(acc(mi,t),4)}, {vr(aslot(ks0+ks,t),4)}, {vr(bbuf(ks % nb,mi),4)}, {c}")
        if after: after(ks)
        if late:
            gate(ks + BD)
            for mi in range(nm): bread(ks + BD, mi, bbuf((ks + BD) % nb, mi))

FS = os.environ.get("FS", "")
CPA = ENV("CPA", 0)
GX = ENV("GX", 1)
GXC = ENV("GXC", 1)
assert ENV("ROT", 0) == 0
A_HL = 73728
A_QK = 92160
QP, QPL = 48, 3968
TSTR = 4 * QPL
A_VP = A_QK + 2*TSTR
VPP, VPL = 80, 6784
A_ST = A_VP + 4*VPL
A_PM, A_PH = A_QK, A_QK + 6144
B_XB = 73728
C_HB = 73728
C_CS = 155648
C_B1 = C_CS + 3072
A_CQ = C_B1 + 2048
C_ST = 147456
A_PQ = A_QK + 12288
C_PM = 98304
A_SCR = A_ST + 640
CNT = 163328
LDS_TOTAL = 163840
CA_ST, CA_DONE, CB_DONE, CC_ST, CC_W1, CC_H0, CC_DONE, CD_DONE, CC_K2, CD_GO, CA_GO, CA_W, CA_X, CC_X = 0, 1, 2, 3, 4, 5, 8, 11, 14, 16, 20, 15, 24, 28
S_CL, S_WL, S_EARLY = 60, 61, 57
WSZ = 0x5000000
SXC = MAP["ffn"]

S_W, S_LAY, S_XIN, S_O, S_X1, S_P, S_FL, S_R, S_S, S_RC, S_SC, S_IDX, S_CNT, S_ROT, S_ROT2 = 3, 22, 23, 24, 25, 26, 28, 29, 30, 31, 32, 33, 27, 34, 35
WS = "s[8:11]"
V_L, V_L16, V_G, V_M = 1, 2, 3, 4
AR, EX = 88, 160

def lds_signal(k, slot, vt, byclass=False):
    k.e(f"s_add_u32 s36, s{S_CNT}, {4*slot}")
    if byclass:
        k.e(f"s_lshl_b32 s37, s{S_CL}, 2"); k.e("s_add_u32 s36, s36, s37")
    k.e(f"v_mov_b32 v{vt}, s36"); k.e(f"v_mov_b32 v{vt+1}, 1")
    k.e("s_mov_b64 exec, 1")
    k.lds(f"ds_add_u32 v{vt}, v{vt+1}", "cnt")
    k.e("s_mov_b64 exec, -1")

def lds_wait(k, slot, n, vt, sleep=2, byclass=False):
    lab = k.newlabel("L_lw")
    k.e(f"s_add_u32 s36, s{S_CNT}, {4*slot}")
    if byclass:
        k.e(f"s_lshl_b32 s37, s{S_CL}, 2"); k.e("s_add_u32 s36, s36, s37")
    k.e(f"v_mov_b32 v{vt}, s36")
    k.label(lab)
    k.e(f"ds_read_b32 v{vt+1}, v{vt}")
    k.e("s_waitcnt lgkmcnt(0)"); k.lg = []
    k.e(f"v_readfirstlane_b32 s36, v{vt+1}")
    k.e("s_nop 3")
    k.e(f"s_cmp_ge_u32 s36, {n}"); k.e(f"s_cbranch_scc1 {lab}_ok")
    k.e(f"s_sleep {sleep}")
    k.e(f"s_branch {lab}")
    k.label(f"{lab}_ok")

def SC(name):
    return "" if name in os.environ.get("NOSC", "").split(",") else " sc1"
def publish(k, slot, n, fbase, s_r, s_s, vt, byclass=False, sc=" sc1"):
    lab = k.newlabel("L_pub")
    k.e(f"s_add_u32 s36, s{S_CNT}, {4*slot}")
    k.e(f"s_lshl_b32 s37, s{s_r}, 7"); k.e(f"s_lshl_b32 s38, s{s_s}, 2"); k.e("s_add_u32 s37, s37, s38")
    k.e(f"s_add_u32 s37, s37, s{S_FL}"); k.e(f"s_add_u32 s37, s37, {fbase}")
    if byclass:
        k.e(f"s_lshl_b32 s38, s{S_CL}, 2"); k.e("s_add_u32 s36, s36, s38")
        k.e(f"s_lshl_b32 s38, s{S_CL}, 12"); k.e("s_add_u32 s37, s37, s38")
    k.e("s_waitcnt vmcnt(0)"); k.vm = []
    k.e(f"v_mov_b32 v{vt}, s36"); k.e(f"v_mov_b32 v{vt+1}, 1")
    k.e("s_mov_b64 exec, 1")
    k.e(f"ds_add_rtn_u32 v{vt}, v{vt}, v{vt+1}")
    k.e("s_waitcnt lgkmcnt(0)"); k.lg = []
    k.e(f"v_readfirstlane_b32 s36, v{vt}")
    k.e(f"v_mov_b32 v{vt}, 0")
    k.e("s_nop 2")
    k.e(f"s_cmp_lg_u32 s36, {n-1}"); k.e(f"s_cbranch_scc1 {lab}")
    k.e(f"buffer_store_dword v{vt+1}, v{vt}, {WS}, s37 offen{sc}")
    k.label(lab)
    k.e("s_mov_b64 exec, -1")

def poll(k, voff, soff, mask, vt):
    lab = k.newlabel("L_aw")
    k.e(f"s_mov_b64 exec, 0x{mask:x}")
    k.e("s_mov_b32 s38, 0x20000")
    k.label(lab)
    k.e(f"buffer_load_dword v{vt}, v{voff}, {WS}, s{soff} offen sc1")
    k.e("s_waitcnt vmcnt(0)"); k.vm = []
    k.e(f"v_cmp_ne_u32 vcc, 1, v{vt}")
    k.e("s_sub_u32 s38, s38, 1")
    k.e("s_nop 3")
    k.e(f"s_cbranch_vccz {lab}_ok")
    k.e("s_cmp_eq_u32 s38, 0"); k.e(f"s_cbranch_scc1 {lab}_ok")
    k.e(f"s_sleep {ENV('PSLEEP', 1)}")
    k.e(f"s_branch {lab}")
    k.label(f"{lab}_ok")
    k.e("s_mov_b64 exec, -1")

def await_flags(k, fbase, s_r, vt):
    lab = k.newlabel("L_af")
    k.e(f"s_cmp_lg_u32 s{S_W}, {ENV('POLLW', 0)}"); k.e(f"s_cbranch_scc1 {lab}")
    k.e(f"s_lshl_b32 s37, s{s_r}, 7"); k.e(f"s_add_u32 s37, s37, s{S_FL}"); k.e(f"s_add_u32 s37, s37, {fbase}")
    k.e(f"v_lshlrev_b32 v{vt}, 2, v{V_L}")
    sv = k.snapshot()
    poll(k, vt, 37, 0xff, vt+1)
    k.restore(sv)
    k.label(lab)
    k.e("s_barrier")

def poll_one(k, fbase, s_r, s_idx, vt):
    k.e(f"s_lshl_b32 s37, s{s_r}, 7"); k.e(f"s_lshl_b32 s38, s{s_idx}, 2"); k.e("s_add_u32 s37, s37, s38")
    k.e(f"s_add_u32 s37, s37, s{S_FL}"); k.e(f"s_add_u32 s37, s37, {fbase}")
    k.e(f"v_mov_b32 v{vt}, 0")
    poll(k, vt, 37, 1, vt+1)

def stats_acc(k, r4, va, first, sones):
    for j in range(4):
        c0 = "0" if (first and j == 0) else f"v{va}"
        c1 = "0" if (first and j == 0) else f"v{va+1}"
        k.e(f"v_dot2_f32_bf16 v{va}, v{r4+j}, s{sones}, {c0}")
        k.e(f"v_dot2_f32_bf16 v{va+1}, v{r4+j}, v{r4+j}, {c1}")

def stats_combine(k, src, R, vt, dst, halo, NP=12):
    k.e(f"v_lshlrev_b32 v{vt}, 3, v{V_L}"); k.e(f"v_add_u32 v{vt+1}, {src}, v{vt}")
    for p in range(NP): k.e(f"ds_read_b64 {vr(R+2*p,2)}, v{vt+1} offset:{512*p}")
    k.e("s_waitcnt lgkmcnt(0)")
    n = NP
    while n > 1:
        h = n // 2
        for j in range(h):
            k.e(f"v_add_f32 v{R+2*j}, v{R+2*j}, v{R+2*(n-1-j)}"); k.e(f"v_add_f32 v{R+2*j+1}, v{R+2*j+1}, v{R+2*(n-1-j)+1}")
        n -= h
    if halo:
        for op in ("v_permlane32_swap_b32", "v_permlane16_swap_b32"):
            k.e(f"v_mov_b32 v{R+2}, v{R}"); k.e(f"v_mov_b32 v{R+3}, v{R+1}")
            k.e("s_nop 1")
            k.e(f"{op} v{R}, v{R+2}"); k.e(f"{op} v{R+1}, v{R+3}")
            k.e("s_nop 1")
            k.e(f"v_add_f32 v{R}, v{R}, v{R+2}"); k.e(f"v_add_f32 v{R+1}, v{R+1}, v{R+3}")
        k.e(f"v_lshlrev_b32 v{vt}, 3, v{V_M}")
    k.e(f"v_mul_f32 v{R}, {f32(1/576)}, v{R}")
    k.e(f"v_mul_f32 v{R+1}, {f32(1/576)}, v{R+1}")
    k.e(f"v_fma_f32 v{R+1}, -v{R}, v{R}, v{R+1}")
    k.e(f"v_max_f32 v{R+1}, 0, v{R+1}")
    k.e(f"v_add_f32 v{R+1}, {f32(1e-5)}, v{R+1}")
    k.e(f"v_rsq_f32 v{R+2}, v{R+1}")
    k.e(f"v_add_u32 v{vt}, {dst}, v{vt}")
    k.e(f"v_mul_f32 v{R+3}, v{R}, v{R+2}")
    k.e(f"v_sub_f32 v{R+3}, 0, v{R+3}")
    k.e(f"ds_write_b64 v{vt}, {vr(R+2,2)}")
    k.e("s_waitcnt lgkmcnt(0)")

A_TILES = [9, 11, 4, 6, 0, 2, 13, 8, 0, 0, 0, 0]
def a_tile_setup(k):
    tab = sum(t << (4*i) for i, t in enumerate(A_TILES))
    k.e(f"s_mov_b32 s40, 0x{tab & 0xffffffff:x}"); k.e(f"s_mov_b32 s41, 0x{tab >> 32:x}")
    k.e(f"s_lshl_b32 s42, s{S_W}, 2"); k.e("s_lshr_b64 s[40:41], s[40:41], s42"); k.e("s_and_b32 s40, s40, 15")
    k.e(f"s_mul_i32 s41, s{S_S}, 14"); k.e("s_add_u32 s41, s41, s40")
    k.e(f"s_mul_i32 s42, s{S_W}, {2*8*224*4}"); k.e(f"s_mul_i32 s43, s{S_S}, 896"); k.e("s_add_u32 s42, s42, s43"); k.e(f"s_add_u32 s42, s42, 0x{CSQP:x}")
    k.e("s_mul_i32 s41, s41, %d" % (18*1024))
    if WQF: k.e(f"s_add_u32 s41, s41, 0x{WQF:x}")
DA = ENV("DA", 4)
def a_load1(k, i):
    k.e(f"s_add_u32 s43, s41, {i*1024}")
    k.vmem(f"buffer_load_dwordx4 {vr(AR+4*i,4)}, v{V_L16}, {WS}, s43 offen", ("a", i))
def a_load2(k, i):
    k.e(f"s_add_u32 s43, s41, {i*1024}"); k.e(f"s_add_u32 s44, s41, {(18+i)*1024}")
    k.vmem(f"buffer_load_dwordx4 {vr(AR+8*(i%9),4)}, v{V_L16}, {WS}, s43 offen", ("a0", i))
    k.vmem(f"buffer_load_dwordx4 {vr(AR+8*(i%9)+4,4)}, v{V_L16}, {WS}, s44 offen", ("a", i))
def a_prefetch(k, lo1, hi1, lo2, hi2, cs):
    lab = k.newlabel("L_apf")
    sv = k.snapshot()
    if cs:
        k.e(f"s_cmp_lt_u32 s{S_W}, 9"); k.e("s_cselect_b32 s43, 0, 0x70000000"); k.e(f"s_cmp_eq_u32 s{S_LAY}, 0"); k.e("s_cselect_b32 s43, s43, 0x70000000")
        k.e(f"v_or_b32 v6, s43, v{V_L16}")
        k.e(f"s_add_u32 s43, s42, {8*224*4}")
        k.e(f"buffer_load_dwordx4 {vr(EX,4)}, v6, {WS}, s42 offen")
        k.e(f"buffer_load_dwordx4 {vr(EX+4,4)}, v6, {WS}, s43 offen")
    k.e(f"s_cmp_lt_u32 s{S_W}, 6"); k.e(f"s_cbranch_scc1 {lab}_d")
    k.e(f"s_cmp_ge_u32 s{S_W}, 8"); k.e(f"s_cbranch_scc1 {lab}_f")
    for i in range(lo1, hi1): a_load1(k, i)
    k.e(f"s_branch {lab}_e")
    k.label(f"{lab}_f")
    for i in range(lo1, min(hi1, 9)): b_load(k, i)
    k.e(f"s_branch {lab}_e")
    k.label(f"{lab}_d")
    for i in range(lo2, hi2): a_load2(k, i)
    k.label(f"{lab}_e")
    k.restore(sv)

def b_setup(k):
    k.e(f"s_min_u32 s59, s{S_W}, 9")
    k.e(f"s_cmp_ge_u32 s59, 5"); k.e("s_cselect_b32 s45, 1, 0"); k.e("s_mul_i32 s46, s45, 5"); k.e(f"s_sub_u32 s46, s59, s46")
    k.e(f"s_mul_i32 s58, s{S_S}, 5"); k.e("s_add_u32 s58, s58, s46"); k.e("s_mul_i32 s58, s58, %d" % (18*1024))
    k.e("s_mul_i32 s59, s45, 9216"); k.e("s_add_u32 s58, s58, s59"); k.e(f"s_add_u32 s58, s58, 0x{WOF:x}")
def b_load(k, i):
    if i and i % 4 == 0: k.e(f"s_add_u32 s58, s58, 4096")
    k.vmem(f"buffer_load_dwordx4 {vr(124+4*i,4)}, v{V_L16}, {WS}, s58 offen offset:{(i%4)*1024}", ("wb", i))

def c_stream_init(k):
    k.e(f"s_mul_i32 s47, s{S_SC}, 12"); k.e(f"s_add_u32 s47, s47, s{S_W}"); k.e("s_mul_i32 s47, s47, %d" % (36*3072)); k.e(f"s_add_u32 s47, s47, 0x{WFF:x}")
    k.e(f"s_mul_i32 s48, s{S_ROT}, 3072"); k.e("s_add_u32 s48, s48, s47")
    k.e("s_add_u32 s49, s47, %d" % (18*3072))
def c_aload(k, i, tg="a"):
    if i >= 18 and (i - 18) % 6 == 0:
        k.e("s_mov_b32 s47, s49"); k.e(f"s_mul_i32 s48, s{S_ROT2}, 3072"); k.e("s_add_u32 s48, s48, s47"); k.e("s_add_u32 s49, s47, %d" % (6*3072))
    slot = i % 6
    for t in range(3):
        k.vmem(f"buffer_load_dwordx4 {vr(AR+12*slot+4*t,4)}, v{V_L16}, {WS}, s48 offen offset:{1024*t}", (tg, i) if t == 2 else (tg + "_", i))
    k.e("s_add_u32 s48, s48, 3072"); k.e("s_cmp_eq_u32 s48, s49"); k.e("s_cselect_b32 s48, s47, s48")

def touch_w(k, swidx, nwaves, t, dummy):
    G = ENV("TGRAN", 128)
    total = SXC * 12 * 36 * 3072 // G
    ni = -(-total // (32 * nwaves * 64))
    ng = 8 // SXC
    k.e(f"s_and_b32 s36, s2, {ng-1}"); k.e(f"s_mul_i32 s36, s36, {SXC*12*36*3072}"); k.e(f"s_add_u32 s36, s36, 0x{WFF:x}")
    k.e("s_lshr_b32 s37, s2, 3"); k.e(f"s_mul_i32 s37, s37, {nwaves}"); k.e(f"s_add_u32 s37, s37, s{swidx}"); k.e(f"s_mul_i32 s37, s37, {ni*64}")
    k.e(f"s_mov_b32 s38, {total}")
    for j in range(ni):
        k.e(f"v_add_u32 v{t}, s37, v{V_L}")
        if j: k.e(f"v_add_u32 v{t}, {64*j}, v{t}")
        k.e(f"v_min_u32 v{t}, s38, v{t}")
        k.e(f"v_lshlrev_b32 v{t}, {G.bit_length()-1}, v{t}")
        k.vmem(f"buffer_load_dword v{dummy}, v{t}, {WS}, s36 offen", "touch")

def phase_A(k):
    k.c("================ phase A")
    ACC, BB = 8, 28
    VB1, VB2, VH = 5, 6, 7
    if FS in ("", "A"): stamp(k, 1)
    k.e(f"s_mul_i32 s39, s{S_R}, {TILEB}"); k.e(f"s_add_u32 s39, s39, s{S_XIN}")
    k.e(f"s_mul_i32 s36, s{S_W}, 6144"); k.e("s_add_u32 s37, s39, s36"); k.e("s_add_u32 s38, s37, 4096")
    k.vm = []
    for i in range(6):
        k.vmem(f"buffer_load_dwordx4 {vr(8+4*i,4)}, v{V_L16}, {WS}, s{37 if i < 4 else 38} offen offset:{(i%4)*1024} sc1", ("x", i))
    k.e(f"v_lshlrev_b32 v{VB1}, 10, v{V_G}"); k.e(f"v_lshl_add_u32 v{VB1}, v{V_M}, 4, v{VB1}")
    k.e(f"s_cmp_eq_u32 s{S_R}, 0"); k.e("s_cselect_b32 s38, 0x70000000, 0")
    k.e(f"v_add_u32 v{VH}, s38, v{VB1}")
    k.e(f"s_mul_i32 s50, s{S_CL}, 6"); k.e(f"s_add_u32 s50, s50, s{S_WL}")
    k.e("s_lshl_b32 s37, s50, 12"); k.e("s_add_u32 s37, s37, s39"); k.e(f"s_sub_u32 s37, s37, {TILEB-768}")
    k.vmem(f"buffer_load_dwordx4 {vr(32,4)}, v{VH}, {WS}, s37 offen sc1", ("x", 6))
    k.e(f"s_cmp_ge_u32 s{S_WL}, 2"); k.e("s_cselect_b32 s38, 0x70000000, 0"); k.e(f"v_or_b32 v{VB2}, s38, v{VH}")
    k.e(f"s_add_u32 s37, s37, {4*4096}")
    k.vmem(f"buffer_load_dwordx4 {vr(36,4)}, v{VB2}, {WS}, s37 offen sc1", ("x", 7))
    a_tile_setup(k)
    PA = ENV("PA", 2)
    b_setup(k)
    c_stream_init(k)
    E1, E2 = ENV("E1", 18), ENV("E2", 9)
    def stage(extra):
        k.e("s_mov_b32 s38, 0x3f803f80")
        k.e(f"v_add_u32 v{VB2}, s36, v{V_L16}")
        for i in range(8):
            if extra is not None: k.e(f"s_waitcnt vmcnt({7-i+extra})")
            if i < 6:
                k.e(f"ds_write_b128 v{VB2}, {vr(8+4*i,4)} offset:{1024*i}")
                if extra is not None: stats_acc(k, 8+4*i, 40, i == 0, 38)
            else:
                if i == 6:
                    k.e("s_lshl_b32 s37, s50, 10"); k.e(f"s_add_u32 s37, s37, {A_HL}"); k.e(f"v_add_u32 v{VB2}, s37, v{V_L16}")
                    k.e(f"ds_write_b128 v{VB2}, {vr(8+4*i,4)}")
                if extra is not None: stats_acc(k, 8+4*i, 42, i == 6, 38)
        if extra is not None: k.e(f"s_waitcnt vmcnt({extra-2})")
    k.e(f"s_cmp_eq_u32 s{S_EARLY}, 0"); k.e("s_cbranch_scc1 L_A_late")
    k.e("s_waitcnt vmcnt(0)")
    a_prefetch(k, 0, E1, 0, E2, False)
    k.e("s_mov_b32 s38, 0x3f803f80")
    for i in range(8): stats_acc(k, 8+4*i, 40 if i < 6 else 42, i in (0, 6), 38)
    if not GX: k.e("s_barrier")
    stage(None)
    k.e("s_branch L_A_st")
    k.label("L_A_late")
    if GX:
        k.e(f"s_cmp_lg_u32 s{S_LAY}, 0"); k.e("s_cbranch_scc1 L_A_nob1")
    k.e("s_barrier")
    if GX: k.label("L_A_nob1")
    a_prefetch(k, 0, PA, 0, PA//2, True)
    stage(PA + 2)
    k.label("L_A_st")
    def late(fn):
        lab = k.newlabel("L_lt")
        k.e(f"s_cmp_lg_u32 s{S_EARLY}, 0"); k.e(f"s_cbranch_scc1 {lab}")
        fn()
        k.label(lab)
    k.e(f"s_cmp_ge_u32 s{S_WL}, 2"); k.e("s_cbranch_scc1 L_A_xs")
    k.e(f"ds_write_b128 v{VB2}, {vr(36,4)} offset:4096")
    k.label("L_A_xs")
    k.e(f"s_lshl_b32 s37, s{S_W}, 9"); k.e(f"v_lshlrev_b32 v{VB2}, 3, v{V_L}"); k.e(f"v_add_u32 v{VB2}, s37, v{VB2}"); k.e(f"v_add_u32 v{VB2}, {A_PM}, v{VB2}")
    k.e(f"ds_write_b64 v{VB2}, v[40:41]"); k.e(f"ds_write_b64 v{VB2}, v[42:43] offset:6144")
    k.e(f"s_cmp_lg_u32 s{S_LAY}, 0"); k.e("s_cbranch_scc1 L_A_nocq")
    k.e(f"s_waitcnt vmcnt({PA})")
    for j in range(4): k.e(f"v_add_f32 v{EX+j}, v{EX+j}, v{EX+4+j}")
    k.e(f"s_lshl_b32 s37, s{S_W}, 10"); k.e(f"s_add_u32 s37, s37, {A_PQ}"); k.e(f"v_add_u32 v{VB2}, s37, v{V_L16}")
    k.e(f"ds_write_b128 v{VB2}, {vr(EX,4)}")
    k.label("L_A_nocq")
    k.e("s_waitcnt lgkmcnt(0)")
    if FS in ("", "A"): stamp(k, 2)
    if GX:
        lds_signal(k, CA_X, 44, byclass=True)
        k.e("s_waitcnt lgkmcnt(0)")
    else:
        k.e("s_barrier")
    k.lg = []
    def gateA(ks, query=False):
        if not GX or ks % 6: return False
        if query: return True
        lds_wait(k, CA_X + ks//6, 4, EX)
    if FS == "G": stamp(k, 2)
    k.e(f"s_cmp_ge_u32 s{S_W}, 8"); k.e("s_cbranch_scc1 L_A_free")
    k.e(f"v_add_u32 v{VB2}, 49152, v{VB1}")
    k.e(f"v_add_u32 v{VH}, {A_HL}, v{V_L16}")
    def mk_bread(mts):
        def bread(ks, mi, reg):
            mt = mts[mi]
            if mt == 0:
                k.lds(f"ds_read_b128 {vr(reg,4)}, v{VH} offset:{ks*1024}", ("b", ks))
            else:
                off = ks*4096 + (mt-1)*256; base = VB1
                if off >= 49152: off -= 49152; base = VB2
                k.lds(f"ds_read_b128 {vr(reg,4)}, v{base} offset:{off}", ("b", ks))
        return bread
    def epi_stats(mts, T):
        sa = T + 5; ST = T + 6
        if FS == "G": stamp(k, 4)
        lds_wait(k, CA_ST, 3, T)
        k.e(f"v_lshlrev_b32 v{sa}, 3, v{V_M}"); k.e(f"v_add_u32 v{sa}, {A_ST}, v{sa}")
        for mi, mt in enumerate(mts):
            k.lds(f"ds_read_b64 {vr(ST+2*mi,2)}, v{sa} offset:{mt*128}", "str")
    def epilogue(tadd, mts, accf, csr, vpath, T):
        a0, a1, p, H, t, sa = T, T+1, T+2, T+3, T+4, T+5
        ST = T + 6; U = T + 16
        k.e(f"v_lshlrev_b32 v{p}, 2, v{V_G}")
        k.e(f"s_add_u32 s36, s40, {tadd}"); k.e("s_lshl_b32 s36, s36, 4")
        k.e(f"v_add_u32 v{p}, s36, v{p}")
        k.e(f"s_mov_b32 s36, {A_CQ}"); k.e(f"v_lshl_add_u32 v{sa}, v{p}, 2, s36")
        k.lds(f"ds_read_b128 {vr(csr,4)}, v{sa}", "str")
        for a in (a0, a1):
            divmod_const(k, H, None, p, 18, 232, 36)
            if not vpath:
                k.e(f"s_movk_i32 s36, {QPL-36}")
                k.e(f"v_mul_u32_u24 v{a}, s36, v{H}")
                k.e(f"v_lshl_add_u32 v{a}, v{p}, 1, v{a}")
                k.e(f"v_mul_u32_u24 v{t}, {QP}, v{V_M}")
                k.e(f"s_mov_b32 s36, {A_QK}")
            else:
                k.e(f"s_movk_i32 s36, {VPL-72}")
                k.e(f"v_mul_u32_u24 v{a}, s36, v{H}")
                k.e(f"v_lshl_add_u32 v{a}, v{p}, 2, v{a}")
                k.e(f"v_mul_u32_u24 v{t}, 0x{VPP:x}, v{V_M}")
                k.e(f"s_mov_b32 s36, {A_VP - 8*VPL}")
            k.e(f"v_add3_u32 v{a}, v{a}, v{t}, s36")
            if a == a0: k.e(f"v_add_u32 v{p}, 2, v{p}")
        if vpath:
            k.e("s_mov_b32 s36, 0x05040100"); k.e("s_mov_b32 s37, 0x07060302")
        k.wait(lg=["str"])
        for mi, mt in enumerate(mts):
            r = accf(mi)
            for j in range(4):
                k.e(f"v_mul_f32 v{r+j}, v{r+j}, v{ST+2*mi}")
                k.e(f"v_fmac_f32 v{r+j}, v{ST+2*mi+1}, v{csr+j}")
            k.e(f"v_cvt_pk_bf16_f32 v{r}, v{r}, v{r+1}")
            k.e(f"v_cvt_pk_bf16_f32 v{r+1}, v{r+2}, v{r+3}")
            if not vpath:
                k.lds(f"ds_write_b32 v{a0}, v{r} offset:{mt*16*QP}", "qw")
                k.lds(f"ds_write_b32 v{a1}, v{r+1} offset:{mt*16*QP}", "qw")
        if vpath:
            for mi, mt in enumerate(mts):
                r = accf(mi); u = U + 4*(mi & 1)
                if mi:
                    rp = accf(mi-1)
                    k.e(f"v_mov_b32_dpp v{r+2}, v{rp} row_shl:14 row_mask:0xf bank_mask:0xf")
                    k.e(f"v_mov_b32_dpp v{r+3}, v{rp+1} row_shl:14 row_mask:0xf bank_mask:0xf")
                k.e(f"v_mov_b32_dpp v{r+2}, v{r} row_shr:2 row_mask:0xf bank_mask:0xf")
                k.e(f"v_mov_b32_dpp v{r+3}, v{r+1} row_shr:2 row_mask:0xf bank_mask:0xf")
                k.e(f"v_perm_b32 v{u}, v{r+2}, v{r}, s36"); k.e(f"v_perm_b32 v{u+1}, v{r+2}, v{r}, s37")
                k.e(f"v_perm_b32 v{u+2}, v{r+3}, v{r+1}, s36"); k.e(f"v_perm_b32 v{u+3}, v{r+3}, v{r+1}, s37")
                k.lds(f"ds_write_b64 v{a0}, {vr(u,2)} offset:{mt*16*VPP}", "qw")
                k.lds(f"ds_write_b64 v{a1}, {vr(u+2,2)} offset:{mt*16*VPP}", "qw")
    def pair_path(mts, accb, bb, bstride, BD):
        nm = len(mts)
        k.lg = []
        k.vm = ["cs", "cs"] + [x for i in range(PA//2) for x in (("a0", i), ("a", i))]
        DA2 = ENV("DA2", 3)
        st = dict(c=0, b=0, n=PA//2)
        def ld(i):
            if i < E2: late(lambda: a_load2(k, i))
            else: a_load2(k, i)
        def pre():
            while st["n"] < DA2: ld(st["n"]); st["n"] += 1
        def after(ks):
            if FS == "G" and ks == 8: stamp(k, 3)
            while st["n"] < 18 and st["n"] <= ks + (DA2 if st["n"] < E2 else max(DA2, E2)):
                ld(st["n"]); st["n"] += 1
            if ks >= 9:
                free = 8*(ks - 8)
                while st["c"] < CPA and 12*(st["c"]+1) <= free:
                    c_aload(k, st["c"], "c"); st["c"] += 1
                while st["b"] < 9 and 36 + 4*(st["b"]+1) <= free:
                    b_load(k, st["b"]); st["b"] += 1
        pre()
        gemm_loop(k, 18, [(mi, t) for mi in range(nm) for t in range(2)], lambda mi, t: accb + 4*nm*t + 4*mi, lambda par, mi: bb + bstride*par + 4*mi,
                  lambda i_, t: AR + 8*(i_ % 9) + 4*t, mk_bread(mts), 0, nm, after, None, BD=BD, gate=gateA)
        epi_stats(mts, bb)
    m5 = [0, 1, 2, 3, 4]; m4 = [1, 2, 3, 4]
    k.e(f"s_cmp_ge_u32 s{S_W}, 6"); k.e("s_cbranch_scc1 L_A_single")
    k.e(f"s_cmp_ge_u32 s{S_W}, 4"); k.e("s_cbranch_scc1 L_A_qpair")
    pair_path(m5, 8, 48, 20, 1)
    sv = k.snapshot()
    k.e(f"s_cmp_lt_u32 s{S_W}, 2"); k.e("s_cbranch_scc1 L_A_vpair")
    epilogue(0, m5, lambda mi: 8 + 4*mi, EX, False, 48)
    epilogue(1, m5, lambda mi: 28 + 4*mi, EX+4, False, 48)
    k.e("s_branch L_A_att")
    k.label("L_A_vpair")
    k.restore(sv)
    epilogue(0, m5, lambda mi: 8 + 4*mi, EX, True, 48)
    epilogue(1, m5, lambda mi: 28 + 4*mi, EX+4, True, 48)
    k.e("s_branch L_A_att")
    k.label("L_A_qpair")
    pair_path(m4, 8, 40, 16, 2)
    epilogue(0, m4, lambda mi: 8 + 4*mi, EX, False, 40)
    epilogue(1, m4, lambda mi: 24 + 4*mi, EX+4, False, 40)
    k.e("s_branch L_A_att")
    k.label("L_A_single")
    k.lg = []
    k.vm = ["cs", "cs"] + [("a", i) for i in range(PA)]
    def ld1(i):
        if i < E1: late(lambda: a_load1(k, i))
        else: a_load1(k, i)
    def pre1():
        for i in range(PA, DA): ld1(i)
    def after1(ks):
        if ks + DA < 18: ld1(ks + DA)
        if ks in (9, 11, 13) and (ks - 9)//2 < CPA: c_aload(k, (ks - 9)//2, "c")
        if ks >= 9: b_load(k, ks - 9)
    pre1()
    gemm_loop(k, 18, [(mi, 0) for mi in range(5)], lambda mi, t: ACC + 4*mi, lambda par, mi: BB + 20*par + 4*mi,
              lambda i_, t: AR + 4*i_, mk_bread(m5), 0, 5, after1, None, BD=2, gate=gateA)
    epi_stats(m5, 28)
    sv = k.snapshot()
    k.e("s_cmp_ge_u32 s40, 9"); k.e("s_cbranch_scc1 L_A_vp")
    epilogue(0, m5, lambda mi: ACC + 4*mi, EX, False, 28)
    k.e("s_branch L_A_att")
    k.label("L_A_vp")
    k.restore(sv)
    k.e("s_mov_b32 exec_hi, 0")
    k.e("s_nop 4")
    epilogue(0, m5, lambda mi: ACC + 4*mi, EX, True, 28)
    k.e("s_mov_b64 exec, -1")
    k.e("s_branch L_A_att")
    k.label("L_A_free")
    k.e(f"s_cmp_eq_u32 s{S_W}, 9"); k.e("s_cbranch_scc1 L_A_fr2")
    if GX:
        for c in range(3): lds_wait(k, CA_X + c, 4, 8)
    k.e(f"s_cmp_eq_u32 s{S_W}, 8"); k.e("s_cbranch_scc1 L_A_combq")
    k.e(f"s_cmp_eq_u32 s{S_W}, 11"); k.e("s_cbranch_scc1 L_A_combh")
    stats_combine(k, A_PM, 8, VB2, A_ST + 128, False)
    k.e("s_branch L_A_combd")
    k.label("L_A_combh")
    stats_combine(k, A_PH, 8, VB2, A_ST, True)
    k.e("s_branch L_A_combd")
    k.label("L_A_combq")
    k.e(f"s_cmp_lg_u32 s{S_LAY}, 0"); k.e("s_cbranch_scc1 L_A_combd")
    k.e(f"v_add_u32 v{VB2}, {A_PQ}, v{V_L16}")
    for p in range(9): k.e(f"ds_read_b128 {vr(8+4*p,4)}, v{VB2} offset:{1024*p}")
    k.e(f"v_add_u32 v{VB2}, {A_CQ}, v{V_L16}")
    k.e("s_waitcnt lgkmcnt(0)")
    for p in range(1, 9):
        for j in range(4): k.e(f"v_add_f32 v{8+j}, v{8+j}, v{8+4*p+j}")
    k.e(f"ds_write_b128 v{VB2}, v[8:11]")
    k.e("s_waitcnt lgkmcnt(0)")
    k.label("L_A_combd")
    lds_signal(k, CA_ST, 8)
    k.e("s_waitcnt lgkmcnt(0)"); k.lg = []
    k.label("L_A_fr2")
    k.label("L_A_att")
    k.vm = []; k.lg = []
    k.e("s_waitcnt lgkmcnt(0)")
    if FS in ("", "A"): stamp(k, 3)
    if FS == "G": stamp(k, 5)
    k.e("s_barrier")
    if FS == "A": stamp(k, 4)
    if FS == "G": stamp(k, 6)
    k.e(f"s_cmp_ge_u32 s{S_W}, 8"); k.e("s_cbranch_scc1 L_A_cs")
    VI, VHH, VQ, VK, VV = 5, 6, 7, 86, 87
    Q, KK, VP_, OA, PP, T0 = 8, 20, 20, 68, EX, EX+4
    att_start = len(k.lines)
    VHD = EX+6
    k.e(f"s_lshl_b32 s41, s{S_W}, 3")
    k.e(f"v_and_b32 v{VI}, 7, v{V_L}"); k.e(f"v_add_u32 v{VI}, s41, v{VI}")
    k.e(f"v_lshrrev_b32 v{VHH}, 5, v{V_L}")
    k.e(f"v_bfe_u32 v{VHD}, v{V_L}, 3, 2")
    k.e(f"v_mul_u32_u24 v{VQ}, {QP}, v{VI}")
    k.e(f"v_mul_u32_u24 v{VK}, 0x{QPL:x}, v{VHD}")
    k.e(f"s_mov_b32 s36, {A_QK + 16*QP}")
    k.e(f"v_add3_u32 v{VQ}, v{VQ}, v{VK}, s36")
    k.e(f"v_mul_u32_u24 v{VK}, 0x{8*QP:x}, v{VHH}"); k.e(f"v_sub_u32 v{VK}, v{VQ}, v{VK}")
    k.e(f"v_lshlrev_b32 v{T0}, 3, v{VHH}"); k.e(f"v_sub_u32 v{T0}, v{VI}, v{T0}")
    k.e(f"v_add_u32 v{VV}, 12, v{T0}"); k.e(f"v_mul_u32_u24 v{VV}, 0x{VPP:x}, v{VV}")
    k.e(f"v_mul_u32_u24 v{T0+1}, 0x{VPL:x}, v{VHD}"); k.e(f"s_mov_b32 s36, {A_VP}"); k.e(f"v_add3_u32 v{VV}, v{VV}, v{T0+1}, s36")
    def rdvec(reg, va, off, tag):
        k.lds(f"ds_read_b128 {vr(reg,4)}, v{va} offset:{off}", tag)
        k.lds(f"ds_read_b128 {vr(reg+4,4)}, v{va} offset:{off+16}", tag)
        k.lds(f"ds_read_b128 {vr(reg+8,4)}, v{va} offset:{off+32}", tag)
    rdvec(Q, VQ, 0, "q")
    for j in range(4): rdvec(KK + 12*j, VK, TSTR - 2*j*QP, ("k", j))
    k.e(f"s_lshl_b32 s36, s{S_R}, 6"); k.e(f"v_add_u32 v{T0}, s36, v{T0}")
    for j in range(4):
        k.e(f"v_cmp_le_i32 s[{50+2*j}:{51+2*j}], {2*j}, v{T0}")
    k.wait(lg=["q", ("k", 1)])
    for jj in range(9):
        for j in range(2):
            c = "0" if jj == 0 else f"v{PP+j}"
            k.e(f"v_dot2_f32_bf16 v{PP+j}, v{Q+jj}, v{KK+12*j+jj}, {c}")
    def rdvp(pr):
        off = (4*VPP if pr == 0 else 0)
        for q4 in range(5):
            k.lds(f"ds_read_b128 {vr(VP_+24*pr+4*q4,4)}, v{VV} offset:{off+16*q4}", ("v", pr))
    rdvp(0)
    k.wait(lg=[("k", 3)])
    for jj in range(9):
        for j in range(2, 4):
            c = "0" if jj == 0 else f"v{PP+j}"
            k.e(f"v_dot2_f32_bf16 v{PP+j}, v{Q+jj}, v{KK+12*j+jj}, {c}")
    rdvp(1)
    sc = (18 ** -0.5) * math.log2(math.e)
    k.e(f"v_mov_b32 v{T0}, {f32(-1e30)}")
    k.e("s_nop 1")
    for j in range(4): k.e(f"v_mul_f32 v{PP+j}, {f32(sc)}, v{PP+j}")
    for j in range(4): k.e(f"v_cndmask_b32 v{PP+j}, v{T0}, v{PP+j}, s[{50+2*j}:{51+2*j}]")
    k.e(f"v_max3_f32 v{T0}, v{PP}, v{PP+1}, v{PP+2}")
    k.e(f"v_max_f32 v{T0}, v{T0}, v{PP+3}")
    k.e(f"v_mov_b32 v{T0+1}, v{T0}")
    k.e("s_nop 1")
    k.e(f"v_permlane32_swap_b32 v{T0}, v{T0+1}")
    k.e("s_nop 1")
    k.e(f"v_max_f32 v{T0}, v{T0}, v{T0+1}")
    for j in range(4): k.e(f"v_sub_f32 v{PP+j}, v{PP+j}, v{T0}")
    for j in range(4): k.e(f"v_exp_f32 v{PP+j}, v{PP+j}")
    k.e("s_nop 0")
    k.e(f"v_cvt_pk_bf16_f32 v{PP}, v{PP}, v{PP+1}")
    k.e(f"v_cvt_pk_bf16_f32 v{PP+2}, v{PP+2}, v{PP+3}")
    k.e("s_mov_b32 s36, 0x3f803f80")
    k.e(f"v_dot2_f32_bf16 v{T0}, v{PP}, s36, 0")
    k.e(f"v_dot2_f32_bf16 v{T0}, v{PP+2}, s36, v{T0}")
    k.wait(lg=[("v", 0)])
    for d in range(18): k.e(f"v_dot2_f32_bf16 v{OA+d}, v{VP_+d}, v{PP}, 0")
    k.e(f"v_mov_b32 v{T0+1}, v{T0}")
    k.wait(lg=[("v", 1)])
    for d in range(18): k.e(f"v_dot2_f32_bf16 v{OA+d}, v{VP_+24+d}, v{PP+2}, v{OA+d}")
    k.e(f"v_permlane32_swap_b32 v{T0}, v{T0+1}")
    k.e("s_nop 1")
    k.e(f"v_add_f32 v{T0}, v{T0}, v{T0+1}")
    k.e(f"v_rcp_f32 v{T0}, v{T0}")
    pairs = [(d, d+8) for d in range(8)] + [(16, 17)]
    for a, b_ in pairs: k.e(f"v_permlane32_swap_b32 v{OA+a}, v{OA+b_}")
    k.e("s_nop 1")
    for a, b_ in pairs: k.e(f"v_add_f32 v{OA+a}, v{OA+a}, v{OA+b_}")
    for a, b_ in pairs: k.e(f"v_mul_f32 v{OA+a}, v{OA+a}, v{T0}")
    k.e(f"v_cvt_pk_bf16_f32 v{Q+4}, v{OA+16}, v{OA+16}")
    k.e(f"v_lshlrev_b32 v{VI}, 4, v{VI}")
    k.e(f"v_lshl_add_u32 v{VHD}, v{VHD}, 1, v{VHH}")
    k.e(f"v_lshl_add_u32 v{VK}, v{VHD}, 1, v{VI}"); k.e(f"v_add_u32 v{VK}, {A_SCR}, v{VK}")
    k.e(f"ds_write_b16 v{VK}, v{Q+4}")
    k.e(f"v_add_u32 v{VV}, {A_SCR}, v{VI}")
    for j in range(4): k.e(f"v_cvt_pk_bf16_f32 v{Q+j}, v{OA+2*j}, v{OA+2*j+1}")
    k.e("s_waitcnt lgkmcnt(0)")
    k.e(f"ds_read_b128 {vr(Q+4,4)}, v{VV}")
    k.e(f"v_lshl_add_u32 v{VQ}, v{VHD}, 10, v{VI}")
    k.e(f"s_mul_i32 s36, s{S_S}, 9216"); k.e(f"s_mul_i32 s37, s{S_R}, {TILEB}"); k.e("s_add_u32 s36, s36, s37"); k.e(f"s_add_u32 s36, s36, s{S_O}")
    k.e("s_add_u32 s38, s36, 8192")
    if FS == "A": stamp(k, 5)
    k.e(f"buffer_store_dwordx4 {vr(Q,4)}, v{VQ}, {WS}, s36 offen{SC('o')}")
    k.e("s_mov_b64 exec, 0xff")
    k.e("s_waitcnt lgkmcnt(0)")
    k.e(f"buffer_store_dwordx4 {vr(Q+4,4)}, v{VI}, {WS}, s38 offen{SC('o')}")
    k.e("s_mov_b64 exec, -1")
    publish(k, CA_DONE, 8, F_A, S_R, S_S, 20, sc=SC('o'))
    if FS == "A": stamp(k, 6)
    k.e("s_branch L_A_end")
    k.label("L_A_cs")
    k.e(f"s_cmp_ge_u32 s{S_W}, 10"); k.e("s_cbranch_scc1 L_A_nb")
    for i in range(PA, 9): b_load(k, i)
    k.label("L_A_nb")
    for i in range(CPA): c_aload(k, i, "c")
    k.vm = []
    k.e(f"s_cmp_lg_u32 s{S_LAY}, 0"); k.e("s_cbranch_scc1 L_A_end")
    k.e(f"s_cmp_eq_u32 s{S_WL}, 3"); k.e("s_cbranch_scc1 L_A_b1")
    k.e(f"s_mul_i32 s36, s{S_SC}, 2304"); k.e(f"s_lshl_b32 s37, s{S_WL}, 10"); k.e("s_add_u32 s36, s36, s37"); k.e(f"s_add_u32 s36, s36, 0x{CSP:x}")
    for i in range(18):
        k.e(f"buffer_load_dwordx4 {vr(8+4*i,4)}, v{V_L16}, {WS}, s36 offen")
        if i < 17: k.e(f"s_add_u32 s36, s36, {4608*4}")
    k.e(f"s_add_u32 s37, s37, {C_CS}"); k.e(f"v_add_u32 v5, s37, v{V_L16}")
    k.e("s_waitcnt vmcnt(0)")
    for i in range(17):
        for j in range(4): k.e(f"v_add_f32 v{76+j}, v{76+j}, v{8+4*i+j}")
    k.e("ds_write_b128 v5, v[76:79]")
    k.e("s_waitcnt lgkmcnt(0)")
    k.e("s_branch L_A_end")
    k.label("L_A_b1")
    k.e(f"s_mul_i32 s38, s{S_SC}, 1152"); k.e(f"s_mov_b32 m0, {C_B1}"); k.e("s_nop 0")
    k.e(f"buffer_load_dwordx4 v{V_L16}, s[12:15], s38 offen lds")
    k.e(f"buffer_load_dwordx4 v{V_L16}, s[12:15], s38 offen offset:1024 lds")
    k.e("s_waitcnt vmcnt(0)")
    k.label("L_A_end")

def phase_B(k):
    k.c("================ phase B")
    VB1, VB2, VR_ = 5, 6, 7
    ACC, BB, RX, WB = 8, 24, 72, 124
    k.vm = []; k.lg = []
    k.e(f"s_mul_i32 s39, s{S_R}, {TILEB}")
    k.e(f"s_cmp_ge_u32 s{S_W}, 5"); k.e("s_cselect_b32 s45, 1, 0"); k.e("s_mul_i32 s46, s45, 5"); k.e(f"s_sub_u32 s46, s{S_W}, s46")
    k.e(f"v_lshrrev_b32 v{VR_}, 1, v{V_G}"); k.e(f"v_lshlrev_b32 v{VR_}, 10, v{VR_}")
    k.e(f"v_and_b32 v{VB2}, 31, v{V_L}"); k.e(f"v_lshl_add_u32 v{VR_}, v{VB2}, 4, v{VR_}")
    k.e(f"s_mul_i32 s40, s{S_S}, 9216"); k.e("s_add_u32 s40, s40, s39"); k.e("s_lshl_b32 s41, s46, 11"); k.e("s_add_u32 s40, s40, s41")
    k.e("s_lshl_b32 s41, s45, 9"); k.e("s_add_u32 s40, s40, s41")
    k.e("s_cmp_eq_u32 s46, 4"); k.e("s_cselect_b32 s41, 2, 4"); k.e("s_cmp_gt_u32 s46, 4"); k.e("s_cselect_b32 s41, 0, s41")
    k.e(f"v_cmp_gt_u32 vcc, s41, v{V_G}")
    k.e(f"v_mov_b32 v{VB2}, 0x70000000")
    k.e(f"s_add_u32 s41, s40, s{S_XIN}")
    k.e(f"v_cndmask_b32 v{VR_}, v{VB2}, v{VR_}, vcc")
    k.vmem(f"buffer_load_dwordx4 {vr(RX,4)}, v{VR_}, {WS}, s41 offen sc1", "r")
    NP1 = 3
    await_flags(k, F_A, S_R, 8)
    if FS in ("", "A", "B"): stamp(k, {"A": 7, "B": 1}.get(FS, 4))
    k.e(f"s_mul_i32 s36, s{S_W}, 6144"); k.e("s_add_u32 s37, s39, s36"); k.e(f"s_add_u32 s37, s37, s{S_O}")
    for i in range(6):
        if i % 4 == 0:
            k.e(f"s_add_u32 m0, s36, {1024*i}")
            k.e("s_nop 0") if i == 0 else k.e("s_add_u32 s37, s37, 4096")
        k.vmem(f"buffer_load_dwordx4 v{V_L16}, {WS}, s37 offen offset:{(i%4)*1024} sc1 lds", "o")
    k.e(f"v_lshlrev_b32 v{VB1}, 10, v{V_G}"); k.e(f"v_lshl_add_u32 v{VB1}, v{V_M}, 4, v{VB1}")
    k.e("s_mul_i32 s41, s45, %d" % (9*4096)); k.e(f"v_add_u32 v{VB1}, s41, v{VB1}")
    k.e("s_lshl_b32 s41, s45, 9"); k.e("s_xor_b32 s42, s41, 512")
    k.e(f"v_add_u32 v{VB2}, s42, v{VB1}"); k.e(f"v_add_u32 v{VB1}, s41, v{VB1}")
    k.wait(vm0=True)
    if FS == "B": stamp(k, 2)
    k.e("s_barrier")
    if FS == "B": stamp(k, 3)
    vm_keep = list(k.vm)
    k.e(f"s_cmp_ge_u32 s{S_W}, 10"); k.e("s_cbranch_scc1 L_B_idle")
    def bread(ks, mi, reg):
        k.lds(f"ds_read_b128 {vr(reg,4)}, v{VB1 if mi < 2 else VB2} offset:{ks*4096 + (mi&1)*256}", ("b", ks))
    def afterB(ks):
        if ks % 2 == 0 and CPA + ks // 2 < 3: c_aload(k, CPA + ks // 2, "c")
    gemm_loop(k, 9, [(2, 0), (3, 0), (0, 0), (1, 0)], lambda mi, t: ACC + 4*mi, lambda par, mi: BB + 16*par + 4*mi, lambda i_, t: WB + 4*i_,
              bread, 0, 4, afterB, None, BD=2, atag=lambda ks: "none")
    k.e(f"s_lshl_b32 s41, s{S_W}, 11"); k.e(f"s_add_u32 s41, s41, {B_XB}"); k.e(f"v_add_u32 v{VB1}, s41, v{V_L16}")
    k.e(f"s_add_u32 s42, s{S_W}, 5"); k.e(f"s_sub_u32 s43, s{S_W}, 5"); k.e(f"s_cmp_ge_u32 s{S_W}, 5"); k.e("s_cselect_b32 s42, s43, s42")
    k.e("s_lshl_b32 s42, s42, 11"); k.e(f"s_add_u32 s42, s42, {B_XB}"); k.e(f"v_add_u32 v{VB2}, s42, v{V_L16}")
    k.e("s_nop 0")
    if FS == "B": stamp(k, 4)
    k.e(f"ds_write_b128 v{VB1}, {vr(ACC+8,4)}"); k.e(f"ds_write_b128 v{VB1}, {vr(ACC+12,4)} offset:1024")
    k.e("s_waitcnt lgkmcnt(0)")
    k.e("s_barrier")
    k.e(f"ds_read_b128 {vr(ACC+8,4)}, v{VB2}"); k.e(f"ds_read_b128 {vr(ACC+12,4)}, v{VB2} offset:1024")
    k.e(f"s_add_u32 s41, s40, s{S_X1}")
    k.e("s_waitcnt lgkmcnt(0)")
    for j in range(8): k.e(f"v_add_f32 v{ACC+j}, v{ACC+j}, v{ACC+8+j}")
    k.e("s_nop 1")
    for j in range(4): k.e(f"v_permlane16_swap_b32 v{ACC+j}, v{ACC+4+j}")
    k.e("s_nop 1")
    for j in range(4):
        k.e(f"v_lshlrev_b32 v{BB}, 16, v{RX+j}"); k.e(f"v_and_b32 v{BB+1}, 0xffff0000, v{RX+j}")
        k.e(f"v_add_f32 v{ACC+2*j}, v{ACC+2*j}, v{BB}"); k.e(f"v_add_f32 v{ACC+2*j+1}, v{ACC+2*j+1}, v{BB+1}")
        k.e(f"v_cvt_pk_bf16_f32 v{RX+j}, v{ACC+2*j}, v{ACC+2*j+1}")
    if FS == "B": stamp(k, 5)
    k.e(f"buffer_store_dwordx4 {vr(RX,4)}, v{VR_}, {WS}, s41 offen sc1")
    publish(k, CB_DONE, 10, F_B, S_R, S_S, 24)
    if FS == "B": stamp(k, 6)
    k.e("s_branch L_B_end")
    k.label("L_B_idle")
    for i in range(CPA, 3): c_aload(k, i, "c")
    k.e("s_barrier")
    k.label("L_B_end")
    k.vm = vm_keep; k.lg = []
    NP2 = ENV("NP2", 3)
    for i in range(NP1, NP2): c_aload(k, i)
    return NP2

def phase_C(k, npre):
    k.c("================ phase C")
    VB1, VB2, VT = 5, 6, 7
    ACC, BB = 8, 56
    D = 6
    k.e(f"s_mul_i32 s39, s{S_RC}, {TILEB}")
    await_flags(k, F_B, S_RC, 8)
    if FS in ("", "B", "C"): stamp(k, {"B": 7, "C": 1}.get(FS, 5))
    k.e(f"s_mul_i32 s36, s{S_W}, 6144"); k.e("s_add_u32 s37, s36, s39"); k.e(f"s_add_u32 s37, s37, s{S_X1}")
    for i in range(6):
        if i and i % 4 == 0: k.e("s_add_u32 s37, s37, 4096")
        k.e(f"buffer_load_dwordx4 {vr(8+4*i,4)}, v{V_L16}, {WS}, s37 offen offset:{(i%4)*1024} sc1")
    k.e(f"s_lshl_b32 s37, s{S_ROT}, 12"); k.e("s_sub_u32 s36, s36, s37"); k.e(f"s_add_u32 s36, s36, {TILEB}")
    k.e("s_mov_b32 s38, 0x3f803f80")
    for i in range(6):
        k.e(f"s_sub_u32 s37, s36, {TILEB}"); k.e(f"s_cmp_ge_u32 s36, {TILEB}"); k.e("s_cselect_b32 s36, s37, s36")
        k.e(f"v_add_u32 v{VB2}, s36, v{V_L16}")
        k.e(f"s_waitcnt vmcnt({5-i})")
        k.e(f"ds_write_b128 v{VB2}, {vr(8+4*i,4)}")
        stats_acc(k, 8+4*i, 44, i == 0, 38)
        k.e("s_add_u32 s36, s36, 1024")
    k.e(f"s_lshl_b32 s37, s{S_W}, 9"); k.e(f"v_lshlrev_b32 v{VB2}, 3, v{V_L}"); k.e(f"v_add_u32 v{VB2}, s37, v{VB2}"); k.e(f"v_add_u32 v{VB2}, {C_PM}, v{VB2}")
    k.e(f"ds_write_b64 v{VB2}, v[44:45]")
    k.label("L_C_s4")
    k.vm = []
    k.e(f"v_lshlrev_b32 v{VB1}, 10, v{V_G}"); k.e(f"v_lshl_add_u32 v{VB1}, v{V_M}, 4, v{VB1}")
    k.e("s_waitcnt lgkmcnt(0)")
    if GXC:
        lds_signal(k, CC_X, 46, byclass=True)
        k.e("s_waitcnt lgkmcnt(0)")
    else:
        k.e("s_barrier")
    if FS in ("", "C"): stamp(k, {"C": 2}.get(FS, 6))
    k.lg = []
    def gate1(ks, query=False):
        if not GXC or ks % 6: return False
        if query: return True
        lds_wait(k, CC_X + ks//6, 4, EX)
    k.e(f"s_cmp_lg_u32 s{S_W}, 11"); k.e("s_cbranch_scc1 L_C_nocomb")
    if GXC:
        for c in range(3): lds_wait(k, CC_X + c, 4, 8)
    stats_combine(k, C_PM, 8, VB2, C_ST, False, 12)
    lds_signal(k, CC_ST, 8)
    k.e("s_waitcnt lgkmcnt(0)"); k.lg = []
    k.label("L_C_nocomb")
    k.e(f"v_add_u32 v{VB2}, 49152, v{VB1}")
    def bread1(ks, mi, reg):
        off = ks*4096 + mi*256; base = VB1
        if off >= 49152: off -= 49152; base = VB2
        k.lds(f"ds_read_b128 {vr(reg,4)}, v{base} offset:{off}", ("b", ks))
    accf = lambda mi, t: ACC + 12*mi + 4*t
    bbf = lambda par, mi: BB + 16*par + 4*mi
    asf = lambda i_, t: AR + 12*(i_ % D) + 4*t
    order = [(mi, t) for mi in range(4) for t in range(3)]
    DEFER = ENV("DEFER", 2)
    state = dict(n=npre)
    lim1 = ENV("LIM1", 18) if DEFER else 24
    def after1(ks):
        tgt = min(ks + 1 + D, lim1, state["n"] + 2)
        while state["n"] < tgt:
            c_aload(k, state["n"]); state["n"] += 1
            if DEFER == 1 and state["n"] == 18: lds_signal(k, CC_W1, EX)
    k.e(f"s_setprio {ENV('P1PRIO', 2)}")
    gemm_loop(k, 18, order, accf, bbf, asf, bread1, 0, 4, after1, gate=gate1)
    k.e(f"s_setprio {ENV('GPRIO', 3)}")
    if FS == "C": stamp(k, 3)
    DEFN = ENV('DEFN', 12)
    sv2 = k.snapshot()
    def w2_check(final=False, first=False):
        if DEFER != 1: return
        lab = k.newlabel("L_w2")
        if not first:
            k.e("s_cmp_lg_u32 s56, 0"); k.e(f"s_cbranch_scc1 {lab}")
        else:
            k.e("s_mov_b32 s56, 0")
        k.e(f"s_add_u32 s36, s{S_CNT}, {4*CC_W1}")
        k.label(lab + "_p")
        k.e(f"v_mov_b32 v0, s36")
        k.e(f"ds_read_b32 v0, v0")
        k.e("s_waitcnt lgkmcnt(0)"); k.lg = []
        k.e(f"v_readfirstlane_b32 s37, v0")
        k.e("s_nop 3")
        k.e(f"s_cmp_ge_u32 s37, {DEFN}"); k.e(f"s_cbranch_scc1 {lab}_go")
        if final:
            k.e("s_sleep 4"); k.e(f"s_branch {lab}_p")
        else:
            k.e(f"s_branch {lab}")
        k.label(lab + "_go")
        k.vm = list(sv2[0])
        for i in range(18, 24): c_aload(k, i)
        k.e("s_mov_b32 s56, 1")
        k.label(lab)
    w2_check(first=True)
    lds_wait(k, CC_ST, 1, EX)
    CSR, B1R, T, STR = BB, BB+12, BB+24, EX
    k.e(f"s_lshr_b32 s40, s{S_W}, 1"); k.e(f"s_and_b32 s41, s{S_W}, 1"); k.e("s_mul_i32 s40, s40, 96")
    k.e("s_lshl_b32 s42, s41, 5"); k.e("s_add_u32 s42, s42, s40")
    k.e("s_lshl_b32 s43, s41, 4"); k.e("s_add_u32 s43, s43, s40"); k.e("s_add_u32 s43, s43, 64")
    k.e(f"v_lshlrev_b32 v{VB1}, 3, v{V_G}"); k.e(f"v_add_u32 v{VB1}, s42, v{VB1}")
    k.e(f"v_lshlrev_b32 v{VB2}, 2, v{V_G}"); k.e(f"v_add_u32 v{VB2}, s43, v{VB2}")
    k.e(f"s_mov_b32 s40, {C_CS}"); k.e(f"s_mov_b32 s41, {C_B1}")
    k.e(f"v_lshl_add_u32 v{VT}, v{VB1}, 2, s40")
    for j in range(2): k.lds(f"ds_read_b128 {vr(CSR+4*j,4)}, v{VT} offset:{16*j}", "cs")
    k.e(f"v_lshl_add_u32 v{VT}, v{VB2}, 2, s40")
    k.lds(f"ds_read_b128 {vr(CSR+8,4)}, v{VT}", "cs")
    k.e(f"v_lshl_add_u32 v{VT}, v{VB1}, 1, s41")
    k.lds(f"ds_read_b128 {vr(T,4)}, v{VT}", "cs")
    k.e(f"v_lshl_add_u32 v{VT}, v{VB2}, 1, s41")
    k.lds(f"ds_read_b64 {vr(T+4,2)}, v{VT}", "cs")
    k.e(f"v_lshlrev_b32 v{VB1}, 3, v{V_M}"); k.e(f"v_add_u32 v{VB1}, {C_ST}, v{VB1}")
    for mi in range(4): k.lds(f"ds_read_b64 {vr(STR+2*mi,2)}, v{VB1} offset:{128*mi}", "cs")
    k.e(f"s_bfe_u32 s40, s{S_W}, 0x10001"); k.e(f"s_and_b32 s41, s{S_W}, 1"); k.e("s_mul_i32 s40, s40, 3")
    k.e(f"s_sub_u32 s40, s40, s{S_ROT2}"); k.e("s_add_u32 s40, s40, 6")
    k.e(f"s_lshr_b32 s55, s{S_W}, 2"); k.e("s_mul_i32 s54, s55, 6")
    k.e("s_add_u32 s42, s40, s41"); k.e("s_sub_u32 s44, s42, 6"); k.e("s_cmp_ge_u32 s42, 6"); k.e("s_cselect_b32 s42, s44, s42")
    k.e("s_add_u32 s42, s42, s54"); k.e("s_lshl_b32 s42, s42, 12"); k.e(f"s_add_u32 s42, s42, {C_HB}")
    k.e("s_add_u32 s43, s40, 2"); k.e("s_sub_u32 s44, s43, 6"); k.e("s_cmp_ge_u32 s43, 6"); k.e("s_cselect_b32 s43, s44, s43")
    k.e("s_add_u32 s43, s43, s54"); k.e("s_lshl_b32 s43, s43, 12"); k.e("s_lshl_b32 s41, s41, 3"); k.e("s_add_u32 s43, s43, s41"); k.e(f"s_add_u32 s43, s43, {C_HB}")
    k.e(f"v_add_u32 v{VB1}, s42, v{V_L16}"); k.e(f"v_add_u32 v{VB2}, s43, v{V_L16}")
    c0 = -2.0 * math.sqrt(2.0/math.pi) * math.log2(math.e)
    c1 = c0 * 0.044715
    k.e(f"s_mov_b32 s44, {f32(c1)}"); k.e(f"v_mov_b32 v{VT}, {f32(c0)}")
    k.wait(lg=["cs"])
    for j in range(6):
        k.e(f"v_lshlrev_b32 v{B1R+2*j}, 16, v{T+j}"); k.e(f"v_and_b32 v{B1R+2*j+1}, 0xffff0000, v{T+j}")
    PK = ENV("PK", 0)
    if PK:
        k.e(f"s_mov_b32 s45, {f32(c1)}"); k.e(f"s_mov_b32 s50, {f32(c0)}"); k.e(f"s_mov_b32 s51, {f32(c0)}")
    for mi in range(4):
        a = accf(mi, 0)
        for (j0, n) in ((0, 8), (8, 4)):
            js = range(j0, j0+n)
            if ENV("NOGELU", 0) == 1:
                for j in js: k.e(f"v_mul_f32 v{T+j-j0}, v{a+j}, v{STR+2*mi}")
            elif ENV("NOGELU", 0) == 2:
                for j in js: k.e(f"v_fma_f32 v{T+j-j0}, v{STR+2*mi+1}, v{CSR+j}, v{B1R+j}")
                for j in js: k.e(f"v_fma_f32 v{a+j}, v{a+j}, v{STR+2*mi}, v{T+j-j0}")
                for j in js: k.e(f"v_mul_f32 v{T+j-j0}, v{a+j}, v{a+j}")
                for j in js: k.e(f"v_fma_f32 v{T+j-j0}, v{T+j-j0}, s44, v{VT}")
                for j in js: k.e(f"v_mul_f32 v{T+j-j0}, v{T+j-j0}, v{a+j}")
                for j in js: k.e(f"v_add_f32 v{T+j-j0}, 1.0, v{T+j-j0}")
                for j in js: k.e(f"v_mul_f32 v{T+j-j0}, 0.5, v{a+j}")
            elif not PK:
                for j in js: k.e(f"v_fma_f32 v{T+j-j0}, v{STR+2*mi+1}, v{CSR+j}, v{B1R+j}")
                for j in js: k.e(f"v_fma_f32 v{a+j}, v{a+j}, v{STR+2*mi}, v{T+j-j0}")
                for j in js: k.e(f"v_mul_f32 v{T+j-j0}, v{a+j}, v{a+j}")
                for j in js: k.e(f"v_fma_f32 v{T+j-j0}, v{T+j-j0}, s44, v{VT}")
                for j in js: k.e(f"v_mul_f32 v{T+j-j0}, v{T+j-j0}, v{a+j}")
                for j in js: k.e(f"v_exp_f32 v{T+j-j0}, v{T+j-j0}")
                for j in js: k.e(f"v_add_f32 v{T+j-j0}, 1.0, v{T+j-j0}")
                for j in js: k.e(f"v_rcp_f32 v{T+j-j0}, v{T+j-j0}")
                for j in js: k.e(f"v_mul_f32 v{T+j-j0}, v{T+j-j0}, v{a+j}")
            else:
                jp = range(j0, j0+n, 2)
                P = lambda r: vr(r, 2)
                st = P(STR+2*mi)
                for j in jp: k.e(f"v_pk_fma_f32 {P(T+j-j0)}, {st}, {P(CSR+j)}, {P(B1R+j)} op_sel:[1,0,0] op_sel_hi:[1,1,1]")
                for j in jp: k.e(f"v_pk_fma_f32 {P(a+j)}, {P(a+j)}, {st}, {P(T+j-j0)} op_sel:[0,0,0] op_sel_hi:[1,0,1]")
                for j in jp: k.e(f"v_pk_mul_f32 {P(T+j-j0)}, {P(a+j)}, s[44:45]")
                for j in jp: k.e(f"v_pk_fma_f32 {P(T+j-j0)}, {P(T+j-j0)}, {P(a+j)}, s[50:51]")
                for j in jp: k.e(f"v_pk_mul_f32 {P(T+j-j0)}, {P(T+j-j0)}, {P(a+j)}")
                for j in js: k.e(f"v_exp_f32 v{T+j-j0}, v{T+j-j0}")
                for j in jp: k.e(f"v_pk_add_f32 {P(T+j-j0)}, {P(T+j-j0)}, 1.0 op_sel_hi:[1,0]")
                for j in js: k.e(f"v_rcp_f32 v{T+j-j0}, v{T+j-j0}")
                for j in jp: k.e(f"v_pk_mul_f32 {P(T+j-j0)}, {P(T+j-j0)}, {P(a+j)}")
            for j in range(n//2): k.e(f"v_cvt_pk_bf16_f32 v{a+j0+j}, v{T+2*j}, v{T+2*j+1}")
            if j0 == 0: k.lds(f"ds_write_b128 v{VB1}, {vr(a,4)} offset:{mi*1024}", "hw")
            else: k.lds(f"ds_write_b64 v{VB2}, {vr(a+8,2)} offset:{mi*1024}", "hw")
            if DEFER == 2 and state["n"] < 24:
                c_aload(k, state["n"]); state["n"] += 1
        if mi < 3: w2_check()
    k.e(f"v_add_u32 v{VB1}, {C_HB}, v{V_L16}"); k.e(f"v_add_u32 v{VB2}, {C_HB+49152}, v{V_L16}")
    k.e("s_lshl_b32 s55, s55, 2"); k.e(f"s_add_u32 s55, s55, s{S_CNT}"); k.e(f"s_add_u32 s55, s55, {4*CC_H0}")
    k.e(f"v_mov_b32 v{EX+2}, s55"); k.e(f"v_mov_b32 v{EX+3}, 1")
    k.wait(lg0=True)
    k.e("s_mov_b64 exec, 1")
    k.e(f"ds_add_u32 v{EX+2}, v{EX+3}")
    k.e("s_mov_b64 exec, -1")
    k.e(f"s_setprio {ENV('P2PRIO', 0)}")
    if FS == "C": stamp(k, 4)
    w2_check(final=True)
    if FS == "C": stamp(k, 5)
    def gate(ks, query=False):
        if ks % 6: return False
        if query: return True
        lds_wait(k, CC_H0 + ks//6, 4, EX)
    def bread2(ks, mi, reg):
        off = (ks*4 + mi) * 1024; base = VB1
        if off >= 49152: off -= 49152; base = VB2
        k.lds(f"ds_read_b128 {vr(reg,4)}, v{base} offset:{off}", ("b", ks))
    def after2(ks):
        if 18 + ks + D < 36: c_aload(k, 18 + ks + D)
    gemm_loop(k, 18, order, accf, bbf, asf, bread2, 18, 4, after2, gate=gate)
    k.e("s_setprio 0")
    if FS == "C": stamp(k, 6)
    if FS == "D": stamp(k, 1)
    k.e(f"v_lshlrev_b32 v{VB1}, 10, v{V_G}"); k.e(f"v_lshl_add_u32 v{VB1}, v{V_M}, 4, v{VB1}")
    k.e(f"v_lshrrev_b32 v{VB2}, 1, v{V_G}"); k.e(f"v_lshlrev_b32 v{VB2}, 10, v{VB2}"); k.e(f"v_and_b32 v{VT}, 31, v{V_L}")
    k.e(f"v_lshl_add_u32 v{VB2}, v{VT}, 4, v{VB2}")
    k.e(f"s_mul_i32 s40, s{S_SC}, {XB}"); k.e("s_add_u32 s40, s40, s39"); k.e(f"s_mul_i32 s41, s{S_W}, 6144"); k.e("s_add_u32 s40, s40, s41")
    k.e(f"s_add_u32 s40, s40, s{S_P}")
    k.e("s_add_u32 s41, s40, 4096")
    for mp in range(2):
        T2 = BB + 16 + 4*mp
        for mi in (2*mp, 2*mp+1):
            a = accf(mi, 0); T_ = BB + 4*mi
            for j in range(4): k.e(f"v_cvt_pk_bf16_f32 v{T_+j}, v{a+2*j}, v{a+2*j+1}")
            for j in range(2): k.e(f"v_cvt_pk_bf16_f32 v{T2+2*(mi&1)+j}, v{a+8+2*j}, v{a+8+2*j+1}")
            k.e(f"buffer_store_dwordx4 {vr(T_,4)}, v{VB1}, {WS}, s40 offen offset:{256*mi} sc1")
        k.e("s_nop 0")
        k.e(f"v_permlane16_swap_b32 v{T2}, v{T2+2}"); k.e(f"v_permlane16_swap_b32 v{T2+1}, v{T2+3}")
        k.e("s_nop 0")
        k.e(f"buffer_store_dwordx4 {vr(T2,4)}, v{VB2}, {WS}, s41 offen offset:{512*mp} sc1")
    k.e(f"s_mul_i32 s40, s{S_CL}, 24"); k.e(f"s_mul_i32 s41, s{S_S}, 3"); k.e("s_add_u32 s40, s40, s41"); k.e(f"s_add_u32 s40, s40, s{S_WL}")
    k.e("s_min_u32 s40, s40, 71"); k.e("s_lshl_b32 s40, s40, 4")
    k.e("s_load_dwordx4 s[52:55], s[20:21], s40")
    lds_signal(k, CC_K2, 8)
    publish(k, CC_DONE, 4, F_C, S_RC, S_SC, 8, byclass=True)
    if FS in ("", "C", "D"): stamp(k, {"D": 2}.get(FS, 7))

def phase_D(k):
    k.c("================ phase D (per class)")
    k.e(f"s_cmp_lg_u32 s{S_WL}, 3"); k.e("s_cbranch_scc1 L_D_work")
    G0 = ENV("G0", 1)
    k.e(f"s_cmp_lg_u32 s{S_CL}, 0"); k.e("s_cbranch_scc1 L_D_g1")
    if G0 == 1: lds_wait(k, CC_DONE + 1, 4, 8, 8)
    else: lds_wait(k, CC_K2, 12, 8, 8)
    k.e("s_branch L_D_g2")
    k.label("L_D_g1")
    lds_wait(k, CC_K2, 12, 8, 4)
    k.label("L_D_g2")
    k.e(f"s_lshl_b32 s39, s{S_R}, 7"); k.e(f"s_lshl_b32 s38, s{S_CL}, 12"); k.e("s_add_u32 s39, s39, s38"); k.e(f"s_add_u32 s39, s39, s{S_FL}")
    k.e(f"s_add_u32 s37, s39, {F_C}")
    k.e(f"v_lshlrev_b32 v8, 2, v{V_L}")
    poll(k, 8, 37, 0xff, 9)
    lds_signal(k, CD_GO, 10, byclass=True)
    k.e(f"s_cmp_lg_u32 s{S_LAY}, 0"); k.e("s_cbranch_scc1 L_D_idle")
    lds_wait(k, CD_DONE, 3, 10, 2, byclass=True)
    lds_wait(k, CC_K2, 12, 10, 8)
    k.e(f"s_add_u32 s37, s39, {F_D}")
    k.e(f"s_cmp_eq_u32 s{S_R}, 0"); k.e("s_cselect_b32 s38, 0, 128"); k.e("s_sub_u32 s37, s37, s38"); k.e("s_sub_u32 s38, s38, 32")
    k.e(f"v_cmp_le_u32 vcc, 8, v{V_L}"); k.e("v_mov_b32 v9, s38")
    k.e("s_nop 0")
    k.e("v_cndmask_b32 v9, 0, v9, vcc"); k.e("v_add_u32 v8, v8, v9")
    poll(k, 8, 37, 0xffff, 9)
    lds_signal(k, CA_GO, 10, byclass=True)
    k.e("s_waitcnt lgkmcnt(0)")
    k.e("s_branch L_D_idle")
    k.label("L_D_work")
    k.e(f"s_mul_i32 s39, s{S_R}, {TILEB}"); k.e("s_lshl_b32 s41, s40, 6"); k.e("s_add_u32 s41, s41, s39")
    lds_wait(k, CD_GO, 1, 8, 2, byclass=True)
    if FS == "D": stamp(k, 3)
    k.vm = []
    k.e(f"s_add_u32 s42, s41, s{S_X1}")
    k.vmem(f"buffer_load_dwordx4 v[40:43], v{V_L16}, {WS}, s42 offen sc1", "x1")
    k.e(f"s_add_u32 s42, s41, s{S_P}")
    for s in range(8):
        k.vmem(f"buffer_load_dwordx4 {vr(8+4*s,4)}, v{V_L16}, {WS}, s42 offen sc1", s)
        if s < 7: k.e(f"s_add_u32 s42, s42, {XB}")
    k.wait(vm=["x1"])
    for j in range(4):
        k.e(f"s_lshl_b32 s43, s{52+j}, 16"); k.e(f"s_and_b32 s44, s{52+j}, 0xffff0000")
        k.e(f"v_lshlrev_b32 v{48+2*j}, 16, v{40+j}"); k.e(f"v_and_b32 v{49+2*j}, 0xffff0000, v{40+j}")
        k.e(f"v_add_f32 v{48+2*j}, s43, v{48+2*j}"); k.e(f"v_add_f32 v{49+2*j}, s44, v{49+2*j}")
    for s in range(8):
        k.wait(vm=[s])
        for j in range(4):
            r = 8 + 4*s + j
            k.e(f"v_lshlrev_b32 v5, 16, v{r}"); k.e(f"v_and_b32 v6, 0xffff0000, v{r}")
            k.e(f"v_add_f32 v{48+2*j}, v{48+2*j}, v5"); k.e(f"v_add_f32 v{49+2*j}, v{49+2*j}, v6")
    for j in range(4): k.e(f"v_cvt_pk_bf16_f32 v{8+j}, v{48+2*j}, v{49+2*j}")
    if FS == "D": stamp(k, 4)
    k.e(f"s_cmp_lg_u32 s{S_LAY}, 0"); k.e("s_cbranch_scc1 L_D_final")
    k.e(f"s_add_u32 s42, s41, 0x{X2:x}")
    k.e(f"buffer_store_dwordx4 v[8:11], v{V_L16}, {WS}, s42 offen sc1")
    publish(k, CD_DONE, 3, F_D, S_R, S_S, 14, byclass=True)
    if FS == "D": stamp(k, 5)
    lds_wait(k, CA_GO, 1, 8, 2, byclass=True)
    if FS == "D": stamp(k, 6)
    k.e("s_branch L_D_idle")
    k.label("L_D_final")
    k.e("s_movk_i32 s42, 1152"); k.e(f"v_mul_u32_u24 v5, s42, v{V_L}")
    k.e("s_add_u32 s42, s39, s40")
    k.e("buffer_store_dwordx4 v[8:11], v5, s[16:19], s42 offen")
    k.label("L_D_idle")

def gen_main():
    name = "main_kernel"
    k = K(); header(k, name, 256)
    k.e("s_load_dwordx2 s[4:5], s[0:1], 40")
    k.e("s_load_dwordx4 s[20:23], s[0:1], 56")
    k.e("s_load_dwordx2 s[6:7], s[0:1], 80")
    wave_lane(k, V_L, S_W)
    k.e(f"v_lshlrev_b32 v{V_L16}, 4, v{V_L}")
    k.e(f"v_lshrrev_b32 v{V_G}, 4, v{V_L}"); k.e(f"v_and_b32 v{V_M}, 15, v{V_L}")
    k.e(f"s_cmp_lg_u32 s{S_W}, 0"); k.e("s_cbranch_scc1 L_M_nz")
    k.e(f"v_lshlrev_b32 v5, 2, v{V_L}"); k.e(f"v_add_u32 v5, {CNT}, v5"); k.e("v_mov_b32 v6, 0"); k.e("ds_write_b32 v5, v6")
    k.label("L_M_nz")
    def mapping2(Sx, ss, sr_, sidx):
        R = 32 // Sx; ng = 8 // Sx; lg = lambda x: x.bit_length() - 1
        k.e("s_and_b32 s36, s2, 7"); k.e("s_lshr_b32 s37, s2, 3")
        k.e(f"s_and_b32 s{ss}, s36, {ng-1}"); k.e(f"s_lshl_b32 s{ss}, s{ss}, {lg(Sx)}")
        k.e(f"s_and_b32 s38, s37, {Sx-1}"); k.e(f"s_add_u32 s{ss}, s{ss}, s38")
        k.e(f"s_lshr_b32 s{sr_}, s36, {lg(ng)}"); k.e(f"s_lshl_b32 s{sr_}, s{sr_}, {lg(R)}")
        k.e(f"s_lshr_b32 s{sidx}, s37, {lg(Sx)}"); k.e(f"s_add_u32 s{sr_}, s{sr_}, s{sidx}")
    mapping2(ENV('SX_L', 4), S_S, S_R, S_IDX)
    mapping2(SXC, S_SC, S_RC, S_IDX)
    rot18(k, S_IDX, S_ROT, 32 // SXC)
    sdivmod(k, 36, S_ROT2, S_IDX, 6, 32)
    if not ENV("ROT2", 1): k.e(f"s_mov_b32 s{S_ROT2}, 0")
    k.e("s_waitcnt lgkmcnt(0)")
    srd(k, 8, 6, 0, WSZ)
    srd(k, 12, 4, 0, 4608*2)
    srd(k, 16, 22, 0, XB)
    k.e(f"s_lshr_b32 s{S_CL}, s{S_W}, 2"); k.e(f"s_and_b32 s{S_WL}, s{S_W}, 3"); k.e(f"s_mov_b32 s{S_EARLY}, 0")
    k.e(f"s_mov_b32 s{S_LAY}, 0")
    k.e(f"s_mov_b32 s{S_XIN}, 0x{X0P:x}"); k.e(f"s_mov_b32 s{S_O}, 0x{O1:x}"); k.e(f"s_mov_b32 s{S_X1}, 0x{X1A:x}"); k.e(f"s_mov_b32 s{S_P}, 0x{P1:x}")
    k.e(f"s_mov_b32 s{S_FL}, 0x{FLG:x}"); k.e(f"s_mov_b32 s{S_CNT}, {CNT}")
    k.label("L_layer")
    phase_A(k)
    npre = phase_B(k)
    phase_C(k, npre)
    phase_D(k)
    k.e(f"s_cmp_lg_u32 s{S_LAY}, 0"); k.e(f"s_cbranch_scc1 L_{name}_end")
    if STAMP and ENV("STAMP_L1", 0):
        k.e(f"s_branch L_{name}_end")
    k.e(f"s_mov_b32 s{S_LAY}, 1")
    k.e(f"s_cmp_lt_u32 s{S_CL}, {ENV('NEARLY', 0)}"); k.e(f"s_cselect_b32 s{S_EARLY}, 1, 0")
    k.e(f"s_mov_b32 s{S_XIN}, 0x{X2:x}"); k.e(f"s_mov_b32 s{S_O}, 0x{O2:x}"); k.e(f"s_mov_b32 s{S_X1}, 0x{X1B:x}"); k.e(f"s_mov_b32 s{S_P}, 0x{P2:x}")
    k.e(f"s_mov_b32 s{S_FL}, 0x{FLG+FLG_LAYER:x}"); k.e(f"s_mov_b32 s{S_CNT}, {CNT+128}")
    if STAMP: stamp(k, 0)
    k.e("s_branch L_layer")
    k.label(f"L_{name}_end")
    if STAMP:
        k.e("s_waitcnt vmcnt(0)")
        k.e(f"s_lshl_b32 s36, s{S_W}, 6"); k.e("v_mov_b32 v0, s36")
    stamp_end(k, KIDX[0]); KIDX[0] += 1
    k.label(f"L_{name}_exit")
    k.e("s_endpgm")
    return name, k.text(), desc(name, 168), (256, 768, LDS_TOTAL)

def main(out):
    ks = [gen_prep(), gen_main()]
    ref = open(f"cdna_kernels/{NAME}.s.ref").read().splitlines()
    hdr = [l for l in ref if l.startswith(";") and "@launch" not in l and "Override" not in l and "grid=ceil" not in l]
    s = "\n".join(hdr) + "\n"
    for n, _, _, (g, b, lds) in ks:
        s += f"; @launch kernel={n} grid=({g},1,1) block=({b},1,1) lds={lds}\n"
    s += '.amdgcn_target "amdgcn-amd-amdhsa--gfx950"\n.text\n'
    for _, t, _, _ in ks: s += t
    for _, _, d, _ in ks: s += d
    open(out, "w").write(s)

if __name__ == "__main__":
    main(sys.argv[1] if len(sys.argv) > 1 else f"cdna_kernels/{NAME}.s")
```

```python
import sys, struct, math, os
from asmlib import *

NAME = "interleave_layers__sliding_local_dilated__dense_activation_gelu__prompt"
XB = 2048 * 1152
TILEB = 73728
WQF, WOF, WFF = 0x0, 0x200000, 0x300000
CS1, CSQ = 0xE00000, 0xE10000
ST0, ST1A, ST2, ST1B = 0xE40000, 0xE80000, 0xEC0000, 0xF00000
X0P = 0x4C00000
O1, X1A, X2, O2, X1B, P1, P2 = 0x1000000, 0x1400000, 0x1800000, 0x1C00000, 0x2000000, 0x2400000, 0x3800000
WQF_SZ, WOF_SZ, WFF_SZ = 8*14*18*1024, 8*5*18*1024, 8*12*36*3072
ST_SZ = 32*8*64*8
ENV = lambda n, d: int(os.environ.get(n, str(d)))
STAMP = ENV("STAMP", 0)
STAMP_BASE = 0x8000000

def f32(x):
    return "0x%08x" % struct.unpack("<I", struct.pack("<f", x))[0]

def srd(k, d, b, add, size):
    if add:
        k.e(f"s_add_u32 s{d}, s{b}, 0x{add:x}")
        k.e(f"s_addc_u32 s{d+1}, s{b+1}, 0")
    else:
        k.e(f"s_mov_b32 s{d}, s{b}")
        k.e(f"s_mov_b32 s{d+1}, s{b+1}")
    k.e(f"s_mov_b32 s{d+2}, 0x{size:x}")
    k.e(f"s_mov_b32 s{d+3}, 0x20000")

def stamp(k, i):
    if not STAMP: return
    k.e("s_waitcnt lgkmcnt(0)"); k.lg = []
    k.e(f"s_memtime s[84:85]")
    k.e(f"s_memrealtime s[86:87]")
    k.e("s_waitcnt lgkmcnt(0)")
    k.e(f"s_mov_b32 s{64+i}, s84"); k.e(f"s_mov_b32 s{74+i}, s86")
def stamp_begin(k):
    if not STAMP: return
    for i in range(1, 9):
        k.e(f"s_mov_b32 s{64+i}, 0"); k.e(f"s_mov_b32 s{74+i}, 0")
    stamp(k, 0)
def stamp_end(k, kidx):
    if not STAMP: return
    k.e("s_waitcnt vmcnt(0)")
    stamp(k, 8)
    k.e("s_load_dwordx2 s[88:89], s[0:1], 80")
    k.e("s_getreg_b32 s90, hwreg(HW_REG_XCC_ID)")
    k.e("s_waitcnt lgkmcnt(0)")
    k.e("s_mov_b64 exec, 1")
    k.e(f"s_add_u32 s88, s88, 0x{STAMP_BASE:x}"); k.e("s_addc_u32 s89, s89, 0")
    k.e(f"s_add_u32 s91, s2, {kidx*512}"); k.e("s_lshl_b32 s91, s91, 4")
    k.e("v_lshrrev_b32 v1, 6, v0"); k.e("v_add_u32 v1, s91, v1"); k.e("v_lshlrev_b32 v1, 7, v1")
    vals = [64+i for i in range(9)] + [90] + [74+i for i in range(9)] + [90]
    for j, sreg in enumerate(vals):
        k.e(f"v_mov_b32 v{2+j}, s{sreg}")
    for j in range(0, 20, 4):
        k.e(f"global_store_dwordx4 v1, v[{2+j}:{5+j}], s[88:89] offset:{4*j}")

KIDX = [0]
def header(k, name, nwg):
    k.lines.append(f".globl {name}\n.p2align 8\n.type {name},@function\n{name}:")
    k.e(f"s_cmp_ge_u32 s2, {nwg}")
    k.e(f"s_cbranch_scc1 L_{name}_exit")
    stamp_begin(k)
def footer(k, name):
    k.label(f"L_{name}_end")
    stamp_end(k, KIDX[0]); KIDX[0] += 1
    k.label(f"L_{name}_exit")
    k.e("s_endpgm")

def desc(name, vgpr, sgpr=96):
    acc = (vgpr + 3) // 4 * 4
    return f""".section .rodata,"a"
.p2align 6
.amdhsa_kernel {name}
  .amdhsa_next_free_vgpr {vgpr}
  .amdhsa_next_free_sgpr {sgpr}
  .amdhsa_accum_offset {acc}
  .amdhsa_group_segment_fixed_size 0
  .amdhsa_kernarg_size 88
  .amdhsa_user_sgpr_count 2
  .amdhsa_user_sgpr_kernarg_segment_ptr 1
  .amdhsa_system_sgpr_workgroup_id_x 1
  .amdhsa_float_denorm_mode_32 3
.end_amdhsa_kernel
.text
"""

def divmod_const(k, q, rem, x, d, nmax, stmp):
    m, sh = magic(d, nmax)
    k.e(f"s_mov_b32 s{stmp}, {m}")
    k.e(f"v_mul_u32_u24 v{q}, s{stmp}, v{x}")
    k.e(f"v_lshrrev_b32 v{q}, {sh}, v{q}")
    if rem is not None:
        if d <= 64:
            k.e(f"v_mul_u32_u24 v{rem}, {d}, v{q}")
        else:
            k.e(f"v_mul_u32_u24 v{rem}, 0x{d:x}, v{q}")
        k.e(f"v_sub_u32 v{rem}, v{x}, v{rem}")

def sdivmod(k, q, rem, x, d, nmax):
    m, sh = magic(d, nmax)
    k.e(f"s_mul_i32 s{q}, s{x}, {m}"); k.e(f"s_lshr_b32 s{q}, s{q}, {sh}")
    if rem is not None:
        k.e(f"s_mul_i32 s{rem}, s{q}, {d}"); k.e(f"s_sub_u32 s{rem}, s{x}, s{rem}")

MAP = dict(attn=ENV("SX_A", 4), wo=ENV("SX_B", 8), ffn=ENV("SX_C", 2))
def mapping(k, Sx, ss=15, sr_=16, sidx=12):
    R = 32 // Sx; ng = 8 // Sx
    lg = lambda x: x.bit_length() - 1
    k.e("s_and_b32 s10, s2, 7")
    k.e("s_lshr_b32 s11, s2, 3")
    k.e(f"s_and_b32 s{ss}, s10, {ng-1}")
    k.e(f"s_lshl_b32 s{ss}, s{ss}, {lg(Sx)}")
    k.e(f"s_and_b32 s13, s11, {Sx-1}")
    k.e(f"s_add_u32 s{ss}, s{ss}, s13")
    k.e(f"s_lshr_b32 s{sr_}, s10, {lg(ng)}")
    k.e(f"s_lshl_b32 s{sr_}, s{sr_}, {lg(R)}")
    k.e(f"s_lshr_b32 s{sidx}, s11, {lg(Sx)}")
    k.e(f"s_add_u32 s{sr_}, s{sr_}, s{sidx}")

def rot18(k, sidx, srot, R):
    if not ENV("ROT", 0):
        k.e(f"s_mov_b32 s{srot}, 0"); return
    if R <= 16:
        mult = {4: 4, 8: 2, 16: 1}[R]
        k.e(f"s_mul_i32 s{srot}, s{sidx}, {mult}")
    else:
        k.e(f"s_sub_u32 s{srot}, s{sidx}, 18"); k.e(f"s_cmp_ge_u32 s{sidx}, 18"); k.e(f"s_cselect_b32 s{srot}, s{srot}, s{sidx}")

def wave_lane(k, vlane, swave):
    k.e(f"v_lshrrev_b32 v{vlane}, 6, v0")
    k.e("s_nop 0")
    k.e(f"v_readfirstlane_b32 s{swave}, v{vlane}")
    k.e(f"v_and_b32 v{vlane}, 63, v0")

def touch(k, srd_, L, n_instr, swave_idx, nwaves, per_slab, slab_stride, sbase, nslab, t, dummy, gran=64):
    t0, t1, t2 = t[:3]
    nmax = 32 * nwaves * n_instr * 64
    k.e(f"s_lshr_b32 s58, s2, 3"); k.e(f"s_mul_i32 s58, s58, {nwaves}"); k.e(f"s_add_u32 s58, s58, s{swave_idx}"); k.e(f"s_mul_i32 s58, s58, {n_instr*64}")
    for j in range(n_instr):
        k.e(f"v_add_u32 v{t0}, s58, v{L}")
        if j: k.e(f"v_add_u32 v{t0}, {64*j}, v{t0}")
        m, sh = magic2(per_slab, nmax)
        k.e(f"s_mov_b32 s59, {m}"); k.e(f"v_mul_hi_u32 v{t1}, v{t0}, s59")
        if sh: k.e(f"v_lshrrev_b32 v{t1}, {sh}, v{t1}")
        k.e(f"s_mov_b32 s59, {per_slab}"); k.e(f"v_mul_u32_u24 v{t2}, s59, v{t1}"); k.e(f"v_sub_u32 v{t0}, v{t0}, v{t2}")
        k.e(f"s_mov_b32 s59, {slab_stride}"); k.e(f"v_mul_u32_u24 v{t2}, s59, v{t1}")
        k.e(f"v_lshl_add_u32 v{t0}, v{t0}, {gran.bit_length()-1}, v{t2}")
        k.e(f"v_cmp_gt_u32 vcc, {nslab}, v{t1}")
        k.e(f"v_mov_b32 v{t2}, 0x7ff00000")
        k.e("s_nop 0")
        k.e(f"v_cndmask_b32 v{t0}, v{t2}, v{t0}, vcc")
        k.vmem(f"buffer_load_dword v{dummy}, v{t0}, s[{srd_}:{srd_+3}], s{sbase} offen", "touch")

def magic2(d, nmax):
    for sh in range(0, 12):
        m = (1 << (32 + sh)) // d + 1
        if m >= (1 << 32): continue
        if all((x * m) >> (32 + sh) == x // d for x in range(0, nmax, 1)):
            return m, sh
    raise ValueError

def dma(k, m0expr, voff, srd_, soff, tag=None):
    for l in m0expr: k.e(l)
    k.e("s_nop 0")
    k.vmem(f"buffer_load_dwordx4 v{voff}, s[{srd_}:{srd_+3}], {soff} offen{os.environ.get('PLD', ' nt')} lds", tag)

NJ_W1, NJ_WO, NJ_WQ, NJ_X0, NJ_W2 = 144, 64, 56, 64, 144
CSQP = 0xEA0000
CSP = 0xE40000
FW = ENV("FW", 1)
FSH, GSH = (7, 10) if FW else (2, 7)
FLG = 0xF00000
FLG_LAYER = 256 << GSH
F_A, F_B, F_C, F_D = 0, 32 << GSH, 64 << GSH, 160 << GSH
PSC = os.environ.get("PST", "")
def gen_prep():
    name = "prep_kernel"
    NT = NJ_W1 + NJ_WO + NJ_WQ + NJ_X0 + NJ_W2
    k = K(); header(k, name, NT)
    k.e("s_load_dwordx4 s[4:7], s[0:1], 8")
    k.e("s_load_dwordx2 s[8:9], s[0:1], 32")
    k.e("s_load_dwordx2 s[10:11], s[0:1], 48")
    k.e("s_load_dwordx2 s[12:13], s[0:1], 80")
    k.e("s_load_dwordx2 s[48:49], s[0:1], 0")
    wave_lane(k, 1, 14)
    k.e("s_and_b32 s15, s2, 7")
    k.e("s_lshr_b32 s16, s2, 3")
    k.e("v_lshrrev_b32 v2, 4, v1")
    k.e("v_bfe_u32 v3, v1, 2, 2")
    k.e("v_and_b32 v4, 3, v1")
    k.e("v_lshlrev_b32 v5, 4, v1")
    k.e("s_waitcnt lgkmcnt(0)")
    srd(k, 20, 12, 0, 0x5000000)
    srd(k, 24, 8, 0, 576*4608*2)
    srd(k, 28, 10, 0, 576*4608*2)
    srd(k, 32, 4, 0, 576*1728*2)
    srd(k, 36, 6, 0, 576*576*2)
    srd(k, 52, 48, 0, XB)
    b = [0]
    for n in (NJ_WQ, NJ_X0, NJ_W1, NJ_W2): b.append(b[-1] + n)
    for bound, lab in ((b[1], "wq"), (b[2], "x0"), (b[3], "w1"), (b[4], "w2")):
        k.e(f"s_cmp_lt_u32 s2, {bound}"); k.e(f"s_cbranch_scc1 L_prep_{lab}")
    k.e("s_branch L_prep_wo")
    def lin_dma(n_i, per_row, nmax, pitch, srd_, soff):
        k.e(f"s_lshl_b32 s18, s14, 6")
        for i in range(n_i):
            k.e(f"v_add_u32 v6, s18, v1")
            if i: k.e(f"v_add_u32 v6, {768*i}, v6")
            divmod_const(k, 7, 8, 6, per_row, nmax, 19)
            k.e(f"s_mov_b32 s19, {pitch}")
            k.e("v_mul_u32_u24 v7, s19, v7")
            k.e("v_lshl_add_u32 v7, v8, 4, v7")
            dma(k, [f"s_lshl_b32 s19, s14, 10", f"s_add_u32 m0, s19, {12288*i}"], 7, srd_, soff)
    k.label("L_prep_w1")
    k.e(f"s_sub_u32 s16, s16, {b[2]//8}")
    k.e("s_mul_i32 s17, s16, %d" % (32*9216)); k.e("s_mul_i32 s18, s15, 1152"); k.e("s_add_u32 s17, s17, s18")
    lin_dma(3, 72, 2304, 9216, 24, "s17")
    k.e("s_lshr_b32 s40, s14, 1"); k.e("s_and_b32 s41, s14, 1"); k.e("s_mul_i32 s40, s40, 96")
    k.e("s_lshl_b32 s42, s41, 5"); k.e("s_add_u32 s42, s42, s40")
    k.e("s_lshl_b32 s43, s41, 4"); k.e("s_add_u32 s43, s43, s40"); k.e("s_add_u32 s43, s43, 64")
    k.e("v_lshl_add_u32 v7, v2, 3, v3"); k.e("s_movk_i32 s19, 1152"); k.e("v_mul_u32_u24 v7, s19, v7")
    k.e("s_lshl_b32 s44, s42, 1"); k.e("v_lshl_add_u32 v6, v4, 4, v7"); k.e("v_add_u32 v6, s44, v6")
    k.e("s_lshl_b32 s44, s43, 1"); k.e("v_lshl_add_u32 v10, v4, 3, v7"); k.e("v_add_u32 v10, s44, v10")
    k.e("v_add_u32 v9, %d, v6" % (4*1152)); k.e("v_add_u32 v11, %d, v10" % (4*1152))
    k.e("s_mul_i32 s17, s15, 12"); k.e("s_add_u32 s17, s17, s14"); k.e("s_mul_i32 s17, s17, 36"); k.e("s_add_u32 s17, s17, s16")
    k.e("s_mul_i32 s17, s17, 3072"); k.e(f"s_add_u32 s17, s17, 0x{WFF:x}")
    k.e("s_mul_i32 s44, s16, 4608"); k.e("s_mul_i32 s45, s15, 576"); k.e("s_add_u32 s44, s44, s45")
    k.e("s_add_u32 s42, s42, s44"); k.e("s_lshl_b32 s42, s42, 2"); k.e(f"s_add_u32 s42, s42, 0x{CSP:x}")
    k.e("s_add_u32 s43, s43, s44"); k.e("s_lshl_b32 s43, s43, 2"); k.e(f"s_add_u32 s43, s43, 0x{CSP:x}")
    k.e("v_lshlrev_b32 v7, 5, v2"); k.e("v_lshlrev_b32 v8, 4, v2")
    for j in range(4): k.e(f"v_mov_b32 v{40+j}, 0x3f803f80")
    k.e("s_waitcnt vmcnt(0)")
    k.e("s_barrier")
    for t in range(2):
        k.e(f"ds_read_b64_tr_b16 v[{12+4*t}:{13+4*t}], v6 offset:{8*t}")
        k.e(f"ds_read_b64_tr_b16 v[{14+4*t}:{15+4*t}], v9 offset:{8*t}")
    k.e(f"ds_read_b64_tr_b16 v[20:21], v10")
    k.e(f"ds_read_b64_tr_b16 v[22:23], v11")
    for t in range(3):
        k.e(f"s_waitcnt lgkmcnt({4-2*t})")
        k.e(f"buffer_store_dwordx4 v[{12+4*t}:{15+4*t}], v5, s[20:23], s17 offen offset:{1024*t}{PSC}")
        k.e(f"v_mfma_f32_16x16x32_bf16 v[{28+4*t}:{31+4*t}], v[{12+4*t}:{15+4*t}], v[40:43], 0")
    k.e("s_mov_b32 exec_lo, 0x00010001"); k.e("s_mov_b32 exec_hi, 0x00010001")
    k.e("s_nop 7")
    k.e(f"buffer_store_dwordx4 v[28:31], v7, s[20:23], s42 offen{PSC}")
    k.e(f"buffer_store_dwordx4 v[32:35], v7, s[20:23], s42 offen offset:16{PSC}")
    k.e(f"buffer_store_dwordx4 v[36:39], v8, s[20:23], s43 offen{PSC}")
    k.e("s_mov_b64 exec, -1")
    k.e(f"s_branch L_{name}_end")
    k.label("L_prep_wq")
    k.e("s_cmp_ge_u32 s2, 54"); k.e(f"s_cbranch_scc1 L_{name}_end")
    sdivmod(k, 16, 15, 2, 3, 56)
    k.e("s_mul_i32 s17, s16, %d" % (32*3456)); k.e("s_mul_i32 s18, s15, 1152"); k.e("s_add_u32 s17, s17, s18")
    lin_dma(3, 72, 2304, 3456, 32, "s17")
    k.e("v_lshl_add_u32 v6, v2, 3, v3"); k.e("s_movk_i32 s19, 1152"); k.e("v_mul_u32_u24 v6, s19, v6")
    k.e("v_lshl_add_u32 v6, v4, 3, v6"); k.e("s_mul_i32 s19, s14, 96"); k.e("v_add_u32 v6, s19, v6")
    for j in range(4): k.e(f"v_mov_b32 v{40+j}, 0x3f803f80")
    k.e("s_mul_i32 s40, s15, 9")
    for t in range(3):
        k.e("v_bfe_u32 v7, v1, 3, 1"); k.e("s_mul_i32 s19, s14, 6"); k.e(f"s_add_u32 s19, s19, {2*t}"); k.e("v_add_u32 v7, s19, v7")
        divmod_const(k, 8, 9, 7, 9, 72, 19)
        k.e("v_add_u32 v9, s40, v9")
        k.e("v_mul_u32_u24 v8, 28, v8"); k.e("v_add_u32 v8, v8, v9")
        k.e("v_lshrrev_b32 v9, 1, v8"); k.e("s_movk_i32 s19, %d" % (18*1024)); k.e("v_mul_u32_u24 v9, s19, v9")
        k.e("v_and_b32 v8, 1, v8"); k.e("v_lshl_add_u32 v9, v8, 7, v9")
        k.e("v_lshl_add_u32 v9, v2, 8, v9"); k.e("v_and_b32 v8, 7, v1"); k.e(f"v_lshl_add_u32 v{24+t}, v8, 4, v9")
        k.e("v_lshrrev_b32 v7, 1, v2"); k.e("s_mul_i32 s19, s14, 6"); k.e(f"s_add_u32 s19, s19, {2*t}"); k.e("v_add_u32 v7, s19, v7")
        divmod_const(k, 8, 9, 7, 9, 72, 19)
        k.e("v_add_u32 v9, s40, v9"); k.e("v_mul_u32_u24 v8, 28, v8"); k.e("v_add_u32 v8, v8, v9")
        k.e("v_and_b32 v9, 1, v2"); k.e("v_lshlrev_b32 v9, 4, v9"); k.e(f"v_lshl_add_u32 v{44+t}, v8, 5, v9")
    k.e("s_lshl_b32 s17, s16, 10")
    if WQF: k.e(f"s_add_u32 s17, s17, 0x{WQF:x}")
    k.e("s_mul_i32 s42, s16, %d" % (8*224*4)); k.e(f"s_add_u32 s42, s42, 0x{CSQP:x}")
    k.e("s_waitcnt vmcnt(0)")
    k.e("s_barrier")
    for t in range(3):
        k.e(f"ds_read_b64_tr_b16 v[{12+4*t}:{13+4*t}], v6 offset:{32*t}")
        k.e(f"ds_read_b64_tr_b16 v[{14+4*t}:{15+4*t}], v6 offset:{32*t+4*1152}")
    for t in range(3):
        k.e(f"s_waitcnt lgkmcnt({4-2*t})")
        k.e(f"buffer_store_dwordx4 v[{12+4*t}:{15+4*t}], v{24+t}, s[20:23], s17 offen{PSC}")
        k.e(f"v_mfma_f32_16x16x32_bf16 v[{28+4*t}:{31+4*t}], v[{12+4*t}:{15+4*t}], v[40:43], 0")
    k.e("s_mov_b32 exec_lo, 0x00010001"); k.e("s_mov_b32 exec_hi, 0x00010001")
    k.e("s_nop 7")
    for t in range(3):
        k.e(f"buffer_store_dwordx4 v[{28+4*t}:{31+4*t}], v{44+t}, s[20:23], s42 offen{PSC}")
    k.e("s_mov_b64 exec, -1")
    k.e(f"s_branch L_{name}_end")
    k.label("L_prep_w2")
    k.e(f"s_sub_u32 s16, s16, {b[3]//8}")
    k.e("s_mul_i32 s17, s15, 18"); k.e("s_add_u32 s17, s17, s16"); k.e("s_mul_i32 s17, s17, 36864")
    k.e("s_lshl_b32 s19, s14, 10"); k.e("s_add_u32 s17, s17, s19")
    for i in range(3):
        dma(k, [f"s_add_u32 m0, s19, {12288*i}"], 5, 28, "s17")
        if i < 2: k.e("s_add_u32 s17, s17, 12288")
    sdivmod(k, 40, 41, 16, 3, 18)
    k.e("s_cmp_eq_u32 s41, 2"); k.e("s_cselect_b32 s44, 2, 3"); k.e("s_movk_i32 s45, %d" % (4*1152)); k.e("s_cselect_b32 s45, %d, s45" % (16*1152))
    k.e("v_lshlrev_b32 v6, s44, v2"); k.e("v_add_u32 v6, v6, v3")
    k.e("s_movk_i32 s19, 1152"); k.e("v_mul_u32_u24 v6, s19, v6")
    k.e("s_mul_i32 s19, s14, 96"); k.e("v_add_u32 v6, s19, v6")
    k.e("v_lshl_add_u32 v10, v4, 3, v6"); k.e("v_add_u32 v10, 64, v10")
    k.e("v_lshl_add_u32 v6, v4, 4, v6")
    k.e("v_add_u32 v9, s45, v6"); k.e("v_add_u32 v11, s45, v10")
    k.e("s_mul_i32 s17, s15, 12"); k.e("s_add_u32 s17, s17, s14"); k.e("s_mul_i32 s17, s17, 36"); k.e("s_add_u32 s17, s17, s16"); k.e("s_add_u32 s17, s17, 18")
    k.e("s_mul_i32 s17, s17, 3072"); k.e(f"s_add_u32 s17, s17, 0x{WFF:x}")
    k.e("s_waitcnt vmcnt(0)")
    k.e("s_barrier")
    for t in range(2):
        k.e(f"ds_read_b64_tr_b16 v[{12+4*t}:{13+4*t}], v6 offset:{8*t}")
        k.e(f"ds_read_b64_tr_b16 v[{14+4*t}:{15+4*t}], v9 offset:{8*t}")
    k.e(f"ds_read_b64_tr_b16 v[20:21], v10")
    k.e(f"ds_read_b64_tr_b16 v[22:23], v11")
    for t in range(3):
        k.e(f"s_waitcnt lgkmcnt({4-2*t})")
        k.e(f"buffer_store_dwordx4 v[{12+4*t}:{15+4*t}], v5, s[20:23], s17 offen offset:{1024*t}{PSC}")
    k.e(f"s_branch L_{name}_end")
    k.label("L_prep_wo")
    k.e(f"s_sub_u32 s16, s16, {b[4]//8}")
    k.e("s_mul_i32 s17, s16, %d" % (72*1152)); k.e("s_mul_i32 s18, s15, 144"); k.e("s_add_u32 s17, s17, s18")
    lin_dma(1, 9, 768, 1152, 36, "s17")
    k.e("s_lshl_b32 s44, s14, 2"); k.e("v_add_u32 v6, s44, v2"); k.e("v_min_u32 v6, 44, v6")
    divmod_const(k, 8, 7, 6, 5, 48, 19)
    k.e("v_lshrrev_b32 v9, 1, v8"); k.e("v_mul_u32_u24 v9, 18, v9")
    k.e("v_and_b32 v10, 1, v8"); k.e("v_lshl_add_u32 v9, v10, 3, v9")
    k.e("v_add_u32 v9, v9, v3")
    k.e("v_add_u32 v10, 4, v9")
    k.e("v_lshrrev_b32 v11, 1, v3"); k.e("v_mul_u32_u24 v11, 18, v11"); k.e("v_and_b32 v16, 1, v3")
    k.e("v_add3_u32 v11, v11, v16, 16")
    k.e("v_add_u32 v16, 36, v11")
    k.e("v_cmp_eq_u32 vcc, 8, v8")
    k.e("s_nop 1")
    k.e("v_cndmask_b32 v9, v9, v11, vcc"); k.e("v_cndmask_b32 v10, v10, v16, vcc")
    k.e("s_movk_i32 s19, 144"); k.e("v_mul_u32_u24 v9, s19, v9"); k.e("v_mul_u32_u24 v10, s19, v10")
    k.e("v_lshlrev_b32 v11, 5, v7"); k.e("v_lshl_add_u32 v11, v4, 3, v11")
    k.e("v_add_u32 v9, v9, v11"); k.e("v_add_u32 v10, v10, v11")
    k.e("s_movk_i32 s19, %d" % (18*1024)); k.e("v_mul_u32_u24 v7, s19, v7")
    k.e("s_mul_i32 s19, s16, 9"); k.e("v_add_u32 v8, s19, v8"); k.e("v_lshl_add_u32 v7, v8, 8, v7")
    k.e("v_and_b32 v8, 15, v1"); k.e("v_lshl_add_u32 v7, v8, 4, v7")
    k.e("s_mul_i32 s44, s15, %d" % (5*18*1024)); k.e(f"s_add_u32 s44, s44, 0x{WOF:x}")
    k.e("s_waitcnt vmcnt(0)")
    k.e("s_barrier")
    k.e("ds_read_b64_tr_b16 v[12:13], v9")
    k.e("ds_read_b64_tr_b16 v[14:15], v10")
    k.e("s_waitcnt lgkmcnt(0)")
    k.e(f"buffer_store_dwordx4 v[12:15], v7, s[20:23], s44 offen{PSC}")
    k.e(f"s_branch L_{name}_end")
    k.label("L_prep_x0")
    k.e(f"s_sub_u32 s16, s16, {b[1]//8}")
    k.e("s_lshl_b32 s17, s15, 3"); k.e("s_add_u32 s17, s17, s16")
    k.e("s_mul_i32 s18, s17, 36864"); k.e("s_lshl_b32 s19, s14, 10"); k.e("s_add_u32 s40, s18, s19")
    for i in range(3):
        dma(k, [f"s_add_u32 m0, s19, {12288*i}"], 5, 52, "s40")
        if i < 2: k.e("s_add_u32 s40, s40, 12288")
    k.e(f"s_cmp_ge_u32 s14, {8 if FW else 1}"); k.e("s_cbranch_scc1 L_prep_x0b")
    for j in range(4): k.e(f"v_mov_b32 v{40+j}, 0")
    k.e(f"s_lshl_b32 s18, s17, {GSH+3}"); k.e(f"s_add_u32 s18, s18, 0x{FLG:x}"); k.e("s_add_u32 s18, s18, s19")
    k.e(f"buffer_store_dwordx4 v[40:43], v5, s[20:23], s18 offen{PSC}")
    k.label("L_prep_x0b")
    k.e("v_and_b32 v6, 31, v1"); k.e("v_lshrrev_b32 v7, 5, v1")
    k.e("s_movk_i32 s19, 1152"); k.e("v_mul_u32_u24 v8, s19, v6"); k.e("v_lshl_add_u32 v8, v7, 4, v8")
    k.e("s_mul_i32 s19, s14, 96"); k.e("v_add_u32 v8, s19, v8")
    k.e("v_lshlrev_b32 v9, 10, v7"); k.e("v_lshl_add_u32 v9, v6, 4, v9")
    k.e("s_lshr_b32 s40, s17, 1"); k.e(f"s_mul_i32 s40, s40, {TILEB}"); k.e("s_and_b32 s41, s17, 1"); k.e("s_lshl_b32 s41, s41, 9"); k.e("s_add_u32 s40, s40, s41")
    k.e("s_mul_i32 s41, s14, 6144"); k.e("s_add_u32 s40, s40, s41"); k.e(f"s_add_u32 s40, s40, 0x{X0P:x}"); k.e("s_add_u32 s41, s40, 4096")
    k.e("s_waitcnt vmcnt(0)")
    k.e("s_barrier")
    for i in range(3): k.e(f"ds_read_b128 v[{12+4*i}:{15+4*i}], v8 offset:{32*i}")
    for i in range(3):
        k.e(f"s_waitcnt lgkmcnt({2-i})")
        k.e(f"buffer_store_dwordx4 v[{12+4*i}:{15+4*i}], v9, s[20:23], s{40 if i < 2 else 41} offen offset:{2048*(i%2)}{PSC}")
    footer(k, name)
    return name, k.text(), desc(name, 48), (NT, 768, 36864)


def gemm_loop(k, nks, order, acc, bbuf, aslot, bread, ks0, nm, after=None, pre=None, BD=1, atag=None, gate=None):
    atag = atag or (lambda ks: ("a", ks0 + ks))
    nb = BD + 1
    for d in range(min(BD, nks)):
        if gate: gate(d)
        for mi in range(nm): bread(d, mi, bbuf(d % nb, mi))
    if pre: pre()
    for ks in range(nks):
        late = gate is not None and ks + BD < nks and gate(ks + BD, True)
        if ks + BD < nks and not late:
            for mi in range(nm): bread(ks + BD, mi, bbuf((ks + BD) % nb, mi))
        k.wait(vm=[atag(ks)], lg=[("b", ks)])
        for (mi, t) in order:
            c = "0" if ks == 0 else vr(acc(mi, t), 4)
            k.e(f"v_mfma_f32_16x16x32_bf16 {vr(acc(mi,t),4)}, {vr(aslot(ks0+ks,t),4)}, {vr(bbuf(ks % nb,mi),4)}, {c}")
        if after: after(ks)
        if late:
            gate(ks + BD)
            for mi in range(nm): bread(ks + BD, mi, bbuf((ks + BD) % nb, mi))

FS = os.environ.get("FS", "")
CM = ENV("CM", 0)
CPA = ENV("CPA", 0)
GX = ENV("GX", 1)
GXC = ENV("GXC", 1)
assert ENV("ROT", 0) == 0
A_HL = 73728
A_QK = 92160
QP, QPL = 48, 3968
TSTR = 4 * QPL
A_VP = A_QK + 2*TSTR
VPP, VPL = 80, 6784
A_ST = A_VP + 4*VPL
A_PM, A_PH = A_QK, A_QK + 6144
B_XB = 73728
C_HB = 73728
C_CS = 155648
C_B1 = C_CS + 3072
A_CQ = C_B1 + 2048
A_TB = A_CQ + 1024
C_ST = 147456
A_PQ = A_QK + 12288
C_PM = 98304
A_SCR = A_ST + 640
CNT = 163328
LDS_TOTAL = 163840
CA_ST, CA_DONE, CB_DONE, CC_ST, CC_W1, CC_H0, CC_DONE, CD_DONE, CC_K2, CD_GO, CA_GO, CA_W, CA_X, CC_X = 0, 1, 2, 3, 4, 5, 8, 11, 19, 16, 20, 23, 24, 28
CB_X = 14
S_CL, S_WL, S_EARLY = 60, 61, 57
WSZ = 0x5000000
SXC = MAP["ffn"]

S_W, S_LAY, S_XIN, S_O, S_X1, S_P, S_FL, S_R, S_S, S_RC, S_SC, S_IDX, S_CNT, S_ROT, S_ROT2 = 3, 22, 23, 24, 25, 26, 28, 29, 30, 31, 32, 33, 27, 34, 35
WS = "s[8:11]"
V_L, V_L16, V_G, V_M = 1, 2, 3, 4
AR, EX = 88, 160

def lds_signal(k, slot, vt, byclass=False):
    k.e(f"s_add_u32 s36, s{S_CNT}, {4*slot}")
    if byclass:
        k.e(f"s_lshl_b32 s37, s{S_CL}, 2"); k.e("s_add_u32 s36, s36, s37")
    k.e(f"v_mov_b32 v{vt}, s36"); k.e(f"v_mov_b32 v{vt+1}, 1")
    k.e("s_mov_b64 exec, 1")
    k.lds(f"ds_add_u32 v{vt}, v{vt+1}", "cnt")
    k.e("s_mov_b64 exec, -1")

def lds_wait(k, slot, n, vt, sleep=2, byclass=False):
    lab = k.newlabel("L_lw")
    k.e(f"s_add_u32 s36, s{S_CNT}, {4*slot}")
    if byclass:
        k.e(f"s_lshl_b32 s37, s{S_CL}, 2"); k.e("s_add_u32 s36, s36, s37")
    k.e(f"v_mov_b32 v{vt}, s36")
    k.label(lab)
    k.e(f"ds_read_b32 v{vt+1}, v{vt}")
    k.e("s_waitcnt lgkmcnt(0)"); k.lg = []
    k.e(f"v_readfirstlane_b32 s36, v{vt+1}")
    k.e("s_nop 3")
    k.e(f"s_cmp_ge_u32 s36, {n}"); k.e(f"s_cbranch_scc1 {lab}_ok")
    k.e(f"s_sleep {sleep}")
    k.e(f"s_branch {lab}")
    k.label(f"{lab}_ok")

def SC(name):
    return "" if name in os.environ.get("NOSC", "").split(",") else " sc1"
def publish(k, slot, n, fbase, s_r, s_s, vt, byclass=False, sc=" sc1"):
    lab = k.newlabel("L_pub")
    k.e(f"s_add_u32 s36, s{S_CNT}, {4*slot}")
    k.e(f"s_lshl_b32 s37, s{s_r}, {GSH}")
    if not CM:
        k.e(f"s_lshl_b32 s38, s{s_s}, {FSH}"); k.e("s_add_u32 s37, s37, s38")
    k.e(f"s_add_u32 s37, s37, s{S_FL}"); k.e(f"s_add_u32 s37, s37, {fbase}")
    if byclass:
        k.e(f"s_lshl_b32 s38, s{S_CL}, 2"); k.e("s_add_u32 s36, s36, s38")
        k.e(f"s_lshl_b32 s38, s{S_CL}, {GSH+5}"); k.e("s_add_u32 s37, s37, s38")
    k.e("s_waitcnt vmcnt(0)"); k.vm = []
    k.e(f"v_mov_b32 v{vt}, s36"); k.e(f"v_mov_b32 v{vt+1}, 1")
    k.e("s_mov_b64 exec, 1")
    k.e(f"ds_add_rtn_u32 v{vt}, v{vt}, v{vt+1}")
    k.e("s_waitcnt lgkmcnt(0)"); k.lg = []
    k.e(f"v_readfirstlane_b32 s36, v{vt}")
    k.e(f"v_mov_b32 v{vt}, 0")
    k.e("s_nop 2")
    k.e(f"s_cmp_lg_u32 s36, {n-1}"); k.e(f"s_cbranch_scc1 {lab}")
    if CM: k.e(f"buffer_atomic_add v{vt+1}, v{vt}, {WS}, s37 offen sc1")
    elif ENV("FA", 0): k.e(f"buffer_atomic_or v{vt+1}, v{vt}, {WS}, s37 offen sc1")
    else: k.e(f"buffer_store_dword v{vt+1}, v{vt}, {WS}, s37 offen{sc}")
    k.label(lab)
    k.e("s_mov_b64 exec, -1")

def PV(x): return 87 if ENV('P2', 0) else x
def poll(k, voff, soff, mask, vt):
    lab = k.newlabel("L_aw")
    if CM: mask = {0xff: 0x1, 0xffff: 0x101}[mask]
    k.e(f"s_mov_b64 exec, 0x{mask:x}")
    k.e("s_mov_b32 s38, 0x20000")
    if ENV("P2", 0):
        k.e(f"buffer_load_dword v{vt}, v{voff}, {WS}, s{soff} offen sc1")
        k.label(lab)
        for a, b in ((vt, 0), (0, vt)):
            k.e(f"s_sleep {ENV('P2', 0)}")
            k.e(f"buffer_load_dword v{b}, v{voff}, {WS}, s{soff} offen sc1")
            k.e("s_waitcnt vmcnt(1)")
            k.e(f"v_cmp_ne_u32 vcc, 1, v{a}")
            k.e("s_sub_u32 s38, s38, 1")
            k.e("s_nop 3")
            k.e(f"s_cbranch_vccz {lab}_ok")
        k.e("s_cmp_gt_i32 s38, 0"); k.e(f"s_cbranch_scc1 {lab}")
        k.label(f"{lab}_ok")
        k.vm = []
        k.e("s_mov_b64 exec, -1")
        return
    k.label(lab)
    PA_ = ENV("POLLA", 1)
    if PA_ == 1:
        k.e(f"v_mov_b32 v{vt}, 0")
        k.e(f"buffer_atomic_or v{vt}, v{voff}, {WS}, s{soff} offen sc0 sc1")
    elif PA_ == 2:
        k.e(f"buffer_load_dword v{vt}, v{voff}, {WS}, s{soff} offen sc1 nt")
    elif PA_ == 3:
        k.e(f"buffer_load_dword v{vt}, v{voff}, {WS}, s{soff} offen sc0 sc1 nt")
    else:
        k.e(f"buffer_load_dword v{vt}, v{voff}, {WS}, s{soff} offen sc1")
    k.e("s_waitcnt vmcnt(0)"); k.vm = []
    k.e(f"v_cmp_ne_u32 vcc, {8 if CM else 1}, v{vt}")
    k.e("s_sub_u32 s38, s38, 1")
    k.e("s_nop 3")
    k.e(f"s_cbranch_vccz {lab}_ok")
    k.e("s_cmp_eq_u32 s38, 0"); k.e(f"s_cbranch_scc1 {lab}_ok")
    k.e(f"s_sleep {ENV('PSLEEP', 3)}")
    k.e(f"s_branch {lab}")
    k.label(f"{lab}_ok")
    k.e("s_mov_b64 exec, -1")

def await_flags(k, fbase, s_r, vt, own=None):
    lab = k.newlabel("L_af")
    k.e(f"s_cmp_lg_u32 s{S_W}, {ENV('POLLW', 0)}"); k.e(f"s_cbranch_scc1 {lab}")
    if own and ENV("OWN", 1): lds_wait(k, own[0], own[1], vt, 1)
    k.e(f"s_lshl_b32 s37, s{s_r}, {GSH}"); k.e(f"s_add_u32 s37, s37, s{S_FL}"); k.e(f"s_add_u32 s37, s37, {fbase}")
    k.e(f"v_lshlrev_b32 v{vt}, {FSH}, v{V_L}")
    sv = k.snapshot()
    poll(k, vt, 37, 0xff, PV(vt+1))
    k.restore(sv)
    k.label(lab)
    k.e("s_barrier")

def poll_one(k, fbase, s_r, s_idx, vt):
    k.e(f"s_lshl_b32 s37, s{s_r}, 7"); k.e(f"s_lshl_b32 s38, s{s_idx}, 2"); k.e("s_add_u32 s37, s37, s38")
    k.e(f"s_add_u32 s37, s37, s{S_FL}"); k.e(f"s_add_u32 s37, s37, {fbase}")
    k.e(f"v_mov_b32 v{vt}, 0")
    poll(k, vt, 37, 1, vt+1)

def stats_acc(k, r4, va, first, sones):
    for j in range(4):
        c0 = "0" if (first and j == 0) else f"v{va}"
        c1 = "0" if (first and j == 0) else f"v{va+1}"
        k.e(f"v_dot2_f32_bf16 v{va}, v{r4+j}, s{sones}, {c0}")
        k.e(f"v_dot2_f32_bf16 v{va+1}, v{r4+j}, v{r4+j}, {c1}")

def stats_combine(k, src, R, vt, dst, halo, NP=12):
    k.e(f"v_lshlrev_b32 v{vt}, 3, v{V_L}"); k.e(f"v_add_u32 v{vt+1}, {src}, v{vt}")
    for p in range(NP): k.e(f"ds_read_b64 {vr(R+2*p,2)}, v{vt+1} offset:{512*p}")
    k.e("s_waitcnt lgkmcnt(0)")
    n = NP
    while n > 1:
        h = n // 2
        for j in range(h):
            k.e(f"v_add_f32 v{R+2*j}, v{R+2*j}, v{R+2*(n-1-j)}"); k.e(f"v_add_f32 v{R+2*j+1}, v{R+2*j+1}, v{R+2*(n-1-j)+1}")
        n -= h
    if halo:
        for op in ("v_permlane32_swap_b32", "v_permlane16_swap_b32"):
            k.e(f"v_mov_b32 v{R+2}, v{R}"); k.e(f"v_mov_b32 v{R+3}, v{R+1}")
            k.e("s_nop 1")
            k.e(f"{op} v{R}, v{R+2}"); k.e(f"{op} v{R+1}, v{R+3}")
            k.e("s_nop 1")
            k.e(f"v_add_f32 v{R}, v{R}, v{R+2}"); k.e(f"v_add_f32 v{R+1}, v{R+1}, v{R+3}")
        k.e(f"v_lshlrev_b32 v{vt}, 3, v{V_M}")
    k.e(f"v_mul_f32 v{R}, {f32(1/576)}, v{R}")
    k.e(f"v_mul_f32 v{R+1}, {f32(1/576)}, v{R+1}")
    k.e(f"v_fma_f32 v{R+1}, -v{R}, v{R}, v{R+1}")
    k.e(f"v_max_f32 v{R+1}, 0, v{R+1}")
    k.e(f"v_add_f32 v{R+1}, {f32(1e-5)}, v{R+1}")
    k.e(f"v_rsq_f32 v{R+2}, v{R+1}")
    k.e(f"v_add_u32 v{vt}, {dst}, v{vt}")
    k.e(f"v_mul_f32 v{R+3}, v{R}, v{R+2}")
    k.e(f"v_sub_f32 v{R+3}, 0, v{R+3}")
    k.e(f"ds_write_b64 v{vt}, {vr(R+2,2)}")
    k.e("s_waitcnt lgkmcnt(0)")

A_TILES = [9, 11, 4, 6, 0, 2, 13, 8, 0, 0, 0, 0]
def a_tile_setup(k):
    tab = sum(t << (4*i) for i, t in enumerate(A_TILES))
    k.e(f"s_mov_b32 s40, 0x{tab & 0xffffffff:x}"); k.e(f"s_mov_b32 s41, 0x{tab >> 32:x}")
    k.e(f"s_lshl_b32 s42, s{S_W}, 2"); k.e("s_lshr_b64 s[40:41], s[40:41], s42"); k.e("s_and_b32 s40, s40, 15")
    k.e(f"s_mul_i32 s41, s{S_S}, 14"); k.e("s_add_u32 s41, s41, s40")
    k.e(f"s_mul_i32 s42, s{S_W}, {2*8*224*4}"); k.e(f"s_mul_i32 s43, s{S_S}, 896"); k.e("s_add_u32 s42, s42, s43"); k.e(f"s_add_u32 s42, s42, 0x{CSQP:x}")
    k.e("s_mul_i32 s41, s41, %d" % (18*1024))
    if WQF: k.e(f"s_add_u32 s41, s41, 0x{WQF:x}")
DA = ENV("DA", 6)
def a_load1(k, i):
    k.e(f"s_add_u32 s43, s41, {i*1024}")
    k.vmem(f"buffer_load_dwordx4 {vr(AR+4*i,4)}, v{V_L16}, {WS}, s43 offen", ("a", i))
def a_load2(k, i):
    k.e(f"s_add_u32 s43, s41, {i*1024}"); k.e(f"s_add_u32 s44, s41, {(18+i)*1024}")
    k.vmem(f"buffer_load_dwordx4 {vr(AR+8*(i%9),4)}, v{V_L16}, {WS}, s43 offen", ("a0", i))
    k.vmem(f"buffer_load_dwordx4 {vr(AR+8*(i%9)+4,4)}, v{V_L16}, {WS}, s44 offen", ("a", i))
def a_prefetch(k, lo1, hi1, lo2, hi2, cs):
    lab = k.newlabel("L_apf")
    sv = k.snapshot()
    if cs:
        k.e(f"s_cmp_lt_u32 s{S_W}, 9"); k.e("s_cselect_b32 s43, 0, 0x70000000"); k.e(f"s_cmp_eq_u32 s{S_LAY}, 0"); k.e("s_cselect_b32 s43, s43, 0x70000000")
        k.e(f"v_or_b32 v6, s43, v{V_L16}")
        k.e(f"s_add_u32 s43, s42, {8*224*4}")
        k.e(f"buffer_load_dwordx4 {vr(EX,4)}, v6, {WS}, s42 offen")
        k.e(f"buffer_load_dwordx4 {vr(EX+4,4)}, v6, {WS}, s43 offen")
    k.e(f"s_cmp_lt_u32 s{S_W}, 6"); k.e(f"s_cbranch_scc1 {lab}_d")
    k.e(f"s_cmp_ge_u32 s{S_W}, 8"); k.e(f"s_cbranch_scc1 {lab}_f")
    for i in range(lo1, hi1): a_load1(k, i)
    k.e(f"s_branch {lab}_e")
    k.label(f"{lab}_f")
    for i in range(lo1, min(hi1, 9)): b_load(k, i)
    k.e(f"s_branch {lab}_e")
    k.label(f"{lab}_d")
    for i in range(lo2, hi2): a_load2(k, i)
    k.label(f"{lab}_e")
    k.restore(sv)

def b_setup(k):
    k.e(f"s_min_u32 s59, s{S_W}, 9")
    k.e(f"s_cmp_ge_u32 s59, 5"); k.e("s_cselect_b32 s45, 1, 0"); k.e("s_mul_i32 s46, s45, 5"); k.e(f"s_sub_u32 s46, s59, s46")
    k.e(f"s_mul_i32 s58, s{S_S}, 5"); k.e("s_add_u32 s58, s58, s46"); k.e("s_mul_i32 s58, s58, %d" % (18*1024))
    k.e("s_mul_i32 s59, s45, 9216"); k.e("s_add_u32 s58, s58, s59"); k.e(f"s_add_u32 s58, s58, 0x{WOF:x}")
def b_load(k, i):
    if i and i % 4 == 0: k.e(f"s_add_u32 s58, s58, 4096")
    k.vmem(f"buffer_load_dwordx4 {vr(124+4*i,4)}, v{V_L16}, {WS}, s58 offen offset:{(i%4)*1024}", ("wb", i))

def c_stream_init(k):
    k.e(f"s_mul_i32 s47, s{S_SC}, 12"); k.e(f"s_add_u32 s47, s47, s{S_W}"); k.e("s_mul_i32 s47, s47, %d" % (36*3072)); k.e(f"s_add_u32 s47, s47, 0x{WFF:x}")
    k.e(f"s_mul_i32 s48, s{S_ROT}, 3072"); k.e("s_add_u32 s48, s48, s47")
    k.e("s_add_u32 s49, s47, %d" % (18*3072))
def c_aload(k, i, tg="a"):
    if i >= 18 and (i - 18) % 6 == 0:
        k.e("s_mov_b32 s47, s49"); k.e(f"s_mul_i32 s48, s{S_ROT2}, 3072"); k.e("s_add_u32 s48, s48, s47"); k.e("s_add_u32 s49, s47, %d" % (6*3072))
    slot = i % 6
    for t in range(3):
        k.vmem(f"buffer_load_dwordx4 {vr(AR+12*slot+4*t,4)}, v{V_L16}, {WS}, s48 offen offset:{1024*t}", (tg, i) if t == 2 else (tg + "_", i))
    k.e("s_add_u32 s48, s48, 3072"); k.e("s_cmp_eq_u32 s48, s49"); k.e("s_cselect_b32 s48, s47, s48")

def touch_w(k, swidx, nwaves, t, dummy):
    G = ENV("TGRAN", 128)
    total = SXC * 12 * 36 * 3072 // G
    ni = -(-total // (32 * nwaves * 64))
    ng = 8 // SXC
    k.e(f"s_and_b32 s36, s2, {ng-1}"); k.e(f"s_mul_i32 s36, s36, {SXC*12*36*3072}"); k.e(f"s_add_u32 s36, s36, 0x{WFF:x}")
    k.e("s_lshr_b32 s37, s2, 3"); k.e(f"s_mul_i32 s37, s37, {nwaves}"); k.e(f"s_add_u32 s37, s37, s{swidx}"); k.e(f"s_mul_i32 s37, s37, {ni*64}")
    k.e(f"s_mov_b32 s38, {total}")
    for j in range(ni):
        k.e(f"v_add_u32 v{t}, s37, v{V_L}")
        if j: k.e(f"v_add_u32 v{t}, {64*j}, v{t}")
        k.e(f"v_min_u32 v{t}, s38, v{t}")
        k.e(f"v_lshlrev_b32 v{t}, {G.bit_length()-1}, v{t}")
        k.vmem(f"buffer_load_dword v{dummy}, v{t}, {WS}, s36 offen", "touch")

def phase_A(k):
    k.c("================ phase A")
    ACC, BB = 8, 28
    VB1, VB2, VH = 5, 6, 7
    if FS in ("", "A"): stamp(k, 1)
    k.e(f"s_mul_i32 s39, s{S_R}, {TILEB}"); k.e(f"s_add_u32 s39, s39, s{S_XIN}")
    k.e(f"s_mul_i32 s36, s{S_W}, 6144"); k.e("s_add_u32 s37, s39, s36"); k.e("s_add_u32 s38, s37, 4096")
    k.vm = []
    for i in range(6):
        k.vmem(f"buffer_load_dwordx4 {vr(8+4*i,4)}, v{V_L16}, {WS}, s{37 if i < 4 else 38} offen offset:{(i%4)*1024} sc1", ("x", i))
    k.e(f"v_lshlrev_b32 v{VB1}, 10, v{V_G}"); k.e(f"v_lshl_add_u32 v{VB1}, v{V_M}, 4, v{VB1}")
    k.e(f"s_cmp_eq_u32 s{S_R}, 0"); k.e("s_cselect_b32 s38, 0x70000000, 0")
    k.e(f"v_add_u32 v{VH}, s38, v{VB1}")
    k.e(f"s_mul_i32 s50, s{S_CL}, 6"); k.e(f"s_add_u32 s50, s50, s{S_WL}")
    k.e("s_lshl_b32 s37, s50, 12"); k.e("s_add_u32 s37, s37, s39"); k.e(f"s_sub_u32 s37, s37, {TILEB-768}")
    k.vmem(f"buffer_load_dwordx4 {vr(32,4)}, v{VH}, {WS}, s37 offen sc1", ("x", 6))
    k.e(f"s_cmp_ge_u32 s{S_WL}, 2"); k.e("s_cselect_b32 s38, 0x70000000, 0"); k.e(f"v_or_b32 v{VB2}, s38, v{VH}")
    k.e(f"s_add_u32 s37, s37, {4*4096}")
    k.vmem(f"buffer_load_dwordx4 {vr(36,4)}, v{VB2}, {WS}, s37 offen sc1", ("x", 7))
    a_tile_setup(k)
    PA = ENV("PA", 2)
    b_setup(k)
    c_stream_init(k)
    E1, E2 = ENV("E1", 18), ENV("E2", 9)
    def stage(extra):
        k.e("s_mov_b32 s38, 0x3f803f80")
        k.e(f"v_add_u32 v{VB2}, s36, v{V_L16}")
        for i in range(8):
            if extra is not None: k.e(f"s_waitcnt vmcnt({7-i+extra})")
            if i < 6:
                k.e(f"ds_write_b128 v{VB2}, {vr(8+4*i,4)} offset:{1024*i}")
                if extra is not None: stats_acc(k, 8+4*i, 40, i == 0, 38)
            else:
                if i == 6:
                    k.e("s_lshl_b32 s37, s50, 10"); k.e(f"s_add_u32 s37, s37, {A_HL}"); k.e(f"v_add_u32 v{VB2}, s37, v{V_L16}")
                    k.e(f"ds_write_b128 v{VB2}, {vr(8+4*i,4)}")
                if extra is not None: stats_acc(k, 8+4*i, 42, i == 6, 38)
        if extra is not None: k.e(f"s_waitcnt vmcnt({extra-2})")
    k.label("L_A_late")
    if GX:
        k.e(f"s_cmp_lg_u32 s{S_LAY}, 0"); k.e("s_cbranch_scc1 L_A_nob1")
    k.e("s_barrier")
    if GX: k.label("L_A_nob1")
    a_prefetch(k, 0, PA, 0, PA//2, True)
    stage(PA + 2)
    k.label("L_A_st")
    def late(fn): fn()
    k.e(f"s_cmp_ge_u32 s{S_WL}, 2"); k.e("s_cbranch_scc1 L_A_xs")
    k.e(f"ds_write_b128 v{VB2}, {vr(36,4)} offset:4096")
    k.label("L_A_xs")
    k.e(f"s_lshl_b32 s37, s{S_W}, 9"); k.e(f"v_lshlrev_b32 v{VB2}, 3, v{V_L}"); k.e(f"v_add_u32 v{VB2}, s37, v{VB2}"); k.e(f"v_add_u32 v{VB2}, {A_PM}, v{VB2}")
    k.e(f"ds_write_b64 v{VB2}, v[40:41]"); k.e(f"ds_write_b64 v{VB2}, v[42:43] offset:6144")
    k.e(f"s_cmp_lg_u32 s{S_LAY}, 0"); k.e("s_cbranch_scc1 L_A_nocq")
    k.e(f"s_waitcnt vmcnt({PA})")
    for j in range(4): k.e(f"v_add_f32 v{EX+j}, v{EX+j}, v{EX+4+j}")
    k.e(f"s_lshl_b32 s37, s{S_W}, 10"); k.e(f"s_add_u32 s37, s37, {A_PQ}"); k.e(f"v_add_u32 v{VB2}, s37, v{V_L16}")
    k.e(f"ds_write_b128 v{VB2}, {vr(EX,4)}")
    k.label("L_A_nocq")
    k.e("s_waitcnt lgkmcnt(0)")
    if FS in ("", "A"): stamp(k, 2)
    if GX:
        lds_signal(k, CA_X, 44, byclass=True)
        k.e("s_waitcnt lgkmcnt(0)")
    else:
        k.e("s_barrier")
    k.lg = []
    def gateA(ks, query=False):
        if not GX or ks % 6: return False
        if query: return True
        lds_wait(k, CA_X + ks//6, 4, EX)
    if FS == "G": stamp(k, 2)
    k.e(f"s_cmp_ge_u32 s{S_W}, 8"); k.e("s_cbranch_scc1 L_A_free")
    k.e(f"v_add_u32 v{VB2}, 49152, v{VB1}")
    k.e(f"v_add_u32 v{VH}, {A_HL}, v{V_L16}")
    def mk_bread(mts):
        def bread(ks, mi, reg):
            mt = mts[mi]
            if mt == 0:
                k.lds(f"ds_read_b128 {vr(reg,4)}, v{VH} offset:{ks*1024}", ("b", ks))
            else:
                off = ks*4096 + (mt-1)*256; base = VB1
                if off >= 49152: off -= 49152; base = VB2
                k.lds(f"ds_read_b128 {vr(reg,4)}, v{base} offset:{off}", ("b", ks))
        return bread
    def epi_stats(mts, T):
        sa = T + 5; ST = T + 6
        if FS == "G": stamp(k, 4)
        lds_wait(k, CA_ST, 3, T)
        k.e(f"v_lshlrev_b32 v{sa}, 3, v{V_M}"); k.e(f"v_add_u32 v{sa}, {A_ST}, v{sa}")
        for mi, mt in enumerate(mts):
            k.lds(f"ds_read_b64 {vr(ST+2*mi,2)}, v{sa} offset:{mt*128}", "str")
        k.e("s_lshl_b32 s36, s40, 5"); k.e(f"s_add_u32 s37, s36, {A_TB}"); k.e("s_lshl_b32 s36, s36, 1"); k.e(f"s_add_u32 s36, s36, {A_CQ}")
        k.e(f"v_lshl_add_u32 v{sa}, v{V_G}, 3, s37"); k.e(f"v_lshl_add_u32 v{T+4}, v{V_G}, 4, s36")
        k.lds(f"ds_read_b64 {vr(T,2)}, v{sa}", "str"); k.lds(f"ds_read_b64 {vr(T+2,2)}, v{sa} offset:32", "str")
        k.lds(f"ds_read_b128 {vr(EX,4)}, v{T+4}", "str"); k.lds(f"ds_read_b128 {vr(EX+4,4)}, v{T+4} offset:64", "str")
    def epilogue(tadd, mts, accf, csr, vpath, T):
        a0, a1, p, H, t, sa = T, T+1, T+2, T+3, T+4, T+5
        ST = T + 6; U = T + 16
        if tadd: a0, a1 = T+2, T+3
        k.e(f"v_mul_u32_u24 v{t}, {VPP if vpath else QP}, v{V_M}")
        if vpath:
            k.e("s_mov_b32 s36, 0x05040100"); k.e("s_mov_b32 s37, 0x07060302")
        k.wait(lg=["str"])
        k.e(f"v_add_u32 v{a0}, v{a0}, v{t}"); k.e(f"v_add_u32 v{a1}, v{a1}, v{t}")
        for mi, mt in enumerate(mts):
            r = accf(mi)
            for j in range(4):
                k.e(f"v_mul_f32 v{r+j}, v{r+j}, v{ST+2*mi}")
                k.e(f"v_fmac_f32 v{r+j}, v{ST+2*mi+1}, v{csr+j}")
            k.e(f"v_cvt_pk_bf16_f32 v{r}, v{r}, v{r+1}")
            k.e(f"v_cvt_pk_bf16_f32 v{r+1}, v{r+2}, v{r+3}")
            if not vpath:
                k.lds(f"ds_write_b32 v{a0}, v{r} offset:{mt*16*QP}", "qw")
                k.lds(f"ds_write_b32 v{a1}, v{r+1} offset:{mt*16*QP}", "qw")
        if vpath:
            for mi, mt in enumerate(mts):
                r = accf(mi); u = U + 4*(mi & 1)
                if mi:
                    rp = accf(mi-1)
                    k.e(f"v_mov_b32_dpp v{r+2}, v{rp} row_shl:14 row_mask:0xf bank_mask:0xf")
                    k.e(f"v_mov_b32_dpp v{r+3}, v{rp+1} row_shl:14 row_mask:0xf bank_mask:0xf")
                k.e(f"v_mov_b32_dpp v{r+2}, v{r} row_shr:2 row_mask:0xf bank_mask:0xf")
                k.e(f"v_mov_b32_dpp v{r+3}, v{r+1} row_shr:2 row_mask:0xf bank_mask:0xf")
                k.e(f"v_perm_b32 v{u}, v{r+2}, v{r}, s36"); k.e(f"v_perm_b32 v{u+1}, v{r+2}, v{r}, s37")
                k.e(f"v_perm_b32 v{u+2}, v{r+3}, v{r+1}, s36"); k.e(f"v_perm_b32 v{u+3}, v{r+3}, v{r+1}, s37")
                k.lds(f"ds_write_b64 v{a0}, {vr(u,2)} offset:{mt*16*VPP}", "qw")
                k.lds(f"ds_write_b64 v{a1}, {vr(u+2,2)} offset:{mt*16*VPP}", "qw")
    def pair_path(mts, accb, bb, bstride, BD):
        nm = len(mts)
        k.lg = []
        k.vm = ["cs", "cs"] + [x for i in range(PA//2) for x in (("a0", i), ("a", i))]
        DA2 = ENV("DA2", 5)
        st = dict(c=0, b=0, n=PA//2)
        def ld(i):
            if i < E2: late(lambda: a_load2(k, i))
            else: a_load2(k, i)
        def pre():
            while st["n"] < DA2: ld(st["n"]); st["n"] += 1
        def after(ks):
            if FS == "G" and ks == 8: stamp(k, 3)
            while st["n"] < 18 and st["n"] <= ks + (DA2 if st["n"] < E2 else max(DA2, E2)):
                ld(st["n"]); st["n"] += 1
            if ks >= 9:
                free = 8*(ks - 8)
                while st["c"] < CPA and 12*(st["c"]+1) <= free:
                    c_aload(k, st["c"], "c"); st["c"] += 1
                while st["b"] < 9 and 36 + 4*(st["b"]+1) <= free:
                    b_load(k, st["b"]); st["b"] += 1
        pre()
        gemm_loop(k, 18, [(mi, t) for mi in range(nm) for t in range(2)], lambda mi, t: accb + 4*nm*t + 4*mi, lambda par, mi: bb + bstride*par + 4*mi,
                  lambda i_, t: AR + 8*(i_ % 9) + 4*t, mk_bread(mts), 0, nm, after, None, BD=BD, gate=gateA)
        epi_stats(mts, bb)
    m5 = [0, 1, 2, 3, 4]; m4 = [1, 2, 3, 4]
    k.e(f"s_cmp_ge_u32 s{S_W}, 6"); k.e("s_cbranch_scc1 L_A_single")
    k.e(f"s_cmp_ge_u32 s{S_W}, 4"); k.e("s_cbranch_scc1 L_A_qpair")
    pair_path(m5, 8, 48, 20, 1)
    sv = k.snapshot()
    k.e(f"s_cmp_lt_u32 s{S_W}, 2"); k.e("s_cbranch_scc1 L_A_vpair")
    epilogue(0, m5, lambda mi: 8 + 4*mi, EX, False, 48)
    epilogue(1, m5, lambda mi: 28 + 4*mi, EX+4, False, 48)
    k.e("s_branch L_A_att")
    k.label("L_A_vpair")
    k.restore(sv)
    epilogue(0, m5, lambda mi: 8 + 4*mi, EX, True, 48)
    epilogue(1, m5, lambda mi: 28 + 4*mi, EX+4, True, 48)
    k.e("s_branch L_A_att")
    k.label("L_A_qpair")
    pair_path(m4, 8, 40, 16, 2)
    epilogue(0, m4, lambda mi: 8 + 4*mi, EX, False, 40)
    epilogue(1, m4, lambda mi: 24 + 4*mi, EX+4, False, 40)
    k.e("s_branch L_A_att")
    k.label("L_A_single")
    k.lg = []
    k.vm = ["cs", "cs"] + [("a", i) for i in range(PA)]
    def ld1(i):
        if i < E1: late(lambda: a_load1(k, i))
        else: a_load1(k, i)
    def pre1():
        for i in range(PA, DA): ld1(i)
    def after1(ks):
        if ks + DA < 18: ld1(ks + DA)
        if ks in (9, 11, 13) and (ks - 9)//2 < CPA: c_aload(k, (ks - 9)//2, "c")
        if ks >= 9: b_load(k, ks - 9)
    pre1()
    gemm_loop(k, 18, [(mi, 0) for mi in range(5)], lambda mi, t: ACC + 4*mi, lambda par, mi: BB + 20*par + 4*mi,
              lambda i_, t: AR + 4*i_, mk_bread(m5), 0, 5, after1, None, BD=2, gate=gateA)
    epi_stats(m5, 28)
    sv = k.snapshot()
    k.e("s_cmp_ge_u32 s40, 9"); k.e("s_cbranch_scc1 L_A_vp")
    epilogue(0, m5, lambda mi: ACC + 4*mi, EX, False, 28)
    k.e("s_branch L_A_att")
    k.label("L_A_vp")
    k.restore(sv)
    k.e("s_mov_b32 exec_hi, 0")
    k.e("s_nop 4")
    epilogue(0, m5, lambda mi: ACC + 4*mi, EX, True, 28)
    k.e("s_mov_b64 exec, -1")
    k.e("s_branch L_A_att")
    k.label("L_A_free")
    k.e(f"s_cmp_eq_u32 s{S_W}, 9"); k.e("s_cbranch_scc1 L_A_fr2")
    if GX:
        for c in range(3): lds_wait(k, CA_X + c, 4, 8)
    k.e(f"s_cmp_eq_u32 s{S_W}, 8"); k.e("s_cbranch_scc1 L_A_combq")
    k.e(f"s_cmp_eq_u32 s{S_W}, 11"); k.e("s_cbranch_scc1 L_A_combh")
    stats_combine(k, A_PM, 8, VB2, A_ST + 128, False)
    k.e("s_branch L_A_combd")
    k.label("L_A_combh")
    stats_combine(k, A_PH, 8, VB2, A_ST, True)
    k.e("s_branch L_A_combd")
    k.label("L_A_combq")
    k.e(f"s_cmp_lg_u32 s{S_LAY}, 0"); k.e("s_cbranch_scc1 L_A_combd")
    k.e(f"v_add_u32 v{VB2}, {A_PQ}, v{V_L16}")
    for p in range(9): k.e(f"ds_read_b128 {vr(8+4*p,4)}, v{VB2} offset:{1024*p}")
    k.e(f"v_add_u32 v{VB2}, {A_CQ}, v{V_L16}")
    k.e("s_waitcnt lgkmcnt(0)")
    for p in range(1, 9):
        for j in range(4): k.e(f"v_add_f32 v{8+j}, v{8+j}, v{8+4*p+j}")
    k.e(f"ds_write_b128 v{VB2}, v[8:11]")
    k.e("s_waitcnt lgkmcnt(0)")
    k.label("L_A_combd")
    lds_signal(k, CA_ST, 8)
    k.e("s_waitcnt lgkmcnt(0)"); k.lg = []
    k.label("L_A_fr2")
    k.label("L_A_att")
    k.vm = []; k.lg = []
    k.e("s_waitcnt lgkmcnt(0)")
    if FS in ("", "A"): stamp(k, 3)
    if FS == "G": stamp(k, 5)
    k.e("s_barrier")
    if FS == "A": stamp(k, 4)
    if FS == "G": stamp(k, 6)
    k.e(f"s_cmp_ge_u32 s{S_W}, 8"); k.e("s_cbranch_scc1 L_A_cs")
    VI, VHH, VQ, VK, VV = 5, 6, 7, 86, 87
    Q, KK, VP_, OA, PP, T0 = 8, 20, 20, 68, EX, EX+4
    att_start = len(k.lines)
    VHD = EX+6
    k.e(f"s_lshl_b32 s41, s{S_W}, 3")
    k.e(f"v_and_b32 v{VI}, 7, v{V_L}"); k.e(f"v_add_u32 v{VI}, s41, v{VI}")
    k.e(f"v_lshrrev_b32 v{VHH}, 5, v{V_L}")
    k.e(f"v_bfe_u32 v{VHD}, v{V_L}, 3, 2")
    k.e(f"v_mul_u32_u24 v{VQ}, {QP}, v{VI}")
    k.e(f"v_mul_u32_u24 v{VK}, 0x{QPL:x}, v{VHD}")
    k.e(f"s_mov_b32 s36, {A_QK + 16*QP}")
    k.e(f"v_add3_u32 v{VQ}, v{VQ}, v{VK}, s36")
    k.e(f"v_mul_u32_u24 v{VK}, 0x{8*QP:x}, v{VHH}"); k.e(f"v_sub_u32 v{VK}, v{VQ}, v{VK}")
    k.e(f"v_lshlrev_b32 v{T0}, 3, v{VHH}"); k.e(f"v_sub_u32 v{T0}, v{VI}, v{T0}")
    k.e(f"v_add_u32 v{VV}, 12, v{T0}"); k.e(f"v_mul_u32_u24 v{VV}, 0x{VPP:x}, v{VV}")
    k.e(f"v_mul_u32_u24 v{T0+1}, 0x{VPL:x}, v{VHD}"); k.e(f"s_mov_b32 s36, {A_VP}"); k.e(f"v_add3_u32 v{VV}, v{VV}, v{T0+1}, s36")
    def rdvec(reg, va, off, tag):
        k.lds(f"ds_read_b128 {vr(reg,4)}, v{va} offset:{off}", tag)
        k.lds(f"ds_read_b128 {vr(reg+4,4)}, v{va} offset:{off+16}", tag)
        k.lds(f"ds_read_b128 {vr(reg+8,4)}, v{va} offset:{off+32}", tag)
    rdvec(Q, VQ, 0, "q")
    for j in range(4): rdvec(KK + 12*j, VK, TSTR - 2*j*QP, ("k", j))
    k.e(f"s_lshl_b32 s36, s{S_R}, 6"); k.e(f"v_add_u32 v{T0}, s36, v{T0}")
    for j in range(4):
        k.e(f"v_cmp_le_i32 s[{50+2*j}:{51+2*j}], {2*j}, v{T0}")
    k.wait(lg=["q", ("k", 1)])
    for jj in range(9):
        for j in range(2):
            c = "0" if jj == 0 else f"v{PP+j}"
            k.e(f"v_dot2_f32_bf16 v{PP+j}, v{Q+jj}, v{KK+12*j+jj}, {c}")
    def rdvp(pr):
        off = (4*VPP if pr == 0 else 0)
        for q4 in range(5):
            k.lds(f"ds_read_b128 {vr(VP_+24*pr+4*q4,4)}, v{VV} offset:{off+16*q4}", ("v", pr))
    rdvp(0)
    k.wait(lg=[("k", 3)])
    for jj in range(9):
        for j in range(2, 4):
            c = "0" if jj == 0 else f"v{PP+j}"
            k.e(f"v_dot2_f32_bf16 v{PP+j}, v{Q+jj}, v{KK+12*j+jj}, {c}")
    rdvp(1)
    sc = (18 ** -0.5) * math.log2(math.e)
    k.e(f"v_mov_b32 v{T0}, {f32(-1e30)}")
    k.e("s_nop 1")
    for j in range(4): k.e(f"v_mul_f32 v{PP+j}, {f32(sc)}, v{PP+j}")
    for j in range(4): k.e(f"v_cndmask_b32 v{PP+j}, v{T0}, v{PP+j}, s[{50+2*j}:{51+2*j}]")
    k.e(f"v_max3_f32 v{T0}, v{PP}, v{PP+1}, v{PP+2}")
    k.e(f"v_max_f32 v{T0}, v{T0}, v{PP+3}")
    k.e(f"v_mov_b32 v{T0+1}, v{T0}")
    k.e("s_nop 1")
    k.e(f"v_permlane32_swap_b32 v{T0}, v{T0+1}")
    k.e("s_nop 1")
    k.e(f"v_max_f32 v{T0}, v{T0}, v{T0+1}")
    for j in range(4): k.e(f"v_sub_f32 v{PP+j}, v{PP+j}, v{T0}")
    for j in range(4): k.e(f"v_exp_f32 v{PP+j}, v{PP+j}")
    k.e("s_nop 0")
    k.e(f"v_cvt_pk_bf16_f32 v{PP}, v{PP}, v{PP+1}")
    k.e(f"v_cvt_pk_bf16_f32 v{PP+2}, v{PP+2}, v{PP+3}")
    k.e("s_mov_b32 s36, 0x3f803f80")
    k.e(f"v_dot2_f32_bf16 v{T0}, v{PP}, s36, 0")
    k.e(f"v_dot2_f32_bf16 v{T0}, v{PP+2}, s36, v{T0}")
    k.wait(lg=[("v", 0)])
    for d in range(18): k.e(f"v_dot2_f32_bf16 v{OA+d}, v{VP_+d}, v{PP}, 0")
    k.e(f"v_mov_b32 v{T0+1}, v{T0}")
    k.wait(lg=[("v", 1)])
    for d in range(18): k.e(f"v_dot2_f32_bf16 v{OA+d}, v{VP_+24+d}, v{PP+2}, v{OA+d}")
    k.e(f"v_permlane32_swap_b32 v{T0}, v{T0+1}")
    k.e("s_nop 1")
    k.e(f"v_add_f32 v{T0}, v{T0}, v{T0+1}")
    k.e(f"v_rcp_f32 v{T0}, v{T0}")
    pairs = [(d, d+8) for d in range(8)] + [(16, 17)]
    for a, b_ in pairs: k.e(f"v_permlane32_swap_b32 v{OA+a}, v{OA+b_}")
    k.e("s_nop 1")
    for a, b_ in pairs: k.e(f"v_add_f32 v{OA+a}, v{OA+a}, v{OA+b_}")
    for a, b_ in pairs: k.e(f"v_mul_f32 v{OA+a}, v{OA+a}, v{T0}")
    k.e(f"v_cvt_pk_bf16_f32 v{Q+4}, v{OA+16}, v{OA+16}")
    k.e(f"v_lshlrev_b32 v{VI}, 4, v{VI}")
    k.e(f"v_lshl_add_u32 v{VHD}, v{VHD}, 1, v{VHH}")
    k.e(f"v_lshl_add_u32 v{VK}, v{VHD}, 1, v{VI}"); k.e(f"v_add_u32 v{VK}, {A_SCR}, v{VK}")
    k.e(f"ds_write_b16 v{VK}, v{Q+4}")
    k.e(f"v_add_u32 v{VV}, {A_SCR}, v{VI}")
    for j in range(4): k.e(f"v_cvt_pk_bf16_f32 v{Q+j}, v{OA+2*j}, v{OA+2*j+1}")
    k.e("s_waitcnt lgkmcnt(0)")
    k.e(f"ds_read_b128 {vr(Q+4,4)}, v{VV}")
    k.e(f"v_lshl_add_u32 v{VQ}, v{VHD}, 10, v{VI}")
    k.e(f"s_mul_i32 s36, s{S_S}, 9216"); k.e(f"s_mul_i32 s37, s{S_R}, {TILEB}"); k.e("s_add_u32 s36, s36, s37"); k.e(f"s_add_u32 s36, s36, s{S_O}")
    k.e("s_add_u32 s38, s36, 8192")
    if FS == "A": stamp(k, 5)
    k.e(f"buffer_store_dwordx4 {vr(Q,4)}, v{VQ}, {WS}, s36 offen{SC('o')}")
    k.e("s_mov_b64 exec, 0xff")
    k.e("s_waitcnt lgkmcnt(0)")
    k.e(f"buffer_store_dwordx4 {vr(Q+4,4)}, v{VI}, {WS}, s38 offen{SC('o')}")
    k.e("s_mov_b64 exec, -1")
    publish(k, CA_DONE, 8, F_A, S_R, S_S, 20, sc=SC('o'))
    if FS == "A": stamp(k, 6)
    k.e("s_branch L_A_end")
    k.label("L_A_cs")
    k.e(f"s_cmp_ge_u32 s{S_W}, 10"); k.e("s_cbranch_scc1 L_A_nb")
    for i in range(PA, 9): b_load(k, i)
    k.label("L_A_nb")
    for i in range(CPA): c_aload(k, i, "c")
    k.vm = []
    k.e(f"s_cmp_lg_u32 s{S_LAY}, 0"); k.e("s_cbranch_scc1 L_A_end")
    k.e(f"s_cmp_eq_u32 s{S_WL}, 3"); k.e("s_cbranch_scc1 L_A_b1")
    k.e(f"s_mul_i32 s36, s{S_SC}, 2304"); k.e(f"s_lshl_b32 s37, s{S_WL}, 10"); k.e("s_add_u32 s36, s36, s37"); k.e(f"s_add_u32 s36, s36, 0x{CSP:x}")
    for i in range(18):
        k.e(f"buffer_load_dwordx4 {vr(8+4*i,4)}, v{V_L16}, {WS}, s36 offen")
        if i < 17: k.e(f"s_add_u32 s36, s36, {4608*4}")
    k.e(f"s_add_u32 s37, s37, {C_CS}"); k.e(f"v_add_u32 v5, s37, v{V_L16}")
    k.e("s_waitcnt vmcnt(0)")
    for i in range(17):
        for j in range(4): k.e(f"v_add_f32 v{76+j}, v{76+j}, v{8+4*i+j}")
    k.e("ds_write_b128 v5, v[76:79]")
    k.e("s_waitcnt lgkmcnt(0)")
    k.e("s_branch L_A_end")
    k.label("L_A_b1")
    k.e(f"s_mul_i32 s38, s{S_SC}, 1152"); k.e(f"s_mov_b32 m0, {C_B1}"); k.e("s_nop 0")
    k.e(f"buffer_load_dwordx4 v{V_L16}, s[12:15], s38 offen lds")
    k.e(f"buffer_load_dwordx4 v{V_L16}, s[12:15], s38 offen offset:1024 lds")
    k.e("s_waitcnt vmcnt(0)")
    k.label("L_A_end")

def phase_B(k):
    k.c("================ phase B")
    VB1, VB2, VR_ = 5, 6, 7
    ACC, BB, RX, WB = 8, 24, 72, 124
    k.vm = []; k.lg = []
    k.e(f"s_mul_i32 s39, s{S_R}, {TILEB}")
    k.e(f"s_cmp_ge_u32 s{S_W}, 5"); k.e("s_cselect_b32 s45, 1, 0"); k.e("s_mul_i32 s46, s45, 5"); k.e(f"s_sub_u32 s46, s{S_W}, s46")
    k.e(f"v_lshrrev_b32 v{VR_}, 1, v{V_G}"); k.e(f"v_lshlrev_b32 v{VR_}, 10, v{VR_}")
    k.e(f"v_and_b32 v{VB2}, 31, v{V_L}"); k.e(f"v_lshl_add_u32 v{VR_}, v{VB2}, 4, v{VR_}")
    k.e(f"s_mul_i32 s40, s{S_S}, 9216"); k.e("s_add_u32 s40, s40, s39"); k.e("s_lshl_b32 s41, s46, 11"); k.e("s_add_u32 s40, s40, s41")
    k.e("s_lshl_b32 s41, s45, 9"); k.e("s_add_u32 s40, s40, s41")
    k.e("s_cmp_eq_u32 s46, 4"); k.e("s_cselect_b32 s41, 2, 4"); k.e("s_cmp_gt_u32 s46, 4"); k.e("s_cselect_b32 s41, 0, s41")
    k.e(f"v_cmp_gt_u32 vcc, s41, v{V_G}")
    k.e(f"v_mov_b32 v{VB2}, 0x70000000")
    k.e(f"s_add_u32 s41, s40, s{S_XIN}")
    k.e(f"v_cndmask_b32 v{VR_}, v{VB2}, v{VR_}, vcc")
    k.vmem(f"buffer_load_dwordx4 {vr(RX,4)}, v{VR_}, {WS}, s41 offen sc1", "r")
    NP1 = 3
    await_flags(k, F_A, S_R, 8, (CA_DONE, 8))
    if FS in ("", "A", "B"): stamp(k, {"A": 7, "B": 1}.get(FS, 4))
    k.e(f"s_mul_i32 s36, s{S_W}, 6144"); k.e("s_add_u32 s37, s39, s36"); k.e(f"s_add_u32 s37, s37, s{S_O}")
    for i in range(6):
        if i % 4 == 0:
            k.e(f"s_add_u32 m0, s36, {1024*i}")
            k.e("s_nop 0") if i == 0 else k.e("s_add_u32 s37, s37, 4096")
        k.vmem(f"buffer_load_dwordx4 v{V_L16}, {WS}, s37 offen offset:{(i%4)*1024} sc1 lds", "o")
    k.e(f"v_lshlrev_b32 v{VB1}, 10, v{V_G}"); k.e(f"v_lshl_add_u32 v{VB1}, v{V_M}, 4, v{VB1}")
    k.e("s_mul_i32 s41, s45, %d" % (9*4096)); k.e(f"v_add_u32 v{VB1}, s41, v{VB1}")
    k.e("s_lshl_b32 s41, s45, 9"); k.e("s_xor_b32 s42, s41, 512")
    k.e(f"v_add_u32 v{VB2}, s42, v{VB1}"); k.e(f"v_add_u32 v{VB1}, s41, v{VB1}")
    k.wait(vm0=True)
    if FS == "B": stamp(k, 2)
    GXB = ENV("GXB", 1)
    if GXB:
        k.e(f"s_cmp_ge_u32 s{S_W}, 6"); k.e("s_cselect_b32 s37, 4, 0"); k.e(f"s_add_u32 s36, s{S_CNT}, {4*CB_X}"); k.e("s_add_u32 s36, s36, s37")
        k.e("v_mov_b32 v8, s36"); k.e("v_mov_b32 v9, 1")
        k.e("s_mov_b64 exec, 1"); k.e("ds_add_u32 v8, v9"); k.e("s_mov_b64 exec, -1")
    else:
        k.e("s_barrier")
    vm_keep = list(k.vm)
    k.e(f"s_cmp_ge_u32 s{S_W}, 10"); k.e("s_cbranch_scc1 L_B_idle")
    if GXB:
        k.e("s_lshl_b32 s37, s45, 2"); k.e(f"s_add_u32 s36, s{S_CNT}, {4*CB_X}"); k.e("s_add_u32 s36, s36, s37"); k.e("v_mov_b32 v8, s36")
        k.label("L_B_sp")
        k.e("ds_read_b32 v9, v8"); k.e("s_waitcnt lgkmcnt(0)"); k.e("v_readfirstlane_b32 s36, v9"); k.e("s_nop 3")
        k.e("s_cmp_ge_u32 s36, 6"); k.e("s_cbranch_scc1 L_B_go"); k.e("s_sleep 1"); k.e("s_branch L_B_sp")
        k.label("L_B_go")
    if FS == "B": stamp(k, 3)
    def bread(ks, mi, reg):
        k.lds(f"ds_read_b128 {vr(reg,4)}, v{VB1 if mi < 2 else VB2} offset:{ks*4096 + (mi&1)*256}", ("b", ks))
    def afterB(ks):
        if ks % 2 == 0 and CPA + ks // 2 < 3: c_aload(k, CPA + ks // 2, "c")
    gemm_loop(k, 9, [(2, 0), (3, 0), (0, 0), (1, 0)], lambda mi, t: ACC + 4*mi, lambda par, mi: BB + 16*par + 4*mi, lambda i_, t: WB + 4*i_,
              bread, 0, 4, afterB, None, BD=2, atag=lambda ks: "none")
    k.e(f"s_lshl_b32 s41, s{S_W}, 11"); k.e(f"s_add_u32 s41, s41, {B_XB}"); k.e(f"v_add_u32 v{VB1}, s41, v{V_L16}")
    k.e(f"s_add_u32 s42, s{S_W}, 5"); k.e(f"s_sub_u32 s43, s{S_W}, 5"); k.e(f"s_cmp_ge_u32 s{S_W}, 5"); k.e("s_cselect_b32 s42, s43, s42")
    k.e("s_lshl_b32 s42, s42, 11"); k.e(f"s_add_u32 s42, s42, {B_XB}"); k.e(f"v_add_u32 v{VB2}, s42, v{V_L16}")
    k.e("s_nop 0")
    if FS == "B": stamp(k, 4)
    k.e(f"ds_write_b128 v{VB1}, {vr(ACC+8,4)}"); k.e(f"ds_write_b128 v{VB1}, {vr(ACC+12,4)} offset:1024")
    k.e("s_waitcnt lgkmcnt(0)")
    k.e("s_barrier")
    k.e(f"ds_read_b128 {vr(ACC+8,4)}, v{VB2}"); k.e(f"ds_read_b128 {vr(ACC+12,4)}, v{VB2} offset:1024")
    k.e(f"s_add_u32 s41, s40, s{S_X1}")
    k.e("s_waitcnt lgkmcnt(0)")
    for j in range(8): k.e(f"v_add_f32 v{ACC+j}, v{ACC+j}, v{ACC+8+j}")
    k.e("s_nop 1")
    for j in range(4): k.e(f"v_permlane16_swap_b32 v{ACC+j}, v{ACC+4+j}")
    k.e("s_nop 1")
    for j in range(4):
        k.e(f"v_lshlrev_b32 v{BB}, 16, v{RX+j}"); k.e(f"v_and_b32 v{BB+1}, 0xffff0000, v{RX+j}")
        k.e(f"v_add_f32 v{ACC+2*j}, v{ACC+2*j}, v{BB}"); k.e(f"v_add_f32 v{ACC+2*j+1}, v{ACC+2*j+1}, v{BB+1}")
        k.e(f"v_cvt_pk_bf16_f32 v{RX+j}, v{ACC+2*j}, v{ACC+2*j+1}")
    if FS == "B": stamp(k, 5)
    k.e(f"buffer_store_dwordx4 {vr(RX,4)}, v{VR_}, {WS}, s41 offen sc1")
    publish(k, CB_DONE, 10, F_B, S_R, S_S, 24)
    if FS == "B": stamp(k, 6)
    k.e("s_branch L_B_end")
    k.label("L_B_idle")
    for i in range(CPA, 3): c_aload(k, i, "c")
    k.e("s_barrier")
    k.label("L_B_end")
    k.vm = vm_keep; k.lg = []
    NP2 = ENV("NP2", 3)
    for i in range(NP1, NP2): c_aload(k, i)
    return NP2

def phase_C(k, npre):
    k.c("================ phase C")
    VB1, VB2, VT = 5, 6, 7
    ACC, BB = 8, 56
    D = 6
    k.e(f"s_mul_i32 s39, s{S_RC}, {TILEB}")
    await_flags(k, F_B, S_RC, 8, (CB_DONE, 10))
    if FS in ("", "B", "C"): stamp(k, {"B": 7, "C": 1}.get(FS, 5))
    k.e(f"s_mul_i32 s36, s{S_W}, 6144"); k.e("s_add_u32 s37, s36, s39"); k.e(f"s_add_u32 s37, s37, s{S_X1}")
    for i in range(6):
        if i and i % 4 == 0: k.e("s_add_u32 s37, s37, 4096")
        k.e(f"buffer_load_dwordx4 {vr(8+4*i,4)}, v{V_L16}, {WS}, s37 offen offset:{(i%4)*1024} sc1")
    k.e(f"s_lshl_b32 s37, s{S_ROT}, 12"); k.e("s_sub_u32 s36, s36, s37"); k.e(f"s_add_u32 s36, s36, {TILEB}")
    k.e("s_mov_b32 s38, 0x3f803f80")
    for i in range(6):
        k.e(f"s_sub_u32 s37, s36, {TILEB}"); k.e(f"s_cmp_ge_u32 s36, {TILEB}"); k.e("s_cselect_b32 s36, s37, s36")
        k.e(f"v_add_u32 v{VB2}, s36, v{V_L16}")
        k.e(f"s_waitcnt vmcnt({5-i})")
        k.e(f"ds_write_b128 v{VB2}, {vr(8+4*i,4)}")
        stats_acc(k, 8+4*i, 44, i == 0, 38)
        k.e("s_add_u32 s36, s36, 1024")
    k.e(f"s_lshl_b32 s37, s{S_W}, 9"); k.e(f"v_lshlrev_b32 v{VB2}, 3, v{V_L}"); k.e(f"v_add_u32 v{VB2}, s37, v{VB2}"); k.e(f"v_add_u32 v{VB2}, {C_PM}, v{VB2}")
    k.e(f"ds_write_b64 v{VB2}, v[44:45]")
    k.label("L_C_s4")
    k.vm = []
    k.e(f"v_lshlrev_b32 v{VB1}, 10, v{V_G}"); k.e(f"v_lshl_add_u32 v{VB1}, v{V_M}, 4, v{VB1}")
    k.e("s_waitcnt lgkmcnt(0)")
    if GXC:
        lds_signal(k, CC_X, 46, byclass=True)
        k.e("s_waitcnt lgkmcnt(0)")
    else:
        k.e("s_barrier")
    if FS in ("", "C"): stamp(k, {"C": 2}.get(FS, 6))
    k.lg = []
    def gate1(ks, query=False):
        if not GXC or ks % 6: return False
        if query: return True
        lds_wait(k, CC_X + ks//6, 4, EX)
    k.e(f"s_cmp_lg_u32 s{S_W}, 11"); k.e("s_cbranch_scc1 L_C_nocomb")
    if GXC:
        for c in range(3): lds_wait(k, CC_X + c, 4, 8)
    stats_combine(k, C_PM, 8, VB2, C_ST, False, 12)
    lds_signal(k, CC_ST, 8)
    k.e("s_waitcnt lgkmcnt(0)"); k.lg = []
    k.label("L_C_nocomb")
    k.e(f"v_add_u32 v{VB2}, 49152, v{VB1}")
    def bread1(ks, mi, reg):
        off = ks*4096 + mi*256; base = VB1
        if off >= 49152: off -= 49152; base = VB2
        k.lds(f"ds_read_b128 {vr(reg,4)}, v{base} offset:{off}", ("b", ks))
    accf = lambda mi, t: ACC + 12*mi + 4*t
    bbf = lambda par, mi: BB + 16*par + 4*mi
    asf = lambda i_, t: AR + 12*(i_ % D) + 4*t
    order = [(mi, t) for mi in range(4) for t in range(3)]
    DEFER = ENV("DEFER", 2)
    state = dict(n=npre)
    lim1 = ENV("LIM1", 18) if DEFER else 24
    def after1(ks):
        tgt = min(ks + 1 + D, lim1, state["n"] + 2)
        while state["n"] < tgt:
            c_aload(k, state["n"]); state["n"] += 1
            if DEFER == 1 and state["n"] == 18: lds_signal(k, CC_W1, EX)
    k.e(f"s_setprio {ENV('P1PRIO', 2)}")
    gemm_loop(k, 18, order, accf, bbf, asf, bread1, 0, 4, after1, gate=gate1)
    k.e(f"s_setprio {ENV('GPRIO', 3)}")
    if FS == "C": stamp(k, 3)
    DEFN = ENV('DEFN', 12)
    sv2 = k.snapshot()
    def w2_check(final=False, first=False):
        if DEFER != 1: return
        lab = k.newlabel("L_w2")
        if not first:
            k.e("s_cmp_lg_u32 s56, 0"); k.e(f"s_cbranch_scc1 {lab}")
        else:
            k.e("s_mov_b32 s56, 0")
        k.e(f"s_add_u32 s36, s{S_CNT}, {4*CC_W1}")
        k.label(lab + "_p")
        k.e(f"v_mov_b32 v0, s36")
        k.e(f"ds_read_b32 v0, v0")
        k.e("s_waitcnt lgkmcnt(0)"); k.lg = []
        k.e(f"v_readfirstlane_b32 s37, v0")
        k.e("s_nop 3")
        k.e(f"s_cmp_ge_u32 s37, {DEFN}"); k.e(f"s_cbranch_scc1 {lab}_go")
        if final:
            k.e("s_sleep 4"); k.e(f"s_branch {lab}_p")
        else:
            k.e(f"s_branch {lab}")
        k.label(lab + "_go")
        k.vm = list(sv2[0])
        for i in range(18, 24): c_aload(k, i)
        k.e("s_mov_b32 s56, 1")
        k.label(lab)
    w2_check(first=True)
    lds_wait(k, CC_ST, 1, EX)
    CSR, B1R, T, STR = BB, BB+12, BB+24, EX
    k.e(f"s_lshr_b32 s40, s{S_W}, 1"); k.e(f"s_and_b32 s41, s{S_W}, 1"); k.e("s_mul_i32 s40, s40, 96")
    k.e("s_lshl_b32 s42, s41, 5"); k.e("s_add_u32 s42, s42, s40")
    k.e("s_lshl_b32 s43, s41, 4"); k.e("s_add_u32 s43, s43, s40"); k.e("s_add_u32 s43, s43, 64")
    k.e(f"v_lshlrev_b32 v{VB1}, 3, v{V_G}"); k.e(f"v_add_u32 v{VB1}, s42, v{VB1}")
    k.e(f"v_lshlrev_b32 v{VB2}, 2, v{V_G}"); k.e(f"v_add_u32 v{VB2}, s43, v{VB2}")
    k.e(f"s_mov_b32 s40, {C_CS}"); k.e(f"s_mov_b32 s41, {C_B1}")
    k.e(f"v_lshl_add_u32 v{VT}, v{VB1}, 2, s40")
    for j in range(2): k.lds(f"ds_read_b128 {vr(CSR+4*j,4)}, v{VT} offset:{16*j}", "cs")
    k.e(f"v_lshl_add_u32 v{VT}, v{VB2}, 2, s40")
    k.lds(f"ds_read_b128 {vr(CSR+8,4)}, v{VT}", "cs")
    k.e(f"v_lshl_add_u32 v{VT}, v{VB1}, 1, s41")
    k.lds(f"ds_read_b128 {vr(T,4)}, v{VT}", "cs")
    k.e(f"v_lshl_add_u32 v{VT}, v{VB2}, 1, s41")
    k.lds(f"ds_read_b64 {vr(T+4,2)}, v{VT}", "cs")
    k.e(f"v_lshlrev_b32 v{VB1}, 3, v{V_M}"); k.e(f"v_add_u32 v{VB1}, {C_ST}, v{VB1}")
    for mi in range(4): k.lds(f"ds_read_b64 {vr(STR+2*mi,2)}, v{VB1} offset:{128*mi}", "cs")
    k.e(f"s_bfe_u32 s40, s{S_W}, 0x10001"); k.e(f"s_and_b32 s41, s{S_W}, 1"); k.e("s_mul_i32 s40, s40, 3")
    k.e(f"s_sub_u32 s40, s40, s{S_ROT2}"); k.e("s_add_u32 s40, s40, 6")
    k.e(f"s_lshr_b32 s55, s{S_W}, 2"); k.e("s_mul_i32 s54, s55, 6")
    k.e("s_add_u32 s42, s40, s41"); k.e("s_sub_u32 s44, s42, 6"); k.e("s_cmp_ge_u32 s42, 6"); k.e("s_cselect_b32 s42, s44, s42")
    k.e("s_add_u32 s42, s42, s54"); k.e("s_lshl_b32 s42, s42, 12"); k.e(f"s_add_u32 s42, s42, {C_HB}")
    k.e("s_add_u32 s43, s40, 2"); k.e("s_sub_u32 s44, s43, 6"); k.e("s_cmp_ge_u32 s43, 6"); k.e("s_cselect_b32 s43, s44, s43")
    k.e("s_add_u32 s43, s43, s54"); k.e("s_lshl_b32 s43, s43, 12"); k.e("s_lshl_b32 s41, s41, 3"); k.e("s_add_u32 s43, s43, s41"); k.e(f"s_add_u32 s43, s43, {C_HB}")
    k.e(f"v_add_u32 v{VB1}, s42, v{V_L16}"); k.e(f"v_add_u32 v{VB2}, s43, v{V_L16}")
    c0 = -2.0 * math.sqrt(2.0/math.pi) * math.log2(math.e)
    c1 = c0 * 0.044715
    k.e(f"s_mov_b32 s44, {f32(c1)}"); k.e(f"v_mov_b32 v{VT}, {f32(c0)}")
    k.wait(lg=["cs"])
    for j in range(6):
        k.e(f"v_lshlrev_b32 v{B1R+2*j}, 16, v{T+j}"); k.e(f"v_and_b32 v{B1R+2*j+1}, 0xffff0000, v{T+j}")
    PK = ENV("PK", 0)
    if PK:
        k.e(f"s_mov_b32 s45, {f32(c1)}"); k.e(f"s_mov_b32 s50, {f32(c0)}"); k.e(f"s_mov_b32 s51, {f32(c0)}")
    for mi in range(4):
        a = accf(mi, 0)
        for (j0, n) in ((0, 8), (8, 4)):
            js = range(j0, j0+n)
            if ENV("NOGELU", 0) == 1:
                for j in js: k.e(f"v_mul_f32 v{T+j-j0}, v{a+j}, v{STR+2*mi}")
            elif ENV("NOGELU", 0) == 2:
                for j in js: k.e(f"v_fma_f32 v{T+j-j0}, v{STR+2*mi+1}, v{CSR+j}, v{B1R+j}")
                for j in js: k.e(f"v_fma_f32 v{a+j}, v{a+j}, v{STR+2*mi}, v{T+j-j0}")
                for j in js: k.e(f"v_mul_f32 v{T+j-j0}, v{a+j}, v{a+j}")
                for j in js: k.e(f"v_fma_f32 v{T+j-j0}, v{T+j-j0}, s44, v{VT}")
                for j in js: k.e(f"v_mul_f32 v{T+j-j0}, v{T+j-j0}, v{a+j}")
                for j in js: k.e(f"v_add_f32 v{T+j-j0}, 1.0, v{T+j-j0}")
                for j in js: k.e(f"v_mul_f32 v{T+j-j0}, 0.5, v{a+j}")
            elif not PK:
                for j in js: k.e(f"v_fma_f32 v{T+j-j0}, v{STR+2*mi+1}, v{CSR+j}, v{B1R+j}")
                for j in js: k.e(f"v_fma_f32 v{a+j}, v{a+j}, v{STR+2*mi}, v{T+j-j0}")
                for j in js: k.e(f"v_mul_f32 v{T+j-j0}, v{a+j}, v{a+j}")
                for j in js: k.e(f"v_fma_f32 v{T+j-j0}, v{T+j-j0}, s44, v{VT}")
                for j in js: k.e(f"v_mul_f32 v{T+j-j0}, v{T+j-j0}, v{a+j}")
                for j in js: k.e(f"v_exp_f32 v{T+j-j0}, v{T+j-j0}")
                for j in js: k.e(f"v_add_f32 v{T+j-j0}, 1.0, v{T+j-j0}")
                for j in js: k.e(f"v_rcp_f32 v{T+j-j0}, v{T+j-j0}")
                for j in js: k.e(f"v_mul_f32 v{T+j-j0}, v{T+j-j0}, v{a+j}")
            else:
                jp = range(j0, j0+n, 2)
                P = lambda r: vr(r, 2)
                st = P(STR+2*mi)
                for j in jp: k.e(f"v_pk_fma_f32 {P(T+j-j0)}, {st}, {P(CSR+j)}, {P(B1R+j)} op_sel:[1,0,0] op_sel_hi:[1,1,1]")
                for j in jp: k.e(f"v_pk_fma_f32 {P(a+j)}, {P(a+j)}, {st}, {P(T+j-j0)} op_sel:[0,0,0] op_sel_hi:[1,0,1]")
                for j in jp: k.e(f"v_pk_mul_f32 {P(T+j-j0)}, {P(a+j)}, s[44:45]")
                for j in jp: k.e(f"v_pk_fma_f32 {P(T+j-j0)}, {P(T+j-j0)}, {P(a+j)}, s[50:51]")
                for j in jp: k.e(f"v_pk_mul_f32 {P(T+j-j0)}, {P(T+j-j0)}, {P(a+j)}")
                for j in js: k.e(f"v_exp_f32 v{T+j-j0}, v{T+j-j0}")
                for j in jp: k.e(f"v_pk_add_f32 {P(T+j-j0)}, {P(T+j-j0)}, 1.0 op_sel_hi:[1,0]")
                for j in js: k.e(f"v_rcp_f32 v{T+j-j0}, v{T+j-j0}")
                for j in jp: k.e(f"v_pk_mul_f32 {P(T+j-j0)}, {P(T+j-j0)}, {P(a+j)}")
            for j in range(n//2): k.e(f"v_cvt_pk_bf16_f32 v{a+j0+j}, v{T+2*j}, v{T+2*j+1}")
            if j0 == 0: k.lds(f"ds_write_b128 v{VB1}, {vr(a,4)} offset:{mi*1024}", "hw")
            else: k.lds(f"ds_write_b64 v{VB2}, {vr(a+8,2)} offset:{mi*1024}", "hw")
            if DEFER == 2 and state["n"] < 24:
                c_aload(k, state["n"]); state["n"] += 1
        if mi < 3: w2_check()
    k.e(f"v_add_u32 v{VB1}, {C_HB}, v{V_L16}"); k.e(f"v_add_u32 v{VB2}, {C_HB+49152}, v{V_L16}")
    k.e("s_lshl_b32 s55, s55, 2"); k.e(f"s_add_u32 s55, s55, s{S_CNT}"); k.e(f"s_add_u32 s55, s55, {4*CC_H0}")
    k.e(f"v_mov_b32 v{EX+2}, s55"); k.e(f"v_mov_b32 v{EX+3}, 1")
    k.wait(lg0=True)
    k.e("s_mov_b64 exec, 1")
    k.e(f"ds_add_u32 v{EX+2}, v{EX+3}")
    k.e("s_mov_b64 exec, -1")
    k.e(f"s_setprio {ENV('P2PRIO', 0)}")
    if FS == "C": stamp(k, 4)
    w2_check(final=True)
    if FS == "C": stamp(k, 5)
    def gate(ks, query=False):
        if ks % 6: return False
        if query: return True
        lds_wait(k, CC_H0 + ks//6, 4, EX)
    def bread2(ks, mi, reg):
        off = (ks*4 + mi) * 1024; base = VB1
        if off >= 49152: off -= 49152; base = VB2
        k.lds(f"ds_read_b128 {vr(reg,4)}, v{base} offset:{off}", ("b", ks))
    def after2(ks):
        if 18 + ks + D < 36: c_aload(k, 18 + ks + D)
    gemm_loop(k, 18, order, accf, bbf, asf, bread2, 18, 4, after2, gate=gate)
    k.e("s_setprio 0")
    if FS == "C": stamp(k, 6)
    if FS == "D": stamp(k, 1)
    k.e(f"v_lshlrev_b32 v{VB1}, 10, v{V_G}"); k.e(f"v_lshl_add_u32 v{VB1}, v{V_M}, 4, v{VB1}")
    k.e(f"v_lshrrev_b32 v{VB2}, 1, v{V_G}"); k.e(f"v_lshlrev_b32 v{VB2}, 10, v{VB2}"); k.e(f"v_and_b32 v{VT}, 31, v{V_L}")
    k.e(f"v_lshl_add_u32 v{VB2}, v{VT}, 4, v{VB2}")
    k.e(f"s_mul_i32 s40, s{S_SC}, {XB}"); k.e("s_add_u32 s40, s40, s39"); k.e(f"s_mul_i32 s41, s{S_W}, 6144"); k.e("s_add_u32 s40, s40, s41")
    k.e(f"s_add_u32 s40, s40, s{S_P}")
    k.e("s_add_u32 s41, s40, 4096")
    for mp in range(2):
        T2 = BB + 16 + 4*mp
        for mi in (2*mp, 2*mp+1):
            a = accf(mi, 0); T_ = BB + 4*mi
            for j in range(4): k.e(f"v_cvt_pk_bf16_f32 v{T_+j}, v{a+2*j}, v{a+2*j+1}")
            for j in range(2): k.e(f"v_cvt_pk_bf16_f32 v{T2+2*(mi&1)+j}, v{a+8+2*j}, v{a+8+2*j+1}")
            k.e(f"buffer_store_dwordx4 {vr(T_,4)}, v{VB1}, {WS}, s40 offen offset:{256*mi} sc1")
        k.e("s_nop 0")
        k.e(f"v_permlane16_swap_b32 v{T2}, v{T2+2}"); k.e(f"v_permlane16_swap_b32 v{T2+1}, v{T2+3}")
        k.e("s_nop 0")
        k.e(f"buffer_store_dwordx4 {vr(T2,4)}, v{VB2}, {WS}, s41 offen offset:{512*mp} sc1")
    k.e(f"s_mul_i32 s40, s{S_CL}, 24"); k.e(f"s_mul_i32 s41, s{S_S}, 3"); k.e("s_add_u32 s40, s40, s41"); k.e(f"s_add_u32 s40, s40, s{S_WL}")
    k.e("s_min_u32 s40, s40, 71"); k.e("s_lshl_b32 s40, s40, 4")
    k.e("s_load_dwordx4 s[52:55], s[20:21], s40")
    lds_signal(k, CC_K2, 8)
    publish(k, CC_DONE, 4, F_C, S_RC, S_SC, 8, byclass=True)
    if FS in ("", "C", "D"): stamp(k, {"D": 2}.get(FS, 7))

def phase_D(k):
    k.c("================ phase D (per class)")
    k.e(f"s_cmp_lg_u32 s{S_WL}, 3"); k.e("s_cbranch_scc1 L_D_work")
    G0 = ENV("G0", 1)
    k.e(f"s_cmp_lg_u32 s{S_CL}, 0"); k.e("s_cbranch_scc1 L_D_g1")
    if G0 == 1: lds_wait(k, CC_DONE + 1, 4, 8, 8)
    else: lds_wait(k, CC_K2, 12, 8, 8)
    k.e("s_branch L_D_g2")
    k.label("L_D_g1")
    lds_wait(k, CC_K2, 12, 8, 4)
    if ENV("G1", 0): lds_wait(k, CC_DONE + 2, 4, 8, 2)
    k.label("L_D_g2")
    if ENV("OWN", 1): lds_wait(k, CC_DONE, 4, 8, 1, byclass=True)
    k.e(f"s_lshl_b32 s39, s{S_R}, {GSH}"); k.e(f"s_lshl_b32 s38, s{S_CL}, {GSH+5}"); k.e("s_add_u32 s39, s39, s38"); k.e(f"s_add_u32 s39, s39, s{S_FL}")
    k.e(f"s_add_u32 s37, s39, {F_C}")
    k.e(f"v_lshlrev_b32 v8, {FSH}, v{V_L}")
    poll(k, 8, 37, 0xff, PV(9))
    lds_signal(k, CD_GO, 10, byclass=True)
    k.e(f"s_cmp_lg_u32 s{S_LAY}, 0"); k.e("s_cbranch_scc1 L_D_idle")
    lds_wait(k, CD_DONE, 3, 10, 2, byclass=True)
    lds_wait(k, CC_K2, 12, 10, 8)
    GW = ENV("GW", 0)
    if GW == 1: lds_wait(k, CC_DONE + 2, 4, 10, 4)
    if GW == 2: lds_wait(k, CD_GO + 2, 1, 10, 4)
    if GW == 3: lds_wait(k, CD_DONE + 2, 3, 10, 4)
    k.e(f"s_add_u32 s37, s39, {F_D}")
    k.e(f"s_cmp_eq_u32 s{S_R}, 0"); k.e(f"s_cselect_b32 s38, 0, {1 << GSH}"); k.e("s_sub_u32 s37, s37, s38"); k.e(f"s_sub_u32 s38, s38, {8 << FSH}")
    k.e(f"v_cmp_le_u32 vcc, 8, v{V_L}"); k.e("v_mov_b32 v9, s38")
    k.e("s_nop 0")
    k.e("v_cndmask_b32 v9, 0, v9, vcc"); k.e("v_add_u32 v8, v8, v9")
    poll(k, 8, 37, 0xffff, PV(9))
    lds_signal(k, CA_GO, 10, byclass=True)
    k.e("s_waitcnt lgkmcnt(0)")
    k.e("s_branch L_D_idle")
    k.label("L_D_work")
    k.e(f"s_mul_i32 s39, s{S_R}, {TILEB}"); k.e("s_lshl_b32 s41, s40, 6"); k.e("s_add_u32 s41, s41, s39")
    lds_wait(k, CD_GO, 1, 8, 2, byclass=True)
    if FS == "D": stamp(k, 3)
    k.vm = []
    k.e(f"s_add_u32 s42, s41, s{S_X1}")
    k.vmem(f"buffer_load_dwordx4 v[40:43], v{V_L16}, {WS}, s42 offen sc1", "x1")
    k.e(f"s_add_u32 s42, s41, s{S_P}")
    for s in range(8):
        k.vmem(f"buffer_load_dwordx4 {vr(8+4*s,4)}, v{V_L16}, {WS}, s42 offen sc1", s)
        if s < 7: k.e(f"s_add_u32 s42, s42, {XB}")
    k.wait(vm=["x1"])
    for j in range(4):
        k.e(f"s_lshl_b32 s43, s{52+j}, 16"); k.e(f"s_and_b32 s44, s{52+j}, 0xffff0000")
        k.e(f"v_lshlrev_b32 v{48+2*j}, 16, v{40+j}"); k.e(f"v_and_b32 v{49+2*j}, 0xffff0000, v{40+j}")
        k.e(f"v_add_f32 v{48+2*j}, s43, v{48+2*j}"); k.e(f"v_add_f32 v{49+2*j}, s44, v{49+2*j}")
    for s in range(8):
        k.wait(vm=[s])
        for j in range(4):
            r = 8 + 4*s + j
            k.e(f"v_lshlrev_b32 v5, 16, v{r}"); k.e(f"v_and_b32 v6, 0xffff0000, v{r}")
            k.e(f"v_add_f32 v{48+2*j}, v{48+2*j}, v5"); k.e(f"v_add_f32 v{49+2*j}, v{49+2*j}, v6")
    for j in range(4): k.e(f"v_cvt_pk_bf16_f32 v{8+j}, v{48+2*j}, v{49+2*j}")
    if FS == "D": stamp(k, 4)
    k.e(f"s_cmp_lg_u32 s{S_LAY}, 0"); k.e("s_cbranch_scc1 L_D_final")
    k.e(f"s_add_u32 s42, s41, 0x{X2:x}")
    k.e(f"buffer_store_dwordx4 v[8:11], v{V_L16}, {WS}, s42 offen sc1")
    publish(k, CD_DONE, 3, F_D, S_R, S_S, 14, byclass=True)
    if FS == "D": stamp(k, 5)
    lds_wait(k, CA_GO, 1, 8, 2, byclass=True)
    if FS == "D": stamp(k, 6)
    k.e("s_branch L_D_idle")
    k.label("L_D_final")
    k.e("s_movk_i32 s42, 1152"); k.e(f"v_mul_u32_u24 v5, s42, v{V_L}")
    k.e("s_add_u32 s42, s39, s40")
    k.e("buffer_store_dwordx4 v[8:11], v5, s[16:19], s42 offen")
    k.label("L_D_idle")

def gen_main():
    name = "main_kernel"
    k = K(); header(k, name, 256)
    k.e("s_load_dwordx2 s[4:5], s[0:1], 40")
    k.e("s_load_dwordx4 s[20:23], s[0:1], 56")
    k.e("s_load_dwordx2 s[6:7], s[0:1], 80")
    wave_lane(k, V_L, S_W)
    k.e(f"v_lshlrev_b32 v{V_L16}, 4, v{V_L}")
    k.e(f"v_lshrrev_b32 v{V_G}, 4, v{V_L}"); k.e(f"v_and_b32 v{V_M}, 15, v{V_L}")
    k.e(f"s_cmp_lg_u32 s{S_W}, 0"); k.e("s_cbranch_scc1 L_M_nz")
    k.e(f"v_lshlrev_b32 v5, 2, v{V_L}"); k.e(f"v_add_u32 v5, {CNT}, v5"); k.e("v_mov_b32 v6, 0"); k.e("ds_write_b32 v5, v6")
    k.label("L_M_nz")
    k.e(f"s_cmp_lg_u32 s{S_W}, 11"); k.e("s_cbranch_scc1 L_M_ntb")
    k.e(f"v_lshlrev_b32 v5, 2, v{V_L}")
    k.e(f"v_cmp_gt_u32 vcc, 36, v{V_L}")
    for j in range(2):
        divmod_const(k, 6, None, 5, 18, 260, 36)
        k.e(f"s_movk_i32 s36, {QPL-36}"); k.e("v_mul_u32_u24 v7, s36, v6"); k.e("v_lshl_add_u32 v7, v5, 1, v7"); k.e(f"v_add_u32 v7, {A_QK}, v7")
        k.e(f"s_movk_i32 s36, {VPL-72}"); k.e("v_mul_u32_u24 v6, s36, v6"); k.e("v_lshl_add_u32 v6, v5, 2, v6"); k.e(f"v_add_u32 v6, {A_VP - 8*VPL}, v6")
        k.e(f"v_cndmask_b32 v{8+j}, v6, v7, vcc")
        if j == 0: k.e("v_add_u32 v5, 2, v5")
    k.e(f"v_lshlrev_b32 v5, 3, v{V_L}"); k.e(f"v_add_u32 v5, {A_TB}, v5")
    k.e("ds_write_b64 v5, v[8:9]")
    k.label("L_M_ntb")
    def mapping2(Sx, ss, sr_, sidx):
        R = 32 // Sx; ng = 8 // Sx; lg = lambda x: x.bit_length() - 1
        k.e("s_and_b32 s36, s2, 7"); k.e("s_lshr_b32 s37, s2, 3")
        k.e(f"s_and_b32 s{ss}, s36, {ng-1}"); k.e(f"s_lshl_b32 s{ss}, s{ss}, {lg(Sx)}")
        k.e(f"s_and_b32 s38, s37, {Sx-1}"); k.e(f"s_add_u32 s{ss}, s{ss}, s38")
        k.e(f"s_lshr_b32 s{sr_}, s36, {lg(ng)}"); k.e(f"s_lshl_b32 s{sr_}, s{sr_}, {lg(R)}")
        k.e(f"s_lshr_b32 s{sidx}, s37, {lg(Sx)}"); k.e(f"s_add_u32 s{sr_}, s{sr_}, s{sidx}")
    mapping2(ENV('SX_L', 4), S_S, S_R, S_IDX)
    mapping2(SXC, S_SC, S_RC, S_IDX)
    rot18(k, S_IDX, S_ROT, 32 // SXC)
    sdivmod(k, 36, S_ROT2, S_IDX, 6, 32)
    if not ENV("ROT2", 1): k.e(f"s_mov_b32 s{S_ROT2}, 0")
    k.e("s_waitcnt lgkmcnt(0)")
    srd(k, 8, 6, 0, WSZ)
    srd(k, 12, 4, 0, 4608*2)
    srd(k, 16, 22, 0, XB)
    k.e(f"s_lshr_b32 s{S_CL}, s{S_W}, 2"); k.e(f"s_and_b32 s{S_WL}, s{S_W}, 3"); k.e(f"s_mov_b32 s{S_EARLY}, 0")
    k.e(f"s_mov_b32 s{S_LAY}, 0")
    k.e(f"s_mov_b32 s{S_XIN}, 0x{X0P:x}"); k.e(f"s_mov_b32 s{S_O}, 0x{O1:x}"); k.e(f"s_mov_b32 s{S_X1}, 0x{X1A:x}"); k.e(f"s_mov_b32 s{S_P}, 0x{P1:x}")
    k.e(f"s_mov_b32 s{S_FL}, 0x{FLG:x}"); k.e(f"s_mov_b32 s{S_CNT}, {CNT}")
    k.label("L_layer")
    phase_A(k)
    npre = phase_B(k)
    phase_C(k, npre)
    phase_D(k)
    k.e(f"s_cmp_lg_u32 s{S_LAY}, 0"); k.e(f"s_cbranch_scc1 L_{name}_end")
    if STAMP and ENV("STAMP_L1", 0):
        k.e(f"s_branch L_{name}_end")
    k.e(f"s_mov_b32 s{S_LAY}, 1")
    k.e(f"s_cmp_lt_u32 s{S_CL}, {ENV('NEARLY', 0)}"); k.e(f"s_cselect_b32 s{S_EARLY}, 1, 0")
    k.e(f"s_mov_b32 s{S_XIN}, 0x{X2:x}"); k.e(f"s_mov_b32 s{S_O}, 0x{O2:x}"); k.e(f"s_mov_b32 s{S_X1}, 0x{X1B:x}"); k.e(f"s_mov_b32 s{S_P}, 0x{P2:x}")
    k.e(f"s_mov_b32 s{S_FL}, 0x{FLG+FLG_LAYER:x}"); k.e(f"s_mov_b32 s{S_CNT}, {CNT+128}")
    if STAMP: stamp(k, 0)
    k.e("s_branch L_layer")
    k.label(f"L_{name}_end")
    if STAMP:
        k.e("s_waitcnt vmcnt(0)")
        k.e(f"s_lshl_b32 s36, s{S_W}, 6"); k.e("v_mov_b32 v0, s36")
    stamp_end(k, KIDX[0]); KIDX[0] += 1
    k.label(f"L_{name}_exit")
    k.e("s_endpgm")
    return name, k.text(), desc(name, 168), (256, 768, LDS_TOTAL)

def main(out):
    ks = [gen_prep(), gen_main()]
    ref = open(f"cdna_kernels/{NAME}.s.ref").read().splitlines()
    hdr = [l for l in ref if l.startswith(";") and "@launch" not in l and "Override" not in l and "grid=ceil" not in l]
    s = "\n".join(hdr) + "\n"
    for n, _, _, (g, b, lds) in ks:
        s += f"; @launch kernel={n} grid=({g},1,1) block=({b},1,1) lds={lds}\n"
    s += '.amdgcn_target "amdgcn-amd-amdhsa--gfx950"\n.text\n'
    for _, t, _, _ in ks: s += t
    for _, _, d, _ in ks: s += d
    open(out, "w").write(s)

if __name__ == "__main__":
    main(sys.argv[1] if len(sys.argv) > 1 else f"cdna_kernels/{NAME}.s")
```

```python
import sys, struct, math, os
from asmlib import *

NAME = "interleave_layers__sliding_local_dilated__dense_activation_gelu__prompt"
XB = 2048 * 1152
TILEB = 73728
WQF, WOF, WFF = 0x0, 0x200000, 0x300000
CS1, CSQ = 0xE00000, 0xE10000
ST0, ST1A, ST2, ST1B = 0xE40000, 0xE80000, 0xEC0000, 0xF00000
X0P = 0x4C00000
O1, X1A, X2, O2, X1B, P1, P2 = 0x1000000, 0x1400000, 0x1800000, 0x1C00000, 0x2000000, 0x2400000, 0x3800000
WQF_SZ, WOF_SZ, WFF_SZ = 8*14*18*1024, 8*5*18*1024, 8*12*36*3072
ST_SZ = 32*8*64*8
ENV = lambda n, d: int(os.environ.get(n, str(d)))
STAMP = ENV("STAMP", 0)
STAMP_BASE = 0x8000000

def f32(x):
    return "0x%08x" % struct.unpack("<I", struct.pack("<f", x))[0]

def srd(k, d, b, add, size):
    if add:
        k.e(f"s_add_u32 s{d}, s{b}, 0x{add:x}")
        k.e(f"s_addc_u32 s{d+1}, s{b+1}, 0")
    else:
        k.e(f"s_mov_b32 s{d}, s{b}")
        k.e(f"s_mov_b32 s{d+1}, s{b+1}")
    k.e(f"s_mov_b32 s{d+2}, 0x{size:x}")
    k.e(f"s_mov_b32 s{d+3}, 0x20000")

def stamp(k, i):
    if not STAMP: return
    k.e("s_waitcnt lgkmcnt(0)"); k.lg = []
    k.e(f"s_memtime s[84:85]")
    k.e(f"s_memrealtime s[86:87]")
    k.e("s_waitcnt lgkmcnt(0)")
    k.e(f"s_mov_b32 s{64+i}, s84"); k.e(f"s_mov_b32 s{74+i}, s86")
def stamp_begin(k):
    if not STAMP: return
    for i in range(1, 9):
        k.e(f"s_mov_b32 s{64+i}, 0"); k.e(f"s_mov_b32 s{74+i}, 0")
    stamp(k, 0)
def stamp_end(k, kidx):
    if not STAMP: return
    k.e("s_waitcnt vmcnt(0)")
    stamp(k, 8)
    k.e("s_load_dwordx2 s[88:89], s[0:1], 80")
    k.e("s_getreg_b32 s90, hwreg(HW_REG_XCC_ID)")
    k.e("s_waitcnt lgkmcnt(0)")
    k.e("s_mov_b64 exec, 1")
    k.e(f"s_add_u32 s88, s88, 0x{STAMP_BASE:x}"); k.e("s_addc_u32 s89, s89, 0")
    k.e(f"s_add_u32 s91, s2, {kidx*512}"); k.e("s_lshl_b32 s91, s91, 4")
    k.e("v_lshrrev_b32 v1, 6, v0"); k.e("v_add_u32 v1, s91, v1"); k.e("v_lshlrev_b32 v1, 7, v1")
    vals = [64+i for i in range(9)] + [90] + [74+i for i in range(9)] + [90]
    for j, sreg in enumerate(vals):
        k.e(f"v_mov_b32 v{2+j}, s{sreg}")
    for j in range(0, 20, 4):
        k.e(f"global_store_dwordx4 v1, v[{2+j}:{5+j}], s[88:89] offset:{4*j}")

KIDX = [0]
def header(k, name, nwg):
    k.lines.append(f".globl {name}\n.p2align 8\n.type {name},@function\n{name}:")
    k.e(f"s_cmp_ge_u32 s2, {nwg}")
    k.e(f"s_cbranch_scc1 L_{name}_exit")
    stamp_begin(k)
def footer(k, name):
    k.label(f"L_{name}_end")
    stamp_end(k, KIDX[0]); KIDX[0] += 1
    k.label(f"L_{name}_exit")
    k.e("s_endpgm")

def desc(name, vgpr, sgpr=96):
    acc = (vgpr + 3) // 4 * 4
    return f""".section .rodata,"a"
.p2align 6
.amdhsa_kernel {name}
  .amdhsa_next_free_vgpr {vgpr}
  .amdhsa_next_free_sgpr {sgpr}
  .amdhsa_accum_offset {acc}
  .amdhsa_group_segment_fixed_size 0
  .amdhsa_kernarg_size 88
  .amdhsa_user_sgpr_count 2
  .amdhsa_user_sgpr_kernarg_segment_ptr 1
  .amdhsa_system_sgpr_workgroup_id_x 1
  .amdhsa_float_denorm_mode_32 3
.end_amdhsa_kernel
.text
"""

def divmod_const(k, q, rem, x, d, nmax, stmp):
    m, sh = magic(d, nmax)
    k.e(f"s_mov_b32 s{stmp}, {m}")
    k.e(f"v_mul_u32_u24 v{q}, s{stmp}, v{x}")
    k.e(f"v_lshrrev_b32 v{q}, {sh}, v{q}")
    if rem is not None:
        if d <= 64:
            k.e(f"v_mul_u32_u24 v{rem}, {d}, v{q}")
        else:
            k.e(f"v_mul_u32_u24 v{rem}, 0x{d:x}, v{q}")
        k.e(f"v_sub_u32 v{rem}, v{x}, v{rem}")

def sdivmod(k, q, rem, x, d, nmax):
    m, sh = magic(d, nmax)
    k.e(f"s_mul_i32 s{q}, s{x}, {m}"); k.e(f"s_lshr_b32 s{q}, s{q}, {sh}")
    if rem is not None:
        k.e(f"s_mul_i32 s{rem}, s{q}, {d}"); k.e(f"s_sub_u32 s{rem}, s{x}, s{rem}")

MAP = dict(attn=ENV("SX_A", 4), wo=ENV("SX_B", 8), ffn=ENV("SX_C", 2))
def mapping(k, Sx, ss=15, sr_=16, sidx=12):
    R = 32 // Sx; ng = 8 // Sx
    lg = lambda x: x.bit_length() - 1
    k.e("s_and_b32 s10, s2, 7")
    k.e("s_lshr_b32 s11, s2, 3")
    k.e(f"s_and_b32 s{ss}, s10, {ng-1}")
    k.e(f"s_lshl_b32 s{ss}, s{ss}, {lg(Sx)}")
    k.e(f"s_and_b32 s13, s11, {Sx-1}")
    k.e(f"s_add_u32 s{ss}, s{ss}, s13")
    k.e(f"s_lshr_b32 s{sr_}, s10, {lg(ng)}")
    k.e(f"s_lshl_b32 s{sr_}, s{sr_}, {lg(R)}")
    k.e(f"s_lshr_b32 s{sidx}, s11, {lg(Sx)}")
    k.e(f"s_add_u32 s{sr_}, s{sr_}, s{sidx}")

def rot18(k, sidx, srot, R):
    if not ENV("ROT", 0):
        k.e(f"s_mov_b32 s{srot}, 0"); return
    if R <= 16:
        mult = {4: 4, 8: 2, 16: 1}[R]
        k.e(f"s_mul_i32 s{srot}, s{sidx}, {mult}")
    else:
        k.e(f"s_sub_u32 s{srot}, s{sidx}, 18"); k.e(f"s_cmp_ge_u32 s{sidx}, 18"); k.e(f"s_cselect_b32 s{srot}, s{srot}, s{sidx}")

def wave_lane(k, vlane, swave):
    k.e(f"v_lshrrev_b32 v{vlane}, 6, v0")
    k.e("s_nop 0")
    k.e(f"v_readfirstlane_b32 s{swave}, v{vlane}")
    k.e(f"v_and_b32 v{vlane}, 63, v0")

def touch(k, srd_, L, n_instr, swave_idx, nwaves, per_slab, slab_stride, sbase, nslab, t, dummy, gran=64):
    t0, t1, t2 = t[:3]
    nmax = 32 * nwaves * n_instr * 64
    k.e(f"s_lshr_b32 s58, s2, 3"); k.e(f"s_mul_i32 s58, s58, {nwaves}"); k.e(f"s_add_u32 s58, s58, s{swave_idx}"); k.e(f"s_mul_i32 s58, s58, {n_instr*64}")
    for j in range(n_instr):
        k.e(f"v_add_u32 v{t0}, s58, v{L}")
        if j: k.e(f"v_add_u32 v{t0}, {64*j}, v{t0}")
        m, sh = magic2(per_slab, nmax)
        k.e(f"s_mov_b32 s59, {m}"); k.e(f"v_mul_hi_u32 v{t1}, v{t0}, s59")
        if sh: k.e(f"v_lshrrev_b32 v{t1}, {sh}, v{t1}")
        k.e(f"s_mov_b32 s59, {per_slab}"); k.e(f"v_mul_u32_u24 v{t2}, s59, v{t1}"); k.e(f"v_sub_u32 v{t0}, v{t0}, v{t2}")
        k.e(f"s_mov_b32 s59, {slab_stride}"); k.e(f"v_mul_u32_u24 v{t2}, s59, v{t1}")
        k.e(f"v_lshl_add_u32 v{t0}, v{t0}, {gran.bit_length()-1}, v{t2}")
        k.e(f"v_cmp_gt_u32 vcc, {nslab}, v{t1}")
        k.e(f"v_mov_b32 v{t2}, 0x7ff00000")
        k.e("s_nop 0")
        k.e(f"v_cndmask_b32 v{t0}, v{t2}, v{t0}, vcc")
        k.vmem(f"buffer_load_dword v{dummy}, v{t0}, s[{srd_}:{srd_+3}], s{sbase} offen", "touch")

def magic2(d, nmax):
    for sh in range(0, 12):
        m = (1 << (32 + sh)) // d + 1
        if m >= (1 << 32): continue
        if all((x * m) >> (32 + sh) == x // d for x in range(0, nmax, 1)):
            return m, sh
    raise ValueError

def dma(k, m0expr, voff, srd_, soff, tag=None):
    for l in m0expr: k.e(l)
    k.e("s_nop 0")
    k.vmem(f"buffer_load_dwordx4 v{voff}, s[{srd_}:{srd_+3}], {soff} offen{os.environ.get('PLD', ' nt')} lds", tag)

CSQP = 0xEA0000
CSP = 0xE40000
FSH, GSH = 7, 10
FLG = 0xF00000
FLG_LAYER = 256 << GSH
F_A, F_B, F_C, F_D = 0, 32 << GSH, 64 << GSH, 160 << GSH
FLP = FLG + 2*FLG_LAYER
J_WQ, J_X0, J_WO, J_W1, J_W2, J_END = 0, 56, 120, 184, 328, 472

def gemm_loop(k, nks, order, acc, bbuf, aslot, bread, ks0, nm, after=None, pre=None, BD=1, atag=None, gate=None):
    atag = atag or (lambda ks: ("a", ks0 + ks))
    nb = BD + 1
    for d in range(min(BD, nks)):
        if gate: gate(d)
        for mi in range(nm): bread(d, mi, bbuf(d % nb, mi))
    if pre: pre()
    for ks in range(nks):
        late = gate is not None and ks + BD < nks and gate(ks + BD, True)
        if ks + BD < nks and not late:
            for mi in range(nm): bread(ks + BD, mi, bbuf((ks + BD) % nb, mi))
        k.wait(vm=[atag(ks)], lg=[("b", ks)])
        for (mi, t) in order:
            c = "0" if ks == 0 else vr(acc(mi, t), 4)
            k.e(f"v_mfma_f32_16x16x32_bf16 {vr(acc(mi,t),4)}, {vr(aslot(ks0+ks,t),4)}, {vr(bbuf(ks % nb,mi),4)}, {c}")
        if after: after(ks)
        if late:
            gate(ks + BD)
            for mi in range(nm): bread(ks + BD, mi, bbuf((ks + BD) % nb, mi))

FS = os.environ.get("FS", "")
CPA = ENV("CPA", 0)
GX = ENV("GX", 1)
GXC = ENV("GXC", 1)
assert ENV("ROT", 0) == 0
A_HL = 73728
A_QK = 92160
QP, QPL = 48, 3968
TSTR = 4 * QPL
A_VP = A_QK + 2*TSTR
VPP, VPL = 80, 6784
A_ST = A_VP + 4*VPL
A_PM, A_PH = A_QK, A_QK + 6144
B_XB = 73728
C_HB = 73728
C_CS = 155648
C_B1 = C_CS + 3072
A_CQ = C_B1 + 2048
C_ST = 147456
A_PQ = A_QK + 12288
C_PM = 98304
A_SCR = A_ST + 640
CNT = 163328
LDS_TOTAL = 163840
CA_ST, CA_DONE, CB_DONE, CC_ST, CC_W1, CC_H0, CC_DONE, CD_DONE, CC_K2, CD_GO, CA_GO, CA_W, CA_X, CC_X = 0, 1, 2, 3, 4, 5, 8, 11, 14, 16, 20, 15, 24, 28
S_CL, S_WL, S_EARLY = 60, 61, 57
WSZ = 0x5000000
SXC = MAP["ffn"]

S_W, S_LAY, S_XIN, S_O, S_X1, S_P, S_FL, S_R, S_S, S_RC, S_SC, S_IDX, S_CNT, S_ROT, S_ROT2 = 3, 22, 23, 24, 25, 26, 28, 29, 30, 31, 32, 33, 27, 34, 35
WS = "s[8:11]"
WSC = os.environ.get("WSC", " sc1")
WREL = ENV("WREL", 0)
WST = "" if WREL else " sc1"
FLQ = FLP + 65536
S_SLOT, S_JOB, S_LB = 56, 51, 50
CP_LD, CP_DONE = 64, 66
V_L, V_L16, V_G, V_M = 1, 2, 3, 4
AR, EX = 88, 160

def lds_signal(k, slot, vt, byclass=False):
    k.e(f"s_add_u32 s36, s{S_CNT}, {4*slot}")
    if byclass:
        k.e(f"s_lshl_b32 s37, s{S_CL}, 2"); k.e("s_add_u32 s36, s36, s37")
    k.e(f"v_mov_b32 v{vt}, s36"); k.e(f"v_mov_b32 v{vt+1}, 1")
    k.e("s_mov_b64 exec, 1")
    k.lds(f"ds_add_u32 v{vt}, v{vt+1}", "cnt")
    k.e("s_mov_b64 exec, -1")

def lds_wait(k, slot, n, vt, sleep=2, byclass=False):
    lab = k.newlabel("L_lw")
    k.e(f"s_add_u32 s36, s{S_CNT}, {4*slot}")
    if byclass:
        k.e(f"s_lshl_b32 s37, s{S_CL}, 2"); k.e("s_add_u32 s36, s36, s37")
    k.e(f"v_mov_b32 v{vt}, s36")
    k.label(lab)
    k.e(f"ds_read_b32 v{vt+1}, v{vt}")
    k.e("s_waitcnt lgkmcnt(0)"); k.lg = []
    k.e(f"v_readfirstlane_b32 s36, v{vt+1}")
    k.e("s_nop 3")
    k.e(f"s_cmp_ge_u32 s36, {n}"); k.e(f"s_cbranch_scc1 {lab}_ok")
    k.e(f"s_sleep {sleep}")
    k.e(f"s_branch {lab}")
    k.label(f"{lab}_ok")

def SC(name):
    return "" if name in os.environ.get("NOSC", "").split(",") else " sc1"
def publish(k, slot, n, fbase, s_r, s_s, vt, byclass=False, sc=" sc1", repl=False):
    lab = k.newlabel("L_pub")
    k.e(f"s_add_u32 s36, s{S_CNT}, {4*slot}")
    if s_r is not None:
        k.e(f"s_lshl_b32 s37, s{s_r}, {GSH}"); k.e(f"s_lshl_b32 s38, s{s_s}, {FSH}"); k.e("s_add_u32 s37, s37, s38")
        k.e(f"s_add_u32 s37, s37, s{S_FL}"); k.e(f"s_add_u32 s37, s37, {fbase}")
    else:
        k.e(f"s_lshl_b32 s37, s{s_s}, {FSH}"); k.e(f"s_add_u32 s37, s37, 0x{fbase:x}")
        k.e(f"s_lshl_b32 s38, s{S_SLOT}, 2"); k.e("s_add_u32 s36, s36, s38")
    if byclass:
        k.e(f"s_lshl_b32 s38, s{S_CL}, 2"); k.e("s_add_u32 s36, s36, s38")
        k.e(f"s_lshl_b32 s38, s{S_CL}, {GSH+5}"); k.e("s_add_u32 s37, s37, s38")
    k.e("s_waitcnt vmcnt(0)"); k.vm = []
    k.e(f"v_mov_b32 v{vt}, s36"); k.e(f"v_mov_b32 v{vt+1}, 1")
    k.e("s_mov_b64 exec, 1")
    k.e(f"ds_add_rtn_u32 v{vt}, v{vt}, v{vt+1}")
    k.e("s_waitcnt lgkmcnt(0)"); k.lg = []
    k.e(f"v_readfirstlane_b32 s36, v{vt}")
    if repl: k.e("s_mov_b64 exec, 0xff")
    k.e(f"v_mov_b32 v{vt}, s62"); k.e(f"v_mov_b32 v{vt+1}, s63"); k.e(f"v_lshlrev_b32 v{vt+2}, 13, v{V_L}")
    k.e("s_nop 0")
    k.e(f"s_cmp_lg_u32 s36, {n-1}"); k.e(f"s_cbranch_scc1 {lab}")
    k.e(f"buffer_store_dwordx2 {vr(vt,2)}, v{vt+2}, {WS}, s37 offen{sc}")
    k.label(lab)
    k.e("s_mov_b64 exec, -1")

def poll(k, voff, soff, mask, vt, slp=None):
    assert vt % 2 == 0
    lab = k.newlabel("L_aw")
    k.e(f"s_mov_b32 exec_lo, 0x{mask & 0xffffffff:x}"); k.e(f"s_mov_b32 exec_hi, 0x{mask >> 32:x}")
    k.e("s_mov_b32 s38, 0x20000")
    k.label(lab)
    k.e(f"v_mov_b32 v{vt}, 0"); k.e(f"v_mov_b32 v{vt+1}, 0")
    k.e(f"buffer_atomic_or_x2 {vr(vt,2)}, v{voff}, {WS}, s{soff} offen sc0 sc1")
    k.e("s_waitcnt vmcnt(0)"); k.vm = []
    k.e(f"v_cmp_ne_u64 vcc, s[62:63], {vr(vt,2)}")
    k.e("s_sub_u32 s38, s38, 1")
    k.e("s_nop 3")
    k.e(f"s_cbranch_vccz {lab}_ok")
    k.e("s_cmp_eq_u32 s38, 0"); k.e(f"s_cbranch_scc1 {lab}_ok")
    k.e(f"s_sleep {ENV('PSLEEP', 3) if slp is None else slp}")
    k.e(f"s_branch {lab}")
    k.label(f"{lab}_ok")
    k.e("s_mov_b64 exec, -1")

def await_flags(k, fbase, s_r, vt, own=None):
    lab = k.newlabel("L_af")
    k.e(f"s_cmp_lg_u32 s{S_W}, {ENV('POLLW', 0)}"); k.e(f"s_cbranch_scc1 {lab}")
    lds_wait(k, own[0], own[1], vt, 1)
    k.e(f"s_lshl_b32 s37, s{s_r}, {GSH}"); k.e(f"s_add_u32 s37, s37, s{S_FL}"); k.e(f"s_add_u32 s37, s37, {fbase}")
    k.e(f"v_lshlrev_b32 v{vt}, {FSH}, v{V_L}")
    sv = k.snapshot()
    poll(k, vt, 37, 0xff, vt+2)
    k.restore(sv)
    k.label(lab)
    k.e("s_barrier")

def stats_acc(k, r4, va, first, sones):
    for j in range(4):
        c0 = "0" if (first and j == 0) else f"v{va}"
        c1 = "0" if (first and j == 0) else f"v{va+1}"
        k.e(f"v_dot2_f32_bf16 v{va}, v{r4+j}, s{sones}, {c0}")
        k.e(f"v_dot2_f32_bf16 v{va+1}, v{r4+j}, v{r4+j}, {c1}")

def stats_combine(k, src, R, vt, dst, halo, NP=12):
    k.e(f"v_lshlrev_b32 v{vt}, 3, v{V_L}"); k.e(f"v_add_u32 v{vt+1}, {src}, v{vt}")
    for p in range(NP): k.e(f"ds_read_b64 {vr(R+2*p,2)}, v{vt+1} offset:{512*p}")
    k.e("s_waitcnt lgkmcnt(0)")
    n = NP
    while n > 1:
        h = n // 2
        for j in range(h):
            k.e(f"v_add_f32 v{R+2*j}, v{R+2*j}, v{R+2*(n-1-j)}"); k.e(f"v_add_f32 v{R+2*j+1}, v{R+2*j+1}, v{R+2*(n-1-j)+1}")
        n -= h
    if halo:
        for op in ("v_permlane32_swap_b32", "v_permlane16_swap_b32"):
            k.e(f"v_mov_b32 v{R+2}, v{R}"); k.e(f"v_mov_b32 v{R+3}, v{R+1}")
            k.e("s_nop 1")
            k.e(f"{op} v{R}, v{R+2}"); k.e(f"{op} v{R+1}, v{R+3}")
            k.e("s_nop 1")
            k.e(f"v_add_f32 v{R}, v{R}, v{R+2}"); k.e(f"v_add_f32 v{R+1}, v{R+1}, v{R+3}")
        k.e(f"v_lshlrev_b32 v{vt}, 3, v{V_M}")
    k.e(f"v_mul_f32 v{R}, {f32(1/576)}, v{R}")
    k.e(f"v_mul_f32 v{R+1}, {f32(1/576)}, v{R+1}")
    k.e(f"v_fma_f32 v{R+1}, -v{R}, v{R}, v{R+1}")
    k.e(f"v_max_f32 v{R+1}, 0, v{R+1}")
    k.e(f"v_add_f32 v{R+1}, {f32(1e-5)}, v{R+1}")
    k.e(f"v_rsq_f32 v{R+2}, v{R+1}")
    k.e(f"v_add_u32 v{vt}, {dst}, v{vt}")
    k.e(f"v_mul_f32 v{R+3}, v{R}, v{R+2}")
    k.e(f"v_sub_f32 v{R+3}, 0, v{R+3}")
    k.e(f"ds_write_b64 v{vt}, {vr(R+2,2)}")
    k.e("s_waitcnt lgkmcnt(0)")

A_TILES = [9, 11, 4, 6, 0, 2, 13, 8, 0, 0, 0, 0]
def a_tile_setup(k):
    tab = sum(t << (4*i) for i, t in enumerate(A_TILES))
    k.e(f"s_mov_b32 s40, 0x{tab & 0xffffffff:x}"); k.e(f"s_mov_b32 s41, 0x{tab >> 32:x}")
    k.e(f"s_lshl_b32 s42, s{S_W}, 2"); k.e("s_lshr_b64 s[40:41], s[40:41], s42"); k.e("s_and_b32 s40, s40, 15")
    k.e(f"s_mul_i32 s41, s{S_S}, 14"); k.e("s_add_u32 s41, s41, s40")
    k.e(f"s_mul_i32 s42, s{S_W}, {2*6912}"); k.e(f"s_mul_i32 s43, s{S_S}, 288"); k.e("s_add_u32 s42, s42, s43"); k.e(f"s_add_u32 s42, s42, 0x{CSQP:x}")
    k.e("s_mul_i32 s41, s41, %d" % (18*1024))
    if WQF: k.e(f"s_add_u32 s41, s41, 0x{WQF:x}")
DA = ENV("DA", 4)
def a_load1(k, i):
    k.e(f"s_add_u32 s43, s41, {i*1024}")
    k.vmem(f"buffer_load_dwordx4 {vr(AR+4*i,4)}, v{V_L16}, {WS}, s43 offen{WSC}", ("a", i))
def a_load2(k, i):
    k.e(f"s_add_u32 s43, s41, {i*1024}"); k.e(f"s_add_u32 s44, s41, {(18+i)*1024}")
    k.vmem(f"buffer_load_dwordx4 {vr(AR+8*(i%9),4)}, v{V_L16}, {WS}, s43 offen{WSC}", ("a0", i))
    k.vmem(f"buffer_load_dwordx4 {vr(AR+8*(i%9)+4,4)}, v{V_L16}, {WS}, s44 offen{WSC}", ("a", i))
def a_prefetch(k, lo1, hi1, lo2, hi2, cs):
    lab = k.newlabel("L_apf")
    sv = k.snapshot()
    if cs:
        k.e(f"s_cmp_lt_u32 s{S_W}, 9"); k.e("s_cselect_b32 s43, 0, 0x70000000"); k.e(f"s_cmp_eq_u32 s{S_LAY}, 0"); k.e("s_cselect_b32 s43, s43, 0x70000000")
        divmod_const(k, 6, None, V_L, 18, 64, 44)
        k.e(f"v_mul_u32_u24 v6, 0x{2304-288:x}, v6"); k.e(f"v_add_u32 v6, v6, v{V_L16}")
        k.e(f"v_or_b32 v6, s43, v6")
        k.e(f"s_add_u32 s43, s42, 6912")
        k.e(f"buffer_load_dwordx4 {vr(EX,4)}, v6, {WS}, s42 offen{WSC}")
        k.e(f"buffer_load_dwordx4 {vr(EX+4,4)}, v6, {WS}, s43 offen{WSC}")
    k.e(f"s_cmp_lt_u32 s{S_W}, 6"); k.e(f"s_cbranch_scc1 {lab}_d")
    k.e(f"s_cmp_ge_u32 s{S_W}, 8"); k.e(f"s_cbranch_scc1 {lab}_f")
    for i in range(lo1, hi1): a_load1(k, i)
    k.e(f"s_branch {lab}_e")
    k.label(f"{lab}_f")
    for i in range(lo1, min(hi1, 9)): b_load(k, i)
    k.e(f"s_branch {lab}_e")
    k.label(f"{lab}_d")
    for i in range(lo2, hi2): a_load2(k, i)
    k.label(f"{lab}_e")
    k.restore(sv)

def b_setup(k):
    k.e(f"s_min_u32 s59, s{S_W}, 9")
    k.e(f"s_cmp_ge_u32 s59, 5"); k.e("s_cselect_b32 s45, 1, 0"); k.e("s_mul_i32 s46, s45, 5"); k.e(f"s_sub_u32 s46, s59, s46")
    k.e(f"s_mul_i32 s58, s{S_S}, 5"); k.e("s_add_u32 s58, s58, s46"); k.e("s_mul_i32 s58, s58, %d" % (18*1024))
    k.e("s_mul_i32 s59, s45, 9216"); k.e("s_add_u32 s58, s58, s59"); k.e(f"s_add_u32 s58, s58, 0x{WOF:x}")
def b_load(k, i):
    if i and i % 4 == 0: k.e(f"s_add_u32 s58, s58, 4096")
    k.vmem(f"buffer_load_dwordx4 {vr(124+4*i,4)}, v{V_L16}, {WS}, s58 offen offset:{(i%4)*1024}{WSC}", ("wb", i))

def c_stream_init(k):
    k.e(f"s_mul_i32 s47, s{S_SC}, 12"); k.e(f"s_add_u32 s47, s47, s{S_W}"); k.e("s_mul_i32 s47, s47, %d" % (36*3072)); k.e(f"s_add_u32 s47, s47, 0x{WFF:x}")
    k.e(f"s_mul_i32 s48, s{S_ROT}, 3072"); k.e("s_add_u32 s48, s48, s47")
    k.e("s_add_u32 s49, s47, %d" % (18*3072))
def c_aload(k, i, tg="a"):
    if i >= 18 and (i - 18) % 6 == 0:
        k.e("s_mov_b32 s47, s49"); k.e(f"s_mul_i32 s48, s{S_ROT2}, 3072"); k.e("s_add_u32 s48, s48, s47"); k.e("s_add_u32 s49, s47, %d" % (6*3072))
    slot = i % 6
    for t in range(3):
        k.vmem(f"buffer_load_dwordx4 {vr(AR+12*slot+4*t,4)}, v{V_L16}, {WS}, s48 offen offset:{1024*t}{WSC}", (tg, i) if t == 2 else (tg + "_", i))
    k.e("s_add_u32 s48, s48, 3072"); k.e("s_cmp_eq_u32 s48, s49"); k.e("s_cselect_b32 s48, s47, s48")

def touch_w(k, swidx, nwaves, t, dummy):
    G = ENV("TGRAN", 128)
    total = SXC * 12 * 36 * 3072 // G
    ni = -(-total // (32 * nwaves * 64))
    ng = 8 // SXC
    k.e(f"s_and_b32 s36, s2, {ng-1}"); k.e(f"s_mul_i32 s36, s36, {SXC*12*36*3072}"); k.e(f"s_add_u32 s36, s36, 0x{WFF:x}")
    k.e("s_lshr_b32 s37, s2, 3"); k.e(f"s_mul_i32 s37, s37, {nwaves}"); k.e(f"s_add_u32 s37, s37, s{swidx}"); k.e(f"s_mul_i32 s37, s37, {ni*64}")
    k.e(f"s_mov_b32 s38, {total}")
    for j in range(ni):
        k.e(f"v_add_u32 v{t}, s37, v{V_L}")
        if j: k.e(f"v_add_u32 v{t}, {64*j}, v{t}")
        k.e(f"v_min_u32 v{t}, s38, v{t}")
        k.e(f"v_lshlrev_b32 v{t}, {G.bit_length()-1}, v{t}")
        k.vmem(f"buffer_load_dword v{dummy}, v{t}, {WS}, s36 offen", "touch")

def phase_A(k):
    k.c("================ phase A")
    ACC, BB = 8, 28
    VB1, VB2, VH = 5, 6, 7
    if FS in ("", "A"): stamp(k, 1)
    k.e(f"s_mul_i32 s39, s{S_R}, {TILEB}"); k.e(f"s_add_u32 s39, s39, s{S_XIN}")
    k.e(f"s_mul_i32 s36, s{S_W}, 6144"); k.e("s_add_u32 s37, s39, s36"); k.e("s_add_u32 s38, s37, 4096")
    k.vm = []
    for i in range(6):
        k.vmem(f"buffer_load_dwordx4 {vr(8+4*i,4)}, v{V_L16}, {WS}, s{37 if i < 4 else 38} offen offset:{(i%4)*1024} sc1", ("x", i))
    k.e(f"v_lshlrev_b32 v{VB1}, 10, v{V_G}"); k.e(f"v_lshl_add_u32 v{VB1}, v{V_M}, 4, v{VB1}")
    k.e(f"s_cmp_eq_u32 s{S_R}, 0"); k.e("s_cselect_b32 s38, 0x70000000, 0")
    k.e(f"v_add_u32 v{VH}, s38, v{VB1}")
    k.e(f"s_mul_i32 s50, s{S_CL}, 6"); k.e(f"s_add_u32 s50, s50, s{S_WL}")
    k.e("s_lshl_b32 s37, s50, 12"); k.e("s_add_u32 s37, s37, s39"); k.e(f"s_sub_u32 s37, s37, {TILEB-768}")
    k.vmem(f"buffer_load_dwordx4 {vr(32,4)}, v{VH}, {WS}, s37 offen sc1", ("x", 6))
    k.e(f"s_cmp_ge_u32 s{S_WL}, 2"); k.e("s_cselect_b32 s38, 0x70000000, 0"); k.e(f"v_or_b32 v{VB2}, s38, v{VH}")
    k.e(f"s_add_u32 s37, s37, {4*4096}")
    k.vmem(f"buffer_load_dwordx4 {vr(36,4)}, v{VB2}, {WS}, s37 offen sc1", ("x", 7))
    a_tile_setup(k)
    PA = ENV("PA", 2)
    b_setup(k)
    c_stream_init(k)
    E1, E2 = ENV("E1", 18), ENV("E2", 9)
    def stage(extra):
        k.e("s_mov_b32 s38, 0x3f803f80")
        k.e(f"v_add_u32 v{VB2}, s36, v{V_L16}")
        for i in range(8):
            if extra is not None: k.e(f"s_waitcnt vmcnt({7-i+extra})")
            if i < 6:
                k.e(f"ds_write_b128 v{VB2}, {vr(8+4*i,4)} offset:{1024*i}")
                if extra is not None: stats_acc(k, 8+4*i, 40, i == 0, 38)
            else:
                if i == 6:
                    k.e("s_lshl_b32 s37, s50, 10"); k.e(f"s_add_u32 s37, s37, {A_HL}"); k.e(f"v_add_u32 v{VB2}, s37, v{V_L16}")
                    k.e(f"ds_write_b128 v{VB2}, {vr(8+4*i,4)}")
                if extra is not None: stats_acc(k, 8+4*i, 42, i == 6, 38)
        if extra is not None: k.e(f"s_waitcnt vmcnt({extra-2})")
    k.e(f"s_cmp_eq_u32 s{S_EARLY}, 0"); k.e("s_cbranch_scc1 L_A_late")
    k.e("s_waitcnt vmcnt(0)")
    a_prefetch(k, 0, E1, 0, E2, False)
    k.e("s_mov_b32 s38, 0x3f803f80")
    for i in range(8): stats_acc(k, 8+4*i, 40 if i < 6 else 42, i in (0, 6), 38)
    if not GX: k.e("s_barrier")
    stage(None)
    k.e("s_branch L_A_st")
    k.label("L_A_late")
    if GX:
        k.e(f"s_cmp_lg_u32 s{S_LAY}, 0"); k.e("s_cbranch_scc1 L_A_nob1")
    k.e("s_barrier")
    if GX: k.label("L_A_nob1")
    a_prefetch(k, 0, PA, 0, PA//2, True)
    stage(PA + 2)
    k.label("L_A_st")
    def late(fn):
        lab = k.newlabel("L_lt")
        k.e(f"s_cmp_lg_u32 s{S_EARLY}, 0"); k.e(f"s_cbranch_scc1 {lab}")
        fn()
        k.label(lab)
    k.e(f"s_cmp_ge_u32 s{S_WL}, 2"); k.e("s_cbranch_scc1 L_A_xs")
    k.e(f"ds_write_b128 v{VB2}, {vr(36,4)} offset:4096")
    k.label("L_A_xs")
    k.e(f"s_lshl_b32 s37, s{S_W}, 9"); k.e(f"v_lshlrev_b32 v{VB2}, 3, v{V_L}"); k.e(f"v_add_u32 v{VB2}, s37, v{VB2}"); k.e(f"v_add_u32 v{VB2}, {A_PM}, v{VB2}")
    k.e(f"ds_write_b64 v{VB2}, v[40:41]"); k.e(f"ds_write_b64 v{VB2}, v[42:43] offset:6144")
    k.e(f"s_cmp_lg_u32 s{S_LAY}, 0"); k.e("s_cbranch_scc1 L_A_nocq")
    k.e(f"s_waitcnt vmcnt({PA})")
    for j in range(4): k.e(f"v_add_f32 v{EX+j}, v{EX+j}, v{EX+4+j}")
    k.e(f"s_lshl_b32 s37, s{S_W}, 10"); k.e(f"s_add_u32 s37, s37, {A_PQ}"); k.e(f"v_add_u32 v{VB2}, s37, v{V_L16}")
    k.e(f"ds_write_b128 v{VB2}, {vr(EX,4)}")
    k.label("L_A_nocq")
    k.e("s_waitcnt lgkmcnt(0)")
    if FS in ("", "A"): stamp(k, 2)
    if GX:
        lds_signal(k, CA_X, 44, byclass=True)
        k.e("s_waitcnt lgkmcnt(0)")
    else:
        k.e("s_barrier")
    k.lg = []
    def gateA(ks, query=False):
        if not GX or ks % 6: return False
        if query: return True
        lds_wait(k, CA_X + ks//6, 4, EX)
    if FS == "G": stamp(k, 2)
    k.e(f"s_cmp_ge_u32 s{S_W}, 8"); k.e("s_cbranch_scc1 L_A_free")
    k.e(f"v_add_u32 v{VB2}, 49152, v{VB1}")
    k.e(f"v_add_u32 v{VH}, {A_HL}, v{V_L16}")
    def mk_bread(mts):
        def bread(ks, mi, reg):
            mt = mts[mi]
            if mt == 0:
                k.lds(f"ds_read_b128 {vr(reg,4)}, v{VH} offset:{ks*1024}", ("b", ks))
            else:
                off = ks*4096 + (mt-1)*256; base = VB1
                if off >= 49152: off -= 49152; base = VB2
                k.lds(f"ds_read_b128 {vr(reg,4)}, v{base} offset:{off}", ("b", ks))
        return bread
    def epi_stats(mts, T):
        sa = T + 5; ST = T + 6
        if FS == "G": stamp(k, 4)
        lds_wait(k, CA_ST, 3, T)
        k.e(f"v_lshlrev_b32 v{sa}, 3, v{V_M}"); k.e(f"v_add_u32 v{sa}, {A_ST}, v{sa}")
        for mi, mt in enumerate(mts):
            k.lds(f"ds_read_b64 {vr(ST+2*mi,2)}, v{sa} offset:{mt*128}", "str")
    def epilogue(tadd, mts, accf, csr, vpath, T):
        a0, a1, p, H, t, sa = T, T+1, T+2, T+3, T+4, T+5
        ST = T + 6; U = T + 16
        k.e(f"v_lshlrev_b32 v{p}, 2, v{V_G}")
        k.e(f"s_add_u32 s36, s40, {tadd}"); k.e("s_lshl_b32 s36, s36, 4")
        k.e(f"v_add_u32 v{p}, s36, v{p}")
        k.e(f"s_mov_b32 s36, {A_CQ}"); k.e(f"v_lshl_add_u32 v{sa}, v{p}, 2, s36")
        k.lds(f"ds_read_b128 {vr(csr,4)}, v{sa}", "str")
        for a in (a0, a1):
            divmod_const(k, H, None, p, 18, 232, 36)
            if not vpath:
                k.e(f"s_movk_i32 s36, {QPL-36}")
                k.e(f"v_mul_u32_u24 v{a}, s36, v{H}")
                k.e(f"v_lshl_add_u32 v{a}, v{p}, 1, v{a}")
                k.e(f"v_mul_u32_u24 v{t}, {QP}, v{V_M}")
                k.e(f"s_mov_b32 s36, {A_QK}")
            else:
                k.e(f"s_movk_i32 s36, {VPL-72}")
                k.e(f"v_mul_u32_u24 v{a}, s36, v{H}")
                k.e(f"v_lshl_add_u32 v{a}, v{p}, 2, v{a}")
                k.e(f"v_mul_u32_u24 v{t}, 0x{VPP:x}, v{V_M}")
                k.e(f"s_mov_b32 s36, {A_VP - 8*VPL}")
            k.e(f"v_add3_u32 v{a}, v{a}, v{t}, s36")
            if a == a0: k.e(f"v_add_u32 v{p}, 2, v{p}")
        if vpath:
            k.e("s_mov_b32 s36, 0x05040100"); k.e("s_mov_b32 s37, 0x07060302")
        k.wait(lg=["str"])
        for mi, mt in enumerate(mts):
            r = accf(mi)
            for j in range(4):
                k.e(f"v_mul_f32 v{r+j}, v{r+j}, v{ST+2*mi}")
                k.e(f"v_fmac_f32 v{r+j}, v{ST+2*mi+1}, v{csr+j}")
            k.e(f"v_cvt_pk_bf16_f32 v{r}, v{r}, v{r+1}")
            k.e(f"v_cvt_pk_bf16_f32 v{r+1}, v{r+2}, v{r+3}")
            if not vpath:
                k.lds(f"ds_write_b32 v{a0}, v{r} offset:{mt*16*QP}", "qw")
                k.lds(f"ds_write_b32 v{a1}, v{r+1} offset:{mt*16*QP}", "qw")
        if vpath:
            for mi, mt in enumerate(mts):
                r = accf(mi); u = U + 4*(mi & 1)
                if mi:
                    rp = accf(mi-1)
                    k.e(f"v_mov_b32_dpp v{r+2}, v{rp} row_shl:14 row_mask:0xf bank_mask:0xf")
                    k.e(f"v_mov_b32_dpp v{r+3}, v{rp+1} row_shl:14 row_mask:0xf bank_mask:0xf")
                k.e(f"v_mov_b32_dpp v{r+2}, v{r} row_shr:2 row_mask:0xf bank_mask:0xf")
                k.e(f"v_mov_b32_dpp v{r+3}, v{r+1} row_shr:2 row_mask:0xf bank_mask:0xf")
                k.e(f"v_perm_b32 v{u}, v{r+2}, v{r}, s36"); k.e(f"v_perm_b32 v{u+1}, v{r+2}, v{r}, s37")
                k.e(f"v_perm_b32 v{u+2}, v{r+3}, v{r+1}, s36"); k.e(f"v_perm_b32 v{u+3}, v{r+3}, v{r+1}, s37")
                k.lds(f"ds_write_b64 v{a0}, {vr(u,2)} offset:{mt*16*VPP}", "qw")
                k.lds(f"ds_write_b64 v{a1}, {vr(u+2,2)} offset:{mt*16*VPP}", "qw")
    def pair_path(mts, accb, bb, bstride, BD):
        nm = len(mts)
        k.lg = []
        k.vm = ["cs", "cs"] + [x for i in range(PA//2) for x in (("a0", i), ("a", i))]
        DA2 = ENV("DA2", 3)
        st = dict(c=0, b=0, n=PA//2)
        def ld(i):
            if i < E2: late(lambda: a_load2(k, i))
            else: a_load2(k, i)
        def pre():
            while st["n"] < DA2: ld(st["n"]); st["n"] += 1
        def after(ks):
            if FS == "G" and ks == 8: stamp(k, 3)
            while st["n"] < 18 and st["n"] <= ks + (DA2 if st["n"] < E2 else max(DA2, E2)):
                ld(st["n"]); st["n"] += 1
            if ks >= 9:
                free = 8*(ks - 8)
                while st["c"] < CPA and 12*(st["c"]+1) <= free:
                    c_aload(k, st["c"], "c"); st["c"] += 1
                while st["b"] < 9 and 36 + 4*(st["b"]+1) <= free:
                    b_load(k, st["b"]); st["b"] += 1
        pre()
        gemm_loop(k, 18, [(mi, t) for mi in range(nm) for t in range(2)], lambda mi, t: accb + 4*nm*t + 4*mi, lambda par, mi: bb + bstride*par + 4*mi,
                  lambda i_, t: AR + 8*(i_ % 9) + 4*t, mk_bread(mts), 0, nm, after, None, BD=BD, gate=gateA)
        epi_stats(mts, bb)
    m5 = [0, 1, 2, 3, 4]; m4 = [1, 2, 3, 4]
    k.e(f"s_cmp_ge_u32 s{S_W}, 6"); k.e("s_cbranch_scc1 L_A_single")
    k.e(f"s_cmp_ge_u32 s{S_W}, 4"); k.e("s_cbranch_scc1 L_A_qpair")
    pair_path(m5, 8, 48, 20, 1)
    sv = k.snapshot()
    k.e(f"s_cmp_lt_u32 s{S_W}, 2"); k.e("s_cbranch_scc1 L_A_vpair")
    epilogue(0, m5, lambda mi: 8 + 4*mi, EX, False, 48)
    epilogue(1, m5, lambda mi: 28 + 4*mi, EX+4, False, 48)
    k.e("s_branch L_A_att")
    k.label("L_A_vpair")
    k.restore(sv)
    epilogue(0, m5, lambda mi: 8 + 4*mi, EX, True, 48)
    epilogue(1, m5, lambda mi: 28 + 4*mi, EX+4, True, 48)
    k.e("s_branch L_A_att")
    k.label("L_A_qpair")
    pair_path(m4, 8, 40, 16, 2)
    epilogue(0, m4, lambda mi: 8 + 4*mi, EX, False, 40)
    epilogue(1, m4, lambda mi: 24 + 4*mi, EX+4, False, 40)
    k.e("s_branch L_A_att")
    k.label("L_A_single")
    k.lg = []
    k.vm = ["cs", "cs"] + [("a", i) for i in range(PA)]
    def ld1(i):
        if i < E1: late(lambda: a_load1(k, i))
        else: a_load1(k, i)
    def pre1():
        for i in range(PA, DA): ld1(i)
    def after1(ks):
        if ks + DA < 18: ld1(ks + DA)
        if ks in (9, 11, 13) and (ks - 9)//2 < CPA: c_aload(k, (ks - 9)//2, "c")
        if ks >= 9: b_load(k, ks - 9)
    pre1()
    gemm_loop(k, 18, [(mi, 0) for mi in range(5)], lambda mi, t: ACC + 4*mi, lambda par, mi: BB + 20*par + 4*mi,
              lambda i_, t: AR + 4*i_, mk_bread(m5), 0, 5, after1, None, BD=2, gate=gateA)
    epi_stats(m5, 28)
    sv = k.snapshot()
    k.e("s_cmp_ge_u32 s40, 9"); k.e("s_cbranch_scc1 L_A_vp")
    epilogue(0, m5, lambda mi: ACC + 4*mi, EX, False, 28)
    k.e("s_branch L_A_att")
    k.label("L_A_vp")
    k.restore(sv)
    k.e("s_mov_b32 exec_hi, 0")
    k.e("s_nop 4")
    epilogue(0, m5, lambda mi: ACC + 4*mi, EX, True, 28)
    k.e("s_mov_b64 exec, -1")
    k.e("s_branch L_A_att")
    k.label("L_A_free")
    k.e(f"s_cmp_eq_u32 s{S_W}, 9"); k.e("s_cbranch_scc1 L_A_fr2")
    if GX:
        for c in range(3): lds_wait(k, CA_X + c, 4, 8)
    k.e(f"s_cmp_eq_u32 s{S_W}, 8"); k.e("s_cbranch_scc1 L_A_combq")
    k.e(f"s_cmp_eq_u32 s{S_W}, 11"); k.e("s_cbranch_scc1 L_A_combh")
    stats_combine(k, A_PM, 8, VB2, A_ST + 128, False)
    k.e("s_branch L_A_combd")
    k.label("L_A_combh")
    stats_combine(k, A_PH, 8, VB2, A_ST, True)
    k.e("s_branch L_A_combd")
    k.label("L_A_combq")
    k.e(f"s_cmp_lg_u32 s{S_LAY}, 0"); k.e("s_cbranch_scc1 L_A_combd")
    k.e(f"v_add_u32 v{VB2}, {A_PQ}, v{V_L16}")
    for p in range(9): k.e(f"ds_read_b128 {vr(8+4*p,4)}, v{VB2} offset:{1024*p}")
    k.e(f"v_add_u32 v{VB2}, {A_CQ}, v{V_L16}")
    k.e("s_waitcnt lgkmcnt(0)")
    for p in range(1, 9):
        for j in range(4): k.e(f"v_add_f32 v{8+j}, v{8+j}, v{8+4*p+j}")
    k.e(f"ds_write_b128 v{VB2}, v[8:11]")
    k.e("s_waitcnt lgkmcnt(0)")
    k.label("L_A_combd")
    lds_signal(k, CA_ST, 8)
    k.e("s_waitcnt lgkmcnt(0)"); k.lg = []
    k.e("s_branch L_A_att")
    k.label("L_A_fr2")
    k.e(f"s_cmp_lg_u32 s{S_LAY}, 0"); k.e("s_cbranch_scc1 L_A_att")
    for c in range(3): lds_wait(k, CA_X + c, 4, 8)
    if WREL:
        k.e("s_cmp_lt_u32 s2, 104"); k.e("s_cbranch_scc1 L_A_norel")
        k.e("buffer_wbl2 sc1")
        k.e("s_waitcnt vmcnt(0)")
        k.e("s_cmp_lt_u32 s2, 120"); k.e("s_cselect_b32 exec_lo, 1, 3"); k.e("s_mov_b32 exec_hi, 0")
        k.e(f"v_mul_u32_u24 v10, 0x{152*8:x}, v{V_L}"); k.e("s_add_u32 s36, s2, 216"); k.e("s_lshl_b32 s36, s36, 3"); k.e("v_sub_u32 v10, s36, v10")
        k.e("v_mov_b32 v8, s62"); k.e("v_mov_b32 v9, s63"); k.e(f"s_mov_b32 s37, 0x{FLP:x}")
        k.e(f"buffer_store_dwordx2 v[8:9], v10, {WS}, s37 offen sc1")
        k.e("s_mov_b64 exec, -1")
        k.label("L_A_norel")
    k.e(f"s_lshl_b32 s37, s{S_SC}, 7"); k.e(f"s_add_u32 s37, s37, 0x{FLP + 128*J_W1:x}")
    k.e(f"v_lshlrev_b32 v8, 10, v{V_L}")
    poll(k, 8, 37, (1 << 36) - 1, 10, ENV('PS3', 24))
    k.label("L_A_att")
    k.vm = []; k.lg = []
    k.e("s_waitcnt lgkmcnt(0)")
    if FS in ("", "A"): stamp(k, 3)
    if FS == "G": stamp(k, 5)
    k.e("s_barrier")
    if FS == "A": stamp(k, 4)
    if FS == "G": stamp(k, 6)
    k.e(f"s_cmp_ge_u32 s{S_W}, 8"); k.e("s_cbranch_scc1 L_A_cs")
    VI, VHH, VQ, VK, VV = 5, 6, 7, 86, 87
    Q, KK, VP_, OA, PP, T0 = 8, 20, 20, 68, EX, EX+4
    att_start = len(k.lines)
    VHD = EX+6
    k.e(f"s_lshl_b32 s41, s{S_W}, 3")
    k.e(f"v_and_b32 v{VI}, 7, v{V_L}"); k.e(f"v_add_u32 v{VI}, s41, v{VI}")
    k.e(f"v_lshrrev_b32 v{VHH}, 5, v{V_L}")
    k.e(f"v_bfe_u32 v{VHD}, v{V_L}, 3, 2")
    k.e(f"v_mul_u32_u24 v{VQ}, {QP}, v{VI}")
    k.e(f"v_mul_u32_u24 v{VK}, 0x{QPL:x}, v{VHD}")
    k.e(f"s_mov_b32 s36, {A_QK + 16*QP}")
    k.e(f"v_add3_u32 v{VQ}, v{VQ}, v{VK}, s36")
    k.e(f"v_mul_u32_u24 v{VK}, 0x{8*QP:x}, v{VHH}"); k.e(f"v_sub_u32 v{VK}, v{VQ}, v{VK}")
    k.e(f"v_lshlrev_b32 v{T0}, 3, v{VHH}"); k.e(f"v_sub_u32 v{T0}, v{VI}, v{T0}")
    k.e(f"v_add_u32 v{VV}, 12, v{T0}"); k.e(f"v_mul_u32_u24 v{VV}, 0x{VPP:x}, v{VV}")
    k.e(f"v_mul_u32_u24 v{T0+1}, 0x{VPL:x}, v{VHD}"); k.e(f"s_mov_b32 s36, {A_VP}"); k.e(f"v_add3_u32 v{VV}, v{VV}, v{T0+1}, s36")
    def rdvec(reg, va, off, tag):
        k.lds(f"ds_read_b128 {vr(reg,4)}, v{va} offset:{off}", tag)
        k.lds(f"ds_read_b128 {vr(reg+4,4)}, v{va} offset:{off+16}", tag)
        k.lds(f"ds_read_b128 {vr(reg+8,4)}, v{va} offset:{off+32}", tag)
    rdvec(Q, VQ, 0, "q")
    for j in range(4): rdvec(KK + 12*j, VK, TSTR - 2*j*QP, ("k", j))
    k.e(f"s_lshl_b32 s36, s{S_R}, 6"); k.e(f"v_add_u32 v{T0}, s36, v{T0}")
    for j in range(4):
        k.e(f"v_cmp_le_i32 s[{50+2*j}:{51+2*j}], {2*j}, v{T0}")
    k.wait(lg=["q", ("k", 1)])
    for jj in range(9):
        for j in range(2):
            c = "0" if jj == 0 else f"v{PP+j}"
            k.e(f"v_dot2_f32_bf16 v{PP+j}, v{Q+jj}, v{KK+12*j+jj}, {c}")
    def rdvp(pr):
        off = (4*VPP if pr == 0 else 0)
        for q4 in range(5):
            k.lds(f"ds_read_b128 {vr(VP_+24*pr+4*q4,4)}, v{VV} offset:{off+16*q4}", ("v", pr))
    rdvp(0)
    k.wait(lg=[("k", 3)])
    for jj in range(9):
        for j in range(2, 4):
            c = "0" if jj == 0 else f"v{PP+j}"
            k.e(f"v_dot2_f32_bf16 v{PP+j}, v{Q+jj}, v{KK+12*j+jj}, {c}")
    rdvp(1)
    sc = (18 ** -0.5) * math.log2(math.e)
    k.e(f"v_mov_b32 v{T0}, {f32(-1e30)}")
    k.e("s_nop 1")
    for j in range(4): k.e(f"v_mul_f32 v{PP+j}, {f32(sc)}, v{PP+j}")
    for j in range(4): k.e(f"v_cndmask_b32 v{PP+j}, v{T0}, v{PP+j}, s[{50+2*j}:{51+2*j}]")
    k.e(f"v_max3_f32 v{T0}, v{PP}, v{PP+1}, v{PP+2}")
    k.e(f"v_max_f32 v{T0}, v{T0}, v{PP+3}")
    k.e(f"v_mov_b32 v{T0+1}, v{T0}")
    k.e("s_nop 1")
    k.e(f"v_permlane32_swap_b32 v{T0}, v{T0+1}")
    k.e("s_nop 1")
    k.e(f"v_max_f32 v{T0}, v{T0}, v{T0+1}")
    for j in range(4): k.e(f"v_sub_f32 v{PP+j}, v{PP+j}, v{T0}")
    for j in range(4): k.e(f"v_exp_f32 v{PP+j}, v{PP+j}")
    k.e("s_nop 0")
    k.e(f"v_cvt_pk_bf16_f32 v{PP}, v{PP}, v{PP+1}")
    k.e(f"v_cvt_pk_bf16_f32 v{PP+2}, v{PP+2}, v{PP+3}")
    k.e("s_mov_b32 s36, 0x3f803f80")
    k.e(f"v_dot2_f32_bf16 v{T0}, v{PP}, s36, 0")
    k.e(f"v_dot2_f32_bf16 v{T0}, v{PP+2}, s36, v{T0}")
    k.wait(lg=[("v", 0)])
    for d in range(18): k.e(f"v_dot2_f32_bf16 v{OA+d}, v{VP_+d}, v{PP}, 0")
    k.e(f"v_mov_b32 v{T0+1}, v{T0}")
    k.wait(lg=[("v", 1)])
    for d in range(18): k.e(f"v_dot2_f32_bf16 v{OA+d}, v{VP_+24+d}, v{PP+2}, v{OA+d}")
    k.e(f"v_permlane32_swap_b32 v{T0}, v{T0+1}")
    k.e("s_nop 1")
    k.e(f"v_add_f32 v{T0}, v{T0}, v{T0+1}")
    k.e(f"v_rcp_f32 v{T0}, v{T0}")
    pairs = [(d, d+8) for d in range(8)] + [(16, 17)]
    for a, b_ in pairs: k.e(f"v_permlane32_swap_b32 v{OA+a}, v{OA+b_}")
    k.e("s_nop 1")
    for a, b_ in pairs: k.e(f"v_add_f32 v{OA+a}, v{OA+a}, v{OA+b_}")
    for a, b_ in pairs: k.e(f"v_mul_f32 v{OA+a}, v{OA+a}, v{T0}")
    k.e(f"v_cvt_pk_bf16_f32 v{Q+4}, v{OA+16}, v{OA+16}")
    k.e(f"v_lshlrev_b32 v{VI}, 4, v{VI}")
    k.e(f"v_lshl_add_u32 v{VHD}, v{VHD}, 1, v{VHH}")
    k.e(f"v_lshl_add_u32 v{VK}, v{VHD}, 1, v{VI}"); k.e(f"v_add_u32 v{VK}, {A_SCR}, v{VK}")
    k.e(f"ds_write_b16 v{VK}, v{Q+4}")
    k.e(f"v_add_u32 v{VV}, {A_SCR}, v{VI}")
    for j in range(4): k.e(f"v_cvt_pk_bf16_f32 v{Q+j}, v{OA+2*j}, v{OA+2*j+1}")
    k.e("s_waitcnt lgkmcnt(0)")
    k.e(f"ds_read_b128 {vr(Q+4,4)}, v{VV}")
    k.e(f"v_lshl_add_u32 v{VQ}, v{VHD}, 10, v{VI}")
    k.e(f"s_mul_i32 s36, s{S_S}, 9216"); k.e(f"s_mul_i32 s37, s{S_R}, {TILEB}"); k.e("s_add_u32 s36, s36, s37"); k.e(f"s_add_u32 s36, s36, s{S_O}")
    k.e("s_add_u32 s38, s36, 8192")
    if FS == "A": stamp(k, 5)
    k.e(f"buffer_store_dwordx4 {vr(Q,4)}, v{VQ}, {WS}, s36 offen{SC('o')}")
    k.e("s_mov_b64 exec, 0xff")
    k.e("s_waitcnt lgkmcnt(0)")
    k.e(f"buffer_store_dwordx4 {vr(Q+4,4)}, v{VI}, {WS}, s38 offen{SC('o')}")
    k.e("s_mov_b64 exec, -1")
    publish(k, CA_DONE, 8, F_A, S_R, S_S, 20, sc=SC('o'))
    if FS == "A": stamp(k, 6)
    k.e("s_branch L_A_end")
    k.label("L_A_cs")
    k.e(f"s_cmp_ge_u32 s{S_W}, 10"); k.e("s_cbranch_scc1 L_A_nb")
    for i in range(PA, 9): b_load(k, i)
    k.label("L_A_nb")
    for i in range(CPA): c_aload(k, i, "c")
    k.vm = []
    k.e(f"s_cmp_lg_u32 s{S_LAY}, 0"); k.e("s_cbranch_scc1 L_A_end")
    k.e(f"s_cmp_eq_u32 s{S_WL}, 3"); k.e("s_cbranch_scc1 L_A_b1")
    k.e(f"s_mul_i32 s36, s{S_SC}, 2304"); k.e(f"s_lshl_b32 s37, s{S_WL}, 10"); k.e("s_add_u32 s36, s36, s37"); k.e(f"s_add_u32 s36, s36, 0x{CSP:x}")
    for i in range(18):
        k.e(f"buffer_load_dwordx4 {vr(8+4*i,4)}, v{V_L16}, {WS}, s36 offen{WSC}")
        if i < 17: k.e(f"s_add_u32 s36, s36, {4608*4}")
    k.e(f"s_add_u32 s37, s37, {C_CS}"); k.e(f"v_add_u32 v5, s37, v{V_L16}")
    k.e("s_waitcnt vmcnt(0)")
    for i in range(17):
        for j in range(4): k.e(f"v_add_f32 v{76+j}, v{76+j}, v{8+4*i+j}")
    k.e("ds_write_b128 v5, v[76:79]")
    k.e("s_waitcnt lgkmcnt(0)")
    k.e("s_branch L_A_end")
    k.label("L_A_b1")
    k.e(f"s_mul_i32 s38, s{S_SC}, 1152"); k.e(f"s_mov_b32 m0, {C_B1}"); k.e("s_nop 0")
    k.e(f"buffer_load_dwordx4 v{V_L16}, s[12:15], s38 offen lds")
    k.e(f"buffer_load_dwordx4 v{V_L16}, s[12:15], s38 offen offset:1024 lds")
    k.e("s_waitcnt vmcnt(0)")
    k.label("L_A_end")

def phase_B(k):
    k.c("================ phase B")
    VB1, VB2, VR_ = 5, 6, 7
    ACC, BB, RX, WB = 8, 24, 72, 124
    k.vm = []; k.lg = []
    k.e(f"s_mul_i32 s39, s{S_R}, {TILEB}")
    k.e(f"s_cmp_ge_u32 s{S_W}, 5"); k.e("s_cselect_b32 s45, 1, 0"); k.e("s_mul_i32 s46, s45, 5"); k.e(f"s_sub_u32 s46, s{S_W}, s46")
    k.e(f"v_lshrrev_b32 v{VR_}, 1, v{V_G}"); k.e(f"v_lshlrev_b32 v{VR_}, 10, v{VR_}")
    k.e(f"v_and_b32 v{VB2}, 31, v{V_L}"); k.e(f"v_lshl_add_u32 v{VR_}, v{VB2}, 4, v{VR_}")
    k.e(f"s_mul_i32 s40, s{S_S}, 9216"); k.e("s_add_u32 s40, s40, s39"); k.e("s_lshl_b32 s41, s46, 11"); k.e("s_add_u32 s40, s40, s41")
    k.e("s_lshl_b32 s41, s45, 9"); k.e("s_add_u32 s40, s40, s41")
    k.e("s_cmp_eq_u32 s46, 4"); k.e("s_cselect_b32 s41, 2, 4"); k.e("s_cmp_gt_u32 s46, 4"); k.e("s_cselect_b32 s41, 0, s41")
    k.e(f"v_cmp_gt_u32 vcc, s41, v{V_G}")
    k.e(f"v_mov_b32 v{VB2}, 0x70000000")
    k.e(f"s_add_u32 s41, s40, s{S_XIN}")
    k.e(f"v_cndmask_b32 v{VR_}, v{VB2}, v{VR_}, vcc")
    k.vmem(f"buffer_load_dwordx4 {vr(RX,4)}, v{VR_}, {WS}, s41 offen sc1", "r")
    NP1 = 3
    await_flags(k, F_A, S_R, 8, (CA_DONE, 8))
    if FS in ("", "A", "B"): stamp(k, {"A": 7, "B": 1}.get(FS, 4))
    k.e(f"s_mul_i32 s36, s{S_W}, 6144"); k.e("s_add_u32 s37, s39, s36"); k.e(f"s_add_u32 s37, s37, s{S_O}")
    for i in range(6):
        if i % 4 == 0:
            k.e(f"s_add_u32 m0, s36, {1024*i}")
            k.e("s_nop 0") if i == 0 else k.e("s_add_u32 s37, s37, 4096")
        k.vmem(f"buffer_load_dwordx4 v{V_L16}, {WS}, s37 offen offset:{(i%4)*1024} sc1 lds", "o")
    k.e(f"v_lshlrev_b32 v{VB1}, 10, v{V_G}"); k.e(f"v_lshl_add_u32 v{VB1}, v{V_M}, 4, v{VB1}")
    k.e("s_mul_i32 s41, s45, %d" % (9*4096)); k.e(f"v_add_u32 v{VB1}, s41, v{VB1}")
    k.e("s_lshl_b32 s41, s45, 9"); k.e("s_xor_b32 s42, s41, 512")
    k.e(f"v_add_u32 v{VB2}, s42, v{VB1}"); k.e(f"v_add_u32 v{VB1}, s41, v{VB1}")
    k.wait(vm0=True)
    if FS == "B": stamp(k, 2)
    k.e("s_barrier")
    if FS == "B": stamp(k, 3)
    vm_keep = list(k.vm)
    k.e(f"s_cmp_ge_u32 s{S_W}, 10"); k.e("s_cbranch_scc1 L_B_idle")
    def bread(ks, mi, reg):
        k.lds(f"ds_read_b128 {vr(reg,4)}, v{VB1 if mi < 2 else VB2} offset:{ks*4096 + (mi&1)*256}", ("b", ks))
    def afterB(ks):
        if ks % 2 == 0 and CPA + ks // 2 < 3: c_aload(k, CPA + ks // 2, "c")
    gemm_loop(k, 9, [(2, 0), (3, 0), (0, 0), (1, 0)], lambda mi, t: ACC + 4*mi, lambda par, mi: BB + 16*par + 4*mi, lambda i_, t: WB + 4*i_,
              bread, 0, 4, afterB, None, BD=2, atag=lambda ks: "none")
    k.e(f"s_lshl_b32 s41, s{S_W}, 11"); k.e(f"s_add_u32 s41, s41, {B_XB}"); k.e(f"v_add_u32 v{VB1}, s41, v{V_L16}")
    k.e(f"s_add_u32 s42, s{S_W}, 5"); k.e(f"s_sub_u32 s43, s{S_W}, 5"); k.e(f"s_cmp_ge_u32 s{S_W}, 5"); k.e("s_cselect_b32 s42, s43, s42")
    k.e("s_lshl_b32 s42, s42, 11"); k.e(f"s_add_u32 s42, s42, {B_XB}"); k.e(f"v_add_u32 v{VB2}, s42, v{V_L16}")
    k.e("s_nop 0")
    if FS == "B": stamp(k, 4)
    k.e(f"ds_write_b128 v{VB1}, {vr(ACC+8,4)}"); k.e(f"ds_write_b128 v{VB1}, {vr(ACC+12,4)} offset:1024")
    k.e("s_waitcnt lgkmcnt(0)")
    k.e("s_barrier")
    k.e(f"ds_read_b128 {vr(ACC+8,4)}, v{VB2}"); k.e(f"ds_read_b128 {vr(ACC+12,4)}, v{VB2} offset:1024")
    k.e(f"s_add_u32 s41, s40, s{S_X1}")
    k.e("s_waitcnt lgkmcnt(0)")
    for j in range(8): k.e(f"v_add_f32 v{ACC+j}, v{ACC+j}, v{ACC+8+j}")
    k.e("s_nop 1")
    for j in range(4): k.e(f"v_permlane16_swap_b32 v{ACC+j}, v{ACC+4+j}")
    k.e("s_nop 1")
    for j in range(4):
        k.e(f"v_lshlrev_b32 v{BB}, 16, v{RX+j}"); k.e(f"v_and_b32 v{BB+1}, 0xffff0000, v{RX+j}")
        k.e(f"v_add_f32 v{ACC+2*j}, v{ACC+2*j}, v{BB}"); k.e(f"v_add_f32 v{ACC+2*j+1}, v{ACC+2*j+1}, v{BB+1}")
        k.e(f"v_cvt_pk_bf16_f32 v{RX+j}, v{ACC+2*j}, v{ACC+2*j+1}")
    if FS == "B": stamp(k, 5)
    k.e(f"buffer_store_dwordx4 {vr(RX,4)}, v{VR_}, {WS}, s41 offen sc1")
    publish(k, CB_DONE, 10, F_B, S_R, S_S, 24)
    if FS == "B": stamp(k, 6)
    k.e("s_branch L_B_end")
    k.label("L_B_idle")
    for i in range(CPA, 3): c_aload(k, i, "c")
    k.e("s_barrier")
    k.label("L_B_end")
    k.vm = vm_keep; k.lg = []
    NP2 = ENV("NP2", 3)
    for i in range(NP1, NP2): c_aload(k, i)
    return NP2

def phase_C(k, npre):
    k.c("================ phase C")
    VB1, VB2, VT = 5, 6, 7
    ACC, BB = 8, 56
    D = 6
    k.e(f"s_mul_i32 s39, s{S_RC}, {TILEB}")
    await_flags(k, F_B, S_RC, 8, (CB_DONE, 10))
    if FS in ("", "B", "C"): stamp(k, {"B": 7, "C": 1}.get(FS, 5))
    k.e(f"s_mul_i32 s36, s{S_W}, 6144"); k.e("s_add_u32 s37, s36, s39"); k.e(f"s_add_u32 s37, s37, s{S_X1}")
    for i in range(6):
        if i and i % 4 == 0: k.e("s_add_u32 s37, s37, 4096")
        k.e(f"buffer_load_dwordx4 {vr(8+4*i,4)}, v{V_L16}, {WS}, s37 offen offset:{(i%4)*1024} sc1")
    k.e(f"s_lshl_b32 s37, s{S_ROT}, 12"); k.e("s_sub_u32 s36, s36, s37"); k.e(f"s_add_u32 s36, s36, {TILEB}")
    k.e("s_mov_b32 s38, 0x3f803f80")
    for i in range(6):
        k.e(f"s_sub_u32 s37, s36, {TILEB}"); k.e(f"s_cmp_ge_u32 s36, {TILEB}"); k.e("s_cselect_b32 s36, s37, s36")
        k.e(f"v_add_u32 v{VB2}, s36, v{V_L16}")
        k.e(f"s_waitcnt vmcnt({5-i})")
        k.e(f"ds_write_b128 v{VB2}, {vr(8+4*i,4)}")
        stats_acc(k, 8+4*i, 44, i == 0, 38)
        k.e("s_add_u32 s36, s36, 1024")
    k.e(f"s_lshl_b32 s37, s{S_W}, 9"); k.e(f"v_lshlrev_b32 v{VB2}, 3, v{V_L}"); k.e(f"v_add_u32 v{VB2}, s37, v{VB2}"); k.e(f"v_add_u32 v{VB2}, {C_PM}, v{VB2}")
    k.e(f"ds_write_b64 v{VB2}, v[44:45]")
    k.label("L_C_s4")
    k.vm = []
    k.e(f"v_lshlrev_b32 v{VB1}, 10, v{V_G}"); k.e(f"v_lshl_add_u32 v{VB1}, v{V_M}, 4, v{VB1}")
    k.e("s_waitcnt lgkmcnt(0)")
    if GXC:
        lds_signal(k, CC_X, 46, byclass=True)
        k.e("s_waitcnt lgkmcnt(0)")
    else:
        k.e("s_barrier")
    if FS in ("", "C"): stamp(k, {"C": 2}.get(FS, 6))
    k.lg = []
    def gate1(ks, query=False):
        if not GXC or ks % 6: return False
        if query: return True
        lds_wait(k, CC_X + ks//6, 4, EX)
    k.e(f"s_cmp_lg_u32 s{S_W}, 11"); k.e("s_cbranch_scc1 L_C_nocomb")
    if GXC:
        for c in range(3): lds_wait(k, CC_X + c, 4, 8)
    stats_combine(k, C_PM, 8, VB2, C_ST, False, 12)
    lds_signal(k, CC_ST, 8)
    k.e("s_waitcnt lgkmcnt(0)"); k.lg = []
    k.label("L_C_nocomb")
    k.e(f"v_add_u32 v{VB2}, 49152, v{VB1}")
    def bread1(ks, mi, reg):
        off = ks*4096 + mi*256; base = VB1
        if off >= 49152: off -= 49152; base = VB2
        k.lds(f"ds_read_b128 {vr(reg,4)}, v{base} offset:{off}", ("b", ks))
    accf = lambda mi, t: ACC + 12*mi + 4*t
    bbf = lambda par, mi: BB + 16*par + 4*mi
    asf = lambda i_, t: AR + 12*(i_ % D) + 4*t
    order = [(mi, t) for mi in range(4) for t in range(3)]
    DEFER = ENV("DEFER", 2)
    state = dict(n=npre)
    lim1 = ENV("LIM1", 18) if DEFER else 24
    def after1(ks):
        tgt = min(ks + 1 + D, lim1, state["n"] + 2)
        while state["n"] < tgt:
            c_aload(k, state["n"]); state["n"] += 1
            if DEFER == 1 and state["n"] == 18: lds_signal(k, CC_W1, EX)
    k.e(f"s_setprio {ENV('P1PRIO', 2)}")
    gemm_loop(k, 18, order, accf, bbf, asf, bread1, 0, 4, after1, gate=gate1)
    k.e(f"s_setprio {ENV('GPRIO', 3)}")
    if FS == "C": stamp(k, 3)
    DEFN = ENV('DEFN', 12)
    sv2 = k.snapshot()
    def w2_check(final=False, first=False):
        if DEFER != 1: return
        lab = k.newlabel("L_w2")
        if not first:
            k.e("s_cmp_lg_u32 s56, 0"); k.e(f"s_cbranch_scc1 {lab}")
        else:
            k.e("s_mov_b32 s56, 0")
        k.e(f"s_add_u32 s36, s{S_CNT}, {4*CC_W1}")
        k.label(lab + "_p")
        k.e(f"v_mov_b32 v0, s36")
        k.e(f"ds_read_b32 v0, v0")
        k.e("s_waitcnt lgkmcnt(0)"); k.lg = []
        k.e(f"v_readfirstlane_b32 s37, v0")
        k.e("s_nop 3")
        k.e(f"s_cmp_ge_u32 s37, {DEFN}"); k.e(f"s_cbranch_scc1 {lab}_go")
        if final:
            k.e("s_sleep 4"); k.e(f"s_branch {lab}_p")
        else:
            k.e(f"s_branch {lab}")
        k.label(lab + "_go")
        k.vm = list(sv2[0])
        for i in range(18, 24): c_aload(k, i)
        k.e("s_mov_b32 s56, 1")
        k.label(lab)
    w2_check(first=True)
    lds_wait(k, CC_ST, 1, EX)
    CSR, B1R, T, STR = BB, BB+12, BB+24, EX
    k.e(f"s_lshr_b32 s40, s{S_W}, 1"); k.e(f"s_and_b32 s41, s{S_W}, 1"); k.e("s_mul_i32 s40, s40, 96")
    k.e("s_lshl_b32 s42, s41, 5"); k.e("s_add_u32 s42, s42, s40")
    k.e("s_lshl_b32 s43, s41, 4"); k.e("s_add_u32 s43, s43, s40"); k.e("s_add_u32 s43, s43, 64")
    k.e(f"v_lshlrev_b32 v{VB1}, 3, v{V_G}"); k.e(f"v_add_u32 v{VB1}, s42, v{VB1}")
    k.e(f"v_lshlrev_b32 v{VB2}, 2, v{V_G}"); k.e(f"v_add_u32 v{VB2}, s43, v{VB2}")
    k.e(f"s_mov_b32 s40, {C_CS}"); k.e(f"s_mov_b32 s41, {C_B1}")
    k.e(f"v_lshl_add_u32 v{VT}, v{VB1}, 2, s40")
    for j in range(2): k.lds(f"ds_read_b128 {vr(CSR+4*j,4)}, v{VT} offset:{16*j}", "cs")
    k.e(f"v_lshl_add_u32 v{VT}, v{VB2}, 2, s40")
    k.lds(f"ds_read_b128 {vr(CSR+8,4)}, v{VT}", "cs")
    k.e(f"v_lshl_add_u32 v{VT}, v{VB1}, 1, s41")
    k.lds(f"ds_read_b128 {vr(T,4)}, v{VT}", "cs")
    k.e(f"v_lshl_add_u32 v{VT}, v{VB2}, 1, s41")
    k.lds(f"ds_read_b64 {vr(T+4,2)}, v{VT}", "cs")
    k.e(f"v_lshlrev_b32 v{VB1}, 3, v{V_M}"); k.e(f"v_add_u32 v{VB1}, {C_ST}, v{VB1}")
    for mi in range(4): k.lds(f"ds_read_b64 {vr(STR+2*mi,2)}, v{VB1} offset:{128*mi}", "cs")
    k.e(f"s_bfe_u32 s40, s{S_W}, 0x10001"); k.e(f"s_and_b32 s41, s{S_W}, 1"); k.e("s_mul_i32 s40, s40, 3")
    k.e(f"s_sub_u32 s40, s40, s{S_ROT2}"); k.e("s_add_u32 s40, s40, 6")
    k.e(f"s_lshr_b32 s55, s{S_W}, 2"); k.e("s_mul_i32 s54, s55, 6")
    k.e("s_add_u32 s42, s40, s41"); k.e("s_sub_u32 s44, s42, 6"); k.e("s_cmp_ge_u32 s42, 6"); k.e("s_cselect_b32 s42, s44, s42")
    k.e("s_add_u32 s42, s42, s54"); k.e("s_lshl_b32 s42, s42, 12"); k.e(f"s_add_u32 s42, s42, {C_HB}")
    k.e("s_add_u32 s43, s40, 2"); k.e("s_sub_u32 s44, s43, 6"); k.e("s_cmp_ge_u32 s43, 6"); k.e("s_cselect_b32 s43, s44, s43")
    k.e("s_add_u32 s43, s43, s54"); k.e("s_lshl_b32 s43, s43, 12"); k.e("s_lshl_b32 s41, s41, 3"); k.e("s_add_u32 s43, s43, s41"); k.e(f"s_add_u32 s43, s43, {C_HB}")
    k.e(f"v_add_u32 v{VB1}, s42, v{V_L16}"); k.e(f"v_add_u32 v{VB2}, s43, v{V_L16}")
    c0 = -2.0 * math.sqrt(2.0/math.pi) * math.log2(math.e)
    c1 = c0 * 0.044715
    k.e(f"s_mov_b32 s44, {f32(c1)}"); k.e(f"v_mov_b32 v{VT}, {f32(c0)}")
    k.wait(lg=["cs"])
    for j in range(6):
        k.e(f"v_lshlrev_b32 v{B1R+2*j}, 16, v{T+j}"); k.e(f"v_and_b32 v{B1R+2*j+1}, 0xffff0000, v{T+j}")
    PK = ENV("PK", 0)
    if PK:
        k.e(f"s_mov_b32 s45, {f32(c1)}"); k.e(f"s_mov_b32 s50, {f32(c0)}"); k.e(f"s_mov_b32 s51, {f32(c0)}")
    for mi in range(4):
        a = accf(mi, 0)
        for (j0, n) in ((0, 8), (8, 4)):
            js = range(j0, j0+n)
            if ENV("NOGELU", 0) == 1:
                for j in js: k.e(f"v_mul_f32 v{T+j-j0}, v{a+j}, v{STR+2*mi}")
            elif ENV("NOGELU", 0) == 2:
                for j in js: k.e(f"v_fma_f32 v{T+j-j0}, v{STR+2*mi+1}, v{CSR+j}, v{B1R+j}")
                for j in js: k.e(f"v_fma_f32 v{a+j}, v{a+j}, v{STR+2*mi}, v{T+j-j0}")
                for j in js: k.e(f"v_mul_f32 v{T+j-j0}, v{a+j}, v{a+j}")
                for j in js: k.e(f"v_fma_f32 v{T+j-j0}, v{T+j-j0}, s44, v{VT}")
                for j in js: k.e(f"v_mul_f32 v{T+j-j0}, v{T+j-j0}, v{a+j}")
                for j in js: k.e(f"v_add_f32 v{T+j-j0}, 1.0, v{T+j-j0}")
                for j in js: k.e(f"v_mul_f32 v{T+j-j0}, 0.5, v{a+j}")
            elif not PK:
                for j in js: k.e(f"v_fma_f32 v{T+j-j0}, v{STR+2*mi+1}, v{CSR+j}, v{B1R+j}")
                for j in js: k.e(f"v_fma_f32 v{a+j}, v{a+j}, v{STR+2*mi}, v{T+j-j0}")
                for j in js: k.e(f"v_mul_f32 v{T+j-j0}, v{a+j}, v{a+j}")
                for j in js: k.e(f"v_fma_f32 v{T+j-j0}, v{T+j-j0}, s44, v{VT}")
                for j in js: k.e(f"v_mul_f32 v{T+j-j0}, v{T+j-j0}, v{a+j}")
                for j in js: k.e(f"v_exp_f32 v{T+j-j0}, v{T+j-j0}")
                for j in js: k.e(f"v_add_f32 v{T+j-j0}, 1.0, v{T+j-j0}")
                for j in js: k.e(f"v_rcp_f32 v{T+j-j0}, v{T+j-j0}")
                for j in js: k.e(f"v_mul_f32 v{T+j-j0}, v{T+j-j0}, v{a+j}")
            else:
                jp = range(j0, j0+n, 2)
                P = lambda r: vr(r, 2)
                st = P(STR+2*mi)
                for j in jp: k.e(f"v_pk_fma_f32 {P(T+j-j0)}, {st}, {P(CSR+j)}, {P(B1R+j)} op_sel:[1,0,0] op_sel_hi:[1,1,1]")
                for j in jp: k.e(f"v_pk_fma_f32 {P(a+j)}, {P(a+j)}, {st}, {P(T+j-j0)} op_sel:[0,0,0] op_sel_hi:[1,0,1]")
                for j in jp: k.e(f"v_pk_mul_f32 {P(T+j-j0)}, {P(a+j)}, s[44:45]")
                for j in jp: k.e(f"v_pk_fma_f32 {P(T+j-j0)}, {P(T+j-j0)}, {P(a+j)}, s[50:51]")
                for j in jp: k.e(f"v_pk_mul_f32 {P(T+j-j0)}, {P(T+j-j0)}, {P(a+j)}")
                for j in js: k.e(f"v_exp_f32 v{T+j-j0}, v{T+j-j0}")
                for j in jp: k.e(f"v_pk_add_f32 {P(T+j-j0)}, {P(T+j-j0)}, 1.0 op_sel_hi:[1,0]")
                for j in js: k.e(f"v_rcp_f32 v{T+j-j0}, v{T+j-j0}")
                for j in jp: k.e(f"v_pk_mul_f32 {P(T+j-j0)}, {P(T+j-j0)}, {P(a+j)}")
            for j in range(n//2): k.e(f"v_cvt_pk_bf16_f32 v{a+j0+j}, v{T+2*j}, v{T+2*j+1}")
            if j0 == 0: k.lds(f"ds_write_b128 v{VB1}, {vr(a,4)} offset:{mi*1024}", "hw")
            else: k.lds(f"ds_write_b64 v{VB2}, {vr(a+8,2)} offset:{mi*1024}", "hw")
            if DEFER == 2 and state["n"] < 24:
                c_aload(k, state["n"]); state["n"] += 1
        if mi < 3: w2_check()
    k.e(f"v_add_u32 v{VB1}, {C_HB}, v{V_L16}"); k.e(f"v_add_u32 v{VB2}, {C_HB+49152}, v{V_L16}")
    k.e("s_lshl_b32 s55, s55, 2"); k.e(f"s_add_u32 s55, s55, s{S_CNT}"); k.e(f"s_add_u32 s55, s55, {4*CC_H0}")
    k.e(f"v_mov_b32 v{EX+2}, s55"); k.e(f"v_mov_b32 v{EX+3}, 1")
    k.wait(lg0=True)
    k.e("s_mov_b64 exec, 1")
    k.e(f"ds_add_u32 v{EX+2}, v{EX+3}")
    k.e("s_mov_b64 exec, -1")
    k.e(f"s_setprio {ENV('P2PRIO', 0)}")
    if FS == "C": stamp(k, 4)
    w2_check(final=True)
    if FS == "C": stamp(k, 5)
    def gate(ks, query=False):
        if ks % 6: return False
        if query: return True
        lds_wait(k, CC_H0 + ks//6, 4, EX)
    def bread2(ks, mi, reg):
        off = (ks*4 + mi) * 1024; base = VB1
        if off >= 49152: off -= 49152; base = VB2
        k.lds(f"ds_read_b128 {vr(reg,4)}, v{base} offset:{off}", ("b", ks))
    def after2(ks):
        if 18 + ks + D < 36: c_aload(k, 18 + ks + D)
    gemm_loop(k, 18, order, accf, bbf, asf, bread2, 18, 4, after2, gate=gate)
    k.e("s_setprio 0")
    if FS == "C": stamp(k, 6)
    if FS == "D": stamp(k, 1)
    k.e(f"v_lshlrev_b32 v{VB1}, 10, v{V_G}"); k.e(f"v_lshl_add_u32 v{VB1}, v{V_M}, 4, v{VB1}")
    k.e(f"v_lshrrev_b32 v{VB2}, 1, v{V_G}"); k.e(f"v_lshlrev_b32 v{VB2}, 10, v{VB2}"); k.e(f"v_and_b32 v{VT}, 31, v{V_L}")
    k.e(f"v_lshl_add_u32 v{VB2}, v{VT}, 4, v{VB2}")
    k.e(f"s_mul_i32 s40, s{S_SC}, {XB}"); k.e("s_add_u32 s40, s40, s39"); k.e(f"s_mul_i32 s41, s{S_W}, 6144"); k.e("s_add_u32 s40, s40, s41")
    k.e(f"s_add_u32 s40, s40, s{S_P}")
    k.e("s_add_u32 s41, s40, 4096")
    for mp in range(2):
        T2 = BB + 16 + 4*mp
        for mi in (2*mp, 2*mp+1):
            a = accf(mi, 0); T_ = BB + 4*mi
            for j in range(4): k.e(f"v_cvt_pk_bf16_f32 v{T_+j}, v{a+2*j}, v{a+2*j+1}")
            for j in range(2): k.e(f"v_cvt_pk_bf16_f32 v{T2+2*(mi&1)+j}, v{a+8+2*j}, v{a+8+2*j+1}")
            k.e(f"buffer_store_dwordx4 {vr(T_,4)}, v{VB1}, {WS}, s40 offen offset:{256*mi} sc1")
        k.e("s_nop 0")
        k.e(f"v_permlane16_swap_b32 v{T2}, v{T2+2}"); k.e(f"v_permlane16_swap_b32 v{T2+1}, v{T2+3}")
        k.e("s_nop 0")
        k.e(f"buffer_store_dwordx4 {vr(T2,4)}, v{VB2}, {WS}, s41 offen offset:{512*mp} sc1")
    k.e(f"s_mul_i32 s40, s{S_CL}, 24"); k.e(f"s_mul_i32 s41, s{S_S}, 3"); k.e("s_add_u32 s40, s40, s41"); k.e(f"s_add_u32 s40, s40, s{S_WL}")
    k.e("s_min_u32 s40, s40, 71"); k.e("s_lshl_b32 s40, s40, 4")
    k.e("s_load_dwordx4 s[52:55], s[20:21], s40")
    lds_signal(k, CC_K2, 8)
    publish(k, CC_DONE, 4, F_C, S_RC, S_SC, 8, byclass=True)
    if FS in ("", "C", "D"): stamp(k, {"D": 2}.get(FS, 7))

def phase_D(k):
    k.c("================ phase D (per class)")
    k.e(f"s_cmp_lg_u32 s{S_WL}, 3"); k.e("s_cbranch_scc1 L_D_work")
    G0 = ENV("G0", 1)
    k.e(f"s_cmp_lg_u32 s{S_CL}, 0"); k.e("s_cbranch_scc1 L_D_g1")
    if G0 == 1: lds_wait(k, CC_DONE + 1, 4, 8, 8)
    else: lds_wait(k, CC_K2, 12, 8, 8)
    k.e("s_branch L_D_g2")
    k.label("L_D_g1")
    lds_wait(k, CC_K2, 12, 8, 4)
    k.label("L_D_g2")
    lds_wait(k, CC_DONE, 4, 8, 1, byclass=True)
    k.e(f"s_lshl_b32 s39, s{S_R}, {GSH}"); k.e(f"s_lshl_b32 s38, s{S_CL}, {GSH+5}"); k.e("s_add_u32 s39, s39, s38"); k.e(f"s_add_u32 s39, s39, s{S_FL}")
    k.e(f"s_add_u32 s37, s39, {F_C}")
    k.e(f"v_lshlrev_b32 v8, {FSH}, v{V_L}")
    poll(k, 8, 37, 0xff, 12)
    lds_signal(k, CD_GO, 10, byclass=True)
    k.e(f"s_cmp_lg_u32 s{S_LAY}, 0"); k.e("s_cbranch_scc1 L_D_idle")
    lds_wait(k, CD_DONE, 3, 10, 2, byclass=True)
    lds_wait(k, CC_K2, 12, 10, 8)
    k.e(f"s_add_u32 s37, s39, {F_D}")
    k.e(f"s_cmp_eq_u32 s{S_R}, 0"); k.e(f"s_cselect_b32 s38, 0, {1 << GSH}"); k.e("s_sub_u32 s37, s37, s38"); k.e(f"s_sub_u32 s38, s38, {8 << FSH}")
    k.e(f"v_cmp_le_u32 vcc, 8, v{V_L}"); k.e("v_mov_b32 v9, s38")
    k.e("s_nop 0")
    k.e("v_cndmask_b32 v9, 0, v9, vcc"); k.e("v_add_u32 v8, v8, v9")
    poll(k, 8, 37, 0xffff, 12)
    lds_signal(k, CA_GO, 10, byclass=True)
    k.e("s_waitcnt lgkmcnt(0)")
    k.e("s_branch L_D_idle")
    k.label("L_D_work")
    k.e(f"s_mul_i32 s39, s{S_R}, {TILEB}"); k.e("s_lshl_b32 s41, s40, 6"); k.e("s_add_u32 s41, s41, s39")
    lds_wait(k, CD_GO, 1, 8, 2, byclass=True)
    if FS == "D": stamp(k, 3)
    k.vm = []
    k.e(f"s_add_u32 s42, s41, s{S_X1}")
    k.vmem(f"buffer_load_dwordx4 v[40:43], v{V_L16}, {WS}, s42 offen sc1", "x1")
    k.e(f"s_add_u32 s42, s41, s{S_P}")
    for s in range(8):
        k.vmem(f"buffer_load_dwordx4 {vr(8+4*s,4)}, v{V_L16}, {WS}, s42 offen sc1", s)
        if s < 7: k.e(f"s_add_u32 s42, s42, {XB}")
    k.wait(vm=["x1"])
    for j in range(4):
        k.e(f"s_lshl_b32 s43, s{52+j}, 16"); k.e(f"s_and_b32 s44, s{52+j}, 0xffff0000")
        k.e(f"v_lshlrev_b32 v{48+2*j}, 16, v{40+j}"); k.e(f"v_and_b32 v{49+2*j}, 0xffff0000, v{40+j}")
        k.e(f"v_add_f32 v{48+2*j}, s43, v{48+2*j}"); k.e(f"v_add_f32 v{49+2*j}, s44, v{49+2*j}")
    for s in range(8):
        k.wait(vm=[s])
        for j in range(4):
            r = 8 + 4*s + j
            k.e(f"v_lshlrev_b32 v5, 16, v{r}"); k.e(f"v_and_b32 v6, 0xffff0000, v{r}")
            k.e(f"v_add_f32 v{48+2*j}, v{48+2*j}, v5"); k.e(f"v_add_f32 v{49+2*j}, v{49+2*j}, v6")
    for j in range(4): k.e(f"v_cvt_pk_bf16_f32 v{8+j}, v{48+2*j}, v{49+2*j}")
    if FS == "D": stamp(k, 4)
    k.e(f"s_cmp_lg_u32 s{S_LAY}, 0"); k.e("s_cbranch_scc1 L_D_final")
    k.e(f"s_add_u32 s42, s41, 0x{X2:x}")
    k.e(f"buffer_store_dwordx4 v[8:11], v{V_L16}, {WS}, s42 offen sc1")
    publish(k, CD_DONE, 3, F_D, S_R, S_S, 14, byclass=True)
    if FS == "D": stamp(k, 5)
    lds_wait(k, CA_GO, 1, 8, 2, byclass=True)
    if FS == "D": stamp(k, 6)
    k.e("s_branch L_D_idle")
    k.label("L_D_final")
    k.e("s_movk_i32 s42, 1152"); k.e(f"v_mul_u32_u24 v5, s42, v{V_L}")
    k.e("s_add_u32 s42, s39, s40")
    k.e("buffer_store_dwordx4 v[8:11], v5, s[16:19], s42 offen")
    k.label("L_D_idle")


def phase_P(k):
    k.c("================ phase P (weight re-layout), waves 0-5: job b, waves 6-11: job 256+b")
    L, L16, G, R, C = V_L, V_L16, V_G, 46, 47
    IN = "s[52:55]"
    k.e(f"v_bfe_u32 v{R}, v{L}, 2, 2"); k.e(f"v_and_b32 v{C}, 3, v{L}")
    k.e(f"s_cmp_ge_u32 s{S_W}, 6"); k.e(f"s_cselect_b32 s{S_SLOT}, 1, 0")
    k.e("s_add_u32 s36, s2, 64"); k.e("s_cmp_lt_u32 s2, 120"); k.e("s_cselect_b32 s36, s2, s36")
    k.e("s_add_u32 s37, s2, 216"); k.e("s_cmp_lt_u32 s2, 104"); k.e("s_cselect_b32 s37, 999, s37")
    k.e("s_add_u32 s38, s2, 120"); k.e("s_cmp_lt_u32 s2, 64"); k.e("s_cselect_b32 s37, s38, s37")
    k.e(f"s_cmp_eq_u32 s{S_SLOT}, 0"); k.e(f"s_cselect_b32 s{S_JOB}, s36, s37")
    k.e(f"s_mul_i32 s{S_LB}, s{S_SLOT}, 36864")
    k.e(f"s_mul_i32 s49, s{S_SLOT}, 6"); k.e(f"s_sub_u32 s49, s{S_W}, s49")
    k.e(f"s_and_b32 s45, s{S_JOB}, 7"); k.e(f"s_lshr_b32 s46, s{S_JOB}, 3")
    k.e(f"s_cmp_ge_u32 s{S_JOB}, {J_END}"); k.e("s_cbranch_scc1 L_P_done")
    k.e(f"s_and_b32 s36, s{S_JOB}, 0xfffe"); k.e("s_cmp_eq_u32 s36, 54"); k.e("s_cbranch_scc1 L_P_done")
    def dispatch(pfx):
        for bound, lab in ((J_X0, "wq"), (J_WO, "x0"), (J_W1, "wo"), (J_W2, "w1")):
            k.e(f"s_cmp_lt_u32 s{S_JOB}, {bound}"); k.e(f"s_cbranch_scc1 L_P{pfx}_{lab}")
        k.e(f"s_branch L_P{pfx}_w2")
    def pdma(i, voff, soff):
        k.e(f"s_add_u32 m0, s37, {6144*i}")
        k.e("s_nop 0")
        k.e(f"buffer_load_dwordx4 v{voff}, {IN}, {soff} offen nt lds")
    def lin_dma(n_i, per_row, nmax, pitch):
        k.e("s_lshl_b32 s36, s49, 6")
        for i in range(n_i):
            k.e(f"v_add_u32 v6, s36, v{L}")
            if i: k.e(f"v_add_u32 v6, {384*i}, v6")
            divmod_const(k, 7, 8, 6, per_row, nmax, 38)
            k.e(f"s_mov_b32 s38, {pitch}")
            k.e("v_mul_u32_u24 v7, s38, v7")
            k.e("v_lshl_add_u32 v7, v8, 4, v7")
            pdma(i, 7, "s40")
    def cont_dma():
        k.e("s_lshl_b32 s36, s49, 10"); k.e("s_add_u32 s40, s40, s36")
        for i in range(6):
            pdma(i, L16, "s40")
            if i < 5: k.e("s_add_u32 s40, s40, 6144")
    k.e(f"s_lshl_b32 s37, s49, 10"); k.e(f"s_add_u32 s37, s37, s{S_LB}")
    dispatch("i")
    k.label("L_Pi_wq")
    srd(k, 52, 24, 0, 576*1728*2)
    sdivmod(k, 46, 45, S_JOB, 3, 56)
    k.e("s_mul_i32 s40, s46, %d" % (32*3456)); k.e("s_mul_i32 s36, s45, 1152"); k.e("s_add_u32 s40, s40, s36")
    lin_dma(6, 72, 2304, 3456)
    k.e("s_branch L_P_wait")
    k.label("L_Pi_x0")
    srd(k, 52, 22, 0, XB)
    k.e(f"s_sub_u32 s46, s46, {J_X0//8}"); k.e("s_lshl_b32 s45, s45, 3"); k.e("s_add_u32 s46, s46, s45")
    k.e("s_mul_i32 s40, s46, 36864")
    cont_dma()
    k.e("s_branch L_P_wait")
    k.label("L_Pi_wo")
    srd(k, 52, 26, 0, 576*576*2)
    k.e(f"s_sub_u32 s46, s46, {J_WO//8}")
    k.e("s_mul_i32 s40, s46, %d" % (72*1152)); k.e("s_mul_i32 s36, s45, 144"); k.e("s_add_u32 s40, s40, s36")
    lin_dma(2, 9, 768, 1152)
    k.e("s_branch L_P_wait")
    k.label("L_Pi_w1")
    srd(k, 52, 28, 0, 576*4608*2)
    k.e(f"s_sub_u32 s46, s46, {J_W1//8}")
    k.e("s_mul_i32 s40, s46, %d" % (32*9216)); k.e("s_mul_i32 s36, s45, 1152"); k.e("s_add_u32 s40, s40, s36")
    lin_dma(6, 72, 2304, 9216)
    k.e("s_branch L_P_wait")
    k.label("L_Pi_w2")
    srd(k, 52, 32, 0, 576*4608*2)
    k.e(f"s_sub_u32 s46, s46, {J_W2//8}")
    k.e("s_mul_i32 s40, s45, 18"); k.e("s_add_u32 s40, s40, s46"); k.e("s_mul_i32 s40, s40, 36864")
    cont_dma()
    k.label("L_P_wait")
    for j in range(4): k.e(f"v_mov_b32 v{40+j}, 0x3f803f80")
    k.e(f"s_lshl_b32 s36, s{S_SLOT}, 2"); k.e(f"s_add_u32 s36, s36, {CNT + 4*CP_LD}"); k.e("v_mov_b32 v8, s36"); k.e("v_mov_b32 v9, 1")
    k.e("s_waitcnt vmcnt(0)")
    k.e("s_mov_b64 exec, 1"); k.e("ds_add_u32 v8, v9"); k.e("s_mov_b64 exec, -1")
    k.label("L_P_spin")
    k.e("ds_read_b32 v9, v8"); k.e("s_waitcnt lgkmcnt(0)"); k.e("v_readfirstlane_b32 s36, v9"); k.e("s_nop 3")
    k.e("s_cmp_ge_u32 s36, 6"); k.e("s_cbranch_scc1 L_P_go"); k.e("s_sleep 2"); k.e("s_branch L_P_spin")
    k.label("L_P_go")
    k.e(f"s_lshl_b32 s39, s{S_W}, 10"); k.e("s_add_u32 s39, s39, 73728")
    k.e("s_lshl_b32 s48, s49, 1")
    k.label("L_P_vw")
    dispatch("p")
    def tr3(a6, a9, a10, a11):
        for t in range(2):
            k.e(f"ds_read_b64_tr_b16 v[{12+4*t}:{13+4*t}], v{a6} offset:{8*t}")
            k.e(f"ds_read_b64_tr_b16 v[{14+4*t}:{15+4*t}], v{a9} offset:{8*t}")
        k.e(f"ds_read_b64_tr_b16 v[20:21], v{a10}")
        k.e(f"ds_read_b64_tr_b16 v[22:23], v{a11}")
    k.label("L_Pp_w1")
    k.e("s_lshr_b32 s40, s48, 1"); k.e("s_and_b32 s41, s48, 1"); k.e("s_mul_i32 s40, s40, 96")
    k.e("s_lshl_b32 s42, s41, 5"); k.e("s_add_u32 s42, s42, s40")
    k.e("s_lshl_b32 s43, s41, 4"); k.e("s_add_u32 s43, s43, s40"); k.e("s_add_u32 s43, s43, 64")
    k.e(f"v_lshl_add_u32 v7, v{G}, 3, v{R}"); k.e("s_movk_i32 s38, 1152"); k.e("v_mul_u32_u24 v7, s38, v7"); k.e(f"v_add_u32 v7, s{S_LB}, v7")
    k.e("s_lshl_b32 s44, s42, 1"); k.e(f"v_lshl_add_u32 v6, v{C}, 4, v7"); k.e("v_add_u32 v6, s44, v6")
    k.e("s_lshl_b32 s44, s43, 1"); k.e(f"v_lshl_add_u32 v10, v{C}, 3, v7"); k.e("v_add_u32 v10, s44, v10")
    k.e("v_add_u32 v9, %d, v6" % (4*1152)); k.e("v_add_u32 v11, %d, v10" % (4*1152))
    tr3(6, 9, 10, 11)
    k.e("s_mul_i32 s47, s45, 12"); k.e("s_add_u32 s47, s47, s48"); k.e("s_mul_i32 s47, s47, 36"); k.e("s_add_u32 s47, s47, s46")
    k.e("s_mul_i32 s47, s47, 3072"); k.e(f"s_add_u32 s47, s47, 0x{WFF:x}")
    k.e("s_lshl_b32 s42, s41, 7"); k.e("s_add_u32 s42, s42, s39"); k.e("s_lshl_b32 s43, s41, 6"); k.e("s_add_u32 s43, s43, s39"); k.e("s_add_u32 s43, s43, 256")
    k.e(f"v_lshlrev_b32 v7, 5, v{G}"); k.e("v_add_u32 v7, s42, v7"); k.e(f"v_lshlrev_b32 v8, 4, v{G}"); k.e("v_add_u32 v8, s43, v8")
    for t in range(3):
        k.e(f"s_waitcnt lgkmcnt({4-2*t})")
        k.e(f"buffer_store_dwordx4 v[{12+4*t}:{15+4*t}], v{L16}, {WS}, s47 offen offset:{1024*t}{WST}")
        k.e(f"v_mfma_f32_16x16x32_bf16 v[{28+4*t}:{31+4*t}], v[{12+4*t}:{15+4*t}], v[40:43], 0")
    k.e("s_nop 7")
    k.e("ds_write_b128 v7, v[28:31]"); k.e("ds_write_b128 v7, v[32:35] offset:16"); k.e("ds_write_b128 v8, v[36:39]")
    k.e("s_waitcnt lgkmcnt(0)")
    k.e("s_branch L_P_next")
    k.label("L_Pp_wq")
    k.e(f"v_lshl_add_u32 v6, v{G}, 3, v{R}"); k.e("s_movk_i32 s38, 1152"); k.e("v_mul_u32_u24 v6, s38, v6")
    k.e(f"v_lshl_add_u32 v6, v{C}, 3, v6"); k.e("s_mul_i32 s38, s48, 96"); k.e(f"s_add_u32 s38, s38, s{S_LB}"); k.e("v_add_u32 v6, s38, v6")
    for t in range(3):
        k.e(f"ds_read_b64_tr_b16 v[{12+4*t}:{13+4*t}], v6 offset:{32*t}")
        k.e(f"ds_read_b64_tr_b16 v[{14+4*t}:{15+4*t}], v6 offset:{32*t+4*1152}")
    k.e("s_mul_i32 s40, s45, 9")
    for t in range(3):
        k.e(f"v_bfe_u32 v7, v{L}, 3, 1"); k.e("s_mul_i32 s38, s48, 6"); k.e(f"s_add_u32 s38, s38, {2*t}"); k.e("v_add_u32 v7, s38, v7")
        divmod_const(k, 8, 9, 7, 9, 72, 38)
        k.e("v_add_u32 v9, s40, v9")
        k.e("v_mul_u32_u24 v8, 28, v8"); k.e("v_add_u32 v8, v8, v9")
        k.e("v_lshrrev_b32 v9, 1, v8"); k.e("s_movk_i32 s38, %d" % (18*1024)); k.e("v_mul_u32_u24 v9, s38, v9")
        k.e("v_and_b32 v8, 1, v8"); k.e("v_lshl_add_u32 v9, v8, 7, v9")
        k.e(f"v_lshl_add_u32 v9, v{G}, 8, v9"); k.e(f"v_and_b32 v8, 7, v{L}"); k.e(f"v_lshl_add_u32 v{24+t}, v8, 4, v9")
    k.e("s_lshl_b32 s47, s46, 10")
    if WQF: k.e(f"s_add_u32 s47, s47, 0x{WQF:x}")
    k.e("s_and_b32 s42, s48, 1"); k.e("s_mul_i32 s42, s42, 192"); k.e("s_add_u32 s42, s42, s39")
    k.e(f"v_lshlrev_b32 v7, 4, v{G}"); k.e("v_add_u32 v7, s42, v7")
    k.e("s_waitcnt lgkmcnt(0)")
    for t in range(3):
        k.e(f"buffer_store_dwordx4 v[{12+4*t}:{15+4*t}], v{24+t}, {WS}, s47 offen sc1")
        k.e(f"v_mfma_f32_16x16x32_bf16 v[{28+4*t}:{31+4*t}], v[{12+4*t}:{15+4*t}], v[40:43], 0")
    k.e("s_nop 7")
    for t in range(3): k.e(f"ds_write_b128 v7, v[{28+4*t}:{31+4*t}] offset:{64*t}")
    k.e("s_waitcnt lgkmcnt(0)")
    k.e("s_branch L_P_next")
    k.label("L_Pp_w2")
    sdivmod(k, 40, 41, 46, 3, 18)
    k.e("s_cmp_eq_u32 s41, 2"); k.e("s_cselect_b32 s44, 2, 3"); k.e("s_movk_i32 s43, %d" % (4*1152)); k.e("s_cselect_b32 s43, %d, s43" % (16*1152))
    k.e(f"v_lshlrev_b32 v6, s44, v{G}"); k.e(f"v_add_u32 v6, v6, v{R}")
    k.e("s_movk_i32 s38, 1152"); k.e("v_mul_u32_u24 v6, s38, v6")
    k.e("s_mul_i32 s38, s48, 96"); k.e(f"s_add_u32 s38, s38, s{S_LB}"); k.e("v_add_u32 v6, s38, v6")
    k.e(f"v_lshl_add_u32 v10, v{C}, 3, v6"); k.e("v_add_u32 v10, 64, v10")
    k.e(f"v_lshl_add_u32 v6, v{C}, 4, v6")
    k.e("v_add_u32 v9, s43, v6"); k.e("v_add_u32 v11, s43, v10")
    tr3(6, 9, 10, 11)
    k.e("s_mul_i32 s47, s45, 12"); k.e("s_add_u32 s47, s47, s48"); k.e("s_mul_i32 s47, s47, 36"); k.e("s_add_u32 s47, s47, s46"); k.e("s_add_u32 s47, s47, 18")
    k.e("s_mul_i32 s47, s47, 3072"); k.e(f"s_add_u32 s47, s47, 0x{WFF:x}")
    for t in range(3):
        k.e(f"s_waitcnt lgkmcnt({4-2*t})")
        k.e(f"buffer_store_dwordx4 v[{12+4*t}:{15+4*t}], v{L16}, {WS}, s47 offen offset:{1024*t}{WST}")
    k.e("s_branch L_P_next")
    k.label("L_Pp_wo")
    k.e("s_lshl_b32 s44, s48, 2"); k.e(f"v_add_u32 v6, s44, v{G}"); k.e("v_min_u32 v6, 44, v6")
    divmod_const(k, 8, 7, 6, 5, 48, 38)
    k.e("v_lshrrev_b32 v9, 1, v8"); k.e("v_mul_u32_u24 v9, 18, v9")
    k.e("v_and_b32 v10, 1, v8"); k.e("v_lshl_add_u32 v9, v10, 3, v9")
    k.e(f"v_add_u32 v9, v9, v{R}")
    k.e("v_add_u32 v10, 4, v9")
    k.e(f"v_lshrrev_b32 v11, 1, v{R}"); k.e("v_mul_u32_u24 v11, 18, v11"); k.e(f"v_and_b32 v16, 1, v{R}")
    k.e("v_add3_u32 v11, v11, v16, 16")
    k.e("v_add_u32 v16, 36, v11")
    k.e("v_cmp_eq_u32 vcc, 8, v8")
    k.e("s_nop 1")
    k.e("v_cndmask_b32 v9, v9, v11, vcc"); k.e("v_cndmask_b32 v10, v10, v16, vcc")
    k.e("s_movk_i32 s38, 144"); k.e("v_mul_u32_u24 v9, s38, v9"); k.e("v_mul_u32_u24 v10, s38, v10")
    k.e("v_lshlrev_b32 v11, 5, v7"); k.e(f"v_lshl_add_u32 v11, v{C}, 3, v11"); k.e(f"v_add_u32 v11, s{S_LB}, v11")
    k.e("v_add_u32 v9, v9, v11"); k.e("v_add_u32 v10, v10, v11")
    k.e("ds_read_b64_tr_b16 v[12:13], v9")
    k.e("ds_read_b64_tr_b16 v[14:15], v10")
    k.e("s_movk_i32 s38, %d" % (18*1024)); k.e("v_mul_u32_u24 v7, s38, v7")
    k.e("s_mul_i32 s38, s46, 9"); k.e("v_add_u32 v8, s38, v8"); k.e("v_lshl_add_u32 v7, v8, 8, v7")
    k.e(f"v_lshl_add_u32 v7, v{V_M}, 4, v7")
    k.e("s_mul_i32 s44, s45, %d" % (5*18*1024)); k.e(f"s_add_u32 s44, s44, 0x{WOF:x}")
    k.e("s_waitcnt lgkmcnt(0)")
    k.e(f"buffer_store_dwordx4 v[12:15], v7, {WS}, s44 offen sc1")
    k.e("s_branch L_P_next")
    k.label("L_Pp_x0")
    k.e(f"v_and_b32 v6, 31, v{L}"); k.e(f"v_lshrrev_b32 v7, 5, v{L}")
    k.e("s_movk_i32 s38, 1152"); k.e("v_mul_u32_u24 v8, s38, v6"); k.e("v_lshl_add_u32 v8, v7, 4, v8")
    k.e("s_mul_i32 s38, s48, 96"); k.e(f"s_add_u32 s38, s38, s{S_LB}"); k.e("v_add_u32 v8, s38, v8")
    for i in range(3): k.e(f"ds_read_b128 v[{12+4*i}:{15+4*i}], v8 offset:{32*i}")
    k.e("v_lshlrev_b32 v9, 10, v7"); k.e("v_lshl_add_u32 v9, v6, 4, v9")
    k.e("s_lshr_b32 s40, s46, 1"); k.e(f"s_mul_i32 s40, s40, {TILEB}"); k.e("s_and_b32 s41, s46, 1"); k.e("s_lshl_b32 s41, s41, 9"); k.e("s_add_u32 s40, s40, s41")
    k.e("s_mul_i32 s41, s48, 6144"); k.e("s_add_u32 s40, s40, s41"); k.e(f"s_add_u32 s40, s40, 0x{X0P:x}"); k.e("s_add_u32 s41, s40, 4096")
    for i in range(3):
        k.e(f"s_waitcnt lgkmcnt({2-i})")
        k.e(f"buffer_store_dwordx4 v[{12+4*i}:{15+4*i}], v9, {WS}, s{40 if i < 2 else 41} offen offset:{2048*(i%2)} sc1")
    k.label("L_P_next")
    k.e("s_add_u32 s48, s48, 1"); k.e("s_bitcmp1_b32 s48, 0")
    k.e("s_nop 3")
    k.e("s_cbranch_scc1 L_P_vw")
    k.e(f"s_cmp_lt_u32 s{S_JOB}, {J_X0}"); k.e("s_cbranch_scc1 L_P_csq")
    k.e(f"s_cmp_lt_u32 s{S_JOB}, {J_W1}"); k.e("s_cbranch_scc1 L_P_tag")
    k.e(f"s_cmp_ge_u32 s{S_JOB}, {J_W2}"); k.e("s_cbranch_scc1 L_P_tag")
    k.e("s_mul_i32 s42, s46, %d" % (4608*4)); k.e("s_mul_i32 s40, s45, 2304"); k.e("s_add_u32 s42, s42, s40"); k.e(f"s_add_u32 s42, s42, 0x{CSP:x}")
    k.e("s_mul_i32 s40, s49, 384"); k.e("s_add_u32 s42, s42, s40")
    k.e(f"v_add_u32 v6, s39, v{L16}")
    k.e("s_waitcnt lgkmcnt(0)")
    k.e("ds_read_b128 v[28:31], v6")
    k.e("s_mov_b64 exec, 0xffffff")
    k.e("s_waitcnt lgkmcnt(0)")
    k.e(f"buffer_store_dwordx4 v[28:31], v{L16}, {WS}, s42 offen{WST}")
    k.e("s_mov_b64 exec, -1")
    k.e("s_branch L_P_tag")
    k.label("L_P_csq")
    k.e(f"s_mul_i32 s42, s{S_JOB}, 2304"); k.e(f"s_add_u32 s42, s42, 0x{CSQP:x}")
    k.e("s_mul_i32 s40, s49, 384"); k.e("s_add_u32 s42, s42, s40")
    k.e(f"v_add_u32 v6, s39, v{L16}")
    k.e("s_waitcnt lgkmcnt(0)")
    k.e("ds_read_b128 v[28:31], v6")
    k.e("s_mov_b64 exec, 0xffffff")
    k.e("s_waitcnt lgkmcnt(0)")
    k.e(f"buffer_store_dwordx4 v[28:31], v{L16}, {WS}, s42 offen sc1")
    k.e("s_mov_b64 exec, -1")
    k.label("L_P_tag")

def get_tag(k):
    lab = k.newlabel("L_tag")
    k.e("v_mov_b32 v8, 0")
    k.e("s_mov_b32 s38, 0x20000")
    k.label(lab)
    k.e("global_load_dwordx2 v[10:11], v8, s[34:35] sc1")
    k.e("s_waitcnt vmcnt(0)")
    k.e("v_readfirstlane_b32 s62, v10"); k.e("v_readfirstlane_b32 s63, v11")
    k.e("s_sub_u32 s38, s38, 1")
    k.e("s_cmp_eq_u32 s38, 0"); k.e(f"s_cbranch_scc1 {lab}_ok")
    k.e("s_and_b32 s36, s62, s63"); k.e("s_bitcmp1_b32 s36, 0"); k.e(f"s_cbranch_scc1 {lab}_ok")
    k.e("s_sleep 2"); k.e(f"s_branch {lab}")
    k.label(f"{lab}_ok")

def gen_main():
    name = NAME + "_kernel"
    k = K(); header(k, name, 256)
    k.e("s_load_dwordx2 s[22:23], s[0:1], 0")
    k.e("s_load_dwordx4 s[24:27], s[0:1], 8")
    k.e("s_load_dwordx4 s[28:31], s[0:1], 32")
    k.e("s_load_dwordx2 s[32:33], s[0:1], 48")
    k.e("s_load_dwordx4 s[4:7], s[0:1], 56")
    k.e("s_load_dwordx4 s[40:43], s[0:1], 72")
    k.e("s_memrealtime s[44:45]")
    wave_lane(k, V_L, S_W)
    k.e(f"v_lshlrev_b32 v{V_L16}, 4, v{V_L}")
    k.e(f"v_lshrrev_b32 v{V_G}, 4, v{V_L}"); k.e(f"v_and_b32 v{V_M}, 15, v{V_L}")
    k.e(f"s_cmp_lg_u32 s{S_W}, 0"); k.e("s_cbranch_scc1 L_M_nz")
    k.e(f"v_lshlrev_b32 v5, 3, v{V_L}"); k.e(f"v_add_u32 v5, {CNT}, v5"); k.e("v_mov_b32 v6, 0"); k.e("v_mov_b32 v7, 0"); k.e("ds_write_b64 v5, v[6:7]")
    k.label("L_M_nz")
    k.e("s_waitcnt lgkmcnt(0)")
    srd(k, 8, 42, 0, WSZ)
    srd(k, 12, 30, 0, 4608*2)
    srd(k, 16, 6, 0, XB)
    k.e("s_mov_b64 s[20:21], s[4:5]")
    k.e("s_mov_b64 s[34:35], s[40:41]")
    k.e(f"s_or_b32 s36, s2, s{S_W}"); k.e("s_cmp_lg_u32 s36, 0"); k.e("s_cbranch_scc1 L_M_nt")
    k.e("s_lshl_b32 s46, s45, 2"); k.e("s_lshr_b32 s47, s44, 31"); k.e("s_lshl_b32 s47, s47, 1"); k.e("s_or_b32 s46, s46, s47"); k.e("s_or_b32 s46, s46, 1")
    k.e("s_lshl_b32 s47, s44, 1"); k.e("s_or_b32 s47, s47, 1")
    k.e("v_mov_b32 v6, s47"); k.e("v_mov_b32 v7, s46"); k.e("v_mov_b32 v5, 0")
    k.e("s_mov_b64 exec, 1")
    k.e("global_store_dwordx2 v5, v[6:7], s[34:35] sc1")
    k.e("s_mov_b64 exec, -1")
    k.label("L_M_nt")
    k.e("s_barrier")
    phase_P(k)
    get_tag(k)
    k.e(f"s_mov_b32 s{S_CNT}, {CNT}")
    if WREL:
        k.e(f"s_cmp_ge_u32 s{S_JOB}, {J_W1}"); k.e("s_cbranch_scc1 L_P_end")
    k.e(f"s_cmp_lt_u32 s{S_JOB}, {J_X0}"); k.e("s_cbranch_scc1 L_P_pq")
    publish(k, CP_DONE, 6, FLP, None, S_JOB, 8)
    k.e("s_branch L_P_end")
    k.label("L_P_pq")
    publish(k, CP_DONE, 6, FLQ, None, S_JOB, 8, repl=True)
    k.e("s_branch L_P_end")
    k.label("L_P_done")
    get_tag(k)
    k.label("L_P_end")
    if FS == "P": stamp(k, 1)
    def mapping2(Sx, ss, sr_, sidx):
        R = 32 // Sx; ng = 8 // Sx; lg = lambda x: x.bit_length() - 1
        k.e("s_and_b32 s36, s2, 7"); k.e("s_lshr_b32 s37, s2, 3")
        k.e(f"s_and_b32 s{ss}, s36, {ng-1}"); k.e(f"s_lshl_b32 s{ss}, s{ss}, {lg(Sx)}")
        k.e(f"s_and_b32 s38, s37, {Sx-1}"); k.e(f"s_add_u32 s{ss}, s{ss}, s38")
        k.e(f"s_lshr_b32 s{sr_}, s36, {lg(ng)}"); k.e(f"s_lshl_b32 s{sr_}, s{sr_}, {lg(R)}")
        k.e(f"s_lshr_b32 s{sidx}, s37, {lg(Sx)}"); k.e(f"s_add_u32 s{sr_}, s{sr_}, s{sidx}")
    mapping2(ENV('SX_L', 4), S_S, S_R, S_IDX)
    mapping2(SXC, S_SC, S_RC, S_IDX)
    rot18(k, S_IDX, S_ROT, 32 // SXC)
    sdivmod(k, 36, S_ROT2, S_IDX, 6, 32)
    if not ENV("ROT2", 1): k.e(f"s_mov_b32 s{S_ROT2}, 0")
    k.e(f"s_lshr_b32 s{S_CL}, s{S_W}, 2"); k.e(f"s_and_b32 s{S_WL}, s{S_W}, 3"); k.e(f"s_mov_b32 s{S_EARLY}, 0")
    k.e(f"s_mov_b32 s{S_LAY}, 0")
    k.e(f"s_mov_b32 s{S_XIN}, 0x{X0P:x}"); k.e(f"s_mov_b32 s{S_O}, 0x{O1:x}"); k.e(f"s_mov_b32 s{S_X1}, 0x{X1A:x}"); k.e(f"s_mov_b32 s{S_P}, 0x{P1:x}")
    k.e(f"s_mov_b32 s{S_FL}, 0x{FLG:x}"); k.e(f"s_mov_b32 s{S_CNT}, {CNT}")
    if ENV("PB4", 1): k.e("s_barrier")
    k.e(f"s_cmp_gt_u32 s{S_W}, 1"); k.e("s_cbranch_scc1 L_M_bar")
    k.e(f"s_cmp_eq_u32 s{S_W}, 1"); k.e("s_cbranch_scc1 L_M_wo")
    k.e(f"s_lshl_b32 s36, s{S_R}, 1"); k.e("s_sub_u32 s36, s36, 55")
    k.e(f"v_add_u32 v9, s36, v{V_L}"); k.e("v_max_i32 v9, 0, v9")
    k.e("v_and_b32 v10, 7, v9"); k.e("v_lshrrev_b32 v9, 3, v9"); k.e("v_lshl_add_u32 v9, v10, 3, v9"); k.e(f"v_add_u32 v9, {J_X0}, v9")
    k.e(f"v_cmp_gt_u32 vcc, 54, v{V_L}")
    k.e("s_nop 1")
    k.e("s_and_b32 s36, s2, 7"); k.e("s_lshl_b32 s36, s36, 6"); k.e(f"s_add_u32 s36, s36, {(FLQ-FLP)//128}"); k.e(f"v_add_u32 v10, s36, v{V_L}")
    k.e(f"v_cndmask_b32 v8, v9, v10, vcc"); k.e("v_lshlrev_b32 v8, 7, v8")
    k.e(f"s_mov_b32 s37, 0x{FLP:x}")
    poll(k, 8, 37, (1 << 57) - 1, 10, ENV('PS2', 8))
    k.e("s_branch L_M_bar")
    k.label("L_M_wo")
    k.e(f"s_lshl_b32 s37, s{S_S}, 7"); k.e(f"s_add_u32 s37, s37, 0x{FLP + 128*J_WO:x}")
    k.e(f"v_lshlrev_b32 v8, 10, v{V_L}")
    poll(k, 8, 37, 0xff, 10, ENV('PS2', 8))
    k.label("L_M_bar")
    if FS == "P": stamp(k, 2)
    k.e("s_barrier")
    if FS == "P": stamp(k, 3)
    k.label("L_layer")
    phase_A(k)
    npre = phase_B(k)
    phase_C(k, npre)
    phase_D(k)
    k.e(f"s_cmp_lg_u32 s{S_LAY}, 0"); k.e(f"s_cbranch_scc1 L_{name}_end")
    if STAMP and ENV("STAMP_L1", 0):
        k.e(f"s_branch L_{name}_end")
    k.e(f"s_mov_b32 s{S_LAY}, 1")
    k.e(f"s_cmp_lt_u32 s{S_CL}, {ENV('NEARLY', 0)}"); k.e(f"s_cselect_b32 s{S_EARLY}, 1, 0")
    k.e(f"s_mov_b32 s{S_XIN}, 0x{X2:x}"); k.e(f"s_mov_b32 s{S_O}, 0x{O2:x}"); k.e(f"s_mov_b32 s{S_X1}, 0x{X1B:x}"); k.e(f"s_mov_b32 s{S_P}, 0x{P2:x}")
    k.e(f"s_mov_b32 s{S_FL}, 0x{FLG+FLG_LAYER:x}"); k.e(f"s_mov_b32 s{S_CNT}, {CNT+128}")
    if STAMP: stamp(k, 0)
    k.e("s_branch L_layer")
    k.label(f"L_{name}_end")
    if STAMP:
        k.e("s_waitcnt vmcnt(0)")
        k.e(f"s_lshl_b32 s36, s{S_W}, 6"); k.e("v_mov_b32 v0, s36")
    stamp_end(k, KIDX[0]); KIDX[0] += 1
    k.label(f"L_{name}_exit")
    k.e("s_endpgm")
    return name, k.text(), desc(name, 168), (256, 768, LDS_TOTAL)

def main(out):
    n, t, d, (g, b, lds) = gen_main()
    ref = open(f"cdna_kernels/{NAME}.s.ref").read().splitlines()
    hdr = [l for l in ref if l.startswith(";") and "@launch" not in l and "Override" not in l and "grid=ceil" not in l]
    s = "\n".join(hdr) + "\n"
    if ENV("ASLIST", 1): s += f"; @launch kernel={n} grid=({g},1,1) block=({b},1,1) lds={lds}\n"
    else: s += f"; @launch grid=({g},1,1) block=({b},1,1) lds={lds}\n"
    s += '.amdgcn_target "amdgcn-amd-amdhsa--gfx950"\n.text\n' + t + d
    open(out, "w").write(s)

if __name__ == "__main__":
    main(sys.argv[1] if len(sys.argv) > 1 else f"cdna_kernels/{NAME}.s")
```

```python
import sys, struct, math, os
from asmlib import *

NAME = "interleave_layers__sliding_local_dilated__dense_activation_gelu__prompt"
XB = 2048 * 1152
TILEB = 73728
WQF, WOF, WFF = 0x0, 0x200000, 0x300000
CS1, CSQ = 0xE00000, 0xE10000
ST0, ST1A, ST2, ST1B = 0xE40000, 0xE80000, 0xEC0000, 0xF00000
X0P = 0x4C00000
O1, X1A, X2, O2, X1B, P1, P2 = 0x1000000, 0x1400000, 0x1800000, 0x1C00000, 0x2000000, 0x2400000, 0x3800000
WQF_SZ, WOF_SZ, WFF_SZ = 8*14*18*1024, 8*5*18*1024, 8*12*36*3072
ST_SZ = 32*8*64*8
ENV = lambda n, d: int(os.environ.get(n, str(d)))
STAMP = ENV("STAMP", 0)
STAMP_BASE = 0x8000000

def f32(x):
    return "0x%08x" % struct.unpack("<I", struct.pack("<f", x))[0]

def srd(k, d, b, add, size):
    if add:
        k.e(f"s_add_u32 s{d}, s{b}, 0x{add:x}")
        k.e(f"s_addc_u32 s{d+1}, s{b+1}, 0")
    else:
        k.e(f"s_mov_b32 s{d}, s{b}")
        k.e(f"s_mov_b32 s{d+1}, s{b+1}")
    k.e(f"s_mov_b32 s{d+2}, 0x{size:x}")
    k.e(f"s_mov_b32 s{d+3}, 0x20000")

def stamp(k, i):
    if not STAMP: return
    k.e("s_waitcnt lgkmcnt(0)"); k.lg = []
    k.e(f"s_memtime s[84:85]")
    k.e(f"s_memrealtime s[86:87]")
    k.e("s_waitcnt lgkmcnt(0)")
    k.e(f"s_mov_b32 s{64+i}, s84"); k.e(f"s_mov_b32 s{74+i}, s86")
def stamp_begin(k):
    if not STAMP: return
    for i in range(1, 9):
        k.e(f"s_mov_b32 s{64+i}, 0"); k.e(f"s_mov_b32 s{74+i}, 0")
    stamp(k, 0)
def stamp_end(k, kidx):
    if not STAMP: return
    k.e("s_waitcnt vmcnt(0)")
    stamp(k, 8)
    k.e("s_load_dwordx2 s[88:89], s[0:1], 80")
    k.e("s_getreg_b32 s90, hwreg(HW_REG_XCC_ID)")
    k.e("s_waitcnt lgkmcnt(0)")
    k.e("s_mov_b64 exec, 1")
    k.e(f"s_add_u32 s88, s88, 0x{STAMP_BASE:x}"); k.e("s_addc_u32 s89, s89, 0")
    k.e(f"s_add_u32 s91, s2, {kidx*512}"); k.e("s_lshl_b32 s91, s91, 4")
    k.e("v_lshrrev_b32 v1, 6, v0"); k.e("v_add_u32 v1, s91, v1"); k.e("v_lshlrev_b32 v1, 7, v1")
    vals = [64+i for i in range(9)] + [90] + [74+i for i in range(9)] + [90]
    for j, sreg in enumerate(vals):
        k.e(f"v_mov_b32 v{2+j}, s{sreg}")
    for j in range(0, 20, 4):
        k.e(f"global_store_dwordx4 v1, v[{2+j}:{5+j}], s[88:89] offset:{4*j}")

KIDX = [0]
def header(k, name, nwg):
    k.lines.append(f".globl {name}\n.p2align 8\n.type {name},@function\n{name}:")
    k.e(f"s_cmp_ge_u32 s2, {nwg}")
    k.e(f"s_cbranch_scc1 L_{name}_exit")
    stamp_begin(k)
def footer(k, name):
    k.label(f"L_{name}_end")
    stamp_end(k, KIDX[0]); KIDX[0] += 1
    k.label(f"L_{name}_exit")
    k.e("s_endpgm")

def desc(name, vgpr, sgpr=96):
    acc = (vgpr + 3) // 4 * 4
    return f""".section .rodata,"a"
.p2align 6
.amdhsa_kernel {name}
  .amdhsa_next_free_vgpr {vgpr}
  .amdhsa_next_free_sgpr {sgpr}
  .amdhsa_accum_offset {acc}
  .amdhsa_group_segment_fixed_size 0
  .amdhsa_kernarg_size 88
  .amdhsa_user_sgpr_count 2
  .amdhsa_user_sgpr_kernarg_segment_ptr 1
  .amdhsa_system_sgpr_workgroup_id_x 1
  .amdhsa_float_denorm_mode_32 3
.end_amdhsa_kernel
.text
"""

def divmod_const(k, q, rem, x, d, nmax, stmp):
    m, sh = magic(d, nmax)
    k.e(f"s_mov_b32 s{stmp}, {m}")
    k.e(f"v_mul_u32_u24 v{q}, s{stmp}, v{x}")
    k.e(f"v_lshrrev_b32 v{q}, {sh}, v{q}")
    if rem is not None:
        if d <= 64:
            k.e(f"v_mul_u32_u24 v{rem}, {d}, v{q}")
        else:
            k.e(f"v_mul_u32_u24 v{rem}, 0x{d:x}, v{q}")
        k.e(f"v_sub_u32 v{rem}, v{x}, v{rem}")

def sdivmod(k, q, rem, x, d, nmax):
    m, sh = magic(d, nmax)
    k.e(f"s_mul_i32 s{q}, s{x}, {m}"); k.e(f"s_lshr_b32 s{q}, s{q}, {sh}")
    if rem is not None:
        k.e(f"s_mul_i32 s{rem}, s{q}, {d}"); k.e(f"s_sub_u32 s{rem}, s{x}, s{rem}")

MAP = dict(attn=ENV("SX_A", 4), wo=ENV("SX_B", 8), ffn=ENV("SX_C", 2))
def mapping(k, Sx, ss=15, sr_=16, sidx=12):
    R = 32 // Sx; ng = 8 // Sx
    lg = lambda x: x.bit_length() - 1
    k.e("s_and_b32 s10, s2, 7")
    k.e("s_lshr_b32 s11, s2, 3")
    k.e(f"s_and_b32 s{ss}, s10, {ng-1}")
    k.e(f"s_lshl_b32 s{ss}, s{ss}, {lg(Sx)}")
    k.e(f"s_and_b32 s13, s11, {Sx-1}")
    k.e(f"s_add_u32 s{ss}, s{ss}, s13")
    k.e(f"s_lshr_b32 s{sr_}, s10, {lg(ng)}")
    k.e(f"s_lshl_b32 s{sr_}, s{sr_}, {lg(R)}")
    k.e(f"s_lshr_b32 s{sidx}, s11, {lg(Sx)}")
    k.e(f"s_add_u32 s{sr_}, s{sr_}, s{sidx}")

def rot18(k, sidx, srot, R):
    if not ENV("ROT", 0):
        k.e(f"s_mov_b32 s{srot}, 0"); return
    if R <= 16:
        mult = {4: 4, 8: 2, 16: 1}[R]
        k.e(f"s_mul_i32 s{srot}, s{sidx}, {mult}")
    else:
        k.e(f"s_sub_u32 s{srot}, s{sidx}, 18"); k.e(f"s_cmp_ge_u32 s{sidx}, 18"); k.e(f"s_cselect_b32 s{srot}, s{srot}, s{sidx}")

def wave_lane(k, vlane, swave):
    k.e(f"v_lshrrev_b32 v{vlane}, 6, v0")
    k.e("s_nop 0")
    k.e(f"v_readfirstlane_b32 s{swave}, v{vlane}")
    k.e(f"v_and_b32 v{vlane}, 63, v0")

def touch(k, srd_, L, n_instr, swave_idx, nwaves, per_slab, slab_stride, sbase, nslab, t, dummy, gran=64):
    t0, t1, t2 = t[:3]
    nmax = 32 * nwaves * n_instr * 64
    k.e(f"s_lshr_b32 s58, s2, 3"); k.e(f"s_mul_i32 s58, s58, {nwaves}"); k.e(f"s_add_u32 s58, s58, s{swave_idx}"); k.e(f"s_mul_i32 s58, s58, {n_instr*64}")
    for j in range(n_instr):
        k.e(f"v_add_u32 v{t0}, s58, v{L}")
        if j: k.e(f"v_add_u32 v{t0}, {64*j}, v{t0}")
        m, sh = magic2(per_slab, nmax)
        k.e(f"s_mov_b32 s59, {m}"); k.e(f"v_mul_hi_u32 v{t1}, v{t0}, s59")
        if sh: k.e(f"v_lshrrev_b32 v{t1}, {sh}, v{t1}")
        k.e(f"s_mov_b32 s59, {per_slab}"); k.e(f"v_mul_u32_u24 v{t2}, s59, v{t1}"); k.e(f"v_sub_u32 v{t0}, v{t0}, v{t2}")
        k.e(f"s_mov_b32 s59, {slab_stride}"); k.e(f"v_mul_u32_u24 v{t2}, s59, v{t1}")
        k.e(f"v_lshl_add_u32 v{t0}, v{t0}, {gran.bit_length()-1}, v{t2}")
        k.e(f"v_cmp_gt_u32 vcc, {nslab}, v{t1}")
        k.e(f"v_mov_b32 v{t2}, 0x7ff00000")
        k.e("s_nop 0")
        k.e(f"v_cndmask_b32 v{t0}, v{t2}, v{t0}, vcc")
        k.vmem(f"buffer_load_dword v{dummy}, v{t0}, s[{srd_}:{srd_+3}], s{sbase} offen", "touch")

def magic2(d, nmax):
    for sh in range(0, 12):
        m = (1 << (32 + sh)) // d + 1
        if m >= (1 << 32): continue
        if all((x * m) >> (32 + sh) == x // d for x in range(0, nmax, 1)):
            return m, sh
    raise ValueError

def dma(k, m0expr, voff, srd_, soff, tag=None):
    for l in m0expr: k.e(l)
    k.e("s_nop 0")
    k.vmem(f"buffer_load_dwordx4 v{voff}, s[{srd_}:{srd_+3}], {soff} offen{os.environ.get('PLD', ' nt')} lds", tag)

CSQP = 0xEA0000
CSP = 0xE40000
FSH, GSH = 7, 10
FLG = 0xF00000
FLG_LAYER = 256 << GSH
F_A, F_B, F_C, F_D = 0, 32 << GSH, 64 << GSH, 160 << GSH
FLP = FLG + 2*FLG_LAYER
J_WQ, J_X0, J_WO, J_W1, J_W2, J_END = 0, 56, 120, 184, 328, 472

def gemm_loop(k, nks, order, acc, bbuf, aslot, bread, ks0, nm, after=None, pre=None, BD=1, atag=None, gate=None):
    atag = atag or (lambda ks: ("a", ks0 + ks))
    nb = BD + 1
    for d in range(min(BD, nks)):
        if gate: gate(d)
        for mi in range(nm): bread(d, mi, bbuf(d % nb, mi))
    if pre: pre()
    for ks in range(nks):
        late = gate is not None and ks + BD < nks and gate(ks + BD, True)
        if ks + BD < nks and not late:
            for mi in range(nm): bread(ks + BD, mi, bbuf((ks + BD) % nb, mi))
        k.wait(vm=[atag(ks)], lg=[("b", ks)])
        for (mi, t) in order:
            c = "0" if ks == 0 else vr(acc(mi, t), 4)
            k.e(f"v_mfma_f32_16x16x32_bf16 {vr(acc(mi,t),4)}, {vr(aslot(ks0+ks,t),4)}, {vr(bbuf(ks % nb,mi),4)}, {c}")
        if after: after(ks)
        if late:
            gate(ks + BD)
            for mi in range(nm): bread(ks + BD, mi, bbuf((ks + BD) % nb, mi))

FS = os.environ.get("FS", "")
CPA = ENV("CPA", 0)
GX = ENV("GX", 1)
GXC = ENV("GXC", 1)
assert ENV("ROT", 0) == 0
A_HL = 73728
A_QK = 92160
QP, QPL = 48, 3968
TSTR = 4 * QPL
A_VP = A_QK + 2*TSTR
VPP, VPL = 80, 6784
A_ST = A_VP + 4*VPL
A_PM, A_PH = A_QK, A_QK + 6144
B_XB = 73728
C_HB = 73728
C_CS = 155648
C_B1 = C_CS + 3072
A_CQ = C_B1 + 2048
C_ST = 147456
A_PQ = A_QK + 12288
C_PM = 98304
A_SCR = A_ST + 640
CNT = 163328
LDS_TOTAL = 163840
CA_ST, CA_DONE, CB_DONE, CC_ST, CC_W1, CC_H0, CC_DONE, CD_DONE, CC_K2, CD_GO, CA_GO, CA_W, CA_X, CC_X = 0, 1, 2, 3, 4, 5, 8, 11, 14, 16, 20, 15, 24, 28
S_CL, S_WL, S_EARLY = 60, 61, 57
WSZ = 0x5000000
SXC = MAP["ffn"]

S_W, S_LAY, S_XIN, S_O, S_X1, S_P, S_FL, S_R, S_S, S_RC, S_SC, S_IDX, S_CNT, S_ROT, S_ROT2 = 3, 22, 23, 24, 25, 26, 28, 29, 30, 31, 32, 33, 27, 34, 35
WS = "s[8:11]"
WSC = os.environ.get("WSC", " sc1")
WREL = ENV("WREL", 0)
WST = "" if WREL else " sc1"
FLQ = FLP + 65536
S_SLOT, S_JOB, S_LB = 56, 51, 50
CP_WQ = 27
CP_LD, CP_DONE = 64, 66
V_L, V_L16, V_G, V_M = 1, 2, 3, 4
AR, EX = 88, 160

def lds_signal(k, slot, vt, byclass=False):
    k.e(f"s_add_u32 s36, s{S_CNT}, {4*slot}")
    if byclass:
        k.e(f"s_lshl_b32 s37, s{S_CL}, 2"); k.e("s_add_u32 s36, s36, s37")
    k.e(f"v_mov_b32 v{vt}, s36"); k.e(f"v_mov_b32 v{vt+1}, 1")
    k.e("s_mov_b64 exec, 1")
    k.lds(f"ds_add_u32 v{vt}, v{vt+1}", "cnt")
    k.e("s_mov_b64 exec, -1")

def lds_wait(k, slot, n, vt, sleep=2, byclass=False):
    lab = k.newlabel("L_lw")
    k.e(f"s_add_u32 s36, s{S_CNT}, {4*slot}")
    if byclass:
        k.e(f"s_lshl_b32 s37, s{S_CL}, 2"); k.e("s_add_u32 s36, s36, s37")
    k.e(f"v_mov_b32 v{vt}, s36")
    k.label(lab)
    k.e(f"ds_read_b32 v{vt+1}, v{vt}")
    k.e("s_waitcnt lgkmcnt(0)"); k.lg = []
    k.e(f"v_readfirstlane_b32 s36, v{vt+1}")
    k.e("s_nop 3")
    k.e(f"s_cmp_ge_u32 s36, {n}"); k.e(f"s_cbranch_scc1 {lab}_ok")
    k.e(f"s_sleep {sleep}")
    k.e(f"s_branch {lab}")
    k.label(f"{lab}_ok")

def SC(name):
    return "" if name in os.environ.get("NOSC", "").split(",") else " sc1"
def publish(k, slot, n, fbase, s_r, s_s, vt, byclass=False, sc=" sc1", repl=False):
    lab = k.newlabel("L_pub")
    k.e(f"s_add_u32 s36, s{S_CNT}, {4*slot}")
    if s_r is not None:
        k.e(f"s_lshl_b32 s37, s{s_r}, {GSH}"); k.e(f"s_lshl_b32 s38, s{s_s}, {FSH}"); k.e("s_add_u32 s37, s37, s38")
        k.e(f"s_add_u32 s37, s37, s{S_FL}"); k.e(f"s_add_u32 s37, s37, {fbase}")
    else:
        k.e(f"s_lshl_b32 s37, s{s_s}, {FSH}"); k.e(f"s_add_u32 s37, s37, 0x{fbase:x}")
        k.e(f"s_lshl_b32 s38, s{S_SLOT}, 2"); k.e("s_add_u32 s36, s36, s38")
    if byclass:
        k.e(f"s_lshl_b32 s38, s{S_CL}, 2"); k.e("s_add_u32 s36, s36, s38")
        k.e(f"s_lshl_b32 s38, s{S_CL}, {GSH+5}"); k.e("s_add_u32 s37, s37, s38")
    k.e("s_waitcnt vmcnt(0)"); k.vm = []
    k.e(f"v_mov_b32 v{vt}, s36"); k.e(f"v_mov_b32 v{vt+1}, 1")
    k.e("s_mov_b64 exec, 1")
    k.e(f"ds_add_rtn_u32 v{vt}, v{vt}, v{vt+1}")
    k.e("s_waitcnt lgkmcnt(0)"); k.lg = []
    k.e(f"v_readfirstlane_b32 s36, v{vt}")
    if repl: k.e("s_mov_b64 exec, 0xff")
    k.e(f"v_mov_b32 v{vt}, s62"); k.e(f"v_mov_b32 v{vt+1}, s63"); k.e(f"v_lshlrev_b32 v{vt+2}, 13, v{V_L}")
    k.e("s_nop 0")
    k.e(f"s_cmp_lg_u32 s36, {n-1}"); k.e(f"s_cbranch_scc1 {lab}")
    k.e(f"buffer_store_dwordx2 {vr(vt,2)}, v{vt+2}, {WS}, s37 offen{sc}")
    k.label(lab)
    k.e("s_mov_b64 exec, -1")

def poll(k, voff, soff, mask, vt, slp=None):
    assert vt % 2 == 0
    lab = k.newlabel("L_aw")
    k.e(f"s_mov_b32 exec_lo, 0x{mask & 0xffffffff:x}"); k.e(f"s_mov_b32 exec_hi, 0x{mask >> 32:x}")
    k.e("s_mov_b32 s38, 0x20000")
    k.label(lab)
    k.e(f"v_mov_b32 v{vt}, 0"); k.e(f"v_mov_b32 v{vt+1}, 0")
    k.e(f"buffer_atomic_or_x2 {vr(vt,2)}, v{voff}, {WS}, s{soff} offen sc0 sc1")
    k.e("s_waitcnt vmcnt(0)"); k.vm = []
    k.e(f"v_cmp_ne_u64 vcc, s[62:63], {vr(vt,2)}")
    k.e("s_sub_u32 s38, s38, 1")
    k.e("s_nop 3")
    k.e(f"s_cbranch_vccz {lab}_ok")
    k.e("s_cmp_eq_u32 s38, 0"); k.e(f"s_cbranch_scc1 {lab}_ok")
    k.e(f"s_sleep {ENV('PSLEEP', 3) if slp is None else slp}")
    k.e(f"s_branch {lab}")
    k.label(f"{lab}_ok")
    k.e("s_mov_b64 exec, -1")

def await_flags(k, fbase, s_r, vt, own=None):
    lab = k.newlabel("L_af")
    k.e(f"s_cmp_lg_u32 s{S_W}, {ENV('POLLW', 0)}"); k.e(f"s_cbranch_scc1 {lab}")
    lds_wait(k, own[0], own[1], vt, 1)
    k.e(f"s_lshl_b32 s37, s{s_r}, {GSH}"); k.e(f"s_add_u32 s37, s37, s{S_FL}"); k.e(f"s_add_u32 s37, s37, {fbase}")
    k.e(f"v_lshlrev_b32 v{vt}, {FSH}, v{V_L}")
    sv = k.snapshot()
    poll(k, vt, 37, 0xff, vt+2)
    k.restore(sv)
    k.label(lab)
    k.e("s_barrier")

def stats_acc(k, r4, va, first, sones):
    for j in range(4):
        c0 = "0" if (first and j == 0) else f"v{va}"
        c1 = "0" if (first and j == 0) else f"v{va+1}"
        k.e(f"v_dot2_f32_bf16 v{va}, v{r4+j}, s{sones}, {c0}")
        k.e(f"v_dot2_f32_bf16 v{va+1}, v{r4+j}, v{r4+j}, {c1}")

def stats_combine(k, src, R, vt, dst, halo, NP=12):
    k.e(f"v_lshlrev_b32 v{vt}, 3, v{V_L}"); k.e(f"v_add_u32 v{vt+1}, {src}, v{vt}")
    for p in range(NP): k.e(f"ds_read_b64 {vr(R+2*p,2)}, v{vt+1} offset:{512*p}")
    k.e("s_waitcnt lgkmcnt(0)")
    n = NP
    while n > 1:
        h = n // 2
        for j in range(h):
            k.e(f"v_add_f32 v{R+2*j}, v{R+2*j}, v{R+2*(n-1-j)}"); k.e(f"v_add_f32 v{R+2*j+1}, v{R+2*j+1}, v{R+2*(n-1-j)+1}")
        n -= h
    if halo:
        for op in ("v_permlane32_swap_b32", "v_permlane16_swap_b32"):
            k.e(f"v_mov_b32 v{R+2}, v{R}"); k.e(f"v_mov_b32 v{R+3}, v{R+1}")
            k.e("s_nop 1")
            k.e(f"{op} v{R}, v{R+2}"); k.e(f"{op} v{R+1}, v{R+3}")
            k.e("s_nop 1")
            k.e(f"v_add_f32 v{R}, v{R}, v{R+2}"); k.e(f"v_add_f32 v{R+1}, v{R+1}, v{R+3}")
        k.e(f"v_lshlrev_b32 v{vt}, 3, v{V_M}")
    k.e(f"v_mul_f32 v{R}, {f32(1/576)}, v{R}")
    k.e(f"v_mul_f32 v{R+1}, {f32(1/576)}, v{R+1}")
    k.e(f"v_fma_f32 v{R+1}, -v{R}, v{R}, v{R+1}")
    k.e(f"v_max_f32 v{R+1}, 0, v{R+1}")
    k.e(f"v_add_f32 v{R+1}, {f32(1e-5)}, v{R+1}")
    k.e(f"v_rsq_f32 v{R+2}, v{R+1}")
    k.e(f"v_add_u32 v{vt}, {dst}, v{vt}")
    k.e(f"v_mul_f32 v{R+3}, v{R}, v{R+2}")
    k.e(f"v_sub_f32 v{R+3}, 0, v{R+3}")
    k.e(f"ds_write_b64 v{vt}, {vr(R+2,2)}")
    k.e("s_waitcnt lgkmcnt(0)")

A_TILES = [9, 11, 4, 6, 0, 2, 13, 8, 0, 0, 0, 0]
def a_tile_setup(k):
    tab = sum(t << (4*i) for i, t in enumerate(A_TILES))
    k.e(f"s_mov_b32 s40, 0x{tab & 0xffffffff:x}"); k.e(f"s_mov_b32 s41, 0x{tab >> 32:x}")
    k.e(f"s_lshl_b32 s42, s{S_W}, 2"); k.e("s_lshr_b64 s[40:41], s[40:41], s42"); k.e("s_and_b32 s40, s40, 15")
    k.e(f"s_mul_i32 s41, s{S_S}, 14"); k.e("s_add_u32 s41, s41, s40")
    k.e(f"s_mul_i32 s42, s{S_W}, {2*6912}"); k.e(f"s_mul_i32 s43, s{S_S}, 288"); k.e("s_add_u32 s42, s42, s43"); k.e(f"s_add_u32 s42, s42, 0x{CSQP:x}")
    k.e("s_mul_i32 s41, s41, %d" % (18*1024))
    if WQF: k.e(f"s_add_u32 s41, s41, 0x{WQF:x}")
DA = ENV("DA", 6)
def a_load1(k, i):
    k.e(f"s_add_u32 s43, s41, {i*1024}")
    k.vmem(f"buffer_load_dwordx4 {vr(AR+4*i,4)}, v{V_L16}, {WS}, s43 offen{WSC}", ("a", i))
def a_load2(k, i):
    k.e(f"s_add_u32 s43, s41, {i*1024}"); k.e(f"s_add_u32 s44, s41, {(18+i)*1024}")
    k.vmem(f"buffer_load_dwordx4 {vr(AR+8*(i%9),4)}, v{V_L16}, {WS}, s43 offen{WSC}", ("a0", i))
    k.vmem(f"buffer_load_dwordx4 {vr(AR+8*(i%9)+4,4)}, v{V_L16}, {WS}, s44 offen{WSC}", ("a", i))
def a_prefetch(k, lo1, hi1, lo2, hi2, cs):
    lab = k.newlabel("L_apf")
    sv = k.snapshot()
    if cs:
        k.e(f"s_cmp_lt_u32 s{S_W}, 9"); k.e("s_cselect_b32 s43, 0, 0x70000000"); k.e(f"s_cmp_eq_u32 s{S_LAY}, 0"); k.e("s_cselect_b32 s43, s43, 0x70000000")
        divmod_const(k, 6, None, V_L, 18, 64, 44)
        k.e(f"v_mul_u32_u24 v6, 0x{2304-288:x}, v6"); k.e(f"v_add_u32 v6, v6, v{V_L16}")
        k.e(f"v_or_b32 v6, s43, v6")
        k.e(f"s_add_u32 s43, s42, 6912")
        k.e(f"buffer_load_dwordx4 {vr(EX,4)}, v6, {WS}, s42 offen{WSC}")
        k.e(f"buffer_load_dwordx4 {vr(EX+4,4)}, v6, {WS}, s43 offen{WSC}")
    k.e(f"s_cmp_lt_u32 s{S_W}, 6"); k.e(f"s_cbranch_scc1 {lab}_d")
    k.e(f"s_cmp_ge_u32 s{S_W}, 8"); k.e(f"s_cbranch_scc1 {lab}_f")
    for i in range(lo1, hi1): a_load1(k, i)
    k.e(f"s_branch {lab}_e")
    k.label(f"{lab}_f")
    for i in range(lo1, min(hi1, 9)): b_load(k, i)
    k.e(f"s_branch {lab}_e")
    k.label(f"{lab}_d")
    for i in range(lo2, hi2): a_load2(k, i)
    k.label(f"{lab}_e")
    k.restore(sv)

def b_setup(k):
    k.e(f"s_min_u32 s59, s{S_W}, 9")
    k.e(f"s_cmp_ge_u32 s59, 5"); k.e("s_cselect_b32 s45, 1, 0"); k.e("s_mul_i32 s46, s45, 5"); k.e(f"s_sub_u32 s46, s59, s46")
    k.e(f"s_mul_i32 s58, s{S_S}, 5"); k.e("s_add_u32 s58, s58, s46"); k.e("s_mul_i32 s58, s58, %d" % (18*1024))
    k.e("s_mul_i32 s59, s45, 9216"); k.e("s_add_u32 s58, s58, s59"); k.e(f"s_add_u32 s58, s58, 0x{WOF:x}")
def b_load(k, i):
    if i and i % 4 == 0: k.e(f"s_add_u32 s58, s58, 4096")
    k.vmem(f"buffer_load_dwordx4 {vr(124+4*i,4)}, v{V_L16}, {WS}, s58 offen offset:{(i%4)*1024}{WSC}", ("wb", i))

def c_stream_init(k):
    k.e(f"s_mul_i32 s47, s{S_SC}, 12"); k.e(f"s_add_u32 s47, s47, s{S_W}"); k.e("s_mul_i32 s47, s47, %d" % (36*3072)); k.e(f"s_add_u32 s47, s47, 0x{WFF:x}")
    k.e(f"s_mul_i32 s48, s{S_ROT}, 3072"); k.e("s_add_u32 s48, s48, s47")
    k.e("s_add_u32 s49, s47, %d" % (18*3072))
def c_aload(k, i, tg="a"):
    if i >= 18 and (i - 18) % 6 == 0:
        k.e("s_mov_b32 s47, s49"); k.e(f"s_mul_i32 s48, s{S_ROT2}, 3072"); k.e("s_add_u32 s48, s48, s47"); k.e("s_add_u32 s49, s47, %d" % (6*3072))
    slot = i % 6
    for t in range(3):
        k.vmem(f"buffer_load_dwordx4 {vr(AR+12*slot+4*t,4)}, v{V_L16}, {WS}, s48 offen offset:{1024*t}{WSC}", (tg, i) if t == 2 else (tg + "_", i))
    k.e("s_add_u32 s48, s48, 3072"); k.e("s_cmp_eq_u32 s48, s49"); k.e("s_cselect_b32 s48, s47, s48")

def touch_w(k, swidx, nwaves, t, dummy):
    G = ENV("TGRAN", 128)
    total = SXC * 12 * 36 * 3072 // G
    ni = -(-total // (32 * nwaves * 64))
    ng = 8 // SXC
    k.e(f"s_and_b32 s36, s2, {ng-1}"); k.e(f"s_mul_i32 s36, s36, {SXC*12*36*3072}"); k.e(f"s_add_u32 s36, s36, 0x{WFF:x}")
    k.e("s_lshr_b32 s37, s2, 3"); k.e(f"s_mul_i32 s37, s37, {nwaves}"); k.e(f"s_add_u32 s37, s37, s{swidx}"); k.e(f"s_mul_i32 s37, s37, {ni*64}")
    k.e(f"s_mov_b32 s38, {total}")
    for j in range(ni):
        k.e(f"v_add_u32 v{t}, s37, v{V_L}")
        if j: k.e(f"v_add_u32 v{t}, {64*j}, v{t}")
        k.e(f"v_min_u32 v{t}, s38, v{t}")
        k.e(f"v_lshlrev_b32 v{t}, {G.bit_length()-1}, v{t}")
        k.vmem(f"buffer_load_dword v{dummy}, v{t}, {WS}, s36 offen", "touch")

def phase_A(k):
    k.c("================ phase A")
    ACC, BB = 8, 28
    VB1, VB2, VH = 5, 6, 7
    if FS in ("", "A"): stamp(k, 1)
    k.e(f"s_mul_i32 s39, s{S_R}, {TILEB}"); k.e(f"s_add_u32 s39, s39, s{S_XIN}")
    k.e(f"s_mul_i32 s36, s{S_W}, 6144"); k.e("s_add_u32 s37, s39, s36"); k.e("s_add_u32 s38, s37, 4096")
    k.vm = []
    for i in range(6):
        k.vmem(f"buffer_load_dwordx4 {vr(8+4*i,4)}, v{V_L16}, {WS}, s{37 if i < 4 else 38} offen offset:{(i%4)*1024} sc1", ("x", i))
    k.e(f"v_lshlrev_b32 v{VB1}, 10, v{V_G}"); k.e(f"v_lshl_add_u32 v{VB1}, v{V_M}, 4, v{VB1}")
    k.e(f"s_cmp_eq_u32 s{S_R}, 0"); k.e("s_cselect_b32 s38, 0x70000000, 0")
    k.e(f"v_add_u32 v{VH}, s38, v{VB1}")
    k.e(f"s_mul_i32 s50, s{S_CL}, 6"); k.e(f"s_add_u32 s50, s50, s{S_WL}")
    k.e("s_lshl_b32 s37, s50, 12"); k.e("s_add_u32 s37, s37, s39"); k.e(f"s_sub_u32 s37, s37, {TILEB-768}")
    k.vmem(f"buffer_load_dwordx4 {vr(32,4)}, v{VH}, {WS}, s37 offen sc1", ("x", 6))
    k.e(f"s_cmp_ge_u32 s{S_WL}, 2"); k.e("s_cselect_b32 s38, 0x70000000, 0"); k.e(f"v_or_b32 v{VB2}, s38, v{VH}")
    k.e(f"s_add_u32 s37, s37, {4*4096}")
    k.vmem(f"buffer_load_dwordx4 {vr(36,4)}, v{VB2}, {WS}, s37 offen sc1", ("x", 7))
    a_tile_setup(k)
    PA = 0
    E1, E2 = 18, 9
    b_setup(k)
    c_stream_init(k)
    k.e(f"s_cmp_lg_u32 s{S_LAY}, 0"); k.e("s_cbranch_scc1 L_A_np")
    k.e(f"s_cmp_lg_u32 s{S_W}, 9"); k.e("s_cbranch_scc1 L_A_np")
    k.e("s_and_b32 s37, s2, 7"); k.e("s_lshl_b32 s37, s37, 6"); k.e(f"s_add_u32 s37, s37, {(FLQ-FLP)//128}"); k.e(f"v_add_u32 v44, s37, v{V_L}")
    k.e(f"s_add_u32 s37, s{S_S}, {J_WO - 8*54}"); k.e(f"v_lshlrev_b32 v45, 3, v{V_L}"); k.e("v_add_u32 v45, s37, v45")
    k.e(f"v_cmp_gt_u32 vcc, 54, v{V_L}")
    k.e("s_nop 1")
    k.e("v_cndmask_b32 v44, v45, v44, vcc"); k.e("v_lshlrev_b32 v44, 7, v44")
    k.e(f"s_mov_b32 s37, 0x{FLP:x}")
    sv = k.snapshot()
    poll(k, 44, 37, (1 << 62) - 1, 46, ENV('PS2', 3))
    k.restore(sv)
    k.e("s_mov_b32 s57, s36")
    lds_signal(k, CP_WQ - 0, 44)
    k.e("s_mov_b32 s36, s57")
    k.lg = []
    k.label("L_A_np")
    k.e("s_mov_b32 s38, 0x3f803f80")
    k.e(f"v_add_u32 v{VB2}, s36, v{V_L16}")
    for i in range(8):
        k.e(f"s_waitcnt vmcnt({7-i})")
        if i < 6:
            k.e(f"ds_write_b128 v{VB2}, {vr(8+4*i,4)} offset:{1024*i}")
            stats_acc(k, 8+4*i, 40, i == 0, 38)
        else:
            if i == 6:
                k.e("s_lshl_b32 s37, s50, 10"); k.e(f"s_add_u32 s37, s37, {A_HL}"); k.e(f"v_add_u32 v{VB2}, s37, v{V_L16}")
                k.e(f"ds_write_b128 v{VB2}, {vr(8+4*i,4)}")
            stats_acc(k, 8+4*i, 42, i == 6, 38)
    def late(fn): fn()
    k.e(f"s_cmp_ge_u32 s{S_WL}, 2"); k.e("s_cbranch_scc1 L_A_xs")
    k.e(f"ds_write_b128 v{VB2}, {vr(36,4)} offset:4096")
    k.label("L_A_xs")
    k.e(f"s_lshl_b32 s37, s{S_W}, 9"); k.e(f"v_lshlrev_b32 v{VB2}, 3, v{V_L}"); k.e(f"v_add_u32 v{VB2}, s37, v{VB2}"); k.e(f"v_add_u32 v{VB2}, {A_PM}, v{VB2}")
    k.e(f"ds_write_b64 v{VB2}, v[40:41]"); k.e(f"ds_write_b64 v{VB2}, v[42:43] offset:6144")
    k.e("s_waitcnt lgkmcnt(0)")
    if FS in ("", "A"): stamp(k, 2)
    if GX:
        lds_signal(k, CA_X, 44, byclass=True)
        k.e("s_waitcnt lgkmcnt(0)")
    else:
        k.e("s_barrier")
    k.lg = []
    k.e(f"s_cmp_lg_u32 s{S_LAY}, 0"); k.e("s_cbranch_scc1 L_A_wqok")
    lds_wait(k, CP_WQ, 1, 44)
    k.label("L_A_wqok")
    def gateA(ks, query=False):
        if not GX or ks % 6: return False
        if query: return True
        lds_wait(k, CA_X + ks//6, 4, EX)
    if FS == "G": stamp(k, 2)
    k.e(f"s_cmp_ge_u32 s{S_W}, 8"); k.e("s_cbranch_scc1 L_A_free")
    k.e(f"v_add_u32 v{VB2}, 49152, v{VB1}")
    k.e(f"v_add_u32 v{VH}, {A_HL}, v{V_L16}")
    def mk_bread(mts):
        def bread(ks, mi, reg):
            mt = mts[mi]
            if mt == 0:
                k.lds(f"ds_read_b128 {vr(reg,4)}, v{VH} offset:{ks*1024}", ("b", ks))
            else:
                off = ks*4096 + (mt-1)*256; base = VB1
                if off >= 49152: off -= 49152; base = VB2
                k.lds(f"ds_read_b128 {vr(reg,4)}, v{base} offset:{off}", ("b", ks))
        return bread
    def epi_stats(mts, T):
        sa = T + 5; ST = T + 6
        if FS == "G": stamp(k, 4)
        lds_wait(k, CA_ST, 3, T)
        k.e(f"v_lshlrev_b32 v{sa}, 3, v{V_M}"); k.e(f"v_add_u32 v{sa}, {A_ST}, v{sa}")
        for mi, mt in enumerate(mts):
            k.lds(f"ds_read_b64 {vr(ST+2*mi,2)}, v{sa} offset:{mt*128}", "str")
    def epilogue(tadd, mts, accf, csr, vpath, T):
        a0, a1, p, H, t, sa = T, T+1, T+2, T+3, T+4, T+5
        ST = T + 6; U = T + 16
        k.e(f"v_lshlrev_b32 v{p}, 2, v{V_G}")
        k.e(f"s_add_u32 s36, s40, {tadd}"); k.e("s_lshl_b32 s36, s36, 4")
        k.e(f"v_add_u32 v{p}, s36, v{p}")
        k.e(f"s_mov_b32 s36, {A_CQ}"); k.e(f"v_lshl_add_u32 v{sa}, v{p}, 2, s36")
        k.lds(f"ds_read_b128 {vr(csr,4)}, v{sa}", "str")
        for a in (a0, a1):
            divmod_const(k, H, None, p, 18, 232, 36)
            if not vpath:
                k.e(f"s_movk_i32 s36, {QPL-36}")
                k.e(f"v_mul_u32_u24 v{a}, s36, v{H}")
                k.e(f"v_lshl_add_u32 v{a}, v{p}, 1, v{a}")
                k.e(f"v_mul_u32_u24 v{t}, {QP}, v{V_M}")
                k.e(f"s_mov_b32 s36, {A_QK}")
            else:
                k.e(f"s_movk_i32 s36, {VPL-72}")
                k.e(f"v_mul_u32_u24 v{a}, s36, v{H}")
                k.e(f"v_lshl_add_u32 v{a}, v{p}, 2, v{a}")
                k.e(f"v_mul_u32_u24 v{t}, 0x{VPP:x}, v{V_M}")
                k.e(f"s_mov_b32 s36, {A_VP - 8*VPL}")
            k.e(f"v_add3_u32 v{a}, v{a}, v{t}, s36")
            if a == a0: k.e(f"v_add_u32 v{p}, 2, v{p}")
        if vpath:
            k.e("s_mov_b32 s36, 0x05040100"); k.e("s_mov_b32 s37, 0x07060302")
        k.wait(lg=["str"])
        for mi, mt in enumerate(mts):
            r = accf(mi)
            for j in range(4):
                k.e(f"v_mul_f32 v{r+j}, v{r+j}, v{ST+2*mi}")
                k.e(f"v_fmac_f32 v{r+j}, v{ST+2*mi+1}, v{csr+j}")
            k.e(f"v_cvt_pk_bf16_f32 v{r}, v{r}, v{r+1}")
            k.e(f"v_cvt_pk_bf16_f32 v{r+1}, v{r+2}, v{r+3}")
            if not vpath:
                k.lds(f"ds_write_b32 v{a0}, v{r} offset:{mt*16*QP}", "qw")
                k.lds(f"ds_write_b32 v{a1}, v{r+1} offset:{mt*16*QP}", "qw")
        if vpath:
            for mi, mt in enumerate(mts):
                r = accf(mi); u = U + 4*(mi & 1)
                if mi:
                    rp = accf(mi-1)
                    k.e(f"v_mov_b32_dpp v{r+2}, v{rp} row_shl:14 row_mask:0xf bank_mask:0xf")
                    k.e(f"v_mov_b32_dpp v{r+3}, v{rp+1} row_shl:14 row_mask:0xf bank_mask:0xf")
                k.e(f"v_mov_b32_dpp v{r+2}, v{r} row_shr:2 row_mask:0xf bank_mask:0xf")
                k.e(f"v_mov_b32_dpp v{r+3}, v{r+1} row_shr:2 row_mask:0xf bank_mask:0xf")
                k.e(f"v_perm_b32 v{u}, v{r+2}, v{r}, s36"); k.e(f"v_perm_b32 v{u+1}, v{r+2}, v{r}, s37")
                k.e(f"v_perm_b32 v{u+2}, v{r+3}, v{r+1}, s36"); k.e(f"v_perm_b32 v{u+3}, v{r+3}, v{r+1}, s37")
                k.lds(f"ds_write_b64 v{a0}, {vr(u,2)} offset:{mt*16*VPP}", "qw")
                k.lds(f"ds_write_b64 v{a1}, {vr(u+2,2)} offset:{mt*16*VPP}", "qw")
    def pair_path(mts, accb, bb, bstride, BD):
        nm = len(mts)
        k.lg = []
        k.vm = []
        DA2 = ENV("DA2", 5)
        st = dict(c=0, b=0, n=PA//2)
        def ld(i):
            if i < E2: late(lambda: a_load2(k, i))
            else: a_load2(k, i)
        def pre():
            while st["n"] < DA2: ld(st["n"]); st["n"] += 1
        def after(ks):
            if FS == "G" and ks == 8: stamp(k, 3)
            while st["n"] < 18 and st["n"] <= ks + (DA2 if st["n"] < E2 else max(DA2, E2)):
                ld(st["n"]); st["n"] += 1
            if ks >= 9:
                free = 8*(ks - 8)
                while st["c"] < CPA and 12*(st["c"]+1) <= free:
                    c_aload(k, st["c"], "c"); st["c"] += 1
                while st["b"] < 9 and 36 + 4*(st["b"]+1) <= free:
                    b_load(k, st["b"]); st["b"] += 1
        pre()
        gemm_loop(k, 18, [(mi, t) for mi in range(nm) for t in range(2)], lambda mi, t: accb + 4*nm*t + 4*mi, lambda par, mi: bb + bstride*par + 4*mi,
                  lambda i_, t: AR + 8*(i_ % 9) + 4*t, mk_bread(mts), 0, nm, after, None, BD=BD, gate=gateA)
        epi_stats(mts, bb)
    m5 = [0, 1, 2, 3, 4]; m4 = [1, 2, 3, 4]
    k.e(f"s_cmp_ge_u32 s{S_W}, 6"); k.e("s_cbranch_scc1 L_A_single")
    k.e(f"s_cmp_ge_u32 s{S_W}, 4"); k.e("s_cbranch_scc1 L_A_qpair")
    pair_path(m5, 8, 48, 20, 1)
    sv = k.snapshot()
    k.e(f"s_cmp_lt_u32 s{S_W}, 2"); k.e("s_cbranch_scc1 L_A_vpair")
    epilogue(0, m5, lambda mi: 8 + 4*mi, EX, False, 48)
    epilogue(1, m5, lambda mi: 28 + 4*mi, EX+4, False, 48)
    k.e("s_branch L_A_att")
    k.label("L_A_vpair")
    k.restore(sv)
    epilogue(0, m5, lambda mi: 8 + 4*mi, EX, True, 48)
    epilogue(1, m5, lambda mi: 28 + 4*mi, EX+4, True, 48)
    k.e("s_branch L_A_att")
    k.label("L_A_qpair")
    pair_path(m4, 8, 40, 16, 2)
    epilogue(0, m4, lambda mi: 8 + 4*mi, EX, False, 40)
    epilogue(1, m4, lambda mi: 24 + 4*mi, EX+4, False, 40)
    k.e("s_branch L_A_att")
    k.label("L_A_single")
    k.lg = []
    k.vm = []
    def ld1(i):
        if i < E1: late(lambda: a_load1(k, i))
        else: a_load1(k, i)
    def pre1():
        for i in range(PA, DA): ld1(i)
    def after1(ks):
        if ks + DA < 18: ld1(ks + DA)
        if ks in (9, 11, 13) and (ks - 9)//2 < CPA: c_aload(k, (ks - 9)//2, "c")
        if ks >= 9: b_load(k, ks - 9)
    pre1()
    gemm_loop(k, 18, [(mi, 0) for mi in range(5)], lambda mi, t: ACC + 4*mi, lambda par, mi: BB + 20*par + 4*mi,
              lambda i_, t: AR + 4*i_, mk_bread(m5), 0, 5, after1, None, BD=2, gate=gateA)
    epi_stats(m5, 28)
    sv = k.snapshot()
    k.e("s_cmp_ge_u32 s40, 9"); k.e("s_cbranch_scc1 L_A_vp")
    epilogue(0, m5, lambda mi: ACC + 4*mi, EX, False, 28)
    k.e("s_branch L_A_att")
    k.label("L_A_vp")
    k.restore(sv)
    k.e("s_mov_b32 exec_hi, 0")
    k.e("s_nop 4")
    epilogue(0, m5, lambda mi: ACC + 4*mi, EX, True, 28)
    k.e("s_mov_b64 exec, -1")
    k.e("s_branch L_A_att")
    k.label("L_A_free")
    k.e(f"s_cmp_eq_u32 s{S_W}, 9"); k.e("s_cbranch_scc1 L_A_fr2")
    if GX:
        for c in range(3): lds_wait(k, CA_X + c, 4, 8)
    k.e(f"s_cmp_eq_u32 s{S_W}, 8"); k.e("s_cbranch_scc1 L_A_combq")
    k.e(f"s_cmp_eq_u32 s{S_W}, 11"); k.e("s_cbranch_scc1 L_A_combh")
    stats_combine(k, A_PM, 8, VB2, A_ST + 128, False)
    k.e("s_branch L_A_combd")
    k.label("L_A_combh")
    stats_combine(k, A_PH, 8, VB2, A_ST, True)
    k.e("s_branch L_A_combd")
    k.label("L_A_combq")
    k.e(f"s_cmp_lg_u32 s{S_LAY}, 0"); k.e("s_cbranch_scc1 L_A_combd")
    divmod_const(k, 6, None, V_L, 18, 64, 44)
    k.e(f"v_mul_u32_u24 v6, 0x{2304-288:x}, v6"); k.e(f"v_add_u32 v6, v6, v{V_L16}")
    k.e(f"s_mul_i32 s42, s{S_S}, 288"); k.e(f"s_add_u32 s42, s42, 0x{CSQP:x}")
    for p in range(18):
        k.e(f"buffer_load_dwordx4 {vr(8+4*p,4)}, v6, {WS}, s42 offen{WSC}")
        if p < 17: k.e("s_add_u32 s42, s42, 6912")
    k.e(f"v_add_u32 v{VB2}, {A_CQ}, v{V_L16}")
    k.e("s_waitcnt vmcnt(0)")
    for p in range(1, 18):
        for j in range(4): k.e(f"v_add_f32 v{8+j}, v{8+j}, v{8+4*p+j}")
    k.e(f"ds_write_b128 v{VB2}, v[8:11]")
    k.e("s_waitcnt lgkmcnt(0)")
    k.label("L_A_combd")
    lds_signal(k, CA_ST, 8)
    k.e("s_waitcnt lgkmcnt(0)"); k.lg = []
    k.e("s_branch L_A_att")
    k.label("L_A_fr2")
    k.e(f"s_cmp_lg_u32 s{S_LAY}, 0"); k.e("s_cbranch_scc1 L_A_att")
    for c in range(3): lds_wait(k, CA_X + c, 4, 8)
    if WREL:
        k.e("s_cmp_lt_u32 s2, 104"); k.e("s_cbranch_scc1 L_A_norel")
        k.e("buffer_wbl2 sc1")
        k.e("s_waitcnt vmcnt(0)")
        k.e("s_cmp_lt_u32 s2, 120"); k.e("s_cselect_b32 exec_lo, 1, 3"); k.e("s_mov_b32 exec_hi, 0")
        k.e(f"v_mul_u32_u24 v10, 0x{152*8:x}, v{V_L}"); k.e("s_add_u32 s36, s2, 216"); k.e("s_lshl_b32 s36, s36, 3"); k.e("v_sub_u32 v10, s36, v10")
        k.e("v_mov_b32 v8, s62"); k.e("v_mov_b32 v9, s63"); k.e(f"s_mov_b32 s37, 0x{FLP:x}")
        k.e(f"buffer_store_dwordx2 v[8:9], v10, {WS}, s37 offen sc1")
        k.e("s_mov_b64 exec, -1")
        k.label("L_A_norel")
    k.e(f"s_lshl_b32 s37, s{S_SC}, 7"); k.e(f"s_add_u32 s37, s37, 0x{FLP + 128*J_W1:x}")
    k.e(f"v_lshlrev_b32 v8, 10, v{V_L}")
    poll(k, 8, 37, (1 << 36) - 1, 10, ENV('PS3', 24))
    k.label("L_A_att")
    k.vm = []; k.lg = []
    k.e("s_waitcnt lgkmcnt(0)")
    if FS in ("", "A"): stamp(k, 3)
    if FS == "G": stamp(k, 5)
    k.e("s_barrier")
    if FS == "A": stamp(k, 4)
    if FS == "G": stamp(k, 6)
    k.e(f"s_cmp_ge_u32 s{S_W}, 8"); k.e("s_cbranch_scc1 L_A_cs")
    VI, VHH, VQ, VK, VV = 5, 6, 7, 86, 87
    Q, KK, VP_, OA, PP, T0 = 8, 20, 20, 68, EX, EX+4
    att_start = len(k.lines)
    VHD = EX+6
    k.e(f"s_lshl_b32 s41, s{S_W}, 3")
    k.e(f"v_and_b32 v{VI}, 7, v{V_L}"); k.e(f"v_add_u32 v{VI}, s41, v{VI}")
    k.e(f"v_lshrrev_b32 v{VHH}, 5, v{V_L}")
    k.e(f"v_bfe_u32 v{VHD}, v{V_L}, 3, 2")
    k.e(f"v_mul_u32_u24 v{VQ}, {QP}, v{VI}")
    k.e(f"v_mul_u32_u24 v{VK}, 0x{QPL:x}, v{VHD}")
    k.e(f"s_mov_b32 s36, {A_QK + 16*QP}")
    k.e(f"v_add3_u32 v{VQ}, v{VQ}, v{VK}, s36")
    k.e(f"v_mul_u32_u24 v{VK}, 0x{8*QP:x}, v{VHH}"); k.e(f"v_sub_u32 v{VK}, v{VQ}, v{VK}")
    k.e(f"v_lshlrev_b32 v{T0}, 3, v{VHH}"); k.e(f"v_sub_u32 v{T0}, v{VI}, v{T0}")
    k.e(f"v_add_u32 v{VV}, 12, v{T0}"); k.e(f"v_mul_u32_u24 v{VV}, 0x{VPP:x}, v{VV}")
    k.e(f"v_mul_u32_u24 v{T0+1}, 0x{VPL:x}, v{VHD}"); k.e(f"s_mov_b32 s36, {A_VP}"); k.e(f"v_add3_u32 v{VV}, v{VV}, v{T0+1}, s36")
    def rdvec(reg, va, off, tag):
        k.lds(f"ds_read_b128 {vr(reg,4)}, v{va} offset:{off}", tag)
        k.lds(f"ds_read_b128 {vr(reg+4,4)}, v{va} offset:{off+16}", tag)
        k.lds(f"ds_read_b128 {vr(reg+8,4)}, v{va} offset:{off+32}", tag)
    rdvec(Q, VQ, 0, "q")
    for j in range(4): rdvec(KK + 12*j, VK, TSTR - 2*j*QP, ("k", j))
    k.e(f"s_lshl_b32 s36, s{S_R}, 6"); k.e(f"v_add_u32 v{T0}, s36, v{T0}")
    for j in range(4):
        k.e(f"v_cmp_le_i32 s[{50+2*j}:{51+2*j}], {2*j}, v{T0}")
    k.wait(lg=["q", ("k", 1)])
    for jj in range(9):
        for j in range(2):
            c = "0" if jj == 0 else f"v{PP+j}"
            k.e(f"v_dot2_f32_bf16 v{PP+j}, v{Q+jj}, v{KK+12*j+jj}, {c}")
    def rdvp(pr):
        off = (4*VPP if pr == 0 else 0)
        for q4 in range(5):
            k.lds(f"ds_read_b128 {vr(VP_+24*pr+4*q4,4)}, v{VV} offset:{off+16*q4}", ("v", pr))
    rdvp(0)
    k.wait(lg=[("k", 3)])
    for jj in range(9):
        for j in range(2, 4):
            c = "0" if jj == 0 else f"v{PP+j}"
            k.e(f"v_dot2_f32_bf16 v{PP+j}, v{Q+jj}, v{KK+12*j+jj}, {c}")
    rdvp(1)
    sc = (18 ** -0.5) * math.log2(math.e)
    k.e(f"v_mov_b32 v{T0}, {f32(-1e30)}")
    k.e("s_nop 1")
    for j in range(4): k.e(f"v_mul_f32 v{PP+j}, {f32(sc)}, v{PP+j}")
    for j in range(4): k.e(f"v_cndmask_b32 v{PP+j}, v{T0}, v{PP+j}, s[{50+2*j}:{51+2*j}]")
    k.e(f"v_max3_f32 v{T0}, v{PP}, v{PP+1}, v{PP+2}")
    k.e(f"v_max_f32 v{T0}, v{T0}, v{PP+3}")
    k.e(f"v_mov_b32 v{T0+1}, v{T0}")
    k.e("s_nop 1")
    k.e(f"v_permlane32_swap_b32 v{T0}, v{T0+1}")
    k.e("s_nop 1")
    k.e(f"v_max_f32 v{T0}, v{T0}, v{T0+1}")
    for j in range(4): k.e(f"v_sub_f32 v{PP+j}, v{PP+j}, v{T0}")
    for j in range(4): k.e(f"v_exp_f32 v{PP+j}, v{PP+j}")
    k.e("s_nop 0")
    k.e(f"v_cvt_pk_bf16_f32 v{PP}, v{PP}, v{PP+1}")
    k.e(f"v_cvt_pk_bf16_f32 v{PP+2}, v{PP+2}, v{PP+3}")
    k.e("s_mov_b32 s36, 0x3f803f80")
    k.e(f"v_dot2_f32_bf16 v{T0}, v{PP}, s36, 0")
    k.e(f"v_dot2_f32_bf16 v{T0}, v{PP+2}, s36, v{T0}")
    k.wait(lg=[("v", 0)])
    for d in range(18): k.e(f"v_dot2_f32_bf16 v{OA+d}, v{VP_+d}, v{PP}, 0")
    k.e(f"v_mov_b32 v{T0+1}, v{T0}")
    k.wait(lg=[("v", 1)])
    for d in range(18): k.e(f"v_dot2_f32_bf16 v{OA+d}, v{VP_+24+d}, v{PP+2}, v{OA+d}")
    k.e(f"v_permlane32_swap_b32 v{T0}, v{T0+1}")
    k.e("s_nop 1")
    k.e(f"v_add_f32 v{T0}, v{T0}, v{T0+1}")
    k.e(f"v_rcp_f32 v{T0}, v{T0}")
    pairs = [(d, d+8) for d in range(8)] + [(16, 17)]
    for a, b_ in pairs: k.e(f"v_permlane32_swap_b32 v{OA+a}, v{OA+b_}")
    k.e("s_nop 1")
    for a, b_ in pairs: k.e(f"v_add_f32 v{OA+a}, v{OA+a}, v{OA+b_}")
    for a, b_ in pairs: k.e(f"v_mul_f32 v{OA+a}, v{OA+a}, v{T0}")
    k.e(f"v_cvt_pk_bf16_f32 v{Q+4}, v{OA+16}, v{OA+16}")
    k.e(f"v_lshlrev_b32 v{VI}, 4, v{VI}")
    k.e(f"v_lshl_add_u32 v{VHD}, v{VHD}, 1, v{VHH}")
    k.e(f"v_lshl_add_u32 v{VK}, v{VHD}, 1, v{VI}"); k.e(f"v_add_u32 v{VK}, {A_SCR}, v{VK}")
    k.e(f"ds_write_b16 v{VK}, v{Q+4}")
    k.e(f"v_add_u32 v{VV}, {A_SCR}, v{VI}")
    for j in range(4): k.e(f"v_cvt_pk_bf16_f32 v{Q+j}, v{OA+2*j}, v{OA+2*j+1}")
    k.e("s_waitcnt lgkmcnt(0)")
    k.e(f"ds_read_b128 {vr(Q+4,4)}, v{VV}")
    k.e(f"v_lshl_add_u32 v{VQ}, v{VHD}, 10, v{VI}")
    k.e(f"s_mul_i32 s36, s{S_S}, 9216"); k.e(f"s_mul_i32 s37, s{S_R}, {TILEB}"); k.e("s_add_u32 s36, s36, s37"); k.e(f"s_add_u32 s36, s36, s{S_O}")
    k.e("s_add_u32 s38, s36, 8192")
    if FS == "A": stamp(k, 5)
    k.e(f"buffer_store_dwordx4 {vr(Q,4)}, v{VQ}, {WS}, s36 offen{SC('o')}")
    k.e("s_mov_b64 exec, 0xff")
    k.e("s_waitcnt lgkmcnt(0)")
    k.e(f"buffer_store_dwordx4 {vr(Q+4,4)}, v{VI}, {WS}, s38 offen{SC('o')}")
    k.e("s_mov_b64 exec, -1")
    publish(k, CA_DONE, 8, F_A, S_R, S_S, 20, sc=SC('o'))
    if FS == "A": stamp(k, 6)
    k.e("s_branch L_A_end")
    k.label("L_A_cs")
    k.e(f"s_cmp_ge_u32 s{S_W}, 10"); k.e("s_cbranch_scc1 L_A_nb")
    for i in range(PA, 9): b_load(k, i)
    k.label("L_A_nb")
    for i in range(CPA): c_aload(k, i, "c")
    k.vm = []
    k.e(f"s_cmp_lg_u32 s{S_LAY}, 0"); k.e("s_cbranch_scc1 L_A_end")
    k.e(f"s_cmp_eq_u32 s{S_WL}, 3"); k.e("s_cbranch_scc1 L_A_b1")
    k.e(f"s_mul_i32 s36, s{S_SC}, 2304"); k.e(f"s_lshl_b32 s37, s{S_WL}, 10"); k.e("s_add_u32 s36, s36, s37"); k.e(f"s_add_u32 s36, s36, 0x{CSP:x}")
    for i in range(18):
        k.e(f"buffer_load_dwordx4 {vr(8+4*i,4)}, v{V_L16}, {WS}, s36 offen{WSC}")
        if i < 17: k.e(f"s_add_u32 s36, s36, {4608*4}")
    k.e(f"s_add_u32 s37, s37, {C_CS}"); k.e(f"v_add_u32 v5, s37, v{V_L16}")
    k.e("s_waitcnt vmcnt(0)")
    for i in range(17):
        for j in range(4): k.e(f"v_add_f32 v{76+j}, v{76+j}, v{8+4*i+j}")
    k.e("ds_write_b128 v5, v[76:79]")
    k.e("s_waitcnt lgkmcnt(0)")
    k.e("s_branch L_A_end")
    k.label("L_A_b1")
    k.e(f"s_mul_i32 s38, s{S_SC}, 1152"); k.e(f"s_mov_b32 m0, {C_B1}"); k.e("s_nop 0")
    k.e(f"buffer_load_dwordx4 v{V_L16}, s[12:15], s38 offen lds")
    k.e(f"buffer_load_dwordx4 v{V_L16}, s[12:15], s38 offen offset:1024 lds")
    k.e("s_waitcnt vmcnt(0)")
    k.label("L_A_end")

def phase_B(k):
    k.c("================ phase B")
    VB1, VB2, VR_ = 5, 6, 7
    ACC, BB, RX, WB = 8, 24, 72, 124
    k.vm = []; k.lg = []
    k.e(f"s_mul_i32 s39, s{S_R}, {TILEB}")
    k.e(f"s_cmp_ge_u32 s{S_W}, 5"); k.e("s_cselect_b32 s45, 1, 0"); k.e("s_mul_i32 s46, s45, 5"); k.e(f"s_sub_u32 s46, s{S_W}, s46")
    k.e(f"v_lshrrev_b32 v{VR_}, 1, v{V_G}"); k.e(f"v_lshlrev_b32 v{VR_}, 10, v{VR_}")
    k.e(f"v_and_b32 v{VB2}, 31, v{V_L}"); k.e(f"v_lshl_add_u32 v{VR_}, v{VB2}, 4, v{VR_}")
    k.e(f"s_mul_i32 s40, s{S_S}, 9216"); k.e("s_add_u32 s40, s40, s39"); k.e("s_lshl_b32 s41, s46, 11"); k.e("s_add_u32 s40, s40, s41")
    k.e("s_lshl_b32 s41, s45, 9"); k.e("s_add_u32 s40, s40, s41")
    k.e("s_cmp_eq_u32 s46, 4"); k.e("s_cselect_b32 s41, 2, 4"); k.e("s_cmp_gt_u32 s46, 4"); k.e("s_cselect_b32 s41, 0, s41")
    k.e(f"v_cmp_gt_u32 vcc, s41, v{V_G}")
    k.e(f"v_mov_b32 v{VB2}, 0x70000000")
    k.e(f"s_add_u32 s41, s40, s{S_XIN}")
    k.e(f"v_cndmask_b32 v{VR_}, v{VB2}, v{VR_}, vcc")
    k.vmem(f"buffer_load_dwordx4 {vr(RX,4)}, v{VR_}, {WS}, s41 offen sc1", "r")
    NP1 = 3
    await_flags(k, F_A, S_R, 8, (CA_DONE, 8))
    if FS in ("", "A", "B"): stamp(k, {"A": 7, "B": 1}.get(FS, 4))
    k.e(f"s_mul_i32 s36, s{S_W}, 6144"); k.e("s_add_u32 s37, s39, s36"); k.e(f"s_add_u32 s37, s37, s{S_O}")
    for i in range(6):
        if i % 4 == 0:
            k.e(f"s_add_u32 m0, s36, {1024*i}")
            k.e("s_nop 0") if i == 0 else k.e("s_add_u32 s37, s37, 4096")
        k.vmem(f"buffer_load_dwordx4 v{V_L16}, {WS}, s37 offen offset:{(i%4)*1024} sc1 lds", "o")
    k.e(f"v_lshlrev_b32 v{VB1}, 10, v{V_G}"); k.e(f"v_lshl_add_u32 v{VB1}, v{V_M}, 4, v{VB1}")
    k.e("s_mul_i32 s41, s45, %d" % (9*4096)); k.e(f"v_add_u32 v{VB1}, s41, v{VB1}")
    k.e("s_lshl_b32 s41, s45, 9"); k.e("s_xor_b32 s42, s41, 512")
    k.e(f"v_add_u32 v{VB2}, s42, v{VB1}"); k.e(f"v_add_u32 v{VB1}, s41, v{VB1}")
    k.wait(vm0=True)
    if FS == "B": stamp(k, 2)
    k.e("s_barrier")
    if FS == "B": stamp(k, 3)
    vm_keep = list(k.vm)
    k.e(f"s_cmp_ge_u32 s{S_W}, 10"); k.e("s_cbranch_scc1 L_B_idle")
    def bread(ks, mi, reg):
        k.lds(f"ds_read_b128 {vr(reg,4)}, v{VB1 if mi < 2 else VB2} offset:{ks*4096 + (mi&1)*256}", ("b", ks))
    def afterB(ks):
        if ks % 2 == 0 and CPA + ks // 2 < 3: c_aload(k, CPA + ks // 2, "c")
    gemm_loop(k, 9, [(2, 0), (3, 0), (0, 0), (1, 0)], lambda mi, t: ACC + 4*mi, lambda par, mi: BB + 16*par + 4*mi, lambda i_, t: WB + 4*i_,
              bread, 0, 4, afterB, None, BD=2, atag=lambda ks: "none")
    k.e(f"s_lshl_b32 s41, s{S_W}, 11"); k.e(f"s_add_u32 s41, s41, {B_XB}"); k.e(f"v_add_u32 v{VB1}, s41, v{V_L16}")
    k.e(f"s_add_u32 s42, s{S_W}, 5"); k.e(f"s_sub_u32 s43, s{S_W}, 5"); k.e(f"s_cmp_ge_u32 s{S_W}, 5"); k.e("s_cselect_b32 s42, s43, s42")
    k.e("s_lshl_b32 s42, s42, 11"); k.e(f"s_add_u32 s42, s42, {B_XB}"); k.e(f"v_add_u32 v{VB2}, s42, v{V_L16}")
    k.e("s_nop 0")
    if FS == "B": stamp(k, 4)
    k.e(f"ds_write_b128 v{VB1}, {vr(ACC+8,4)}"); k.e(f"ds_write_b128 v{VB1}, {vr(ACC+12,4)} offset:1024")
    k.e("s_waitcnt lgkmcnt(0)")
    k.e("s_barrier")
    k.e(f"ds_read_b128 {vr(ACC+8,4)}, v{VB2}"); k.e(f"ds_read_b128 {vr(ACC+12,4)}, v{VB2} offset:1024")
    k.e(f"s_add_u32 s41, s40, s{S_X1}")
    k.e("s_waitcnt lgkmcnt(0)")
    for j in range(8): k.e(f"v_add_f32 v{ACC+j}, v{ACC+j}, v{ACC+8+j}")
    k.e("s_nop 1")
    for j in range(4): k.e(f"v_permlane16_swap_b32 v{ACC+j}, v{ACC+4+j}")
    k.e("s_nop 1")
    for j in range(4):
        k.e(f"v_lshlrev_b32 v{BB}, 16, v{RX+j}"); k.e(f"v_and_b32 v{BB+1}, 0xffff0000, v{RX+j}")
        k.e(f"v_add_f32 v{ACC+2*j}, v{ACC+2*j}, v{BB}"); k.e(f"v_add_f32 v{ACC+2*j+1}, v{ACC+2*j+1}, v{BB+1}")
        k.e(f"v_cvt_pk_bf16_f32 v{RX+j}, v{ACC+2*j}, v{ACC+2*j+1}")
    if FS == "B": stamp(k, 5)
    k.e(f"buffer_store_dwordx4 {vr(RX,4)}, v{VR_}, {WS}, s41 offen sc1")
    publish(k, CB_DONE, 10, F_B, S_R, S_S, 24)
    if FS == "B": stamp(k, 6)
    k.e("s_branch L_B_end")
    k.label("L_B_idle")
    for i in range(CPA, 3): c_aload(k, i, "c")
    k.e("s_barrier")
    k.label("L_B_end")
    k.vm = vm_keep; k.lg = []
    NP2 = ENV("NP2", 3)
    for i in range(NP1, NP2): c_aload(k, i)
    return NP2

def phase_C(k, npre):
    k.c("================ phase C")
    VB1, VB2, VT = 5, 6, 7
    ACC, BB = 8, 56
    D = 6
    k.e(f"s_mul_i32 s39, s{S_RC}, {TILEB}")
    await_flags(k, F_B, S_RC, 8, (CB_DONE, 10))
    if FS in ("", "B", "C"): stamp(k, {"B": 7, "C": 1}.get(FS, 5))
    k.e(f"s_mul_i32 s36, s{S_W}, 6144"); k.e("s_add_u32 s37, s36, s39"); k.e(f"s_add_u32 s37, s37, s{S_X1}")
    for i in range(6):
        if i and i % 4 == 0: k.e("s_add_u32 s37, s37, 4096")
        k.e(f"buffer_load_dwordx4 {vr(8+4*i,4)}, v{V_L16}, {WS}, s37 offen offset:{(i%4)*1024} sc1")
    k.e(f"s_lshl_b32 s37, s{S_ROT}, 12"); k.e("s_sub_u32 s36, s36, s37"); k.e(f"s_add_u32 s36, s36, {TILEB}")
    k.e("s_mov_b32 s38, 0x3f803f80")
    for i in range(6):
        k.e(f"s_sub_u32 s37, s36, {TILEB}"); k.e(f"s_cmp_ge_u32 s36, {TILEB}"); k.e("s_cselect_b32 s36, s37, s36")
        k.e(f"v_add_u32 v{VB2}, s36, v{V_L16}")
        k.e(f"s_waitcnt vmcnt({5-i})")
        k.e(f"ds_write_b128 v{VB2}, {vr(8+4*i,4)}")
        stats_acc(k, 8+4*i, 44, i == 0, 38)
        k.e("s_add_u32 s36, s36, 1024")
    k.e(f"s_lshl_b32 s37, s{S_W}, 9"); k.e(f"v_lshlrev_b32 v{VB2}, 3, v{V_L}"); k.e(f"v_add_u32 v{VB2}, s37, v{VB2}"); k.e(f"v_add_u32 v{VB2}, {C_PM}, v{VB2}")
    k.e(f"ds_write_b64 v{VB2}, v[44:45]")
    k.label("L_C_s4")
    k.vm = []
    k.e(f"v_lshlrev_b32 v{VB1}, 10, v{V_G}"); k.e(f"v_lshl_add_u32 v{VB1}, v{V_M}, 4, v{VB1}")
    k.e("s_waitcnt lgkmcnt(0)")
    if GXC:
        lds_signal(k, CC_X, 46, byclass=True)
        k.e("s_waitcnt lgkmcnt(0)")
    else:
        k.e("s_barrier")
    if FS in ("", "C"): stamp(k, {"C": 2}.get(FS, 6))
    k.lg = []
    def gate1(ks, query=False):
        if not GXC or ks % 6: return False
        if query: return True
        lds_wait(k, CC_X + ks//6, 4, EX)
    k.e(f"s_cmp_lg_u32 s{S_W}, 11"); k.e("s_cbranch_scc1 L_C_nocomb")
    if GXC:
        for c in range(3): lds_wait(k, CC_X + c, 4, 8)
    stats_combine(k, C_PM, 8, VB2, C_ST, False, 12)
    lds_signal(k, CC_ST, 8)
    k.e("s_waitcnt lgkmcnt(0)"); k.lg = []
    k.label("L_C_nocomb")
    k.e(f"v_add_u32 v{VB2}, 49152, v{VB1}")
    def bread1(ks, mi, reg):
        off = ks*4096 + mi*256; base = VB1
        if off >= 49152: off -= 49152; base = VB2
        k.lds(f"ds_read_b128 {vr(reg,4)}, v{base} offset:{off}", ("b", ks))
    accf = lambda mi, t: ACC + 12*mi + 4*t
    bbf = lambda par, mi: BB + 16*par + 4*mi
    asf = lambda i_, t: AR + 12*(i_ % D) + 4*t
    order = [(mi, t) for mi in range(4) for t in range(3)]
    DEFER = ENV("DEFER", 2)
    state = dict(n=npre)
    lim1 = ENV("LIM1", 18) if DEFER else 24
    def after1(ks):
        tgt = min(ks + 1 + D, lim1, state["n"] + 2)
        while state["n"] < tgt:
            c_aload(k, state["n"]); state["n"] += 1
            if DEFER == 1 and state["n"] == 18: lds_signal(k, CC_W1, EX)
    k.e(f"s_setprio {ENV('P1PRIO', 2)}")
    gemm_loop(k, 18, order, accf, bbf, asf, bread1, 0, 4, after1, gate=gate1)
    k.e(f"s_setprio {ENV('GPRIO', 3)}")
    if FS == "C": stamp(k, 3)
    DEFN = ENV('DEFN', 12)
    sv2 = k.snapshot()
    def w2_check(final=False, first=False):
        if DEFER != 1: return
        lab = k.newlabel("L_w2")
        if not first:
            k.e("s_cmp_lg_u32 s56, 0"); k.e(f"s_cbranch_scc1 {lab}")
        else:
            k.e("s_mov_b32 s56, 0")
        k.e(f"s_add_u32 s36, s{S_CNT}, {4*CC_W1}")
        k.label(lab + "_p")
        k.e(f"v_mov_b32 v0, s36")
        k.e(f"ds_read_b32 v0, v0")
        k.e("s_waitcnt lgkmcnt(0)"); k.lg = []
        k.e(f"v_readfirstlane_b32 s37, v0")
        k.e("s_nop 3")
        k.e(f"s_cmp_ge_u32 s37, {DEFN}"); k.e(f"s_cbranch_scc1 {lab}_go")
        if final:
            k.e("s_sleep 4"); k.e(f"s_branch {lab}_p")
        else:
            k.e(f"s_branch {lab}")
        k.label(lab + "_go")
        k.vm = list(sv2[0])
        for i in range(18, 24): c_aload(k, i)
        k.e("s_mov_b32 s56, 1")
        k.label(lab)
    w2_check(first=True)
    lds_wait(k, CC_ST, 1, EX)
    CSR, B1R, T, STR = BB, BB+12, BB+24, EX
    k.e(f"s_lshr_b32 s40, s{S_W}, 1"); k.e(f"s_and_b32 s41, s{S_W}, 1"); k.e("s_mul_i32 s40, s40, 96")
    k.e("s_lshl_b32 s42, s41, 5"); k.e("s_add_u32 s42, s42, s40")
    k.e("s_lshl_b32 s43, s41, 4"); k.e("s_add_u32 s43, s43, s40"); k.e("s_add_u32 s43, s43, 64")
    k.e(f"v_lshlrev_b32 v{VB1}, 3, v{V_G}"); k.e(f"v_add_u32 v{VB1}, s42, v{VB1}")
    k.e(f"v_lshlrev_b32 v{VB2}, 2, v{V_G}"); k.e(f"v_add_u32 v{VB2}, s43, v{VB2}")
    k.e(f"s_mov_b32 s40, {C_CS}"); k.e(f"s_mov_b32 s41, {C_B1}")
    k.e(f"v_lshl_add_u32 v{VT}, v{VB1}, 2, s40")
    for j in range(2): k.lds(f"ds_read_b128 {vr(CSR+4*j,4)}, v{VT} offset:{16*j}", "cs")
    k.e(f"v_lshl_add_u32 v{VT}, v{VB2}, 2, s40")
    k.lds(f"ds_read_b128 {vr(CSR+8,4)}, v{VT}", "cs")
    k.e(f"v_lshl_add_u32 v{VT}, v{VB1}, 1, s41")
    k.lds(f"ds_read_b128 {vr(T,4)}, v{VT}", "cs")
    k.e(f"v_lshl_add_u32 v{VT}, v{VB2}, 1, s41")
    k.lds(f"ds_read_b64 {vr(T+4,2)}, v{VT}", "cs")
    k.e(f"v_lshlrev_b32 v{VB1}, 3, v{V_M}"); k.e(f"v_add_u32 v{VB1}, {C_ST}, v{VB1}")
    for mi in range(4): k.lds(f"ds_read_b64 {vr(STR+2*mi,2)}, v{VB1} offset:{128*mi}", "cs")
    k.e(f"s_bfe_u32 s40, s{S_W}, 0x10001"); k.e(f"s_and_b32 s41, s{S_W}, 1"); k.e("s_mul_i32 s40, s40, 3")
    k.e(f"s_sub_u32 s40, s40, s{S_ROT2}"); k.e("s_add_u32 s40, s40, 6")
    k.e(f"s_lshr_b32 s55, s{S_W}, 2"); k.e("s_mul_i32 s54, s55, 6")
    k.e("s_add_u32 s42, s40, s41"); k.e("s_sub_u32 s44, s42, 6"); k.e("s_cmp_ge_u32 s42, 6"); k.e("s_cselect_b32 s42, s44, s42")
    k.e("s_add_u32 s42, s42, s54"); k.e("s_lshl_b32 s42, s42, 12"); k.e(f"s_add_u32 s42, s42, {C_HB}")
    k.e("s_add_u32 s43, s40, 2"); k.e("s_sub_u32 s44, s43, 6"); k.e("s_cmp_ge_u32 s43, 6"); k.e("s_cselect_b32 s43, s44, s43")
    k.e("s_add_u32 s43, s43, s54"); k.e("s_lshl_b32 s43, s43, 12"); k.e("s_lshl_b32 s41, s41, 3"); k.e("s_add_u32 s43, s43, s41"); k.e(f"s_add_u32 s43, s43, {C_HB}")
    k.e(f"v_add_u32 v{VB1}, s42, v{V_L16}"); k.e(f"v_add_u32 v{VB2}, s43, v{V_L16}")
    c0 = -2.0 * math.sqrt(2.0/math.pi) * math.log2(math.e)
    c1 = c0 * 0.044715
    k.e(f"s_mov_b32 s44, {f32(c1)}"); k.e(f"v_mov_b32 v{VT}, {f32(c0)}")
    k.wait(lg=["cs"])
    for j in range(6):
        k.e(f"v_lshlrev_b32 v{B1R+2*j}, 16, v{T+j}"); k.e(f"v_and_b32 v{B1R+2*j+1}, 0xffff0000, v{T+j}")
    PK = ENV("PK", 0)
    if PK:
        k.e(f"s_mov_b32 s45, {f32(c1)}"); k.e(f"s_mov_b32 s50, {f32(c0)}"); k.e(f"s_mov_b32 s51, {f32(c0)}")
    for mi in range(4):
        a = accf(mi, 0)
        for (j0, n) in ((0, 8), (8, 4)):
            js = range(j0, j0+n)
            if ENV("NOGELU", 0) == 1:
                for j in js: k.e(f"v_mul_f32 v{T+j-j0}, v{a+j}, v{STR+2*mi}")
            elif ENV("NOGELU", 0) == 2:
                for j in js: k.e(f"v_fma_f32 v{T+j-j0}, v{STR+2*mi+1}, v{CSR+j}, v{B1R+j}")
                for j in js: k.e(f"v_fma_f32 v{a+j}, v{a+j}, v{STR+2*mi}, v{T+j-j0}")
                for j in js: k.e(f"v_mul_f32 v{T+j-j0}, v{a+j}, v{a+j}")
                for j in js: k.e(f"v_fma_f32 v{T+j-j0}, v{T+j-j0}, s44, v{VT}")
                for j in js: k.e(f"v_mul_f32 v{T+j-j0}, v{T+j-j0}, v{a+j}")
                for j in js: k.e(f"v_add_f32 v{T+j-j0}, 1.0, v{T+j-j0}")
                for j in js: k.e(f"v_mul_f32 v{T+j-j0}, 0.5, v{a+j}")
            elif not PK:
                for j in js: k.e(f"v_fma_f32 v{T+j-j0}, v{STR+2*mi+1}, v{CSR+j}, v{B1R+j}")
                for j in js: k.e(f"v_fma_f32 v{a+j}, v{a+j}, v{STR+2*mi}, v{T+j-j0}")
                for j in js: k.e(f"v_mul_f32 v{T+j-j0}, v{a+j}, v{a+j}")
                for j in js: k.e(f"v_fma_f32 v{T+j-j0}, v{T+j-j0}, s44, v{VT}")
                for j in js: k.e(f"v_mul_f32 v{T+j-j0}, v{T+j-j0}, v{a+j}")
                for j in js: k.e(f"v_exp_f32 v{T+j-j0}, v{T+j-j0}")
                for j in js: k.e(f"v_add_f32 v{T+j-j0}, 1.0, v{T+j-j0}")
                for j in js: k.e(f"v_rcp_f32 v{T+j-j0}, v{T+j-j0}")
                for j in js: k.e(f"v_mul_f32 v{T+j-j0}, v{T+j-j0}, v{a+j}")
            else:
                jp = range(j0, j0+n, 2)
                P = lambda r: vr(r, 2)
                st = P(STR+2*mi)
                for j in jp: k.e(f"v_pk_fma_f32 {P(T+j-j0)}, {st}, {P(CSR+j)}, {P(B1R+j)} op_sel:[1,0,0] op_sel_hi:[1,1,1]")
                for j in jp: k.e(f"v_pk_fma_f32 {P(a+j)}, {P(a+j)}, {st}, {P(T+j-j0)} op_sel:[0,0,0] op_sel_hi:[1,0,1]")
                for j in jp: k.e(f"v_pk_mul_f32 {P(T+j-j0)}, {P(a+j)}, s[44:45]")
                for j in jp: k.e(f"v_pk_fma_f32 {P(T+j-j0)}, {P(T+j-j0)}, {P(a+j)}, s[50:51]")
                for j in jp: k.e(f"v_pk_mul_f32 {P(T+j-j0)}, {P(T+j-j0)}, {P(a+j)}")
                for j in js: k.e(f"v_exp_f32 v{T+j-j0}, v{T+j-j0}")
                for j in jp: k.e(f"v_pk_add_f32 {P(T+j-j0)}, {P(T+j-j0)}, 1.0 op_sel_hi:[1,0]")
                for j in js: k.e(f"v_rcp_f32 v{T+j-j0}, v{T+j-j0}")
                for j in jp: k.e(f"v_pk_mul_f32 {P(T+j-j0)}, {P(T+j-j0)}, {P(a+j)}")
            for j in range(n//2): k.e(f"v_cvt_pk_bf16_f32 v{a+j0+j}, v{T+2*j}, v{T+2*j+1}")
            if j0 == 0: k.lds(f"ds_write_b128 v{VB1}, {vr(a,4)} offset:{mi*1024}", "hw")
            else: k.lds(f"ds_write_b64 v{VB2}, {vr(a+8,2)} offset:{mi*1024}", "hw")
            if DEFER == 2 and state["n"] < 24:
                c_aload(k, state["n"]); state["n"] += 1
        if mi < 3: w2_check()
    k.e(f"v_add_u32 v{VB1}, {C_HB}, v{V_L16}"); k.e(f"v_add_u32 v{VB2}, {C_HB+49152}, v{V_L16}")
    k.e("s_lshl_b32 s55, s55, 2"); k.e(f"s_add_u32 s55, s55, s{S_CNT}"); k.e(f"s_add_u32 s55, s55, {4*CC_H0}")
    k.e(f"v_mov_b32 v{EX+2}, s55"); k.e(f"v_mov_b32 v{EX+3}, 1")
    k.wait(lg0=True)
    k.e("s_mov_b64 exec, 1")
    k.e(f"ds_add_u32 v{EX+2}, v{EX+3}")
    k.e("s_mov_b64 exec, -1")
    k.e(f"s_setprio {ENV('P2PRIO', 0)}")
    if FS == "C": stamp(k, 4)
    w2_check(final=True)
    if FS == "C": stamp(k, 5)
    def gate(ks, query=False):
        if ks % 6: return False
        if query: return True
        lds_wait(k, CC_H0 + ks//6, 4, EX)
    def bread2(ks, mi, reg):
        off = (ks*4 + mi) * 1024; base = VB1
        if off >= 49152: off -= 49152; base = VB2
        k.lds(f"ds_read_b128 {vr(reg,4)}, v{base} offset:{off}", ("b", ks))
    def after2(ks):
        if 18 + ks + D < 36: c_aload(k, 18 + ks + D)
    gemm_loop(k, 18, order, accf, bbf, asf, bread2, 18, 4, after2, gate=gate)
    k.e("s_setprio 0")
    if FS == "C": stamp(k, 6)
    if FS == "D": stamp(k, 1)
    k.e(f"v_lshlrev_b32 v{VB1}, 10, v{V_G}"); k.e(f"v_lshl_add_u32 v{VB1}, v{V_M}, 4, v{VB1}")
    k.e(f"v_lshrrev_b32 v{VB2}, 1, v{V_G}"); k.e(f"v_lshlrev_b32 v{VB2}, 10, v{VB2}"); k.e(f"v_and_b32 v{VT}, 31, v{V_L}")
    k.e(f"v_lshl_add_u32 v{VB2}, v{VT}, 4, v{VB2}")
    k.e(f"s_mul_i32 s40, s{S_SC}, {XB}"); k.e("s_add_u32 s40, s40, s39"); k.e(f"s_mul_i32 s41, s{S_W}, 6144"); k.e("s_add_u32 s40, s40, s41")
    k.e(f"s_add_u32 s40, s40, s{S_P}")
    k.e("s_add_u32 s41, s40, 4096")
    for mp in range(2):
        T2 = BB + 16 + 4*mp
        for mi in (2*mp, 2*mp+1):
            a = accf(mi, 0); T_ = BB + 4*mi
            for j in range(4): k.e(f"v_cvt_pk_bf16_f32 v{T_+j}, v{a+2*j}, v{a+2*j+1}")
            for j in range(2): k.e(f"v_cvt_pk_bf16_f32 v{T2+2*(mi&1)+j}, v{a+8+2*j}, v{a+8+2*j+1}")
            k.e(f"buffer_store_dwordx4 {vr(T_,4)}, v{VB1}, {WS}, s40 offen offset:{256*mi} sc1")
        k.e("s_nop 0")
        k.e(f"v_permlane16_swap_b32 v{T2}, v{T2+2}"); k.e(f"v_permlane16_swap_b32 v{T2+1}, v{T2+3}")
        k.e("s_nop 0")
        k.e(f"buffer_store_dwordx4 {vr(T2,4)}, v{VB2}, {WS}, s41 offen offset:{512*mp} sc1")
    k.e(f"s_mul_i32 s40, s{S_CL}, 24"); k.e(f"s_mul_i32 s41, s{S_S}, 3"); k.e("s_add_u32 s40, s40, s41"); k.e(f"s_add_u32 s40, s40, s{S_WL}")
    k.e("s_min_u32 s40, s40, 71"); k.e("s_lshl_b32 s40, s40, 4")
    k.e("s_load_dwordx4 s[52:55], s[20:21], s40")
    lds_signal(k, CC_K2, 8)
    publish(k, CC_DONE, 4, F_C, S_RC, S_SC, 8, byclass=True)
    if FS in ("", "C", "D"): stamp(k, {"D": 2}.get(FS, 7))

def phase_D(k):
    k.c("================ phase D (per class)")
    k.e(f"s_cmp_lg_u32 s{S_WL}, 3"); k.e("s_cbranch_scc1 L_D_work")
    G0 = ENV("G0", 1)
    k.e(f"s_cmp_lg_u32 s{S_CL}, 0"); k.e("s_cbranch_scc1 L_D_g1")
    if G0 == 1: lds_wait(k, CC_DONE + 1, 4, 8, 8)
    else: lds_wait(k, CC_K2, 12, 8, 8)
    k.e("s_branch L_D_g2")
    k.label("L_D_g1")
    lds_wait(k, CC_K2, 12, 8, 4)
    k.label("L_D_g2")
    lds_wait(k, CC_DONE, 4, 8, 1, byclass=True)
    k.e(f"s_lshl_b32 s39, s{S_R}, {GSH}"); k.e(f"s_lshl_b32 s38, s{S_CL}, {GSH+5}"); k.e("s_add_u32 s39, s39, s38"); k.e(f"s_add_u32 s39, s39, s{S_FL}")
    k.e(f"s_add_u32 s37, s39, {F_C}")
    k.e(f"v_lshlrev_b32 v8, {FSH}, v{V_L}")
    poll(k, 8, 37, 0xff, 12)
    lds_signal(k, CD_GO, 10, byclass=True)
    k.e(f"s_cmp_lg_u32 s{S_LAY}, 0"); k.e("s_cbranch_scc1 L_D_idle")
    lds_wait(k, CD_DONE, 3, 10, 2, byclass=True)
    lds_wait(k, CC_K2, 12, 10, 8)
    k.e(f"s_add_u32 s37, s39, {F_D}")
    k.e(f"s_cmp_eq_u32 s{S_R}, 0"); k.e(f"s_cselect_b32 s38, 0, {1 << GSH}"); k.e("s_sub_u32 s37, s37, s38"); k.e(f"s_sub_u32 s38, s38, {8 << FSH}")
    k.e(f"v_cmp_le_u32 vcc, 8, v{V_L}"); k.e("v_mov_b32 v9, s38")
    k.e("s_nop 0")
    k.e("v_cndmask_b32 v9, 0, v9, vcc"); k.e("v_add_u32 v8, v8, v9")
    poll(k, 8, 37, 0xffff, 12)
    lds_signal(k, CA_GO, 10, byclass=True)
    k.e("s_waitcnt lgkmcnt(0)")
    k.e("s_branch L_D_idle")
    k.label("L_D_work")
    k.e(f"s_mul_i32 s39, s{S_R}, {TILEB}"); k.e("s_lshl_b32 s41, s40, 6"); k.e("s_add_u32 s41, s41, s39")
    lds_wait(k, CD_GO, 1, 8, 2, byclass=True)
    if FS == "D": stamp(k, 3)
    k.vm = []
    k.e(f"s_add_u32 s42, s41, s{S_X1}")
    k.vmem(f"buffer_load_dwordx4 v[40:43], v{V_L16}, {WS}, s42 offen sc1", "x1")
    k.e(f"s_add_u32 s42, s41, s{S_P}")
    for s in range(8):
        k.vmem(f"buffer_load_dwordx4 {vr(8+4*s,4)}, v{V_L16}, {WS}, s42 offen sc1", s)
        if s < 7: k.e(f"s_add_u32 s42, s42, {XB}")
    k.wait(vm=["x1"])
    for j in range(4):
        k.e(f"s_lshl_b32 s43, s{52+j}, 16"); k.e(f"s_and_b32 s44, s{52+j}, 0xffff0000")
        k.e(f"v_lshlrev_b32 v{48+2*j}, 16, v{40+j}"); k.e(f"v_and_b32 v{49+2*j}, 0xffff0000, v{40+j}")
        k.e(f"v_add_f32 v{48+2*j}, s43, v{48+2*j}"); k.e(f"v_add_f32 v{49+2*j}, s44, v{49+2*j}")
    for s in range(8):
        k.wait(vm=[s])
        for j in range(4):
            r = 8 + 4*s + j
            k.e(f"v_lshlrev_b32 v5, 16, v{r}"); k.e(f"v_and_b32 v6, 0xffff0000, v{r}")
            k.e(f"v_add_f32 v{48+2*j}, v{48+2*j}, v5"); k.e(f"v_add_f32 v{49+2*j}, v{49+2*j}, v6")
    for j in range(4): k.e(f"v_cvt_pk_bf16_f32 v{8+j}, v{48+2*j}, v{49+2*j}")
    if FS == "D": stamp(k, 4)
    k.e(f"s_cmp_lg_u32 s{S_LAY}, 0"); k.e("s_cbranch_scc1 L_D_final")
    k.e(f"s_add_u32 s42, s41, 0x{X2:x}")
    k.e(f"buffer_store_dwordx4 v[8:11], v{V_L16}, {WS}, s42 offen sc1")
    publish(k, CD_DONE, 3, F_D, S_R, S_S, 14, byclass=True)
    if FS == "D": stamp(k, 5)
    lds_wait(k, CA_GO, 1, 8, 2, byclass=True)
    if FS == "D": stamp(k, 6)
    k.e("s_branch L_D_idle")
    k.label("L_D_final")
    k.e("s_movk_i32 s42, 1152"); k.e(f"v_mul_u32_u24 v5, s42, v{V_L}")
    k.e("s_add_u32 s42, s39, s40")
    k.e("buffer_store_dwordx4 v[8:11], v5, s[16:19], s42 offen")
    k.label("L_D_idle")


def phase_P(k):
    k.c("================ phase P (weight re-layout), waves 0-5: job b, waves 6-11: job 256+b")
    L, L16, G, R, C = V_L, V_L16, V_G, 46, 47
    IN = "s[52:55]"
    k.e(f"v_bfe_u32 v{R}, v{L}, 2, 2"); k.e(f"v_and_b32 v{C}, 3, v{L}")
    k.e(f"s_cmp_ge_u32 s{S_W}, 6"); k.e(f"s_cselect_b32 s{S_SLOT}, 1, 0")
    k.e("s_add_u32 s36, s2, 64"); k.e("s_cmp_lt_u32 s2, 120"); k.e("s_cselect_b32 s36, s2, s36")
    k.e("s_add_u32 s37, s2, 216"); k.e("s_cmp_lt_u32 s2, 104"); k.e("s_cselect_b32 s37, 999, s37")
    k.e("s_add_u32 s38, s2, 120"); k.e("s_cmp_lt_u32 s2, 64"); k.e("s_cselect_b32 s37, s38, s37")
    k.e(f"s_cmp_eq_u32 s{S_SLOT}, 0"); k.e(f"s_cselect_b32 s{S_JOB}, s36, s37")
    k.e(f"s_mul_i32 s{S_LB}, s{S_SLOT}, 36864")
    k.e(f"s_mul_i32 s49, s{S_SLOT}, 6"); k.e(f"s_sub_u32 s49, s{S_W}, s49")
    k.e(f"s_and_b32 s45, s{S_JOB}, 7"); k.e(f"s_lshr_b32 s46, s{S_JOB}, 3")
    k.e(f"s_cmp_ge_u32 s{S_JOB}, {J_END}"); k.e("s_cbranch_scc1 L_P_done")
    k.e(f"s_and_b32 s36, s{S_JOB}, 0xfffe"); k.e("s_cmp_eq_u32 s36, 54"); k.e("s_cbranch_scc1 L_P_done")
    def dispatch(pfx):
        for bound, lab in ((J_X0, "wq"), (J_WO, "x0"), (J_W1, "wo"), (J_W2, "w1")):
            k.e(f"s_cmp_lt_u32 s{S_JOB}, {bound}"); k.e(f"s_cbranch_scc1 L_P{pfx}_{lab}")
        k.e(f"s_branch L_P{pfx}_w2")
    def pdma(i, voff, soff):
        k.e(f"s_add_u32 m0, s37, {6144*i}")
        k.e("s_nop 0")
        k.e(f"buffer_load_dwordx4 v{voff}, {IN}, {soff} offen nt lds")
    def lin_dma(n_i, per_row, nmax, pitch):
        k.e("s_lshl_b32 s36, s49, 6")
        for i in range(n_i):
            k.e(f"v_add_u32 v6, s36, v{L}")
            if i: k.e(f"v_add_u32 v6, {384*i}, v6")
            divmod_const(k, 7, 8, 6, per_row, nmax, 38)
            k.e(f"s_mov_b32 s38, {pitch}")
            k.e("v_mul_u32_u24 v7, s38, v7")
            k.e("v_lshl_add_u32 v7, v8, 4, v7")
            pdma(i, 7, "s40")
    def cont_dma():
        k.e("s_lshl_b32 s36, s49, 10"); k.e("s_add_u32 s40, s40, s36")
        for i in range(6):
            pdma(i, L16, "s40")
            if i < 5: k.e("s_add_u32 s40, s40, 6144")
    k.e(f"s_lshl_b32 s37, s49, 10"); k.e(f"s_add_u32 s37, s37, s{S_LB}")
    dispatch("i")
    k.label("L_Pi_wq")
    srd(k, 52, 24, 0, 576*1728*2)
    sdivmod(k, 46, 45, S_JOB, 3, 56)
    k.e("s_mul_i32 s40, s46, %d" % (32*3456)); k.e("s_mul_i32 s36, s45, 1152"); k.e("s_add_u32 s40, s40, s36")
    lin_dma(6, 72, 2304, 3456)
    k.e("s_branch L_P_wait")
    k.label("L_Pi_x0")
    srd(k, 52, 22, 0, XB)
    k.e(f"s_sub_u32 s46, s46, {J_X0//8}"); k.e("s_lshl_b32 s45, s45, 3"); k.e("s_add_u32 s46, s46, s45")
    k.e("s_mul_i32 s40, s46, 36864")
    cont_dma()
    k.e("s_branch L_P_wait")
    k.label("L_Pi_wo")
    srd(k, 52, 26, 0, 576*576*2)
    k.e(f"s_sub_u32 s46, s46, {J_WO//8}")
    k.e("s_mul_i32 s40, s46, %d" % (72*1152)); k.e("s_mul_i32 s36, s45, 144"); k.e("s_add_u32 s40, s40, s36")
    lin_dma(2, 9, 768, 1152)
    k.e("s_branch L_P_wait")
    k.label("L_Pi_w1")
    srd(k, 52, 28, 0, 576*4608*2)
    k.e(f"s_sub_u32 s46, s46, {J_W1//8}")
    k.e("s_mul_i32 s40, s46, %d" % (32*9216)); k.e("s_mul_i32 s36, s45, 1152"); k.e("s_add_u32 s40, s40, s36")
    lin_dma(6, 72, 2304, 9216)
    k.e("s_branch L_P_wait")
    k.label("L_Pi_w2")
    srd(k, 52, 32, 0, 576*4608*2)
    k.e(f"s_sub_u32 s46, s46, {J_W2//8}")
    k.e("s_mul_i32 s40, s45, 18"); k.e("s_add_u32 s40, s40, s46"); k.e("s_mul_i32 s40, s40, 36864")
    cont_dma()
    k.label("L_P_wait")
    for j in range(4): k.e(f"v_mov_b32 v{40+j}, 0x3f803f80")
    k.e(f"s_lshl_b32 s36, s{S_SLOT}, 2"); k.e(f"s_add_u32 s36, s36, {CNT + 4*CP_LD}"); k.e("v_mov_b32 v8, s36"); k.e("v_mov_b32 v9, 1")
    k.e("s_waitcnt vmcnt(0)")
    k.e("s_mov_b64 exec, 1"); k.e("ds_add_u32 v8, v9"); k.e("s_mov_b64 exec, -1")
    k.label("L_P_spin")
    k.e("ds_read_b32 v9, v8"); k.e("s_waitcnt lgkmcnt(0)"); k.e("v_readfirstlane_b32 s36, v9"); k.e("s_nop 3")
    k.e("s_cmp_ge_u32 s36, 6"); k.e("s_cbranch_scc1 L_P_go"); k.e("s_sleep 2"); k.e("s_branch L_P_spin")
    k.label("L_P_go")
    k.e(f"s_lshl_b32 s39, s{S_W}, 10"); k.e("s_add_u32 s39, s39, 73728")
    k.e("s_lshl_b32 s48, s49, 1")
    k.label("L_P_vw")
    dispatch("p")
    def tr3(a6, a9, a10, a11):
        for t in range(2):
            k.e(f"ds_read_b64_tr_b16 v[{12+4*t}:{13+4*t}], v{a6} offset:{8*t}")
            k.e(f"ds_read_b64_tr_b16 v[{14+4*t}:{15+4*t}], v{a9} offset:{8*t}")
        k.e(f"ds_read_b64_tr_b16 v[20:21], v{a10}")
        k.e(f"ds_read_b64_tr_b16 v[22:23], v{a11}")
    k.label("L_Pp_w1")
    k.e("s_lshr_b32 s40, s48, 1"); k.e("s_and_b32 s41, s48, 1"); k.e("s_mul_i32 s40, s40, 96")
    k.e("s_lshl_b32 s42, s41, 5"); k.e("s_add_u32 s42, s42, s40")
    k.e("s_lshl_b32 s43, s41, 4"); k.e("s_add_u32 s43, s43, s40"); k.e("s_add_u32 s43, s43, 64")
    k.e(f"v_lshl_add_u32 v7, v{G}, 3, v{R}"); k.e("s_movk_i32 s38, 1152"); k.e("v_mul_u32_u24 v7, s38, v7"); k.e(f"v_add_u32 v7, s{S_LB}, v7")
    k.e("s_lshl_b32 s44, s42, 1"); k.e(f"v_lshl_add_u32 v6, v{C}, 4, v7"); k.e("v_add_u32 v6, s44, v6")
    k.e("s_lshl_b32 s44, s43, 1"); k.e(f"v_lshl_add_u32 v10, v{C}, 3, v7"); k.e("v_add_u32 v10, s44, v10")
    k.e("v_add_u32 v9, %d, v6" % (4*1152)); k.e("v_add_u32 v11, %d, v10" % (4*1152))
    tr3(6, 9, 10, 11)
    k.e("s_mul_i32 s47, s45, 12"); k.e("s_add_u32 s47, s47, s48"); k.e("s_mul_i32 s47, s47, 36"); k.e("s_add_u32 s47, s47, s46")
    k.e("s_mul_i32 s47, s47, 3072"); k.e(f"s_add_u32 s47, s47, 0x{WFF:x}")
    k.e("s_lshl_b32 s42, s41, 7"); k.e("s_add_u32 s42, s42, s39"); k.e("s_lshl_b32 s43, s41, 6"); k.e("s_add_u32 s43, s43, s39"); k.e("s_add_u32 s43, s43, 256")
    k.e(f"v_lshlrev_b32 v7, 5, v{G}"); k.e("v_add_u32 v7, s42, v7"); k.e(f"v_lshlrev_b32 v8, 4, v{G}"); k.e("v_add_u32 v8, s43, v8")
    for t in range(3):
        k.e(f"s_waitcnt lgkmcnt({4-2*t})")
        k.e(f"buffer_store_dwordx4 v[{12+4*t}:{15+4*t}], v{L16}, {WS}, s47 offen offset:{1024*t}{WST}")
        k.e(f"v_mfma_f32_16x16x32_bf16 v[{28+4*t}:{31+4*t}], v[{12+4*t}:{15+4*t}], v[40:43], 0")
    k.e("s_nop 7")
    k.e("ds_write_b128 v7, v[28:31]"); k.e("ds_write_b128 v7, v[32:35] offset:16"); k.e("ds_write_b128 v8, v[36:39]")
    k.e("s_waitcnt lgkmcnt(0)")
    k.e("s_branch L_P_next")
    k.label("L_Pp_wq")
    k.e(f"v_lshl_add_u32 v6, v{G}, 3, v{R}"); k.e("s_movk_i32 s38, 1152"); k.e("v_mul_u32_u24 v6, s38, v6")
    k.e(f"v_lshl_add_u32 v6, v{C}, 3, v6"); k.e("s_mul_i32 s38, s48, 96"); k.e(f"s_add_u32 s38, s38, s{S_LB}"); k.e("v_add_u32 v6, s38, v6")
    for t in range(3):
        k.e(f"ds_read_b64_tr_b16 v[{12+4*t}:{13+4*t}], v6 offset:{32*t}")
        k.e(f"ds_read_b64_tr_b16 v[{14+4*t}:{15+4*t}], v6 offset:{32*t+4*1152}")
    k.e("s_mul_i32 s40, s45, 9")
    for t in range(3):
        k.e(f"v_bfe_u32 v7, v{L}, 3, 1"); k.e("s_mul_i32 s38, s48, 6"); k.e(f"s_add_u32 s38, s38, {2*t}"); k.e("v_add_u32 v7, s38, v7")
        divmod_const(k, 8, 9, 7, 9, 72, 38)
        k.e("v_add_u32 v9, s40, v9")
        k.e("v_mul_u32_u24 v8, 28, v8"); k.e("v_add_u32 v8, v8, v9")
        k.e("v_lshrrev_b32 v9, 1, v8"); k.e("s_movk_i32 s38, %d" % (18*1024)); k.e("v_mul_u32_u24 v9, s38, v9")
        k.e("v_and_b32 v8, 1, v8"); k.e("v_lshl_add_u32 v9, v8, 7, v9")
        k.e(f"v_lshl_add_u32 v9, v{G}, 8, v9"); k.e(f"v_and_b32 v8, 7, v{L}"); k.e(f"v_lshl_add_u32 v{24+t}, v8, 4, v9")
    k.e("s_lshl_b32 s47, s46, 10")
    if WQF: k.e(f"s_add_u32 s47, s47, 0x{WQF:x}")
    k.e("s_and_b32 s42, s48, 1"); k.e("s_mul_i32 s42, s42, 192"); k.e("s_add_u32 s42, s42, s39")
    k.e(f"v_lshlrev_b32 v7, 4, v{G}"); k.e("v_add_u32 v7, s42, v7")
    k.e("s_waitcnt lgkmcnt(0)")
    for t in range(3):
        k.e(f"buffer_store_dwordx4 v[{12+4*t}:{15+4*t}], v{24+t}, {WS}, s47 offen sc1")
        k.e(f"v_mfma_f32_16x16x32_bf16 v[{28+4*t}:{31+4*t}], v[{12+4*t}:{15+4*t}], v[40:43], 0")
    k.e("s_nop 7")
    for t in range(3): k.e(f"ds_write_b128 v7, v[{28+4*t}:{31+4*t}] offset:{64*t}")
    k.e("s_waitcnt lgkmcnt(0)")
    k.e("s_branch L_P_next")
    k.label("L_Pp_w2")
    sdivmod(k, 40, 41, 46, 3, 18)
    k.e("s_cmp_eq_u32 s41, 2"); k.e("s_cselect_b32 s44, 2, 3"); k.e("s_movk_i32 s43, %d" % (4*1152)); k.e("s_cselect_b32 s43, %d, s43" % (16*1152))
    k.e(f"v_lshlrev_b32 v6, s44, v{G}"); k.e(f"v_add_u32 v6, v6, v{R}")
    k.e("s_movk_i32 s38, 1152"); k.e("v_mul_u32_u24 v6, s38, v6")
    k.e("s_mul_i32 s38, s48, 96"); k.e(f"s_add_u32 s38, s38, s{S_LB}"); k.e("v_add_u32 v6, s38, v6")
    k.e(f"v_lshl_add_u32 v10, v{C}, 3, v6"); k.e("v_add_u32 v10, 64, v10")
    k.e(f"v_lshl_add_u32 v6, v{C}, 4, v6")
    k.e("v_add_u32 v9, s43, v6"); k.e("v_add_u32 v11, s43, v10")
    tr3(6, 9, 10, 11)
    k.e("s_mul_i32 s47, s45, 12"); k.e("s_add_u32 s47, s47, s48"); k.e("s_mul_i32 s47, s47, 36"); k.e("s_add_u32 s47, s47, s46"); k.e("s_add_u32 s47, s47, 18")
    k.e("s_mul_i32 s47, s47, 3072"); k.e(f"s_add_u32 s47, s47, 0x{WFF:x}")
    for t in range(3):
        k.e(f"s_waitcnt lgkmcnt({4-2*t})")
        k.e(f"buffer_store_dwordx4 v[{12+4*t}:{15+4*t}], v{L16}, {WS}, s47 offen offset:{1024*t}{WST}")
    k.e("s_branch L_P_next")
    k.label("L_Pp_wo")
    k.e("s_lshl_b32 s44, s48, 2"); k.e(f"v_add_u32 v6, s44, v{G}"); k.e("v_min_u32 v6, 44, v6")
    divmod_const(k, 8, 7, 6, 5, 48, 38)
    k.e("v_lshrrev_b32 v9, 1, v8"); k.e("v_mul_u32_u24 v9, 18, v9")
    k.e("v_and_b32 v10, 1, v8"); k.e("v_lshl_add_u32 v9, v10, 3, v9")
    k.e(f"v_add_u32 v9, v9, v{R}")
    k.e("v_add_u32 v10, 4, v9")
    k.e(f"v_lshrrev_b32 v11, 1, v{R}"); k.e("v_mul_u32_u24 v11, 18, v11"); k.e(f"v_and_b32 v16, 1, v{R}")
    k.e("v_add3_u32 v11, v11, v16, 16")
    k.e("v_add_u32 v16, 36, v11")
    k.e("v_cmp_eq_u32 vcc, 8, v8")
    k.e("s_nop 1")
    k.e("v_cndmask_b32 v9, v9, v11, vcc"); k.e("v_cndmask_b32 v10, v10, v16, vcc")
    k.e("s_movk_i32 s38, 144"); k.e("v_mul_u32_u24 v9, s38, v9"); k.e("v_mul_u32_u24 v10, s38, v10")
    k.e("v_lshlrev_b32 v11, 5, v7"); k.e(f"v_lshl_add_u32 v11, v{C}, 3, v11"); k.e(f"v_add_u32 v11, s{S_LB}, v11")
    k.e("v_add_u32 v9, v9, v11"); k.e("v_add_u32 v10, v10, v11")
    k.e("ds_read_b64_tr_b16 v[12:13], v9")
    k.e("ds_read_b64_tr_b16 v[14:15], v10")
    k.e("s_movk_i32 s38, %d" % (18*1024)); k.e("v_mul_u32_u24 v7, s38, v7")
    k.e("s_mul_i32 s38, s46, 9"); k.e("v_add_u32 v8, s38, v8"); k.e("v_lshl_add_u32 v7, v8, 8, v7")
    k.e(f"v_lshl_add_u32 v7, v{V_M}, 4, v7")
    k.e("s_mul_i32 s44, s45, %d" % (5*18*1024)); k.e(f"s_add_u32 s44, s44, 0x{WOF:x}")
    k.e("s_waitcnt lgkmcnt(0)")
    k.e(f"buffer_store_dwordx4 v[12:15], v7, {WS}, s44 offen sc1")
    k.e("s_branch L_P_next")
    k.label("L_Pp_x0")
    k.e(f"v_and_b32 v6, 31, v{L}"); k.e(f"v_lshrrev_b32 v7, 5, v{L}")
    k.e("s_movk_i32 s38, 1152"); k.e("v_mul_u32_u24 v8, s38, v6"); k.e("v_lshl_add_u32 v8, v7, 4, v8")
    k.e("s_mul_i32 s38, s48, 96"); k.e(f"s_add_u32 s38, s38, s{S_LB}"); k.e("v_add_u32 v8, s38, v8")
    for i in range(3): k.e(f"ds_read_b128 v[{12+4*i}:{15+4*i}], v8 offset:{32*i}")
    k.e("v_lshlrev_b32 v9, 10, v7"); k.e("v_lshl_add_u32 v9, v6, 4, v9")
    k.e("s_lshr_b32 s40, s46, 1"); k.e(f"s_mul_i32 s40, s40, {TILEB}"); k.e("s_and_b32 s41, s46, 1"); k.e("s_lshl_b32 s41, s41, 9"); k.e("s_add_u32 s40, s40, s41")
    k.e("s_mul_i32 s41, s48, 6144"); k.e("s_add_u32 s40, s40, s41"); k.e(f"s_add_u32 s40, s40, 0x{X0P:x}"); k.e("s_add_u32 s41, s40, 4096")
    for i in range(3):
        k.e(f"s_waitcnt lgkmcnt({2-i})")
        k.e(f"buffer_store_dwordx4 v[{12+4*i}:{15+4*i}], v9, {WS}, s{40 if i < 2 else 41} offen offset:{2048*(i%2)} sc1")
    k.label("L_P_next")
    k.e("s_add_u32 s48, s48, 1"); k.e("s_bitcmp1_b32 s48, 0")
    k.e("s_nop 3")
    k.e("s_cbranch_scc1 L_P_vw")
    k.e(f"s_cmp_lt_u32 s{S_JOB}, {J_X0}"); k.e("s_cbranch_scc1 L_P_csq")
    k.e(f"s_cmp_lt_u32 s{S_JOB}, {J_W1}"); k.e("s_cbranch_scc1 L_P_tag")
    k.e(f"s_cmp_ge_u32 s{S_JOB}, {J_W2}"); k.e("s_cbranch_scc1 L_P_tag")
    k.e("s_mul_i32 s42, s46, %d" % (4608*4)); k.e("s_mul_i32 s40, s45, 2304"); k.e("s_add_u32 s42, s42, s40"); k.e(f"s_add_u32 s42, s42, 0x{CSP:x}")
    k.e("s_mul_i32 s40, s49, 384"); k.e("s_add_u32 s42, s42, s40")
    k.e(f"v_add_u32 v6, s39, v{L16}")
    k.e("s_waitcnt lgkmcnt(0)")
    k.e("ds_read_b128 v[28:31], v6")
    k.e("s_mov_b64 exec, 0xffffff")
    k.e("s_waitcnt lgkmcnt(0)")
    k.e(f"buffer_store_dwordx4 v[28:31], v{L16}, {WS}, s42 offen{WST}")
    k.e("s_mov_b64 exec, -1")
    k.e("s_branch L_P_tag")
    k.label("L_P_csq")
    k.e(f"s_mul_i32 s42, s{S_JOB}, 2304"); k.e(f"s_add_u32 s42, s42, 0x{CSQP:x}")
    k.e("s_mul_i32 s40, s49, 384"); k.e("s_add_u32 s42, s42, s40")
    k.e(f"v_add_u32 v6, s39, v{L16}")
    k.e("s_waitcnt lgkmcnt(0)")
    k.e("ds_read_b128 v[28:31], v6")
    k.e("s_mov_b64 exec, 0xffffff")
    k.e("s_waitcnt lgkmcnt(0)")
    k.e(f"buffer_store_dwordx4 v[28:31], v{L16}, {WS}, s42 offen sc1")
    k.e("s_mov_b64 exec, -1")
    k.label("L_P_tag")

def get_tag(k):
    lab = k.newlabel("L_tag")
    k.e("v_mov_b32 v8, 0")
    k.e("s_mov_b32 s38, 0x20000")
    k.label(lab)
    k.e("global_load_dwordx2 v[10:11], v8, s[34:35] sc1")
    k.e("s_waitcnt vmcnt(0)")
    k.e("v_readfirstlane_b32 s62, v10"); k.e("v_readfirstlane_b32 s63, v11")
    k.e("s_sub_u32 s38, s38, 1")
    k.e("s_cmp_eq_u32 s38, 0"); k.e(f"s_cbranch_scc1 {lab}_ok")
    k.e("s_and_b32 s36, s62, s63"); k.e("s_bitcmp1_b32 s36, 0"); k.e(f"s_cbranch_scc1 {lab}_ok")
    k.e("s_sleep 2"); k.e(f"s_branch {lab}")
    k.label(f"{lab}_ok")

def gen_main():
    name = NAME + "_kernel"
    k = K(); header(k, name, 256)
    k.e("s_load_dwordx2 s[22:23], s[0:1], 0")
    k.e("s_load_dwordx4 s[24:27], s[0:1], 8")
    k.e("s_load_dwordx4 s[28:31], s[0:1], 32")
    k.e("s_load_dwordx2 s[32:33], s[0:1], 48")
    k.e("s_load_dwordx4 s[4:7], s[0:1], 56")
    k.e("s_load_dwordx4 s[40:43], s[0:1], 72")
    k.e("s_memrealtime s[44:45]")
    wave_lane(k, V_L, S_W)
    k.e(f"v_lshlrev_b32 v{V_L16}, 4, v{V_L}")
    k.e(f"v_lshrrev_b32 v{V_G}, 4, v{V_L}"); k.e(f"v_and_b32 v{V_M}, 15, v{V_L}")
    k.e(f"s_cmp_lg_u32 s{S_W}, 0"); k.e("s_cbranch_scc1 L_M_nz")
    k.e(f"v_lshlrev_b32 v5, 3, v{V_L}"); k.e(f"v_add_u32 v5, {CNT}, v5"); k.e("v_mov_b32 v6, 0"); k.e("v_mov_b32 v7, 0"); k.e("ds_write_b64 v5, v[6:7]")
    k.label("L_M_nz")
    k.e("s_waitcnt lgkmcnt(0)")
    srd(k, 8, 42, 0, WSZ)
    srd(k, 12, 30, 0, 4608*2)
    srd(k, 16, 6, 0, XB)
    k.e("s_mov_b64 s[20:21], s[4:5]")
    k.e("s_mov_b64 s[34:35], s[40:41]")
    k.e(f"s_or_b32 s36, s2, s{S_W}"); k.e("s_cmp_lg_u32 s36, 0"); k.e("s_cbranch_scc1 L_M_nt")
    k.e("s_lshl_b32 s46, s45, 2"); k.e("s_lshr_b32 s47, s44, 31"); k.e("s_lshl_b32 s47, s47, 1"); k.e("s_or_b32 s46, s46, s47"); k.e("s_or_b32 s46, s46, 1")
    k.e("s_lshl_b32 s47, s44, 1"); k.e("s_or_b32 s47, s47, 1")
    k.e("v_mov_b32 v6, s47"); k.e("v_mov_b32 v7, s46"); k.e("v_mov_b32 v5, 0")
    k.e("s_mov_b64 exec, 1")
    k.e("global_store_dwordx2 v5, v[6:7], s[34:35] sc1")
    k.e("s_mov_b64 exec, -1")
    k.label("L_M_nt")
    k.e("s_barrier")
    phase_P(k)
    get_tag(k)
    k.e(f"s_mov_b32 s{S_CNT}, {CNT}")
    if WREL:
        k.e(f"s_cmp_ge_u32 s{S_JOB}, {J_W1}"); k.e("s_cbranch_scc1 L_P_end")
    k.e(f"s_cmp_lt_u32 s{S_JOB}, {J_X0}"); k.e("s_cbranch_scc1 L_P_pq")
    publish(k, CP_DONE, 6, FLP, None, S_JOB, 8)
    k.e("s_branch L_P_end")
    k.label("L_P_pq")
    publish(k, CP_DONE, 6, FLQ, None, S_JOB, 8, repl=True)
    k.e("s_branch L_P_end")
    k.label("L_P_done")
    get_tag(k)
    k.label("L_P_end")
    if FS == "P": stamp(k, 1)
    def mapping2(Sx, ss, sr_, sidx):
        R = 32 // Sx; ng = 8 // Sx; lg = lambda x: x.bit_length() - 1
        k.e("s_and_b32 s36, s2, 7"); k.e("s_lshr_b32 s37, s2, 3")
        k.e(f"s_and_b32 s{ss}, s36, {ng-1}"); k.e(f"s_lshl_b32 s{ss}, s{ss}, {lg(Sx)}")
        k.e(f"s_and_b32 s38, s37, {Sx-1}"); k.e(f"s_add_u32 s{ss}, s{ss}, s38")
        k.e(f"s_lshr_b32 s{sr_}, s36, {lg(ng)}"); k.e(f"s_lshl_b32 s{sr_}, s{sr_}, {lg(R)}")
        k.e(f"s_lshr_b32 s{sidx}, s37, {lg(Sx)}"); k.e(f"s_add_u32 s{sr_}, s{sr_}, s{sidx}")
    mapping2(ENV('SX_L', 4), S_S, S_R, S_IDX)
    mapping2(SXC, S_SC, S_RC, S_IDX)
    rot18(k, S_IDX, S_ROT, 32 // SXC)
    sdivmod(k, 36, S_ROT2, S_IDX, 6, 32)
    if not ENV("ROT2", 1): k.e(f"s_mov_b32 s{S_ROT2}, 0")
    k.e(f"s_lshr_b32 s{S_CL}, s{S_W}, 2"); k.e(f"s_and_b32 s{S_WL}, s{S_W}, 3"); k.e(f"s_mov_b32 s{S_EARLY}, 0")
    k.e(f"s_mov_b32 s{S_LAY}, 0")
    k.e(f"s_mov_b32 s{S_XIN}, 0x{X0P:x}"); k.e(f"s_mov_b32 s{S_O}, 0x{O1:x}"); k.e(f"s_mov_b32 s{S_X1}, 0x{X1A:x}"); k.e(f"s_mov_b32 s{S_P}, 0x{P1:x}")
    k.e(f"s_mov_b32 s{S_FL}, 0x{FLG:x}"); k.e(f"s_mov_b32 s{S_CNT}, {CNT}")
    if ENV("PB4", 1): k.e("s_barrier")
    k.e(f"s_cmp_lg_u32 s{S_W}, 0"); k.e("s_cbranch_scc1 L_M_bar")
    k.e(f"s_lshl_b32 s36, s{S_R}, 1"); k.e("s_sub_u32 s36, s36, 1")
    k.e(f"v_add_u32 v9, s36, v{V_L}"); k.e("v_max_i32 v9, 0, v9")
    k.e("v_and_b32 v10, 7, v9"); k.e("v_lshrrev_b32 v9, 3, v9"); k.e("v_lshl_add_u32 v9, v10, 3, v9"); k.e(f"v_add_u32 v9, {J_X0}, v9")
    k.e("v_lshlrev_b32 v8, 7, v9")
    k.e(f"s_mov_b32 s37, 0x{FLP:x}")
    poll(k, 8, 37, 7, 10, ENV('PS2', 3))
    k.label("L_M_bar")
    if FS == "P": stamp(k, 2)
    k.e("s_barrier")
    if FS == "P": stamp(k, 3)
    k.label("L_layer")
    phase_A(k)
    npre = phase_B(k)
    phase_C(k, npre)
    phase_D(k)
    k.e(f"s_cmp_lg_u32 s{S_LAY}, 0"); k.e(f"s_cbranch_scc1 L_{name}_end")
    if STAMP and ENV("STAMP_L1", 0):
        k.e(f"s_branch L_{name}_end")
    k.e(f"s_mov_b32 s{S_LAY}, 1")
    k.e(f"s_cmp_lt_u32 s{S_CL}, {ENV('NEARLY', 0)}"); k.e(f"s_cselect_b32 s{S_EARLY}, 1, 0")
    k.e(f"s_mov_b32 s{S_XIN}, 0x{X2:x}"); k.e(f"s_mov_b32 s{S_O}, 0x{O2:x}"); k.e(f"s_mov_b32 s{S_X1}, 0x{X1B:x}"); k.e(f"s_mov_b32 s{S_P}, 0x{P2:x}")
    k.e(f"s_mov_b32 s{S_FL}, 0x{FLG+FLG_LAYER:x}"); k.e(f"s_mov_b32 s{S_CNT}, {CNT+128}")
    if STAMP: stamp(k, 0)
    k.e("s_branch L_layer")
    k.label(f"L_{name}_end")
    if STAMP:
        k.e("s_waitcnt vmcnt(0)")
        k.e(f"s_lshl_b32 s36, s{S_W}, 6"); k.e("v_mov_b32 v0, s36")
    stamp_end(k, KIDX[0]); KIDX[0] += 1
    k.label(f"L_{name}_exit")
    k.e("s_endpgm")
    return name, k.text(), desc(name, 168), (256, 768, LDS_TOTAL)

def main(out):
    n, t, d, (g, b, lds) = gen_main()
    ref = open(f"cdna_kernels/{NAME}.s.ref").read().splitlines()
    hdr = [l for l in ref if l.startswith(";") and "@launch" not in l and "Override" not in l and "grid=ceil" not in l]
    s = "\n".join(hdr) + "\n"
    if ENV("ASLIST", 1): s += f"; @launch kernel={n} grid=({g},1,1) block=({b},1,1) lds={lds}\n"
    else: s += f"; @launch grid=({g},1,1) block=({b},1,1) lds={lds}\n"
    s += '.amdgcn_target "amdgcn-amd-amdhsa--gfx950"\n.text\n' + t + d
    open(out, "w").write(s)

if __name__ == "__main__":
    main(sys.argv[1] if len(sys.argv) > 1 else f"cdna_kernels/{NAME}.s")
```

```python
import sys, struct, math, os
from asmlib import *

NAME = "interleave_layers__sliding_local_dilated__dense_activation_gelu__prompt"
XB = 2048 * 1152
TILEB = 73728
WQF, WOF, WFF = 0x0, 0x200000, 0x300000
CS1, CSQ = 0xE00000, 0xE10000
ST0, ST1A, ST2, ST1B = 0xE40000, 0xE80000, 0xEC0000, 0xF00000
X0P = 0x4C00000
O1, X1A, X2, O2, X1B, P1, P2 = 0x1000000, 0x1400000, 0x1800000, 0x1C00000, 0x2000000, 0x2400000, 0x3800000
WQF_SZ, WOF_SZ, WFF_SZ = 8*14*18*1024, 8*5*18*1024, 8*12*36*3072
ST_SZ = 32*8*64*8
ENV = lambda n, d: int(os.environ.get(n, str(d)))
STAMP = ENV("STAMP", 0)
STAMP_BASE = 0x8000000

def f32(x):
    return "0x%08x" % struct.unpack("<I", struct.pack("<f", x))[0]

def srd(k, d, b, add, size):
    if add:
        k.e(f"s_add_u32 s{d}, s{b}, 0x{add:x}")
        k.e(f"s_addc_u32 s{d+1}, s{b+1}, 0")
    else:
        k.e(f"s_mov_b32 s{d}, s{b}")
        k.e(f"s_mov_b32 s{d+1}, s{b+1}")
    k.e(f"s_mov_b32 s{d+2}, 0x{size:x}")
    k.e(f"s_mov_b32 s{d+3}, 0x20000")

def stamp(k, i):
    if not STAMP: return
    k.e("s_waitcnt lgkmcnt(0)"); k.lg = []
    k.e(f"s_memtime s[84:85]")
    k.e(f"s_memrealtime s[86:87]")
    k.e("s_waitcnt lgkmcnt(0)")
    k.e(f"s_mov_b32 s{64+i}, s84"); k.e(f"s_mov_b32 s{74+i}, s86")
def stamp_begin(k):
    if not STAMP: return
    for i in range(1, 9):
        k.e(f"s_mov_b32 s{64+i}, 0"); k.e(f"s_mov_b32 s{74+i}, 0")
    stamp(k, 0)
def stamp_end(k, kidx):
    if not STAMP: return
    k.e("s_waitcnt vmcnt(0)")
    stamp(k, 8)
    k.e("s_load_dwordx2 s[88:89], s[0:1], 80")
    k.e("s_getreg_b32 s90, hwreg(HW_REG_XCC_ID)")
    k.e("s_waitcnt lgkmcnt(0)")
    k.e("s_mov_b64 exec, 1")
    k.e(f"s_add_u32 s88, s88, 0x{STAMP_BASE:x}"); k.e("s_addc_u32 s89, s89, 0")
    k.e(f"s_add_u32 s91, s2, {kidx*512}"); k.e("s_lshl_b32 s91, s91, 4")
    k.e("v_lshrrev_b32 v1, 6, v0"); k.e("v_add_u32 v1, s91, v1"); k.e("v_lshlrev_b32 v1, 7, v1")
    vals = [64+i for i in range(9)] + [90] + [74+i for i in range(9)] + [90]
    for j, sreg in enumerate(vals):
        k.e(f"v_mov_b32 v{2+j}, s{sreg}")
    for j in range(0, 20, 4):
        k.e(f"global_store_dwordx4 v1, v[{2+j}:{5+j}], s[88:89] offset:{4*j}")

KIDX = [0]
def header(k, name, nwg):
    k.lines.append(f".globl {name}\n.p2align 8\n.type {name},@function\n{name}:")
    k.e(f"s_cmp_ge_u32 s2, {nwg}")
    k.e(f"s_cbranch_scc1 L_{name}_exit")
    stamp_begin(k)
def footer(k, name):
    k.label(f"L_{name}_end")
    stamp_end(k, KIDX[0]); KIDX[0] += 1
    k.label(f"L_{name}_exit")
    k.e("s_endpgm")

def desc(name, vgpr, sgpr=96):
    acc = (vgpr + 3) // 4 * 4
    return f""".section .rodata,"a"
.p2align 6
.amdhsa_kernel {name}
  .amdhsa_next_free_vgpr {vgpr}
  .amdhsa_next_free_sgpr {sgpr}
  .amdhsa_accum_offset {acc}
  .amdhsa_group_segment_fixed_size 0
  .amdhsa_kernarg_size 88
  .amdhsa_user_sgpr_count 2
  .amdhsa_user_sgpr_kernarg_segment_ptr 1
  .amdhsa_system_sgpr_workgroup_id_x 1
  .amdhsa_float_denorm_mode_32 3
.end_amdhsa_kernel
.text
"""

def divmod_const(k, q, rem, x, d, nmax, stmp):
    m, sh = magic(d, nmax)
    k.e(f"s_mov_b32 s{stmp}, {m}")
    k.e(f"v_mul_u32_u24 v{q}, s{stmp}, v{x}")
    k.e(f"v_lshrrev_b32 v{q}, {sh}, v{q}")
    if rem is not None:
        if d <= 64:
            k.e(f"v_mul_u32_u24 v{rem}, {d}, v{q}")
        else:
            k.e(f"v_mul_u32_u24 v{rem}, 0x{d:x}, v{q}")
        k.e(f"v_sub_u32 v{rem}, v{x}, v{rem}")

def sdivmod(k, q, rem, x, d, nmax):
    m, sh = magic(d, nmax)
    k.e(f"s_mul_i32 s{q}, s{x}, {m}"); k.e(f"s_lshr_b32 s{q}, s{q}, {sh}")
    if rem is not None:
        k.e(f"s_mul_i32 s{rem}, s{q}, {d}"); k.e(f"s_sub_u32 s{rem}, s{x}, s{rem}")

MAP = dict(attn=ENV("SX_A", 4), wo=ENV("SX_B", 8), ffn=ENV("SX_C", 2))
def mapping(k, Sx, ss=15, sr_=16, sidx=12):
    R = 32 // Sx; ng = 8 // Sx
    lg = lambda x: x.bit_length() - 1
    k.e("s_and_b32 s10, s2, 7")
    k.e("s_lshr_b32 s11, s2, 3")
    k.e(f"s_and_b32 s{ss}, s10, {ng-1}")
    k.e(f"s_lshl_b32 s{ss}, s{ss}, {lg(Sx)}")
    k.e(f"s_and_b32 s13, s11, {Sx-1}")
    k.e(f"s_add_u32 s{ss}, s{ss}, s13")
    k.e(f"s_lshr_b32 s{sr_}, s10, {lg(ng)}")
    k.e(f"s_lshl_b32 s{sr_}, s{sr_}, {lg(R)}")
    k.e(f"s_lshr_b32 s{sidx}, s11, {lg(Sx)}")
    k.e(f"s_add_u32 s{sr_}, s{sr_}, s{sidx}")

def rot18(k, sidx, srot, R):
    if not ENV("ROT", 0):
        k.e(f"s_mov_b32 s{srot}, 0"); return
    if R <= 16:
        mult = {4: 4, 8: 2, 16: 1}[R]
        k.e(f"s_mul_i32 s{srot}, s{sidx}, {mult}")
    else:
        k.e(f"s_sub_u32 s{srot}, s{sidx}, 18"); k.e(f"s_cmp_ge_u32 s{sidx}, 18"); k.e(f"s_cselect_b32 s{srot}, s{srot}, s{sidx}")

def wave_lane(k, vlane, swave):
    k.e(f"v_lshrrev_b32 v{vlane}, 6, v0")
    k.e("s_nop 0")
    k.e(f"v_readfirstlane_b32 s{swave}, v{vlane}")
    k.e(f"v_and_b32 v{vlane}, 63, v0")

def touch(k, srd_, L, n_instr, swave_idx, nwaves, per_slab, slab_stride, sbase, nslab, t, dummy, gran=64):
    t0, t1, t2 = t[:3]
    nmax = 32 * nwaves * n_instr * 64
    k.e(f"s_lshr_b32 s58, s2, 3"); k.e(f"s_mul_i32 s58, s58, {nwaves}"); k.e(f"s_add_u32 s58, s58, s{swave_idx}"); k.e(f"s_mul_i32 s58, s58, {n_instr*64}")
    for j in range(n_instr):
        k.e(f"v_add_u32 v{t0}, s58, v{L}")
        if j: k.e(f"v_add_u32 v{t0}, {64*j}, v{t0}")
        m, sh = magic2(per_slab, nmax)
        k.e(f"s_mov_b32 s59, {m}"); k.e(f"v_mul_hi_u32 v{t1}, v{t0}, s59")
        if sh: k.e(f"v_lshrrev_b32 v{t1}, {sh}, v{t1}")
        k.e(f"s_mov_b32 s59, {per_slab}"); k.e(f"v_mul_u32_u24 v{t2}, s59, v{t1}"); k.e(f"v_sub_u32 v{t0}, v{t0}, v{t2}")
        k.e(f"s_mov_b32 s59, {slab_stride}"); k.e(f"v_mul_u32_u24 v{t2}, s59, v{t1}")
        k.e(f"v_lshl_add_u32 v{t0}, v{t0}, {gran.bit_length()-1}, v{t2}")
        k.e(f"v_cmp_gt_u32 vcc, {nslab}, v{t1}")
        k.e(f"v_mov_b32 v{t2}, 0x7ff00000")
        k.e("s_nop 0")
        k.e(f"v_cndmask_b32 v{t0}, v{t2}, v{t0}, vcc")
        k.vmem(f"buffer_load_dword v{dummy}, v{t0}, s[{srd_}:{srd_+3}], s{sbase} offen", "touch")

def magic2(d, nmax):
    for sh in range(0, 12):
        m = (1 << (32 + sh)) // d + 1
        if m >= (1 << 32): continue
        if all((x * m) >> (32 + sh) == x // d for x in range(0, nmax, 1)):
            return m, sh
    raise ValueError

def dma(k, m0expr, voff, srd_, soff, tag=None):
    for l in m0expr: k.e(l)
    k.e("s_nop 0")
    k.vmem(f"buffer_load_dwordx4 v{voff}, s[{srd_}:{srd_+3}], {soff} offen{os.environ.get('PLD', ' nt')} lds", tag)

CSQP = 0xEA0000
CSP = 0xE40000
FSH, GSH = 7, 10
FLG = 0xF00000
FLG_LAYER = 256 << GSH
F_A, F_B, F_C, F_D = 0, 32 << GSH, 64 << GSH, 160 << GSH
FLP = FLG + 2*FLG_LAYER
J_WQ, J_X0, J_WO, J_W1, J_W2, J_END = 0, 56, 120, 184, 328, 472

def gemm_loop(k, nks, order, acc, bbuf, aslot, bread, ks0, nm, after=None, pre=None, BD=1, atag=None, gate=None):
    atag = atag or (lambda ks: ("a", ks0 + ks))
    nb = BD + 1
    for d in range(min(BD, nks)):
        if gate: gate(d)
        for mi in range(nm): bread(d, mi, bbuf(d % nb, mi))
    if pre: pre()
    for ks in range(nks):
        late = gate is not None and ks + BD < nks and gate(ks + BD, True)
        if ks + BD < nks and not late:
            for mi in range(nm): bread(ks + BD, mi, bbuf((ks + BD) % nb, mi))
        k.wait(vm=[atag(ks)], lg=[("b", ks)])
        for (mi, t) in order:
            c = "0" if ks == 0 else vr(acc(mi, t), 4)
            k.e(f"v_mfma_f32_16x16x32_bf16 {vr(acc(mi,t),4)}, {vr(aslot(ks0+ks,t),4)}, {vr(bbuf(ks % nb,mi),4)}, {c}")
        if after: after(ks)
        if late:
            gate(ks + BD)
            for mi in range(nm): bread(ks + BD, mi, bbuf((ks + BD) % nb, mi))


def gemm_loop_sp(k, nks, order, acc, bbuf, aslot, bread, ks0, nm, after=None, gate=None):
    if gate: gate(0)
    for mi in range(nm): bread(0, mi, bbuf(0, mi))
    pend = []
    for ks in range(nks):
        late = gate is not None and ks + 1 < nks and gate(ks + 1, True)
        k.wait(vm=[("a", ks0 + ks)], lg=[("b", ks)])
        fill = []
        if ks + 1 < nks and not late:
            fill += [("b", mi) for mi in range(nm)]
        fill2 = [("c", c) for c in pend]; pend = []
        seq = []
        while fill or fill2:
            if fill: seq.append(fill.pop(0))
            if fill2: seq.append(fill2.pop(0))
        n = len(order)
        pos = {}
        for j, it in enumerate(seq):
            pos.setdefault(min(n-1, (j * (n-1)) // max(1, len(seq))), []).append(it)
        for j, (mi, t) in enumerate(order):
            c = "0" if ks == 0 else vr(acc(mi, t), 4)
            k.e(f"v_mfma_f32_16x16x32_bf16 {vr(acc(mi,t),4)}, {vr(aslot(ks0+ks,t),4)}, {vr(bbuf(ks % 2,mi),4)}, {c}")
            for kind, x in pos.get(j, []):
                if kind == "b": bread(ks + 1, x, bbuf((ks + 1) % 2, x))
                else:
                    k.lines += x[0]; k.vm += x[1]
        if after:
            l0 = len(k.lines); v0 = len(k.vm)
            after(ks)
            lines = k.lines[l0:]; tags = k.vm[v0:]
            del k.lines[l0:]; del k.vm[v0:]
            cur = []; ti = 0
            for l in lines:
                cur.append(l)
                if "buffer_load" in l:
                    pend.append([cur, [tags[ti]]]); ti += 1; cur = []
            if cur:
                if pend: pend[-1][0] += cur
                else: k.lines += cur
            if late or ks == nks - 1:
                for x in pend:
                    k.lines += x[0]; k.vm += x[1]
                pend = []
        if late:
            gate(ks + 1)
            for mi in range(nm): bread(ks + 1, mi, bbuf((ks + 1) % 2, mi))

FS = os.environ.get("FS", "")
CPA = ENV("CPA", 0)
GX = ENV("GX", 1)
GXC = ENV("GXC", 1)
assert ENV("ROT", 0) == 0
A_HL = 73728
A_QK = 92160
QP, QPL = 48, 3968
TSTR = 4 * QPL
A_VP = A_QK + 2*TSTR
VPP, VPL = 80, 6784
A_ST = A_VP + 4*VPL
A_PM, A_PH = A_QK, A_QK + 6144
B_XB = 73728
C_HB = 73728
C_CS = 155648
C_B1 = C_CS + 3072
A_CQ = C_B1 + 2048
C_ST = 147456
A_PQ = A_QK + 12288
C_PM = 98304
A_SCR = A_ST + 640
CNT = 163328
LDS_TOTAL = 163840
CA_ST, CA_DONE, CB_DONE, CC_ST, CC_W1, CC_H0, CC_DONE, CD_DONE, CC_K2, CD_GO, CA_GO, CA_W, CA_X, CC_X = 0, 1, 2, 3, 4, 5, 8, 11, 14, 16, 20, 15, 24, 28
S_CL, S_WL, S_EARLY = 60, 61, 57
WSZ = 0x5000000
SXC = MAP["ffn"]

S_W, S_LAY, S_XIN, S_O, S_X1, S_P, S_FL, S_R, S_S, S_RC, S_SC, S_IDX, S_CNT, S_ROT, S_ROT2 = 3, 22, 23, 24, 25, 26, 28, 29, 30, 31, 32, 33, 27, 34, 35
WS = "s[8:11]"
WSC = os.environ.get("WSC", " sc1")
WREL = ENV("WREL", 0)
WST = "" if WREL else " sc1"
FLQ = FLP + 65536
S_SLOT, S_JOB, S_LB = 56, 51, 50
CP_WQ = 27
CP_LD, CP_DONE = 64, 66
V_L, V_L16, V_G, V_M = 1, 2, 3, 4
AR, EX = 88, 160

def lds_signal(k, slot, vt, byclass=False):
    k.e(f"s_add_u32 s36, s{S_CNT}, {4*slot}")
    if byclass:
        k.e(f"s_lshl_b32 s37, s{S_CL}, 2"); k.e("s_add_u32 s36, s36, s37")
    k.e(f"v_mov_b32 v{vt}, s36"); k.e(f"v_mov_b32 v{vt+1}, 1")
    k.e("s_mov_b64 exec, 1")
    k.lds(f"ds_add_u32 v{vt}, v{vt+1}", "cnt")
    k.e("s_mov_b64 exec, -1")

def lds_wait(k, slot, n, vt, sleep=2, byclass=False):
    lab = k.newlabel("L_lw")
    k.e(f"s_add_u32 s36, s{S_CNT}, {4*slot}")
    if byclass:
        k.e(f"s_lshl_b32 s37, s{S_CL}, 2"); k.e("s_add_u32 s36, s36, s37")
    k.e(f"v_mov_b32 v{vt}, s36")
    k.label(lab)
    k.e(f"ds_read_b32 v{vt+1}, v{vt}")
    k.e("s_waitcnt lgkmcnt(0)"); k.lg = []
    k.e(f"v_readfirstlane_b32 s36, v{vt+1}")
    k.e("s_nop 3")
    k.e(f"s_cmp_ge_u32 s36, {n}"); k.e(f"s_cbranch_scc1 {lab}_ok")
    k.e(f"s_sleep {sleep}")
    k.e(f"s_branch {lab}")
    k.label(f"{lab}_ok")

def SC(name):
    return "" if name in os.environ.get("NOSC", "").split(",") else " sc1"
def publish(k, slot, n, fbase, s_r, s_s, vt, byclass=False, sc=" sc1", repl=False):
    lab = k.newlabel("L_pub")
    k.e(f"s_add_u32 s36, s{S_CNT}, {4*slot}")
    if s_r is not None:
        k.e(f"s_lshl_b32 s37, s{s_r}, {GSH}"); k.e(f"s_lshl_b32 s38, s{s_s}, {FSH}"); k.e("s_add_u32 s37, s37, s38")
        k.e(f"s_add_u32 s37, s37, s{S_FL}"); k.e(f"s_add_u32 s37, s37, {fbase}")
    else:
        k.e(f"s_lshl_b32 s37, s{s_s}, {FSH}"); k.e(f"s_add_u32 s37, s37, 0x{fbase:x}")
        k.e(f"s_lshl_b32 s38, s{S_SLOT}, 2"); k.e("s_add_u32 s36, s36, s38")
    if byclass:
        k.e(f"s_lshl_b32 s38, s{S_CL}, 2"); k.e("s_add_u32 s36, s36, s38")
        k.e(f"s_lshl_b32 s38, s{S_CL}, {GSH+5}"); k.e("s_add_u32 s37, s37, s38")
    k.e("s_waitcnt vmcnt(0)"); k.vm = []
    k.e(f"v_mov_b32 v{vt}, s36"); k.e(f"v_mov_b32 v{vt+1}, 1")
    k.e("s_mov_b64 exec, 1")
    k.e(f"ds_add_rtn_u32 v{vt}, v{vt}, v{vt+1}")
    k.e("s_waitcnt lgkmcnt(0)"); k.lg = []
    k.e(f"v_readfirstlane_b32 s36, v{vt}")
    if repl: k.e("s_mov_b64 exec, 0xff")
    k.e(f"v_mov_b32 v{vt}, s62"); k.e(f"v_mov_b32 v{vt+1}, s63"); k.e(f"v_lshlrev_b32 v{vt+2}, 13, v{V_L}")
    k.e("s_nop 0")
    k.e(f"s_cmp_lg_u32 s36, {n-1}"); k.e(f"s_cbranch_scc1 {lab}")
    k.e(f"buffer_store_dwordx2 {vr(vt,2)}, v{vt+2}, {WS}, s37 offen{sc}")
    k.label(lab)
    k.e("s_mov_b64 exec, -1")

def poll(k, voff, soff, mask, vt, slp=None):
    assert vt % 2 == 0
    lab = k.newlabel("L_aw")
    k.e(f"s_mov_b32 exec_lo, 0x{mask & 0xffffffff:x}"); k.e(f"s_mov_b32 exec_hi, 0x{mask >> 32:x}")
    k.e("s_mov_b32 s38, 0x20000")
    k.label(lab)
    k.e(f"v_mov_b32 v{vt}, 0"); k.e(f"v_mov_b32 v{vt+1}, 0")
    k.e(f"buffer_atomic_or_x2 {vr(vt,2)}, v{voff}, {WS}, s{soff} offen sc0 sc1")
    k.e("s_waitcnt vmcnt(0)"); k.vm = []
    k.e(f"v_cmp_ne_u64 vcc, s[62:63], {vr(vt,2)}")
    k.e("s_sub_u32 s38, s38, 1")
    k.e("s_nop 3")
    k.e(f"s_cbranch_vccz {lab}_ok")
    k.e("s_cmp_eq_u32 s38, 0"); k.e(f"s_cbranch_scc1 {lab}_ok")
    k.e(f"s_sleep {ENV('PSLEEP', 3) if slp is None else slp}")
    k.e(f"s_branch {lab}")
    k.label(f"{lab}_ok")
    k.e("s_mov_b64 exec, -1")

def await_flags(k, fbase, s_r, vt, own=None):
    lab = k.newlabel("L_af")
    k.e(f"s_cmp_lg_u32 s{S_W}, {ENV('POLLW', 0)}"); k.e(f"s_cbranch_scc1 {lab}")
    lds_wait(k, own[0], own[1], vt, 1)
    k.e(f"s_lshl_b32 s37, s{s_r}, {GSH}"); k.e(f"s_add_u32 s37, s37, s{S_FL}"); k.e(f"s_add_u32 s37, s37, {fbase}")
    k.e(f"v_lshlrev_b32 v{vt}, {FSH}, v{V_L}")
    sv = k.snapshot()
    poll(k, vt, 37, 0xff, vt+2)
    k.restore(sv)
    k.label(lab)
    k.e("s_barrier")

def stats_acc(k, r4, va, first, sones):
    for j in range(4):
        c0 = "0" if (first and j == 0) else f"v{va}"
        c1 = "0" if (first and j == 0) else f"v{va+1}"
        k.e(f"v_dot2_f32_bf16 v{va}, v{r4+j}, s{sones}, {c0}")
        k.e(f"v_dot2_f32_bf16 v{va+1}, v{r4+j}, v{r4+j}, {c1}")

def stats_combine(k, src, R, vt, dst, halo, NP=12):
    k.e(f"v_lshlrev_b32 v{vt}, 3, v{V_L}"); k.e(f"v_add_u32 v{vt+1}, {src}, v{vt}")
    for p in range(NP): k.e(f"ds_read_b64 {vr(R+2*p,2)}, v{vt+1} offset:{512*p}")
    k.e("s_waitcnt lgkmcnt(0)")
    n = NP
    while n > 1:
        h = n // 2
        for j in range(h):
            k.e(f"v_add_f32 v{R+2*j}, v{R+2*j}, v{R+2*(n-1-j)}"); k.e(f"v_add_f32 v{R+2*j+1}, v{R+2*j+1}, v{R+2*(n-1-j)+1}")
        n -= h
    if halo:
        for op in ("v_permlane32_swap_b32", "v_permlane16_swap_b32"):
            k.e(f"v_mov_b32 v{R+2}, v{R}"); k.e(f"v_mov_b32 v{R+3}, v{R+1}")
            k.e("s_nop 1")
            k.e(f"{op} v{R}, v{R+2}"); k.e(f"{op} v{R+1}, v{R+3}")
            k.e("s_nop 1")
            k.e(f"v_add_f32 v{R}, v{R}, v{R+2}"); k.e(f"v_add_f32 v{R+1}, v{R+1}, v{R+3}")
        k.e(f"v_lshlrev_b32 v{vt}, 3, v{V_M}")
    k.e(f"v_mul_f32 v{R}, {f32(1/576)}, v{R}")
    k.e(f"v_mul_f32 v{R+1}, {f32(1/576)}, v{R+1}")
    k.e(f"v_fma_f32 v{R+1}, -v{R}, v{R}, v{R+1}")
    k.e(f"v_max_f32 v{R+1}, 0, v{R+1}")
    k.e(f"v_add_f32 v{R+1}, {f32(1e-5)}, v{R+1}")
    k.e(f"v_rsq_f32 v{R+2}, v{R+1}")
    k.e(f"v_add_u32 v{vt}, {dst}, v{vt}")
    k.e(f"v_mul_f32 v{R+3}, v{R}, v{R+2}")
    k.e(f"v_sub_f32 v{R+3}, 0, v{R+3}")
    k.e(f"ds_write_b64 v{vt}, {vr(R+2,2)}")
    k.e("s_waitcnt lgkmcnt(0)")

A_TILES = [9, 11, 4, 6, 0, 2, 13, 8, 0, 0, 0, 0]
def a_tile_setup(k):
    tab = sum(t << (4*i) for i, t in enumerate(A_TILES))
    k.e(f"s_mov_b32 s40, 0x{tab & 0xffffffff:x}"); k.e(f"s_mov_b32 s41, 0x{tab >> 32:x}")
    k.e(f"s_lshl_b32 s42, s{S_W}, 2"); k.e("s_lshr_b64 s[40:41], s[40:41], s42"); k.e("s_and_b32 s40, s40, 15")
    k.e(f"s_mul_i32 s41, s{S_S}, 14"); k.e("s_add_u32 s41, s41, s40")
    k.e(f"s_mul_i32 s42, s{S_W}, {2*6912}"); k.e(f"s_mul_i32 s43, s{S_S}, 288"); k.e("s_add_u32 s42, s42, s43"); k.e(f"s_add_u32 s42, s42, 0x{CSQP:x}")
    k.e("s_mul_i32 s41, s41, %d" % (18*1024))
    if WQF: k.e(f"s_add_u32 s41, s41, 0x{WQF:x}")
DA = ENV("DA", 6)
def a_load1(k, i):
    k.e(f"s_add_u32 s43, s41, {i*1024}")
    k.vmem(f"buffer_load_dwordx4 {vr(AR+4*i,4)}, v{V_L16}, {WS}, s43 offen{WSC}", ("a", i))
def a_load2(k, i):
    k.e(f"s_add_u32 s43, s41, {i*1024}"); k.e(f"s_add_u32 s44, s41, {(18+i)*1024}")
    k.vmem(f"buffer_load_dwordx4 {vr(AR+8*(i%9),4)}, v{V_L16}, {WS}, s43 offen{WSC}", ("a0", i))
    k.vmem(f"buffer_load_dwordx4 {vr(AR+8*(i%9)+4,4)}, v{V_L16}, {WS}, s44 offen{WSC}", ("a", i))
def a_prefetch(k, lo1, hi1, lo2, hi2, cs):
    lab = k.newlabel("L_apf")
    sv = k.snapshot()
    if cs:
        k.e(f"s_cmp_lt_u32 s{S_W}, 9"); k.e("s_cselect_b32 s43, 0, 0x70000000"); k.e(f"s_cmp_eq_u32 s{S_LAY}, 0"); k.e("s_cselect_b32 s43, s43, 0x70000000")
        divmod_const(k, 6, None, V_L, 18, 64, 44)
        k.e(f"v_mul_u32_u24 v6, 0x{2304-288:x}, v6"); k.e(f"v_add_u32 v6, v6, v{V_L16}")
        k.e(f"v_or_b32 v6, s43, v6")
        k.e(f"s_add_u32 s43, s42, 6912")
        k.e(f"buffer_load_dwordx4 {vr(EX,4)}, v6, {WS}, s42 offen{WSC}")
        k.e(f"buffer_load_dwordx4 {vr(EX+4,4)}, v6, {WS}, s43 offen{WSC}")
    k.e(f"s_cmp_lt_u32 s{S_W}, 6"); k.e(f"s_cbranch_scc1 {lab}_d")
    k.e(f"s_cmp_ge_u32 s{S_W}, 8"); k.e(f"s_cbranch_scc1 {lab}_f")
    for i in range(lo1, hi1): a_load1(k, i)
    k.e(f"s_branch {lab}_e")
    k.label(f"{lab}_f")
    for i in range(lo1, min(hi1, 9)): b_load(k, i)
    k.e(f"s_branch {lab}_e")
    k.label(f"{lab}_d")
    for i in range(lo2, hi2): a_load2(k, i)
    k.label(f"{lab}_e")
    k.restore(sv)

def b_setup(k):
    k.e(f"s_min_u32 s59, s{S_W}, 9")
    k.e(f"s_cmp_ge_u32 s59, 5"); k.e("s_cselect_b32 s45, 1, 0"); k.e("s_mul_i32 s46, s45, 5"); k.e(f"s_sub_u32 s46, s59, s46")
    k.e(f"s_mul_i32 s58, s{S_S}, 5"); k.e("s_add_u32 s58, s58, s46"); k.e("s_mul_i32 s58, s58, %d" % (18*1024))
    k.e("s_mul_i32 s59, s45, 9216"); k.e("s_add_u32 s58, s58, s59"); k.e(f"s_add_u32 s58, s58, 0x{WOF:x}")
def b_load(k, i):
    if i and i % 4 == 0: k.e(f"s_add_u32 s58, s58, 4096")
    k.vmem(f"buffer_load_dwordx4 {vr(124+4*i,4)}, v{V_L16}, {WS}, s58 offen offset:{(i%4)*1024}{WSC}", ("wb", i))

def c_stream_init(k):
    k.e(f"s_mul_i32 s47, s{S_SC}, 12"); k.e(f"s_add_u32 s47, s47, s{S_W}"); k.e("s_mul_i32 s47, s47, %d" % (36*3072)); k.e(f"s_add_u32 s47, s47, 0x{WFF:x}")
    k.e(f"s_mul_i32 s48, s{S_ROT}, 3072"); k.e("s_add_u32 s48, s48, s47")
    k.e("s_add_u32 s49, s47, %d" % (18*3072))
def c_aload(k, i, tg="a"):
    if i >= 18 and (i - 18) % 6 == 0:
        k.e("s_mov_b32 s47, s49"); k.e(f"s_mul_i32 s48, s{S_ROT2}, 3072"); k.e("s_add_u32 s48, s48, s47"); k.e("s_add_u32 s49, s47, %d" % (6*3072))
    slot = i % 6
    for t in range(3):
        k.vmem(f"buffer_load_dwordx4 {vr(AR+12*slot+4*t,4)}, v{V_L16}, {WS}, s48 offen offset:{1024*t}{WSC}", (tg, i) if t == 2 else (tg + "_", i))
    k.e("s_add_u32 s48, s48, 3072"); k.e("s_cmp_eq_u32 s48, s49"); k.e("s_cselect_b32 s48, s47, s48")

def touch_w(k, swidx, nwaves, t, dummy):
    G = ENV("TGRAN", 128)
    total = SXC * 12 * 36 * 3072 // G
    ni = -(-total // (32 * nwaves * 64))
    ng = 8 // SXC
    k.e(f"s_and_b32 s36, s2, {ng-1}"); k.e(f"s_mul_i32 s36, s36, {SXC*12*36*3072}"); k.e(f"s_add_u32 s36, s36, 0x{WFF:x}")
    k.e("s_lshr_b32 s37, s2, 3"); k.e(f"s_mul_i32 s37, s37, {nwaves}"); k.e(f"s_add_u32 s37, s37, s{swidx}"); k.e(f"s_mul_i32 s37, s37, {ni*64}")
    k.e(f"s_mov_b32 s38, {total}")
    for j in range(ni):
        k.e(f"v_add_u32 v{t}, s37, v{V_L}")
        if j: k.e(f"v_add_u32 v{t}, {64*j}, v{t}")
        k.e(f"v_min_u32 v{t}, s38, v{t}")
        k.e(f"v_lshlrev_b32 v{t}, {G.bit_length()-1}, v{t}")
        k.vmem(f"buffer_load_dword v{dummy}, v{t}, {WS}, s36 offen", "touch")

def phase_A(k):
    k.c("================ phase A")
    ACC, BB = 8, 28
    VB1, VB2, VH = 5, 6, 7
    if FS in ("", "A"): stamp(k, 1)
    k.e(f"s_mul_i32 s39, s{S_R}, {TILEB}"); k.e(f"s_add_u32 s39, s39, s{S_XIN}")
    k.e(f"s_mul_i32 s36, s{S_W}, 6144"); k.e("s_add_u32 s37, s39, s36"); k.e("s_add_u32 s38, s37, 4096")
    k.vm = []
    for i in range(6):
        k.vmem(f"buffer_load_dwordx4 {vr(8+4*i,4)}, v{V_L16}, {WS}, s{37 if i < 4 else 38} offen offset:{(i%4)*1024} sc1", ("x", i))
    k.e(f"v_lshlrev_b32 v{VB1}, 10, v{V_G}"); k.e(f"v_lshl_add_u32 v{VB1}, v{V_M}, 4, v{VB1}")
    k.e(f"s_cmp_eq_u32 s{S_R}, 0"); k.e("s_cselect_b32 s38, 0x70000000, 0")
    k.e(f"v_add_u32 v{VH}, s38, v{VB1}")
    k.e(f"s_mul_i32 s50, s{S_CL}, 6"); k.e(f"s_add_u32 s50, s50, s{S_WL}")
    k.e("s_lshl_b32 s37, s50, 12"); k.e("s_add_u32 s37, s37, s39"); k.e(f"s_sub_u32 s37, s37, {TILEB-768}")
    k.vmem(f"buffer_load_dwordx4 {vr(32,4)}, v{VH}, {WS}, s37 offen sc1", ("x", 6))
    k.e(f"s_cmp_ge_u32 s{S_WL}, 2"); k.e("s_cselect_b32 s38, 0x70000000, 0"); k.e(f"v_or_b32 v{VB2}, s38, v{VH}")
    k.e(f"s_add_u32 s37, s37, {4*4096}")
    k.vmem(f"buffer_load_dwordx4 {vr(36,4)}, v{VB2}, {WS}, s37 offen sc1", ("x", 7))
    a_tile_setup(k)
    PA = 0
    E1, E2 = 18, 9
    b_setup(k)
    c_stream_init(k)
    k.e(f"s_cmp_lg_u32 s{S_LAY}, 0"); k.e("s_cbranch_scc1 L_A_np")
    k.e(f"s_cmp_lg_u32 s{S_W}, 9"); k.e("s_cbranch_scc1 L_A_np")
    k.e("s_and_b32 s37, s2, 7"); k.e("s_lshl_b32 s37, s37, 6"); k.e(f"s_add_u32 s37, s37, {(FLQ-FLP)//128}"); k.e(f"v_add_u32 v44, s37, v{V_L}")
    k.e(f"s_add_u32 s37, s{S_S}, {J_WO - 8*54}"); k.e(f"v_lshlrev_b32 v45, 3, v{V_L}"); k.e("v_add_u32 v45, s37, v45")
    k.e(f"v_cmp_gt_u32 vcc, 54, v{V_L}")
    k.e("s_nop 1")
    k.e("v_cndmask_b32 v44, v45, v44, vcc"); k.e("v_lshlrev_b32 v44, 7, v44")
    k.e(f"s_mov_b32 s37, 0x{FLP:x}")
    sv = k.snapshot()
    poll(k, 44, 37, (1 << 62) - 1, 46, ENV('PS2', 3))
    k.restore(sv)
    k.e("s_mov_b32 s57, s36")
    lds_signal(k, CP_WQ - 0, 44)
    k.e("s_mov_b32 s36, s57")
    k.lg = []
    k.label("L_A_np")
    if ENV("GA", 0):
        k.e(f"s_cmp_eq_u32 s{S_LAY}, 0"); k.e("s_cbranch_scc1 L_A_k2ok")
        k.e("s_mov_b32 s57, s36")
        lds_wait(k, CC_K2 - 32, 12, 44, 4)
        k.e("s_mov_b32 s36, s57")
        k.label("L_A_k2ok")
    k.e("s_mov_b32 s38, 0x3f803f80")
    k.e(f"v_add_u32 v{VB2}, s36, v{V_L16}")
    for i in range(8):
        k.e(f"s_waitcnt vmcnt({7-i})")
        if i < 6:
            k.e(f"ds_write_b128 v{VB2}, {vr(8+4*i,4)} offset:{1024*i}")
            stats_acc(k, 8+4*i, 40, i == 0, 38)
        else:
            if i == 6:
                k.e("s_lshl_b32 s37, s50, 10"); k.e(f"s_add_u32 s37, s37, {A_HL}"); k.e(f"v_add_u32 v{VB2}, s37, v{V_L16}")
                k.e(f"ds_write_b128 v{VB2}, {vr(8+4*i,4)}")
            stats_acc(k, 8+4*i, 42, i == 6, 38)
    def late(fn): fn()
    k.e(f"s_cmp_ge_u32 s{S_WL}, 2"); k.e("s_cbranch_scc1 L_A_xs")
    k.e(f"ds_write_b128 v{VB2}, {vr(36,4)} offset:4096")
    k.label("L_A_xs")
    k.e(f"s_lshl_b32 s37, s{S_W}, 9"); k.e(f"v_lshlrev_b32 v{VB2}, 3, v{V_L}"); k.e(f"v_add_u32 v{VB2}, s37, v{VB2}"); k.e(f"v_add_u32 v{VB2}, {A_PM}, v{VB2}")
    k.e(f"ds_write_b64 v{VB2}, v[40:41]"); k.e(f"ds_write_b64 v{VB2}, v[42:43] offset:6144")
    k.e("s_waitcnt lgkmcnt(0)")
    if FS in ("", "A"): stamp(k, 2)
    if GX:
        lds_signal(k, CA_X, 44, byclass=True)
        k.e("s_waitcnt lgkmcnt(0)")
    else:
        k.e("s_barrier")
    k.lg = []
    k.e(f"s_cmp_lg_u32 s{S_LAY}, 0"); k.e("s_cbranch_scc1 L_A_wqok")
    lds_wait(k, CP_WQ, 1, 44)
    k.label("L_A_wqok")
    def gateA(ks, query=False):
        if not GX or ks % 6: return False
        if query: return True
        lds_wait(k, CA_X + ks//6, 4, EX)
    if FS == "G": stamp(k, 2)
    k.e(f"s_cmp_ge_u32 s{S_W}, 8"); k.e("s_cbranch_scc1 L_A_free")
    k.e(f"v_add_u32 v{VB2}, 49152, v{VB1}")
    k.e(f"v_add_u32 v{VH}, {A_HL}, v{V_L16}")
    def mk_bread(mts):
        def bread(ks, mi, reg):
            mt = mts[mi]
            if mt == 0:
                k.lds(f"ds_read_b128 {vr(reg,4)}, v{VH} offset:{ks*1024}", ("b", ks))
            else:
                off = ks*4096 + (mt-1)*256; base = VB1
                if off >= 49152: off -= 49152; base = VB2
                k.lds(f"ds_read_b128 {vr(reg,4)}, v{base} offset:{off}", ("b", ks))
        return bread
    def epi_stats(mts, T):
        sa = T + 5; ST = T + 6
        if FS == "G": stamp(k, 4)
        lds_wait(k, CA_ST, 3, T)
        k.e(f"v_lshlrev_b32 v{sa}, 3, v{V_M}"); k.e(f"v_add_u32 v{sa}, {A_ST}, v{sa}")
        for mi, mt in enumerate(mts):
            k.lds(f"ds_read_b64 {vr(ST+2*mi,2)}, v{sa} offset:{mt*128}", "str")
    def epilogue(tadd, mts, accf, csr, vpath, T):
        a0, a1, p, H, t, sa = T, T+1, T+2, T+3, T+4, T+5
        ST = T + 6; U = T + 16
        k.e(f"v_lshlrev_b32 v{p}, 2, v{V_G}")
        k.e(f"s_add_u32 s36, s40, {tadd}"); k.e("s_lshl_b32 s36, s36, 4")
        k.e(f"v_add_u32 v{p}, s36, v{p}")
        k.e(f"s_mov_b32 s36, {A_CQ}"); k.e(f"v_lshl_add_u32 v{sa}, v{p}, 2, s36")
        k.lds(f"ds_read_b128 {vr(csr,4)}, v{sa}", "str")
        for a in (a0, a1):
            divmod_const(k, H, None, p, 18, 232, 36)
            if not vpath:
                k.e(f"s_movk_i32 s36, {QPL-36}")
                k.e(f"v_mul_u32_u24 v{a}, s36, v{H}")
                k.e(f"v_lshl_add_u32 v{a}, v{p}, 1, v{a}")
                k.e(f"v_mul_u32_u24 v{t}, {QP}, v{V_M}")
                k.e(f"s_mov_b32 s36, {A_QK}")
            else:
                k.e(f"s_movk_i32 s36, {VPL-72}")
                k.e(f"v_mul_u32_u24 v{a}, s36, v{H}")
                k.e(f"v_lshl_add_u32 v{a}, v{p}, 2, v{a}")
                k.e(f"v_mul_u32_u24 v{t}, 0x{VPP:x}, v{V_M}")
                k.e(f"s_mov_b32 s36, {A_VP - 8*VPL}")
            k.e(f"v_add3_u32 v{a}, v{a}, v{t}, s36")
            if a == a0: k.e(f"v_add_u32 v{p}, 2, v{p}")
        if vpath:
            k.e("s_mov_b32 s36, 0x05040100"); k.e("s_mov_b32 s37, 0x07060302")
        k.wait(lg=["str"])
        for mi, mt in enumerate(mts):
            r = accf(mi)
            for j in range(4):
                k.e(f"v_mul_f32 v{r+j}, v{r+j}, v{ST+2*mi}")
                k.e(f"v_fmac_f32 v{r+j}, v{ST+2*mi+1}, v{csr+j}")
            k.e(f"v_cvt_pk_bf16_f32 v{r}, v{r}, v{r+1}")
            k.e(f"v_cvt_pk_bf16_f32 v{r+1}, v{r+2}, v{r+3}")
            if not vpath:
                k.lds(f"ds_write_b32 v{a0}, v{r} offset:{mt*16*QP}", "qw")
                k.lds(f"ds_write_b32 v{a1}, v{r+1} offset:{mt*16*QP}", "qw")
        if vpath:
            for mi, mt in enumerate(mts):
                r = accf(mi); u = U + 4*(mi & 1)
                if mi:
                    rp = accf(mi-1)
                    k.e(f"v_mov_b32_dpp v{r+2}, v{rp} row_shl:14 row_mask:0xf bank_mask:0xf")
                    k.e(f"v_mov_b32_dpp v{r+3}, v{rp+1} row_shl:14 row_mask:0xf bank_mask:0xf")
                k.e(f"v_mov_b32_dpp v{r+2}, v{r} row_shr:2 row_mask:0xf bank_mask:0xf")
                k.e(f"v_mov_b32_dpp v{r+3}, v{r+1} row_shr:2 row_mask:0xf bank_mask:0xf")
                k.e(f"v_perm_b32 v{u}, v{r+2}, v{r}, s36"); k.e(f"v_perm_b32 v{u+1}, v{r+2}, v{r}, s37")
                k.e(f"v_perm_b32 v{u+2}, v{r+3}, v{r+1}, s36"); k.e(f"v_perm_b32 v{u+3}, v{r+3}, v{r+1}, s37")
                k.lds(f"ds_write_b64 v{a0}, {vr(u,2)} offset:{mt*16*VPP}", "qw")
                k.lds(f"ds_write_b64 v{a1}, {vr(u+2,2)} offset:{mt*16*VPP}", "qw")
    def pair_path(mts, accb, bb, bstride, BD):
        nm = len(mts)
        k.lg = []
        k.vm = []
        DA2 = ENV("DA2", 5)
        st = dict(c=0, b=0, n=PA//2)
        def ld(i):
            if i < E2: late(lambda: a_load2(k, i))
            else: a_load2(k, i)
        def pre():
            while st["n"] < DA2: ld(st["n"]); st["n"] += 1
        def after(ks):
            if FS == "G" and ks == 8: stamp(k, 3)
            while st["n"] < 18 and st["n"] <= ks + (DA2 if st["n"] < E2 else max(DA2, E2)):
                ld(st["n"]); st["n"] += 1
            if ks >= 9:
                free = 8*(ks - 8)
                while st["c"] < CPA and 12*(st["c"]+1) <= free:
                    c_aload(k, st["c"], "c"); st["c"] += 1
                while st["b"] < 9 and 36 + 4*(st["b"]+1) <= free:
                    b_load(k, st["b"]); st["b"] += 1
        pre()
        gemm_loop(k, 18, [(mi, t) for mi in range(nm) for t in range(2)], lambda mi, t: accb + 4*nm*t + 4*mi, lambda par, mi: bb + bstride*par + 4*mi,
                  lambda i_, t: AR + 8*(i_ % 9) + 4*t, mk_bread(mts), 0, nm, after, None, BD=BD, gate=gateA)
        epi_stats(mts, bb)
    m5 = [0, 1, 2, 3, 4]; m4 = [1, 2, 3, 4]
    k.e(f"s_cmp_ge_u32 s{S_W}, 6"); k.e("s_cbranch_scc1 L_A_single")
    k.e(f"s_cmp_ge_u32 s{S_W}, 4"); k.e("s_cbranch_scc1 L_A_qpair")
    pair_path(m5, 8, 48, 20, 1)
    sv = k.snapshot()
    k.e(f"s_cmp_lt_u32 s{S_W}, 2"); k.e("s_cbranch_scc1 L_A_vpair")
    epilogue(0, m5, lambda mi: 8 + 4*mi, EX, False, 48)
    epilogue(1, m5, lambda mi: 28 + 4*mi, EX+4, False, 48)
    k.e("s_branch L_A_att")
    k.label("L_A_vpair")
    k.restore(sv)
    epilogue(0, m5, lambda mi: 8 + 4*mi, EX, True, 48)
    epilogue(1, m5, lambda mi: 28 + 4*mi, EX+4, True, 48)
    k.e("s_branch L_A_att")
    k.label("L_A_qpair")
    pair_path(m4, 8, 40, 16, 2)
    epilogue(0, m4, lambda mi: 8 + 4*mi, EX, False, 40)
    epilogue(1, m4, lambda mi: 24 + 4*mi, EX+4, False, 40)
    k.e("s_branch L_A_att")
    k.label("L_A_single")
    k.lg = []
    k.vm = []
    def ld1(i):
        if i < E1: late(lambda: a_load1(k, i))
        else: a_load1(k, i)
    def pre1():
        for i in range(PA, DA): ld1(i)
    def after1(ks):
        if ks + DA < 18: ld1(ks + DA)
        if ks in (9, 11, 13) and (ks - 9)//2 < CPA: c_aload(k, (ks - 9)//2, "c")
        if ks >= 9: b_load(k, ks - 9)
    pre1()
    gemm_loop(k, 18, [(mi, 0) for mi in range(5)], lambda mi, t: ACC + 4*mi, lambda par, mi: BB + 20*par + 4*mi,
              lambda i_, t: AR + 4*i_, mk_bread(m5), 0, 5, after1, None, BD=2, gate=gateA)
    epi_stats(m5, 28)
    sv = k.snapshot()
    k.e("s_cmp_ge_u32 s40, 9"); k.e("s_cbranch_scc1 L_A_vp")
    epilogue(0, m5, lambda mi: ACC + 4*mi, EX, False, 28)
    k.e("s_branch L_A_att")
    k.label("L_A_vp")
    k.restore(sv)
    k.e("s_mov_b32 exec_hi, 0")
    k.e("s_nop 4")
    epilogue(0, m5, lambda mi: ACC + 4*mi, EX, True, 28)
    k.e("s_mov_b64 exec, -1")
    k.e("s_branch L_A_att")
    k.label("L_A_free")
    k.e(f"s_cmp_eq_u32 s{S_W}, 9"); k.e("s_cbranch_scc1 L_A_fr2")
    if GX:
        for c in range(3): lds_wait(k, CA_X + c, 4, 8)
    k.e(f"s_cmp_eq_u32 s{S_W}, 8"); k.e("s_cbranch_scc1 L_A_combq")
    k.e(f"s_cmp_eq_u32 s{S_W}, 11"); k.e("s_cbranch_scc1 L_A_combh")
    stats_combine(k, A_PM, 8, VB2, A_ST + 128, False)
    k.e("s_branch L_A_combd")
    k.label("L_A_combh")
    stats_combine(k, A_PH, 8, VB2, A_ST, True)
    k.e("s_branch L_A_combd")
    k.label("L_A_combq")
    k.e(f"s_cmp_lg_u32 s{S_LAY}, 0"); k.e("s_cbranch_scc1 L_A_combd")
    divmod_const(k, 6, None, V_L, 18, 64, 44)
    k.e(f"v_mul_u32_u24 v6, 0x{2304-288:x}, v6"); k.e(f"v_add_u32 v6, v6, v{V_L16}")
    k.e(f"s_mul_i32 s42, s{S_S}, 288"); k.e(f"s_add_u32 s42, s42, 0x{CSQP:x}")
    for p in range(18):
        k.e(f"buffer_load_dwordx4 {vr(8+4*p,4)}, v6, {WS}, s42 offen{WSC}")
        if p < 17: k.e("s_add_u32 s42, s42, 6912")
    k.e(f"v_add_u32 v{VB2}, {A_CQ}, v{V_L16}")
    k.e("s_waitcnt vmcnt(0)")
    for p in range(1, 18):
        for j in range(4): k.e(f"v_add_f32 v{8+j}, v{8+j}, v{8+4*p+j}")
    k.e(f"ds_write_b128 v{VB2}, v[8:11]")
    k.e("s_waitcnt lgkmcnt(0)")
    k.label("L_A_combd")
    lds_signal(k, CA_ST, 8)
    k.e("s_waitcnt lgkmcnt(0)"); k.lg = []
    k.e("s_branch L_A_att")
    k.label("L_A_fr2")
    k.e(f"s_cmp_lg_u32 s{S_LAY}, 0"); k.e("s_cbranch_scc1 L_A_att")
    for c in range(3): lds_wait(k, CA_X + c, 4, 8)
    if WREL:
        k.e("s_cmp_lt_u32 s2, 104"); k.e("s_cbranch_scc1 L_A_norel")
        k.e("buffer_wbl2 sc1")
        k.e("s_waitcnt vmcnt(0)")
        k.e("s_cmp_lt_u32 s2, 120"); k.e("s_cselect_b32 exec_lo, 1, 3"); k.e("s_mov_b32 exec_hi, 0")
        k.e(f"v_mul_u32_u24 v10, 0x{152*8:x}, v{V_L}"); k.e("s_add_u32 s36, s2, 216"); k.e("s_lshl_b32 s36, s36, 3"); k.e("v_sub_u32 v10, s36, v10")
        k.e("v_mov_b32 v8, s62"); k.e("v_mov_b32 v9, s63"); k.e(f"s_mov_b32 s37, 0x{FLP:x}")
        k.e(f"buffer_store_dwordx2 v[8:9], v10, {WS}, s37 offen sc1")
        k.e("s_mov_b64 exec, -1")
        k.label("L_A_norel")
    k.e(f"s_lshl_b32 s37, s{S_SC}, 7"); k.e(f"s_add_u32 s37, s37, 0x{FLP + 128*J_W1:x}")
    k.e(f"v_lshlrev_b32 v8, 10, v{V_L}")
    poll(k, 8, 37, (1 << 36) - 1, 10, ENV('PS3', 24))
    k.label("L_A_att")
    k.vm = []; k.lg = []
    k.e("s_waitcnt lgkmcnt(0)")
    if FS in ("", "A"): stamp(k, 3)
    if FS == "G": stamp(k, 5)
    k.e("s_barrier")
    if FS == "A": stamp(k, 4)
    if FS == "G": stamp(k, 6)
    k.e(f"s_cmp_ge_u32 s{S_W}, 8"); k.e("s_cbranch_scc1 L_A_cs")
    VI, VHH, VQ, VK, VV = 5, 6, 7, 86, 87
    Q, KK, VP_, OA, PP, T0 = 8, 20, 20, 68, EX, EX+4
    att_start = len(k.lines)
    VHD = EX+6
    k.e(f"s_lshl_b32 s41, s{S_W}, 3")
    k.e(f"v_and_b32 v{VI}, 7, v{V_L}"); k.e(f"v_add_u32 v{VI}, s41, v{VI}")
    k.e(f"v_lshrrev_b32 v{VHH}, 5, v{V_L}")
    k.e(f"v_bfe_u32 v{VHD}, v{V_L}, 3, 2")
    k.e(f"v_mul_u32_u24 v{VQ}, {QP}, v{VI}")
    k.e(f"v_mul_u32_u24 v{VK}, 0x{QPL:x}, v{VHD}")
    k.e(f"s_mov_b32 s36, {A_QK + 16*QP}")
    k.e(f"v_add3_u32 v{VQ}, v{VQ}, v{VK}, s36")
    k.e(f"v_mul_u32_u24 v{VK}, 0x{8*QP:x}, v{VHH}"); k.e(f"v_sub_u32 v{VK}, v{VQ}, v{VK}")
    k.e(f"v_lshlrev_b32 v{T0}, 3, v{VHH}"); k.e(f"v_sub_u32 v{T0}, v{VI}, v{T0}")
    k.e(f"v_add_u32 v{VV}, 12, v{T0}"); k.e(f"v_mul_u32_u24 v{VV}, 0x{VPP:x}, v{VV}")
    k.e(f"v_mul_u32_u24 v{T0+1}, 0x{VPL:x}, v{VHD}"); k.e(f"s_mov_b32 s36, {A_VP}"); k.e(f"v_add3_u32 v{VV}, v{VV}, v{T0+1}, s36")
    def rdvec(reg, va, off, tag):
        k.lds(f"ds_read_b128 {vr(reg,4)}, v{va} offset:{off}", tag)
        k.lds(f"ds_read_b128 {vr(reg+4,4)}, v{va} offset:{off+16}", tag)
        k.lds(f"ds_read_b128 {vr(reg+8,4)}, v{va} offset:{off+32}", tag)
    rdvec(Q, VQ, 0, "q")
    for j in range(4): rdvec(KK + 12*j, VK, TSTR - 2*j*QP, ("k", j))
    k.e(f"s_lshl_b32 s36, s{S_R}, 6"); k.e(f"v_add_u32 v{T0}, s36, v{T0}")
    for j in range(4):
        k.e(f"v_cmp_le_i32 s[{50+2*j}:{51+2*j}], {2*j}, v{T0}")
    k.wait(lg=["q", ("k", 1)])
    for jj in range(9):
        for j in range(2):
            c = "0" if jj == 0 else f"v{PP+j}"
            k.e(f"v_dot2_f32_bf16 v{PP+j}, v{Q+jj}, v{KK+12*j+jj}, {c}")
    def rdvp(pr):
        off = (4*VPP if pr == 0 else 0)
        for q4 in range(5):
            k.lds(f"ds_read_b128 {vr(VP_+24*pr+4*q4,4)}, v{VV} offset:{off+16*q4}", ("v", pr))
    rdvp(0)
    k.wait(lg=[("k", 3)])
    for jj in range(9):
        for j in range(2, 4):
            c = "0" if jj == 0 else f"v{PP+j}"
            k.e(f"v_dot2_f32_bf16 v{PP+j}, v{Q+jj}, v{KK+12*j+jj}, {c}")
    rdvp(1)
    sc = (18 ** -0.5) * math.log2(math.e)
    k.e(f"v_mov_b32 v{T0}, {f32(-1e30)}")
    k.e("s_nop 1")
    for j in range(4): k.e(f"v_mul_f32 v{PP+j}, {f32(sc)}, v{PP+j}")
    for j in range(4): k.e(f"v_cndmask_b32 v{PP+j}, v{T0}, v{PP+j}, s[{50+2*j}:{51+2*j}]")
    k.e(f"v_max3_f32 v{T0}, v{PP}, v{PP+1}, v{PP+2}")
    k.e(f"v_max_f32 v{T0}, v{T0}, v{PP+3}")
    k.e(f"v_mov_b32 v{T0+1}, v{T0}")
    k.e("s_nop 1")
    k.e(f"v_permlane32_swap_b32 v{T0}, v{T0+1}")
    k.e("s_nop 1")
    k.e(f"v_max_f32 v{T0}, v{T0}, v{T0+1}")
    for j in range(4): k.e(f"v_sub_f32 v{PP+j}, v{PP+j}, v{T0}")
    for j in range(4): k.e(f"v_exp_f32 v{PP+j}, v{PP+j}")
    k.e("s_nop 0")
    k.e(f"v_cvt_pk_bf16_f32 v{PP}, v{PP}, v{PP+1}")
    k.e(f"v_cvt_pk_bf16_f32 v{PP+2}, v{PP+2}, v{PP+3}")
    k.e("s_mov_b32 s36, 0x3f803f80")
    k.e(f"v_dot2_f32_bf16 v{T0}, v{PP}, s36, 0")
    k.e(f"v_dot2_f32_bf16 v{T0}, v{PP+2}, s36, v{T0}")
    k.wait(lg=[("v", 0)])
    for d in range(18): k.e(f"v_dot2_f32_bf16 v{OA+d}, v{VP_+d}, v{PP}, 0")
    k.e(f"v_mov_b32 v{T0+1}, v{T0}")
    k.wait(lg=[("v", 1)])
    for d in range(18): k.e(f"v_dot2_f32_bf16 v{OA+d}, v{VP_+24+d}, v{PP+2}, v{OA+d}")
    k.e(f"v_permlane32_swap_b32 v{T0}, v{T0+1}")
    k.e("s_nop 1")
    k.e(f"v_add_f32 v{T0}, v{T0}, v{T0+1}")
    k.e(f"v_rcp_f32 v{T0}, v{T0}")
    pairs = [(d, d+8) for d in range(8)] + [(16, 17)]
    for a, b_ in pairs: k.e(f"v_permlane32_swap_b32 v{OA+a}, v{OA+b_}")
    k.e("s_nop 1")
    for a, b_ in pairs: k.e(f"v_add_f32 v{OA+a}, v{OA+a}, v{OA+b_}")
    for a, b_ in pairs: k.e(f"v_mul_f32 v{OA+a}, v{OA+a}, v{T0}")
    k.e(f"v_cvt_pk_bf16_f32 v{Q+4}, v{OA+16}, v{OA+16}")
    k.e(f"v_lshlrev_b32 v{VI}, 4, v{VI}")
    k.e(f"v_lshl_add_u32 v{VHD}, v{VHD}, 1, v{VHH}")
    k.e(f"v_lshl_add_u32 v{VK}, v{VHD}, 1, v{VI}"); k.e(f"v_add_u32 v{VK}, {A_SCR}, v{VK}")
    k.e(f"ds_write_b16 v{VK}, v{Q+4}")
    k.e(f"v_add_u32 v{VV}, {A_SCR}, v{VI}")
    for j in range(4): k.e(f"v_cvt_pk_bf16_f32 v{Q+j}, v{OA+2*j}, v{OA+2*j+1}")
    k.e("s_waitcnt lgkmcnt(0)")
    k.e(f"ds_read_b128 {vr(Q+4,4)}, v{VV}")
    k.e(f"v_lshl_add_u32 v{VQ}, v{VHD}, 10, v{VI}")
    k.e(f"s_mul_i32 s36, s{S_S}, 9216"); k.e(f"s_mul_i32 s37, s{S_R}, {TILEB}"); k.e("s_add_u32 s36, s36, s37"); k.e(f"s_add_u32 s36, s36, s{S_O}")
    k.e("s_add_u32 s38, s36, 8192")
    if FS == "A": stamp(k, 5)
    k.e(f"buffer_store_dwordx4 {vr(Q,4)}, v{VQ}, {WS}, s36 offen{SC('o')}")
    k.e("s_mov_b64 exec, 0xff")
    k.e("s_waitcnt lgkmcnt(0)")
    k.e(f"buffer_store_dwordx4 {vr(Q+4,4)}, v{VI}, {WS}, s38 offen{SC('o')}")
    k.e("s_mov_b64 exec, -1")
    publish(k, CA_DONE, 8, F_A, S_R, S_S, 20, sc=SC('o'))
    if FS == "A": stamp(k, 6)
    k.e("s_branch L_A_end")
    k.label("L_A_cs")
    k.e(f"s_cmp_ge_u32 s{S_W}, 10"); k.e("s_cbranch_scc1 L_A_nb")
    for i in range(PA, 9): b_load(k, i)
    k.label("L_A_nb")
    for i in range(CPA): c_aload(k, i, "c")
    k.vm = []
    k.e(f"s_cmp_lg_u32 s{S_LAY}, 0"); k.e("s_cbranch_scc1 L_A_end")
    k.e(f"s_cmp_eq_u32 s{S_WL}, 3"); k.e("s_cbranch_scc1 L_A_b1")
    k.e(f"s_mul_i32 s36, s{S_SC}, 2304"); k.e(f"s_lshl_b32 s37, s{S_WL}, 10"); k.e("s_add_u32 s36, s36, s37"); k.e(f"s_add_u32 s36, s36, 0x{CSP:x}")
    for i in range(18):
        k.e(f"buffer_load_dwordx4 {vr(8+4*i,4)}, v{V_L16}, {WS}, s36 offen{WSC}")
        if i < 17: k.e(f"s_add_u32 s36, s36, {4608*4}")
    k.e(f"s_add_u32 s37, s37, {C_CS}"); k.e(f"v_add_u32 v5, s37, v{V_L16}")
    k.e("s_waitcnt vmcnt(0)")
    for i in range(17):
        for j in range(4): k.e(f"v_add_f32 v{76+j}, v{76+j}, v{8+4*i+j}")
    k.e("ds_write_b128 v5, v[76:79]")
    k.e("s_waitcnt lgkmcnt(0)")
    k.e("s_branch L_A_end")
    k.label("L_A_b1")
    k.e(f"s_mul_i32 s38, s{S_SC}, 1152"); k.e(f"s_mov_b32 m0, {C_B1}"); k.e("s_nop 0")
    k.e(f"buffer_load_dwordx4 v{V_L16}, s[12:15], s38 offen lds")
    k.e(f"buffer_load_dwordx4 v{V_L16}, s[12:15], s38 offen offset:1024 lds")
    k.e("s_waitcnt vmcnt(0)")
    k.label("L_A_end")

def phase_B(k):
    k.c("================ phase B")
    VB1, VB2, VR_ = 5, 6, 7
    ACC, BB, RX, WB = 8, 24, 72, 124
    k.vm = []; k.lg = []
    k.e(f"s_mul_i32 s39, s{S_R}, {TILEB}")
    k.e(f"s_cmp_ge_u32 s{S_W}, 5"); k.e("s_cselect_b32 s45, 1, 0"); k.e("s_mul_i32 s46, s45, 5"); k.e(f"s_sub_u32 s46, s{S_W}, s46")
    k.e(f"v_lshrrev_b32 v{VR_}, 1, v{V_G}"); k.e(f"v_lshlrev_b32 v{VR_}, 10, v{VR_}")
    k.e(f"v_and_b32 v{VB2}, 31, v{V_L}"); k.e(f"v_lshl_add_u32 v{VR_}, v{VB2}, 4, v{VR_}")
    k.e(f"s_mul_i32 s40, s{S_S}, 9216"); k.e("s_add_u32 s40, s40, s39"); k.e("s_lshl_b32 s41, s46, 11"); k.e("s_add_u32 s40, s40, s41")
    k.e("s_lshl_b32 s41, s45, 9"); k.e("s_add_u32 s40, s40, s41")
    k.e("s_cmp_eq_u32 s46, 4"); k.e("s_cselect_b32 s41, 2, 4"); k.e("s_cmp_gt_u32 s46, 4"); k.e("s_cselect_b32 s41, 0, s41")
    k.e(f"v_cmp_gt_u32 vcc, s41, v{V_G}")
    k.e(f"v_mov_b32 v{VB2}, 0x70000000")
    k.e(f"s_add_u32 s41, s40, s{S_XIN}")
    k.e(f"v_cndmask_b32 v{VR_}, v{VB2}, v{VR_}, vcc")
    k.vmem(f"buffer_load_dwordx4 {vr(RX,4)}, v{VR_}, {WS}, s41 offen sc1", "r")
    NP1 = 3
    await_flags(k, F_A, S_R, 8, (CA_DONE, 8))
    if FS in ("", "A", "B"): stamp(k, {"A": 7, "B": 1}.get(FS, 4))
    k.e(f"s_mul_i32 s36, s{S_W}, 6144"); k.e("s_add_u32 s37, s39, s36"); k.e(f"s_add_u32 s37, s37, s{S_O}")
    for i in range(6):
        if i % 4 == 0:
            k.e(f"s_add_u32 m0, s36, {1024*i}")
            k.e("s_nop 0") if i == 0 else k.e("s_add_u32 s37, s37, 4096")
        k.vmem(f"buffer_load_dwordx4 v{V_L16}, {WS}, s37 offen offset:{(i%4)*1024} sc1 lds", "o")
    k.e(f"v_lshlrev_b32 v{VB1}, 10, v{V_G}"); k.e(f"v_lshl_add_u32 v{VB1}, v{V_M}, 4, v{VB1}")
    k.e("s_mul_i32 s41, s45, %d" % (9*4096)); k.e(f"v_add_u32 v{VB1}, s41, v{VB1}")
    k.e("s_lshl_b32 s41, s45, 9"); k.e("s_xor_b32 s42, s41, 512")
    k.e(f"v_add_u32 v{VB2}, s42, v{VB1}"); k.e(f"v_add_u32 v{VB1}, s41, v{VB1}")
    k.wait(vm0=True)
    if FS == "B": stamp(k, 2)
    k.e("s_barrier")
    if FS == "B": stamp(k, 3)
    vm_keep = list(k.vm)
    k.e(f"s_cmp_ge_u32 s{S_W}, 10"); k.e("s_cbranch_scc1 L_B_idle")
    def bread(ks, mi, reg):
        k.lds(f"ds_read_b128 {vr(reg,4)}, v{VB1 if mi < 2 else VB2} offset:{ks*4096 + (mi&1)*256}", ("b", ks))
    def afterB(ks):
        if ks % 2 == 0 and CPA + ks // 2 < 3: c_aload(k, CPA + ks // 2, "c")
    gemm_loop(k, 9, [(2, 0), (3, 0), (0, 0), (1, 0)], lambda mi, t: ACC + 4*mi, lambda par, mi: BB + 16*par + 4*mi, lambda i_, t: WB + 4*i_,
              bread, 0, 4, afterB, None, BD=2, atag=lambda ks: "none")
    k.e(f"s_lshl_b32 s41, s{S_W}, 11"); k.e(f"s_add_u32 s41, s41, {B_XB}"); k.e(f"v_add_u32 v{VB1}, s41, v{V_L16}")
    k.e(f"s_add_u32 s42, s{S_W}, 5"); k.e(f"s_sub_u32 s43, s{S_W}, 5"); k.e(f"s_cmp_ge_u32 s{S_W}, 5"); k.e("s_cselect_b32 s42, s43, s42")
    k.e("s_lshl_b32 s42, s42, 11"); k.e(f"s_add_u32 s42, s42, {B_XB}"); k.e(f"v_add_u32 v{VB2}, s42, v{V_L16}")
    k.e("s_nop 0")
    if FS == "B": stamp(k, 4)
    k.e(f"ds_write_b128 v{VB1}, {vr(ACC+8,4)}"); k.e(f"ds_write_b128 v{VB1}, {vr(ACC+12,4)} offset:1024")
    k.e("s_waitcnt lgkmcnt(0)")
    k.e("s_barrier")
    k.e(f"ds_read_b128 {vr(ACC+8,4)}, v{VB2}"); k.e(f"ds_read_b128 {vr(ACC+12,4)}, v{VB2} offset:1024")
    k.e(f"s_add_u32 s41, s40, s{S_X1}")
    k.e("s_waitcnt lgkmcnt(0)")
    for j in range(8): k.e(f"v_add_f32 v{ACC+j}, v{ACC+j}, v{ACC+8+j}")
    k.e("s_nop 1")
    for j in range(4): k.e(f"v_permlane16_swap_b32 v{ACC+j}, v{ACC+4+j}")
    k.e("s_nop 1")
    for j in range(4):
        k.e(f"v_lshlrev_b32 v{BB}, 16, v{RX+j}"); k.e(f"v_and_b32 v{BB+1}, 0xffff0000, v{RX+j}")
        k.e(f"v_add_f32 v{ACC+2*j}, v{ACC+2*j}, v{BB}"); k.e(f"v_add_f32 v{ACC+2*j+1}, v{ACC+2*j+1}, v{BB+1}")
        k.e(f"v_cvt_pk_bf16_f32 v{RX+j}, v{ACC+2*j}, v{ACC+2*j+1}")
    if FS == "B": stamp(k, 5)
    k.e(f"buffer_store_dwordx4 {vr(RX,4)}, v{VR_}, {WS}, s41 offen sc1")
    publish(k, CB_DONE, 10, F_B, S_R, S_S, 24)
    if FS == "B": stamp(k, 6)
    k.e("s_branch L_B_end")
    k.label("L_B_idle")
    for i in range(CPA, 3): c_aload(k, i, "c")
    k.e("s_barrier")
    k.label("L_B_end")
    k.vm = vm_keep; k.lg = []
    NP2 = ENV("NP2", 3)
    for i in range(NP1, NP2): c_aload(k, i)
    return NP2

def phase_C(k, npre):
    k.c("================ phase C")
    VB1, VB2, VT = 5, 6, 7
    ACC, BB = 8, 56
    D = 6
    k.e(f"s_mul_i32 s39, s{S_RC}, {TILEB}")
    await_flags(k, F_B, S_RC, 8, (CB_DONE, 10))
    if FS in ("", "B", "C"): stamp(k, {"B": 7, "C": 1}.get(FS, 5))
    k.e(f"s_mul_i32 s36, s{S_W}, 6144"); k.e("s_add_u32 s37, s36, s39"); k.e(f"s_add_u32 s37, s37, s{S_X1}")
    for i in range(6):
        if i and i % 4 == 0: k.e("s_add_u32 s37, s37, 4096")
        k.e(f"buffer_load_dwordx4 {vr(8+4*i,4)}, v{V_L16}, {WS}, s37 offen offset:{(i%4)*1024} sc1")
    k.e(f"s_lshl_b32 s37, s{S_ROT}, 12"); k.e("s_sub_u32 s36, s36, s37"); k.e(f"s_add_u32 s36, s36, {TILEB}")
    k.e("s_mov_b32 s38, 0x3f803f80")
    for i in range(6):
        k.e(f"s_sub_u32 s37, s36, {TILEB}"); k.e(f"s_cmp_ge_u32 s36, {TILEB}"); k.e("s_cselect_b32 s36, s37, s36")
        k.e(f"v_add_u32 v{VB2}, s36, v{V_L16}")
        k.e(f"s_waitcnt vmcnt({5-i})")
        k.e(f"ds_write_b128 v{VB2}, {vr(8+4*i,4)}")
        stats_acc(k, 8+4*i, 44, i == 0, 38)
        k.e("s_add_u32 s36, s36, 1024")
    k.e(f"s_lshl_b32 s37, s{S_W}, 9"); k.e(f"v_lshlrev_b32 v{VB2}, 3, v{V_L}"); k.e(f"v_add_u32 v{VB2}, s37, v{VB2}"); k.e(f"v_add_u32 v{VB2}, {C_PM}, v{VB2}")
    k.e(f"ds_write_b64 v{VB2}, v[44:45]")
    k.label("L_C_s4")
    k.vm = []
    k.e(f"v_lshlrev_b32 v{VB1}, 10, v{V_G}"); k.e(f"v_lshl_add_u32 v{VB1}, v{V_M}, 4, v{VB1}")
    k.e("s_waitcnt lgkmcnt(0)")
    if GXC:
        lds_signal(k, CC_X, 46, byclass=True)
        k.e("s_waitcnt lgkmcnt(0)")
    else:
        k.e("s_barrier")
    if FS in ("", "C"): stamp(k, {"C": 2}.get(FS, 6))
    k.lg = []
    def gate1(ks, query=False):
        if not GXC or ks % 6: return False
        if query: return True
        lds_wait(k, CC_X + ks//6, 4, EX)
    k.e(f"s_cmp_lg_u32 s{S_W}, 11"); k.e("s_cbranch_scc1 L_C_nocomb")
    if GXC:
        for c in range(3): lds_wait(k, CC_X + c, 4, 8)
    stats_combine(k, C_PM, 8, VB2, C_ST, False, 12)
    lds_signal(k, CC_ST, 8)
    k.e("s_waitcnt lgkmcnt(0)"); k.lg = []
    k.label("L_C_nocomb")
    k.e(f"v_add_u32 v{VB2}, 49152, v{VB1}")
    def bread1(ks, mi, reg):
        off = ks*4096 + mi*256; base = VB1
        if off >= 49152: off -= 49152; base = VB2
        k.lds(f"ds_read_b128 {vr(reg,4)}, v{base} offset:{off}", ("b", ks))
    accf = lambda mi, t: ACC + 12*mi + 4*t
    bbf = lambda par, mi: BB + 16*par + 4*mi
    asf = lambda i_, t: AR + 12*(i_ % D) + 4*t
    order = [(mi, t) for mi in range(4) for t in range(3)]
    DEFER = ENV("DEFER", 2)
    state = dict(n=npre)
    lim1 = ENV("LIM1", 18) if DEFER else 24
    def after1(ks):
        tgt = min(ks + 1 + D, lim1, state["n"] + 2)
        while state["n"] < tgt:
            c_aload(k, state["n"]); state["n"] += 1
            if DEFER == 1 and state["n"] == 18: lds_signal(k, CC_W1, EX)
    k.e(f"s_setprio {ENV('P1PRIO', 2)}")
    (gemm_loop_sp if ENV('SP', 0) & 1 else gemm_loop)(k, 18, order, accf, bbf, asf, bread1, 0, 4, after1, gate=gate1)
    k.e(f"s_setprio {ENV('GPRIO', 3)}")
    if FS == "C": stamp(k, 3)
    DEFN = ENV('DEFN', 12)
    sv2 = k.snapshot()
    def w2_check(final=False, first=False):
        if DEFER != 1: return
        lab = k.newlabel("L_w2")
        if not first:
            k.e("s_cmp_lg_u32 s56, 0"); k.e(f"s_cbranch_scc1 {lab}")
        else:
            k.e("s_mov_b32 s56, 0")
        k.e(f"s_add_u32 s36, s{S_CNT}, {4*CC_W1}")
        k.label(lab + "_p")
        k.e(f"v_mov_b32 v0, s36")
        k.e(f"ds_read_b32 v0, v0")
        k.e("s_waitcnt lgkmcnt(0)"); k.lg = []
        k.e(f"v_readfirstlane_b32 s37, v0")
        k.e("s_nop 3")
        k.e(f"s_cmp_ge_u32 s37, {DEFN}"); k.e(f"s_cbranch_scc1 {lab}_go")
        if final:
            k.e("s_sleep 4"); k.e(f"s_branch {lab}_p")
        else:
            k.e(f"s_branch {lab}")
        k.label(lab + "_go")
        k.vm = list(sv2[0])
        for i in range(18, 24): c_aload(k, i)
        k.e("s_mov_b32 s56, 1")
        k.label(lab)
    w2_check(first=True)
    lds_wait(k, CC_ST, 1, EX)
    CSR, B1R, T, STR = BB, BB+12, BB+24, EX
    k.e(f"s_lshr_b32 s40, s{S_W}, 1"); k.e(f"s_and_b32 s41, s{S_W}, 1"); k.e("s_mul_i32 s40, s40, 96")
    k.e("s_lshl_b32 s42, s41, 5"); k.e("s_add_u32 s42, s42, s40")
    k.e("s_lshl_b32 s43, s41, 4"); k.e("s_add_u32 s43, s43, s40"); k.e("s_add_u32 s43, s43, 64")
    k.e(f"v_lshlrev_b32 v{VB1}, 3, v{V_G}"); k.e(f"v_add_u32 v{VB1}, s42, v{VB1}")
    k.e(f"v_lshlrev_b32 v{VB2}, 2, v{V_G}"); k.e(f"v_add_u32 v{VB2}, s43, v{VB2}")
    k.e(f"s_mov_b32 s40, {C_CS}"); k.e(f"s_mov_b32 s41, {C_B1}")
    k.e(f"v_lshl_add_u32 v{VT}, v{VB1}, 2, s40")
    for j in range(2): k.lds(f"ds_read_b128 {vr(CSR+4*j,4)}, v{VT} offset:{16*j}", "cs")
    k.e(f"v_lshl_add_u32 v{VT}, v{VB2}, 2, s40")
    k.lds(f"ds_read_b128 {vr(CSR+8,4)}, v{VT}", "cs")
    k.e(f"v_lshl_add_u32 v{VT}, v{VB1}, 1, s41")
    k.lds(f"ds_read_b128 {vr(T,4)}, v{VT}", "cs")
    k.e(f"v_lshl_add_u32 v{VT}, v{VB2}, 1, s41")
    k.lds(f"ds_read_b64 {vr(T+4,2)}, v{VT}", "cs")
    k.e(f"v_lshlrev_b32 v{VB1}, 3, v{V_M}"); k.e(f"v_add_u32 v{VB1}, {C_ST}, v{VB1}")
    for mi in range(4): k.lds(f"ds_read_b64 {vr(STR+2*mi,2)}, v{VB1} offset:{128*mi}", "cs")
    k.e(f"s_bfe_u32 s40, s{S_W}, 0x10001"); k.e(f"s_and_b32 s41, s{S_W}, 1"); k.e("s_mul_i32 s40, s40, 3")
    k.e(f"s_sub_u32 s40, s40, s{S_ROT2}"); k.e("s_add_u32 s40, s40, 6")
    k.e(f"s_lshr_b32 s55, s{S_W}, 2"); k.e("s_mul_i32 s54, s55, 6")
    k.e("s_add_u32 s42, s40, s41"); k.e("s_sub_u32 s44, s42, 6"); k.e("s_cmp_ge_u32 s42, 6"); k.e("s_cselect_b32 s42, s44, s42")
    k.e("s_add_u32 s42, s42, s54"); k.e("s_lshl_b32 s42, s42, 12"); k.e(f"s_add_u32 s42, s42, {C_HB}")
    k.e("s_add_u32 s43, s40, 2"); k.e("s_sub_u32 s44, s43, 6"); k.e("s_cmp_ge_u32 s43, 6"); k.e("s_cselect_b32 s43, s44, s43")
    k.e("s_add_u32 s43, s43, s54"); k.e("s_lshl_b32 s43, s43, 12"); k.e("s_lshl_b32 s41, s41, 3"); k.e("s_add_u32 s43, s43, s41"); k.e(f"s_add_u32 s43, s43, {C_HB}")
    k.e(f"v_add_u32 v{VB1}, s42, v{V_L16}"); k.e(f"v_add_u32 v{VB2}, s43, v{V_L16}")
    c0 = -2.0 * math.sqrt(2.0/math.pi) * math.log2(math.e)
    c1 = c0 * 0.044715
    k.e(f"s_mov_b32 s44, {f32(c1)}"); k.e(f"v_mov_b32 v{VT}, {f32(c0)}")
    k.wait(lg=["cs"])
    for j in range(6):
        k.e(f"v_lshlrev_b32 v{B1R+2*j}, 16, v{T+j}"); k.e(f"v_and_b32 v{B1R+2*j+1}, 0xffff0000, v{T+j}")
    PK = ENV("PK", 0)
    if PK:
        k.e(f"s_mov_b32 s45, {f32(c1)}"); k.e(f"s_mov_b32 s50, {f32(c0)}"); k.e(f"s_mov_b32 s51, {f32(c0)}")
    for mi in range(4):
        a = accf(mi, 0)
        for (j0, n) in ((0, 8), (8, 4)):
            js = range(j0, j0+n)
            if ENV("NOGELU", 0) == 1:
                for j in js: k.e(f"v_mul_f32 v{T+j-j0}, v{a+j}, v{STR+2*mi}")
            elif ENV("NOGELU", 0) == 2:
                for j in js: k.e(f"v_fma_f32 v{T+j-j0}, v{STR+2*mi+1}, v{CSR+j}, v{B1R+j}")
                for j in js: k.e(f"v_fma_f32 v{a+j}, v{a+j}, v{STR+2*mi}, v{T+j-j0}")
                for j in js: k.e(f"v_mul_f32 v{T+j-j0}, v{a+j}, v{a+j}")
                for j in js: k.e(f"v_fma_f32 v{T+j-j0}, v{T+j-j0}, s44, v{VT}")
                for j in js: k.e(f"v_mul_f32 v{T+j-j0}, v{T+j-j0}, v{a+j}")
                for j in js: k.e(f"v_add_f32 v{T+j-j0}, 1.0, v{T+j-j0}")
                for j in js: k.e(f"v_mul_f32 v{T+j-j0}, 0.5, v{a+j}")
            elif not PK:
                for j in js: k.e(f"v_fma_f32 v{T+j-j0}, v{STR+2*mi+1}, v{CSR+j}, v{B1R+j}")
                for j in js: k.e(f"v_fma_f32 v{a+j}, v{a+j}, v{STR+2*mi}, v{T+j-j0}")
                for j in js: k.e(f"v_mul_f32 v{T+j-j0}, v{a+j}, v{a+j}")
                for j in js: k.e(f"v_fma_f32 v{T+j-j0}, v{T+j-j0}, s44, v{VT}")
                for j in js: k.e(f"v_mul_f32 v{T+j-j0}, v{T+j-j0}, v{a+j}")
                for j in js: k.e(f"v_exp_f32 v{T+j-j0}, v{T+j-j0}")
                for j in js: k.e(f"v_add_f32 v{T+j-j0}, 1.0, v{T+j-j0}")
                for j in js: k.e(f"v_rcp_f32 v{T+j-j0}, v{T+j-j0}")
                for j in js: k.e(f"v_mul_f32 v{T+j-j0}, v{T+j-j0}, v{a+j}")
            else:
                jp = range(j0, j0+n, 2)
                P = lambda r: vr(r, 2)
                st = P(STR+2*mi)
                for j in jp: k.e(f"v_pk_fma_f32 {P(T+j-j0)}, {st}, {P(CSR+j)}, {P(B1R+j)} op_sel:[1,0,0] op_sel_hi:[1,1,1]")
                for j in jp: k.e(f"v_pk_fma_f32 {P(a+j)}, {P(a+j)}, {st}, {P(T+j-j0)} op_sel:[0,0,0] op_sel_hi:[1,0,1]")
                for j in jp: k.e(f"v_pk_mul_f32 {P(T+j-j0)}, {P(a+j)}, s[44:45]")
                for j in jp: k.e(f"v_pk_fma_f32 {P(T+j-j0)}, {P(T+j-j0)}, {P(a+j)}, s[50:51]")
                for j in jp: k.e(f"v_pk_mul_f32 {P(T+j-j0)}, {P(T+j-j0)}, {P(a+j)}")
                for j in js: k.e(f"v_exp_f32 v{T+j-j0}, v{T+j-j0}")
                for j in jp: k.e(f"v_pk_add_f32 {P(T+j-j0)}, {P(T+j-j0)}, 1.0 op_sel_hi:[1,0]")
                for j in js: k.e(f"v_rcp_f32 v{T+j-j0}, v{T+j-j0}")
                for j in jp: k.e(f"v_pk_mul_f32 {P(T+j-j0)}, {P(T+j-j0)}, {P(a+j)}")
            for j in range(n//2): k.e(f"v_cvt_pk_bf16_f32 v{a+j0+j}, v{T+2*j}, v{T+2*j+1}")
            if j0 == 0: k.lds(f"ds_write_b128 v{VB1}, {vr(a,4)} offset:{mi*1024}", "hw")
            else: k.lds(f"ds_write_b64 v{VB2}, {vr(a+8,2)} offset:{mi*1024}", "hw")
            if DEFER == 2 and state["n"] < 24:
                c_aload(k, state["n"]); state["n"] += 1
        if mi < 3: w2_check()
    k.e(f"v_add_u32 v{VB1}, {C_HB}, v{V_L16}"); k.e(f"v_add_u32 v{VB2}, {C_HB+49152}, v{V_L16}")
    k.e("s_lshl_b32 s55, s55, 2"); k.e(f"s_add_u32 s55, s55, s{S_CNT}"); k.e(f"s_add_u32 s55, s55, {4*CC_H0}")
    k.e(f"v_mov_b32 v{EX+2}, s55"); k.e(f"v_mov_b32 v{EX+3}, 1")
    k.wait(lg0=True)
    k.e("s_mov_b64 exec, 1")
    k.e(f"ds_add_u32 v{EX+2}, v{EX+3}")
    k.e("s_mov_b64 exec, -1")
    k.e(f"s_setprio {ENV('P2PRIO', 0)}")
    if FS == "C": stamp(k, 4)
    w2_check(final=True)
    if FS == "C": stamp(k, 5)
    def gate(ks, query=False):
        if ks % 6: return False
        if query: return True
        lds_wait(k, CC_H0 + ks//6, 4, EX)
    def bread2(ks, mi, reg):
        off = (ks*4 + mi) * 1024; base = VB1
        if off >= 49152: off -= 49152; base = VB2
        k.lds(f"ds_read_b128 {vr(reg,4)}, v{base} offset:{off}", ("b", ks))
    def after2(ks):
        if 18 + ks + D < 36: c_aload(k, 18 + ks + D)
    (gemm_loop_sp if ENV('SP', 0) & 2 else gemm_loop)(k, 18, order, accf, bbf, asf, bread2, 18, 4, after2, gate=gate)
    k.e("s_setprio 0")
    if FS == "C": stamp(k, 6)
    if FS == "D": stamp(k, 1)
    k.e(f"v_lshlrev_b32 v{VB1}, 10, v{V_G}"); k.e(f"v_lshl_add_u32 v{VB1}, v{V_M}, 4, v{VB1}")
    k.e(f"v_lshrrev_b32 v{VB2}, 1, v{V_G}"); k.e(f"v_lshlrev_b32 v{VB2}, 10, v{VB2}"); k.e(f"v_and_b32 v{VT}, 31, v{V_L}")
    k.e(f"v_lshl_add_u32 v{VB2}, v{VT}, 4, v{VB2}")
    k.e(f"s_mul_i32 s40, s{S_SC}, {XB}"); k.e("s_add_u32 s40, s40, s39"); k.e(f"s_mul_i32 s41, s{S_W}, 6144"); k.e("s_add_u32 s40, s40, s41")
    k.e(f"s_add_u32 s40, s40, s{S_P}")
    k.e("s_add_u32 s41, s40, 4096")
    for mp in range(2):
        T2 = BB + 16 + 4*mp
        for mi in (2*mp, 2*mp+1):
            a = accf(mi, 0); T_ = BB + 4*mi
            for j in range(4): k.e(f"v_cvt_pk_bf16_f32 v{T_+j}, v{a+2*j}, v{a+2*j+1}")
            for j in range(2): k.e(f"v_cvt_pk_bf16_f32 v{T2+2*(mi&1)+j}, v{a+8+2*j}, v{a+8+2*j+1}")
            k.e(f"buffer_store_dwordx4 {vr(T_,4)}, v{VB1}, {WS}, s40 offen offset:{256*mi} sc1")
        k.e("s_nop 0")
        k.e(f"v_permlane16_swap_b32 v{T2}, v{T2+2}"); k.e(f"v_permlane16_swap_b32 v{T2+1}, v{T2+3}")
        k.e("s_nop 0")
        k.e(f"buffer_store_dwordx4 {vr(T2,4)}, v{VB2}, {WS}, s41 offen offset:{512*mp} sc1")
    k.e(f"s_mul_i32 s40, s{S_CL}, 24"); k.e(f"s_mul_i32 s41, s{S_S}, 3"); k.e("s_add_u32 s40, s40, s41"); k.e(f"s_add_u32 s40, s40, s{S_WL}")
    k.e("s_min_u32 s40, s40, 71"); k.e("s_lshl_b32 s40, s40, 4")
    k.e("s_load_dwordx4 s[52:55], s[20:21], s40")
    lds_signal(k, CC_K2, 8)
    publish(k, CC_DONE, 4, F_C, S_RC, S_SC, 8, byclass=True)
    if FS in ("", "C", "D"): stamp(k, {"D": 2}.get(FS, 7))

def phase_D(k):
    k.c("================ phase D (per class)")
    k.e(f"s_cmp_lg_u32 s{S_WL}, 3"); k.e("s_cbranch_scc1 L_D_work")
    GD = ENV("GD", 0); GA = ENV("GA", 0)
    k.e(f"s_cmp_lg_u32 s{S_CL}, 0"); k.e("s_cbranch_scc1 L_D_g1")
    if GD == 0: lds_wait(k, CC_DONE + 1, 4, 8, 8)
    k.e("s_branch L_D_g2")
    k.label("L_D_g1")
    if GD < 2: lds_wait(k, CC_K2, 12, 8, 4)
    k.label("L_D_g2")
    lds_wait(k, CC_DONE, 4, 8, 1, byclass=True)
    k.e(f"s_lshl_b32 s39, s{S_R}, {GSH}"); k.e(f"s_lshl_b32 s38, s{S_CL}, {GSH+5}"); k.e("s_add_u32 s39, s39, s38"); k.e(f"s_add_u32 s39, s39, s{S_FL}")
    k.e(f"s_add_u32 s37, s39, {F_C}")
    k.e(f"v_lshlrev_b32 v8, {FSH}, v{V_L}")
    poll(k, 8, 37, 0xff, 12, ENV('PSD', 3))
    lds_signal(k, CD_GO, 10, byclass=True)
    k.e(f"s_cmp_lg_u32 s{S_LAY}, 0"); k.e("s_cbranch_scc1 L_D_idle")
    lds_wait(k, CD_DONE, 3, 10, 2, byclass=True)
    if not GA: lds_wait(k, CC_K2, 12, 10, 8)
    k.e(f"s_add_u32 s37, s39, {F_D}")
    k.e(f"s_cmp_eq_u32 s{S_R}, 0"); k.e(f"s_cselect_b32 s38, 0, {1 << GSH}"); k.e("s_sub_u32 s37, s37, s38"); k.e(f"s_sub_u32 s38, s38, {8 << FSH}")
    k.e(f"v_cmp_le_u32 vcc, 8, v{V_L}"); k.e("v_mov_b32 v9, s38")
    k.e("s_nop 0")
    k.e("v_cndmask_b32 v9, 0, v9, vcc"); k.e("v_add_u32 v8, v8, v9")
    poll(k, 8, 37, 0xffff, 12, ENV('PSD', 3))
    lds_signal(k, CA_GO, 10, byclass=True)
    k.e("s_waitcnt lgkmcnt(0)")
    k.e("s_branch L_D_idle")
    k.label("L_D_work")
    k.e(f"s_mul_i32 s39, s{S_R}, {TILEB}"); k.e("s_lshl_b32 s41, s40, 6"); k.e("s_add_u32 s41, s41, s39")
    lds_wait(k, CD_GO, 1, 8, 2, byclass=True)
    if FS == "D": stamp(k, 3)
    k.vm = []
    k.e(f"s_add_u32 s42, s41, s{S_X1}")
    k.vmem(f"buffer_load_dwordx4 v[40:43], v{V_L16}, {WS}, s42 offen sc1", "x1")
    k.e(f"s_add_u32 s42, s41, s{S_P}")
    for s in range(8):
        k.vmem(f"buffer_load_dwordx4 {vr(8+4*s,4)}, v{V_L16}, {WS}, s42 offen sc1", s)
        if s < 7: k.e(f"s_add_u32 s42, s42, {XB}")
    k.wait(vm=["x1"])
    for j in range(4):
        k.e(f"s_lshl_b32 s43, s{52+j}, 16"); k.e(f"s_and_b32 s44, s{52+j}, 0xffff0000")
        k.e(f"v_lshlrev_b32 v{48+2*j}, 16, v{40+j}"); k.e(f"v_and_b32 v{49+2*j}, 0xffff0000, v{40+j}")
        k.e(f"v_add_f32 v{48+2*j}, s43, v{48+2*j}"); k.e(f"v_add_f32 v{49+2*j}, s44, v{49+2*j}")
    for s in range(8):
        k.wait(vm=[s])
        for j in range(4):
            r = 8 + 4*s + j
            k.e(f"v_lshlrev_b32 v5, 16, v{r}"); k.e(f"v_and_b32 v6, 0xffff0000, v{r}")
            k.e(f"v_add_f32 v{48+2*j}, v{48+2*j}, v5"); k.e(f"v_add_f32 v{49+2*j}, v{49+2*j}, v6")
    for j in range(4): k.e(f"v_cvt_pk_bf16_f32 v{8+j}, v{48+2*j}, v{49+2*j}")
    if FS == "D": stamp(k, 4)
    k.e(f"s_cmp_lg_u32 s{S_LAY}, 0"); k.e("s_cbranch_scc1 L_D_final")
    k.e(f"s_add_u32 s42, s41, 0x{X2:x}")
    k.e(f"buffer_store_dwordx4 v[8:11], v{V_L16}, {WS}, s42 offen sc1")
    publish(k, CD_DONE, 3, F_D, S_R, S_S, 14, byclass=True)
    if FS == "D": stamp(k, 5)
    lds_wait(k, CA_GO, 1, 8, 2, byclass=True)
    if FS == "D": stamp(k, 6)
    k.e("s_branch L_D_idle")
    k.label("L_D_final")
    k.e("s_movk_i32 s42, 1152"); k.e(f"v_mul_u32_u24 v5, s42, v{V_L}")
    k.e("s_add_u32 s42, s39, s40")
    k.e("buffer_store_dwordx4 v[8:11], v5, s[16:19], s42 offen")
    k.label("L_D_idle")


def phase_P(k):
    k.c("================ phase P (weight re-layout), waves 0-5: job b, waves 6-11: job 256+b")
    L, L16, G, R, C = V_L, V_L16, V_G, 46, 47
    IN = "s[52:55]"
    k.e(f"v_bfe_u32 v{R}, v{L}, 2, 2"); k.e(f"v_and_b32 v{C}, 3, v{L}")
    k.e(f"s_cmp_ge_u32 s{S_W}, 6"); k.e(f"s_cselect_b32 s{S_SLOT}, 1, 0")
    k.e("s_add_u32 s36, s2, 64"); k.e("s_cmp_lt_u32 s2, 120"); k.e("s_cselect_b32 s36, s2, s36")
    k.e("s_add_u32 s37, s2, 216"); k.e("s_cmp_lt_u32 s2, 104"); k.e("s_cselect_b32 s37, 999, s37")
    k.e("s_add_u32 s38, s2, 120"); k.e("s_cmp_lt_u32 s2, 64"); k.e("s_cselect_b32 s37, s38, s37")
    k.e(f"s_cmp_eq_u32 s{S_SLOT}, 0"); k.e(f"s_cselect_b32 s{S_JOB}, s36, s37")
    k.e(f"s_mul_i32 s{S_LB}, s{S_SLOT}, 36864")
    k.e(f"s_mul_i32 s49, s{S_SLOT}, 6"); k.e(f"s_sub_u32 s49, s{S_W}, s49")
    k.e(f"s_and_b32 s45, s{S_JOB}, 7"); k.e(f"s_lshr_b32 s46, s{S_JOB}, 3")
    k.e(f"s_cmp_ge_u32 s{S_JOB}, {J_END}"); k.e("s_cbranch_scc1 L_P_done")
    k.e(f"s_and_b32 s36, s{S_JOB}, 0xfffe"); k.e("s_cmp_eq_u32 s36, 54"); k.e("s_cbranch_scc1 L_P_done")
    def dispatch(pfx):
        for bound, lab in ((J_X0, "wq"), (J_WO, "x0"), (J_W1, "wo"), (J_W2, "w1")):
            k.e(f"s_cmp_lt_u32 s{S_JOB}, {bound}"); k.e(f"s_cbranch_scc1 L_P{pfx}_{lab}")
        k.e(f"s_branch L_P{pfx}_w2")
    def pdma(i, voff, soff):
        k.e(f"s_add_u32 m0, s37, {6144*i}")
        k.e("s_nop 0")
        k.e(f"buffer_load_dwordx4 v{voff}, {IN}, {soff} offen nt lds")
    def lin_dma(n_i, per_row, nmax, pitch):
        k.e("s_lshl_b32 s36, s49, 6")
        for i in range(n_i):
            k.e(f"v_add_u32 v6, s36, v{L}")
            if i: k.e(f"v_add_u32 v6, {384*i}, v6")
            divmod_const(k, 7, 8, 6, per_row, nmax, 38)
            k.e(f"s_mov_b32 s38, {pitch}")
            k.e("v_mul_u32_u24 v7, s38, v7")
            k.e("v_lshl_add_u32 v7, v8, 4, v7")
            pdma(i, 7, "s40")
    def cont_dma():
        k.e("s_lshl_b32 s36, s49, 10"); k.e("s_add_u32 s40, s40, s36")
        for i in range(6):
            pdma(i, L16, "s40")
            if i < 5: k.e("s_add_u32 s40, s40, 6144")
    k.e(f"s_lshl_b32 s37, s49, 10"); k.e(f"s_add_u32 s37, s37, s{S_LB}")
    dispatch("i")
    k.label("L_Pi_wq")
    srd(k, 52, 24, 0, 576*1728*2)
    sdivmod(k, 46, 45, S_JOB, 3, 56)
    k.e("s_mul_i32 s40, s46, %d" % (32*3456)); k.e("s_mul_i32 s36, s45, 1152"); k.e("s_add_u32 s40, s40, s36")
    lin_dma(6, 72, 2304, 3456)
    k.e("s_branch L_P_wait")
    k.label("L_Pi_x0")
    srd(k, 52, 22, 0, XB)
    k.e(f"s_sub_u32 s46, s46, {J_X0//8}"); k.e("s_lshl_b32 s45, s45, 3"); k.e("s_add_u32 s46, s46, s45")
    k.e("s_mul_i32 s40, s46, 36864")
    cont_dma()
    k.e("s_branch L_P_wait")
    k.label("L_Pi_wo")
    srd(k, 52, 26, 0, 576*576*2)
    k.e(f"s_sub_u32 s46, s46, {J_WO//8}")
    k.e("s_mul_i32 s40, s46, %d" % (72*1152)); k.e("s_mul_i32 s36, s45, 144"); k.e("s_add_u32 s40, s40, s36")
    lin_dma(2, 9, 768, 1152)
    k.e("s_branch L_P_wait")
    k.label("L_Pi_w1")
    srd(k, 52, 28, 0, 576*4608*2)
    k.e(f"s_sub_u32 s46, s46, {J_W1//8}")
    k.e("s_mul_i32 s40, s46, %d" % (32*9216)); k.e("s_mul_i32 s36, s45, 1152"); k.e("s_add_u32 s40, s40, s36")
    lin_dma(6, 72, 2304, 9216)
    k.e("s_branch L_P_wait")
    k.label("L_Pi_w2")
    srd(k, 52, 32, 0, 576*4608*2)
    k.e(f"s_sub_u32 s46, s46, {J_W2//8}")
    k.e("s_mul_i32 s40, s45, 18"); k.e("s_add_u32 s40, s40, s46"); k.e("s_mul_i32 s40, s40, 36864")
    cont_dma()
    k.label("L_P_wait")
    for j in range(4): k.e(f"v_mov_b32 v{40+j}, 0x3f803f80")
    k.e(f"s_lshl_b32 s36, s{S_SLOT}, 2"); k.e(f"s_add_u32 s36, s36, {CNT + 4*CP_LD}"); k.e("v_mov_b32 v8, s36"); k.e("v_mov_b32 v9, 1")
    k.e("s_waitcnt vmcnt(0)")
    k.e("s_mov_b64 exec, 1"); k.e("ds_add_u32 v8, v9"); k.e("s_mov_b64 exec, -1")
    k.label("L_P_spin")
    k.e("ds_read_b32 v9, v8"); k.e("s_waitcnt lgkmcnt(0)"); k.e("v_readfirstlane_b32 s36, v9"); k.e("s_nop 3")
    k.e("s_cmp_ge_u32 s36, 6"); k.e("s_cbranch_scc1 L_P_go"); k.e("s_sleep 2"); k.e("s_branch L_P_spin")
    k.label("L_P_go")
    k.e(f"s_lshl_b32 s39, s{S_W}, 10"); k.e("s_add_u32 s39, s39, 73728")
    k.e("s_lshl_b32 s48, s49, 1")
    k.label("L_P_vw")
    dispatch("p")
    def tr3(a6, a9, a10, a11):
        for t in range(2):
            k.e(f"ds_read_b64_tr_b16 v[{12+4*t}:{13+4*t}], v{a6} offset:{8*t}")
            k.e(f"ds_read_b64_tr_b16 v[{14+4*t}:{15+4*t}], v{a9} offset:{8*t}")
        k.e(f"ds_read_b64_tr_b16 v[20:21], v{a10}")
        k.e(f"ds_read_b64_tr_b16 v[22:23], v{a11}")
    k.label("L_Pp_w1")
    k.e("s_lshr_b32 s40, s48, 1"); k.e("s_and_b32 s41, s48, 1"); k.e("s_mul_i32 s40, s40, 96")
    k.e("s_lshl_b32 s42, s41, 5"); k.e("s_add_u32 s42, s42, s40")
    k.e("s_lshl_b32 s43, s41, 4"); k.e("s_add_u32 s43, s43, s40"); k.e("s_add_u32 s43, s43, 64")
    k.e(f"v_lshl_add_u32 v7, v{G}, 3, v{R}"); k.e("s_movk_i32 s38, 1152"); k.e("v_mul_u32_u24 v7, s38, v7"); k.e(f"v_add_u32 v7, s{S_LB}, v7")
    k.e("s_lshl_b32 s44, s42, 1"); k.e(f"v_lshl_add_u32 v6, v{C}, 4, v7"); k.e("v_add_u32 v6, s44, v6")
    k.e("s_lshl_b32 s44, s43, 1"); k.e(f"v_lshl_add_u32 v10, v{C}, 3, v7"); k.e("v_add_u32 v10, s44, v10")
    k.e("v_add_u32 v9, %d, v6" % (4*1152)); k.e("v_add_u32 v11, %d, v10" % (4*1152))
    tr3(6, 9, 10, 11)
    k.e("s_mul_i32 s47, s45, 12"); k.e("s_add_u32 s47, s47, s48"); k.e("s_mul_i32 s47, s47, 36"); k.e("s_add_u32 s47, s47, s46")
    k.e("s_mul_i32 s47, s47, 3072"); k.e(f"s_add_u32 s47, s47, 0x{WFF:x}")
    k.e("s_lshl_b32 s42, s41, 7"); k.e("s_add_u32 s42, s42, s39"); k.e("s_lshl_b32 s43, s41, 6"); k.e("s_add_u32 s43, s43, s39"); k.e("s_add_u32 s43, s43, 256")
    k.e(f"v_lshlrev_b32 v7, 5, v{G}"); k.e("v_add_u32 v7, s42, v7"); k.e(f"v_lshlrev_b32 v8, 4, v{G}"); k.e("v_add_u32 v8, s43, v8")
    for t in range(3):
        k.e(f"s_waitcnt lgkmcnt({4-2*t})")
        k.e(f"buffer_store_dwordx4 v[{12+4*t}:{15+4*t}], v{L16}, {WS}, s47 offen offset:{1024*t}{WST}")
        k.e(f"v_mfma_f32_16x16x32_bf16 v[{28+4*t}:{31+4*t}], v[{12+4*t}:{15+4*t}], v[40:43], 0")
    k.e("s_nop 7")
    k.e("ds_write_b128 v7, v[28:31]"); k.e("ds_write_b128 v7, v[32:35] offset:16"); k.e("ds_write_b128 v8, v[36:39]")
    k.e("s_waitcnt lgkmcnt(0)")
    k.e("s_branch L_P_next")
    k.label("L_Pp_wq")
    k.e(f"v_lshl_add_u32 v6, v{G}, 3, v{R}"); k.e("s_movk_i32 s38, 1152"); k.e("v_mul_u32_u24 v6, s38, v6")
    k.e(f"v_lshl_add_u32 v6, v{C}, 3, v6"); k.e("s_mul_i32 s38, s48, 96"); k.e(f"s_add_u32 s38, s38, s{S_LB}"); k.e("v_add_u32 v6, s38, v6")
    for t in range(3):
        k.e(f"ds_read_b64_tr_b16 v[{12+4*t}:{13+4*t}], v6 offset:{32*t}")
        k.e(f"ds_read_b64_tr_b16 v[{14+4*t}:{15+4*t}], v6 offset:{32*t+4*1152}")
    k.e("s_mul_i32 s40, s45, 9")
    for t in range(3):
        k.e(f"v_bfe_u32 v7, v{L}, 3, 1"); k.e("s_mul_i32 s38, s48, 6"); k.e(f"s_add_u32 s38, s38, {2*t}"); k.e("v_add_u32 v7, s38, v7")
        divmod_const(k, 8, 9, 7, 9, 72, 38)
        k.e("v_add_u32 v9, s40, v9")
        k.e("v_mul_u32_u24 v8, 28, v8"); k.e("v_add_u32 v8, v8, v9")
        k.e("v_lshrrev_b32 v9, 1, v8"); k.e("s_movk_i32 s38, %d" % (18*1024)); k.e("v_mul_u32_u24 v9, s38, v9")
        k.e("v_and_b32 v8, 1, v8"); k.e("v_lshl_add_u32 v9, v8, 7, v9")
        k.e(f"v_lshl_add_u32 v9, v{G}, 8, v9"); k.e(f"v_and_b32 v8, 7, v{L}"); k.e(f"v_lshl_add_u32 v{24+t}, v8, 4, v9")
    k.e("s_lshl_b32 s47, s46, 10")
    if WQF: k.e(f"s_add_u32 s47, s47, 0x{WQF:x}")
    k.e("s_and_b32 s42, s48, 1"); k.e("s_mul_i32 s42, s42, 192"); k.e("s_add_u32 s42, s42, s39")
    k.e(f"v_lshlrev_b32 v7, 4, v{G}"); k.e("v_add_u32 v7, s42, v7")
    k.e("s_waitcnt lgkmcnt(0)")
    for t in range(3):
        k.e(f"buffer_store_dwordx4 v[{12+4*t}:{15+4*t}], v{24+t}, {WS}, s47 offen sc1")
        k.e(f"v_mfma_f32_16x16x32_bf16 v[{28+4*t}:{31+4*t}], v[{12+4*t}:{15+4*t}], v[40:43], 0")
    k.e("s_nop 7")
    for t in range(3): k.e(f"ds_write_b128 v7, v[{28+4*t}:{31+4*t}] offset:{64*t}")
    k.e("s_waitcnt lgkmcnt(0)")
    k.e("s_branch L_P_next")
    k.label("L_Pp_w2")
    sdivmod(k, 40, 41, 46, 3, 18)
    k.e("s_cmp_eq_u32 s41, 2"); k.e("s_cselect_b32 s44, 2, 3"); k.e("s_movk_i32 s43, %d" % (4*1152)); k.e("s_cselect_b32 s43, %d, s43" % (16*1152))
    k.e(f"v_lshlrev_b32 v6, s44, v{G}"); k.e(f"v_add_u32 v6, v6, v{R}")
    k.e("s_movk_i32 s38, 1152"); k.e("v_mul_u32_u24 v6, s38, v6")
    k.e("s_mul_i32 s38, s48, 96"); k.e(f"s_add_u32 s38, s38, s{S_LB}"); k.e("v_add_u32 v6, s38, v6")
    k.e(f"v_lshl_add_u32 v10, v{C}, 3, v6"); k.e("v_add_u32 v10, 64, v10")
    k.e(f"v_lshl_add_u32 v6, v{C}, 4, v6")
    k.e("v_add_u32 v9, s43, v6"); k.e("v_add_u32 v11, s43, v10")
    tr3(6, 9, 10, 11)
    k.e("s_mul_i32 s47, s45, 12"); k.e("s_add_u32 s47, s47, s48"); k.e("s_mul_i32 s47, s47, 36"); k.e("s_add_u32 s47, s47, s46"); k.e("s_add_u32 s47, s47, 18")
    k.e("s_mul_i32 s47, s47, 3072"); k.e(f"s_add_u32 s47, s47, 0x{WFF:x}")
    for t in range(3):
        k.e(f"s_waitcnt lgkmcnt({4-2*t})")
        k.e(f"buffer_store_dwordx4 v[{12+4*t}:{15+4*t}], v{L16}, {WS}, s47 offen offset:{1024*t}{WST}")
    k.e("s_branch L_P_next")
    k.label("L_Pp_wo")
    k.e("s_lshl_b32 s44, s48, 2"); k.e(f"v_add_u32 v6, s44, v{G}"); k.e("v_min_u32 v6, 44, v6")
    divmod_const(k, 8, 7, 6, 5, 48, 38)
    k.e("v_lshrrev_b32 v9, 1, v8"); k.e("v_mul_u32_u24 v9, 18, v9")
    k.e("v_and_b32 v10, 1, v8"); k.e("v_lshl_add_u32 v9, v10, 3, v9")
    k.e(f"v_add_u32 v9, v9, v{R}")
    k.e("v_add_u32 v10, 4, v9")
    k.e(f"v_lshrrev_b32 v11, 1, v{R}"); k.e("v_mul_u32_u24 v11, 18, v11"); k.e(f"v_and_b32 v16, 1, v{R}")
    k.e("v_add3_u32 v11, v11, v16, 16")
    k.e("v_add_u32 v16, 36, v11")
    k.e("v_cmp_eq_u32 vcc, 8, v8")
    k.e("s_nop 1")
    k.e("v_cndmask_b32 v9, v9, v11, vcc"); k.e("v_cndmask_b32 v10, v10, v16, vcc")
    k.e("s_movk_i32 s38, 144"); k.e("v_mul_u32_u24 v9, s38, v9"); k.e("v_mul_u32_u24 v10, s38, v10")
    k.e("v_lshlrev_b32 v11, 5, v7"); k.e(f"v_lshl_add_u32 v11, v{C}, 3, v11"); k.e(f"v_add_u32 v11, s{S_LB}, v11")
    k.e("v_add_u32 v9, v9, v11"); k.e("v_add_u32 v10, v10, v11")
    k.e("ds_read_b64_tr_b16 v[12:13], v9")
    k.e("ds_read_b64_tr_b16 v[14:15], v10")
    k.e("s_movk_i32 s38, %d" % (18*1024)); k.e("v_mul_u32_u24 v7, s38, v7")
    k.e("s_mul_i32 s38, s46, 9"); k.e("v_add_u32 v8, s38, v8"); k.e("v_lshl_add_u32 v7, v8, 8, v7")
    k.e(f"v_lshl_add_u32 v7, v{V_M}, 4, v7")
    k.e("s_mul_i32 s44, s45, %d" % (5*18*1024)); k.e(f"s_add_u32 s44, s44, 0x{WOF:x}")
    k.e("s_waitcnt lgkmcnt(0)")
    k.e(f"buffer_store_dwordx4 v[12:15], v7, {WS}, s44 offen sc1")
    k.e("s_branch L_P_next")
    k.label("L_Pp_x0")
    k.e(f"v_and_b32 v6, 31, v{L}"); k.e(f"v_lshrrev_b32 v7, 5, v{L}")
    k.e("s_movk_i32 s38, 1152"); k.e("v_mul_u32_u24 v8, s38, v6"); k.e("v_lshl_add_u32 v8, v7, 4, v8")
    k.e("s_mul_i32 s38, s48, 96"); k.e(f"s_add_u32 s38, s38, s{S_LB}"); k.e("v_add_u32 v8, s38, v8")
    for i in range(3): k.e(f"ds_read_b128 v[{12+4*i}:{15+4*i}], v8 offset:{32*i}")
    k.e("v_lshlrev_b32 v9, 10, v7"); k.e("v_lshl_add_u32 v9, v6, 4, v9")
    k.e("s_lshr_b32 s40, s46, 1"); k.e(f"s_mul_i32 s40, s40, {TILEB}"); k.e("s_and_b32 s41, s46, 1"); k.e("s_lshl_b32 s41, s41, 9"); k.e("s_add_u32 s40, s40, s41")
    k.e("s_mul_i32 s41, s48, 6144"); k.e("s_add_u32 s40, s40, s41"); k.e(f"s_add_u32 s40, s40, 0x{X0P:x}"); k.e("s_add_u32 s41, s40, 4096")
    for i in range(3):
        k.e(f"s_waitcnt lgkmcnt({2-i})")
        k.e(f"buffer_store_dwordx4 v[{12+4*i}:{15+4*i}], v9, {WS}, s{40 if i < 2 else 41} offen offset:{2048*(i%2)} sc1")
    k.label("L_P_next")
    k.e("s_add_u32 s48, s48, 1"); k.e("s_bitcmp1_b32 s48, 0")
    k.e("s_nop 3")
    k.e("s_cbranch_scc1 L_P_vw")
    k.e(f"s_cmp_lt_u32 s{S_JOB}, {J_X0}"); k.e("s_cbranch_scc1 L_P_csq")
    k.e(f"s_cmp_lt_u32 s{S_JOB}, {J_W1}"); k.e("s_cbranch_scc1 L_P_tag")
    k.e(f"s_cmp_ge_u32 s{S_JOB}, {J_W2}"); k.e("s_cbranch_scc1 L_P_tag")
    k.e("s_mul_i32 s42, s46, %d" % (4608*4)); k.e("s_mul_i32 s40, s45, 2304"); k.e("s_add_u32 s42, s42, s40"); k.e(f"s_add_u32 s42, s42, 0x{CSP:x}")
    k.e("s_mul_i32 s40, s49, 384"); k.e("s_add_u32 s42, s42, s40")
    k.e(f"v_add_u32 v6, s39, v{L16}")
    k.e("s_waitcnt lgkmcnt(0)")
    k.e("ds_read_b128 v[28:31], v6")
    k.e("s_mov_b64 exec, 0xffffff")
    k.e("s_waitcnt lgkmcnt(0)")
    k.e(f"buffer_store_dwordx4 v[28:31], v{L16}, {WS}, s42 offen{WST}")
    k.e("s_mov_b64 exec, -1")
    k.e("s_branch L_P_tag")
    k.label("L_P_csq")
    k.e(f"s_mul_i32 s42, s{S_JOB}, 2304"); k.e(f"s_add_u32 s42, s42, 0x{CSQP:x}")
    k.e("s_mul_i32 s40, s49, 384"); k.e("s_add_u32 s42, s42, s40")
    k.e(f"v_add_u32 v6, s39, v{L16}")
    k.e("s_waitcnt lgkmcnt(0)")
    k.e("ds_read_b128 v[28:31], v6")
    k.e("s_mov_b64 exec, 0xffffff")
    k.e("s_waitcnt lgkmcnt(0)")
    k.e(f"buffer_store_dwordx4 v[28:31], v{L16}, {WS}, s42 offen sc1")
    k.e("s_mov_b64 exec, -1")
    k.label("L_P_tag")

def get_tag(k):
    lab = k.newlabel("L_tag")
    k.e("v_mov_b32 v8, 0")
    k.e("s_mov_b32 s38, 0x20000")
    k.label(lab)
    k.e("global_load_dwordx2 v[10:11], v8, s[34:35] sc1")
    k.e("s_waitcnt vmcnt(0)")
    k.e("v_readfirstlane_b32 s62, v10"); k.e("v_readfirstlane_b32 s63, v11")
    k.e("s_sub_u32 s38, s38, 1")
    k.e("s_cmp_eq_u32 s38, 0"); k.e(f"s_cbranch_scc1 {lab}_ok")
    k.e("s_and_b32 s36, s62, s63"); k.e("s_bitcmp1_b32 s36, 0"); k.e(f"s_cbranch_scc1 {lab}_ok")
    k.e("s_sleep 2"); k.e(f"s_branch {lab}")
    k.label(f"{lab}_ok")

def gen_main():
    name = NAME + "_kernel"
    k = K(); header(k, name, 256)
    k.e("s_load_dwordx2 s[22:23], s[0:1], 0")
    k.e("s_load_dwordx4 s[24:27], s[0:1], 8")
    k.e("s_load_dwordx4 s[28:31], s[0:1], 32")
    k.e("s_load_dwordx2 s[32:33], s[0:1], 48")
    k.e("s_load_dwordx4 s[4:7], s[0:1], 56")
    k.e("s_load_dwordx4 s[40:43], s[0:1], 72")
    k.e("s_memrealtime s[44:45]")
    wave_lane(k, V_L, S_W)
    k.e(f"v_lshlrev_b32 v{V_L16}, 4, v{V_L}")
    k.e(f"v_lshrrev_b32 v{V_G}, 4, v{V_L}"); k.e(f"v_and_b32 v{V_M}, 15, v{V_L}")
    k.e(f"s_cmp_lg_u32 s{S_W}, 0"); k.e("s_cbranch_scc1 L_M_nz")
    k.e(f"v_lshlrev_b32 v5, 3, v{V_L}"); k.e(f"v_add_u32 v5, {CNT}, v5"); k.e("v_mov_b32 v6, 0"); k.e("v_mov_b32 v7, 0"); k.e("ds_write_b64 v5, v[6:7]")
    k.label("L_M_nz")
    k.e("s_waitcnt lgkmcnt(0)")
    srd(k, 8, 42, 0, WSZ)
    srd(k, 12, 30, 0, 4608*2)
    srd(k, 16, 6, 0, XB)
    k.e("s_mov_b64 s[20:21], s[4:5]")
    k.e("s_mov_b64 s[34:35], s[40:41]")
    k.e(f"s_or_b32 s36, s2, s{S_W}"); k.e("s_cmp_lg_u32 s36, 0"); k.e("s_cbranch_scc1 L_M_nt")
    k.e("s_lshl_b32 s46, s45, 2"); k.e("s_lshr_b32 s47, s44, 31"); k.e("s_lshl_b32 s47, s47, 1"); k.e("s_or_b32 s46, s46, s47"); k.e("s_or_b32 s46, s46, 1")
    k.e("s_lshl_b32 s47, s44, 1"); k.e("s_or_b32 s47, s47, 1")
    k.e("v_mov_b32 v6, s47"); k.e("v_mov_b32 v7, s46"); k.e("v_mov_b32 v5, 0")
    k.e("s_mov_b64 exec, 1")
    k.e("global_store_dwordx2 v5, v[6:7], s[34:35] sc1")
    k.e("s_mov_b64 exec, -1")
    k.label("L_M_nt")
    if ENV("TLBW", 0):
        k.e(f"s_cmp_lg_u32 s{S_W}, 11"); k.e("s_cbranch_scc1 L_M_tw")
        k.e(f"v_lshlrev_b32 v5, 21, v{V_L}"); k.e("s_lshl_b32 s36, s2, 7"); k.e("v_add_u32 v5, s36, v5"); k.e("v_mov_b32 v6, 0")
        k.e(f"buffer_atomic_or v6, v5, {WS}, 0 offen sc1")
        k.label("L_M_tw")
    k.e("s_barrier")
    phase_P(k)
    get_tag(k)
    k.e(f"s_mov_b32 s{S_CNT}, {CNT}")
    if WREL:
        k.e(f"s_cmp_ge_u32 s{S_JOB}, {J_W1}"); k.e("s_cbranch_scc1 L_P_end")
    k.e(f"s_cmp_lt_u32 s{S_JOB}, {J_X0}"); k.e("s_cbranch_scc1 L_P_pq")
    publish(k, CP_DONE, 6, FLP, None, S_JOB, 8)
    k.e("s_branch L_P_end")
    k.label("L_P_pq")
    publish(k, CP_DONE, 6, FLQ, None, S_JOB, 8, repl=True)
    k.e("s_branch L_P_end")
    k.label("L_P_done")
    get_tag(k)
    k.label("L_P_end")
    if FS == "P": stamp(k, 1)
    def mapping2(Sx, ss, sr_, sidx):
        R = 32 // Sx; ng = 8 // Sx; lg = lambda x: x.bit_length() - 1
        k.e("s_and_b32 s36, s2, 7"); k.e("s_lshr_b32 s37, s2, 3")
        k.e(f"s_and_b32 s{ss}, s36, {ng-1}"); k.e(f"s_lshl_b32 s{ss}, s{ss}, {lg(Sx)}")
        k.e(f"s_and_b32 s38, s37, {Sx-1}"); k.e(f"s_add_u32 s{ss}, s{ss}, s38")
        k.e(f"s_lshr_b32 s{sr_}, s36, {lg(ng)}"); k.e(f"s_lshl_b32 s{sr_}, s{sr_}, {lg(R)}")
        k.e(f"s_lshr_b32 s{sidx}, s37, {lg(Sx)}"); k.e(f"s_add_u32 s{sr_}, s{sr_}, s{sidx}")
    mapping2(ENV('SX_L', 4), S_S, S_R, S_IDX)
    mapping2(SXC, S_SC, S_RC, S_IDX)
    rot18(k, S_IDX, S_ROT, 32 // SXC)
    sdivmod(k, 36, S_ROT2, S_IDX, 6, 32)
    if not ENV("ROT2", 1): k.e(f"s_mov_b32 s{S_ROT2}, 0")
    k.e(f"s_lshr_b32 s{S_CL}, s{S_W}, 2"); k.e(f"s_and_b32 s{S_WL}, s{S_W}, 3"); k.e(f"s_mov_b32 s{S_EARLY}, 0")
    k.e(f"s_mov_b32 s{S_LAY}, 0")
    k.e(f"s_mov_b32 s{S_XIN}, 0x{X0P:x}"); k.e(f"s_mov_b32 s{S_O}, 0x{O1:x}"); k.e(f"s_mov_b32 s{S_X1}, 0x{X1A:x}"); k.e(f"s_mov_b32 s{S_P}, 0x{P1:x}")
    k.e(f"s_mov_b32 s{S_FL}, 0x{FLG:x}"); k.e(f"s_mov_b32 s{S_CNT}, {CNT}")
    if ENV("PB4", 1): k.e("s_barrier")
    k.e(f"s_cmp_lg_u32 s{S_W}, 0"); k.e("s_cbranch_scc1 L_M_bar")
    k.e(f"s_lshl_b32 s36, s{S_R}, 1"); k.e("s_sub_u32 s36, s36, 1")
    k.e(f"v_add_u32 v9, s36, v{V_L}"); k.e("v_max_i32 v9, 0, v9")
    k.e("v_and_b32 v10, 7, v9"); k.e("v_lshrrev_b32 v9, 3, v9"); k.e("v_lshl_add_u32 v9, v10, 3, v9"); k.e(f"v_add_u32 v9, {J_X0}, v9")
    k.e("v_lshlrev_b32 v8, 7, v9")
    k.e(f"s_mov_b32 s37, 0x{FLP:x}")
    poll(k, 8, 37, 7, 10, ENV('PS2', 3))
    k.label("L_M_bar")
    if FS == "P": stamp(k, 2)
    k.e("s_barrier")
    if FS == "P": stamp(k, 3)
    k.label("L_layer")
    phase_A(k)
    npre = phase_B(k)
    phase_C(k, npre)
    phase_D(k)
    k.e(f"s_cmp_lg_u32 s{S_LAY}, 0"); k.e(f"s_cbranch_scc1 L_{name}_end")
    if STAMP and ENV("STAMP_L1", 0):
        k.e(f"s_branch L_{name}_end")
    k.e(f"s_mov_b32 s{S_LAY}, 1")
    k.e(f"s_cmp_lt_u32 s{S_CL}, {ENV('NEARLY', 0)}"); k.e(f"s_cselect_b32 s{S_EARLY}, 1, 0")
    k.e(f"s_mov_b32 s{S_XIN}, 0x{X2:x}"); k.e(f"s_mov_b32 s{S_O}, 0x{O2:x}"); k.e(f"s_mov_b32 s{S_X1}, 0x{X1B:x}"); k.e(f"s_mov_b32 s{S_P}, 0x{P2:x}")
    k.e(f"s_mov_b32 s{S_FL}, 0x{FLG+FLG_LAYER:x}"); k.e(f"s_mov_b32 s{S_CNT}, {CNT+128}")
    if STAMP: stamp(k, 0)
    k.e("s_branch L_layer")
    k.label(f"L_{name}_end")
    if STAMP:
        k.e("s_waitcnt vmcnt(0)")
        k.e(f"s_lshl_b32 s36, s{S_W}, 6"); k.e("v_mov_b32 v0, s36")
    stamp_end(k, KIDX[0]); KIDX[0] += 1
    k.label(f"L_{name}_exit")
    k.e("s_endpgm")
    return name, k.text(), desc(name, 168), (256, 768, LDS_TOTAL)

def main(out):
    n, t, d, (g, b, lds) = gen_main()
    ref = open(f"cdna_kernels/{NAME}.s.ref").read().splitlines()
    hdr = [l for l in ref if l.startswith(";") and "@launch" not in l and "Override" not in l and "grid=ceil" not in l]
    s = "\n".join(hdr) + "\n"
    if ENV("ASLIST", 1): s += f"; @launch kernel={n} grid=({g},1,1) block=({b},1,1) lds={lds}\n"
    else: s += f"; @launch grid=({g},1,1) block=({b},1,1) lds={lds}\n"
    s += '.amdgcn_target "amdgcn-amd-amdhsa--gfx950"\n.text\n' + t + d
    open(out, "w").write(s)

if __name__ == "__main__":
    main(sys.argv[1] if len(sys.argv) > 1 else f"cdna_kernels/{NAME}.s")
```

```python
import sys, struct, math, os
from asmlib import *

NAME = "interleave_layers__sliding_local_dilated__dense_activation_gelu__prompt"
XB = 2048 * 1152
TILEB = 73728
WQF, WOF, WFF = 0x0, 0x200000, 0x300000
CS1, CSQ = 0xE00000, 0xE10000
ST0, ST1A, ST2, ST1B = 0xE40000, 0xE80000, 0xEC0000, 0xF00000
X0P = 0x4C00000
O1, X1A, X2, O2, X1B, P1, P2 = 0x1000000, 0x1400000, 0x1800000, 0x1C00000, 0x2000000, 0x2400000, 0x3800000
WQF_SZ, WOF_SZ, WFF_SZ = 8*14*18*1024, 8*5*18*1024, 8*12*36*3072
ST_SZ = 32*8*64*8
ENV = lambda n, d: int(os.environ.get(n, str(d)))
STAMP = ENV("STAMP", 0)
STAMP_BASE = 0x8000000

def f32(x):
    return "0x%08x" % struct.unpack("<I", struct.pack("<f", x))[0]

def srd(k, d, b, add, size):
    if add:
        k.e(f"s_add_u32 s{d}, s{b}, 0x{add:x}")
        k.e(f"s_addc_u32 s{d+1}, s{b+1}, 0")
    else:
        k.e(f"s_mov_b32 s{d}, s{b}")
        k.e(f"s_mov_b32 s{d+1}, s{b+1}")
    k.e(f"s_mov_b32 s{d+2}, 0x{size:x}")
    k.e(f"s_mov_b32 s{d+3}, 0x20000")

def stamp(k, i):
    if not STAMP: return
    k.e("s_waitcnt lgkmcnt(0)"); k.lg = []
    k.e(f"s_memtime s[84:85]")
    k.e(f"s_memrealtime s[86:87]")
    k.e("s_waitcnt lgkmcnt(0)")
    k.e(f"s_mov_b32 s{64+i}, s84"); k.e(f"s_mov_b32 s{74+i}, s86")
def stamp_begin(k):
    if not STAMP: return
    for i in range(1, 9):
        k.e(f"s_mov_b32 s{64+i}, 0"); k.e(f"s_mov_b32 s{74+i}, 0")
    stamp(k, 0)
def stamp_end(k, kidx):
    if not STAMP: return
    k.e("s_waitcnt vmcnt(0)")
    stamp(k, 8)
    k.e("s_load_dwordx2 s[88:89], s[0:1], 80")
    k.e("s_getreg_b32 s90, hwreg(HW_REG_XCC_ID)")
    k.e("s_waitcnt lgkmcnt(0)")
    k.e("s_mov_b64 exec, 1")
    k.e(f"s_add_u32 s88, s88, 0x{STAMP_BASE:x}"); k.e("s_addc_u32 s89, s89, 0")
    k.e(f"s_add_u32 s91, s2, {kidx*512}"); k.e("s_lshl_b32 s91, s91, 4")
    k.e("v_lshrrev_b32 v1, 6, v0"); k.e("v_add_u32 v1, s91, v1"); k.e("v_lshlrev_b32 v1, 7, v1")
    vals = [64+i for i in range(9)] + [90] + [74+i for i in range(9)] + [90]
    for j, sreg in enumerate(vals):
        k.e(f"v_mov_b32 v{2+j}, s{sreg}")
    for j in range(0, 20, 4):
        k.e(f"global_store_dwordx4 v1, v[{2+j}:{5+j}], s[88:89] offset:{4*j}")

KIDX = [0]
def header(k, name, nwg):
    k.lines.append(f".globl {name}\n.p2align 8\n.type {name},@function\n{name}:")
    k.e(f"s_cmp_ge_u32 s2, {nwg}")
    k.e(f"s_cbranch_scc1 L_{name}_exit")
    stamp_begin(k)
def footer(k, name):
    k.label(f"L_{name}_end")
    stamp_end(k, KIDX[0]); KIDX[0] += 1
    k.label(f"L_{name}_exit")
    k.e("s_endpgm")

def desc(name, vgpr, sgpr=96):
    acc = (vgpr + 3) // 4 * 4
    return f""".section .rodata,"a"
.p2align 6
.amdhsa_kernel {name}
  .amdhsa_next_free_vgpr {vgpr}
  .amdhsa_next_free_sgpr {sgpr}
  .amdhsa_accum_offset {acc}
  .amdhsa_group_segment_fixed_size 0
  .amdhsa_kernarg_size 88
  .amdhsa_user_sgpr_count 2
  .amdhsa_user_sgpr_kernarg_segment_ptr 1
  .amdhsa_system_sgpr_workgroup_id_x 1
  .amdhsa_float_denorm_mode_32 3
.end_amdhsa_kernel
.text
"""

def divmod_const(k, q, rem, x, d, nmax, stmp):
    m, sh = magic(d, nmax)
    k.e(f"s_mov_b32 s{stmp}, {m}")
    k.e(f"v_mul_u32_u24 v{q}, s{stmp}, v{x}")
    k.e(f"v_lshrrev_b32 v{q}, {sh}, v{q}")
    if rem is not None:
        if d <= 64:
            k.e(f"v_mul_u32_u24 v{rem}, {d}, v{q}")
        else:
            k.e(f"v_mul_u32_u24 v{rem}, 0x{d:x}, v{q}")
        k.e(f"v_sub_u32 v{rem}, v{x}, v{rem}")

def sdivmod(k, q, rem, x, d, nmax):
    m, sh = magic(d, nmax)
    k.e(f"s_mul_i32 s{q}, s{x}, {m}"); k.e(f"s_lshr_b32 s{q}, s{q}, {sh}")
    if rem is not None:
        k.e(f"s_mul_i32 s{rem}, s{q}, {d}"); k.e(f"s_sub_u32 s{rem}, s{x}, s{rem}")

MAP = dict(attn=ENV("SX_A", 4), wo=ENV("SX_B", 8), ffn=ENV("SX_C", 2))
def mapping(k, Sx, ss=15, sr_=16, sidx=12):
    R = 32 // Sx; ng = 8 // Sx
    lg = lambda x: x.bit_length() - 1
    k.e("s_and_b32 s10, s2, 7")
    k.e("s_lshr_b32 s11, s2, 3")
    k.e(f"s_and_b32 s{ss}, s10, {ng-1}")
    k.e(f"s_lshl_b32 s{ss}, s{ss}, {lg(Sx)}")
    k.e(f"s_and_b32 s13, s11, {Sx-1}")
    k.e(f"s_add_u32 s{ss}, s{ss}, s13")
    k.e(f"s_lshr_b32 s{sr_}, s10, {lg(ng)}")
    k.e(f"s_lshl_b32 s{sr_}, s{sr_}, {lg(R)}")
    k.e(f"s_lshr_b32 s{sidx}, s11, {lg(Sx)}")
    k.e(f"s_add_u32 s{sr_}, s{sr_}, s{sidx}")

def rot18(k, sidx, srot, R):
    if not ENV("ROT", 0):
        k.e(f"s_mov_b32 s{srot}, 0"); return
    if R <= 16:
        mult = {4: 4, 8: 2, 16: 1}[R]
        k.e(f"s_mul_i32 s{srot}, s{sidx}, {mult}")
    else:
        k.e(f"s_sub_u32 s{srot}, s{sidx}, 18"); k.e(f"s_cmp_ge_u32 s{sidx}, 18"); k.e(f"s_cselect_b32 s{srot}, s{srot}, s{sidx}")

def wave_lane(k, vlane, swave):
    k.e(f"v_lshrrev_b32 v{vlane}, 6, v0")
    k.e("s_nop 0")
    k.e(f"v_readfirstlane_b32 s{swave}, v{vlane}")
    k.e(f"v_and_b32 v{vlane}, 63, v0")

def touch(k, srd_, L, n_instr, swave_idx, nwaves, per_slab, slab_stride, sbase, nslab, t, dummy, gran=64):
    t0, t1, t2 = t[:3]
    nmax = 32 * nwaves * n_instr * 64
    k.e(f"s_lshr_b32 s58, s2, 3"); k.e(f"s_mul_i32 s58, s58, {nwaves}"); k.e(f"s_add_u32 s58, s58, s{swave_idx}"); k.e(f"s_mul_i32 s58, s58, {n_instr*64}")
    for j in range(n_instr):
        k.e(f"v_add_u32 v{t0}, s58, v{L}")
        if j: k.e(f"v_add_u32 v{t0}, {64*j}, v{t0}")
        m, sh = magic2(per_slab, nmax)
        k.e(f"s_mov_b32 s59, {m}"); k.e(f"v_mul_hi_u32 v{t1}, v{t0}, s59")
        if sh: k.e(f"v_lshrrev_b32 v{t1}, {sh}, v{t1}")
        k.e(f"s_mov_b32 s59, {per_slab}"); k.e(f"v_mul_u32_u24 v{t2}, s59, v{t1}"); k.e(f"v_sub_u32 v{t0}, v{t0}, v{t2}")
        k.e(f"s_mov_b32 s59, {slab_stride}"); k.e(f"v_mul_u32_u24 v{t2}, s59, v{t1}")
        k.e(f"v_lshl_add_u32 v{t0}, v{t0}, {gran.bit_length()-1}, v{t2}")
        k.e(f"v_cmp_gt_u32 vcc, {nslab}, v{t1}")
        k.e(f"v_mov_b32 v{t2}, 0x7ff00000")
        k.e("s_nop 0")
        k.e(f"v_cndmask_b32 v{t0}, v{t2}, v{t0}, vcc")
        k.vmem(f"buffer_load_dword v{dummy}, v{t0}, s[{srd_}:{srd_+3}], s{sbase} offen", "touch")

def magic2(d, nmax):
    for sh in range(0, 12):
        m = (1 << (32 + sh)) // d + 1
        if m >= (1 << 32): continue
        if all((x * m) >> (32 + sh) == x // d for x in range(0, nmax, 1)):
            return m, sh
    raise ValueError

def dma(k, m0expr, voff, srd_, soff, tag=None):
    for l in m0expr: k.e(l)
    k.e("s_nop 0")
    k.vmem(f"buffer_load_dwordx4 v{voff}, s[{srd_}:{srd_+3}], {soff} offen{os.environ.get('PLD', ' nt')} lds", tag)

CSQP = 0xEA0000
CSP = 0xE40000
FSH, GSH = 7, 10
FLG = 0xF00000
FLG_LAYER = 256 << GSH
F_A, F_B, F_C, F_D = 0, 32 << GSH, 64 << GSH, 160 << GSH
FLP = FLG + 2*FLG_LAYER
J_WQ, J_X0, J_WO, J_W1, J_W2, J_END = 0, 56, 120, 184, 328, 472

def gemm_loop(k, nks, order, acc, bbuf, aslot, bread, ks0, nm, after=None, pre=None, BD=1, atag=None, gate=None):
    atag = atag or (lambda ks: ("a", ks0 + ks))
    nb = BD + 1
    for d in range(min(BD, nks)):
        if gate: gate(d)
        for mi in range(nm): bread(d, mi, bbuf(d % nb, mi))
    if pre: pre()
    for ks in range(nks):
        late = gate is not None and ks + BD < nks and gate(ks + BD, True)
        if ks + BD < nks and not late:
            for mi in range(nm): bread(ks + BD, mi, bbuf((ks + BD) % nb, mi))
        k.wait(vm=[atag(ks)], lg=[("b", ks)])
        for (mi, t) in order:
            c = "0" if ks == 0 else vr(acc(mi, t), 4)
            k.e(f"v_mfma_f32_16x16x32_bf16 {vr(acc(mi,t),4)}, {vr(aslot(ks0+ks,t),4)}, {vr(bbuf(ks % nb,mi),4)}, {c}")
        if after: after(ks)
        if late:
            gate(ks + BD)
            for mi in range(nm): bread(ks + BD, mi, bbuf((ks + BD) % nb, mi))


def gemm_loop_sp(k, nks, order, acc, bbuf, aslot, bread, ks0, nm, after=None, gate=None):
    if gate: gate(0)
    for mi in range(nm): bread(0, mi, bbuf(0, mi))
    pend = []
    for ks in range(nks):
        late = gate is not None and ks + 1 < nks and gate(ks + 1, True)
        k.wait(vm=[("a", ks0 + ks)], lg=[("b", ks)])
        fill = []
        if ks + 1 < nks and not late:
            fill += [("b", mi) for mi in range(nm)]
        fill2 = [("c", c) for c in pend]; pend = []
        seq = []
        while fill or fill2:
            if fill: seq.append(fill.pop(0))
            if fill2: seq.append(fill2.pop(0))
        n = len(order)
        pos = {}
        for j, it in enumerate(seq):
            pos.setdefault(min(n-1, (j * (n-1)) // max(1, len(seq))), []).append(it)
        for j, (mi, t) in enumerate(order):
            c = "0" if ks == 0 else vr(acc(mi, t), 4)
            k.e(f"v_mfma_f32_16x16x32_bf16 {vr(acc(mi,t),4)}, {vr(aslot(ks0+ks,t),4)}, {vr(bbuf(ks % 2,mi),4)}, {c}")
            for kind, x in pos.get(j, []):
                if kind == "b": bread(ks + 1, x, bbuf((ks + 1) % 2, x))
                else:
                    k.lines += x[0]; k.vm += x[1]
        if after:
            l0 = len(k.lines); v0 = len(k.vm)
            after(ks)
            lines = k.lines[l0:]; tags = k.vm[v0:]
            del k.lines[l0:]; del k.vm[v0:]
            cur = []; ti = 0
            for l in lines:
                cur.append(l)
                if "buffer_load" in l:
                    pend.append([cur, [tags[ti]]]); ti += 1; cur = []
            if cur:
                if pend: pend[-1][0] += cur
                else: k.lines += cur
            if late or ks == nks - 1:
                for x in pend:
                    k.lines += x[0]; k.vm += x[1]
                pend = []
        if late:
            gate(ks + 1)
            for mi in range(nm): bread(ks + 1, mi, bbuf((ks + 1) % 2, mi))

FS = os.environ.get("FS", "")
CPA = ENV("CPA", 0)
GX = ENV("GX", 1)
GXC = ENV("GXC", 1)
assert ENV("ROT", 0) == 0
A_HL = 73728
A_QK = 92160
QP, QPL = 48, 3968
TSTR = 4 * QPL
A_VP = A_QK + 2*TSTR
VPP, VPL = 80, 6784
A_ST = A_VP + 4*VPL
A_PM, A_PH = A_QK, A_QK + 6144
B_XB = 73728
C_HB = 73728
C_CS = 155648
C_B1 = C_CS + 3072
A_CQ = C_B1 + 2048
C_ST = 147456
A_PQ = A_QK + 12288
C_PM = 98304
A_SCR = A_ST + 640
CNT = 163328
LDS_TOTAL = 163840
CA_ST, CA_DONE, CB_DONE, CC_ST, CC_W1, CC_H0, CC_DONE, CD_DONE, CC_K2, CD_GO, CA_GO, CA_W, CA_X, CC_X = 0, 1, 2, 3, 4, 5, 8, 11, 14, 16, 20, 15, 24, 28
S_CL, S_WL, S_EARLY = 60, 61, 57
WSZ = 0x5000000
SXC = MAP["ffn"]

S_W, S_LAY, S_XIN, S_O, S_X1, S_P, S_FL, S_R, S_S, S_RC, S_SC, S_IDX, S_CNT, S_ROT, S_ROT2 = 3, 22, 23, 24, 25, 26, 28, 29, 30, 31, 32, 33, 27, 34, 35
WS = "s[8:11]"
WSC = os.environ.get("WSC", " sc1")
WREL = ENV("WREL", 0)
WST = "" if WREL else " sc1"
FLQ = FLP + 65536
S_SLOT, S_JOB, S_LB = 56, 51, 50
CP_WQ = 27
CP_LD, CP_DONE = 64, 66
V_L, V_L16, V_G, V_M = 1, 2, 3, 4
AR, EX = 88, 160

def lds_signal(k, slot, vt, byclass=False):
    k.e(f"s_add_u32 s36, s{S_CNT}, {4*slot}")
    if byclass:
        k.e(f"s_lshl_b32 s37, s{S_CL}, 2"); k.e("s_add_u32 s36, s36, s37")
    k.e(f"v_mov_b32 v{vt}, s36"); k.e(f"v_mov_b32 v{vt+1}, 1")
    k.e("s_mov_b64 exec, 1")
    k.lds(f"ds_add_u32 v{vt}, v{vt+1}", "cnt")
    k.e("s_mov_b64 exec, -1")

def lds_wait(k, slot, n, vt, sleep=2, byclass=False):
    lab = k.newlabel("L_lw")
    k.e(f"s_add_u32 s36, s{S_CNT}, {4*slot}")
    if byclass:
        k.e(f"s_lshl_b32 s37, s{S_CL}, 2"); k.e("s_add_u32 s36, s36, s37")
    k.e(f"v_mov_b32 v{vt}, s36")
    k.label(lab)
    k.e(f"ds_read_b32 v{vt+1}, v{vt}")
    k.e("s_waitcnt lgkmcnt(0)"); k.lg = []
    k.e(f"v_readfirstlane_b32 s36, v{vt+1}")
    k.e("s_nop 3")
    k.e(f"s_cmp_ge_u32 s36, {n}"); k.e(f"s_cbranch_scc1 {lab}_ok")
    k.e(f"s_sleep {sleep}")
    k.e(f"s_branch {lab}")
    k.label(f"{lab}_ok")

def SC(name):
    return "" if name in os.environ.get("NOSC", "").split(",") else " sc1"
def publish(k, slot, n, fbase, s_r, s_s, vt, byclass=False, sc=" sc1", repl=False):
    lab = k.newlabel("L_pub")
    k.e(f"s_add_u32 s36, s{S_CNT}, {4*slot}")
    if s_r is not None:
        k.e(f"s_lshl_b32 s37, s{s_r}, {GSH}"); k.e(f"s_lshl_b32 s38, s{s_s}, {FSH}"); k.e("s_add_u32 s37, s37, s38")
        k.e(f"s_add_u32 s37, s37, s{S_FL}"); k.e(f"s_add_u32 s37, s37, {fbase}")
    else:
        k.e(f"s_lshl_b32 s37, s{s_s}, {FSH}"); k.e(f"s_add_u32 s37, s37, 0x{fbase:x}")
        k.e(f"s_lshl_b32 s38, s{S_SLOT}, 2"); k.e("s_add_u32 s36, s36, s38")
    if byclass:
        k.e(f"s_lshl_b32 s38, s{S_CL}, 2"); k.e("s_add_u32 s36, s36, s38")
        k.e(f"s_lshl_b32 s38, s{S_CL}, {GSH+5}"); k.e("s_add_u32 s37, s37, s38")
    k.e("s_waitcnt vmcnt(0)"); k.vm = []
    k.e(f"v_mov_b32 v{vt}, s36"); k.e(f"v_mov_b32 v{vt+1}, 1")
    k.e("s_mov_b64 exec, 1")
    k.e(f"ds_add_rtn_u32 v{vt}, v{vt}, v{vt+1}")
    k.e("s_waitcnt lgkmcnt(0)"); k.lg = []
    k.e(f"v_readfirstlane_b32 s36, v{vt}")
    if repl: k.e("s_mov_b64 exec, 0xff")
    k.e(f"v_mov_b32 v{vt}, s62"); k.e(f"v_mov_b32 v{vt+1}, s63"); k.e(f"v_lshlrev_b32 v{vt+2}, 13, v{V_L}")
    k.e("s_nop 0")
    k.e(f"s_cmp_lg_u32 s36, {n-1}"); k.e(f"s_cbranch_scc1 {lab}")
    k.e(f"buffer_store_dwordx2 {vr(vt,2)}, v{vt+2}, {WS}, s37 offen{sc}")
    k.label(lab)
    k.e("s_mov_b64 exec, -1")

def poll(k, voff, soff, mask, vt, slp=None):
    assert vt % 2 == 0
    lab = k.newlabel("L_aw")
    k.e(f"s_mov_b32 exec_lo, 0x{mask & 0xffffffff:x}"); k.e(f"s_mov_b32 exec_hi, 0x{mask >> 32:x}")
    k.e("s_mov_b32 s38, 0x20000")
    k.label(lab)
    k.e(f"v_mov_b32 v{vt}, 0"); k.e(f"v_mov_b32 v{vt+1}, 0")
    k.e(f"buffer_atomic_or_x2 {vr(vt,2)}, v{voff}, {WS}, s{soff} offen sc0 sc1")
    k.e("s_waitcnt vmcnt(0)"); k.vm = []
    k.e(f"v_cmp_ne_u64 vcc, s[62:63], {vr(vt,2)}")
    k.e("s_sub_u32 s38, s38, 1")
    k.e("s_nop 3")
    k.e(f"s_cbranch_vccz {lab}_ok")
    k.e("s_cmp_eq_u32 s38, 0"); k.e(f"s_cbranch_scc1 {lab}_ok")
    k.e(f"s_sleep {ENV('PSLEEP', 3) if slp is None else slp}")
    k.e(f"s_branch {lab}")
    k.label(f"{lab}_ok")
    k.e("s_mov_b64 exec, -1")

def await_flags(k, fbase, s_r, vt, own=None):
    lab = k.newlabel("L_af")
    k.e(f"s_cmp_lg_u32 s{S_W}, {ENV('POLLW', 0)}"); k.e(f"s_cbranch_scc1 {lab}")
    lds_wait(k, own[0], own[1], vt, 1)
    k.e(f"s_lshl_b32 s37, s{s_r}, {GSH}"); k.e(f"s_add_u32 s37, s37, s{S_FL}"); k.e(f"s_add_u32 s37, s37, {fbase}")
    k.e(f"v_lshlrev_b32 v{vt}, {FSH}, v{V_L}")
    sv = k.snapshot()
    poll(k, vt, 37, 0xff, vt+2)
    k.restore(sv)
    k.label(lab)
    k.e("s_barrier")

def stats_acc(k, r4, va, first, sones):
    for j in range(4):
        c0 = "0" if (first and j == 0) else f"v{va}"
        c1 = "0" if (first and j == 0) else f"v{va+1}"
        k.e(f"v_dot2_f32_bf16 v{va}, v{r4+j}, s{sones}, {c0}")
        k.e(f"v_dot2_f32_bf16 v{va+1}, v{r4+j}, v{r4+j}, {c1}")

def stats_combine(k, src, R, vt, dst, halo, NP=12):
    k.e(f"v_lshlrev_b32 v{vt}, 3, v{V_L}"); k.e(f"v_add_u32 v{vt+1}, {src}, v{vt}")
    for p in range(NP): k.e(f"ds_read_b64 {vr(R+2*p,2)}, v{vt+1} offset:{512*p}")
    k.e("s_waitcnt lgkmcnt(0)")
    n = NP
    while n > 1:
        h = n // 2
        for j in range(h):
            k.e(f"v_add_f32 v{R+2*j}, v{R+2*j}, v{R+2*(n-1-j)}"); k.e(f"v_add_f32 v{R+2*j+1}, v{R+2*j+1}, v{R+2*(n-1-j)+1}")
        n -= h
    if halo:
        for op in ("v_permlane32_swap_b32", "v_permlane16_swap_b32"):
            k.e(f"v_mov_b32 v{R+2}, v{R}"); k.e(f"v_mov_b32 v{R+3}, v{R+1}")
            k.e("s_nop 1")
            k.e(f"{op} v{R}, v{R+2}"); k.e(f"{op} v{R+1}, v{R+3}")
            k.e("s_nop 1")
            k.e(f"v_add_f32 v{R}, v{R}, v{R+2}"); k.e(f"v_add_f32 v{R+1}, v{R+1}, v{R+3}")
        k.e(f"v_lshlrev_b32 v{vt}, 3, v{V_M}")
    k.e(f"v_mul_f32 v{R}, {f32(1/576)}, v{R}")
    k.e(f"v_mul_f32 v{R+1}, {f32(1/576)}, v{R+1}")
    k.e(f"v_fma_f32 v{R+1}, -v{R}, v{R}, v{R+1}")
    k.e(f"v_max_f32 v{R+1}, 0, v{R+1}")
    k.e(f"v_add_f32 v{R+1}, {f32(1e-5)}, v{R+1}")
    k.e(f"v_rsq_f32 v{R+2}, v{R+1}")
    k.e(f"v_add_u32 v{vt}, {dst}, v{vt}")
    k.e(f"v_mul_f32 v{R+3}, v{R}, v{R+2}")
    k.e(f"v_sub_f32 v{R+3}, 0, v{R+3}")
    k.e(f"ds_write_b64 v{vt}, {vr(R+2,2)}")
    k.e("s_waitcnt lgkmcnt(0)")

A_TILES = [9, 11, 4, 6, 0, 2, 13, 8, 0, 0, 0, 0]
def a_tile_setup(k):
    tab = sum(t << (4*i) for i, t in enumerate(A_TILES))
    k.e(f"s_mov_b32 s40, 0x{tab & 0xffffffff:x}"); k.e(f"s_mov_b32 s41, 0x{tab >> 32:x}")
    k.e(f"s_lshl_b32 s42, s{S_W}, 2"); k.e("s_lshr_b64 s[40:41], s[40:41], s42"); k.e("s_and_b32 s40, s40, 15")
    k.e(f"s_mul_i32 s41, s{S_S}, 14"); k.e("s_add_u32 s41, s41, s40")
    k.e(f"s_mul_i32 s42, s{S_W}, {2*6912}"); k.e(f"s_mul_i32 s43, s{S_S}, 288"); k.e("s_add_u32 s42, s42, s43"); k.e(f"s_add_u32 s42, s42, 0x{CSQP:x}")
    k.e("s_mul_i32 s41, s41, %d" % (18*1024))
    if WQF: k.e(f"s_add_u32 s41, s41, 0x{WQF:x}")
DA = ENV("DA", 6)
def a_load1(k, i):
    k.e(f"s_add_u32 s43, s41, {i*1024}")
    k.vmem(f"buffer_load_dwordx4 {vr(AR+4*i,4)}, v{V_L16}, {WS}, s43 offen{WSC}", ("a", i))
def a_load2(k, i):
    k.e(f"s_add_u32 s43, s41, {i*1024}"); k.e(f"s_add_u32 s44, s41, {(18+i)*1024}")
    k.vmem(f"buffer_load_dwordx4 {vr(AR+8*(i%9),4)}, v{V_L16}, {WS}, s43 offen{WSC}", ("a0", i))
    k.vmem(f"buffer_load_dwordx4 {vr(AR+8*(i%9)+4,4)}, v{V_L16}, {WS}, s44 offen{WSC}", ("a", i))
def a_prefetch(k, lo1, hi1, lo2, hi2, cs):
    lab = k.newlabel("L_apf")
    sv = k.snapshot()
    if cs:
        k.e(f"s_cmp_lt_u32 s{S_W}, 9"); k.e("s_cselect_b32 s43, 0, 0x70000000"); k.e(f"s_cmp_eq_u32 s{S_LAY}, 0"); k.e("s_cselect_b32 s43, s43, 0x70000000")
        divmod_const(k, 6, None, V_L, 18, 64, 44)
        k.e(f"v_mul_u32_u24 v6, 0x{2304-288:x}, v6"); k.e(f"v_add_u32 v6, v6, v{V_L16}")
        k.e(f"v_or_b32 v6, s43, v6")
        k.e(f"s_add_u32 s43, s42, 6912")
        k.e(f"buffer_load_dwordx4 {vr(EX,4)}, v6, {WS}, s42 offen{WSC}")
        k.e(f"buffer_load_dwordx4 {vr(EX+4,4)}, v6, {WS}, s43 offen{WSC}")
    k.e(f"s_cmp_lt_u32 s{S_W}, 6"); k.e(f"s_cbranch_scc1 {lab}_d")
    k.e(f"s_cmp_ge_u32 s{S_W}, 8"); k.e(f"s_cbranch_scc1 {lab}_f")
    for i in range(lo1, hi1): a_load1(k, i)
    k.e(f"s_branch {lab}_e")
    k.label(f"{lab}_f")
    for i in range(lo1, min(hi1, 9)): b_load(k, i)
    k.e(f"s_branch {lab}_e")
    k.label(f"{lab}_d")
    for i in range(lo2, hi2): a_load2(k, i)
    k.label(f"{lab}_e")
    k.restore(sv)

def b_setup(k):
    k.e(f"s_min_u32 s59, s{S_W}, 9")
    k.e(f"s_cmp_ge_u32 s59, 5"); k.e("s_cselect_b32 s45, 1, 0"); k.e("s_mul_i32 s46, s45, 5"); k.e(f"s_sub_u32 s46, s59, s46")
    k.e(f"s_mul_i32 s58, s{S_S}, 5"); k.e("s_add_u32 s58, s58, s46"); k.e("s_mul_i32 s58, s58, %d" % (18*1024))
    k.e("s_mul_i32 s59, s45, 9216"); k.e("s_add_u32 s58, s58, s59"); k.e(f"s_add_u32 s58, s58, 0x{WOF:x}")
def b_load(k, i):
    if i and i % 4 == 0: k.e(f"s_add_u32 s58, s58, 4096")
    k.vmem(f"buffer_load_dwordx4 {vr(124+4*i,4)}, v{V_L16}, {WS}, s58 offen offset:{(i%4)*1024}{WSC}", ("wb", i))

def c_stream_init(k):
    k.e(f"s_mul_i32 s47, s{S_SC}, 12"); k.e(f"s_add_u32 s47, s47, s{S_W}"); k.e("s_mul_i32 s47, s47, %d" % (36*3072)); k.e(f"s_add_u32 s47, s47, 0x{WFF:x}")
    k.e(f"s_mul_i32 s48, s{S_ROT}, 3072"); k.e("s_add_u32 s48, s48, s47")
    k.e("s_add_u32 s49, s47, %d" % (18*3072))
def c_aload(k, i, tg="a"):
    if i >= 18 and (i - 18) % 6 == 0:
        k.e("s_mov_b32 s47, s49"); k.e(f"s_mul_i32 s48, s{S_ROT2}, 3072"); k.e("s_add_u32 s48, s48, s47"); k.e("s_add_u32 s49, s47, %d" % (6*3072))
    slot = i % 6
    for t in range(3):
        k.vmem(f"buffer_load_dwordx4 {vr(AR+12*slot+4*t,4)}, v{V_L16}, {WS}, s48 offen offset:{1024*t}{WSC}", (tg, i) if t == 2 else (tg + "_", i))
    k.e("s_add_u32 s48, s48, 3072"); k.e("s_cmp_eq_u32 s48, s49"); k.e("s_cselect_b32 s48, s47, s48")

def touch_w(k, swidx, nwaves, t, dummy):
    G = ENV("TGRAN", 128)
    total = SXC * 12 * 36 * 3072 // G
    ni = -(-total // (32 * nwaves * 64))
    ng = 8 // SXC
    k.e(f"s_and_b32 s36, s2, {ng-1}"); k.e(f"s_mul_i32 s36, s36, {SXC*12*36*3072}"); k.e(f"s_add_u32 s36, s36, 0x{WFF:x}")
    k.e("s_lshr_b32 s37, s2, 3"); k.e(f"s_mul_i32 s37, s37, {nwaves}"); k.e(f"s_add_u32 s37, s37, s{swidx}"); k.e(f"s_mul_i32 s37, s37, {ni*64}")
    k.e(f"s_mov_b32 s38, {total}")
    for j in range(ni):
        k.e(f"v_add_u32 v{t}, s37, v{V_L}")
        if j: k.e(f"v_add_u32 v{t}, {64*j}, v{t}")
        k.e(f"v_min_u32 v{t}, s38, v{t}")
        k.e(f"v_lshlrev_b32 v{t}, {G.bit_length()-1}, v{t}")
        k.vmem(f"buffer_load_dword v{dummy}, v{t}, {WS}, s36 offen", "touch")

def phase_A(k):
    k.c("================ phase A")
    ACC, BB = 8, 28
    VB1, VB2, VH = 5, 6, 7
    if FS in ("", "A"): stamp(k, 1)
    k.e(f"s_mul_i32 s39, s{S_R}, {TILEB}"); k.e(f"s_add_u32 s39, s39, s{S_XIN}")
    k.e(f"s_mul_i32 s36, s{S_W}, 6144"); k.e("s_add_u32 s37, s39, s36"); k.e("s_add_u32 s38, s37, 4096")
    k.vm = []
    for i in range(6):
        k.vmem(f"buffer_load_dwordx4 {vr(8+4*i,4)}, v{V_L16}, {WS}, s{37 if i < 4 else 38} offen offset:{(i%4)*1024} sc1", ("x", i))
    k.e(f"v_lshlrev_b32 v{VB1}, 10, v{V_G}"); k.e(f"v_lshl_add_u32 v{VB1}, v{V_M}, 4, v{VB1}")
    k.e(f"s_cmp_eq_u32 s{S_R}, 0"); k.e("s_cselect_b32 s38, 0x70000000, 0")
    k.e(f"v_add_u32 v{VH}, s38, v{VB1}")
    k.e(f"s_mul_i32 s50, s{S_CL}, 6"); k.e(f"s_add_u32 s50, s50, s{S_WL}")
    k.e("s_lshl_b32 s37, s50, 12"); k.e("s_add_u32 s37, s37, s39"); k.e(f"s_sub_u32 s37, s37, {TILEB-768}")
    k.vmem(f"buffer_load_dwordx4 {vr(32,4)}, v{VH}, {WS}, s37 offen sc1", ("x", 6))
    k.e(f"s_cmp_ge_u32 s{S_WL}, 2"); k.e("s_cselect_b32 s38, 0x70000000, 0"); k.e(f"v_or_b32 v{VB2}, s38, v{VH}")
    k.e(f"s_add_u32 s37, s37, {4*4096}")
    k.vmem(f"buffer_load_dwordx4 {vr(36,4)}, v{VB2}, {WS}, s37 offen sc1", ("x", 7))
    a_tile_setup(k)
    PA = 0
    E1, E2 = 18, 9
    b_setup(k)
    c_stream_init(k)
    k.e(f"s_cmp_lg_u32 s{S_LAY}, 0"); k.e("s_cbranch_scc1 L_A_np")
    k.e(f"s_cmp_lg_u32 s{S_W}, 9"); k.e("s_cbranch_scc1 L_A_np")
    k.e("s_and_b32 s37, s2, 7"); k.e("s_lshl_b32 s37, s37, 6"); k.e(f"s_add_u32 s37, s37, {(FLQ-FLP)//128}"); k.e(f"v_add_u32 v44, s37, v{V_L}")
    k.e(f"s_add_u32 s37, s{S_S}, {J_WO - 8*54}"); k.e(f"v_lshlrev_b32 v45, 3, v{V_L}"); k.e("v_add_u32 v45, s37, v45")
    k.e(f"v_cmp_gt_u32 vcc, 54, v{V_L}")
    k.e("s_nop 1")
    k.e("v_cndmask_b32 v44, v45, v44, vcc"); k.e("v_lshlrev_b32 v44, 7, v44")
    k.e(f"s_mov_b32 s37, 0x{FLP:x}")
    sv = k.snapshot()
    poll(k, 44, 37, (1 << 62) - 1, 46, ENV('PS2', 3))
    k.restore(sv)
    k.e("s_mov_b32 s57, s36")
    lds_signal(k, CP_WQ - 0, 44)
    k.e("s_mov_b32 s36, s57")
    k.lg = []
    k.label("L_A_np")
    if ENV("GA", 0):
        k.e(f"s_cmp_eq_u32 s{S_LAY}, 0"); k.e("s_cbranch_scc1 L_A_k2ok")
        k.e("s_mov_b32 s57, s36")
        lds_wait(k, CC_K2 - 32, 12, 44, 4)
        k.e("s_mov_b32 s36, s57")
        k.label("L_A_k2ok")
    k.e("s_mov_b32 s38, 0x3f803f80")
    k.e(f"v_add_u32 v{VB2}, s36, v{V_L16}")
    for i in range(8):
        k.e(f"s_waitcnt vmcnt({7-i})")
        if i < 6:
            k.e(f"ds_write_b128 v{VB2}, {vr(8+4*i,4)} offset:{1024*i}")
            stats_acc(k, 8+4*i, 40, i == 0, 38)
        else:
            if i == 6:
                k.e("s_lshl_b32 s37, s50, 10"); k.e(f"s_add_u32 s37, s37, {A_HL}"); k.e(f"v_add_u32 v{VB2}, s37, v{V_L16}")
                k.e(f"ds_write_b128 v{VB2}, {vr(8+4*i,4)}")
            stats_acc(k, 8+4*i, 42, i == 6, 38)
    def late(fn): fn()
    k.e(f"s_cmp_ge_u32 s{S_WL}, 2"); k.e("s_cbranch_scc1 L_A_xs")
    k.e(f"ds_write_b128 v{VB2}, {vr(36,4)} offset:4096")
    k.label("L_A_xs")
    k.e(f"s_lshl_b32 s37, s{S_W}, 9"); k.e(f"v_lshlrev_b32 v{VB2}, 3, v{V_L}"); k.e(f"v_add_u32 v{VB2}, s37, v{VB2}"); k.e(f"v_add_u32 v{VB2}, {A_PM}, v{VB2}")
    k.e(f"ds_write_b64 v{VB2}, v[40:41]"); k.e(f"ds_write_b64 v{VB2}, v[42:43] offset:6144")
    k.e("s_waitcnt lgkmcnt(0)")
    if FS in ("", "A"): stamp(k, 2)
    if GX:
        lds_signal(k, CA_X, 44, byclass=True)
        k.e("s_waitcnt lgkmcnt(0)")
    else:
        k.e("s_barrier")
    k.lg = []
    k.e(f"s_cmp_lg_u32 s{S_LAY}, 0"); k.e("s_cbranch_scc1 L_A_wqok")
    lds_wait(k, CP_WQ, 1, 44)
    k.label("L_A_wqok")
    def gateA(ks, query=False):
        if not GX or ks % 6: return False
        if query: return True
        lds_wait(k, CA_X + ks//6, 4, EX)
    if FS == "G": stamp(k, 2)
    k.e(f"s_cmp_ge_u32 s{S_W}, 8"); k.e("s_cbranch_scc1 L_A_free")
    k.e(f"v_add_u32 v{VB2}, 49152, v{VB1}")
    k.e(f"v_add_u32 v{VH}, {A_HL}, v{V_L16}")
    def mk_bread(mts):
        def bread(ks, mi, reg):
            mt = mts[mi]
            if mt == 0:
                k.lds(f"ds_read_b128 {vr(reg,4)}, v{VH} offset:{ks*1024}", ("b", ks))
            else:
                off = ks*4096 + (mt-1)*256; base = VB1
                if off >= 49152: off -= 49152; base = VB2
                k.lds(f"ds_read_b128 {vr(reg,4)}, v{base} offset:{off}", ("b", ks))
        return bread
    def epi_stats(mts, T):
        sa = T + 5; ST = T + 6
        if FS == "G": stamp(k, 4)
        lds_wait(k, CA_ST, 3, T)
        k.e(f"v_lshlrev_b32 v{sa}, 3, v{V_M}"); k.e(f"v_add_u32 v{sa}, {A_ST}, v{sa}")
        for mi, mt in enumerate(mts):
            k.lds(f"ds_read_b64 {vr(ST+2*mi,2)}, v{sa} offset:{mt*128}", "str")
    def epilogue(tadd, mts, accf, csr, vpath, T):
        a0, a1, p, H, t, sa = T, T+1, T+2, T+3, T+4, T+5
        ST = T + 6; U = T + 16
        k.e(f"v_lshlrev_b32 v{p}, 2, v{V_G}")
        k.e(f"s_add_u32 s36, s40, {tadd}"); k.e("s_lshl_b32 s36, s36, 4")
        k.e(f"v_add_u32 v{p}, s36, v{p}")
        k.e(f"s_mov_b32 s36, {A_CQ}"); k.e(f"v_lshl_add_u32 v{sa}, v{p}, 2, s36")
        k.lds(f"ds_read_b128 {vr(csr,4)}, v{sa}", "str")
        for a in (a0, a1):
            divmod_const(k, H, None, p, 18, 232, 36)
            if not vpath:
                k.e(f"s_movk_i32 s36, {QPL-36}")
                k.e(f"v_mul_u32_u24 v{a}, s36, v{H}")
                k.e(f"v_lshl_add_u32 v{a}, v{p}, 1, v{a}")
                k.e(f"v_mul_u32_u24 v{t}, {QP}, v{V_M}")
                k.e(f"s_mov_b32 s36, {A_QK}")
            else:
                k.e(f"s_movk_i32 s36, {VPL-72}")
                k.e(f"v_mul_u32_u24 v{a}, s36, v{H}")
                k.e(f"v_lshl_add_u32 v{a}, v{p}, 2, v{a}")
                k.e(f"v_mul_u32_u24 v{t}, 0x{VPP:x}, v{V_M}")
                k.e(f"s_mov_b32 s36, {A_VP - 8*VPL}")
            k.e(f"v_add3_u32 v{a}, v{a}, v{t}, s36")
            if a == a0: k.e(f"v_add_u32 v{p}, 2, v{p}")
        if vpath:
            k.e("s_mov_b32 s36, 0x05040100"); k.e("s_mov_b32 s37, 0x07060302")
        k.wait(lg=["str"])
        for mi, mt in enumerate(mts):
            r = accf(mi)
            for j in range(4):
                k.e(f"v_mul_f32 v{r+j}, v{r+j}, v{ST+2*mi}")
                k.e(f"v_fmac_f32 v{r+j}, v{ST+2*mi+1}, v{csr+j}")
            k.e(f"v_cvt_pk_bf16_f32 v{r}, v{r}, v{r+1}")
            k.e(f"v_cvt_pk_bf16_f32 v{r+1}, v{r+2}, v{r+3}")
            if not vpath:
                k.lds(f"ds_write_b32 v{a0}, v{r} offset:{mt*16*QP}", "qw")
                k.lds(f"ds_write_b32 v{a1}, v{r+1} offset:{mt*16*QP}", "qw")
        if vpath:
            for mi, mt in enumerate(mts):
                r = accf(mi); u = U + 4*(mi & 1)
                if mi:
                    rp = accf(mi-1)
                    k.e(f"v_mov_b32_dpp v{r+2}, v{rp} row_shl:14 row_mask:0xf bank_mask:0xf")
                    k.e(f"v_mov_b32_dpp v{r+3}, v{rp+1} row_shl:14 row_mask:0xf bank_mask:0xf")
                k.e(f"v_mov_b32_dpp v{r+2}, v{r} row_shr:2 row_mask:0xf bank_mask:0xf")
                k.e(f"v_mov_b32_dpp v{r+3}, v{r+1} row_shr:2 row_mask:0xf bank_mask:0xf")
                k.e(f"v_perm_b32 v{u}, v{r+2}, v{r}, s36"); k.e(f"v_perm_b32 v{u+1}, v{r+2}, v{r}, s37")
                k.e(f"v_perm_b32 v{u+2}, v{r+3}, v{r+1}, s36"); k.e(f"v_perm_b32 v{u+3}, v{r+3}, v{r+1}, s37")
                k.lds(f"ds_write_b64 v{a0}, {vr(u,2)} offset:{mt*16*VPP}", "qw")
                k.lds(f"ds_write_b64 v{a1}, {vr(u+2,2)} offset:{mt*16*VPP}", "qw")
    def pair_path(mts, accb, bb, bstride, BD):
        nm = len(mts)
        k.lg = []
        k.vm = []
        DA2 = ENV("DA2", 5)
        st = dict(c=0, b=0, n=PA//2)
        def ld(i):
            if i < E2: late(lambda: a_load2(k, i))
            else: a_load2(k, i)
        def pre():
            while st["n"] < DA2: ld(st["n"]); st["n"] += 1
        def after(ks):
            if FS == "G" and ks == 8: stamp(k, 3)
            while st["n"] < 18 and st["n"] <= ks + (DA2 if st["n"] < E2 else max(DA2, E2)):
                ld(st["n"]); st["n"] += 1
            if ks >= 9:
                free = 8*(ks - 8)
                while st["c"] < CPA and 12*(st["c"]+1) <= free:
                    c_aload(k, st["c"], "c"); st["c"] += 1
                while st["b"] < 9 and 36 + 4*(st["b"]+1) <= free:
                    b_load(k, st["b"]); st["b"] += 1
        pre()
        gemm_loop(k, 18, [(mi, t) for mi in range(nm) for t in range(2)], lambda mi, t: accb + 4*nm*t + 4*mi, lambda par, mi: bb + bstride*par + 4*mi,
                  lambda i_, t: AR + 8*(i_ % 9) + 4*t, mk_bread(mts), 0, nm, after, None, BD=BD, gate=gateA)
        epi_stats(mts, bb)
    m5 = [0, 1, 2, 3, 4]; m4 = [1, 2, 3, 4]
    k.e(f"s_cmp_ge_u32 s{S_W}, 6"); k.e("s_cbranch_scc1 L_A_single")
    k.e(f"s_cmp_ge_u32 s{S_W}, 4"); k.e("s_cbranch_scc1 L_A_qpair")
    pair_path(m5, 8, 48, 20, 1)
    sv = k.snapshot()
    k.e(f"s_cmp_lt_u32 s{S_W}, 2"); k.e("s_cbranch_scc1 L_A_vpair")
    epilogue(0, m5, lambda mi: 8 + 4*mi, EX, False, 48)
    epilogue(1, m5, lambda mi: 28 + 4*mi, EX+4, False, 48)
    k.e("s_branch L_A_att")
    k.label("L_A_vpair")
    k.restore(sv)
    epilogue(0, m5, lambda mi: 8 + 4*mi, EX, True, 48)
    epilogue(1, m5, lambda mi: 28 + 4*mi, EX+4, True, 48)
    k.e("s_branch L_A_att")
    k.label("L_A_qpair")
    pair_path(m4, 8, 40, 16, 2)
    epilogue(0, m4, lambda mi: 8 + 4*mi, EX, False, 40)
    epilogue(1, m4, lambda mi: 24 + 4*mi, EX+4, False, 40)
    k.e("s_branch L_A_att")
    k.label("L_A_single")
    k.lg = []
    k.vm = []
    def ld1(i):
        if i < E1: late(lambda: a_load1(k, i))
        else: a_load1(k, i)
    def pre1():
        for i in range(PA, DA): ld1(i)
    def after1(ks):
        if ks + DA < 18: ld1(ks + DA)
        if ks in (9, 11, 13) and (ks - 9)//2 < CPA: c_aload(k, (ks - 9)//2, "c")
        if ks >= 9: b_load(k, ks - 9)
    pre1()
    gemm_loop(k, 18, [(mi, 0) for mi in range(5)], lambda mi, t: ACC + 4*mi, lambda par, mi: BB + 20*par + 4*mi,
              lambda i_, t: AR + 4*i_, mk_bread(m5), 0, 5, after1, None, BD=2, gate=gateA)
    epi_stats(m5, 28)
    sv = k.snapshot()
    k.e("s_cmp_ge_u32 s40, 9"); k.e("s_cbranch_scc1 L_A_vp")
    epilogue(0, m5, lambda mi: ACC + 4*mi, EX, False, 28)
    k.e("s_branch L_A_att")
    k.label("L_A_vp")
    k.restore(sv)
    k.e("s_mov_b32 exec_hi, 0")
    k.e("s_nop 4")
    epilogue(0, m5, lambda mi: ACC + 4*mi, EX, True, 28)
    k.e("s_mov_b64 exec, -1")
    k.e("s_branch L_A_att")
    k.label("L_A_free")
    k.e(f"s_cmp_eq_u32 s{S_W}, 9"); k.e("s_cbranch_scc1 L_A_fr2")
    if GX:
        for c in range(3): lds_wait(k, CA_X + c, 4, 8)
    k.e(f"s_cmp_eq_u32 s{S_W}, 8"); k.e("s_cbranch_scc1 L_A_combq")
    k.e(f"s_cmp_eq_u32 s{S_W}, 11"); k.e("s_cbranch_scc1 L_A_combh")
    stats_combine(k, A_PM, 8, VB2, A_ST + 128, False)
    k.e("s_branch L_A_combd")
    k.label("L_A_combh")
    stats_combine(k, A_PH, 8, VB2, A_ST, True)
    k.e("s_branch L_A_combd")
    k.label("L_A_combq")
    k.e(f"s_cmp_lg_u32 s{S_LAY}, 0"); k.e("s_cbranch_scc1 L_A_combd")
    divmod_const(k, 6, None, V_L, 18, 64, 44)
    k.e(f"v_mul_u32_u24 v6, 0x{2304-288:x}, v6"); k.e(f"v_add_u32 v6, v6, v{V_L16}")
    k.e(f"s_mul_i32 s42, s{S_S}, 288"); k.e(f"s_add_u32 s42, s42, 0x{CSQP:x}")
    for p in range(18):
        k.e(f"buffer_load_dwordx4 {vr(8+4*p,4)}, v6, {WS}, s42 offen{WSC}")
        if p < 17: k.e("s_add_u32 s42, s42, 6912")
    k.e(f"v_add_u32 v{VB2}, {A_CQ}, v{V_L16}")
    k.e("s_waitcnt vmcnt(0)")
    for p in range(1, 18):
        for j in range(4): k.e(f"v_add_f32 v{8+j}, v{8+j}, v{8+4*p+j}")
    k.e(f"ds_write_b128 v{VB2}, v[8:11]")
    k.e("s_waitcnt lgkmcnt(0)")
    k.label("L_A_combd")
    lds_signal(k, CA_ST, 8)
    k.e("s_waitcnt lgkmcnt(0)"); k.lg = []
    k.e("s_branch L_A_att")
    k.label("L_A_fr2")
    k.e(f"s_cmp_lg_u32 s{S_LAY}, 0"); k.e("s_cbranch_scc1 L_A_att")
    for c in range(3): lds_wait(k, CA_X + c, 4, 8)
    if WREL:
        k.e("s_cmp_lt_u32 s2, 104"); k.e("s_cbranch_scc1 L_A_norel")
        k.e("buffer_wbl2 sc1")
        k.e("s_waitcnt vmcnt(0)")
        k.e("s_cmp_lt_u32 s2, 120"); k.e("s_cselect_b32 exec_lo, 1, 3"); k.e("s_mov_b32 exec_hi, 0")
        k.e(f"v_mul_u32_u24 v10, 0x{152*8:x}, v{V_L}"); k.e("s_add_u32 s36, s2, 216"); k.e("s_lshl_b32 s36, s36, 3"); k.e("v_sub_u32 v10, s36, v10")
        k.e("v_mov_b32 v8, s62"); k.e("v_mov_b32 v9, s63"); k.e(f"s_mov_b32 s37, 0x{FLP:x}")
        k.e(f"buffer_store_dwordx2 v[8:9], v10, {WS}, s37 offen sc1")
        k.e("s_mov_b64 exec, -1")
        k.label("L_A_norel")
    k.e(f"s_lshl_b32 s37, s{S_SC}, 7"); k.e(f"s_add_u32 s37, s37, 0x{FLP + 128*J_W1:x}")
    k.e(f"v_lshlrev_b32 v8, 10, v{V_L}")
    poll(k, 8, 37, (1 << 36) - 1, 10, ENV('PS3', 24))
    k.label("L_A_att")
    k.vm = []; k.lg = []
    k.e("s_waitcnt lgkmcnt(0)")
    if FS in ("", "A"): stamp(k, 3)
    if FS == "G": stamp(k, 5)
    k.e("s_barrier")
    if FS == "A": stamp(k, 4)
    if FS == "G": stamp(k, 6)
    k.e(f"s_cmp_ge_u32 s{S_W}, 8"); k.e("s_cbranch_scc1 L_A_cs")
    VI, VHH, VQ, VK, VV = 5, 6, 7, 86, 87
    Q, KK, VP_, OA, PP, T0 = 8, 20, 20, 68, EX, EX+4
    att_start = len(k.lines)
    VHD = EX+6
    k.e(f"s_lshl_b32 s41, s{S_W}, 3")
    k.e(f"v_and_b32 v{VI}, 7, v{V_L}"); k.e(f"v_add_u32 v{VI}, s41, v{VI}")
    k.e(f"v_lshrrev_b32 v{VHH}, 5, v{V_L}")
    k.e(f"v_bfe_u32 v{VHD}, v{V_L}, 3, 2")
    k.e(f"v_mul_u32_u24 v{VQ}, {QP}, v{VI}")
    k.e(f"v_mul_u32_u24 v{VK}, 0x{QPL:x}, v{VHD}")
    k.e(f"s_mov_b32 s36, {A_QK + 16*QP}")
    k.e(f"v_add3_u32 v{VQ}, v{VQ}, v{VK}, s36")
    k.e(f"v_mul_u32_u24 v{VK}, 0x{8*QP:x}, v{VHH}"); k.e(f"v_sub_u32 v{VK}, v{VQ}, v{VK}")
    k.e(f"v_lshlrev_b32 v{T0}, 3, v{VHH}"); k.e(f"v_sub_u32 v{T0}, v{VI}, v{T0}")
    k.e(f"v_add_u32 v{VV}, 12, v{T0}"); k.e(f"v_mul_u32_u24 v{VV}, 0x{VPP:x}, v{VV}")
    k.e(f"v_mul_u32_u24 v{T0+1}, 0x{VPL:x}, v{VHD}"); k.e(f"s_mov_b32 s36, {A_VP}"); k.e(f"v_add3_u32 v{VV}, v{VV}, v{T0+1}, s36")
    def rdvec(reg, va, off, tag):
        k.lds(f"ds_read_b128 {vr(reg,4)}, v{va} offset:{off}", tag)
        k.lds(f"ds_read_b128 {vr(reg+4,4)}, v{va} offset:{off+16}", tag)
        k.lds(f"ds_read_b128 {vr(reg+8,4)}, v{va} offset:{off+32}", tag)
    rdvec(Q, VQ, 0, "q")
    for j in range(4): rdvec(KK + 12*j, VK, TSTR - 2*j*QP, ("k", j))
    k.e(f"s_lshl_b32 s36, s{S_R}, 6"); k.e(f"v_add_u32 v{T0}, s36, v{T0}")
    for j in range(4):
        k.e(f"v_cmp_le_i32 s[{50+2*j}:{51+2*j}], {2*j}, v{T0}")
    k.wait(lg=["q", ("k", 1)])
    for jj in range(9):
        for j in range(2):
            c = "0" if jj == 0 else f"v{PP+j}"
            k.e(f"v_dot2_f32_bf16 v{PP+j}, v{Q+jj}, v{KK+12*j+jj}, {c}")
    def rdvp(pr):
        off = (4*VPP if pr == 0 else 0)
        for q4 in range(5):
            k.lds(f"ds_read_b128 {vr(VP_+24*pr+4*q4,4)}, v{VV} offset:{off+16*q4}", ("v", pr))
    rdvp(0)
    k.wait(lg=[("k", 3)])
    for jj in range(9):
        for j in range(2, 4):
            c = "0" if jj == 0 else f"v{PP+j}"
            k.e(f"v_dot2_f32_bf16 v{PP+j}, v{Q+jj}, v{KK+12*j+jj}, {c}")
    rdvp(1)
    sc = (18 ** -0.5) * math.log2(math.e)
    k.e(f"v_mov_b32 v{T0}, {f32(-1e30)}")
    k.e("s_nop 1")
    for j in range(4): k.e(f"v_mul_f32 v{PP+j}, {f32(sc)}, v{PP+j}")
    for j in range(4): k.e(f"v_cndmask_b32 v{PP+j}, v{T0}, v{PP+j}, s[{50+2*j}:{51+2*j}]")
    k.e(f"v_max3_f32 v{T0}, v{PP}, v{PP+1}, v{PP+2}")
    k.e(f"v_max_f32 v{T0}, v{T0}, v{PP+3}")
    k.e(f"v_mov_b32 v{T0+1}, v{T0}")
    k.e("s_nop 1")
    k.e(f"v_permlane32_swap_b32 v{T0}, v{T0+1}")
    k.e("s_nop 1")
    k.e(f"v_max_f32 v{T0}, v{T0}, v{T0+1}")
    for j in range(4): k.e(f"v_sub_f32 v{PP+j}, v{PP+j}, v{T0}")
    for j in range(4): k.e(f"v_exp_f32 v{PP+j}, v{PP+j}")
    k.e("s_nop 0")
    k.e(f"v_cvt_pk_bf16_f32 v{PP}, v{PP}, v{PP+1}")
    k.e(f"v_cvt_pk_bf16_f32 v{PP+2}, v{PP+2}, v{PP+3}")
    k.e("s_mov_b32 s36, 0x3f803f80")
    k.e(f"v_dot2_f32_bf16 v{T0}, v{PP}, s36, 0")
    k.e(f"v_dot2_f32_bf16 v{T0}, v{PP+2}, s36, v{T0}")
    k.wait(lg=[("v", 0)])
    for d in range(18): k.e(f"v_dot2_f32_bf16 v{OA+d}, v{VP_+d}, v{PP}, 0")
    k.e(f"v_mov_b32 v{T0+1}, v{T0}")
    k.wait(lg=[("v", 1)])
    for d in range(18): k.e(f"v_dot2_f32_bf16 v{OA+d}, v{VP_+24+d}, v{PP+2}, v{OA+d}")
    k.e(f"v_permlane32_swap_b32 v{T0}, v{T0+1}")
    k.e("s_nop 1")
    k.e(f"v_add_f32 v{T0}, v{T0}, v{T0+1}")
    k.e(f"v_rcp_f32 v{T0}, v{T0}")
    pairs = [(d, d+8) for d in range(8)] + [(16, 17)]
    for a, b_ in pairs: k.e(f"v_permlane32_swap_b32 v{OA+a}, v{OA+b_}")
    k.e("s_nop 1")
    for a, b_ in pairs: k.e(f"v_add_f32 v{OA+a}, v{OA+a}, v{OA+b_}")
    for a, b_ in pairs: k.e(f"v_mul_f32 v{OA+a}, v{OA+a}, v{T0}")
    k.e(f"v_cvt_pk_bf16_f32 v{Q+4}, v{OA+16}, v{OA+16}")
    k.e(f"v_lshlrev_b32 v{VI}, 4, v{VI}")
    k.e(f"v_lshl_add_u32 v{VHD}, v{VHD}, 1, v{VHH}")
    k.e(f"v_lshl_add_u32 v{VK}, v{VHD}, 1, v{VI}"); k.e(f"v_add_u32 v{VK}, {A_SCR}, v{VK}")
    k.e(f"ds_write_b16 v{VK}, v{Q+4}")
    k.e(f"v_add_u32 v{VV}, {A_SCR}, v{VI}")
    for j in range(4): k.e(f"v_cvt_pk_bf16_f32 v{Q+j}, v{OA+2*j}, v{OA+2*j+1}")
    k.e("s_waitcnt lgkmcnt(0)")
    k.e(f"ds_read_b128 {vr(Q+4,4)}, v{VV}")
    k.e(f"v_lshl_add_u32 v{VQ}, v{VHD}, 10, v{VI}")
    k.e(f"s_mul_i32 s36, s{S_S}, 9216"); k.e(f"s_mul_i32 s37, s{S_R}, {TILEB}"); k.e("s_add_u32 s36, s36, s37"); k.e(f"s_add_u32 s36, s36, s{S_O}")
    k.e("s_add_u32 s38, s36, 8192")
    if FS == "A": stamp(k, 5)
    k.e(f"buffer_store_dwordx4 {vr(Q,4)}, v{VQ}, {WS}, s36 offen{SC('o')}")
    k.e("s_mov_b64 exec, 0xff")
    k.e("s_waitcnt lgkmcnt(0)")
    k.e(f"buffer_store_dwordx4 {vr(Q+4,4)}, v{VI}, {WS}, s38 offen{SC('o')}")
    k.e("s_mov_b64 exec, -1")
    publish(k, CA_DONE, 8, F_A, S_R, S_S, 20, sc=SC('o'))
    if FS == "A": stamp(k, 6)
    k.e("s_branch L_A_end")
    k.label("L_A_cs")
    k.e(f"s_cmp_ge_u32 s{S_W}, 10"); k.e("s_cbranch_scc1 L_A_nb")
    for i in range(PA, 9): b_load(k, i)
    k.label("L_A_nb")
    for i in range(CPA): c_aload(k, i, "c")
    k.vm = []
    k.e(f"s_cmp_lg_u32 s{S_LAY}, 0"); k.e("s_cbranch_scc1 L_A_end")
    k.e(f"s_cmp_eq_u32 s{S_WL}, 3"); k.e("s_cbranch_scc1 L_A_b1")
    k.e(f"s_mul_i32 s36, s{S_SC}, 2304"); k.e(f"s_lshl_b32 s37, s{S_WL}, 10"); k.e("s_add_u32 s36, s36, s37"); k.e(f"s_add_u32 s36, s36, 0x{CSP:x}")
    for i in range(18):
        k.e(f"buffer_load_dwordx4 {vr(8+4*i,4)}, v{V_L16}, {WS}, s36 offen{WSC}")
        if i < 17: k.e(f"s_add_u32 s36, s36, {4608*4}")
    k.e(f"s_add_u32 s37, s37, {C_CS}"); k.e(f"v_add_u32 v5, s37, v{V_L16}")
    k.e("s_waitcnt vmcnt(0)")
    for i in range(17):
        for j in range(4): k.e(f"v_add_f32 v{76+j}, v{76+j}, v{8+4*i+j}")
    k.e("ds_write_b128 v5, v[76:79]")
    k.e("s_waitcnt lgkmcnt(0)")
    k.e("s_branch L_A_end")
    k.label("L_A_b1")
    k.e(f"s_mul_i32 s38, s{S_SC}, 1152"); k.e(f"s_mov_b32 m0, {C_B1}"); k.e("s_nop 0")
    k.e(f"buffer_load_dwordx4 v{V_L16}, s[12:15], s38 offen lds")
    k.e(f"buffer_load_dwordx4 v{V_L16}, s[12:15], s38 offen offset:1024 lds")
    k.e("s_waitcnt vmcnt(0)")
    k.label("L_A_end")

def phase_B(k):
    k.c("================ phase B")
    VB1, VB2, VR_ = 5, 6, 7
    ACC, BB, RX, WB = 8, 24, 72, 124
    k.vm = []; k.lg = []
    k.e(f"s_mul_i32 s39, s{S_R}, {TILEB}")
    k.e(f"s_cmp_ge_u32 s{S_W}, 5"); k.e("s_cselect_b32 s45, 1, 0"); k.e("s_mul_i32 s46, s45, 5"); k.e(f"s_sub_u32 s46, s{S_W}, s46")
    k.e(f"v_lshrrev_b32 v{VR_}, 1, v{V_G}"); k.e(f"v_lshlrev_b32 v{VR_}, 10, v{VR_}")
    k.e(f"v_and_b32 v{VB2}, 31, v{V_L}"); k.e(f"v_lshl_add_u32 v{VR_}, v{VB2}, 4, v{VR_}")
    k.e(f"s_mul_i32 s40, s{S_S}, 9216"); k.e("s_add_u32 s40, s40, s39"); k.e("s_lshl_b32 s41, s46, 11"); k.e("s_add_u32 s40, s40, s41")
    k.e("s_lshl_b32 s41, s45, 9"); k.e("s_add_u32 s40, s40, s41")
    k.e("s_cmp_eq_u32 s46, 4"); k.e("s_cselect_b32 s41, 2, 4"); k.e("s_cmp_gt_u32 s46, 4"); k.e("s_cselect_b32 s41, 0, s41")
    k.e(f"v_cmp_gt_u32 vcc, s41, v{V_G}")
    k.e(f"v_mov_b32 v{VB2}, 0x70000000")
    k.e(f"s_add_u32 s41, s40, s{S_XIN}")
    k.e(f"v_cndmask_b32 v{VR_}, v{VB2}, v{VR_}, vcc")
    k.vmem(f"buffer_load_dwordx4 {vr(RX,4)}, v{VR_}, {WS}, s41 offen sc1", "r")
    NP1 = 3
    await_flags(k, F_A, S_R, 8, (CA_DONE, 8))
    if FS in ("", "A", "B"): stamp(k, {"A": 7, "B": 1}.get(FS, 4))
    k.e(f"s_mul_i32 s36, s{S_W}, 6144"); k.e("s_add_u32 s37, s39, s36"); k.e(f"s_add_u32 s37, s37, s{S_O}")
    for i in range(6):
        if i % 4 == 0:
            k.e(f"s_add_u32 m0, s36, {1024*i}")
            k.e("s_nop 0") if i == 0 else k.e("s_add_u32 s37, s37, 4096")
        k.vmem(f"buffer_load_dwordx4 v{V_L16}, {WS}, s37 offen offset:{(i%4)*1024} sc1 lds", "o")
    k.e(f"v_lshlrev_b32 v{VB1}, 10, v{V_G}"); k.e(f"v_lshl_add_u32 v{VB1}, v{V_M}, 4, v{VB1}")
    k.e("s_mul_i32 s41, s45, %d" % (9*4096)); k.e(f"v_add_u32 v{VB1}, s41, v{VB1}")
    k.e("s_lshl_b32 s41, s45, 9"); k.e("s_xor_b32 s42, s41, 512")
    k.e(f"v_add_u32 v{VB2}, s42, v{VB1}"); k.e(f"v_add_u32 v{VB1}, s41, v{VB1}")
    k.wait(vm0=True)
    if FS == "B": stamp(k, 2)
    k.e("s_barrier")
    if FS == "B": stamp(k, 3)
    vm_keep = list(k.vm)
    k.e(f"s_cmp_ge_u32 s{S_W}, 10"); k.e("s_cbranch_scc1 L_B_idle")
    def bread(ks, mi, reg):
        k.lds(f"ds_read_b128 {vr(reg,4)}, v{VB1 if mi < 2 else VB2} offset:{ks*4096 + (mi&1)*256}", ("b", ks))
    def afterB(ks):
        if ks % 2 == 0 and CPA + ks // 2 < 3: c_aload(k, CPA + ks // 2, "c")
    gemm_loop(k, 9, [(2, 0), (3, 0), (0, 0), (1, 0)], lambda mi, t: ACC + 4*mi, lambda par, mi: BB + 16*par + 4*mi, lambda i_, t: WB + 4*i_,
              bread, 0, 4, afterB, None, BD=2, atag=lambda ks: "none")
    k.e(f"s_lshl_b32 s41, s{S_W}, 11"); k.e(f"s_add_u32 s41, s41, {B_XB}"); k.e(f"v_add_u32 v{VB1}, s41, v{V_L16}")
    k.e(f"s_add_u32 s42, s{S_W}, 5"); k.e(f"s_sub_u32 s43, s{S_W}, 5"); k.e(f"s_cmp_ge_u32 s{S_W}, 5"); k.e("s_cselect_b32 s42, s43, s42")
    k.e("s_lshl_b32 s42, s42, 11"); k.e(f"s_add_u32 s42, s42, {B_XB}"); k.e(f"v_add_u32 v{VB2}, s42, v{V_L16}")
    k.e("s_nop 0")
    if FS == "B": stamp(k, 4)
    k.e(f"ds_write_b128 v{VB1}, {vr(ACC+8,4)}"); k.e(f"ds_write_b128 v{VB1}, {vr(ACC+12,4)} offset:1024")
    k.e("s_waitcnt lgkmcnt(0)")
    k.e("s_barrier")
    k.e(f"ds_read_b128 {vr(ACC+8,4)}, v{VB2}"); k.e(f"ds_read_b128 {vr(ACC+12,4)}, v{VB2} offset:1024")
    k.e(f"s_add_u32 s41, s40, s{S_X1}")
    k.e("s_waitcnt lgkmcnt(0)")
    for j in range(8): k.e(f"v_add_f32 v{ACC+j}, v{ACC+j}, v{ACC+8+j}")
    k.e("s_nop 1")
    for j in range(4): k.e(f"v_permlane16_swap_b32 v{ACC+j}, v{ACC+4+j}")
    k.e("s_nop 1")
    for j in range(4):
        k.e(f"v_lshlrev_b32 v{BB}, 16, v{RX+j}"); k.e(f"v_and_b32 v{BB+1}, 0xffff0000, v{RX+j}")
        k.e(f"v_add_f32 v{ACC+2*j}, v{ACC+2*j}, v{BB}"); k.e(f"v_add_f32 v{ACC+2*j+1}, v{ACC+2*j+1}, v{BB+1}")
        k.e(f"v_cvt_pk_bf16_f32 v{RX+j}, v{ACC+2*j}, v{ACC+2*j+1}")
    if FS == "B": stamp(k, 5)
    k.e(f"buffer_store_dwordx4 {vr(RX,4)}, v{VR_}, {WS}, s41 offen sc1")
    publish(k, CB_DONE, 10, F_B, S_R, S_S, 24)
    if FS == "B": stamp(k, 6)
    k.e("s_branch L_B_end")
    k.label("L_B_idle")
    for i in range(CPA, 3): c_aload(k, i, "c")
    k.e("s_barrier")
    k.label("L_B_end")
    k.vm = vm_keep; k.lg = []
    NP2 = ENV("NP2", 3)
    for i in range(NP1, NP2): c_aload(k, i)
    return NP2

def phase_C(k, npre):
    k.c("================ phase C")
    VB1, VB2, VT = 5, 6, 7
    ACC, BB = 8, 56
    D = 6
    k.e(f"s_mul_i32 s39, s{S_RC}, {TILEB}")
    await_flags(k, F_B, S_RC, 8, (CB_DONE, 10))
    if FS in ("", "B", "C"): stamp(k, {"B": 7, "C": 1}.get(FS, 5))
    k.e(f"s_mul_i32 s36, s{S_W}, 6144"); k.e("s_add_u32 s37, s36, s39"); k.e(f"s_add_u32 s37, s37, s{S_X1}")
    for i in range(6):
        if i and i % 4 == 0: k.e("s_add_u32 s37, s37, 4096")
        k.e(f"buffer_load_dwordx4 {vr(8+4*i,4)}, v{V_L16}, {WS}, s37 offen offset:{(i%4)*1024} sc1")
    k.e(f"s_lshl_b32 s37, s{S_ROT}, 12"); k.e("s_sub_u32 s36, s36, s37"); k.e(f"s_add_u32 s36, s36, {TILEB}")
    k.e("s_mov_b32 s38, 0x3f803f80")
    for i in range(6):
        k.e(f"s_sub_u32 s37, s36, {TILEB}"); k.e(f"s_cmp_ge_u32 s36, {TILEB}"); k.e("s_cselect_b32 s36, s37, s36")
        k.e(f"v_add_u32 v{VB2}, s36, v{V_L16}")
        k.e(f"s_waitcnt vmcnt({5-i})")
        k.e(f"ds_write_b128 v{VB2}, {vr(8+4*i,4)}")
        stats_acc(k, 8+4*i, 44, i == 0, 38)
        k.e("s_add_u32 s36, s36, 1024")
    k.e(f"s_lshl_b32 s37, s{S_W}, 9"); k.e(f"v_lshlrev_b32 v{VB2}, 3, v{V_L}"); k.e(f"v_add_u32 v{VB2}, s37, v{VB2}"); k.e(f"v_add_u32 v{VB2}, {C_PM}, v{VB2}")
    k.e(f"ds_write_b64 v{VB2}, v[44:45]")
    k.label("L_C_s4")
    k.vm = []
    k.e(f"v_lshlrev_b32 v{VB1}, 10, v{V_G}"); k.e(f"v_lshl_add_u32 v{VB1}, v{V_M}, 4, v{VB1}")
    k.e("s_waitcnt lgkmcnt(0)")
    if GXC:
        lds_signal(k, CC_X, 46, byclass=True)
        k.e("s_waitcnt lgkmcnt(0)")
    else:
        k.e("s_barrier")
    if FS in ("", "C"): stamp(k, {"C": 2}.get(FS, 6))
    k.lg = []
    def gate1(ks, query=False):
        if not GXC or ks % 6: return False
        if query: return True
        lds_wait(k, CC_X + ks//6, 4, EX)
    k.e(f"s_cmp_lg_u32 s{S_W}, 11"); k.e("s_cbranch_scc1 L_C_nocomb")
    if GXC:
        for c in range(3): lds_wait(k, CC_X + c, 4, 8)
    stats_combine(k, C_PM, 8, VB2, C_ST, False, 12)
    lds_signal(k, CC_ST, 8)
    k.e("s_waitcnt lgkmcnt(0)"); k.lg = []
    k.label("L_C_nocomb")
    k.e(f"v_add_u32 v{VB2}, 49152, v{VB1}")
    def bread1(ks, mi, reg):
        off = ks*4096 + mi*256; base = VB1
        if off >= 49152: off -= 49152; base = VB2
        k.lds(f"ds_read_b128 {vr(reg,4)}, v{base} offset:{off}", ("b", ks))
    accf = lambda mi, t: ACC + 12*mi + 4*t
    bbf = lambda par, mi: BB + 16*par + 4*mi
    asf = lambda i_, t: AR + 12*(i_ % D) + 4*t
    order = [(mi, t) for mi in range(4) for t in range(3)]
    DEFER = ENV("DEFER", 2)
    state = dict(n=npre)
    lim1 = ENV("LIM1", 18) if DEFER else 24
    def after1(ks):
        tgt = min(ks + 1 + D, lim1, state["n"] + 2)
        while state["n"] < tgt:
            c_aload(k, state["n"]); state["n"] += 1
            if DEFER == 1 and state["n"] == 18: lds_signal(k, CC_W1, EX)
    k.e(f"s_setprio {ENV('P1PRIO', 2)}")
    (gemm_loop_sp if ENV('SP', 0) & 1 else gemm_loop)(k, 18, order, accf, bbf, asf, bread1, 0, 4, after1, gate=gate1)
    k.e(f"s_setprio {ENV('GPRIO', 3)}")
    if FS == "C": stamp(k, 3)
    DEFN = ENV('DEFN', 12)
    sv2 = k.snapshot()
    def w2_check(final=False, first=False):
        if DEFER != 1: return
        lab = k.newlabel("L_w2")
        if not first:
            k.e("s_cmp_lg_u32 s56, 0"); k.e(f"s_cbranch_scc1 {lab}")
        else:
            k.e("s_mov_b32 s56, 0")
        k.e(f"s_add_u32 s36, s{S_CNT}, {4*CC_W1}")
        k.label(lab + "_p")
        k.e(f"v_mov_b32 v0, s36")
        k.e(f"ds_read_b32 v0, v0")
        k.e("s_waitcnt lgkmcnt(0)"); k.lg = []
        k.e(f"v_readfirstlane_b32 s37, v0")
        k.e("s_nop 3")
        k.e(f"s_cmp_ge_u32 s37, {DEFN}"); k.e(f"s_cbranch_scc1 {lab}_go")
        if final:
            k.e("s_sleep 4"); k.e(f"s_branch {lab}_p")
        else:
            k.e(f"s_branch {lab}")
        k.label(lab + "_go")
        k.vm = list(sv2[0])
        for i in range(18, 24): c_aload(k, i)
        k.e("s_mov_b32 s56, 1")
        k.label(lab)
    w2_check(first=True)
    lds_wait(k, CC_ST, 1, EX)
    CSR, B1R, T, STR = BB, BB+12, BB+24, EX
    k.e(f"s_lshr_b32 s40, s{S_W}, 1"); k.e(f"s_and_b32 s41, s{S_W}, 1"); k.e("s_mul_i32 s40, s40, 96")
    k.e("s_lshl_b32 s42, s41, 5"); k.e("s_add_u32 s42, s42, s40")
    k.e("s_lshl_b32 s43, s41, 4"); k.e("s_add_u32 s43, s43, s40"); k.e("s_add_u32 s43, s43, 64")
    k.e(f"v_lshlrev_b32 v{VB1}, 3, v{V_G}"); k.e(f"v_add_u32 v{VB1}, s42, v{VB1}")
    k.e(f"v_lshlrev_b32 v{VB2}, 2, v{V_G}"); k.e(f"v_add_u32 v{VB2}, s43, v{VB2}")
    k.e(f"s_mov_b32 s40, {C_CS}"); k.e(f"s_mov_b32 s41, {C_B1}")
    k.e(f"v_lshl_add_u32 v{VT}, v{VB1}, 2, s40")
    for j in range(2): k.lds(f"ds_read_b128 {vr(CSR+4*j,4)}, v{VT} offset:{16*j}", "cs")
    k.e(f"v_lshl_add_u32 v{VT}, v{VB2}, 2, s40")
    k.lds(f"ds_read_b128 {vr(CSR+8,4)}, v{VT}", "cs")
    k.e(f"v_lshl_add_u32 v{VT}, v{VB1}, 1, s41")
    k.lds(f"ds_read_b128 {vr(T,4)}, v{VT}", "cs")
    k.e(f"v_lshl_add_u32 v{VT}, v{VB2}, 1, s41")
    k.lds(f"ds_read_b64 {vr(T+4,2)}, v{VT}", "cs")
    k.e(f"v_lshlrev_b32 v{VB1}, 3, v{V_M}"); k.e(f"v_add_u32 v{VB1}, {C_ST}, v{VB1}")
    for mi in range(4): k.lds(f"ds_read_b64 {vr(STR+2*mi,2)}, v{VB1} offset:{128*mi}", "cs")
    k.e(f"s_bfe_u32 s40, s{S_W}, 0x10001"); k.e(f"s_and_b32 s41, s{S_W}, 1"); k.e("s_mul_i32 s40, s40, 3")
    k.e(f"s_sub_u32 s40, s40, s{S_ROT2}"); k.e("s_add_u32 s40, s40, 6")
    k.e(f"s_lshr_b32 s55, s{S_W}, 2"); k.e("s_mul_i32 s54, s55, 6")
    k.e("s_add_u32 s42, s40, s41"); k.e("s_sub_u32 s44, s42, 6"); k.e("s_cmp_ge_u32 s42, 6"); k.e("s_cselect_b32 s42, s44, s42")
    k.e("s_add_u32 s42, s42, s54"); k.e("s_lshl_b32 s42, s42, 12"); k.e(f"s_add_u32 s42, s42, {C_HB}")
    k.e("s_add_u32 s43, s40, 2"); k.e("s_sub_u32 s44, s43, 6"); k.e("s_cmp_ge_u32 s43, 6"); k.e("s_cselect_b32 s43, s44, s43")
    k.e("s_add_u32 s43, s43, s54"); k.e("s_lshl_b32 s43, s43, 12"); k.e("s_lshl_b32 s41, s41, 3"); k.e("s_add_u32 s43, s43, s41"); k.e(f"s_add_u32 s43, s43, {C_HB}")
    k.e(f"v_add_u32 v{VB1}, s42, v{V_L16}"); k.e(f"v_add_u32 v{VB2}, s43, v{V_L16}")
    c0 = -2.0 * math.sqrt(2.0/math.pi) * math.log2(math.e)
    c1 = c0 * 0.044715
    k.e(f"s_mov_b32 s44, {f32(c1)}"); k.e(f"v_mov_b32 v{VT}, {f32(c0)}")
    k.wait(lg=["cs"])
    for j in range(6):
        k.e(f"v_lshlrev_b32 v{B1R+2*j}, 16, v{T+j}"); k.e(f"v_and_b32 v{B1R+2*j+1}, 0xffff0000, v{T+j}")
    PK = ENV("PK", 0)
    if PK:
        k.e(f"s_mov_b32 s45, {f32(c1)}"); k.e(f"s_mov_b32 s50, {f32(c0)}"); k.e(f"s_mov_b32 s51, {f32(c0)}")
    for mi in range(4):
        a = accf(mi, 0)
        for (j0, n) in ((0, 8), (8, 4)):
            js = range(j0, j0+n)
            if ENV("NOGELU", 0) == 1:
                for j in js: k.e(f"v_mul_f32 v{T+j-j0}, v{a+j}, v{STR+2*mi}")
            elif ENV("NOGELU", 0) == 2:
                for j in js: k.e(f"v_fma_f32 v{T+j-j0}, v{STR+2*mi+1}, v{CSR+j}, v{B1R+j}")
                for j in js: k.e(f"v_fma_f32 v{a+j}, v{a+j}, v{STR+2*mi}, v{T+j-j0}")
                for j in js: k.e(f"v_mul_f32 v{T+j-j0}, v{a+j}, v{a+j}")
                for j in js: k.e(f"v_fma_f32 v{T+j-j0}, v{T+j-j0}, s44, v{VT}")
                for j in js: k.e(f"v_mul_f32 v{T+j-j0}, v{T+j-j0}, v{a+j}")
                for j in js: k.e(f"v_add_f32 v{T+j-j0}, 1.0, v{T+j-j0}")
                for j in js: k.e(f"v_mul_f32 v{T+j-j0}, 0.5, v{a+j}")
            elif not PK:
                for j in js: k.e(f"v_fma_f32 v{T+j-j0}, v{STR+2*mi+1}, v{CSR+j}, v{B1R+j}")
                for j in js: k.e(f"v_fma_f32 v{a+j}, v{a+j}, v{STR+2*mi}, v{T+j-j0}")
                for j in js: k.e(f"v_mul_f32 v{T+j-j0}, v{a+j}, v{a+j}")
                for j in js: k.e(f"v_fma_f32 v{T+j-j0}, v{T+j-j0}, s44, v{VT}")
                for j in js: k.e(f"v_mul_f32 v{T+j-j0}, v{T+j-j0}, v{a+j}")
                for j in js: k.e(f"v_exp_f32 v{T+j-j0}, v{T+j-j0}")
                for j in js: k.e(f"v_add_f32 v{T+j-j0}, 1.0, v{T+j-j0}")
                for j in js: k.e(f"v_rcp_f32 v{T+j-j0}, v{T+j-j0}")
                for j in js: k.e(f"v_mul_f32 v{T+j-j0}, v{T+j-j0}, v{a+j}")
            else:
                jp = range(j0, j0+n, 2)
                P = lambda r: vr(r, 2)
                st = P(STR+2*mi)
                for j in jp: k.e(f"v_pk_fma_f32 {P(T+j-j0)}, {st}, {P(CSR+j)}, {P(B1R+j)} op_sel:[1,0,0] op_sel_hi:[1,1,1]")
                for j in jp: k.e(f"v_pk_fma_f32 {P(a+j)}, {P(a+j)}, {st}, {P(T+j-j0)} op_sel:[0,0,0] op_sel_hi:[1,0,1]")
                for j in jp: k.e(f"v_pk_mul_f32 {P(T+j-j0)}, {P(a+j)}, s[44:45]")
                for j in jp: k.e(f"v_pk_fma_f32 {P(T+j-j0)}, {P(T+j-j0)}, {P(a+j)}, s[50:51]")
                for j in jp: k.e(f"v_pk_mul_f32 {P(T+j-j0)}, {P(T+j-j0)}, {P(a+j)}")
                for j in js: k.e(f"v_exp_f32 v{T+j-j0}, v{T+j-j0}")
                for j in jp: k.e(f"v_pk_add_f32 {P(T+j-j0)}, {P(T+j-j0)}, 1.0 op_sel_hi:[1,0]")
                for j in js: k.e(f"v_rcp_f32 v{T+j-j0}, v{T+j-j0}")
                for j in jp: k.e(f"v_pk_mul_f32 {P(T+j-j0)}, {P(T+j-j0)}, {P(a+j)}")
            for j in range(n//2): k.e(f"v_cvt_pk_bf16_f32 v{a+j0+j}, v{T+2*j}, v{T+2*j+1}")
            if j0 == 0: k.lds(f"ds_write_b128 v{VB1}, {vr(a,4)} offset:{mi*1024}", "hw")
            else: k.lds(f"ds_write_b64 v{VB2}, {vr(a+8,2)} offset:{mi*1024}", "hw")
            if DEFER == 2 and state["n"] < 24:
                c_aload(k, state["n"]); state["n"] += 1
        if mi < 3: w2_check()
    k.e(f"v_add_u32 v{VB1}, {C_HB}, v{V_L16}"); k.e(f"v_add_u32 v{VB2}, {C_HB+49152}, v{V_L16}")
    k.e("s_lshl_b32 s55, s55, 2"); k.e(f"s_add_u32 s55, s55, s{S_CNT}"); k.e(f"s_add_u32 s55, s55, {4*CC_H0}")
    k.e(f"v_mov_b32 v{EX+2}, s55"); k.e(f"v_mov_b32 v{EX+3}, 1")
    k.wait(lg0=True)
    k.e("s_mov_b64 exec, 1")
    k.e(f"ds_add_u32 v{EX+2}, v{EX+3}")
    k.e("s_mov_b64 exec, -1")
    k.e(f"s_setprio {ENV('P2PRIO', 0)}")
    if FS == "C": stamp(k, 4)
    w2_check(final=True)
    if FS == "C": stamp(k, 5)
    def gate(ks, query=False):
        if ks % 6: return False
        if query: return True
        lds_wait(k, CC_H0 + ks//6, 4, EX)
    def bread2(ks, mi, reg):
        off = (ks*4 + mi) * 1024; base = VB1
        if off >= 49152: off -= 49152; base = VB2
        k.lds(f"ds_read_b128 {vr(reg,4)}, v{base} offset:{off}", ("b", ks))
    def after2(ks):
        if 18 + ks + D < 36: c_aload(k, 18 + ks + D)
    (gemm_loop_sp if ENV('SP', 0) & 2 else gemm_loop)(k, 18, order, accf, bbf, asf, bread2, 18, 4, after2, gate=gate)
    k.e("s_setprio 0")
    if FS == "C": stamp(k, 6)
    if FS == "D": stamp(k, 1)
    k.e(f"v_lshlrev_b32 v{VB1}, 10, v{V_G}"); k.e(f"v_lshl_add_u32 v{VB1}, v{V_M}, 4, v{VB1}")
    k.e(f"v_lshrrev_b32 v{VB2}, 1, v{V_G}"); k.e(f"v_lshlrev_b32 v{VB2}, 10, v{VB2}"); k.e(f"v_and_b32 v{VT}, 31, v{V_L}")
    k.e(f"v_lshl_add_u32 v{VB2}, v{VT}, 4, v{VB2}")
    k.e(f"s_mul_i32 s40, s{S_SC}, {XB}"); k.e("s_add_u32 s40, s40, s39"); k.e(f"s_mul_i32 s41, s{S_W}, 6144"); k.e("s_add_u32 s40, s40, s41")
    k.e(f"s_add_u32 s40, s40, s{S_P}")
    k.e("s_add_u32 s41, s40, 4096")
    for mp in range(2):
        T2 = BB + 16 + 4*mp
        for mi in (2*mp, 2*mp+1):
            a = accf(mi, 0); T_ = BB + 4*mi
            for j in range(4): k.e(f"v_cvt_pk_bf16_f32 v{T_+j}, v{a+2*j}, v{a+2*j+1}")
            for j in range(2): k.e(f"v_cvt_pk_bf16_f32 v{T2+2*(mi&1)+j}, v{a+8+2*j}, v{a+8+2*j+1}")
            k.e(f"buffer_store_dwordx4 {vr(T_,4)}, v{VB1}, {WS}, s40 offen offset:{256*mi} sc1")
        k.e("s_nop 0")
        k.e(f"v_permlane16_swap_b32 v{T2}, v{T2+2}"); k.e(f"v_permlane16_swap_b32 v{T2+1}, v{T2+3}")
        k.e("s_nop 0")
        k.e(f"buffer_store_dwordx4 {vr(T2,4)}, v{VB2}, {WS}, s41 offen offset:{512*mp} sc1")
    k.e(f"s_mul_i32 s40, s{S_CL}, 24"); k.e(f"s_mul_i32 s41, s{S_S}, 3"); k.e("s_add_u32 s40, s40, s41"); k.e(f"s_add_u32 s40, s40, s{S_WL}")
    k.e("s_min_u32 s40, s40, 71"); k.e("s_lshl_b32 s40, s40, 4")
    k.e("s_load_dwordx4 s[52:55], s[20:21], s40")
    lds_signal(k, CC_K2, 8)
    publish(k, CC_DONE, 4, F_C, S_RC, S_SC, 8, byclass=True)
    if FS in ("", "C", "D"): stamp(k, {"D": 2}.get(FS, 7))

def phase_D(k):
    k.c("================ phase D (per class)")
    k.e(f"s_cmp_lg_u32 s{S_WL}, 3"); k.e("s_cbranch_scc1 L_D_work")
    GD = ENV("GD", 0); GA = ENV("GA", 0)
    k.e(f"s_cmp_lg_u32 s{S_CL}, 0"); k.e("s_cbranch_scc1 L_D_g1")
    if GD == 0: lds_wait(k, CC_DONE + 1, 4, 8, 8)
    k.e("s_branch L_D_g2")
    k.label("L_D_g1")
    if GD < 2: lds_wait(k, CC_K2, 12, 8, 4)
    k.label("L_D_g2")
    lds_wait(k, CC_DONE, 4, 8, 1, byclass=True)
    k.e(f"s_lshl_b32 s39, s{S_R}, {GSH}"); k.e(f"s_lshl_b32 s38, s{S_CL}, {GSH+5}"); k.e("s_add_u32 s39, s39, s38"); k.e(f"s_add_u32 s39, s39, s{S_FL}")
    k.e(f"s_add_u32 s37, s39, {F_C}")
    k.e(f"v_lshlrev_b32 v8, {FSH}, v{V_L}")
    poll(k, 8, 37, 0xff, 12, ENV('PSD', 3))
    lds_signal(k, CD_GO, 10, byclass=True)
    k.e(f"s_cmp_lg_u32 s{S_LAY}, 0"); k.e("s_cbranch_scc1 L_D_idle")
    lds_wait(k, CD_DONE, 3, 10, 2, byclass=True)
    if not GA: lds_wait(k, CC_K2, 12, 10, 8)
    k.e(f"s_add_u32 s37, s39, {F_D}")
    k.e(f"s_cmp_eq_u32 s{S_R}, 0"); k.e(f"s_cselect_b32 s38, 0, {1 << GSH}"); k.e("s_sub_u32 s37, s37, s38"); k.e(f"s_sub_u32 s38, s38, {8 << FSH}")
    k.e(f"v_cmp_le_u32 vcc, 8, v{V_L}"); k.e("v_mov_b32 v9, s38")
    k.e("s_nop 0")
    k.e("v_cndmask_b32 v9, 0, v9, vcc"); k.e("v_add_u32 v8, v8, v9")
    poll(k, 8, 37, 0xffff, 12, ENV('PSD', 3))
    lds_signal(k, CA_GO, 10, byclass=True)
    k.e("s_waitcnt lgkmcnt(0)")
    k.e("s_branch L_D_idle")
    k.label("L_D_work")
    k.e(f"s_mul_i32 s39, s{S_R}, {TILEB}"); k.e("s_lshl_b32 s41, s40, 6"); k.e("s_add_u32 s41, s41, s39")
    lds_wait(k, CD_GO, 1, 8, 2, byclass=True)
    if FS == "D": stamp(k, 3)
    k.vm = []
    k.e(f"s_add_u32 s42, s41, s{S_X1}")
    k.vmem(f"buffer_load_dwordx4 v[40:43], v{V_L16}, {WS}, s42 offen sc1", "x1")
    k.e(f"s_add_u32 s42, s41, s{S_P}")
    for s in range(8):
        k.vmem(f"buffer_load_dwordx4 {vr(8+4*s,4)}, v{V_L16}, {WS}, s42 offen sc1", s)
        if s < 7: k.e(f"s_add_u32 s42, s42, {XB}")
    k.wait(vm=["x1"])
    for j in range(4):
        k.e(f"s_lshl_b32 s43, s{52+j}, 16"); k.e(f"s_and_b32 s44, s{52+j}, 0xffff0000")
        k.e(f"v_lshlrev_b32 v{48+2*j}, 16, v{40+j}"); k.e(f"v_and_b32 v{49+2*j}, 0xffff0000, v{40+j}")
        k.e(f"v_add_f32 v{48+2*j}, s43, v{48+2*j}"); k.e(f"v_add_f32 v{49+2*j}, s44, v{49+2*j}")
    for s in range(8):
        k.wait(vm=[s])
        for j in range(4):
            r = 8 + 4*s + j
            k.e(f"v_lshlrev_b32 v5, 16, v{r}"); k.e(f"v_and_b32 v6, 0xffff0000, v{r}")
            k.e(f"v_add_f32 v{48+2*j}, v{48+2*j}, v5"); k.e(f"v_add_f32 v{49+2*j}, v{49+2*j}, v6")
    for j in range(4): k.e(f"v_cvt_pk_bf16_f32 v{8+j}, v{48+2*j}, v{49+2*j}")
    if FS == "D": stamp(k, 4)
    k.e(f"s_cmp_lg_u32 s{S_LAY}, 0"); k.e("s_cbranch_scc1 L_D_final")
    k.e(f"s_add_u32 s42, s41, 0x{X2:x}")
    k.e(f"buffer_store_dwordx4 v[8:11], v{V_L16}, {WS}, s42 offen sc1")
    publish(k, CD_DONE, 3, F_D, S_R, S_S, 14, byclass=True)
    if FS == "D": stamp(k, 5)
    lds_wait(k, CA_GO, 1, 8, 2, byclass=True)
    if FS == "D": stamp(k, 6)
    k.e("s_branch L_D_idle")
    k.label("L_D_final")
    k.e("s_movk_i32 s42, 1152"); k.e(f"v_mul_u32_u24 v5, s42, v{V_L}")
    k.e("s_add_u32 s42, s39, s40")
    k.e("buffer_store_dwordx4 v[8:11], v5, s[16:19], s42 offen")
    k.label("L_D_idle")


def phase_P(k):
    k.c("================ phase P (weight re-layout), waves 0-5: job b, waves 6-11: job 256+b")
    L, L16, G, R, C = V_L, V_L16, V_G, 46, 47
    IN = "s[52:55]"
    k.e(f"v_bfe_u32 v{R}, v{L}, 2, 2"); k.e(f"v_and_b32 v{C}, 3, v{L}")
    k.e(f"s_cmp_ge_u32 s{S_W}, 6"); k.e(f"s_cselect_b32 s{S_SLOT}, 1, 0")
    k.e("s_add_u32 s36, s2, 64"); k.e("s_cmp_lt_u32 s2, 120"); k.e("s_cselect_b32 s36, s2, s36")
    k.e("s_add_u32 s37, s2, 216"); k.e("s_cmp_lt_u32 s2, 104"); k.e("s_cselect_b32 s37, 999, s37")
    k.e("s_add_u32 s38, s2, 120"); k.e("s_cmp_lt_u32 s2, 64"); k.e("s_cselect_b32 s37, s38, s37")
    k.e(f"s_cmp_eq_u32 s{S_SLOT}, 0"); k.e(f"s_cselect_b32 s{S_JOB}, s36, s37")
    k.e(f"s_mul_i32 s{S_LB}, s{S_SLOT}, 36864")
    k.e(f"s_mul_i32 s49, s{S_SLOT}, 6"); k.e(f"s_sub_u32 s49, s{S_W}, s49")
    k.e(f"s_and_b32 s45, s{S_JOB}, 7"); k.e(f"s_lshr_b32 s46, s{S_JOB}, 3")
    k.e(f"s_cmp_ge_u32 s{S_JOB}, {J_END}"); k.e("s_cbranch_scc1 L_P_done")
    k.e(f"s_and_b32 s36, s{S_JOB}, 0xfffe"); k.e("s_cmp_eq_u32 s36, 54"); k.e("s_cbranch_scc1 L_P_done")
    def dispatch(pfx):
        for bound, lab in ((J_X0, "wq"), (J_WO, "x0"), (J_W1, "wo"), (J_W2, "w1")):
            k.e(f"s_cmp_lt_u32 s{S_JOB}, {bound}"); k.e(f"s_cbranch_scc1 L_P{pfx}_{lab}")
        k.e(f"s_branch L_P{pfx}_w2")
    def pdma(i, voff, soff):
        k.e(f"s_add_u32 m0, s37, {6144*i}")
        k.e("s_nop 0")
        k.e(f"buffer_load_dwordx4 v{voff}, {IN}, {soff} offen nt lds")
    def lin_dma(n_i, per_row, nmax, pitch):
        k.e("s_lshl_b32 s36, s49, 6")
        for i in range(n_i):
            k.e(f"v_add_u32 v6, s36, v{L}")
            if i: k.e(f"v_add_u32 v6, {384*i}, v6")
            divmod_const(k, 7, 8, 6, per_row, nmax, 38)
            k.e(f"s_mov_b32 s38, {pitch}")
            k.e("v_mul_u32_u24 v7, s38, v7")
            k.e("v_lshl_add_u32 v7, v8, 4, v7")
            pdma(i, 7, "s40")
    def cont_dma():
        k.e("s_lshl_b32 s36, s49, 10"); k.e("s_add_u32 s40, s40, s36")
        for i in range(6):
            pdma(i, L16, "s40")
            if i < 5: k.e("s_add_u32 s40, s40, 6144")
    k.e(f"s_lshl_b32 s37, s49, 10"); k.e(f"s_add_u32 s37, s37, s{S_LB}")
    dispatch("i")
    k.label("L_Pi_wq")
    srd(k, 52, 24, 0, 576*1728*2)
    sdivmod(k, 46, 45, S_JOB, 3, 56)
    k.e("s_mul_i32 s40, s46, %d" % (32*3456)); k.e("s_mul_i32 s36, s45, 1152"); k.e("s_add_u32 s40, s40, s36")
    lin_dma(6, 72, 2304, 3456)
    k.e("s_branch L_P_wait")
    k.label("L_Pi_x0")
    srd(k, 52, 22, 0, XB)
    k.e(f"s_sub_u32 s46, s46, {J_X0//8}"); k.e("s_lshl_b32 s45, s45, 3"); k.e("s_add_u32 s46, s46, s45")
    k.e("s_mul_i32 s40, s46, 36864")
    cont_dma()
    k.e("s_branch L_P_wait")
    k.label("L_Pi_wo")
    srd(k, 52, 26, 0, 576*576*2)
    k.e(f"s_sub_u32 s46, s46, {J_WO//8}")
    k.e("s_mul_i32 s40, s46, %d" % (72*1152)); k.e("s_mul_i32 s36, s45, 144"); k.e("s_add_u32 s40, s40, s36")
    lin_dma(2, 9, 768, 1152)
    k.e("s_branch L_P_wait")
    k.label("L_Pi_w1")
    srd(k, 52, 28, 0, 576*4608*2)
    k.e(f"s_sub_u32 s46, s46, {J_W1//8}")
    k.e("s_mul_i32 s40, s46, %d" % (32*9216)); k.e("s_mul_i32 s36, s45, 1152"); k.e("s_add_u32 s40, s40, s36")
    lin_dma(6, 72, 2304, 9216)
    k.e("s_branch L_P_wait")
    k.label("L_Pi_w2")
    srd(k, 52, 32, 0, 576*4608*2)
    k.e(f"s_sub_u32 s46, s46, {J_W2//8}")
    k.e("s_mul_i32 s40, s45, 18"); k.e("s_add_u32 s40, s40, s46"); k.e("s_mul_i32 s40, s40, 36864")
    cont_dma()
    k.label("L_P_wait")
    for j in range(4): k.e(f"v_mov_b32 v{40+j}, 0x3f803f80")
    k.e(f"s_lshl_b32 s36, s{S_SLOT}, 2"); k.e(f"s_add_u32 s36, s36, {CNT + 4*CP_LD}"); k.e("v_mov_b32 v8, s36"); k.e("v_mov_b32 v9, 1")
    k.e("s_waitcnt vmcnt(0)")
    k.e("s_mov_b64 exec, 1"); k.e("ds_add_u32 v8, v9"); k.e("s_mov_b64 exec, -1")
    k.label("L_P_spin")
    k.e("ds_read_b32 v9, v8"); k.e("s_waitcnt lgkmcnt(0)"); k.e("v_readfirstlane_b32 s36, v9"); k.e("s_nop 3")
    k.e("s_cmp_ge_u32 s36, 6"); k.e("s_cbranch_scc1 L_P_go"); k.e("s_sleep 2"); k.e("s_branch L_P_spin")
    k.label("L_P_go")
    k.e(f"s_lshl_b32 s39, s{S_W}, 10"); k.e("s_add_u32 s39, s39, 73728")
    k.e("s_lshl_b32 s48, s49, 1")
    k.label("L_P_vw")
    dispatch("p")
    def tr3(a6, a9, a10, a11):
        for t in range(2):
            k.e(f"ds_read_b64_tr_b16 v[{12+4*t}:{13+4*t}], v{a6} offset:{8*t}")
            k.e(f"ds_read_b64_tr_b16 v[{14+4*t}:{15+4*t}], v{a9} offset:{8*t}")
        k.e(f"ds_read_b64_tr_b16 v[20:21], v{a10}")
        k.e(f"ds_read_b64_tr_b16 v[22:23], v{a11}")
    k.label("L_Pp_w1")
    k.e("s_lshr_b32 s40, s48, 1"); k.e("s_and_b32 s41, s48, 1"); k.e("s_mul_i32 s40, s40, 96")
    k.e("s_lshl_b32 s42, s41, 5"); k.e("s_add_u32 s42, s42, s40")
    k.e("s_lshl_b32 s43, s41, 4"); k.e("s_add_u32 s43, s43, s40"); k.e("s_add_u32 s43, s43, 64")
    k.e(f"v_lshl_add_u32 v7, v{G}, 3, v{R}"); k.e("s_movk_i32 s38, 1152"); k.e("v_mul_u32_u24 v7, s38, v7"); k.e(f"v_add_u32 v7, s{S_LB}, v7")
    k.e("s_lshl_b32 s44, s42, 1"); k.e(f"v_lshl_add_u32 v6, v{C}, 4, v7"); k.e("v_add_u32 v6, s44, v6")
    k.e("s_lshl_b32 s44, s43, 1"); k.e(f"v_lshl_add_u32 v10, v{C}, 3, v7"); k.e("v_add_u32 v10, s44, v10")
    k.e("v_add_u32 v9, %d, v6" % (4*1152)); k.e("v_add_u32 v11, %d, v10" % (4*1152))
    tr3(6, 9, 10, 11)
    k.e("s_mul_i32 s47, s45, 12"); k.e("s_add_u32 s47, s47, s48"); k.e("s_mul_i32 s47, s47, 36"); k.e("s_add_u32 s47, s47, s46")
    k.e("s_mul_i32 s47, s47, 3072"); k.e(f"s_add_u32 s47, s47, 0x{WFF:x}")
    k.e("s_lshl_b32 s42, s41, 7"); k.e("s_add_u32 s42, s42, s39"); k.e("s_lshl_b32 s43, s41, 6"); k.e("s_add_u32 s43, s43, s39"); k.e("s_add_u32 s43, s43, 256")
    k.e(f"v_lshlrev_b32 v7, 5, v{G}"); k.e("v_add_u32 v7, s42, v7"); k.e(f"v_lshlrev_b32 v8, 4, v{G}"); k.e("v_add_u32 v8, s43, v8")
    for t in range(3):
        k.e(f"s_waitcnt lgkmcnt({4-2*t})")
        k.e(f"buffer_store_dwordx4 v[{12+4*t}:{15+4*t}], v{L16}, {WS}, s47 offen offset:{1024*t}{WST}")
        k.e(f"v_mfma_f32_16x16x32_bf16 v[{28+4*t}:{31+4*t}], v[{12+4*t}:{15+4*t}], v[40:43], 0")
    k.e("s_nop 7")
    k.e("ds_write_b128 v7, v[28:31]"); k.e("ds_write_b128 v7, v[32:35] offset:16"); k.e("ds_write_b128 v8, v[36:39]")
    k.e("s_waitcnt lgkmcnt(0)")
    k.e("s_branch L_P_next")
    k.label("L_Pp_wq")
    k.e(f"v_lshl_add_u32 v6, v{G}, 3, v{R}"); k.e("s_movk_i32 s38, 1152"); k.e("v_mul_u32_u24 v6, s38, v6")
    k.e(f"v_lshl_add_u32 v6, v{C}, 3, v6"); k.e("s_mul_i32 s38, s48, 96"); k.e(f"s_add_u32 s38, s38, s{S_LB}"); k.e("v_add_u32 v6, s38, v6")
    for t in range(3):
        k.e(f"ds_read_b64_tr_b16 v[{12+4*t}:{13+4*t}], v6 offset:{32*t}")
        k.e(f"ds_read_b64_tr_b16 v[{14+4*t}:{15+4*t}], v6 offset:{32*t+4*1152}")
    k.e("s_mul_i32 s40, s45, 9")
    for t in range(3):
        k.e(f"v_bfe_u32 v7, v{L}, 3, 1"); k.e("s_mul_i32 s38, s48, 6"); k.e(f"s_add_u32 s38, s38, {2*t}"); k.e("v_add_u32 v7, s38, v7")
        divmod_const(k, 8, 9, 7, 9, 72, 38)
        k.e("v_add_u32 v9, s40, v9")
        k.e("v_mul_u32_u24 v8, 28, v8"); k.e("v_add_u32 v8, v8, v9")
        k.e("v_lshrrev_b32 v9, 1, v8"); k.e("s_movk_i32 s38, %d" % (18*1024)); k.e("v_mul_u32_u24 v9, s38, v9")
        k.e("v_and_b32 v8, 1, v8"); k.e("v_lshl_add_u32 v9, v8, 7, v9")
        k.e(f"v_lshl_add_u32 v9, v{G}, 8, v9"); k.e(f"v_and_b32 v8, 7, v{L}"); k.e(f"v_lshl_add_u32 v{24+t}, v8, 4, v9")
    k.e("s_lshl_b32 s47, s46, 10")
    if WQF: k.e(f"s_add_u32 s47, s47, 0x{WQF:x}")
    k.e("s_and_b32 s42, s48, 1"); k.e("s_mul_i32 s42, s42, 192"); k.e("s_add_u32 s42, s42, s39")
    k.e(f"v_lshlrev_b32 v7, 4, v{G}"); k.e("v_add_u32 v7, s42, v7")
    k.e("s_waitcnt lgkmcnt(0)")
    for t in range(3):
        k.e(f"buffer_store_dwordx4 v[{12+4*t}:{15+4*t}], v{24+t}, {WS}, s47 offen sc1")
        k.e(f"v_mfma_f32_16x16x32_bf16 v[{28+4*t}:{31+4*t}], v[{12+4*t}:{15+4*t}], v[40:43], 0")
    k.e("s_nop 7")
    for t in range(3): k.e(f"ds_write_b128 v7, v[{28+4*t}:{31+4*t}] offset:{64*t}")
    k.e("s_waitcnt lgkmcnt(0)")
    k.e("s_branch L_P_next")
    k.label("L_Pp_w2")
    sdivmod(k, 40, 41, 46, 3, 18)
    k.e("s_cmp_eq_u32 s41, 2"); k.e("s_cselect_b32 s44, 2, 3"); k.e("s_movk_i32 s43, %d" % (4*1152)); k.e("s_cselect_b32 s43, %d, s43" % (16*1152))
    k.e(f"v_lshlrev_b32 v6, s44, v{G}"); k.e(f"v_add_u32 v6, v6, v{R}")
    k.e("s_movk_i32 s38, 1152"); k.e("v_mul_u32_u24 v6, s38, v6")
    k.e("s_mul_i32 s38, s48, 96"); k.e(f"s_add_u32 s38, s38, s{S_LB}"); k.e("v_add_u32 v6, s38, v6")
    k.e(f"v_lshl_add_u32 v10, v{C}, 3, v6"); k.e("v_add_u32 v10, 64, v10")
    k.e(f"v_lshl_add_u32 v6, v{C}, 4, v6")
    k.e("v_add_u32 v9, s43, v6"); k.e("v_add_u32 v11, s43, v10")
    tr3(6, 9, 10, 11)
    k.e("s_mul_i32 s47, s45, 12"); k.e("s_add_u32 s47, s47, s48"); k.e("s_mul_i32 s47, s47, 36"); k.e("s_add_u32 s47, s47, s46"); k.e("s_add_u32 s47, s47, 18")
    k.e("s_mul_i32 s47, s47, 3072"); k.e(f"s_add_u32 s47, s47, 0x{WFF:x}")
    for t in range(3):
        k.e(f"s_waitcnt lgkmcnt({4-2*t})")
        k.e(f"buffer_store_dwordx4 v[{12+4*t}:{15+4*t}], v{L16}, {WS}, s47 offen offset:{1024*t}{WST}")
    k.e("s_branch L_P_next")
    k.label("L_Pp_wo")
    k.e("s_lshl_b32 s44, s48, 2"); k.e(f"v_add_u32 v6, s44, v{G}"); k.e("v_min_u32 v6, 44, v6")
    divmod_const(k, 8, 7, 6, 5, 48, 38)
    k.e("v_lshrrev_b32 v9, 1, v8"); k.e("v_mul_u32_u24 v9, 18, v9")
    k.e("v_and_b32 v10, 1, v8"); k.e("v_lshl_add_u32 v9, v10, 3, v9")
    k.e(f"v_add_u32 v9, v9, v{R}")
    k.e("v_add_u32 v10, 4, v9")
    k.e(f"v_lshrrev_b32 v11, 1, v{R}"); k.e("v_mul_u32_u24 v11, 18, v11"); k.e(f"v_and_b32 v16, 1, v{R}")
    k.e("v_add3_u32 v11, v11, v16, 16")
    k.e("v_add_u32 v16, 36, v11")
    k.e("v_cmp_eq_u32 vcc, 8, v8")
    k.e("s_nop 1")
    k.e("v_cndmask_b32 v9, v9, v11, vcc"); k.e("v_cndmask_b32 v10, v10, v16, vcc")
    k.e("s_movk_i32 s38, 144"); k.e("v_mul_u32_u24 v9, s38, v9"); k.e("v_mul_u32_u24 v10, s38, v10")
    k.e("v_lshlrev_b32 v11, 5, v7"); k.e(f"v_lshl_add_u32 v11, v{C}, 3, v11"); k.e(f"v_add_u32 v11, s{S_LB}, v11")
    k.e("v_add_u32 v9, v9, v11"); k.e("v_add_u32 v10, v10, v11")
    k.e("ds_read_b64_tr_b16 v[12:13], v9")
    k.e("ds_read_b64_tr_b16 v[14:15], v10")
    k.e("s_movk_i32 s38, %d" % (18*1024)); k.e("v_mul_u32_u24 v7, s38, v7")
    k.e("s_mul_i32 s38, s46, 9"); k.e("v_add_u32 v8, s38, v8"); k.e("v_lshl_add_u32 v7, v8, 8, v7")
    k.e(f"v_lshl_add_u32 v7, v{V_M}, 4, v7")
    k.e("s_mul_i32 s44, s45, %d" % (5*18*1024)); k.e(f"s_add_u32 s44, s44, 0x{WOF:x}")
    k.e("s_waitcnt lgkmcnt(0)")
    k.e(f"buffer_store_dwordx4 v[12:15], v7, {WS}, s44 offen sc1")
    k.e("s_branch L_P_next")
    k.label("L_Pp_x0")
    k.e(f"v_and_b32 v6, 31, v{L}"); k.e(f"v_lshrrev_b32 v7, 5, v{L}")
    k.e("s_movk_i32 s38, 1152"); k.e("v_mul_u32_u24 v8, s38, v6"); k.e("v_lshl_add_u32 v8, v7, 4, v8")
    k.e("s_mul_i32 s38, s48, 96"); k.e(f"s_add_u32 s38, s38, s{S_LB}"); k.e("v_add_u32 v8, s38, v8")
    for i in range(3): k.e(f"ds_read_b128 v[{12+4*i}:{15+4*i}], v8 offset:{32*i}")
    k.e("v_lshlrev_b32 v9, 10, v7"); k.e("v_lshl_add_u32 v9, v6, 4, v9")
    k.e("s_lshr_b32 s40, s46, 1"); k.e(f"s_mul_i32 s40, s40, {TILEB}"); k.e("s_and_b32 s41, s46, 1"); k.e("s_lshl_b32 s41, s41, 9"); k.e("s_add_u32 s40, s40, s41")
    k.e("s_mul_i32 s41, s48, 6144"); k.e("s_add_u32 s40, s40, s41"); k.e(f"s_add_u32 s40, s40, 0x{X0P:x}"); k.e("s_add_u32 s41, s40, 4096")
    for i in range(3):
        k.e(f"s_waitcnt lgkmcnt({2-i})")
        k.e(f"buffer_store_dwordx4 v[{12+4*i}:{15+4*i}], v9, {WS}, s{40 if i < 2 else 41} offen offset:{2048*(i%2)} sc1")
    k.label("L_P_next")
    k.e("s_add_u32 s48, s48, 1"); k.e("s_bitcmp1_b32 s48, 0")
    k.e("s_nop 3")
    k.e("s_cbranch_scc1 L_P_vw")
    k.e(f"s_cmp_lt_u32 s{S_JOB}, {J_X0}"); k.e("s_cbranch_scc1 L_P_csq")
    k.e(f"s_cmp_lt_u32 s{S_JOB}, {J_W1}"); k.e("s_cbranch_scc1 L_P_tag")
    k.e(f"s_cmp_ge_u32 s{S_JOB}, {J_W2}"); k.e("s_cbranch_scc1 L_P_tag")
    k.e("s_mul_i32 s42, s46, %d" % (4608*4)); k.e("s_mul_i32 s40, s45, 2304"); k.e("s_add_u32 s42, s42, s40"); k.e(f"s_add_u32 s42, s42, 0x{CSP:x}")
    k.e("s_mul_i32 s40, s49, 384"); k.e("s_add_u32 s42, s42, s40")
    k.e(f"v_add_u32 v6, s39, v{L16}")
    k.e("s_waitcnt lgkmcnt(0)")
    k.e("ds_read_b128 v[28:31], v6")
    k.e("s_mov_b64 exec, 0xffffff")
    k.e("s_waitcnt lgkmcnt(0)")
    k.e(f"buffer_store_dwordx4 v[28:31], v{L16}, {WS}, s42 offen{WST}")
    k.e("s_mov_b64 exec, -1")
    k.e("s_branch L_P_tag")
    k.label("L_P_csq")
    k.e(f"s_mul_i32 s42, s{S_JOB}, 2304"); k.e(f"s_add_u32 s42, s42, 0x{CSQP:x}")
    k.e("s_mul_i32 s40, s49, 384"); k.e("s_add_u32 s42, s42, s40")
    k.e(f"v_add_u32 v6, s39, v{L16}")
    k.e("s_waitcnt lgkmcnt(0)")
    k.e("ds_read_b128 v[28:31], v6")
    k.e("s_mov_b64 exec, 0xffffff")
    k.e("s_waitcnt lgkmcnt(0)")
    k.e(f"buffer_store_dwordx4 v[28:31], v{L16}, {WS}, s42 offen sc1")
    k.e("s_mov_b64 exec, -1")
    k.label("L_P_tag")

def get_tag(k):
    lab = k.newlabel("L_tag")
    k.e("v_mov_b32 v8, 0")
    k.e("s_mov_b32 s38, 0x20000")
    k.label(lab)
    k.e("global_load_dwordx2 v[10:11], v8, s[34:35] sc1")
    k.e("s_waitcnt vmcnt(0)")
    k.e("v_readfirstlane_b32 s62, v10"); k.e("v_readfirstlane_b32 s63, v11")
    k.e("s_sub_u32 s38, s38, 1")
    k.e("s_cmp_eq_u32 s38, 0"); k.e(f"s_cbranch_scc1 {lab}_ok")
    k.e("s_and_b32 s36, s62, s63"); k.e("s_bitcmp1_b32 s36, 0"); k.e(f"s_cbranch_scc1 {lab}_ok")
    k.e("s_sleep 2"); k.e(f"s_branch {lab}")
    k.label(f"{lab}_ok")

def gen_main():
    name = NAME + "_kernel"
    k = K(); header(k, name, 256)
    k.e("s_load_dwordx2 s[22:23], s[0:1], 0")
    k.e("s_load_dwordx4 s[24:27], s[0:1], 8")
    k.e("s_load_dwordx4 s[28:31], s[0:1], 32")
    k.e("s_load_dwordx2 s[32:33], s[0:1], 48")
    k.e("s_load_dwordx4 s[4:7], s[0:1], 56")
    k.e("s_load_dwordx4 s[40:43], s[0:1], 72")
    k.e("s_memrealtime s[44:45]")
    wave_lane(k, V_L, S_W)
    k.e(f"v_lshlrev_b32 v{V_L16}, 4, v{V_L}")
    k.e(f"v_lshrrev_b32 v{V_G}, 4, v{V_L}"); k.e(f"v_and_b32 v{V_M}, 15, v{V_L}")
    k.e(f"s_cmp_lg_u32 s{S_W}, 0"); k.e("s_cbranch_scc1 L_M_nz")
    k.e(f"v_lshlrev_b32 v5, 3, v{V_L}"); k.e(f"v_add_u32 v5, {CNT}, v5"); k.e("v_mov_b32 v6, 0"); k.e("v_mov_b32 v7, 0"); k.e("ds_write_b64 v5, v[6:7]")
    k.label("L_M_nz")
    k.e("s_waitcnt lgkmcnt(0)")
    srd(k, 8, 42, 0, WSZ)
    srd(k, 12, 30, 0, 4608*2)
    srd(k, 16, 6, 0, XB)
    k.e("s_mov_b64 s[20:21], s[4:5]")
    k.e("s_mov_b64 s[34:35], s[40:41]")
    k.e(f"s_or_b32 s36, s2, s{S_W}"); k.e("s_cmp_lg_u32 s36, 0"); k.e("s_cbranch_scc1 L_M_nt")
    k.e("s_lshl_b32 s46, s45, 2"); k.e("s_lshr_b32 s47, s44, 31"); k.e("s_lshl_b32 s47, s47, 1"); k.e("s_or_b32 s46, s46, s47"); k.e("s_or_b32 s46, s46, 1")
    k.e("s_lshl_b32 s47, s44, 1"); k.e("s_or_b32 s47, s47, 1")
    k.e("v_mov_b32 v6, s47"); k.e("v_mov_b32 v7, s46"); k.e("v_mov_b32 v5, 0")
    k.e("s_mov_b64 exec, 1")
    k.e("global_store_dwordx2 v5, v[6:7], s[34:35] sc1")
    k.e("s_mov_b64 exec, -1")
    k.label("L_M_nt")
    if ENV("TLBW", 0):
        k.e(f"s_cmp_lg_u32 s{S_W}, 11"); k.e("s_cbranch_scc1 L_M_tw")
        k.e(f"v_lshlrev_b32 v5, 21, v{V_L}"); k.e("s_lshl_b32 s36, s2, 7"); k.e("v_add_u32 v5, s36, v5"); k.e("v_mov_b32 v6, 0")
        k.e(f"buffer_atomic_or v6, v5, {WS}, 0 offen sc1")
        k.label("L_M_tw")
    if ENV("CPRE", 0):
        k.e(f"s_cmp_lg_u32 s{S_W}, 11"); k.e("s_cbranch_scc1 L_M_cp")
        k.e("s_getpc_b64 s[46:47]")
        k.label("L_M_pc")
        k.e("s_lshr_b32 s36, s2, 3"); k.e("s_lshl_b32 s36, s36, 11")
        k.e(f"v_lshlrev_b32 v5, 5, v{V_L}"); k.e("v_add_u32 v5, s36, v5")
        k.e(f"s_mov_b32 s36, L_{name}_exit - L_M_pc - 4"); k.e("v_min_u32 v5, s36, v5")
        k.e("global_load_dword v0, v5, s[46:47]")
        k.label("L_M_cp")
    k.e("s_barrier")
    phase_P(k)
    get_tag(k)
    k.e(f"s_mov_b32 s{S_CNT}, {CNT}")
    if WREL:
        k.e(f"s_cmp_ge_u32 s{S_JOB}, {J_W1}"); k.e("s_cbranch_scc1 L_P_end")
    k.e(f"s_cmp_lt_u32 s{S_JOB}, {J_X0}"); k.e("s_cbranch_scc1 L_P_pq")
    publish(k, CP_DONE, 6, FLP, None, S_JOB, 8)
    k.e("s_branch L_P_end")
    k.label("L_P_pq")
    publish(k, CP_DONE, 6, FLQ, None, S_JOB, 8, repl=True)
    k.e("s_branch L_P_end")
    k.label("L_P_done")
    get_tag(k)
    k.label("L_P_end")
    if FS == "P": stamp(k, 1)
    def mapping2(Sx, ss, sr_, sidx):
        R = 32 // Sx; ng = 8 // Sx; lg = lambda x: x.bit_length() - 1
        k.e("s_and_b32 s36, s2, 7"); k.e("s_lshr_b32 s37, s2, 3")
        k.e(f"s_and_b32 s{ss}, s36, {ng-1}"); k.e(f"s_lshl_b32 s{ss}, s{ss}, {lg(Sx)}")
        k.e(f"s_and_b32 s38, s37, {Sx-1}"); k.e(f"s_add_u32 s{ss}, s{ss}, s38")
        k.e(f"s_lshr_b32 s{sr_}, s36, {lg(ng)}"); k.e(f"s_lshl_b32 s{sr_}, s{sr_}, {lg(R)}")
        k.e(f"s_lshr_b32 s{sidx}, s37, {lg(Sx)}"); k.e(f"s_add_u32 s{sr_}, s{sr_}, s{sidx}")
    mapping2(ENV('SX_L', 4), S_S, S_R, S_IDX)
    mapping2(SXC, S_SC, S_RC, S_IDX)
    rot18(k, S_IDX, S_ROT, 32 // SXC)
    sdivmod(k, 36, S_ROT2, S_IDX, 6, 32)
    if not ENV("ROT2", 1): k.e(f"s_mov_b32 s{S_ROT2}, 0")
    k.e(f"s_lshr_b32 s{S_CL}, s{S_W}, 2"); k.e(f"s_and_b32 s{S_WL}, s{S_W}, 3"); k.e(f"s_mov_b32 s{S_EARLY}, 0")
    k.e(f"s_mov_b32 s{S_LAY}, 0")
    k.e(f"s_mov_b32 s{S_XIN}, 0x{X0P:x}"); k.e(f"s_mov_b32 s{S_O}, 0x{O1:x}"); k.e(f"s_mov_b32 s{S_X1}, 0x{X1A:x}"); k.e(f"s_mov_b32 s{S_P}, 0x{P1:x}")
    k.e(f"s_mov_b32 s{S_FL}, 0x{FLG:x}"); k.e(f"s_mov_b32 s{S_CNT}, {CNT}")
    if ENV("PB4", 1): k.e("s_barrier")
    k.e(f"s_cmp_lg_u32 s{S_W}, 0"); k.e("s_cbranch_scc1 L_M_bar")
    k.e(f"s_lshl_b32 s36, s{S_R}, 1"); k.e("s_sub_u32 s36, s36, 1")
    k.e(f"v_add_u32 v9, s36, v{V_L}"); k.e("v_max_i32 v9, 0, v9")
    k.e("v_and_b32 v10, 7, v9"); k.e("v_lshrrev_b32 v9, 3, v9"); k.e("v_lshl_add_u32 v9, v10, 3, v9"); k.e(f"v_add_u32 v9, {J_X0}, v9")
    k.e("v_lshlrev_b32 v8, 7, v9")
    k.e(f"s_mov_b32 s37, 0x{FLP:x}")
    poll(k, 8, 37, 7, 10, ENV('PS2', 3))
    k.label("L_M_bar")
    if FS == "P": stamp(k, 2)
    k.e("s_barrier")
    if FS == "P": stamp(k, 3)
    k.label("L_layer")
    phase_A(k)
    npre = phase_B(k)
    phase_C(k, npre)
    phase_D(k)
    k.e(f"s_cmp_lg_u32 s{S_LAY}, 0"); k.e(f"s_cbranch_scc1 L_{name}_end")
    if STAMP and ENV("STAMP_L1", 0):
        k.e(f"s_branch L_{name}_end")
    k.e(f"s_mov_b32 s{S_LAY}, 1")
    k.e(f"s_cmp_lt_u32 s{S_CL}, {ENV('NEARLY', 0)}"); k.e(f"s_cselect_b32 s{S_EARLY}, 1, 0")
    k.e(f"s_mov_b32 s{S_XIN}, 0x{X2:x}"); k.e(f"s_mov_b32 s{S_O}, 0x{O2:x}"); k.e(f"s_mov_b32 s{S_X1}, 0x{X1B:x}"); k.e(f"s_mov_b32 s{S_P}, 0x{P2:x}")
    k.e(f"s_mov_b32 s{S_FL}, 0x{FLG+FLG_LAYER:x}"); k.e(f"s_mov_b32 s{S_CNT}, {CNT+128}")
    if STAMP: stamp(k, 0)
    k.e("s_branch L_layer")
    k.label(f"L_{name}_end")
    if STAMP:
        k.e("s_waitcnt vmcnt(0)")
        k.e(f"s_lshl_b32 s36, s{S_W}, 6"); k.e("v_mov_b32 v0, s36")
    stamp_end(k, KIDX[0]); KIDX[0] += 1
    k.label(f"L_{name}_exit")
    k.e("s_endpgm")
    return name, k.text(), desc(name, 168), (256, 768, LDS_TOTAL)

def main(out):
    n, t, d, (g, b, lds) = gen_main()
    ref = open(f"cdna_kernels/{NAME}.s.ref").read().splitlines()
    hdr = [l for l in ref if l.startswith(";") and "@launch" not in l and "Override" not in l and "grid=ceil" not in l]
    s = "\n".join(hdr) + "\n"
    if ENV("ASLIST", 1): s += f"; @launch kernel={n} grid=({g},1,1) block=({b},1,1) lds={lds}\n"
    else: s += f"; @launch grid=({g},1,1) block=({b},1,1) lds={lds}\n"
    s += '.amdgcn_target "amdgcn-amd-amdhsa--gfx950"\n.text\n' + t + d
    open(out, "w").write(s)

if __name__ == "__main__":
    main(sys.argv[1] if len(sys.argv) > 1 else f"cdna_kernels/{NAME}.s")
```

```python
import sys, struct, math, os
from asmlib import *

NAME = "interleave_layers__sliding_local_dilated__dense_activation_gelu__prompt"
XB = 2048 * 1152
TILEB = 73728
WQF, WOF, WFF = 0x0, 0x200000, 0x300000
CS1, CSQ = 0xE00000, 0xE10000
ST0, ST1A, ST2, ST1B = 0xE40000, 0xE80000, 0xEC0000, 0xF00000
X0P = 0x4C00000
O1, X1A, X2, O2, X1B, P1, P2 = 0x1000000, 0x1400000, 0x1800000, 0x1C00000, 0x2000000, 0x2400000, 0x3800000
WQF_SZ, WOF_SZ, WFF_SZ = 8*14*18*1024, 8*5*18*1024, 8*12*36*3072
ST_SZ = 32*8*64*8
ENV = lambda n, d: int(os.environ.get(n, str(d)))
STAMP = ENV("STAMP", 0)
STAMP_BASE = 0x8000000

def f32(x):
    return "0x%08x" % struct.unpack("<I", struct.pack("<f", x))[0]

def srd(k, d, b, add, size):
    if add:
        k.e(f"s_add_u32 s{d}, s{b}, 0x{add:x}")
        k.e(f"s_addc_u32 s{d+1}, s{b+1}, 0")
    else:
        k.e(f"s_mov_b32 s{d}, s{b}")
        k.e(f"s_mov_b32 s{d+1}, s{b+1}")
    k.e(f"s_mov_b32 s{d+2}, 0x{size:x}")
    k.e(f"s_mov_b32 s{d+3}, 0x20000")

def stamp(k, i):
    if not STAMP: return
    k.e("s_waitcnt lgkmcnt(0)"); k.lg = []
    k.e(f"s_memtime s[84:85]")
    k.e(f"s_memrealtime s[86:87]")
    k.e("s_waitcnt lgkmcnt(0)")
    k.e(f"s_mov_b32 s{64+i}, s84"); k.e(f"s_mov_b32 s{74+i}, s86")
def stamp_begin(k):
    if not STAMP: return
    for i in range(1, 9):
        k.e(f"s_mov_b32 s{64+i}, 0"); k.e(f"s_mov_b32 s{74+i}, 0")
    stamp(k, 0)
def stamp_end(k, kidx):
    if not STAMP: return
    k.e("s_waitcnt vmcnt(0)")
    stamp(k, 8)
    k.e("s_load_dwordx2 s[88:89], s[0:1], 80")
    k.e("s_getreg_b32 s90, hwreg(HW_REG_XCC_ID)")
    k.e("s_waitcnt lgkmcnt(0)")
    k.e("s_mov_b64 exec, 1")
    k.e(f"s_add_u32 s88, s88, 0x{STAMP_BASE:x}"); k.e("s_addc_u32 s89, s89, 0")
    k.e(f"s_add_u32 s91, s2, {kidx*512}"); k.e("s_lshl_b32 s91, s91, 4")
    k.e("v_lshrrev_b32 v1, 6, v0"); k.e("v_add_u32 v1, s91, v1"); k.e("v_lshlrev_b32 v1, 7, v1")
    vals = [64+i for i in range(9)] + [90] + [74+i for i in range(9)] + [90]
    for j, sreg in enumerate(vals):
        k.e(f"v_mov_b32 v{2+j}, s{sreg}")
    for j in range(0, 20, 4):
        k.e(f"global_store_dwordx4 v1, v[{2+j}:{5+j}], s[88:89] offset:{4*j}")

KIDX = [0]
def header(k, name, nwg):
    k.lines.append(f".globl {name}\n.p2align 8\n.type {name},@function\n{name}:")
    k.e(f"s_cmp_ge_u32 s2, {nwg}")
    k.e(f"s_cbranch_scc1 L_{name}_exit")
    stamp_begin(k)
def footer(k, name):
    k.label(f"L_{name}_end")
    stamp_end(k, KIDX[0]); KIDX[0] += 1
    k.label(f"L_{name}_exit")
    k.e("s_endpgm")

def desc(name, vgpr, sgpr=96):
    acc = (vgpr + 3) // 4 * 4
    return f""".section .rodata,"a"
.p2align 6
.amdhsa_kernel {name}
  .amdhsa_next_free_vgpr {vgpr}
  .amdhsa_next_free_sgpr {sgpr}
  .amdhsa_accum_offset {acc}
  .amdhsa_group_segment_fixed_size 0
  .amdhsa_kernarg_size 88
  .amdhsa_user_sgpr_count 2
  .amdhsa_user_sgpr_kernarg_segment_ptr 1
  .amdhsa_system_sgpr_workgroup_id_x 1
  .amdhsa_float_denorm_mode_32 3
.end_amdhsa_kernel
.text
"""

def divmod_const(k, q, rem, x, d, nmax, stmp):
    m, sh = magic(d, nmax)
    k.e(f"s_mov_b32 s{stmp}, {m}")
    k.e(f"v_mul_u32_u24 v{q}, s{stmp}, v{x}")
    k.e(f"v_lshrrev_b32 v{q}, {sh}, v{q}")
    if rem is not None:
        if d <= 64:
            k.e(f"v_mul_u32_u24 v{rem}, {d}, v{q}")
        else:
            k.e(f"v_mul_u32_u24 v{rem}, 0x{d:x}, v{q}")
        k.e(f"v_sub_u32 v{rem}, v{x}, v{rem}")

def sdivmod(k, q, rem, x, d, nmax):
    m, sh = magic(d, nmax)
    k.e(f"s_mul_i32 s{q}, s{x}, {m}"); k.e(f"s_lshr_b32 s{q}, s{q}, {sh}")
    if rem is not None:
        k.e(f"s_mul_i32 s{rem}, s{q}, {d}"); k.e(f"s_sub_u32 s{rem}, s{x}, s{rem}")

MAP = dict(attn=ENV("SX_A", 4), wo=ENV("SX_B", 8), ffn=ENV("SX_C", 2))
def mapping(k, Sx, ss=15, sr_=16, sidx=12):
    R = 32 // Sx; ng = 8 // Sx
    lg = lambda x: x.bit_length() - 1
    k.e("s_and_b32 s10, s2, 7")
    k.e("s_lshr_b32 s11, s2, 3")
    k.e(f"s_and_b32 s{ss}, s10, {ng-1}")
    k.e(f"s_lshl_b32 s{ss}, s{ss}, {lg(Sx)}")
    k.e(f"s_and_b32 s13, s11, {Sx-1}")
    k.e(f"s_add_u32 s{ss}, s{ss}, s13")
    k.e(f"s_lshr_b32 s{sr_}, s10, {lg(ng)}")
    k.e(f"s_lshl_b32 s{sr_}, s{sr_}, {lg(R)}")
    k.e(f"s_lshr_b32 s{sidx}, s11, {lg(Sx)}")
    k.e(f"s_add_u32 s{sr_}, s{sr_}, s{sidx}")

def rot18(k, sidx, srot, R):
    if not ENV("ROT", 0):
        k.e(f"s_mov_b32 s{srot}, 0"); return
    if R <= 16:
        mult = {4: 4, 8: 2, 16: 1}[R]
        k.e(f"s_mul_i32 s{srot}, s{sidx}, {mult}")
    else:
        k.e(f"s_sub_u32 s{srot}, s{sidx}, 18"); k.e(f"s_cmp_ge_u32 s{sidx}, 18"); k.e(f"s_cselect_b32 s{srot}, s{srot}, s{sidx}")

def wave_lane(k, vlane, swave):
    k.e(f"v_lshrrev_b32 v{vlane}, 6, v0")
    k.e("s_nop 0")
    k.e(f"v_readfirstlane_b32 s{swave}, v{vlane}")
    k.e(f"v_and_b32 v{vlane}, 63, v0")

def touch(k, srd_, L, n_instr, swave_idx, nwaves, per_slab, slab_stride, sbase, nslab, t, dummy, gran=64):
    t0, t1, t2 = t[:3]
    nmax = 32 * nwaves * n_instr * 64
    k.e(f"s_lshr_b32 s58, s2, 3"); k.e(f"s_mul_i32 s58, s58, {nwaves}"); k.e(f"s_add_u32 s58, s58, s{swave_idx}"); k.e(f"s_mul_i32 s58, s58, {n_instr*64}")
    for j in range(n_instr):
        k.e(f"v_add_u32 v{t0}, s58, v{L}")
        if j: k.e(f"v_add_u32 v{t0}, {64*j}, v{t0}")
        m, sh = magic2(per_slab, nmax)
        k.e(f"s_mov_b32 s59, {m}"); k.e(f"v_mul_hi_u32 v{t1}, v{t0}, s59")
        if sh: k.e(f"v_lshrrev_b32 v{t1}, {sh}, v{t1}")
        k.e(f"s_mov_b32 s59, {per_slab}"); k.e(f"v_mul_u32_u24 v{t2}, s59, v{t1}"); k.e(f"v_sub_u32 v{t0}, v{t0}, v{t2}")
        k.e(f"s_mov_b32 s59, {slab_stride}"); k.e(f"v_mul_u32_u24 v{t2}, s59, v{t1}")
        k.e(f"v_lshl_add_u32 v{t0}, v{t0}, {gran.bit_length()-1}, v{t2}")
        k.e(f"v_cmp_gt_u32 vcc, {nslab}, v{t1}")
        k.e(f"v_mov_b32 v{t2}, 0x7ff00000")
        k.e("s_nop 0")
        k.e(f"v_cndmask_b32 v{t0}, v{t2}, v{t0}, vcc")
        k.vmem(f"buffer_load_dword v{dummy}, v{t0}, s[{srd_}:{srd_+3}], s{sbase} offen", "touch")

def magic2(d, nmax):
    for sh in range(0, 12):
        m = (1 << (32 + sh)) // d + 1
        if m >= (1 << 32): continue
        if all((x * m) >> (32 + sh) == x // d for x in range(0, nmax, 1)):
            return m, sh
    raise ValueError

def dma(k, m0expr, voff, srd_, soff, tag=None):
    for l in m0expr: k.e(l)
    k.e("s_nop 0")
    k.vmem(f"buffer_load_dwordx4 v{voff}, s[{srd_}:{srd_+3}], {soff} offen{os.environ.get('PLD', ' nt')} lds", tag)

CSQP = 0xEA0000
CSP = 0xE40000
FSH, GSH = 7, 10
FLG = 0xF00000
FLG_LAYER = 256 << GSH
F_A, F_B, F_C, F_D = 0, 32 << GSH, 64 << GSH, 160 << GSH
FLP = FLG + 2*FLG_LAYER
J_WQ, J_X0, J_WO, J_W1, J_W2, J_END = 0, 56, 120, 184, 328, 472

def gemm_loop(k, nks, order, acc, bbuf, aslot, bread, ks0, nm, after=None, pre=None, BD=1, atag=None, gate=None):
    atag = atag or (lambda ks: ("a", ks0 + ks))
    nb = BD + 1
    for d in range(min(BD, nks)):
        if gate: gate(d)
        for mi in range(nm): bread(d, mi, bbuf(d % nb, mi))
    if pre: pre()
    for ks in range(nks):
        late = gate is not None and ks + BD < nks and gate(ks + BD, True)
        if ks + BD < nks and not late:
            for mi in range(nm): bread(ks + BD, mi, bbuf((ks + BD) % nb, mi))
        k.wait(vm=[atag(ks)], lg=[("b", ks)])
        for (mi, t) in order:
            c = "0" if ks == 0 else vr(acc(mi, t), 4)
            k.e(f"v_mfma_f32_16x16x32_bf16 {vr(acc(mi,t),4)}, {vr(aslot(ks0+ks,t),4)}, {vr(bbuf(ks % nb,mi),4)}, {c}")
        if after: after(ks)
        if late:
            gate(ks + BD)
            for mi in range(nm): bread(ks + BD, mi, bbuf((ks + BD) % nb, mi))


def gemm_loop_sp(k, nks, order, acc, bbuf, aslot, bread, ks0, nm, after=None, gate=None):
    if gate: gate(0)
    for mi in range(nm): bread(0, mi, bbuf(0, mi))
    pend = []
    for ks in range(nks):
        late = gate is not None and ks + 1 < nks and gate(ks + 1, True)
        k.wait(vm=[("a", ks0 + ks)], lg=[("b", ks)])
        fill = []
        if ks + 1 < nks and not late:
            fill += [("b", mi) for mi in range(nm)]
        fill2 = [("c", c) for c in pend]; pend = []
        seq = []
        while fill or fill2:
            if fill: seq.append(fill.pop(0))
            if fill2: seq.append(fill2.pop(0))
        n = len(order)
        pos = {}
        for j, it in enumerate(seq):
            pos.setdefault(min(n-1, (j * (n-1)) // max(1, len(seq))), []).append(it)
        for j, (mi, t) in enumerate(order):
            c = "0" if ks == 0 else vr(acc(mi, t), 4)
            k.e(f"v_mfma_f32_16x16x32_bf16 {vr(acc(mi,t),4)}, {vr(aslot(ks0+ks,t),4)}, {vr(bbuf(ks % 2,mi),4)}, {c}")
            for kind, x in pos.get(j, []):
                if kind == "b": bread(ks + 1, x, bbuf((ks + 1) % 2, x))
                else:
                    k.lines += x[0]; k.vm += x[1]
        if after:
            l0 = len(k.lines); v0 = len(k.vm)
            after(ks)
            lines = k.lines[l0:]; tags = k.vm[v0:]
            del k.lines[l0:]; del k.vm[v0:]
            cur = []; ti = 0
            for l in lines:
                cur.append(l)
                if "buffer_load" in l:
                    pend.append([cur, [tags[ti]]]); ti += 1; cur = []
            if cur:
                if pend: pend[-1][0] += cur
                else: k.lines += cur
            if late or ks == nks - 1:
                for x in pend:
                    k.lines += x[0]; k.vm += x[1]
                pend = []
        if late:
            gate(ks + 1)
            for mi in range(nm): bread(ks + 1, mi, bbuf((ks + 1) % 2, mi))

FS = os.environ.get("FS", "")
CPA = ENV("CPA", 0)
GX = ENV("GX", 1)
GXC = ENV("GXC", 1)
assert ENV("ROT", 0) == 0
A_HL = 73728
A_QK = 92160
QP, QPL = 48, 3968
TSTR = 4 * QPL
A_VP = A_QK + 2*TSTR
VPP, VPL = 80, 6784
A_ST = A_VP + 4*VPL
A_PM, A_PH = A_QK, A_QK + 6144
B_XB = 73728
C_HB = 73728
C_CS = 155648
C_B1 = C_CS + 3072
A_CQ = C_B1 + 2048
C_ST = 147456
A_PQ = A_QK + 12288
C_PM = 98304
A_SCR = A_ST + 640
CNT = 163328
LDS_TOTAL = 163840
CA_ST, CA_DONE, CB_DONE, CC_ST, CC_W1, CC_H0, CC_DONE, CD_DONE, CC_K2, CD_GO, CA_GO, CA_W, CA_X, CC_X = 0, 1, 2, 3, 4, 5, 8, 11, 14, 16, 20, 15, 24, 28
S_CL, S_WL, S_EARLY = 60, 61, 57
WSZ = 0x5000000
SXC = MAP["ffn"]

S_W, S_LAY, S_XIN, S_O, S_X1, S_P, S_FL, S_R, S_S, S_RC, S_SC, S_IDX, S_CNT, S_ROT, S_ROT2 = 3, 22, 23, 24, 25, 26, 28, 29, 30, 31, 32, 33, 27, 34, 35
WS = "s[8:11]"
WSC = os.environ.get("WSC", " sc1")
WREL = ENV("WREL", 0)
WST = "" if WREL else " sc1"
FLQ = FLP + 65536
S_SLOT, S_JOB, S_LB = 56, 51, 50
CP_WQ = 27
CP_LD, CP_DONE = 64, 66
V_L, V_L16, V_G, V_M = 1, 2, 3, 4
AR, EX = 88, 160

def lds_signal(k, slot, vt, byclass=False):
    k.e(f"s_add_u32 s36, s{S_CNT}, {4*slot}")
    if byclass:
        k.e(f"s_lshl_b32 s37, s{S_CL}, 2"); k.e("s_add_u32 s36, s36, s37")
    k.e(f"v_mov_b32 v{vt}, s36"); k.e(f"v_mov_b32 v{vt+1}, 1")
    k.e("s_mov_b64 exec, 1")
    k.lds(f"ds_add_u32 v{vt}, v{vt+1}", "cnt")
    k.e("s_mov_b64 exec, -1")

def lds_wait(k, slot, n, vt, sleep=2, byclass=False):
    lab = k.newlabel("L_lw")
    k.e(f"s_add_u32 s36, s{S_CNT}, {4*slot}")
    if byclass:
        k.e(f"s_lshl_b32 s37, s{S_CL}, 2"); k.e("s_add_u32 s36, s36, s37")
    k.e(f"v_mov_b32 v{vt}, s36")
    k.label(lab)
    k.e(f"ds_read_b32 v{vt+1}, v{vt}")
    k.e("s_waitcnt lgkmcnt(0)"); k.lg = []
    k.e(f"v_readfirstlane_b32 s36, v{vt+1}")
    k.e("s_nop 3")
    k.e(f"s_cmp_ge_u32 s36, {n}"); k.e(f"s_cbranch_scc1 {lab}_ok")
    if ENV("LS", -1) >= 0: sleep = min(sleep, ENV("LS", -1))
    if ENV("LSM", 0): sleep = sleep * ENV("LSM", 0)
    k.e(f"s_sleep {sleep}")
    k.e(f"s_branch {lab}")
    k.label(f"{lab}_ok")

def SC(name):
    return "" if name in os.environ.get("NOSC", "").split(",") else " sc1"
def publish(k, slot, n, fbase, s_r, s_s, vt, byclass=False, sc=" sc1", repl=False):
    lab = k.newlabel("L_pub")
    k.e(f"s_add_u32 s36, s{S_CNT}, {4*slot}")
    if s_r is not None:
        k.e(f"s_lshl_b32 s37, s{s_r}, {GSH}"); k.e(f"s_lshl_b32 s38, s{s_s}, {FSH}"); k.e("s_add_u32 s37, s37, s38")
        k.e(f"s_add_u32 s37, s37, s{S_FL}"); k.e(f"s_add_u32 s37, s37, {fbase}")
    else:
        k.e(f"s_lshl_b32 s37, s{s_s}, {FSH}"); k.e(f"s_add_u32 s37, s37, 0x{fbase:x}")
        k.e(f"s_lshl_b32 s38, s{S_SLOT}, 2"); k.e("s_add_u32 s36, s36, s38")
    if byclass:
        k.e(f"s_lshl_b32 s38, s{S_CL}, 2"); k.e("s_add_u32 s36, s36, s38")
        k.e(f"s_lshl_b32 s38, s{S_CL}, {GSH+5}"); k.e("s_add_u32 s37, s37, s38")
    k.e("s_waitcnt vmcnt(0)"); k.vm = []
    k.e(f"v_mov_b32 v{vt}, s36"); k.e(f"v_mov_b32 v{vt+1}, 1")
    k.e("s_mov_b64 exec, 1")
    k.e(f"ds_add_rtn_u32 v{vt}, v{vt}, v{vt+1}")
    k.e("s_waitcnt lgkmcnt(0)"); k.lg = []
    k.e(f"v_readfirstlane_b32 s36, v{vt}")
    if repl: k.e("s_mov_b64 exec, 0xff")
    k.e(f"v_mov_b32 v{vt}, s62"); k.e(f"v_mov_b32 v{vt+1}, s63"); k.e(f"v_lshlrev_b32 v{vt+2}, 13, v{V_L}")
    k.e("s_nop 0")
    k.e(f"s_cmp_lg_u32 s36, {n-1}"); k.e(f"s_cbranch_scc1 {lab}")
    k.e(f"buffer_store_dwordx2 {vr(vt,2)}, v{vt+2}, {WS}, s37 offen{sc}")
    k.label(lab)
    k.e("s_mov_b64 exec, -1")

def poll(k, voff, soff, mask, vt, slp=None):
    assert vt % 2 == 0
    lab = k.newlabel("L_aw")
    k.e(f"s_mov_b32 exec_lo, 0x{mask & 0xffffffff:x}"); k.e(f"s_mov_b32 exec_hi, 0x{mask >> 32:x}")
    k.e("s_mov_b32 s38, 0x20000")
    k.label(lab)
    k.e(f"v_mov_b32 v{vt}, 0"); k.e(f"v_mov_b32 v{vt+1}, 0")
    k.e(f"buffer_atomic_or_x2 {vr(vt,2)}, v{voff}, {WS}, s{soff} offen sc0 sc1")
    k.e("s_waitcnt vmcnt(0)"); k.vm = []
    k.e(f"v_cmp_ne_u64 vcc, s[62:63], {vr(vt,2)}")
    k.e("s_sub_u32 s38, s38, 1")
    k.e("s_nop 3")
    k.e(f"s_cbranch_vccz {lab}_ok")
    k.e("s_cmp_eq_u32 s38, 0"); k.e(f"s_cbranch_scc1 {lab}_ok")
    k.e(f"s_sleep {ENV('PSLEEP', 3) if slp is None else slp}")
    k.e(f"s_branch {lab}")
    k.label(f"{lab}_ok")
    k.e("s_mov_b64 exec, -1")

def await_flags(k, fbase, s_r, vt, own=None):
    lab = k.newlabel("L_af")
    k.e(f"s_cmp_lg_u32 s{S_W}, {ENV('POLLW', 0)}"); k.e(f"s_cbranch_scc1 {lab}")
    lds_wait(k, own[0], own[1], vt, 1)
    k.e(f"s_lshl_b32 s37, s{s_r}, {GSH}"); k.e(f"s_add_u32 s37, s37, s{S_FL}"); k.e(f"s_add_u32 s37, s37, {fbase}")
    k.e(f"v_lshlrev_b32 v{vt}, {FSH}, v{V_L}")
    sv = k.snapshot()
    poll(k, vt, 37, 0xff, vt+2)
    k.restore(sv)
    k.label(lab)
    k.e("s_barrier")

def stats_acc(k, r4, va, first, sones):
    for j in range(4):
        c0 = "0" if (first and j == 0) else f"v{va}"
        c1 = "0" if (first and j == 0) else f"v{va+1}"
        k.e(f"v_dot2_f32_bf16 v{va}, v{r4+j}, s{sones}, {c0}")
        k.e(f"v_dot2_f32_bf16 v{va+1}, v{r4+j}, v{r4+j}, {c1}")

def stats_combine(k, src, R, vt, dst, halo, NP=12):
    k.e(f"v_lshlrev_b32 v{vt}, 3, v{V_L}"); k.e(f"v_add_u32 v{vt+1}, {src}, v{vt}")
    for p in range(NP): k.e(f"ds_read_b64 {vr(R+2*p,2)}, v{vt+1} offset:{512*p}")
    k.e("s_waitcnt lgkmcnt(0)")
    n = NP
    while n > 1:
        h = n // 2
        for j in range(h):
            k.e(f"v_add_f32 v{R+2*j}, v{R+2*j}, v{R+2*(n-1-j)}"); k.e(f"v_add_f32 v{R+2*j+1}, v{R+2*j+1}, v{R+2*(n-1-j)+1}")
        n -= h
    if halo:
        for op in ("v_permlane32_swap_b32", "v_permlane16_swap_b32"):
            k.e(f"v_mov_b32 v{R+2}, v{R}"); k.e(f"v_mov_b32 v{R+3}, v{R+1}")
            k.e("s_nop 1")
            k.e(f"{op} v{R}, v{R+2}"); k.e(f"{op} v{R+1}, v{R+3}")
            k.e("s_nop 1")
            k.e(f"v_add_f32 v{R}, v{R}, v{R+2}"); k.e(f"v_add_f32 v{R+1}, v{R+1}, v{R+3}")
        k.e(f"v_lshlrev_b32 v{vt}, 3, v{V_M}")
    k.e(f"v_mul_f32 v{R}, {f32(1/576)}, v{R}")
    k.e(f"v_mul_f32 v{R+1}, {f32(1/576)}, v{R+1}")
    k.e(f"v_fma_f32 v{R+1}, -v{R}, v{R}, v{R+1}")
    k.e(f"v_max_f32 v{R+1}, 0, v{R+1}")
    k.e(f"v_add_f32 v{R+1}, {f32(1e-5)}, v{R+1}")
    k.e(f"v_rsq_f32 v{R+2}, v{R+1}")
    k.e(f"v_add_u32 v{vt}, {dst}, v{vt}")
    k.e(f"v_mul_f32 v{R+3}, v{R}, v{R+2}")
    k.e(f"v_sub_f32 v{R+3}, 0, v{R+3}")
    k.e(f"ds_write_b64 v{vt}, {vr(R+2,2)}")
    k.e("s_waitcnt lgkmcnt(0)")

A_TILES = [9, 11, 4, 6, 0, 2, 13, 8, 0, 0, 0, 0]
def a_tile_setup(k):
    tab = sum(t << (4*i) for i, t in enumerate(A_TILES))
    k.e(f"s_mov_b32 s40, 0x{tab & 0xffffffff:x}"); k.e(f"s_mov_b32 s41, 0x{tab >> 32:x}")
    k.e(f"s_lshl_b32 s42, s{S_W}, 2"); k.e("s_lshr_b64 s[40:41], s[40:41], s42"); k.e("s_and_b32 s40, s40, 15")
    k.e(f"s_mul_i32 s41, s{S_S}, 14"); k.e("s_add_u32 s41, s41, s40")
    k.e(f"s_mul_i32 s42, s{S_W}, {2*6912}"); k.e(f"s_mul_i32 s43, s{S_S}, 288"); k.e("s_add_u32 s42, s42, s43"); k.e(f"s_add_u32 s42, s42, 0x{CSQP:x}")
    k.e("s_mul_i32 s41, s41, %d" % (18*1024))
    if WQF: k.e(f"s_add_u32 s41, s41, 0x{WQF:x}")
DA = ENV("DA", 6)
def a_load1(k, i):
    k.e(f"s_add_u32 s43, s41, {i*1024}")
    k.vmem(f"buffer_load_dwordx4 {vr(AR+4*i,4)}, v0, {WS}, s43 offen{WSC}", ("a", i))
def a_load2(k, i):
    k.e(f"s_add_u32 s43, s41, {i*1024}"); k.e(f"s_add_u32 s44, s41, {(18+i)*1024}")
    k.vmem(f"buffer_load_dwordx4 {vr(AR+8*(i%9),4)}, v{V_L16}, {WS}, s43 offen{WSC}", ("a0", i))
    k.vmem(f"buffer_load_dwordx4 {vr(AR+8*(i%9)+4,4)}, v{V_L16}, {WS}, s44 offen{WSC}", ("a", i))
def a_prefetch(k, lo1, hi1, lo2, hi2, cs):
    lab = k.newlabel("L_apf")
    sv = k.snapshot()
    if cs:
        k.e(f"s_cmp_lt_u32 s{S_W}, 9"); k.e("s_cselect_b32 s43, 0, 0x70000000"); k.e(f"s_cmp_eq_u32 s{S_LAY}, 0"); k.e("s_cselect_b32 s43, s43, 0x70000000")
        divmod_const(k, 6, None, V_L, 18, 64, 44)
        k.e(f"v_mul_u32_u24 v6, 0x{2304-288:x}, v6"); k.e(f"v_add_u32 v6, v6, v{V_L16}")
        k.e(f"v_or_b32 v6, s43, v6")
        k.e(f"s_add_u32 s43, s42, 6912")
        k.e(f"buffer_load_dwordx4 {vr(EX,4)}, v6, {WS}, s42 offen{WSC}")
        k.e(f"buffer_load_dwordx4 {vr(EX+4,4)}, v6, {WS}, s43 offen{WSC}")
    k.e(f"s_cmp_lt_u32 s{S_W}, 6"); k.e(f"s_cbranch_scc1 {lab}_d")
    k.e(f"s_cmp_ge_u32 s{S_W}, 8"); k.e(f"s_cbranch_scc1 {lab}_f")
    for i in range(lo1, hi1): a_load1(k, i)
    k.e(f"s_branch {lab}_e")
    k.label(f"{lab}_f")
    for i in range(lo1, min(hi1, 9)): b_load(k, i)
    k.e(f"s_branch {lab}_e")
    k.label(f"{lab}_d")
    for i in range(lo2, hi2): a_load2(k, i)
    k.label(f"{lab}_e")
    k.restore(sv)

def b_setup(k):
    k.e(f"s_min_u32 s59, s{S_W}, 9")
    k.e(f"s_cmp_ge_u32 s59, 5"); k.e("s_cselect_b32 s45, 1, 0"); k.e("s_mul_i32 s46, s45, 5"); k.e(f"s_sub_u32 s46, s59, s46")
    k.e(f"s_mul_i32 s58, s{S_S}, 5"); k.e("s_add_u32 s58, s58, s46"); k.e("s_mul_i32 s58, s58, %d" % (18*1024))
    k.e("s_mul_i32 s59, s45, 9216"); k.e("s_add_u32 s58, s58, s59"); k.e(f"s_add_u32 s58, s58, 0x{WOF:x}")
def b_load(k, i):
    if i and i % 4 == 0: k.e(f"s_add_u32 s58, s58, 4096")
    k.vmem(f"buffer_load_dwordx4 {vr(124+4*i,4)}, v{V_L16}, {WS}, s58 offen offset:{(i%4)*1024}{WSC}", ("wb", i))

def c_stream_init(k):
    k.e(f"s_mul_i32 s47, s{S_SC}, 12"); k.e(f"s_add_u32 s47, s47, s{S_W}"); k.e("s_mul_i32 s47, s47, %d" % (36*3072)); k.e(f"s_add_u32 s47, s47, 0x{WFF:x}")
    k.e(f"s_mul_i32 s48, s{S_ROT}, 3072"); k.e("s_add_u32 s48, s48, s47")
    k.e("s_add_u32 s49, s47, %d" % (18*3072))
def c_aload(k, i, tg="a"):
    if i >= 18 and (i - 18) % 6 == 0:
        k.e("s_mov_b32 s47, s49"); k.e(f"s_mul_i32 s48, s{S_ROT2}, 3072"); k.e("s_add_u32 s48, s48, s47"); k.e("s_add_u32 s49, s47, %d" % (6*3072))
    slot = i % 6
    for t in range(3):
        k.vmem(f"buffer_load_dwordx4 {vr(AR+12*slot+4*t,4)}, v{V_L16}, {WS}, s48 offen offset:{1024*t}{WSC}", (tg, i) if t == 2 else (tg + "_", i))
    k.e("s_add_u32 s48, s48, 3072"); k.e("s_cmp_eq_u32 s48, s49"); k.e("s_cselect_b32 s48, s47, s48")

def touch_w(k, swidx, nwaves, t, dummy):
    G = ENV("TGRAN", 128)
    total = SXC * 12 * 36 * 3072 // G
    ni = -(-total // (32 * nwaves * 64))
    ng = 8 // SXC
    k.e(f"s_and_b32 s36, s2, {ng-1}"); k.e(f"s_mul_i32 s36, s36, {SXC*12*36*3072}"); k.e(f"s_add_u32 s36, s36, 0x{WFF:x}")
    k.e("s_lshr_b32 s37, s2, 3"); k.e(f"s_mul_i32 s37, s37, {nwaves}"); k.e(f"s_add_u32 s37, s37, s{swidx}"); k.e(f"s_mul_i32 s37, s37, {ni*64}")
    k.e(f"s_mov_b32 s38, {total}")
    for j in range(ni):
        k.e(f"v_add_u32 v{t}, s37, v{V_L}")
        if j: k.e(f"v_add_u32 v{t}, {64*j}, v{t}")
        k.e(f"v_min_u32 v{t}, s38, v{t}")
        k.e(f"v_lshlrev_b32 v{t}, {G.bit_length()-1}, v{t}")
        k.vmem(f"buffer_load_dword v{dummy}, v{t}, {WS}, s36 offen", "touch")

def phase_A(k):
    k.c("================ phase A")
    ACC, BB = 8, 28
    VB1, VB2, VH = 5, 6, 7
    if FS in ("", "A"): stamp(k, 1)
    k.e(f"s_mul_i32 s39, s{S_R}, {TILEB}"); k.e(f"s_add_u32 s39, s39, s{S_XIN}")
    k.e(f"s_mul_i32 s36, s{S_W}, 6144"); k.e("s_add_u32 s37, s39, s36"); k.e("s_add_u32 s38, s37, 4096")
    k.vm = []
    for i in range(6):
        k.vmem(f"buffer_load_dwordx4 {vr(8+4*i,4)}, v{V_L16}, {WS}, s{37 if i < 4 else 38} offen offset:{(i%4)*1024} sc1", ("x", i))
    k.e(f"v_lshlrev_b32 v{VB1}, 10, v{V_G}"); k.e(f"v_lshl_add_u32 v{VB1}, v{V_M}, 4, v{VB1}")
    k.e(f"s_cmp_eq_u32 s{S_R}, 0"); k.e("s_cselect_b32 s38, 0x70000000, 0")
    k.e(f"v_add_u32 v{VH}, s38, v{VB1}")
    k.e(f"s_mul_i32 s50, s{S_CL}, 6"); k.e(f"s_add_u32 s50, s50, s{S_WL}")
    k.e("s_lshl_b32 s37, s50, 12"); k.e("s_add_u32 s37, s37, s39"); k.e(f"s_sub_u32 s37, s37, {TILEB-768}")
    k.vmem(f"buffer_load_dwordx4 {vr(32,4)}, v{VH}, {WS}, s37 offen sc1", ("x", 6))
    k.e(f"s_cmp_ge_u32 s{S_WL}, 2"); k.e("s_cselect_b32 s38, 0x70000000, 0"); k.e(f"v_or_b32 v{VB2}, s38, v{VH}")
    k.e(f"s_add_u32 s37, s37, {4*4096}")
    k.vmem(f"buffer_load_dwordx4 {vr(36,4)}, v{VB2}, {WS}, s37 offen sc1", ("x", 7))
    a_tile_setup(k)
    PA = 0
    E1, E2 = 18, 9
    b_setup(k)
    c_stream_init(k)
    k.e(f"s_cmp_lg_u32 s{S_LAY}, 0"); k.e("s_cbranch_scc1 L_A_np")
    k.e(f"s_cmp_lg_u32 s{S_W}, 9"); k.e("s_cbranch_scc1 L_A_np")
    k.e("s_and_b32 s37, s2, 7"); k.e("s_lshl_b32 s37, s37, 6"); k.e(f"s_add_u32 s37, s37, {(FLQ-FLP)//128}"); k.e(f"v_add_u32 v44, s37, v{V_L}")
    k.e(f"s_add_u32 s37, s{S_S}, {J_WO - 8*54}"); k.e(f"v_lshlrev_b32 v45, 3, v{V_L}"); k.e("v_add_u32 v45, s37, v45")
    k.e(f"v_cmp_gt_u32 vcc, 54, v{V_L}")
    k.e("s_nop 1")
    k.e("v_cndmask_b32 v44, v45, v44, vcc"); k.e("v_lshlrev_b32 v44, 7, v44")
    k.e(f"s_mov_b32 s37, 0x{FLP:x}")
    sv = k.snapshot()
    poll(k, 44, 37, (1 << 62) - 1, 46, ENV('PS2', 3))
    k.restore(sv)
    k.e("s_mov_b32 s57, s36")
    lds_signal(k, CP_WQ - 0, 44)
    k.e("s_mov_b32 s36, s57")
    k.lg = []
    k.label("L_A_np")
    if ENV("GA", 0):
        k.e(f"s_cmp_eq_u32 s{S_LAY}, 0"); k.e("s_cbranch_scc1 L_A_k2ok")
        k.e("s_mov_b32 s57, s36")
        lds_wait(k, CC_K2 - 32, 12, 44, 4)
        k.e("s_mov_b32 s36, s57")
        k.label("L_A_k2ok")
    k.e("s_mov_b32 s38, 0x3f803f80")
    k.e(f"v_add_u32 v{VB2}, s36, v{V_L16}")
    for i in range(8):
        k.e(f"s_waitcnt vmcnt({7-i})")
        if i < 6:
            k.e(f"ds_write_b128 v{VB2}, {vr(8+4*i,4)} offset:{1024*i}")
            stats_acc(k, 8+4*i, 40, i == 0, 38)
        else:
            if i == 6:
                k.e("s_lshl_b32 s37, s50, 10"); k.e(f"s_add_u32 s37, s37, {A_HL}"); k.e(f"v_add_u32 v{VB2}, s37, v{V_L16}")
                k.e(f"ds_write_b128 v{VB2}, {vr(8+4*i,4)}")
            stats_acc(k, 8+4*i, 42, i == 6, 38)
    def late(fn): fn()
    k.e(f"s_cmp_ge_u32 s{S_WL}, 2"); k.e("s_cbranch_scc1 L_A_xs")
    k.e(f"ds_write_b128 v{VB2}, {vr(36,4)} offset:4096")
    k.label("L_A_xs")
    k.e(f"s_lshl_b32 s37, s{S_W}, 9"); k.e(f"v_lshlrev_b32 v{VB2}, 3, v{V_L}"); k.e(f"v_add_u32 v{VB2}, s37, v{VB2}"); k.e(f"v_add_u32 v{VB2}, {A_PM}, v{VB2}")
    k.e(f"ds_write_b64 v{VB2}, v[40:41]"); k.e(f"ds_write_b64 v{VB2}, v[42:43] offset:6144")
    k.e("s_waitcnt lgkmcnt(0)")
    if FS in ("", "A"): stamp(k, 2)
    if GX:
        lds_signal(k, CA_X, 44, byclass=True)
        k.e("s_waitcnt lgkmcnt(0)")
    else:
        k.e("s_barrier")
    k.lg = []
    k.e(f"s_cmp_lg_u32 s{S_LAY}, 0"); k.e("s_cbranch_scc1 L_A_wqok")
    lds_wait(k, CP_WQ, 1, 44)
    k.label("L_A_wqok")
    def gateA(ks, query=False):
        if not GX or ks % 6: return False
        if query: return True
        lds_wait(k, CA_X + ks//6, 4, EX)
    if FS == "G": stamp(k, 2)
    k.e(f"s_cmp_ge_u32 s{S_W}, 8"); k.e("s_cbranch_scc1 L_A_free")
    k.e(f"v_add_u32 v{VB2}, 49152, v{VB1}")
    k.e(f"v_add_u32 v{VH}, {A_HL}, v{V_L16}")
    def mk_bread(mts):
        def bread(ks, mi, reg):
            mt = mts[mi]
            if mt == 0:
                k.lds(f"ds_read_b128 {vr(reg,4)}, v{VH} offset:{ks*1024}", ("b", ks))
            else:
                off = ks*4096 + (mt-1)*256; base = VB1
                if off >= 49152: off -= 49152; base = VB2
                k.lds(f"ds_read_b128 {vr(reg,4)}, v{base} offset:{off}", ("b", ks))
        return bread
    def epi_stats(mts, T):
        sa = T + 5; ST = T + 6
        if FS == "G": stamp(k, 4)
        lds_wait(k, CA_ST, 3, T)
        k.e(f"v_lshlrev_b32 v{sa}, 3, v{V_M}"); k.e(f"v_add_u32 v{sa}, {A_ST}, v{sa}")
        for mi, mt in enumerate(mts):
            k.lds(f"ds_read_b64 {vr(ST+2*mi,2)}, v{sa} offset:{mt*128}", "str")
    def epilogue(tadd, mts, accf, csr, vpath, T):
        a0, a1, p, H, t, sa = T, T+1, T+2, T+3, T+4, T+5
        ST = T + 6; U = T + 16
        k.e(f"v_lshlrev_b32 v{p}, 2, v{V_G}")
        k.e(f"s_add_u32 s36, s40, {tadd}"); k.e("s_lshl_b32 s36, s36, 4")
        k.e(f"v_add_u32 v{p}, s36, v{p}")
        k.e(f"s_mov_b32 s36, {A_CQ}"); k.e(f"v_lshl_add_u32 v{sa}, v{p}, 2, s36")
        k.lds(f"ds_read_b128 {vr(csr,4)}, v{sa}", "str")
        for a in (a0, a1):
            divmod_const(k, H, None, p, 18, 232, 36)
            if not vpath:
                k.e(f"s_movk_i32 s36, {QPL-36}")
                k.e(f"v_mul_u32_u24 v{a}, s36, v{H}")
                k.e(f"v_lshl_add_u32 v{a}, v{p}, 1, v{a}")
                k.e(f"v_mul_u32_u24 v{t}, {QP}, v{V_M}")
                k.e(f"s_mov_b32 s36, {A_QK}")
            else:
                k.e(f"s_movk_i32 s36, {VPL-72}")
                k.e(f"v_mul_u32_u24 v{a}, s36, v{H}")
                k.e(f"v_lshl_add_u32 v{a}, v{p}, 2, v{a}")
                k.e(f"v_mul_u32_u24 v{t}, 0x{VPP:x}, v{V_M}")
                k.e(f"s_mov_b32 s36, {A_VP - 8*VPL}")
            k.e(f"v_add3_u32 v{a}, v{a}, v{t}, s36")
            if a == a0: k.e(f"v_add_u32 v{p}, 2, v{p}")
        if vpath:
            k.e("s_mov_b32 s36, 0x05040100"); k.e("s_mov_b32 s37, 0x07060302")
        k.wait(lg=["str"])
        for mi, mt in enumerate(mts):
            r = accf(mi)
            for j in range(4):
                k.e(f"v_mul_f32 v{r+j}, v{r+j}, v{ST+2*mi}")
                k.e(f"v_fmac_f32 v{r+j}, v{ST+2*mi+1}, v{csr+j}")
            k.e(f"v_cvt_pk_bf16_f32 v{r}, v{r}, v{r+1}")
            k.e(f"v_cvt_pk_bf16_f32 v{r+1}, v{r+2}, v{r+3}")
            if not vpath:
                k.lds(f"ds_write_b32 v{a0}, v{r} offset:{mt*16*QP}", "qw")
                k.lds(f"ds_write_b32 v{a1}, v{r+1} offset:{mt*16*QP}", "qw")
        if vpath:
            for mi, mt in enumerate(mts):
                r = accf(mi); u = U + 4*(mi & 1)
                if mi:
                    rp = accf(mi-1)
                    k.e(f"v_mov_b32_dpp v{r+2}, v{rp} row_shl:14 row_mask:0xf bank_mask:0xf")
                    k.e(f"v_mov_b32_dpp v{r+3}, v{rp+1} row_shl:14 row_mask:0xf bank_mask:0xf")
                k.e(f"v_mov_b32_dpp v{r+2}, v{r} row_shr:2 row_mask:0xf bank_mask:0xf")
                k.e(f"v_mov_b32_dpp v{r+3}, v{r+1} row_shr:2 row_mask:0xf bank_mask:0xf")
                k.e(f"v_perm_b32 v{u}, v{r+2}, v{r}, s36"); k.e(f"v_perm_b32 v{u+1}, v{r+2}, v{r}, s37")
                k.e(f"v_perm_b32 v{u+2}, v{r+3}, v{r+1}, s36"); k.e(f"v_perm_b32 v{u+3}, v{r+3}, v{r+1}, s37")
                k.lds(f"ds_write_b64 v{a0}, {vr(u,2)} offset:{mt*16*VPP}", "qw")
                k.lds(f"ds_write_b64 v{a1}, {vr(u+2,2)} offset:{mt*16*VPP}", "qw")
    def ordA(nm):
        o = ENV("ORDA", 2)
        if o == 1: return [(mi, (t if mi % 2 == 0 else 1 - t)) for mi in range(nm) for t in range(2)]
        if o == 2: return [((mi if t == 0 else nm - 1 - mi), t) for t in range(2) for mi in range(nm)]
        return [(mi, t) for mi in range(nm) for t in range(2)]
    def pair_path(mts, accb, bb, bstride, BD):
        nm = len(mts)
        k.lg = []
        k.vm = []
        DA2 = ENV("DA2", 5)
        st = dict(c=0, b=0, n=PA//2)
        def ld(i):
            if i < E2: late(lambda: a_load2(k, i))
            else: a_load2(k, i)
        def pre():
            while st["n"] < DA2: ld(st["n"]); st["n"] += 1
        def after(ks):
            if FS == "G" and ks == 8: stamp(k, 3)
            while st["n"] < 18 and st["n"] <= ks + (DA2 if st["n"] < E2 else max(DA2, E2)):
                ld(st["n"]); st["n"] += 1
            if ks >= 9:
                free = 8*(ks - 8)
                while st["c"] < CPA and 12*(st["c"]+1) <= free:
                    c_aload(k, st["c"], "c"); st["c"] += 1
                while st["b"] < 9 and 36 + 4*(st["b"]+1) <= free:
                    b_load(k, st["b"]); st["b"] += 1
        pre()
        gemm_loop(k, 18, ordA(nm), lambda mi, t: accb + 4*nm*t + 4*mi, lambda par, mi: bb + bstride*par + 4*mi,
                  lambda i_, t: AR + 8*(i_ % 9) + 4*t, mk_bread(mts), 0, nm, after, None, BD=BD, gate=gateA)
        epi_stats(mts, bb)
    m5 = [0, 1, 2, 3, 4]; m4 = [1, 2, 3, 4]
    k.e(f"s_cmp_ge_u32 s{S_W}, 6"); k.e("s_cbranch_scc1 L_A_single")
    k.e(f"s_cmp_ge_u32 s{S_W}, 4"); k.e("s_cbranch_scc1 L_A_qpair")
    pair_path(m5, 8, 48, 20, 1)
    sv = k.snapshot()
    k.e(f"s_cmp_lt_u32 s{S_W}, 2"); k.e("s_cbranch_scc1 L_A_vpair")
    epilogue(0, m5, lambda mi: 8 + 4*mi, EX, False, 48)
    epilogue(1, m5, lambda mi: 28 + 4*mi, EX+4, False, 48)
    k.e("s_branch L_A_att")
    k.label("L_A_vpair")
    k.restore(sv)
    epilogue(0, m5, lambda mi: 8 + 4*mi, EX, True, 48)
    epilogue(1, m5, lambda mi: 28 + 4*mi, EX+4, True, 48)
    k.e("s_branch L_A_att")
    k.label("L_A_qpair")
    pair_path(m4, 8, 40, 16, 2)
    epilogue(0, m4, lambda mi: 8 + 4*mi, EX, False, 40)
    epilogue(1, m4, lambda mi: 24 + 4*mi, EX+4, False, 40)
    k.e("s_branch L_A_att")
    k.label("L_A_single")
    k.e("s_cmp_eq_u32 s40, 13"); k.e("s_cselect_b32 s36, 0xffffff7f, -1"); k.e(f"v_and_b32 v0, s36, v{V_L16}")
    k.lg = []
    k.vm = []
    def ld1(i):
        if i < E1: late(lambda: a_load1(k, i))
        else: a_load1(k, i)
    def pre1():
        for i in range(PA, DA): ld1(i)
    def after1(ks):
        if ks + DA < 18: ld1(ks + DA)
        if ks in (9, 11, 13) and (ks - 9)//2 < CPA: c_aload(k, (ks - 9)//2, "c")
        if ks >= 9: b_load(k, ks - 9)
    pre1()
    gemm_loop(k, 18, [(mi, 0) for mi in range(5)], lambda mi, t: ACC + 4*mi, lambda par, mi: BB + 20*par + 4*mi,
              lambda i_, t: AR + 4*i_, mk_bread(m5), 0, 5, after1, None, BD=2, gate=gateA)
    epi_stats(m5, 28)
    sv = k.snapshot()
    k.e("s_cmp_ge_u32 s40, 9"); k.e("s_cbranch_scc1 L_A_vp")
    epilogue(0, m5, lambda mi: ACC + 4*mi, EX, False, 28)
    k.e("s_branch L_A_att")
    k.label("L_A_vp")
    k.restore(sv)
    k.e("s_mov_b32 exec_hi, 0")
    k.e("s_nop 4")
    epilogue(0, m5, lambda mi: ACC + 4*mi, EX, True, 28)
    k.e("s_mov_b64 exec, -1")
    k.e("s_branch L_A_att")
    k.label("L_A_free")
    k.e(f"s_cmp_eq_u32 s{S_W}, 9"); k.e("s_cbranch_scc1 L_A_fr2")
    if GX:
        for c in range(3): lds_wait(k, CA_X + c, 4, 8)
    k.e(f"s_cmp_eq_u32 s{S_W}, 8"); k.e("s_cbranch_scc1 L_A_combq")
    k.e(f"s_cmp_eq_u32 s{S_W}, 11"); k.e("s_cbranch_scc1 L_A_combh")
    stats_combine(k, A_PM, 8, VB2, A_ST + 128, False)
    k.e("s_branch L_A_combd")
    k.label("L_A_combh")
    stats_combine(k, A_PH, 8, VB2, A_ST, True)
    k.e("s_branch L_A_combd")
    k.label("L_A_combq")
    k.e(f"s_cmp_lg_u32 s{S_LAY}, 0"); k.e("s_cbranch_scc1 L_A_combd")
    k.e(f"v_min_u32 v7, 53, v{V_L}")
    divmod_const(k, 6, None, 7, 18, 64, 44)
    k.e(f"v_mul_u32_u24 v6, 0x{2304-288:x}, v6"); k.e(f"v_lshl_add_u32 v6, v7, 4, v6")
    k.e(f"s_mul_i32 s42, s{S_S}, 288"); k.e(f"s_add_u32 s42, s42, 0x{CSQP:x}")
    for p in range(18):
        k.e(f"buffer_load_dwordx4 {vr(8+4*p,4)}, v6, {WS}, s42 offen{WSC}")
        if p < 17: k.e("s_add_u32 s42, s42, 6912")
    k.e(f"v_add_u32 v{VB2}, {A_CQ}, v{V_L16}")
    k.e("s_waitcnt vmcnt(0)")
    for p in range(1, 18):
        for j in range(4): k.e(f"v_add_f32 v{8+j}, v{8+j}, v{8+4*p+j}")
    k.e(f"ds_write_b128 v{VB2}, v[8:11]")
    k.e("s_waitcnt lgkmcnt(0)")
    k.label("L_A_combd")
    lds_signal(k, CA_ST, 8)
    k.e("s_waitcnt lgkmcnt(0)"); k.lg = []
    k.e("s_branch L_A_att")
    k.label("L_A_fr2")
    k.e(f"s_cmp_lg_u32 s{S_LAY}, 0"); k.e("s_cbranch_scc1 L_A_att")
    for c in range(3): lds_wait(k, CA_X + c, 4, 8)
    if WREL:
        k.e("s_cmp_lt_u32 s2, 104"); k.e("s_cbranch_scc1 L_A_norel")
        k.e("buffer_wbl2 sc1")
        k.e("s_waitcnt vmcnt(0)")
        k.e("s_cmp_lt_u32 s2, 120"); k.e("s_cselect_b32 exec_lo, 1, 3"); k.e("s_mov_b32 exec_hi, 0")
        k.e(f"v_mul_u32_u24 v10, 0x{152*8:x}, v{V_L}"); k.e("s_add_u32 s36, s2, 216"); k.e("s_lshl_b32 s36, s36, 3"); k.e("v_sub_u32 v10, s36, v10")
        k.e("v_mov_b32 v8, s62"); k.e("v_mov_b32 v9, s63"); k.e(f"s_mov_b32 s37, 0x{FLP:x}")
        k.e(f"buffer_store_dwordx2 v[8:9], v10, {WS}, s37 offen sc1")
        k.e("s_mov_b64 exec, -1")
        k.label("L_A_norel")
    k.e(f"s_lshl_b32 s37, s{S_SC}, 7"); k.e(f"s_add_u32 s37, s37, 0x{FLP + 128*J_W1:x}")
    k.e(f"v_lshlrev_b32 v8, 10, v{V_L}")
    poll(k, 8, 37, (1 << 36) - 1, 10, ENV('PS3', 24))
    k.label("L_A_att")
    k.vm = []; k.lg = []
    k.e("s_waitcnt lgkmcnt(0)")
    if FS in ("", "A"): stamp(k, 3)
    if FS == "G": stamp(k, 5)
    k.e("s_barrier")
    if FS == "A": stamp(k, 4)
    if FS == "G": stamp(k, 6)
    k.e(f"s_cmp_ge_u32 s{S_W}, 8"); k.e("s_cbranch_scc1 L_A_cs")
    VI, VHH, VQ, VK, VV = 5, 6, 7, 86, 87
    Q, KK, VP_, OA, PP, T0 = 8, 20, 20, 68, EX, EX+4
    att_start = len(k.lines)
    VHD = EX+6
    k.e(f"s_lshl_b32 s41, s{S_W}, 3")
    k.e(f"v_and_b32 v{VI}, 7, v{V_L}"); k.e(f"v_add_u32 v{VI}, s41, v{VI}")
    k.e(f"v_lshrrev_b32 v{VHH}, 5, v{V_L}")
    k.e(f"v_bfe_u32 v{VHD}, v{V_L}, 3, 2")
    k.e(f"v_mul_u32_u24 v{VQ}, {QP}, v{VI}")
    k.e(f"v_mul_u32_u24 v{VK}, 0x{QPL:x}, v{VHD}")
    k.e(f"s_mov_b32 s36, {A_QK + 16*QP}")
    k.e(f"v_add3_u32 v{VQ}, v{VQ}, v{VK}, s36")
    k.e(f"v_mul_u32_u24 v{VK}, 0x{8*QP:x}, v{VHH}"); k.e(f"v_sub_u32 v{VK}, v{VQ}, v{VK}")
    k.e(f"v_lshlrev_b32 v{T0}, 3, v{VHH}"); k.e(f"v_sub_u32 v{T0}, v{VI}, v{T0}")
    k.e(f"v_add_u32 v{VV}, 12, v{T0}"); k.e(f"v_mul_u32_u24 v{VV}, 0x{VPP:x}, v{VV}")
    k.e(f"v_mul_u32_u24 v{T0+1}, 0x{VPL:x}, v{VHD}"); k.e(f"s_mov_b32 s36, {A_VP}"); k.e(f"v_add3_u32 v{VV}, v{VV}, v{T0+1}, s36")
    def rdvec(reg, va, off, tag):
        k.lds(f"ds_read_b128 {vr(reg,4)}, v{va} offset:{off}", tag)
        k.lds(f"ds_read_b128 {vr(reg+4,4)}, v{va} offset:{off+16}", tag)
        k.lds(f"ds_read_b128 {vr(reg+8,4)}, v{va} offset:{off+32}", tag)
    rdvec(Q, VQ, 0, "q")
    for j in range(4): rdvec(KK + 12*j, VK, TSTR - 2*j*QP, ("k", j))
    k.e(f"s_lshl_b32 s36, s{S_R}, 6"); k.e(f"v_add_u32 v{T0}, s36, v{T0}")
    for j in range(4):
        k.e(f"v_cmp_le_i32 s[{50+2*j}:{51+2*j}], {2*j}, v{T0}")
    k.wait(lg=["q", ("k", 1)])
    for jj in range(9):
        for j in range(2):
            c = "0" if jj == 0 else f"v{PP+j}"
            k.e(f"v_dot2_f32_bf16 v{PP+j}, v{Q+jj}, v{KK+12*j+jj}, {c}")
    def rdvp(pr):
        off = (4*VPP if pr == 0 else 0)
        for q4 in range(5):
            k.lds(f"ds_read_b128 {vr(VP_+24*pr+4*q4,4)}, v{VV} offset:{off+16*q4}", ("v", pr))
    rdvp(0)
    k.wait(lg=[("k", 3)])
    for jj in range(9):
        for j in range(2, 4):
            c = "0" if jj == 0 else f"v{PP+j}"
            k.e(f"v_dot2_f32_bf16 v{PP+j}, v{Q+jj}, v{KK+12*j+jj}, {c}")
    rdvp(1)
    sc = (18 ** -0.5) * math.log2(math.e)
    k.e(f"v_mov_b32 v{T0}, {f32(-1e30)}")
    k.e("s_nop 1")
    for j in range(4): k.e(f"v_mul_f32 v{PP+j}, {f32(sc)}, v{PP+j}")
    for j in range(4): k.e(f"v_cndmask_b32 v{PP+j}, v{T0}, v{PP+j}, s[{50+2*j}:{51+2*j}]")
    k.e(f"v_max3_f32 v{T0}, v{PP}, v{PP+1}, v{PP+2}")
    k.e(f"v_max_f32 v{T0}, v{T0}, v{PP+3}")
    k.e(f"v_mov_b32 v{T0+1}, v{T0}")
    k.e("s_nop 1")
    k.e(f"v_permlane32_swap_b32 v{T0}, v{T0+1}")
    k.e("s_nop 1")
    k.e(f"v_max_f32 v{T0}, v{T0}, v{T0+1}")
    for j in range(4): k.e(f"v_sub_f32 v{PP+j}, v{PP+j}, v{T0}")
    for j in range(4): k.e(f"v_exp_f32 v{PP+j}, v{PP+j}")
    k.e("s_nop 0")
    k.e(f"v_cvt_pk_bf16_f32 v{PP}, v{PP}, v{PP+1}")
    k.e(f"v_cvt_pk_bf16_f32 v{PP+2}, v{PP+2}, v{PP+3}")
    k.e("s_mov_b32 s36, 0x3f803f80")
    k.e(f"v_dot2_f32_bf16 v{T0}, v{PP}, s36, 0")
    k.e(f"v_dot2_f32_bf16 v{T0}, v{PP+2}, s36, v{T0}")
    k.wait(lg=[("v", 0)])
    for d in range(18): k.e(f"v_dot2_f32_bf16 v{OA+d}, v{VP_+d}, v{PP}, 0")
    k.e(f"v_mov_b32 v{T0+1}, v{T0}")
    k.wait(lg=[("v", 1)])
    for d in range(18): k.e(f"v_dot2_f32_bf16 v{OA+d}, v{VP_+24+d}, v{PP+2}, v{OA+d}")
    k.e(f"v_permlane32_swap_b32 v{T0}, v{T0+1}")
    k.e("s_nop 1")
    k.e(f"v_add_f32 v{T0}, v{T0}, v{T0+1}")
    k.e(f"v_rcp_f32 v{T0}, v{T0}")
    pairs = [(d, d+8) for d in range(8)] + [(16, 17)]
    for a, b_ in pairs: k.e(f"v_permlane32_swap_b32 v{OA+a}, v{OA+b_}")
    k.e("s_nop 1")
    for a, b_ in pairs: k.e(f"v_add_f32 v{OA+a}, v{OA+a}, v{OA+b_}")
    for a, b_ in pairs: k.e(f"v_mul_f32 v{OA+a}, v{OA+a}, v{T0}")
    k.e(f"v_cvt_pk_bf16_f32 v{Q+4}, v{OA+16}, v{OA+16}")
    k.e(f"v_lshlrev_b32 v{VI}, 4, v{VI}")
    k.e(f"v_lshl_add_u32 v{VHD}, v{VHD}, 1, v{VHH}")
    k.e(f"v_lshl_add_u32 v{VK}, v{VHD}, 1, v{VI}"); k.e(f"v_add_u32 v{VK}, {A_SCR}, v{VK}")
    k.e(f"ds_write_b16 v{VK}, v{Q+4}")
    k.e(f"v_add_u32 v{VV}, {A_SCR}, v{VI}")
    for j in range(4): k.e(f"v_cvt_pk_bf16_f32 v{Q+j}, v{OA+2*j}, v{OA+2*j+1}")
    k.e("s_waitcnt lgkmcnt(0)")
    k.e(f"ds_read_b128 {vr(Q+4,4)}, v{VV}")
    k.e(f"v_lshl_add_u32 v{VQ}, v{VHD}, 10, v{VI}")
    k.e(f"s_mul_i32 s36, s{S_S}, 9216"); k.e(f"s_mul_i32 s37, s{S_R}, {TILEB}"); k.e("s_add_u32 s36, s36, s37"); k.e(f"s_add_u32 s36, s36, s{S_O}")
    k.e("s_add_u32 s38, s36, 8192")
    if FS == "A": stamp(k, 5)
    k.e(f"buffer_store_dwordx4 {vr(Q,4)}, v{VQ}, {WS}, s36 offen{SC('o')}")
    k.e("s_mov_b64 exec, 0xff")
    k.e("s_waitcnt lgkmcnt(0)")
    k.e(f"buffer_store_dwordx4 {vr(Q+4,4)}, v{VI}, {WS}, s38 offen{SC('o')}")
    k.e("s_mov_b64 exec, -1")
    publish(k, CA_DONE, 8, F_A, S_R, S_S, 20, sc=SC('o'))
    if FS == "A": stamp(k, 6)
    k.e("s_branch L_A_end")
    k.label("L_A_cs")
    k.e(f"s_cmp_ge_u32 s{S_W}, 10"); k.e("s_cbranch_scc1 L_A_nb")
    for i in range(PA, 9): b_load(k, i)
    k.label("L_A_nb")
    for i in range(CPA): c_aload(k, i, "c")
    k.vm = []
    k.e(f"s_cmp_lg_u32 s{S_LAY}, 0"); k.e("s_cbranch_scc1 L_A_end")
    k.e(f"s_cmp_eq_u32 s{S_WL}, 3"); k.e("s_cbranch_scc1 L_A_b1")
    k.e(f"s_mul_i32 s36, s{S_SC}, 2304"); k.e(f"s_lshl_b32 s37, s{S_WL}, 10"); k.e(f"s_add_u32 s36, s36, 0x{CSP:x}")
    k.e(f"v_add_u32 v6, s37, v{V_L16}"); k.e("v_min_u32 v6, 0x8f0, v6")
    for i in range(18):
        k.e(f"buffer_load_dwordx4 {vr(8+4*i,4)}, v6, {WS}, s36 offen{WSC}")
        if i < 17: k.e(f"s_add_u32 s36, s36, {4608*4}")
    k.e(f"s_add_u32 s37, s37, {C_CS}"); k.e(f"v_add_u32 v5, s37, v{V_L16}")
    k.e("s_waitcnt vmcnt(0)")
    for i in range(17):
        for j in range(4): k.e(f"v_add_f32 v{76+j}, v{76+j}, v{8+4*i+j}")
    k.e("ds_write_b128 v5, v[76:79]")
    k.e("s_waitcnt lgkmcnt(0)")
    k.e("s_branch L_A_end")
    k.label("L_A_b1")
    k.e(f"s_mul_i32 s38, s{S_SC}, 1152"); k.e(f"s_mov_b32 m0, {C_B1}"); k.e("s_nop 0")
    k.e(f"buffer_load_dwordx4 v{V_L16}, s[12:15], s38 offen lds")
    k.e(f"buffer_load_dwordx4 v{V_L16}, s[12:15], s38 offen offset:1024 lds")
    k.e("s_waitcnt vmcnt(0)")
    k.label("L_A_end")

def phase_B(k):
    k.c("================ phase B")
    VB1, VB2, VR_ = 5, 6, 7
    ACC, BB, RX, WB = 8, 24, 72, 124
    k.vm = []; k.lg = []
    k.e(f"s_mul_i32 s39, s{S_R}, {TILEB}")
    k.e(f"s_cmp_ge_u32 s{S_W}, 5"); k.e("s_cselect_b32 s45, 1, 0"); k.e("s_mul_i32 s46, s45, 5"); k.e(f"s_sub_u32 s46, s{S_W}, s46")
    k.e(f"v_lshrrev_b32 v{VR_}, 1, v{V_G}"); k.e(f"v_lshlrev_b32 v{VR_}, 10, v{VR_}")
    k.e(f"v_and_b32 v{VB2}, 31, v{V_L}"); k.e(f"v_lshl_add_u32 v{VR_}, v{VB2}, 4, v{VR_}")
    k.e(f"s_mul_i32 s40, s{S_S}, 9216"); k.e("s_add_u32 s40, s40, s39"); k.e("s_lshl_b32 s41, s46, 11"); k.e("s_add_u32 s40, s40, s41")
    k.e("s_lshl_b32 s41, s45, 9"); k.e("s_add_u32 s40, s40, s41")
    k.e("s_cmp_eq_u32 s46, 4"); k.e("s_cselect_b32 s41, 2, 4"); k.e("s_cmp_gt_u32 s46, 4"); k.e("s_cselect_b32 s41, 0, s41")
    k.e(f"v_cmp_gt_u32 vcc, s41, v{V_G}")
    k.e(f"v_mov_b32 v{VB2}, 0x70000000")
    k.e(f"s_add_u32 s41, s40, s{S_XIN}")
    k.e(f"v_cndmask_b32 v{VR_}, v{VB2}, v{VR_}, vcc")
    k.vmem(f"buffer_load_dwordx4 {vr(RX,4)}, v{VR_}, {WS}, s41 offen sc1", "r")
    NP1 = 3
    await_flags(k, F_A, S_R, 8, (CA_DONE, 8))
    if FS in ("", "A", "B"): stamp(k, {"A": 7, "B": 1}.get(FS, 4))
    k.e(f"s_mul_i32 s36, s{S_W}, 6144"); k.e("s_add_u32 s37, s39, s36"); k.e(f"s_add_u32 s37, s37, s{S_O}")
    for i in range(6):
        if i % 4 == 0:
            k.e(f"s_add_u32 m0, s36, {1024*i}")
            k.e("s_nop 0") if i == 0 else k.e("s_add_u32 s37, s37, 4096")
        k.vmem(f"buffer_load_dwordx4 v{V_L16}, {WS}, s37 offen offset:{(i%4)*1024} sc1 lds", "o")
    k.e(f"v_lshlrev_b32 v{VB1}, 10, v{V_G}"); k.e(f"v_lshl_add_u32 v{VB1}, v{V_M}, 4, v{VB1}")
    k.e("s_mul_i32 s41, s45, %d" % (9*4096)); k.e(f"v_add_u32 v{VB1}, s41, v{VB1}")
    k.e("s_lshl_b32 s41, s45, 9"); k.e("s_xor_b32 s42, s41, 512")
    k.e(f"v_add_u32 v{VB2}, s42, v{VB1}"); k.e(f"v_add_u32 v{VB1}, s41, v{VB1}")
    k.wait(vm0=True)
    if FS == "B": stamp(k, 2)
    k.e("s_barrier")
    if FS == "B": stamp(k, 3)
    vm_keep = list(k.vm)
    k.e(f"s_cmp_ge_u32 s{S_W}, 10"); k.e("s_cbranch_scc1 L_B_idle")
    def bread(ks, mi, reg):
        k.lds(f"ds_read_b128 {vr(reg,4)}, v{VB1 if mi < 2 else VB2} offset:{ks*4096 + (mi&1)*256}", ("b", ks))
    def afterB(ks):
        if ks % 2 == 0 and CPA + ks // 2 < 3: c_aload(k, CPA + ks // 2, "c")
    gemm_loop(k, 9, [(2, 0), (3, 0), (0, 0), (1, 0)], lambda mi, t: ACC + 4*mi, lambda par, mi: BB + 16*par + 4*mi, lambda i_, t: WB + 4*i_,
              bread, 0, 4, afterB, None, BD=2, atag=lambda ks: "none")
    k.e(f"s_lshl_b32 s41, s{S_W}, 11"); k.e(f"s_add_u32 s41, s41, {B_XB}"); k.e(f"v_add_u32 v{VB1}, s41, v{V_L16}")
    k.e(f"s_add_u32 s42, s{S_W}, 5"); k.e(f"s_sub_u32 s43, s{S_W}, 5"); k.e(f"s_cmp_ge_u32 s{S_W}, 5"); k.e("s_cselect_b32 s42, s43, s42")
    k.e("s_lshl_b32 s42, s42, 11"); k.e(f"s_add_u32 s42, s42, {B_XB}"); k.e(f"v_add_u32 v{VB2}, s42, v{V_L16}")
    k.e("s_nop 0")
    if FS == "B": stamp(k, 4)
    k.e(f"ds_write_b128 v{VB1}, {vr(ACC+8,4)}"); k.e(f"ds_write_b128 v{VB1}, {vr(ACC+12,4)} offset:1024")
    k.e("s_waitcnt lgkmcnt(0)")
    k.e("s_barrier")
    k.e(f"ds_read_b128 {vr(ACC+8,4)}, v{VB2}"); k.e(f"ds_read_b128 {vr(ACC+12,4)}, v{VB2} offset:1024")
    k.e(f"s_add_u32 s41, s40, s{S_X1}")
    k.e("s_waitcnt lgkmcnt(0)")
    for j in range(8): k.e(f"v_add_f32 v{ACC+j}, v{ACC+j}, v{ACC+8+j}")
    k.e("s_nop 1")
    for j in range(4): k.e(f"v_permlane16_swap_b32 v{ACC+j}, v{ACC+4+j}")
    k.e("s_nop 1")
    for j in range(4):
        k.e(f"v_lshlrev_b32 v{BB}, 16, v{RX+j}"); k.e(f"v_and_b32 v{BB+1}, 0xffff0000, v{RX+j}")
        k.e(f"v_add_f32 v{ACC+2*j}, v{ACC+2*j}, v{BB}"); k.e(f"v_add_f32 v{ACC+2*j+1}, v{ACC+2*j+1}, v{BB+1}")
        k.e(f"v_cvt_pk_bf16_f32 v{RX+j}, v{ACC+2*j}, v{ACC+2*j+1}")
    if FS == "B": stamp(k, 5)
    k.e(f"buffer_store_dwordx4 {vr(RX,4)}, v{VR_}, {WS}, s41 offen sc1")
    publish(k, CB_DONE, 10, F_B, S_R, S_S, 24)
    if FS == "B": stamp(k, 6)
    k.e("s_branch L_B_end")
    k.label("L_B_idle")
    for i in range(CPA, 3): c_aload(k, i, "c")
    k.e("s_barrier")
    k.label("L_B_end")
    k.vm = vm_keep; k.lg = []
    NP2 = ENV("NP2", 4)
    for i in range(NP1, NP2): c_aload(k, i)
    return NP2

def phase_C(k, npre):
    k.c("================ phase C")
    VB1, VB2, VT = 5, 6, 7
    ACC, BB = 8, 56
    D = 6
    k.e(f"s_mul_i32 s39, s{S_RC}, {TILEB}")
    await_flags(k, F_B, S_RC, 8, (CB_DONE, 10))
    if FS in ("", "B", "C"): stamp(k, {"B": 7, "C": 1}.get(FS, 5))
    k.e(f"s_mul_i32 s36, s{S_W}, 6144"); k.e("s_add_u32 s37, s36, s39"); k.e(f"s_add_u32 s37, s37, s{S_X1}")
    for i in range(6):
        if i and i % 4 == 0: k.e("s_add_u32 s37, s37, 4096")
        k.e(f"buffer_load_dwordx4 {vr(8+4*i,4)}, v{V_L16}, {WS}, s37 offen offset:{(i%4)*1024} sc1")
    k.e(f"s_lshl_b32 s37, s{S_ROT}, 12"); k.e("s_sub_u32 s36, s36, s37"); k.e(f"s_add_u32 s36, s36, {TILEB}")
    k.e("s_mov_b32 s38, 0x3f803f80")
    for i in range(6):
        k.e(f"s_sub_u32 s37, s36, {TILEB}"); k.e(f"s_cmp_ge_u32 s36, {TILEB}"); k.e("s_cselect_b32 s36, s37, s36")
        k.e(f"v_add_u32 v{VB2}, s36, v{V_L16}")
        k.e(f"s_waitcnt vmcnt({5-i})")
        k.e(f"ds_write_b128 v{VB2}, {vr(8+4*i,4)}")
        stats_acc(k, 8+4*i, 44, i == 0, 38)
        k.e("s_add_u32 s36, s36, 1024")
    k.e(f"s_lshl_b32 s37, s{S_W}, 9"); k.e(f"v_lshlrev_b32 v{VB2}, 3, v{V_L}"); k.e(f"v_add_u32 v{VB2}, s37, v{VB2}"); k.e(f"v_add_u32 v{VB2}, {C_PM}, v{VB2}")
    k.e(f"ds_write_b64 v{VB2}, v[44:45]")
    k.label("L_C_s4")
    k.vm = []
    k.e(f"v_lshlrev_b32 v{VB1}, 10, v{V_G}"); k.e(f"v_lshl_add_u32 v{VB1}, v{V_M}, 4, v{VB1}")
    k.e("s_waitcnt lgkmcnt(0)")
    if GXC:
        lds_signal(k, CC_X, 46, byclass=True)
        k.e("s_waitcnt lgkmcnt(0)")
    else:
        k.e("s_barrier")
    if FS in ("", "C"): stamp(k, {"C": 2}.get(FS, 6))
    k.lg = []
    def gate1(ks, query=False):
        if not GXC or ks % 6: return False
        if query: return True
        lds_wait(k, CC_X + ks//6, 4, EX)
    k.e(f"s_cmp_lg_u32 s{S_W}, 11"); k.e("s_cbranch_scc1 L_C_nocomb")
    if GXC:
        for c in range(3): lds_wait(k, CC_X + c, 4, 8)
    stats_combine(k, C_PM, 8, VB2, C_ST, False, 12)
    lds_signal(k, CC_ST, 8)
    k.e("s_waitcnt lgkmcnt(0)"); k.lg = []
    k.label("L_C_nocomb")
    k.e(f"v_add_u32 v{VB2}, 49152, v{VB1}")
    def bread1(ks, mi, reg):
        off = ks*4096 + mi*256; base = VB1
        if off >= 49152: off -= 49152; base = VB2
        k.lds(f"ds_read_b128 {vr(reg,4)}, v{base} offset:{off}", ("b", ks))
    accf = lambda mi, t: ACC + 12*mi + 4*t
    bbf = lambda par, mi: BB + 16*par + 4*mi
    asf = lambda i_, t: AR + 12*(i_ % D) + 4*t
    order = [(mi, t) for mi in range(4) for t in range(3)]
    if ENV("ORD", 2) == 1: order = [(mi, t) for t in range(3) for mi in range(4)]
    if ENV("ORD", 2) == 2: order = [(mi, (t if mi % 2 == 0 else 2 - t)) for mi in range(4) for t in range(3)]
    if ENV("ORD", 2) == 3: order = [((mi if t % 2 == 0 else 3 - mi), t) for t in range(3) for mi in range(4)]
    DEFER = ENV("DEFER", 2)
    state = dict(n=npre)
    lim1 = ENV("LIM1", 18) if DEFER else 24
    def after1(ks):
        tgt = min(ks + 1 + D, lim1, state["n"] + 2)
        while state["n"] < tgt:
            c_aload(k, state["n"]); state["n"] += 1
            if DEFER == 1 and state["n"] == 18: lds_signal(k, CC_W1, EX)
    k.e(f"s_setprio {ENV('P1PRIO', 2)}")
    (gemm_loop_sp if ENV('SP', 2) & 1 else gemm_loop)(k, 18, order, accf, bbf, asf, bread1, 0, 4, after1, gate=gate1)
    k.e(f"s_setprio {ENV('GPRIO', 3)}")
    if FS == "C": stamp(k, 3)
    DEFN = ENV('DEFN', 12)
    sv2 = k.snapshot()
    def w2_check(final=False, first=False):
        if DEFER != 1: return
        lab = k.newlabel("L_w2")
        if not first:
            k.e("s_cmp_lg_u32 s56, 0"); k.e(f"s_cbranch_scc1 {lab}")
        else:
            k.e("s_mov_b32 s56, 0")
        k.e(f"s_add_u32 s36, s{S_CNT}, {4*CC_W1}")
        k.label(lab + "_p")
        k.e(f"v_mov_b32 v0, s36")
        k.e(f"ds_read_b32 v0, v0")
        k.e("s_waitcnt lgkmcnt(0)"); k.lg = []
        k.e(f"v_readfirstlane_b32 s37, v0")
        k.e("s_nop 3")
        k.e(f"s_cmp_ge_u32 s37, {DEFN}"); k.e(f"s_cbranch_scc1 {lab}_go")
        if final:
            k.e("s_sleep 4"); k.e(f"s_branch {lab}_p")
        else:
            k.e(f"s_branch {lab}")
        k.label(lab + "_go")
        k.vm = list(sv2[0])
        for i in range(18, 24): c_aload(k, i)
        k.e("s_mov_b32 s56, 1")
        k.label(lab)
    w2_check(first=True)
    lds_wait(k, CC_ST, 1, EX)
    CSR, B1R, T, STR = BB, BB+12, BB+24, EX
    k.e(f"s_lshr_b32 s40, s{S_W}, 1"); k.e(f"s_and_b32 s41, s{S_W}, 1"); k.e("s_mul_i32 s40, s40, 96")
    k.e("s_lshl_b32 s42, s41, 5"); k.e("s_add_u32 s42, s42, s40")
    k.e("s_lshl_b32 s43, s41, 4"); k.e("s_add_u32 s43, s43, s40"); k.e("s_add_u32 s43, s43, 64")
    k.e(f"v_lshlrev_b32 v{VB1}, 3, v{V_G}"); k.e(f"v_add_u32 v{VB1}, s42, v{VB1}")
    k.e(f"v_lshlrev_b32 v{VB2}, 2, v{V_G}"); k.e(f"v_add_u32 v{VB2}, s43, v{VB2}")
    k.e(f"s_mov_b32 s40, {C_CS}"); k.e(f"s_mov_b32 s41, {C_B1}")
    k.e(f"v_lshl_add_u32 v{VT}, v{VB1}, 2, s40")
    for j in range(2): k.lds(f"ds_read_b128 {vr(CSR+4*j,4)}, v{VT} offset:{16*j}", "cs")
    k.e(f"v_lshl_add_u32 v{VT}, v{VB2}, 2, s40")
    k.lds(f"ds_read_b128 {vr(CSR+8,4)}, v{VT}", "cs")
    k.e(f"v_lshl_add_u32 v{VT}, v{VB1}, 1, s41")
    k.lds(f"ds_read_b128 {vr(T,4)}, v{VT}", "cs")
    k.e(f"v_lshl_add_u32 v{VT}, v{VB2}, 1, s41")
    k.lds(f"ds_read_b64 {vr(T+4,2)}, v{VT}", "cs")
    k.e(f"v_lshlrev_b32 v{VB1}, 3, v{V_M}"); k.e(f"v_add_u32 v{VB1}, {C_ST}, v{VB1}")
    for mi in range(4): k.lds(f"ds_read_b64 {vr(STR+2*mi,2)}, v{VB1} offset:{128*mi}", "cs")
    k.e(f"s_bfe_u32 s40, s{S_W}, 0x10001"); k.e(f"s_and_b32 s41, s{S_W}, 1"); k.e("s_mul_i32 s40, s40, 3")
    k.e(f"s_sub_u32 s40, s40, s{S_ROT2}"); k.e("s_add_u32 s40, s40, 6")
    k.e(f"s_lshr_b32 s55, s{S_W}, 2"); k.e("s_mul_i32 s54, s55, 6")
    k.e("s_add_u32 s42, s40, s41"); k.e("s_sub_u32 s44, s42, 6"); k.e("s_cmp_ge_u32 s42, 6"); k.e("s_cselect_b32 s42, s44, s42")
    k.e("s_add_u32 s42, s42, s54"); k.e("s_lshl_b32 s42, s42, 12"); k.e(f"s_add_u32 s42, s42, {C_HB}")
    k.e("s_add_u32 s43, s40, 2"); k.e("s_sub_u32 s44, s43, 6"); k.e("s_cmp_ge_u32 s43, 6"); k.e("s_cselect_b32 s43, s44, s43")
    k.e("s_add_u32 s43, s43, s54"); k.e("s_lshl_b32 s43, s43, 12"); k.e("s_lshl_b32 s41, s41, 3"); k.e("s_add_u32 s43, s43, s41"); k.e(f"s_add_u32 s43, s43, {C_HB}")
    k.e(f"v_add_u32 v{VB1}, s42, v{V_L16}"); k.e(f"v_add_u32 v{VB2}, s43, v{V_L16}")
    c0 = -2.0 * math.sqrt(2.0/math.pi) * math.log2(math.e)
    c1 = c0 * 0.044715
    k.e(f"s_mov_b32 s44, {f32(c1)}"); k.e(f"v_mov_b32 v{VT}, {f32(c0)}")
    k.wait(lg=["cs"])
    for j in range(6):
        k.e(f"v_lshlrev_b32 v{B1R+2*j}, 16, v{T+j}"); k.e(f"v_and_b32 v{B1R+2*j+1}, 0xffff0000, v{T+j}")
    PK = ENV("PK", 0)
    if PK:
        k.e(f"s_mov_b32 s45, {f32(c1)}"); k.e(f"s_mov_b32 s50, {f32(c0)}"); k.e(f"s_mov_b32 s51, {f32(c0)}")
    for mi in range(4):
        a = accf(mi, 0)
        for (j0, n) in ((0, 8), (8, 4)):
            js = range(j0, j0+n)
            if ENV("NOGELU", 0) == 1:
                for j in js: k.e(f"v_mul_f32 v{T+j-j0}, v{a+j}, v{STR+2*mi}")
            elif ENV("NOGELU", 0) == 2:
                for j in js: k.e(f"v_fma_f32 v{T+j-j0}, v{STR+2*mi+1}, v{CSR+j}, v{B1R+j}")
                for j in js: k.e(f"v_fma_f32 v{a+j}, v{a+j}, v{STR+2*mi}, v{T+j-j0}")
                for j in js: k.e(f"v_mul_f32 v{T+j-j0}, v{a+j}, v{a+j}")
                for j in js: k.e(f"v_fma_f32 v{T+j-j0}, v{T+j-j0}, s44, v{VT}")
                for j in js: k.e(f"v_mul_f32 v{T+j-j0}, v{T+j-j0}, v{a+j}")
                for j in js: k.e(f"v_add_f32 v{T+j-j0}, 1.0, v{T+j-j0}")
                for j in js: k.e(f"v_mul_f32 v{T+j-j0}, 0.5, v{a+j}")
            elif not PK:
                for j in js: k.e(f"v_fma_f32 v{T+j-j0}, v{STR+2*mi+1}, v{CSR+j}, v{B1R+j}")
                for j in js: k.e(f"v_fma_f32 v{a+j}, v{a+j}, v{STR+2*mi}, v{T+j-j0}")
                for j in js: k.e(f"v_mul_f32 v{T+j-j0}, v{a+j}, v{a+j}")
                for j in js: k.e(f"v_fma_f32 v{T+j-j0}, v{T+j-j0}, s44, v{VT}")
                for j in js: k.e(f"v_mul_f32 v{T+j-j0}, v{T+j-j0}, v{a+j}")
                for j in js: k.e(f"v_exp_f32 v{T+j-j0}, v{T+j-j0}")
                for j in js: k.e(f"v_add_f32 v{T+j-j0}, 1.0, v{T+j-j0}")
                for j in js: k.e(f"v_rcp_f32 v{T+j-j0}, v{T+j-j0}")
                for j in js: k.e(f"v_mul_f32 v{T+j-j0}, v{T+j-j0}, v{a+j}")
            else:
                jp = range(j0, j0+n, 2)
                P = lambda r: vr(r, 2)
                st = P(STR+2*mi)
                for j in jp: k.e(f"v_pk_fma_f32 {P(T+j-j0)}, {st}, {P(CSR+j)}, {P(B1R+j)} op_sel:[1,0,0] op_sel_hi:[1,1,1]")
                for j in jp: k.e(f"v_pk_fma_f32 {P(a+j)}, {P(a+j)}, {st}, {P(T+j-j0)} op_sel:[0,0,0] op_sel_hi:[1,0,1]")
                for j in jp: k.e(f"v_pk_mul_f32 {P(T+j-j0)}, {P(a+j)}, s[44:45]")
                for j in jp: k.e(f"v_pk_fma_f32 {P(T+j-j0)}, {P(T+j-j0)}, {P(a+j)}, s[50:51]")
                for j in jp: k.e(f"v_pk_mul_f32 {P(T+j-j0)}, {P(T+j-j0)}, {P(a+j)}")
                for j in js: k.e(f"v_exp_f32 v{T+j-j0}, v{T+j-j0}")
                for j in jp: k.e(f"v_pk_add_f32 {P(T+j-j0)}, {P(T+j-j0)}, 1.0 op_sel_hi:[1,0]")
                for j in js: k.e(f"v_rcp_f32 v{T+j-j0}, v{T+j-j0}")
                for j in jp: k.e(f"v_pk_mul_f32 {P(T+j-j0)}, {P(T+j-j0)}, {P(a+j)}")
            for j in range(n//2): k.e(f"v_cvt_pk_bf16_f32 v{a+j0+j}, v{T+2*j}, v{T+2*j+1}")
            if j0 == 0: k.lds(f"ds_write_b128 v{VB1}, {vr(a,4)} offset:{mi*1024}", "hw")
            else: k.lds(f"ds_write_b64 v{VB2}, {vr(a+8,2)} offset:{mi*1024}", "hw")
            if DEFER == 2 and state["n"] < 24:
                c_aload(k, state["n"]); state["n"] += 1
        if mi < 3: w2_check()
    k.e(f"v_add_u32 v{VB1}, {C_HB}, v{V_L16}"); k.e(f"v_add_u32 v{VB2}, {C_HB+49152}, v{V_L16}")
    k.e("s_lshl_b32 s55, s55, 2"); k.e(f"s_add_u32 s55, s55, s{S_CNT}"); k.e(f"s_add_u32 s55, s55, {4*CC_H0}")
    k.e(f"v_mov_b32 v{EX+2}, s55"); k.e(f"v_mov_b32 v{EX+3}, 1")
    k.wait(lg0=True)
    k.e("s_mov_b64 exec, 1")
    k.e(f"ds_add_u32 v{EX+2}, v{EX+3}")
    k.e("s_mov_b64 exec, -1")
    k.e(f"s_setprio {ENV('P2PRIO', 0)}")
    if FS == "C": stamp(k, 4)
    w2_check(final=True)
    if FS == "C": stamp(k, 5)
    def gate(ks, query=False):
        if ks % 6: return False
        if query: return True
        lds_wait(k, CC_H0 + ks//6, 4, EX)
    def bread2(ks, mi, reg):
        off = (ks*4 + mi) * 1024; base = VB1
        if off >= 49152: off -= 49152; base = VB2
        k.lds(f"ds_read_b128 {vr(reg,4)}, v{base} offset:{off}", ("b", ks))
    def after2(ks):
        if 18 + ks + D < 36: c_aload(k, 18 + ks + D)
    (gemm_loop_sp if ENV('SP', 2) & 2 else gemm_loop)(k, 18, order, accf, bbf, asf, bread2, 18, 4, after2, gate=gate)
    k.e("s_setprio 0")
    if FS == "C": stamp(k, 6)
    if FS == "D": stamp(k, 1)
    k.e(f"v_lshlrev_b32 v{VB1}, 10, v{V_G}"); k.e(f"v_lshl_add_u32 v{VB1}, v{V_M}, 4, v{VB1}")
    k.e(f"v_lshrrev_b32 v{VB2}, 1, v{V_G}"); k.e(f"v_lshlrev_b32 v{VB2}, 10, v{VB2}"); k.e(f"v_and_b32 v{VT}, 31, v{V_L}")
    k.e(f"v_lshl_add_u32 v{VB2}, v{VT}, 4, v{VB2}")
    k.e(f"s_mul_i32 s40, s{S_SC}, {XB}"); k.e("s_add_u32 s40, s40, s39"); k.e(f"s_mul_i32 s41, s{S_W}, 6144"); k.e("s_add_u32 s40, s40, s41")
    k.e(f"s_add_u32 s40, s40, s{S_P}")
    k.e("s_add_u32 s41, s40, 4096")
    for mp in range(2):
        T2 = BB + 16 + 4*mp
        for mi in (2*mp, 2*mp+1):
            a = accf(mi, 0); T_ = BB + 4*mi
            for j in range(4): k.e(f"v_cvt_pk_bf16_f32 v{T_+j}, v{a+2*j}, v{a+2*j+1}")
            for j in range(2): k.e(f"v_cvt_pk_bf16_f32 v{T2+2*(mi&1)+j}, v{a+8+2*j}, v{a+8+2*j+1}")
            k.e(f"buffer_store_dwordx4 {vr(T_,4)}, v{VB1}, {WS}, s40 offen offset:{256*mi} sc1")
        k.e("s_nop 0")
        k.e(f"v_permlane16_swap_b32 v{T2}, v{T2+2}"); k.e(f"v_permlane16_swap_b32 v{T2+1}, v{T2+3}")
        k.e("s_nop 0")
        k.e(f"buffer_store_dwordx4 {vr(T2,4)}, v{VB2}, {WS}, s41 offen offset:{512*mp} sc1")
    k.e(f"s_mul_i32 s40, s{S_CL}, 24"); k.e(f"s_mul_i32 s41, s{S_S}, 3"); k.e("s_add_u32 s40, s40, s41"); k.e(f"s_add_u32 s40, s40, s{S_WL}")
    k.e("s_min_u32 s40, s40, 71"); k.e("s_lshl_b32 s40, s40, 4")
    k.e("s_load_dwordx4 s[52:55], s[20:21], s40")
    lds_signal(k, CC_K2, 8)
    publish(k, CC_DONE, 4, F_C, S_RC, S_SC, 8, byclass=True)
    if FS in ("", "C", "D"): stamp(k, {"D": 2}.get(FS, 7))

def phase_D(k):
    k.c("================ phase D (per class)")
    k.e(f"s_cmp_lg_u32 s{S_WL}, 3"); k.e("s_cbranch_scc1 L_D_work")
    GD = ENV("GD", 0); GA = ENV("GA", 0)
    k.e(f"s_cmp_lg_u32 s{S_CL}, 0"); k.e("s_cbranch_scc1 L_D_g1")
    if GD == 0: lds_wait(k, CC_DONE + 1, 4, 8, 8)
    k.e("s_branch L_D_g2")
    k.label("L_D_g1")
    if GD < 2: lds_wait(k, CC_K2, 12, 8, 4)
    k.label("L_D_g2")
    lds_wait(k, CC_DONE, 4, 8, 1, byclass=True)
    k.e(f"s_lshl_b32 s39, s{S_R}, {GSH}"); k.e(f"s_lshl_b32 s38, s{S_CL}, {GSH+5}"); k.e("s_add_u32 s39, s39, s38"); k.e(f"s_add_u32 s39, s39, s{S_FL}")
    k.e(f"s_add_u32 s37, s39, {F_C}")
    k.e(f"v_lshlrev_b32 v8, {FSH}, v{V_L}")
    poll(k, 8, 37, 0xff, 12, ENV('PSD', 3))
    lds_signal(k, CD_GO, 10, byclass=True)
    k.e(f"s_cmp_lg_u32 s{S_LAY}, 0"); k.e("s_cbranch_scc1 L_D_idle")
    lds_wait(k, CD_DONE, 3, 10, 2, byclass=True)
    if not GA: lds_wait(k, CC_K2, 12, 10, 8)
    k.e(f"s_add_u32 s37, s39, {F_D}")
    k.e(f"s_cmp_eq_u32 s{S_R}, 0"); k.e(f"s_cselect_b32 s38, 0, {1 << GSH}"); k.e("s_sub_u32 s37, s37, s38"); k.e(f"s_sub_u32 s38, s38, {8 << FSH}")
    k.e(f"v_cmp_le_u32 vcc, 8, v{V_L}"); k.e("v_mov_b32 v9, s38")
    k.e("s_nop 0")
    k.e("v_cndmask_b32 v9, 0, v9, vcc"); k.e("v_add_u32 v8, v8, v9")
    poll(k, 8, 37, 0xffff, 12, ENV('PSD', 3))
    lds_signal(k, CA_GO, 10, byclass=True)
    k.e("s_waitcnt lgkmcnt(0)")
    k.e("s_branch L_D_idle")
    k.label("L_D_work")
    k.e(f"s_mul_i32 s39, s{S_R}, {TILEB}"); k.e("s_lshl_b32 s41, s40, 6"); k.e("s_add_u32 s41, s41, s39")
    lds_wait(k, CD_GO, 1, 8, 2, byclass=True)
    if FS == "D": stamp(k, 3)
    k.vm = []
    k.e(f"s_add_u32 s42, s41, s{S_X1}")
    k.vmem(f"buffer_load_dwordx4 v[40:43], v{V_L16}, {WS}, s42 offen sc1", "x1")
    k.e(f"s_add_u32 s42, s41, s{S_P}")
    for s in range(8):
        k.vmem(f"buffer_load_dwordx4 {vr(8+4*s,4)}, v{V_L16}, {WS}, s42 offen sc1", s)
        if s < 7: k.e(f"s_add_u32 s42, s42, {XB}")
    k.wait(vm=["x1"])
    for j in range(4):
        k.e(f"s_lshl_b32 s43, s{52+j}, 16"); k.e(f"s_and_b32 s44, s{52+j}, 0xffff0000")
        k.e(f"v_lshlrev_b32 v{48+2*j}, 16, v{40+j}"); k.e(f"v_and_b32 v{49+2*j}, 0xffff0000, v{40+j}")
        k.e(f"v_add_f32 v{48+2*j}, s43, v{48+2*j}"); k.e(f"v_add_f32 v{49+2*j}, s44, v{49+2*j}")
    for s in range(8):
        k.wait(vm=[s])
        for j in range(4):
            r = 8 + 4*s + j
            k.e(f"v_lshlrev_b32 v5, 16, v{r}"); k.e(f"v_and_b32 v6, 0xffff0000, v{r}")
            k.e(f"v_add_f32 v{48+2*j}, v{48+2*j}, v5"); k.e(f"v_add_f32 v{49+2*j}, v{49+2*j}, v6")
    for j in range(4): k.e(f"v_cvt_pk_bf16_f32 v{8+j}, v{48+2*j}, v{49+2*j}")
    if FS == "D": stamp(k, 4)
    k.e(f"s_cmp_lg_u32 s{S_LAY}, 0"); k.e("s_cbranch_scc1 L_D_final")
    k.e(f"s_add_u32 s42, s41, 0x{X2:x}")
    k.e(f"buffer_store_dwordx4 v[8:11], v{V_L16}, {WS}, s42 offen sc1")
    publish(k, CD_DONE, 3, F_D, S_R, S_S, 14, byclass=True)
    if FS == "D": stamp(k, 5)
    lds_wait(k, CA_GO, 1, 8, 2, byclass=True)
    if FS == "D": stamp(k, 6)
    k.e("s_branch L_D_idle")
    k.label("L_D_final")
    k.e("s_movk_i32 s42, 1152"); k.e(f"v_mul_u32_u24 v5, s42, v{V_L}")
    k.e("s_add_u32 s42, s39, s40")
    k.e("buffer_store_dwordx4 v[8:11], v5, s[16:19], s42 offen")
    k.label("L_D_idle")


def phase_P(k):
    k.c("================ phase P (weight re-layout), waves 0-5: job b, waves 6-11: job 256+b")
    L, L16, G, R, C = V_L, V_L16, V_G, 46, 47
    IN = "s[52:55]"
    k.e(f"v_bfe_u32 v{R}, v{L}, 2, 2"); k.e(f"v_and_b32 v{C}, 3, v{L}")
    k.e(f"s_cmp_ge_u32 s{S_W}, 6"); k.e(f"s_cselect_b32 s{S_SLOT}, 1, 0")
    k.e("s_add_u32 s36, s2, 64"); k.e("s_cmp_lt_u32 s2, 120"); k.e("s_cselect_b32 s36, s2, s36")
    k.e("s_add_u32 s37, s2, 216"); k.e("s_cmp_lt_u32 s2, 104"); k.e("s_cselect_b32 s37, 999, s37")
    k.e("s_add_u32 s38, s2, 120"); k.e("s_cmp_lt_u32 s2, 64"); k.e("s_cselect_b32 s37, s38, s37")
    k.e(f"s_cmp_eq_u32 s{S_SLOT}, 0"); k.e(f"s_cselect_b32 s{S_JOB}, s36, s37")
    k.e(f"s_mul_i32 s{S_LB}, s{S_SLOT}, 36864")
    k.e(f"s_mul_i32 s49, s{S_SLOT}, 6"); k.e(f"s_sub_u32 s49, s{S_W}, s49")
    k.e(f"s_and_b32 s45, s{S_JOB}, 7"); k.e(f"s_lshr_b32 s46, s{S_JOB}, 3")
    k.e(f"s_cmp_ge_u32 s{S_JOB}, {J_END}"); k.e("s_cbranch_scc1 L_P_done")
    k.e(f"s_and_b32 s36, s{S_JOB}, 0xfffe"); k.e("s_cmp_eq_u32 s36, 54"); k.e("s_cbranch_scc1 L_P_done")
    def dispatch(pfx):
        for bound, lab in ((J_X0, "wq"), (J_WO, "x0"), (J_W1, "wo"), (J_W2, "w1")):
            k.e(f"s_cmp_lt_u32 s{S_JOB}, {bound}"); k.e(f"s_cbranch_scc1 L_P{pfx}_{lab}")
        k.e(f"s_branch L_P{pfx}_w2")
    def pdma(i, voff, soff):
        k.e(f"s_add_u32 m0, s37, {6144*i}")
        k.e("s_nop 0")
        k.e(f"buffer_load_dwordx4 v{voff}, {IN}, {soff} offen nt lds")
    def lin_dma(n_i, per_row, nmax, pitch):
        k.e("s_lshl_b32 s36, s49, 6")
        for i in range(n_i):
            k.e(f"v_add_u32 v6, s36, v{L}")
            if i: k.e(f"v_add_u32 v6, {384*i}, v6")
            divmod_const(k, 7, 8, 6, per_row, nmax, 38)
            k.e(f"s_mov_b32 s38, {pitch}")
            k.e("v_mul_u32_u24 v7, s38, v7")
            k.e("v_lshl_add_u32 v7, v8, 4, v7")
            pdma(i, 7, "s40")
    def cont_dma():
        k.e("s_lshl_b32 s36, s49, 10"); k.e("s_add_u32 s40, s40, s36")
        for i in range(6):
            pdma(i, L16, "s40")
            if i < 5: k.e("s_add_u32 s40, s40, 6144")
    if ENV("WLATE", 0):
        k.e(f"s_cmp_lt_u32 s{S_JOB}, {J_W1 if ENV('WLATE', 0) == 1 else J_W2}"); k.e("s_cbranch_scc1 L_P_nl")
        get_tag(k)
        k.label("L_P_nl")
    k.e(f"s_lshl_b32 s37, s49, 10"); k.e(f"s_add_u32 s37, s37, s{S_LB}")
    dispatch("i")
    k.label("L_Pi_wq")
    srd(k, 52, 24, 0, 576*1728*2)
    sdivmod(k, 46, 45, S_JOB, 3, 56)
    k.e("s_mul_i32 s40, s46, %d" % (32*3456)); k.e("s_mul_i32 s36, s45, 1152"); k.e("s_add_u32 s40, s40, s36")
    lin_dma(6, 72, 2304, 3456)
    k.e("s_branch L_P_wait")
    k.label("L_Pi_x0")
    srd(k, 52, 22, 0, XB)
    k.e(f"s_sub_u32 s46, s46, {J_X0//8}"); k.e("s_lshl_b32 s45, s45, 3"); k.e("s_add_u32 s46, s46, s45")
    k.e("s_mul_i32 s40, s46, 36864")
    cont_dma()
    k.e("s_branch L_P_wait")
    k.label("L_Pi_wo")
    srd(k, 52, 26, 0, 576*576*2)
    k.e(f"s_sub_u32 s46, s46, {J_WO//8}")
    k.e("s_mul_i32 s40, s46, %d" % (72*1152)); k.e("s_mul_i32 s36, s45, 144"); k.e("s_add_u32 s40, s40, s36")
    lin_dma(2, 9, 768, 1152)
    k.e("s_branch L_P_wait")
    k.label("L_Pi_w1")
    srd(k, 52, 28, 0, 576*4608*2)
    k.e(f"s_sub_u32 s46, s46, {J_W1//8}")
    k.e("s_mul_i32 s40, s46, %d" % (32*9216)); k.e("s_mul_i32 s36, s45, 1152"); k.e("s_add_u32 s40, s40, s36")
    lin_dma(6, 72, 2304, 9216)
    k.e("s_branch L_P_wait")
    k.label("L_Pi_w2")
    srd(k, 52, 32, 0, 576*4608*2)
    k.e(f"s_sub_u32 s46, s46, {J_W2//8}")
    k.e("s_mul_i32 s40, s45, 18"); k.e("s_add_u32 s40, s40, s46"); k.e("s_mul_i32 s40, s40, 36864")
    cont_dma()
    k.label("L_P_wait")
    for j in range(4): k.e(f"v_mov_b32 v{40+j}, 0x3f803f80")
    k.e(f"s_lshl_b32 s36, s{S_SLOT}, 2"); k.e(f"s_add_u32 s36, s36, {CNT + 4*CP_LD}"); k.e("v_mov_b32 v8, s36"); k.e("v_mov_b32 v9, 1")
    k.e("s_waitcnt vmcnt(0)")
    k.e("s_mov_b64 exec, 1"); k.e("ds_add_u32 v8, v9"); k.e("s_mov_b64 exec, -1")
    k.label("L_P_spin")
    k.e("ds_read_b32 v9, v8"); k.e("s_waitcnt lgkmcnt(0)"); k.e("v_readfirstlane_b32 s36, v9"); k.e("s_nop 3")
    k.e("s_cmp_ge_u32 s36, 6"); k.e("s_cbranch_scc1 L_P_go"); k.e("s_sleep 2"); k.e("s_branch L_P_spin")
    k.label("L_P_go")
    k.e(f"s_lshl_b32 s39, s{S_W}, 10"); k.e("s_add_u32 s39, s39, 73728")
    k.e("s_lshl_b32 s48, s49, 1")
    k.label("L_P_vw")
    dispatch("p")
    def tr3(a6, a9, a10, a11):
        for t in range(2):
            k.e(f"ds_read_b64_tr_b16 v[{12+4*t}:{13+4*t}], v{a6} offset:{8*t}")
            k.e(f"ds_read_b64_tr_b16 v[{14+4*t}:{15+4*t}], v{a9} offset:{8*t}")
        k.e(f"ds_read_b64_tr_b16 v[20:21], v{a10}")
        k.e(f"ds_read_b64_tr_b16 v[22:23], v{a11}")
    k.label("L_Pp_w1")
    k.e("s_lshr_b32 s40, s48, 1"); k.e("s_and_b32 s41, s48, 1"); k.e("s_mul_i32 s40, s40, 96")
    k.e("s_lshl_b32 s42, s41, 5"); k.e("s_add_u32 s42, s42, s40")
    k.e("s_lshl_b32 s43, s41, 4"); k.e("s_add_u32 s43, s43, s40"); k.e("s_add_u32 s43, s43, 64")
    k.e(f"v_lshl_add_u32 v7, v{G}, 3, v{R}"); k.e("s_movk_i32 s38, 1152"); k.e("v_mul_u32_u24 v7, s38, v7"); k.e(f"v_add_u32 v7, s{S_LB}, v7")
    k.e("s_lshl_b32 s44, s42, 1"); k.e(f"v_lshl_add_u32 v6, v{C}, 4, v7"); k.e("v_add_u32 v6, s44, v6")
    k.e("s_lshl_b32 s44, s43, 1"); k.e(f"v_lshl_add_u32 v10, v{C}, 3, v7"); k.e("v_add_u32 v10, s44, v10")
    k.e("v_add_u32 v9, %d, v6" % (4*1152)); k.e("v_add_u32 v11, %d, v10" % (4*1152))
    tr3(6, 9, 10, 11)
    k.e("s_mul_i32 s47, s45, 12"); k.e("s_add_u32 s47, s47, s48"); k.e("s_mul_i32 s47, s47, 36"); k.e("s_add_u32 s47, s47, s46")
    k.e("s_mul_i32 s47, s47, 3072"); k.e(f"s_add_u32 s47, s47, 0x{WFF:x}")
    k.e("s_lshl_b32 s42, s41, 7"); k.e("s_add_u32 s42, s42, s39"); k.e("s_lshl_b32 s43, s41, 6"); k.e("s_add_u32 s43, s43, s39"); k.e("s_add_u32 s43, s43, 256")
    k.e(f"v_lshlrev_b32 v7, 5, v{G}"); k.e("v_add_u32 v7, s42, v7"); k.e(f"v_lshlrev_b32 v8, 4, v{G}"); k.e("v_add_u32 v8, s43, v8")
    for t in range(3):
        k.e(f"s_waitcnt lgkmcnt({4-2*t})")
        k.e(f"buffer_store_dwordx4 v[{12+4*t}:{15+4*t}], v{L16}, {WS}, s47 offen offset:{1024*t}{WST}")
        k.e(f"v_mfma_f32_16x16x32_bf16 v[{28+4*t}:{31+4*t}], v[{12+4*t}:{15+4*t}], v[40:43], 0")
    k.e("s_nop 7")
    k.e("ds_write_b128 v7, v[28:31]"); k.e("ds_write_b128 v7, v[32:35] offset:16"); k.e("ds_write_b128 v8, v[36:39]")
    k.e("s_waitcnt lgkmcnt(0)")
    k.e("s_branch L_P_next")
    k.label("L_Pp_wq")
    k.e(f"v_lshl_add_u32 v6, v{G}, 3, v{R}"); k.e("s_movk_i32 s38, 1152"); k.e("v_mul_u32_u24 v6, s38, v6")
    k.e(f"v_lshl_add_u32 v6, v{C}, 3, v6"); k.e("s_mul_i32 s38, s48, 96"); k.e(f"s_add_u32 s38, s38, s{S_LB}"); k.e("v_add_u32 v6, s38, v6")
    for t in range(3):
        k.e(f"ds_read_b64_tr_b16 v[{12+4*t}:{13+4*t}], v6 offset:{32*t}")
        k.e(f"ds_read_b64_tr_b16 v[{14+4*t}:{15+4*t}], v6 offset:{32*t+4*1152}")
    k.e("s_mul_i32 s40, s45, 9")
    for t in range(3):
        k.e(f"v_bfe_u32 v7, v{L}, 3, 1"); k.e("s_mul_i32 s38, s48, 6"); k.e(f"s_add_u32 s38, s38, {2*t}"); k.e("v_add_u32 v7, s38, v7")
        divmod_const(k, 8, 9, 7, 9, 72, 38)
        k.e("v_add_u32 v9, s40, v9")
        k.e("v_mul_u32_u24 v8, 28, v8"); k.e("v_add_u32 v8, v8, v9")
        k.e("v_lshrrev_b32 v9, 1, v8"); k.e("s_movk_i32 s38, %d" % (18*1024)); k.e("v_mul_u32_u24 v9, s38, v9")
        k.e("v_and_b32 v8, 1, v8"); k.e("v_lshl_add_u32 v9, v8, 7, v9")
        k.e(f"v_lshl_add_u32 v9, v{G}, 8, v9"); k.e(f"v_and_b32 v8, 7, v{L}"); k.e(f"v_lshl_add_u32 v{24+t}, v8, 4, v9")
    k.e("s_lshl_b32 s47, s46, 10")
    if WQF: k.e(f"s_add_u32 s47, s47, 0x{WQF:x}")
    k.e("s_and_b32 s42, s48, 1"); k.e("s_mul_i32 s42, s42, 192"); k.e("s_add_u32 s42, s42, s39")
    k.e(f"v_lshlrev_b32 v7, 4, v{G}"); k.e("v_add_u32 v7, s42, v7")
    k.e("s_waitcnt lgkmcnt(0)")
    for t in range(3):
        k.e(f"buffer_store_dwordx4 v[{12+4*t}:{15+4*t}], v{24+t}, {WS}, s47 offen sc1")
        k.e(f"v_mfma_f32_16x16x32_bf16 v[{28+4*t}:{31+4*t}], v[{12+4*t}:{15+4*t}], v[40:43], 0")
    k.e("s_nop 7")
    for t in range(3): k.e(f"ds_write_b128 v7, v[{28+4*t}:{31+4*t}] offset:{64*t}")
    k.e("s_waitcnt lgkmcnt(0)")
    k.e("s_branch L_P_next")
    k.label("L_Pp_w2")
    sdivmod(k, 40, 41, 46, 3, 18)
    k.e("s_cmp_eq_u32 s41, 2"); k.e("s_cselect_b32 s44, 2, 3"); k.e("s_movk_i32 s43, %d" % (4*1152)); k.e("s_cselect_b32 s43, %d, s43" % (16*1152))
    k.e(f"v_lshlrev_b32 v6, s44, v{G}"); k.e(f"v_add_u32 v6, v6, v{R}")
    k.e("s_movk_i32 s38, 1152"); k.e("v_mul_u32_u24 v6, s38, v6")
    k.e("s_mul_i32 s38, s48, 96"); k.e(f"s_add_u32 s38, s38, s{S_LB}"); k.e("v_add_u32 v6, s38, v6")
    k.e(f"v_lshl_add_u32 v10, v{C}, 3, v6"); k.e("v_add_u32 v10, 64, v10")
    k.e(f"v_lshl_add_u32 v6, v{C}, 4, v6")
    k.e("v_add_u32 v9, s43, v6"); k.e("v_add_u32 v11, s43, v10")
    tr3(6, 9, 10, 11)
    k.e("s_mul_i32 s47, s45, 12"); k.e("s_add_u32 s47, s47, s48"); k.e("s_mul_i32 s47, s47, 36"); k.e("s_add_u32 s47, s47, s46"); k.e("s_add_u32 s47, s47, 18")
    k.e("s_mul_i32 s47, s47, 3072"); k.e(f"s_add_u32 s47, s47, 0x{WFF:x}")
    for t in range(3):
        k.e(f"s_waitcnt lgkmcnt({4-2*t})")
        k.e(f"buffer_store_dwordx4 v[{12+4*t}:{15+4*t}], v{L16}, {WS}, s47 offen offset:{1024*t}{WST}")
    k.e("s_branch L_P_next")
    k.label("L_Pp_wo")
    k.e("s_lshl_b32 s44, s48, 2"); k.e(f"v_add_u32 v6, s44, v{G}"); k.e("v_min_u32 v6, 44, v6")
    divmod_const(k, 8, 7, 6, 5, 48, 38)
    k.e("v_lshrrev_b32 v9, 1, v8"); k.e("v_mul_u32_u24 v9, 18, v9")
    k.e("v_and_b32 v10, 1, v8"); k.e("v_lshl_add_u32 v9, v10, 3, v9")
    k.e(f"v_add_u32 v9, v9, v{R}")
    k.e("v_add_u32 v10, 4, v9")
    k.e(f"v_lshrrev_b32 v11, 1, v{R}"); k.e("v_mul_u32_u24 v11, 18, v11"); k.e(f"v_and_b32 v16, 1, v{R}")
    k.e("v_add3_u32 v11, v11, v16, 16")
    k.e("v_add_u32 v16, 36, v11")
    k.e("v_cmp_eq_u32 vcc, 8, v8")
    k.e("s_nop 1")
    k.e("v_cndmask_b32 v9, v9, v11, vcc"); k.e("v_cndmask_b32 v10, v10, v16, vcc")
    k.e("s_movk_i32 s38, 144"); k.e("v_mul_u32_u24 v9, s38, v9"); k.e("v_mul_u32_u24 v10, s38, v10")
    k.e("v_lshlrev_b32 v11, 5, v7"); k.e(f"v_lshl_add_u32 v11, v{C}, 3, v11"); k.e(f"v_add_u32 v11, s{S_LB}, v11")
    k.e("v_add_u32 v9, v9, v11"); k.e("v_add_u32 v10, v10, v11")
    k.e("ds_read_b64_tr_b16 v[12:13], v9")
    k.e("ds_read_b64_tr_b16 v[14:15], v10")
    k.e("s_movk_i32 s38, %d" % (18*1024)); k.e("v_mul_u32_u24 v7, s38, v7")
    k.e("s_mul_i32 s38, s46, 9"); k.e("v_add_u32 v8, s38, v8"); k.e("v_lshl_add_u32 v7, v8, 8, v7")
    k.e(f"v_lshl_add_u32 v7, v{V_M}, 4, v7")
    k.e("s_mul_i32 s44, s45, %d" % (5*18*1024)); k.e(f"s_add_u32 s44, s44, 0x{WOF:x}")
    k.e("s_waitcnt lgkmcnt(0)")
    k.e(f"buffer_store_dwordx4 v[12:15], v7, {WS}, s44 offen sc1")
    k.e("s_branch L_P_next")
    k.label("L_Pp_x0")
    k.e(f"v_and_b32 v6, 31, v{L}"); k.e(f"v_lshrrev_b32 v7, 5, v{L}")
    k.e("s_movk_i32 s38, 1152"); k.e("v_mul_u32_u24 v8, s38, v6"); k.e("v_lshl_add_u32 v8, v7, 4, v8")
    k.e("s_mul_i32 s38, s48, 96"); k.e(f"s_add_u32 s38, s38, s{S_LB}"); k.e("v_add_u32 v8, s38, v8")
    for i in range(3): k.e(f"ds_read_b128 v[{12+4*i}:{15+4*i}], v8 offset:{32*i}")
    k.e("v_lshlrev_b32 v9, 10, v7"); k.e("v_lshl_add_u32 v9, v6, 4, v9")
    k.e("s_lshr_b32 s40, s46, 1"); k.e(f"s_mul_i32 s40, s40, {TILEB}"); k.e("s_and_b32 s41, s46, 1"); k.e("s_lshl_b32 s41, s41, 9"); k.e("s_add_u32 s40, s40, s41")
    k.e("s_mul_i32 s41, s48, 6144"); k.e("s_add_u32 s40, s40, s41"); k.e(f"s_add_u32 s40, s40, 0x{X0P:x}"); k.e("s_add_u32 s41, s40, 4096")
    for i in range(3):
        k.e(f"s_waitcnt lgkmcnt({2-i})")
        k.e(f"buffer_store_dwordx4 v[{12+4*i}:{15+4*i}], v9, {WS}, s{40 if i < 2 else 41} offen offset:{2048*(i%2)} sc1")
    k.label("L_P_next")
    k.e("s_add_u32 s48, s48, 1"); k.e("s_bitcmp1_b32 s48, 0")
    k.e("s_nop 3")
    k.e("s_cbranch_scc1 L_P_vw")
    k.e(f"s_cmp_lt_u32 s{S_JOB}, {J_X0}"); k.e("s_cbranch_scc1 L_P_csq")
    k.e(f"s_cmp_lt_u32 s{S_JOB}, {J_W1}"); k.e("s_cbranch_scc1 L_P_tag")
    k.e(f"s_cmp_ge_u32 s{S_JOB}, {J_W2}"); k.e("s_cbranch_scc1 L_P_tag")
    k.e("s_mul_i32 s42, s46, %d" % (4608*4)); k.e("s_mul_i32 s40, s45, 2304"); k.e("s_add_u32 s42, s42, s40"); k.e(f"s_add_u32 s42, s42, 0x{CSP:x}")
    k.e("s_mul_i32 s40, s49, 384"); k.e("s_add_u32 s42, s42, s40")
    k.e(f"v_add_u32 v6, s39, v{L16}")
    k.e("s_waitcnt lgkmcnt(0)")
    k.e("ds_read_b128 v[28:31], v6")
    k.e("s_mov_b64 exec, 0xffffff")
    k.e("s_waitcnt lgkmcnt(0)")
    k.e(f"buffer_store_dwordx4 v[28:31], v{L16}, {WS}, s42 offen{WST}")
    k.e("s_mov_b64 exec, -1")
    k.e("s_branch L_P_tag")
    k.label("L_P_csq")
    k.e(f"s_mul_i32 s42, s{S_JOB}, 2304"); k.e(f"s_add_u32 s42, s42, 0x{CSQP:x}")
    k.e("s_mul_i32 s40, s49, 384"); k.e("s_add_u32 s42, s42, s40")
    k.e(f"v_add_u32 v6, s39, v{L16}")
    k.e("s_waitcnt lgkmcnt(0)")
    k.e("ds_read_b128 v[28:31], v6")
    k.e("s_mov_b64 exec, 0xffffff")
    k.e("s_waitcnt lgkmcnt(0)")
    k.e(f"buffer_store_dwordx4 v[28:31], v{L16}, {WS}, s42 offen sc1")
    k.e("s_mov_b64 exec, -1")
    k.label("L_P_tag")

def get_tag(k):
    lab = k.newlabel("L_tag")
    k.e("v_mov_b32 v8, 0")
    k.e("s_mov_b32 s38, 0x20000")
    k.label(lab)
    k.e("global_load_dwordx2 v[10:11], v8, s[34:35] sc1")
    k.e("s_waitcnt vmcnt(0)")
    k.e("v_readfirstlane_b32 s62, v10"); k.e("v_readfirstlane_b32 s63, v11")
    k.e("s_sub_u32 s38, s38, 1")
    k.e("s_cmp_eq_u32 s38, 0"); k.e(f"s_cbranch_scc1 {lab}_ok")
    k.e("s_and_b32 s36, s62, s63"); k.e("s_bitcmp1_b32 s36, 0"); k.e(f"s_cbranch_scc1 {lab}_ok")
    k.e("s_sleep 2"); k.e(f"s_branch {lab}")
    k.label(f"{lab}_ok")

def gen_main():
    name = NAME + "_kernel"
    k = K(); header(k, name, 256)
    k.e("s_load_dwordx2 s[22:23], s[0:1], 0")
    k.e("s_load_dwordx4 s[24:27], s[0:1], 8")
    k.e("s_load_dwordx4 s[28:31], s[0:1], 32")
    k.e("s_load_dwordx2 s[32:33], s[0:1], 48")
    k.e("s_load_dwordx4 s[4:7], s[0:1], 56")
    k.e("s_load_dwordx4 s[40:43], s[0:1], 72")
    k.e("s_memrealtime s[44:45]")
    wave_lane(k, V_L, S_W)
    k.e(f"v_lshlrev_b32 v{V_L16}, 4, v{V_L}")
    k.e(f"v_lshrrev_b32 v{V_G}, 4, v{V_L}"); k.e(f"v_and_b32 v{V_M}, 15, v{V_L}")
    k.e(f"s_cmp_lg_u32 s{S_W}, 0"); k.e("s_cbranch_scc1 L_M_nz")
    k.e(f"v_lshlrev_b32 v5, 3, v{V_L}"); k.e(f"v_add_u32 v5, {CNT}, v5"); k.e("v_mov_b32 v6, 0"); k.e("v_mov_b32 v7, 0"); k.e("ds_write_b64 v5, v[6:7]")
    k.label("L_M_nz")
    k.e("s_waitcnt lgkmcnt(0)")
    srd(k, 8, 42, 0, WSZ)
    srd(k, 12, 30, 0, 4608*2)
    srd(k, 16, 6, 0, XB)
    k.e("s_mov_b64 s[20:21], s[4:5]")
    k.e("s_mov_b64 s[34:35], s[40:41]")
    k.e(f"s_or_b32 s36, s2, s{S_W}"); k.e("s_cmp_lg_u32 s36, 0"); k.e("s_cbranch_scc1 L_M_nt")
    k.e("s_lshl_b32 s46, s45, 2"); k.e("s_lshr_b32 s47, s44, 31"); k.e("s_lshl_b32 s47, s47, 1"); k.e("s_or_b32 s46, s46, s47"); k.e("s_or_b32 s46, s46, 1")
    k.e("s_lshl_b32 s47, s44, 1"); k.e("s_or_b32 s47, s47, 1")
    k.e("v_mov_b32 v6, s47"); k.e("v_mov_b32 v7, s46"); k.e("v_mov_b32 v5, 0")
    k.e("s_mov_b64 exec, 1")
    k.e("global_store_dwordx2 v5, v[6:7], s[34:35] sc1")
    k.e("s_mov_b64 exec, -1")
    k.label("L_M_nt")
    if ENV("TLBW", 0):
        k.e(f"s_cmp_lg_u32 s{S_W}, 11"); k.e("s_cbranch_scc1 L_M_tw")
        k.e(f"v_lshlrev_b32 v5, 21, v{V_L}"); k.e("s_lshl_b32 s36, s2, 7"); k.e("v_add_u32 v5, s36, v5"); k.e("v_mov_b32 v6, 0")
        k.e(f"buffer_atomic_or v6, v5, {WS}, 0 offen sc1")
        k.label("L_M_tw")
    if ENV("CPRE", 0):
        k.e(f"s_cmp_lg_u32 s{S_W}, 11"); k.e("s_cbranch_scc1 L_M_cp")
        k.e("s_getpc_b64 s[46:47]")
        k.label("L_M_pc")
        k.e("s_lshr_b32 s36, s2, 3"); k.e("s_lshl_b32 s36, s36, 11")
        k.e(f"v_lshlrev_b32 v5, 5, v{V_L}"); k.e("v_add_u32 v5, s36, v5")
        k.e(f"s_mov_b32 s36, L_{name}_exit - L_M_pc - 4"); k.e("v_min_u32 v5, s36, v5")
        k.e("global_load_dword v0, v5, s[46:47]")
        k.label("L_M_cp")
    k.e("s_barrier")
    phase_P(k)
    get_tag(k)
    k.e(f"s_mov_b32 s{S_CNT}, {CNT}")
    if WREL:
        k.e(f"s_cmp_ge_u32 s{S_JOB}, {J_W1}"); k.e("s_cbranch_scc1 L_P_end")
    k.e(f"s_cmp_lt_u32 s{S_JOB}, {J_X0}"); k.e("s_cbranch_scc1 L_P_pq")
    publish(k, CP_DONE, 6, FLP, None, S_JOB, 8)
    k.e("s_branch L_P_end")
    k.label("L_P_pq")
    publish(k, CP_DONE, 6, FLQ, None, S_JOB, 8, repl=True)
    k.e("s_branch L_P_end")
    k.label("L_P_done")
    get_tag(k)
    k.label("L_P_end")
    if FS == "P": stamp(k, 1)
    def mapping2(Sx, ss, sr_, sidx):
        R = 32 // Sx; ng = 8 // Sx; lg = lambda x: x.bit_length() - 1
        k.e("s_and_b32 s36, s2, 7"); k.e("s_lshr_b32 s37, s2, 3")
        k.e(f"s_and_b32 s{ss}, s36, {ng-1}"); k.e(f"s_lshl_b32 s{ss}, s{ss}, {lg(Sx)}")
        k.e(f"s_and_b32 s38, s37, {Sx-1}"); k.e(f"s_add_u32 s{ss}, s{ss}, s38")
        k.e(f"s_lshr_b32 s{sr_}, s36, {lg(ng)}"); k.e(f"s_lshl_b32 s{sr_}, s{sr_}, {lg(R)}")
        k.e(f"s_lshr_b32 s{sidx}, s37, {lg(Sx)}"); k.e(f"s_add_u32 s{sr_}, s{sr_}, s{sidx}")
    mapping2(ENV('SX_L', 4), S_S, S_R, S_IDX)
    mapping2(SXC, S_SC, S_RC, S_IDX)
    rot18(k, S_IDX, S_ROT, 32 // SXC)
    sdivmod(k, 36, S_ROT2, S_IDX, 6, 32)
    if not ENV("ROT2", 0): k.e(f"s_mov_b32 s{S_ROT2}, 0")
    k.e(f"s_lshr_b32 s{S_CL}, s{S_W}, 2"); k.e(f"s_and_b32 s{S_WL}, s{S_W}, 3"); k.e(f"s_mov_b32 s{S_EARLY}, 0")
    k.e(f"s_mov_b32 s{S_LAY}, 0")
    k.e(f"s_mov_b32 s{S_XIN}, 0x{X0P:x}"); k.e(f"s_mov_b32 s{S_O}, 0x{O1:x}"); k.e(f"s_mov_b32 s{S_X1}, 0x{X1A:x}"); k.e(f"s_mov_b32 s{S_P}, 0x{P1:x}")
    k.e(f"s_mov_b32 s{S_FL}, 0x{FLG:x}"); k.e(f"s_mov_b32 s{S_CNT}, {CNT}")
    if ENV("PB4", 1): k.e("s_barrier")
    k.e(f"s_cmp_lg_u32 s{S_W}, 0"); k.e("s_cbranch_scc1 L_M_bar")
    k.e(f"s_lshl_b32 s36, s{S_R}, 1"); k.e("s_sub_u32 s36, s36, 1")
    k.e(f"v_add_u32 v9, s36, v{V_L}"); k.e("v_max_i32 v9, 0, v9")
    k.e("v_and_b32 v10, 7, v9"); k.e("v_lshrrev_b32 v9, 3, v9"); k.e("v_lshl_add_u32 v9, v10, 3, v9"); k.e(f"v_add_u32 v9, {J_X0}, v9")
    k.e("v_lshlrev_b32 v8, 7, v9")
    k.e(f"s_mov_b32 s37, 0x{FLP:x}")
    poll(k, 8, 37, 7, 10, ENV('PS2', 3))
    k.label("L_M_bar")
    if FS == "P": stamp(k, 2)
    k.e("s_barrier")
    if FS == "P": stamp(k, 3)
    k.label("L_layer")
    phase_A(k)
    npre = phase_B(k)
    phase_C(k, npre)
    phase_D(k)
    k.e(f"s_cmp_lg_u32 s{S_LAY}, 0"); k.e(f"s_cbranch_scc1 L_{name}_end")
    if STAMP and ENV("STAMP_L1", 0):
        k.e(f"s_branch L_{name}_end")
    k.e(f"s_mov_b32 s{S_LAY}, 1")
    k.e(f"s_cmp_lt_u32 s{S_CL}, {ENV('NEARLY', 0)}"); k.e(f"s_cselect_b32 s{S_EARLY}, 1, 0")
    k.e(f"s_mov_b32 s{S_XIN}, 0x{X2:x}"); k.e(f"s_mov_b32 s{S_O}, 0x{O2:x}"); k.e(f"s_mov_b32 s{S_X1}, 0x{X1B:x}"); k.e(f"s_mov_b32 s{S_P}, 0x{P2:x}")
    k.e(f"s_mov_b32 s{S_FL}, 0x{FLG+FLG_LAYER:x}"); k.e(f"s_mov_b32 s{S_CNT}, {CNT+128}")
    if STAMP: stamp(k, 0)
    k.e("s_branch L_layer")
    k.label(f"L_{name}_end")
    if STAMP:
        k.e("s_waitcnt vmcnt(0)")
        k.e(f"s_lshl_b32 s36, s{S_W}, 6"); k.e("v_mov_b32 v0, s36")
    stamp_end(k, KIDX[0]); KIDX[0] += 1
    k.label(f"L_{name}_exit")
    k.e("s_endpgm")
    return name, k.text(), desc(name, 168), (256, 768, LDS_TOTAL)

def main(out):
    n, t, d, (g, b, lds) = gen_main()
    ref = open(f"cdna_kernels/{NAME}.s.ref").read().splitlines()
    hdr = [l for l in ref if l.startswith(";") and "@launch" not in l and "Override" not in l and "grid=ceil" not in l]
    s = "\n".join(hdr) + "\n"
    if ENV("ASLIST", 1): s += f"; @launch kernel={n} grid=({g},1,1) block=({b},1,1) lds={lds}\n"
    else: s += f"; @launch grid=({g},1,1) block=({b},1,1) lds={lds}\n"
    s += '.amdgcn_target "amdgcn-amd-amdhsa--gfx950"\n.text\n' + t + d
    open(out, "w").write(s)

if __name__ == "__main__":
    main(sys.argv[1] if len(sys.argv) > 1 else f"cdna_kernels/{NAME}.s")
```

```python
import sys, struct, math, os
from asmlib import *

NAME = "interleave_layers__sliding_local_dilated__dense_activation_gelu__prompt"
XB = 2048 * 1152
TILEB = 73728
WQF, WOF, WFF = 0x0, 0x200000, 0x300000
CS1, CSQ = 0xE00000, 0xE10000
ST0, ST1A, ST2, ST1B = 0xE40000, 0xE80000, 0xEC0000, 0xF00000
X0P = 0x4C00000
O1, X1A, X2, O2, X1B, P1, P2 = 0x1000000, 0x1400000, 0x1800000, 0x1C00000, 0x2000000, 0x2400000, 0x3800000
WQF_SZ, WOF_SZ, WFF_SZ = 8*14*18*1024, 8*5*18*1024, 8*12*36*3072
ST_SZ = 32*8*64*8
ENV = lambda n, d: int(os.environ.get(n, str(d)))
STAMP = ENV("STAMP", 0)
STAMP_BASE = 0x8000000

def f32(x):
    return "0x%08x" % struct.unpack("<I", struct.pack("<f", x))[0]

def srd(k, d, b, add, size):
    if add:
        k.e(f"s_add_u32 s{d}, s{b}, 0x{add:x}")
        k.e(f"s_addc_u32 s{d+1}, s{b+1}, 0")
    else:
        k.e(f"s_mov_b32 s{d}, s{b}")
        k.e(f"s_mov_b32 s{d+1}, s{b+1}")
    k.e(f"s_mov_b32 s{d+2}, 0x{size:x}")
    k.e(f"s_mov_b32 s{d+3}, 0x20000")

def stamp(k, i):
    if not STAMP: return
    k.e("s_waitcnt lgkmcnt(0)"); k.lg = []
    k.e(f"s_memtime s[84:85]")
    k.e(f"s_memrealtime s[86:87]")
    k.e("s_waitcnt lgkmcnt(0)")
    k.e(f"s_mov_b32 s{64+i}, s84"); k.e(f"s_mov_b32 s{74+i}, s86")
def stamp_begin(k):
    if not STAMP: return
    for i in range(1, 9):
        k.e(f"s_mov_b32 s{64+i}, 0"); k.e(f"s_mov_b32 s{74+i}, 0")
    stamp(k, 0)
def stamp_end(k, kidx):
    if not STAMP: return
    k.e("s_waitcnt vmcnt(0)")
    stamp(k, 8)
    k.e("s_load_dwordx2 s[88:89], s[0:1], 80")
    k.e("s_getreg_b32 s90, hwreg(HW_REG_XCC_ID)")
    k.e("s_waitcnt lgkmcnt(0)")
    k.e("s_mov_b64 exec, 1")
    k.e(f"s_add_u32 s88, s88, 0x{STAMP_BASE:x}"); k.e("s_addc_u32 s89, s89, 0")
    k.e(f"s_add_u32 s91, s2, {kidx*512}"); k.e("s_lshl_b32 s91, s91, 4")
    k.e("v_lshrrev_b32 v1, 6, v0"); k.e("v_add_u32 v1, s91, v1"); k.e("v_lshlrev_b32 v1, 7, v1")
    vals = [64+i for i in range(9)] + [90] + [74+i for i in range(9)] + [90]
    for j, sreg in enumerate(vals):
        k.e(f"v_mov_b32 v{2+j}, s{sreg}")
    for j in range(0, 20, 4):
        k.e(f"global_store_dwordx4 v1, v[{2+j}:{5+j}], s[88:89] offset:{4*j}")

KIDX = [0]
def header(k, name, nwg):
    k.lines.append(f".globl {name}\n.p2align 8\n.type {name},@function\n{name}:")
    k.e(f"s_cmp_ge_u32 s2, {nwg}")
    k.e(f"s_cbranch_scc1 L_{name}_exit")
    stamp_begin(k)
def footer(k, name):
    k.label(f"L_{name}_end")
    stamp_end(k, KIDX[0]); KIDX[0] += 1
    k.label(f"L_{name}_exit")
    k.e("s_endpgm")

def desc(name, vgpr, sgpr=96):
    acc = (vgpr + 3) // 4 * 4
    return f""".section .rodata,"a"
.p2align 6
.amdhsa_kernel {name}
  .amdhsa_next_free_vgpr {vgpr}
  .amdhsa_next_free_sgpr {sgpr}
  .amdhsa_accum_offset {acc}
  .amdhsa_group_segment_fixed_size 0
  .amdhsa_kernarg_size 88
  .amdhsa_user_sgpr_count 2
  .amdhsa_user_sgpr_kernarg_segment_ptr 1
  .amdhsa_system_sgpr_workgroup_id_x 1
  .amdhsa_float_denorm_mode_32 3
.end_amdhsa_kernel
.text
"""

def divmod_const(k, q, rem, x, d, nmax, stmp):
    m, sh = magic(d, nmax)
    k.e(f"s_mov_b32 s{stmp}, {m}")
    k.e(f"v_mul_u32_u24 v{q}, s{stmp}, v{x}")
    k.e(f"v_lshrrev_b32 v{q}, {sh}, v{q}")
    if rem is not None:
        if d <= 64:
            k.e(f"v_mul_u32_u24 v{rem}, {d}, v{q}")
        else:
            k.e(f"v_mul_u32_u24 v{rem}, 0x{d:x}, v{q}")
        k.e(f"v_sub_u32 v{rem}, v{x}, v{rem}")

def sdivmod(k, q, rem, x, d, nmax):
    m, sh = magic(d, nmax)
    k.e(f"s_mul_i32 s{q}, s{x}, {m}"); k.e(f"s_lshr_b32 s{q}, s{q}, {sh}")
    if rem is not None:
        k.e(f"s_mul_i32 s{rem}, s{q}, {d}"); k.e(f"s_sub_u32 s{rem}, s{x}, s{rem}")

MAP = dict(attn=ENV("SX_A", 4), wo=ENV("SX_B", 8), ffn=ENV("SX_C", 2))
def mapping(k, Sx, ss=15, sr_=16, sidx=12):
    R = 32 // Sx; ng = 8 // Sx
    lg = lambda x: x.bit_length() - 1
    k.e("s_and_b32 s10, s2, 7")
    k.e("s_lshr_b32 s11, s2, 3")
    k.e(f"s_and_b32 s{ss}, s10, {ng-1}")
    k.e(f"s_lshl_b32 s{ss}, s{ss}, {lg(Sx)}")
    k.e(f"s_and_b32 s13, s11, {Sx-1}")
    k.e(f"s_add_u32 s{ss}, s{ss}, s13")
    k.e(f"s_lshr_b32 s{sr_}, s10, {lg(ng)}")
    k.e(f"s_lshl_b32 s{sr_}, s{sr_}, {lg(R)}")
    k.e(f"s_lshr_b32 s{sidx}, s11, {lg(Sx)}")
    k.e(f"s_add_u32 s{sr_}, s{sr_}, s{sidx}")

def rot18(k, sidx, srot, R):
    if not ENV("ROT", 0):
        k.e(f"s_mov_b32 s{srot}, 0"); return
    if R <= 16:
        mult = {4: 4, 8: 2, 16: 1}[R]
        k.e(f"s_mul_i32 s{srot}, s{sidx}, {mult}")
    else:
        k.e(f"s_sub_u32 s{srot}, s{sidx}, 18"); k.e(f"s_cmp_ge_u32 s{sidx}, 18"); k.e(f"s_cselect_b32 s{srot}, s{srot}, s{sidx}")

def wave_lane(k, vlane, swave):
    k.e(f"v_lshrrev_b32 v{vlane}, 6, v0")
    k.e("s_nop 0")
    k.e(f"v_readfirstlane_b32 s{swave}, v{vlane}")
    k.e(f"v_and_b32 v{vlane}, 63, v0")

def touch(k, srd_, L, n_instr, swave_idx, nwaves, per_slab, slab_stride, sbase, nslab, t, dummy, gran=64):
    t0, t1, t2 = t[:3]
    nmax = 32 * nwaves * n_instr * 64
    k.e(f"s_lshr_b32 s58, s2, 3"); k.e(f"s_mul_i32 s58, s58, {nwaves}"); k.e(f"s_add_u32 s58, s58, s{swave_idx}"); k.e(f"s_mul_i32 s58, s58, {n_instr*64}")
    for j in range(n_instr):
        k.e(f"v_add_u32 v{t0}, s58, v{L}")
        if j: k.e(f"v_add_u32 v{t0}, {64*j}, v{t0}")
        m, sh = magic2(per_slab, nmax)
        k.e(f"s_mov_b32 s59, {m}"); k.e(f"v_mul_hi_u32 v{t1}, v{t0}, s59")
        if sh: k.e(f"v_lshrrev_b32 v{t1}, {sh}, v{t1}")
        k.e(f"s_mov_b32 s59, {per_slab}"); k.e(f"v_mul_u32_u24 v{t2}, s59, v{t1}"); k.e(f"v_sub_u32 v{t0}, v{t0}, v{t2}")
        k.e(f"s_mov_b32 s59, {slab_stride}"); k.e(f"v_mul_u32_u24 v{t2}, s59, v{t1}")
        k.e(f"v_lshl_add_u32 v{t0}, v{t0}, {gran.bit_length()-1}, v{t2}")
        k.e(f"v_cmp_gt_u32 vcc, {nslab}, v{t1}")
        k.e(f"v_mov_b32 v{t2}, 0x7ff00000")
        k.e("s_nop 0")
        k.e(f"v_cndmask_b32 v{t0}, v{t2}, v{t0}, vcc")
        k.vmem(f"buffer_load_dword v{dummy}, v{t0}, s[{srd_}:{srd_+3}], s{sbase} offen", "touch")

def magic2(d, nmax):
    for sh in range(0, 12):
        m = (1 << (32 + sh)) // d + 1
        if m >= (1 << 32): continue
        if all((x * m) >> (32 + sh) == x // d for x in range(0, nmax, 1)):
            return m, sh
    raise ValueError

def dma(k, m0expr, voff, srd_, soff, tag=None):
    for l in m0expr: k.e(l)
    k.e("s_nop 0")
    k.vmem(f"buffer_load_dwordx4 v{voff}, s[{srd_}:{srd_+3}], {soff} offen{os.environ.get('PLD', ' nt')} lds", tag)

CSQP = 0xEA0000
CSP = 0xE40000
FSH, GSH = 7, 10
FLG = 0xF00000
FLG_LAYER = 256 << GSH
F_A, F_B, F_C, F_D = 0, 32 << GSH, 64 << GSH, 160 << GSH
FLP = FLG + 2*FLG_LAYER
J_WQ, J_X0, J_WO, J_W1, J_W2, J_END = 0, 56, 120, 184, 328, 472

def gemm_loop(k, nks, order, acc, bbuf, aslot, bread, ks0, nm, after=None, pre=None, BD=1, atag=None, gate=None):
    atag = atag or (lambda ks: ("a", ks0 + ks))
    nb = BD + 1
    for d in range(min(BD, nks)):
        if gate: gate(d)
        for mi in range(nm): bread(d, mi, bbuf(d % nb, mi))
    if pre: pre()
    for ks in range(nks):
        late = gate is not None and ks + BD < nks and gate(ks + BD, True)
        if ks + BD < nks and not late:
            for mi in range(nm): bread(ks + BD, mi, bbuf((ks + BD) % nb, mi))
        k.wait(vm=[atag(ks)], lg=[("b", ks)])
        for (mi, t) in order:
            c = "0" if ks == 0 else vr(acc(mi, t), 4)
            k.e(f"v_mfma_f32_16x16x32_bf16 {vr(acc(mi,t),4)}, {vr(aslot(ks0+ks,t),4)}, {vr(bbuf(ks % nb,mi),4)}, {c}")
        if after: after(ks)
        if late:
            gate(ks + BD)
            for mi in range(nm): bread(ks + BD, mi, bbuf((ks + BD) % nb, mi))


def gemm_loop_sp(k, nks, order, acc, bbuf, aslot, bread, ks0, nm, after=None, gate=None):
    if gate: gate(0)
    for mi in range(nm): bread(0, mi, bbuf(0, mi))
    pend = []
    for ks in range(nks):
        late = gate is not None and ks + 1 < nks and gate(ks + 1, True)
        k.wait(vm=[("a", ks0 + ks)], lg=[("b", ks)])
        fill = []
        if ks + 1 < nks and not late:
            fill += [("b", mi) for mi in range(nm)]
        fill2 = [("c", c) for c in pend]; pend = []
        seq = []
        while fill or fill2:
            if fill: seq.append(fill.pop(0))
            if fill2: seq.append(fill2.pop(0))
        n = len(order)
        pos = {}
        for j, it in enumerate(seq):
            pos.setdefault(min(n-1, (j * (n-1)) // max(1, len(seq))), []).append(it)
        for j, (mi, t) in enumerate(order):
            c = "0" if ks == 0 else vr(acc(mi, t), 4)
            k.e(f"v_mfma_f32_16x16x32_bf16 {vr(acc(mi,t),4)}, {vr(aslot(ks0+ks,t),4)}, {vr(bbuf(ks % 2,mi),4)}, {c}")
            for kind, x in pos.get(j, []):
                if kind == "b": bread(ks + 1, x, bbuf((ks + 1) % 2, x))
                else:
                    k.lines += x[0]; k.vm += x[1]
        if after:
            l0 = len(k.lines); v0 = len(k.vm)
            after(ks)
            lines = k.lines[l0:]; tags = k.vm[v0:]
            del k.lines[l0:]; del k.vm[v0:]
            cur = []; ti = 0
            for l in lines:
                cur.append(l)
                if "buffer_load" in l:
                    pend.append([cur, [tags[ti]]]); ti += 1; cur = []
            if cur:
                if pend: pend[-1][0] += cur
                else: k.lines += cur
            if late or ks == nks - 1:
                for x in pend:
                    k.lines += x[0]; k.vm += x[1]
                pend = []
        if late:
            gate(ks + 1)
            for mi in range(nm): bread(ks + 1, mi, bbuf((ks + 1) % 2, mi))

FS = os.environ.get("FS", "")
CPA = ENV("CPA", 0)
GX = ENV("GX", 1)
GXC = ENV("GXC", 1)
SLC = ENV("SLC", 0)
assert ENV("ROT", 0) == 0
A_HL = 73728
A_QK = 92160
QP, QPL = 48, 3968
TSTR = 4 * QPL
A_VP = A_QK + 2*TSTR
VPP, VPL = 80, 6784
A_ST = A_VP + 4*VPL
A_PM, A_PH = A_QK, A_QK + 6144
B_XB = 73728
C_HB = 73728
C_CS = 155648
C_B1 = C_CS + 3072
A_CQ = C_B1 + 2048
C_ST = 147456
A_PQ = A_QK + 12288
C_PM = 98304
A_SCR = A_ST + 640
CNT = 163328
LDS_TOTAL = 163840
CA_ST, CA_DONE, CB_DONE, CC_ST, CC_W1, CC_H0, CC_DONE, CD_DONE, CC_K2, CD_GO, CA_GO, CA_W, CA_X, CC_X = 0, 1, 2, 3, 4, 5, 8, 11, 14, 16, 20, 15, 24, 28
S_CL, S_WL, S_EARLY = 60, 61, 57
WSZ = 0x5000000
SXC = MAP["ffn"]

S_W, S_LAY, S_XIN, S_O, S_X1, S_P, S_FL, S_R, S_S, S_RC, S_SC, S_IDX, S_CNT, S_ROT, S_ROT2 = 3, 22, 23, 24, 25, 26, 28, 29, 30, 31, 32, 33, 27, 34, 35
WS = "s[8:11]"
WSC = os.environ.get("WSC", " sc1")
WREL = ENV("WREL", 0)
WST = "" if WREL else " sc1"
FLQ = FLP + 65536
S_SLOT, S_JOB, S_LB = 56, 51, 50
CP_WQ = 27
CP_X = 31
EQ = ENV('EQ', 0)
CP_LD, CP_DONE = 64, 66
V_L, V_L16, V_G, V_M = 1, 2, 3, 4
AR, EX = 88, 160

def lds_signal(k, slot, vt, byclass=False):
    k.e(f"s_add_u32 s36, s{S_CNT}, {4*slot}")
    if byclass:
        k.e(f"s_lshl_b32 s37, s{S_CL}, 2"); k.e("s_add_u32 s36, s36, s37")
    k.e(f"v_mov_b32 v{vt}, s36"); k.e(f"v_mov_b32 v{vt+1}, 1")
    k.e("s_mov_b64 exec, 1")
    k.lds(f"ds_add_u32 v{vt}, v{vt+1}", "cnt")
    k.e("s_mov_b64 exec, -1")

def lds_wait(k, slot, n, vt, sleep=2, byclass=False):
    lab = k.newlabel("L_lw")
    k.e(f"s_add_u32 s36, s{S_CNT}, {4*slot}")
    if byclass:
        k.e(f"s_lshl_b32 s37, s{S_CL}, 2"); k.e("s_add_u32 s36, s36, s37")
    k.e(f"v_mov_b32 v{vt}, s36")
    k.label(lab)
    k.e(f"ds_read_b32 v{vt+1}, v{vt}")
    k.e("s_waitcnt lgkmcnt(0)"); k.lg = []
    k.e(f"v_readfirstlane_b32 s36, v{vt+1}")
    k.e("s_nop 3")
    k.e(f"s_cmp_ge_u32 s36, {n}"); k.e(f"s_cbranch_scc1 {lab}_ok")
    if ENV("LS", -1) >= 0: sleep = min(sleep, ENV("LS", -1))
    if ENV("LSM", 0): sleep = sleep * ENV("LSM", 0)
    k.e(f"s_sleep {sleep}")
    k.e(f"s_branch {lab}")
    k.label(f"{lab}_ok")

def SC(name):
    return "" if name in os.environ.get("NOSC", "").split(",") else " sc1"
def publish(k, slot, n, fbase, s_r, s_s, vt, byclass=False, sc=" sc1", repl=False):
    lab = k.newlabel("L_pub")
    k.e(f"s_add_u32 s36, s{S_CNT}, {4*slot}")
    if s_r is not None:
        k.e(f"s_lshl_b32 s37, s{s_r}, {GSH}"); k.e(f"s_lshl_b32 s38, s{s_s}, {FSH}"); k.e("s_add_u32 s37, s37, s38")
        k.e(f"s_add_u32 s37, s37, s{S_FL}"); k.e(f"s_add_u32 s37, s37, {fbase}")
    else:
        k.e(f"s_lshl_b32 s37, s{s_s}, {FSH}"); k.e(f"s_add_u32 s37, s37, 0x{fbase:x}")
        k.e(f"s_lshl_b32 s38, s{S_SLOT}, 2"); k.e("s_add_u32 s36, s36, s38")
    if byclass:
        k.e(f"s_lshl_b32 s38, s{S_CL}, 2"); k.e("s_add_u32 s36, s36, s38")
        k.e(f"s_lshl_b32 s38, s{S_CL}, {GSH+5}"); k.e("s_add_u32 s37, s37, s38")
    k.e("s_waitcnt vmcnt(0)"); k.vm = []
    k.e(f"v_mov_b32 v{vt}, s36"); k.e(f"v_mov_b32 v{vt+1}, 1")
    k.e("s_mov_b64 exec, 1")
    k.e(f"ds_add_rtn_u32 v{vt}, v{vt}, v{vt+1}")
    k.e("s_waitcnt lgkmcnt(0)"); k.lg = []
    k.e(f"v_readfirstlane_b32 s36, v{vt}")
    if repl: k.e("s_mov_b64 exec, 0xff")
    k.e(f"v_mov_b32 v{vt}, s62"); k.e(f"v_mov_b32 v{vt+1}, s63"); k.e(f"v_lshlrev_b32 v{vt+2}, 13, v{V_L}")
    k.e("s_nop 0")
    k.e(f"s_cmp_lg_u32 s36, {n-1}"); k.e(f"s_cbranch_scc1 {lab}")
    k.e(f"buffer_store_dwordx2 {vr(vt,2)}, v{vt+2}, {WS}, s37 offen{sc}")
    k.label(lab)
    k.e("s_mov_b64 exec, -1")

def poll(k, voff, soff, mask, vt, slp=None):
    assert vt % 2 == 0
    lab = k.newlabel("L_aw")
    k.e(f"s_mov_b32 exec_lo, 0x{mask & 0xffffffff:x}"); k.e(f"s_mov_b32 exec_hi, 0x{mask >> 32:x}")
    k.e("s_mov_b32 s38, 0x20000")
    k.label(lab)
    k.e(f"v_mov_b32 v{vt}, 0"); k.e(f"v_mov_b32 v{vt+1}, 0")
    k.e(f"buffer_atomic_or_x2 {vr(vt,2)}, v{voff}, {WS}, s{soff} offen sc0 sc1")
    k.e("s_waitcnt vmcnt(0)"); k.vm = []
    k.e(f"v_cmp_ne_u64 vcc, s[62:63], {vr(vt,2)}")
    k.e("s_sub_u32 s38, s38, 1")
    k.e("s_nop 3")
    k.e(f"s_cbranch_vccz {lab}_ok")
    k.e("s_cmp_eq_u32 s38, 0"); k.e(f"s_cbranch_scc1 {lab}_ok")
    k.e(f"s_sleep {ENV('PSLEEP', 3) if slp is None else slp}")
    k.e(f"s_branch {lab}")
    k.label(f"{lab}_ok")
    k.e("s_mov_b64 exec, -1")

def await_flags(k, fbase, s_r, vt, own=None):
    lab = k.newlabel("L_af")
    k.e(f"s_cmp_lg_u32 s{S_W}, {ENV('POLLW', 0)}"); k.e(f"s_cbranch_scc1 {lab}")
    lds_wait(k, own[0], own[1], vt, 1)
    k.e(f"s_lshl_b32 s37, s{s_r}, {GSH}"); k.e(f"s_add_u32 s37, s37, s{S_FL}"); k.e(f"s_add_u32 s37, s37, {fbase}")
    k.e(f"v_lshlrev_b32 v{vt}, {FSH}, v{V_L}")
    sv = k.snapshot()
    poll(k, vt, 37, 0xff, vt+2)
    k.restore(sv)
    k.label(lab)
    k.e("s_barrier")

def stats_acc(k, r4, va, first, sones):
    for j in range(4):
        c0 = "0" if (first and j == 0) else f"v{va}"
        c1 = "0" if (first and j == 0) else f"v{va+1}"
        k.e(f"v_dot2_f32_bf16 v{va}, v{r4+j}, s{sones}, {c0}")
        k.e(f"v_dot2_f32_bf16 v{va+1}, v{r4+j}, v{r4+j}, {c1}")

def stats_combine(k, src, R, vt, dst, halo, NP=12):
    k.e(f"v_lshlrev_b32 v{vt}, 3, v{V_L}"); k.e(f"v_add_u32 v{vt+1}, {src}, v{vt}")
    for p in range(NP): k.e(f"ds_read_b64 {vr(R+2*p,2)}, v{vt+1} offset:{512*p}")
    k.e("s_waitcnt lgkmcnt(0)")
    n = NP
    while n > 1:
        h = n // 2
        for j in range(h):
            k.e(f"v_add_f32 v{R+2*j}, v{R+2*j}, v{R+2*(n-1-j)}"); k.e(f"v_add_f32 v{R+2*j+1}, v{R+2*j+1}, v{R+2*(n-1-j)+1}")
        n -= h
    if halo:
        for op in ("v_permlane32_swap_b32", "v_permlane16_swap_b32"):
            k.e(f"v_mov_b32 v{R+2}, v{R}"); k.e(f"v_mov_b32 v{R+3}, v{R+1}")
            k.e("s_nop 1")
            k.e(f"{op} v{R}, v{R+2}"); k.e(f"{op} v{R+1}, v{R+3}")
            k.e("s_nop 1")
            k.e(f"v_add_f32 v{R}, v{R}, v{R+2}"); k.e(f"v_add_f32 v{R+1}, v{R+1}, v{R+3}")
        k.e(f"v_lshlrev_b32 v{vt}, 3, v{V_M}")
    k.e(f"v_mul_f32 v{R}, {f32(1/576)}, v{R}")
    k.e(f"v_mul_f32 v{R+1}, {f32(1/576)}, v{R+1}")
    k.e(f"v_fma_f32 v{R+1}, -v{R}, v{R}, v{R+1}")
    k.e(f"v_max_f32 v{R+1}, 0, v{R+1}")
    k.e(f"v_add_f32 v{R+1}, {f32(1e-5)}, v{R+1}")
    k.e(f"v_rsq_f32 v{R+2}, v{R+1}")
    k.e(f"v_add_u32 v{vt}, {dst}, v{vt}")
    k.e(f"v_mul_f32 v{R+3}, v{R}, v{R+2}")
    k.e(f"v_sub_f32 v{R+3}, 0, v{R+3}")
    k.e(f"ds_write_b64 v{vt}, {vr(R+2,2)}")
    k.e("s_waitcnt lgkmcnt(0)")

A_TILES = [9, 11, 4, 6, 0, 2, 13, 8, 0, 0, 0, 0]
def a_tile_setup(k):
    tab = sum(t << (4*i) for i, t in enumerate(A_TILES))
    k.e(f"s_mov_b32 s40, 0x{tab & 0xffffffff:x}"); k.e(f"s_mov_b32 s41, 0x{tab >> 32:x}")
    k.e(f"s_lshl_b32 s42, s{S_W}, 2"); k.e("s_lshr_b64 s[40:41], s[40:41], s42"); k.e("s_and_b32 s40, s40, 15")
    k.e(f"s_mul_i32 s41, s{S_S}, 14"); k.e("s_add_u32 s41, s41, s40")
    k.e(f"s_mul_i32 s42, s{S_W}, {2*6912}"); k.e(f"s_mul_i32 s43, s{S_S}, 288"); k.e("s_add_u32 s42, s42, s43"); k.e(f"s_add_u32 s42, s42, 0x{CSQP:x}")
    k.e("s_mul_i32 s41, s41, %d" % (18*1024))
    if WQF: k.e(f"s_add_u32 s41, s41, 0x{WQF:x}")
DA = ENV("DA", 6)
def a_load1(k, i):
    k.e(f"s_add_u32 s43, s41, {i*1024}")
    k.vmem(f"buffer_load_dwordx4 {vr(AR+4*i,4)}, v0, {WS}, s43 offen{WSC}", ("a", i))
def a_load2(k, i):
    k.e(f"s_add_u32 s43, s41, {i*1024}"); k.e(f"s_add_u32 s44, s41, {(18+i)*1024}")
    k.vmem(f"buffer_load_dwordx4 {vr(AR+8*(i%9),4)}, v{V_L16}, {WS}, s43 offen{WSC}", ("a0", i))
    k.vmem(f"buffer_load_dwordx4 {vr(AR+8*(i%9)+4,4)}, v{V_L16}, {WS}, s44 offen{WSC}", ("a", i))
def a_prefetch(k, lo1, hi1, lo2, hi2, cs):
    lab = k.newlabel("L_apf")
    sv = k.snapshot()
    if cs:
        k.e(f"s_cmp_lt_u32 s{S_W}, 9"); k.e("s_cselect_b32 s43, 0, 0x70000000"); k.e(f"s_cmp_eq_u32 s{S_LAY}, 0"); k.e("s_cselect_b32 s43, s43, 0x70000000")
        divmod_const(k, 6, None, V_L, 18, 64, 44)
        k.e(f"v_mul_u32_u24 v6, 0x{2304-288:x}, v6"); k.e(f"v_add_u32 v6, v6, v{V_L16}")
        k.e(f"v_or_b32 v6, s43, v6")
        k.e(f"s_add_u32 s43, s42, 6912")
        k.e(f"buffer_load_dwordx4 {vr(EX,4)}, v6, {WS}, s42 offen{WSC}")
        k.e(f"buffer_load_dwordx4 {vr(EX+4,4)}, v6, {WS}, s43 offen{WSC}")
    k.e(f"s_cmp_lt_u32 s{S_W}, 6"); k.e(f"s_cbranch_scc1 {lab}_d")
    k.e(f"s_cmp_ge_u32 s{S_W}, 8"); k.e(f"s_cbranch_scc1 {lab}_f")
    for i in range(lo1, hi1): a_load1(k, i)
    k.e(f"s_branch {lab}_e")
    k.label(f"{lab}_f")
    for i in range(lo1, min(hi1, 9)): b_load(k, i)
    k.e(f"s_branch {lab}_e")
    k.label(f"{lab}_d")
    for i in range(lo2, hi2): a_load2(k, i)
    k.label(f"{lab}_e")
    k.restore(sv)

def b_setup(k):
    k.e(f"s_min_u32 s59, s{S_W}, 9")
    k.e(f"s_cmp_ge_u32 s59, 5"); k.e("s_cselect_b32 s45, 1, 0"); k.e("s_mul_i32 s46, s45, 5"); k.e(f"s_sub_u32 s46, s59, s46")
    k.e(f"s_mul_i32 s58, s{S_S}, 5"); k.e("s_add_u32 s58, s58, s46"); k.e("s_mul_i32 s58, s58, %d" % (18*1024))
    k.e("s_mul_i32 s59, s45, 9216"); k.e("s_add_u32 s58, s58, s59"); k.e(f"s_add_u32 s58, s58, 0x{WOF:x}")
def b_load(k, i):
    if i and i % 4 == 0: k.e(f"s_add_u32 s58, s58, 4096")
    k.vmem(f"buffer_load_dwordx4 {vr(124+4*i,4)}, v{V_L16}, {WS}, s58 offen offset:{(i%4)*1024}{WSC}", ("wb", i))

def c_stream_init(k):
    k.e(f"s_mul_i32 s47, s{S_SC}, 12"); k.e(f"s_add_u32 s47, s47, s{S_W}"); k.e("s_mul_i32 s47, s47, %d" % (36*3072)); k.e(f"s_add_u32 s47, s47, 0x{WFF:x}")
    k.e(f"s_mul_i32 s48, s{S_ROT}, 3072"); k.e("s_add_u32 s48, s48, s47")
    k.e("s_add_u32 s49, s47, %d" % (18*3072))
def c_aload(k, i, tg="a"):
    if i >= 18 and (i - 18) % 6 == 0:
        k.e("s_mov_b32 s47, s49"); k.e(f"s_mul_i32 s48, s{S_ROT2}, 3072"); k.e("s_add_u32 s48, s48, s47"); k.e("s_add_u32 s49, s47, %d" % (6*3072))
    slot = i % 6
    for t in range(3):
        k.vmem(f"buffer_load_dwordx4 {vr(AR+12*slot+4*t,4)}, v{V_L16}, {WS}, s48 offen offset:{1024*t}{WSC}", (tg, i) if t == 2 else (tg + "_", i))
    k.e("s_add_u32 s48, s48, 3072"); k.e("s_cmp_eq_u32 s48, s49"); k.e("s_cselect_b32 s48, s47, s48")

def touch_w(k, swidx, nwaves, t, dummy):
    G = ENV("TGRAN", 128)
    total = SXC * 12 * 36 * 3072 // G
    ni = -(-total // (32 * nwaves * 64))
    ng = 8 // SXC
    k.e(f"s_and_b32 s36, s2, {ng-1}"); k.e(f"s_mul_i32 s36, s36, {SXC*12*36*3072}"); k.e(f"s_add_u32 s36, s36, 0x{WFF:x}")
    k.e("s_lshr_b32 s37, s2, 3"); k.e(f"s_mul_i32 s37, s37, {nwaves}"); k.e(f"s_add_u32 s37, s37, s{swidx}"); k.e(f"s_mul_i32 s37, s37, {ni*64}")
    k.e(f"s_mov_b32 s38, {total}")
    for j in range(ni):
        k.e(f"v_add_u32 v{t}, s37, v{V_L}")
        if j: k.e(f"v_add_u32 v{t}, {64*j}, v{t}")
        k.e(f"v_min_u32 v{t}, s38, v{t}")
        k.e(f"v_lshlrev_b32 v{t}, {G.bit_length()-1}, v{t}")
        k.vmem(f"buffer_load_dword v{dummy}, v{t}, {WS}, s36 offen", "touch")

def phase_A(k):
    k.c("================ phase A")
    ACC, BB = 8, 28
    VB1, VB2, VH = 5, 6, 7
    if FS in ("", "A"): stamp(k, 1)
    k.e(f"s_mul_i32 s39, s{S_R}, {TILEB}"); k.e(f"s_add_u32 s39, s39, s{S_XIN}")
    k.e(f"s_mul_i32 s36, s{S_W}, 6144"); k.e("s_add_u32 s37, s39, s36"); k.e("s_add_u32 s38, s37, 4096")
    k.vm = []
    for i in range(6):
        k.vmem(f"buffer_load_dwordx4 {vr(8+4*i,4)}, v{V_L16}, {WS}, s{37 if i < 4 else 38} offen offset:{(i%4)*1024} sc1", ("x", i))
    k.e(f"v_lshlrev_b32 v{VB1}, 10, v{V_G}"); k.e(f"v_lshl_add_u32 v{VB1}, v{V_M}, 4, v{VB1}")
    k.e(f"s_cmp_eq_u32 s{S_R}, 0"); k.e("s_cselect_b32 s38, 0x70000000, 0")
    k.e(f"v_add_u32 v{VH}, s38, v{VB1}")
    k.e(f"s_mul_i32 s50, s{S_CL}, 6"); k.e(f"s_add_u32 s50, s50, s{S_WL}")
    k.e("s_lshl_b32 s37, s50, 12"); k.e("s_add_u32 s37, s37, s39"); k.e(f"s_sub_u32 s37, s37, {TILEB-768}")
    k.vmem(f"buffer_load_dwordx4 {vr(32,4)}, v{VH}, {WS}, s37 offen sc1", ("x", 6))
    k.e(f"s_cmp_ge_u32 s{S_WL}, 2"); k.e("s_cselect_b32 s38, 0x70000000, 0"); k.e(f"v_or_b32 v{VB2}, s38, v{VH}")
    k.e(f"s_add_u32 s37, s37, {4*4096}")
    k.vmem(f"buffer_load_dwordx4 {vr(36,4)}, v{VB2}, {WS}, s37 offen sc1", ("x", 7))
    a_tile_setup(k)
    PA = 0
    E1, E2 = 18, 9
    b_setup(k)
    c_stream_init(k)
    if not EQ:
        k.e(f"s_cmp_lg_u32 s{S_LAY}, 0"); k.e("s_cbranch_scc1 L_A_np")
        k.e(f"s_cmp_lg_u32 s{S_W}, 9"); k.e("s_cbranch_scc1 L_A_np")
        k.e("s_and_b32 s37, s2, 7"); k.e("s_lshl_b32 s37, s37, 6"); k.e(f"s_add_u32 s37, s37, {(FLQ-FLP)//128}"); k.e(f"v_add_u32 v44, s37, v{V_L}")
        k.e(f"s_add_u32 s37, s{S_S}, {J_WO - 8*54}"); k.e(f"v_lshlrev_b32 v45, 3, v{V_L}"); k.e("v_add_u32 v45, s37, v45")
        k.e(f"v_cmp_gt_u32 vcc, 54, v{V_L}")
        k.e("s_nop 1")
        k.e("v_cndmask_b32 v44, v45, v44, vcc"); k.e("v_lshlrev_b32 v44, 7, v44")
        k.e(f"s_mov_b32 s37, 0x{FLP:x}")
        sv = k.snapshot()
        poll(k, 44, 37, (1 << 62) - 1, 46, ENV('PS2', 3))
        k.restore(sv)
        k.e("s_mov_b32 s57, s36")
        lds_signal(k, CP_WQ - 0, 44)
        k.e("s_mov_b32 s36, s57")
        k.lg = []
    k.label("L_A_np")
    if ENV("GA", 0):
        k.e(f"s_cmp_eq_u32 s{S_LAY}, 0"); k.e("s_cbranch_scc1 L_A_k2ok")
        k.e("s_mov_b32 s57, s36")
        lds_wait(k, CC_K2 - 32, 12, 44, 4)
        k.e("s_mov_b32 s36, s57")
        k.label("L_A_k2ok")
    SL = ENV("SL", 0)
    k.e("s_mov_b32 s38, 0x3f803f80")
    k.e(f"v_add_u32 v{VB2}, s36, v{V_L16}")
    for i in range(8):
        k.e(f"s_waitcnt vmcnt({7-i})")
        if i < 6:
            k.e(f"ds_write_b128 v{VB2}, {vr(8+4*i,4)} offset:{1024*i}")
            if not SL: stats_acc(k, 8+4*i, 40, i == 0, 38)
        else:
            if i == 6:
                k.e("s_lshl_b32 s37, s50, 10"); k.e(f"s_add_u32 s37, s37, {A_HL}"); k.e(f"v_add_u32 v{VB2}, s37, v{V_L16}")
                k.e(f"ds_write_b128 v{VB2}, {vr(8+4*i,4)}")
            if not SL: stats_acc(k, 8+4*i, 42, i == 6, 38)
    def late(fn): fn()
    k.e(f"s_cmp_ge_u32 s{S_WL}, 2"); k.e("s_cbranch_scc1 L_A_xs")
    k.e(f"ds_write_b128 v{VB2}, {vr(36,4)} offset:4096")
    k.label("L_A_xs")
    if SL:
        k.e("s_waitcnt lgkmcnt(0)")
        lds_signal(k, CA_X, 44, byclass=True)
        for i in range(8): stats_acc(k, 8+4*i, 40 if i < 6 else 42, i in (0, 6), 38)
    k.e(f"s_lshl_b32 s37, s{S_W}, 9"); k.e(f"v_lshlrev_b32 v{VB2}, 3, v{V_L}"); k.e(f"v_add_u32 v{VB2}, s37, v{VB2}"); k.e(f"v_add_u32 v{VB2}, {A_PM}, v{VB2}")
    k.e(f"ds_write_b64 v{VB2}, v[40:41]"); k.e(f"ds_write_b64 v{VB2}, v[42:43] offset:6144")
    k.e("s_waitcnt lgkmcnt(0)")
    if FS in ("", "A"): stamp(k, 2)
    if SL: lds_signal(k, CA_W, 44)
    else: lds_signal(k, CA_X, 44, byclass=True)
    k.e("s_waitcnt lgkmcnt(0)")
    k.lg = []
    k.e(f"s_cmp_lg_u32 s{S_LAY}, 0"); k.e("s_cbranch_scc1 L_A_wqok")
    lds_wait(k, CP_WQ, 1, 44)
    k.label("L_A_wqok")
    def gateA(ks, query=False):
        if not GX or ks % 6: return False
        if query: return True
        lds_wait(k, CA_X + ks//6, 4, EX)
    if FS == "G": stamp(k, 2)
    k.e(f"s_cmp_ge_u32 s{S_W}, 8"); k.e("s_cbranch_scc1 L_A_free")
    if ENV("DP", 0): k.e("s_setprio 0")
    k.e(f"v_add_u32 v{VB2}, 49152, v{VB1}")
    k.e(f"v_add_u32 v{VH}, {A_HL}, v{V_L16}")
    def mk_bread(mts):
        def bread(ks, mi, reg):
            mt = mts[mi]
            if mt == 0:
                k.lds(f"ds_read_b128 {vr(reg,4)}, v{VH} offset:{ks*1024}", ("b", ks))
            else:
                off = ks*4096 + (mt-1)*256; base = VB1
                if off >= 49152: off -= 49152; base = VB2
                k.lds(f"ds_read_b128 {vr(reg,4)}, v{base} offset:{off}", ("b", ks))
        return bread
    def epi_stats(mts, T):
        sa = T + 5; ST = T + 6
        if FS == "G": stamp(k, 4)
        lds_wait(k, CA_ST, 3, T)
        k.e(f"v_lshlrev_b32 v{sa}, 3, v{V_M}"); k.e(f"v_add_u32 v{sa}, {A_ST}, v{sa}")
        for mi, mt in enumerate(mts):
            k.lds(f"ds_read_b64 {vr(ST+2*mi,2)}, v{sa} offset:{mt*128}", "str")
    def epilogue(tadd, mts, accf, csr, vpath, T):
        a0, a1, p, H, t, sa = T, T+1, T+2, T+3, T+4, T+5
        ST = T + 6; U = T + 16
        k.e(f"v_lshlrev_b32 v{p}, 2, v{V_G}")
        k.e(f"s_add_u32 s36, s40, {tadd}"); k.e("s_lshl_b32 s36, s36, 4")
        k.e(f"v_add_u32 v{p}, s36, v{p}")
        k.e(f"s_mov_b32 s36, {A_CQ}"); k.e(f"v_lshl_add_u32 v{sa}, v{p}, 2, s36")
        k.lds(f"ds_read_b128 {vr(csr,4)}, v{sa}", "str")
        for a in (a0, a1):
            divmod_const(k, H, None, p, 18, 232, 36)
            if not vpath:
                k.e(f"s_movk_i32 s36, {QPL-36}")
                k.e(f"v_mul_u32_u24 v{a}, s36, v{H}")
                k.e(f"v_lshl_add_u32 v{a}, v{p}, 1, v{a}")
                k.e(f"v_mul_u32_u24 v{t}, {QP}, v{V_M}")
                k.e(f"s_mov_b32 s36, {A_QK}")
            else:
                k.e(f"s_movk_i32 s36, {VPL-72}")
                k.e(f"v_mul_u32_u24 v{a}, s36, v{H}")
                k.e(f"v_lshl_add_u32 v{a}, v{p}, 2, v{a}")
                k.e(f"v_mul_u32_u24 v{t}, 0x{VPP:x}, v{V_M}")
                k.e(f"s_mov_b32 s36, {A_VP - 8*VPL}")
            k.e(f"v_add3_u32 v{a}, v{a}, v{t}, s36")
            if a == a0: k.e(f"v_add_u32 v{p}, 2, v{p}")
        if vpath:
            k.e("s_mov_b32 s36, 0x05040100"); k.e("s_mov_b32 s37, 0x07060302")
        k.wait(lg=["str"])
        for mi, mt in enumerate(mts):
            r = accf(mi)
            for j in range(4):
                k.e(f"v_mul_f32 v{r+j}, v{r+j}, v{ST+2*mi}")
                k.e(f"v_fmac_f32 v{r+j}, v{ST+2*mi+1}, v{csr+j}")
            k.e(f"v_cvt_pk_bf16_f32 v{r}, v{r}, v{r+1}")
            k.e(f"v_cvt_pk_bf16_f32 v{r+1}, v{r+2}, v{r+3}")
            if not vpath:
                k.lds(f"ds_write_b32 v{a0}, v{r} offset:{mt*16*QP}", "qw")
                k.lds(f"ds_write_b32 v{a1}, v{r+1} offset:{mt*16*QP}", "qw")
        if vpath:
            for mi, mt in enumerate(mts):
                r = accf(mi); u = U + 4*(mi & 1)
                if mi:
                    rp = accf(mi-1)
                    k.e(f"v_mov_b32_dpp v{r+2}, v{rp} row_shl:14 row_mask:0xf bank_mask:0xf")
                    k.e(f"v_mov_b32_dpp v{r+3}, v{rp+1} row_shl:14 row_mask:0xf bank_mask:0xf")
                k.e(f"v_mov_b32_dpp v{r+2}, v{r} row_shr:2 row_mask:0xf bank_mask:0xf")
                k.e(f"v_mov_b32_dpp v{r+3}, v{r+1} row_shr:2 row_mask:0xf bank_mask:0xf")
                k.e(f"v_perm_b32 v{u}, v{r+2}, v{r}, s36"); k.e(f"v_perm_b32 v{u+1}, v{r+2}, v{r}, s37")
                k.e(f"v_perm_b32 v{u+2}, v{r+3}, v{r+1}, s36"); k.e(f"v_perm_b32 v{u+3}, v{r+3}, v{r+1}, s37")
                k.lds(f"ds_write_b64 v{a0}, {vr(u,2)} offset:{mt*16*VPP}", "qw")
                k.lds(f"ds_write_b64 v{a1}, {vr(u+2,2)} offset:{mt*16*VPP}", "qw")
    def ordA(nm):
        o = ENV("ORDA", 2)
        if o == 1: return [(mi, (t if mi % 2 == 0 else 1 - t)) for mi in range(nm) for t in range(2)]
        if o == 2: return [((mi if t == 0 else nm - 1 - mi), t) for t in range(2) for mi in range(nm)]
        return [(mi, t) for mi in range(nm) for t in range(2)]
    def pair_path(mts, accb, bb, bstride, BD):
        nm = len(mts)
        k.lg = []
        k.vm = []
        DA2 = ENV("DA2", 5)
        st = dict(c=0, b=0, n=PA//2)
        def ld(i):
            if i < E2: late(lambda: a_load2(k, i))
            else: a_load2(k, i)
        def pre():
            while st["n"] < DA2: ld(st["n"]); st["n"] += 1
        def after(ks):
            if FS == "G" and ks == 8: stamp(k, 3)
            while st["n"] < 18 and st["n"] <= ks + (DA2 if st["n"] < E2 else max(DA2, E2)):
                ld(st["n"]); st["n"] += 1
            if ks >= 9:
                free = 8*(ks - 8)
                while st["c"] < CPA and 12*(st["c"]+1) <= free:
                    c_aload(k, st["c"], "c"); st["c"] += 1
                while st["b"] < 9 and 36 + 4*(st["b"]+1) <= free:
                    b_load(k, st["b"]); st["b"] += 1
        pre()
        gemm_loop(k, 18, ordA(nm), lambda mi, t: accb + 4*nm*t + 4*mi, lambda par, mi: bb + bstride*par + 4*mi,
                  lambda i_, t: AR + 8*(i_ % 9) + 4*t, mk_bread(mts), 0, nm, after, None, BD=BD, gate=gateA)
        epi_stats(mts, bb)
    m5 = [0, 1, 2, 3, 4]; m4 = [1, 2, 3, 4]
    k.e(f"s_cmp_ge_u32 s{S_W}, 6"); k.e("s_cbranch_scc1 L_A_single")
    k.e(f"s_cmp_ge_u32 s{S_W}, 4"); k.e("s_cbranch_scc1 L_A_qpair")
    pair_path(m5, 8, 48, 20, 1)
    sv = k.snapshot()
    k.e(f"s_cmp_lt_u32 s{S_W}, 2"); k.e("s_cbranch_scc1 L_A_vpair")
    epilogue(0, m5, lambda mi: 8 + 4*mi, EX, False, 48)
    epilogue(1, m5, lambda mi: 28 + 4*mi, EX+4, False, 48)
    k.e("s_branch L_A_att")
    k.label("L_A_vpair")
    k.restore(sv)
    epilogue(0, m5, lambda mi: 8 + 4*mi, EX, True, 48)
    epilogue(1, m5, lambda mi: 28 + 4*mi, EX+4, True, 48)
    k.e("s_branch L_A_att")
    k.label("L_A_qpair")
    pair_path(m4, 8, 40, 16, 2)
    epilogue(0, m4, lambda mi: 8 + 4*mi, EX, False, 40)
    epilogue(1, m4, lambda mi: 24 + 4*mi, EX+4, False, 40)
    k.e("s_branch L_A_att")
    k.label("L_A_single")
    k.e("s_cmp_eq_u32 s40, 13"); k.e("s_cselect_b32 s36, 0xffffff7f, -1"); k.e(f"v_and_b32 v0, s36, v{V_L16}")
    k.lg = []
    k.vm = []
    def ld1(i):
        if i < E1: late(lambda: a_load1(k, i))
        else: a_load1(k, i)
    def pre1():
        for i in range(PA, DA): ld1(i)
    def after1(ks):
        if ks + DA < 18: ld1(ks + DA)
        if ks in (9, 11, 13) and (ks - 9)//2 < CPA: c_aload(k, (ks - 9)//2, "c")
        if ks >= 9: b_load(k, ks - 9)
    pre1()
    gemm_loop(k, 18, [(mi, 0) for mi in range(5)], lambda mi, t: ACC + 4*mi, lambda par, mi: BB + 20*par + 4*mi,
              lambda i_, t: AR + 4*i_, mk_bread(m5), 0, 5, after1, None, BD=2, gate=gateA)
    epi_stats(m5, 28)
    sv = k.snapshot()
    k.e("s_cmp_ge_u32 s40, 9"); k.e("s_cbranch_scc1 L_A_vp")
    epilogue(0, m5, lambda mi: ACC + 4*mi, EX, False, 28)
    k.e("s_branch L_A_att")
    k.label("L_A_vp")
    k.restore(sv)
    k.e("s_mov_b32 exec_hi, 0")
    k.e("s_nop 4")
    epilogue(0, m5, lambda mi: ACC + 4*mi, EX, True, 28)
    k.e("s_mov_b64 exec, -1")
    k.e("s_branch L_A_att")
    k.label("L_A_free")
    k.e(f"s_cmp_eq_u32 s{S_W}, 9"); k.e("s_cbranch_scc1 L_A_fr2")
    if SL: lds_wait(k, CA_W, 12, 8, 1)
    else:
        for c in range(3): lds_wait(k, CA_X + c, 4, 8)
    k.e(f"s_cmp_eq_u32 s{S_W}, 8"); k.e("s_cbranch_scc1 L_A_combq")
    k.e(f"s_cmp_eq_u32 s{S_W}, 11"); k.e("s_cbranch_scc1 L_A_combh")
    stats_combine(k, A_PM, 8, VB2, A_ST + 128, False)
    k.e("s_branch L_A_combd")
    k.label("L_A_combh")
    stats_combine(k, A_PH, 8, VB2, A_ST, True)
    k.e("s_branch L_A_combd")
    k.label("L_A_combq")
    k.e(f"s_cmp_lg_u32 s{S_LAY}, 0"); k.e("s_cbranch_scc1 L_A_combd")
    k.e(f"v_min_u32 v7, 53, v{V_L}")
    divmod_const(k, 6, None, 7, 18, 64, 44)
    k.e(f"v_mul_u32_u24 v6, 0x{2304-288:x}, v6"); k.e(f"v_lshl_add_u32 v6, v7, 4, v6")
    k.e(f"s_mul_i32 s42, s{S_S}, 288"); k.e(f"s_add_u32 s42, s42, 0x{CSQP:x}")
    for p in range(18):
        k.e(f"buffer_load_dwordx4 {vr(8+4*p,4)}, v6, {WS}, s42 offen{WSC}")
        if p < 17: k.e("s_add_u32 s42, s42, 6912")
    k.e(f"v_add_u32 v{VB2}, {A_CQ}, v{V_L16}")
    k.e("s_waitcnt vmcnt(0)")
    for p in range(1, 18):
        for j in range(4): k.e(f"v_add_f32 v{8+j}, v{8+j}, v{8+4*p+j}")
    k.e(f"ds_write_b128 v{VB2}, v[8:11]")
    k.e("s_waitcnt lgkmcnt(0)")
    k.label("L_A_combd")
    lds_signal(k, CA_ST, 8)
    k.e("s_waitcnt lgkmcnt(0)"); k.lg = []
    k.e("s_branch L_A_att")
    k.label("L_A_fr2")
    k.e(f"s_cmp_lg_u32 s{S_LAY}, 0"); k.e("s_cbranch_scc1 L_A_att")
    for c in range(3): lds_wait(k, CA_X + c, 4, 8)
    if WREL:
        k.e("s_cmp_lt_u32 s2, 104"); k.e("s_cbranch_scc1 L_A_norel")
        k.e("buffer_wbl2 sc1")
        k.e("s_waitcnt vmcnt(0)")
        k.e("s_cmp_lt_u32 s2, 120"); k.e("s_cselect_b32 exec_lo, 1, 3"); k.e("s_mov_b32 exec_hi, 0")
        k.e(f"v_mul_u32_u24 v10, 0x{152*8:x}, v{V_L}"); k.e("s_add_u32 s36, s2, 216"); k.e("s_lshl_b32 s36, s36, 3"); k.e("v_sub_u32 v10, s36, v10")
        k.e("v_mov_b32 v8, s62"); k.e("v_mov_b32 v9, s63"); k.e(f"s_mov_b32 s37, 0x{FLP:x}")
        k.e(f"buffer_store_dwordx2 v[8:9], v10, {WS}, s37 offen sc1")
        k.e("s_mov_b64 exec, -1")
        k.label("L_A_norel")
    k.e(f"s_lshl_b32 s37, s{S_SC}, 7"); k.e(f"s_add_u32 s37, s37, 0x{FLP + 128*J_W1:x}")
    k.e(f"v_lshlrev_b32 v8, 10, v{V_L}")
    poll(k, 8, 37, (1 << 36) - 1, 10, ENV('PS3', 24))
    k.label("L_A_att")
    if ENV("DP", 0): k.e("s_setprio 0")
    k.vm = []; k.lg = []
    k.e("s_waitcnt lgkmcnt(0)")
    if FS in ("", "A"): stamp(k, 3)
    if FS == "G": stamp(k, 5)
    k.e("s_barrier")
    if FS == "A": stamp(k, 4)
    if FS == "G": stamp(k, 6)
    k.e(f"s_cmp_ge_u32 s{S_W}, 8"); k.e("s_cbranch_scc1 L_A_cs")
    VI, VHH, VQ, VK, VV = 5, 6, 7, 86, 87
    Q, KK, VP_, OA, PP, T0 = 8, 20, 20, 68, EX, EX+4
    att_start = len(k.lines)
    VHD = EX+6
    k.e(f"s_lshl_b32 s41, s{S_W}, 3")
    k.e(f"v_and_b32 v{VI}, 7, v{V_L}"); k.e(f"v_add_u32 v{VI}, s41, v{VI}")
    k.e(f"v_lshrrev_b32 v{VHH}, 5, v{V_L}")
    k.e(f"v_bfe_u32 v{VHD}, v{V_L}, 3, 2")
    k.e(f"v_mul_u32_u24 v{VQ}, {QP}, v{VI}")
    k.e(f"v_mul_u32_u24 v{VK}, 0x{QPL:x}, v{VHD}")
    k.e(f"s_mov_b32 s36, {A_QK + 16*QP}")
    k.e(f"v_add3_u32 v{VQ}, v{VQ}, v{VK}, s36")
    k.e(f"v_mul_u32_u24 v{VK}, 0x{8*QP:x}, v{VHH}"); k.e(f"v_sub_u32 v{VK}, v{VQ}, v{VK}")
    k.e(f"v_lshlrev_b32 v{T0}, 3, v{VHH}"); k.e(f"v_sub_u32 v{T0}, v{VI}, v{T0}")
    k.e(f"v_add_u32 v{VV}, 12, v{T0}"); k.e(f"v_mul_u32_u24 v{VV}, 0x{VPP:x}, v{VV}")
    k.e(f"v_mul_u32_u24 v{T0+1}, 0x{VPL:x}, v{VHD}"); k.e(f"s_mov_b32 s36, {A_VP}"); k.e(f"v_add3_u32 v{VV}, v{VV}, v{T0+1}, s36")
    def rdvec(reg, va, off, tag):
        k.lds(f"ds_read_b128 {vr(reg,4)}, v{va} offset:{off}", tag)
        k.lds(f"ds_read_b128 {vr(reg+4,4)}, v{va} offset:{off+16}", tag)
        k.lds(f"ds_read_b128 {vr(reg+8,4)}, v{va} offset:{off+32}", tag)
    rdvec(Q, VQ, 0, "q")
    for j in range(4): rdvec(KK + 12*j, VK, TSTR - 2*j*QP, ("k", j))
    k.e(f"s_lshl_b32 s36, s{S_R}, 6"); k.e(f"v_add_u32 v{T0}, s36, v{T0}")
    for j in range(4):
        k.e(f"v_cmp_le_i32 s[{50+2*j}:{51+2*j}], {2*j}, v{T0}")
    k.wait(lg=["q", ("k", 1)])
    for jj in range(9):
        for j in range(2):
            c = "0" if jj == 0 else f"v{PP+j}"
            k.e(f"v_dot2_f32_bf16 v{PP+j}, v{Q+jj}, v{KK+12*j+jj}, {c}")
    def rdvp(pr):
        off = (4*VPP if pr == 0 else 0)
        for q4 in range(5):
            k.lds(f"ds_read_b128 {vr(VP_+24*pr+4*q4,4)}, v{VV} offset:{off+16*q4}", ("v", pr))
    rdvp(0)
    k.wait(lg=[("k", 3)])
    for jj in range(9):
        for j in range(2, 4):
            c = "0" if jj == 0 else f"v{PP+j}"
            k.e(f"v_dot2_f32_bf16 v{PP+j}, v{Q+jj}, v{KK+12*j+jj}, {c}")
    rdvp(1)
    sc = (18 ** -0.5) * math.log2(math.e)
    k.e(f"v_mov_b32 v{T0}, {f32(-1e30)}")
    k.e("s_nop 1")
    for j in range(4): k.e(f"v_mul_f32 v{PP+j}, {f32(sc)}, v{PP+j}")
    for j in range(4): k.e(f"v_cndmask_b32 v{PP+j}, v{T0}, v{PP+j}, s[{50+2*j}:{51+2*j}]")
    k.e(f"v_max3_f32 v{T0}, v{PP}, v{PP+1}, v{PP+2}")
    k.e(f"v_max_f32 v{T0}, v{T0}, v{PP+3}")
    k.e(f"v_mov_b32 v{T0+1}, v{T0}")
    k.e("s_nop 1")
    k.e(f"v_permlane32_swap_b32 v{T0}, v{T0+1}")
    k.e("s_nop 1")
    k.e(f"v_max_f32 v{T0}, v{T0}, v{T0+1}")
    for j in range(4): k.e(f"v_sub_f32 v{PP+j}, v{PP+j}, v{T0}")
    for j in range(4): k.e(f"v_exp_f32 v{PP+j}, v{PP+j}")
    k.e("s_nop 0")
    k.e(f"v_cvt_pk_bf16_f32 v{PP}, v{PP}, v{PP+1}")
    k.e(f"v_cvt_pk_bf16_f32 v{PP+2}, v{PP+2}, v{PP+3}")
    k.e("s_mov_b32 s36, 0x3f803f80")
    k.e(f"v_dot2_f32_bf16 v{T0}, v{PP}, s36, 0")
    k.e(f"v_dot2_f32_bf16 v{T0}, v{PP+2}, s36, v{T0}")
    k.wait(lg=[("v", 0)])
    for d in range(18): k.e(f"v_dot2_f32_bf16 v{OA+d}, v{VP_+d}, v{PP}, 0")
    k.e(f"v_mov_b32 v{T0+1}, v{T0}")
    k.wait(lg=[("v", 1)])
    for d in range(18): k.e(f"v_dot2_f32_bf16 v{OA+d}, v{VP_+24+d}, v{PP+2}, v{OA+d}")
    k.e(f"v_permlane32_swap_b32 v{T0}, v{T0+1}")
    k.e("s_nop 1")
    k.e(f"v_add_f32 v{T0}, v{T0}, v{T0+1}")
    k.e(f"v_rcp_f32 v{T0}, v{T0}")
    pairs = [(d, d+8) for d in range(8)] + [(16, 17)]
    for a, b_ in pairs: k.e(f"v_permlane32_swap_b32 v{OA+a}, v{OA+b_}")
    k.e("s_nop 1")
    for a, b_ in pairs: k.e(f"v_add_f32 v{OA+a}, v{OA+a}, v{OA+b_}")
    for a, b_ in pairs: k.e(f"v_mul_f32 v{OA+a}, v{OA+a}, v{T0}")
    k.e(f"v_cvt_pk_bf16_f32 v{Q+4}, v{OA+16}, v{OA+16}")
    k.e(f"v_lshlrev_b32 v{VI}, 4, v{VI}")
    k.e(f"v_lshl_add_u32 v{VHD}, v{VHD}, 1, v{VHH}")
    k.e(f"v_lshl_add_u32 v{VK}, v{VHD}, 1, v{VI}"); k.e(f"v_add_u32 v{VK}, {A_SCR}, v{VK}")
    k.e(f"ds_write_b16 v{VK}, v{Q+4}")
    k.e(f"v_add_u32 v{VV}, {A_SCR}, v{VI}")
    for j in range(4): k.e(f"v_cvt_pk_bf16_f32 v{Q+j}, v{OA+2*j}, v{OA+2*j+1}")
    k.e("s_waitcnt lgkmcnt(0)")
    k.e(f"ds_read_b128 {vr(Q+4,4)}, v{VV}")
    k.e(f"v_lshl_add_u32 v{VQ}, v{VHD}, 10, v{VI}")
    k.e(f"s_mul_i32 s36, s{S_S}, 9216"); k.e(f"s_mul_i32 s37, s{S_R}, {TILEB}"); k.e("s_add_u32 s36, s36, s37"); k.e(f"s_add_u32 s36, s36, s{S_O}")
    k.e("s_add_u32 s38, s36, 8192")
    if FS == "A": stamp(k, 5)
    k.e(f"buffer_store_dwordx4 {vr(Q,4)}, v{VQ}, {WS}, s36 offen{SC('o')}")
    k.e("s_mov_b64 exec, 0xff")
    k.e("s_waitcnt lgkmcnt(0)")
    k.e(f"buffer_store_dwordx4 {vr(Q+4,4)}, v{VI}, {WS}, s38 offen{SC('o')}")
    k.e("s_mov_b64 exec, -1")
    publish(k, CA_DONE, 8, F_A, S_R, S_S, 20, sc=SC('o'))
    if FS == "A": stamp(k, 6)
    k.e("s_branch L_A_end")
    k.label("L_A_cs")
    k.e(f"s_cmp_ge_u32 s{S_W}, 10"); k.e("s_cbranch_scc1 L_A_nb")
    for i in range(PA, 9): b_load(k, i)
    k.label("L_A_nb")
    for i in range(CPA): c_aload(k, i, "c")
    k.vm = []
    k.e(f"s_cmp_lg_u32 s{S_LAY}, 0"); k.e("s_cbranch_scc1 L_A_end")
    k.e(f"s_cmp_eq_u32 s{S_WL}, 3"); k.e("s_cbranch_scc1 L_A_b1")
    k.e(f"s_mul_i32 s36, s{S_SC}, 2304"); k.e(f"s_lshl_b32 s37, s{S_WL}, 10"); k.e(f"s_add_u32 s36, s36, 0x{CSP:x}")
    k.e(f"v_add_u32 v6, s37, v{V_L16}"); k.e("v_min_u32 v6, 0x8f0, v6")
    for i in range(18):
        k.e(f"buffer_load_dwordx4 {vr(8+4*i,4)}, v6, {WS}, s36 offen{WSC}")
        if i < 17: k.e(f"s_add_u32 s36, s36, {4608*4}")
    k.e(f"s_add_u32 s37, s37, {C_CS}"); k.e(f"v_add_u32 v5, s37, v{V_L16}")
    k.e("s_waitcnt vmcnt(0)")
    for i in range(17):
        for j in range(4): k.e(f"v_add_f32 v{76+j}, v{76+j}, v{8+4*i+j}")
    k.e("ds_write_b128 v5, v[76:79]")
    k.e("s_waitcnt lgkmcnt(0)")
    k.e("s_branch L_A_end")
    k.label("L_A_b1")
    k.e(f"s_mul_i32 s38, s{S_SC}, 1152"); k.e(f"s_mov_b32 m0, {C_B1}"); k.e("s_nop 0")
    k.e(f"buffer_load_dwordx4 v{V_L16}, s[12:15], s38 offen lds")
    k.e(f"buffer_load_dwordx4 v{V_L16}, s[12:15], s38 offen offset:1024 lds")
    k.e("s_waitcnt vmcnt(0)")
    k.label("L_A_end")

def phase_B(k):
    k.c("================ phase B")
    VB1, VB2, VR_ = 5, 6, 7
    ACC, BB, RX, WB = 8, 24, 72, 124
    k.vm = []; k.lg = []
    k.e(f"s_mul_i32 s39, s{S_R}, {TILEB}")
    k.e(f"s_cmp_ge_u32 s{S_W}, 5"); k.e("s_cselect_b32 s45, 1, 0"); k.e("s_mul_i32 s46, s45, 5"); k.e(f"s_sub_u32 s46, s{S_W}, s46")
    k.e(f"v_lshrrev_b32 v{VR_}, 1, v{V_G}"); k.e(f"v_lshlrev_b32 v{VR_}, 10, v{VR_}")
    k.e(f"v_and_b32 v{VB2}, 31, v{V_L}"); k.e(f"v_lshl_add_u32 v{VR_}, v{VB2}, 4, v{VR_}")
    k.e(f"s_mul_i32 s40, s{S_S}, 9216"); k.e("s_add_u32 s40, s40, s39"); k.e("s_lshl_b32 s41, s46, 11"); k.e("s_add_u32 s40, s40, s41")
    k.e("s_lshl_b32 s41, s45, 9"); k.e("s_add_u32 s40, s40, s41")
    k.e("s_cmp_eq_u32 s46, 4"); k.e("s_cselect_b32 s41, 2, 4"); k.e("s_cmp_gt_u32 s46, 4"); k.e("s_cselect_b32 s41, 0, s41")
    k.e(f"v_cmp_gt_u32 vcc, s41, v{V_G}")
    k.e(f"v_mov_b32 v{VB2}, 0x70000000")
    k.e(f"s_add_u32 s41, s40, s{S_XIN}")
    k.e(f"v_cndmask_b32 v{VR_}, v{VB2}, v{VR_}, vcc")
    k.vmem(f"buffer_load_dwordx4 {vr(RX,4)}, v{VR_}, {WS}, s41 offen sc1", "r")
    NP1 = 3
    await_flags(k, F_A, S_R, 8, (CA_DONE, 8))
    if FS in ("", "A", "B"): stamp(k, {"A": 7, "B": 1}.get(FS, 4))
    k.e(f"s_mul_i32 s36, s{S_W}, 6144"); k.e("s_add_u32 s37, s39, s36"); k.e(f"s_add_u32 s37, s37, s{S_O}")
    for i in range(6):
        if i % 4 == 0:
            k.e(f"s_add_u32 m0, s36, {1024*i}")
            k.e("s_nop 0") if i == 0 else k.e("s_add_u32 s37, s37, 4096")
        k.vmem(f"buffer_load_dwordx4 v{V_L16}, {WS}, s37 offen offset:{(i%4)*1024} sc1 lds", "o")
    k.e(f"v_lshlrev_b32 v{VB1}, 10, v{V_G}"); k.e(f"v_lshl_add_u32 v{VB1}, v{V_M}, 4, v{VB1}")
    k.e("s_mul_i32 s41, s45, %d" % (9*4096)); k.e(f"v_add_u32 v{VB1}, s41, v{VB1}")
    k.e("s_lshl_b32 s41, s45, 9"); k.e("s_xor_b32 s42, s41, 512")
    k.e(f"v_add_u32 v{VB2}, s42, v{VB1}"); k.e(f"v_add_u32 v{VB1}, s41, v{VB1}")
    k.wait(vm0=True)
    if FS == "B": stamp(k, 2)
    k.e("s_barrier")
    if FS == "B": stamp(k, 3)
    vm_keep = list(k.vm)
    k.e(f"s_cmp_ge_u32 s{S_W}, 10"); k.e("s_cbranch_scc1 L_B_idle")
    def bread(ks, mi, reg):
        k.lds(f"ds_read_b128 {vr(reg,4)}, v{VB1 if mi < 2 else VB2} offset:{ks*4096 + (mi&1)*256}", ("b", ks))
    def afterB(ks):
        if ks % 2 == 0 and CPA + ks // 2 < 3: c_aload(k, CPA + ks // 2, "c")
    gemm_loop(k, 9, [(2, 0), (3, 0), (0, 0), (1, 0)], lambda mi, t: ACC + 4*mi, lambda par, mi: BB + 16*par + 4*mi, lambda i_, t: WB + 4*i_,
              bread, 0, 4, afterB, None, BD=2, atag=lambda ks: "none")
    k.e(f"s_lshl_b32 s41, s{S_W}, 11"); k.e(f"s_add_u32 s41, s41, {B_XB}"); k.e(f"v_add_u32 v{VB1}, s41, v{V_L16}")
    k.e(f"s_add_u32 s42, s{S_W}, 5"); k.e(f"s_sub_u32 s43, s{S_W}, 5"); k.e(f"s_cmp_ge_u32 s{S_W}, 5"); k.e("s_cselect_b32 s42, s43, s42")
    k.e("s_lshl_b32 s42, s42, 11"); k.e(f"s_add_u32 s42, s42, {B_XB}"); k.e(f"v_add_u32 v{VB2}, s42, v{V_L16}")
    k.e("s_nop 0")
    if FS == "B": stamp(k, 4)
    k.e(f"ds_write_b128 v{VB1}, {vr(ACC+8,4)}"); k.e(f"ds_write_b128 v{VB1}, {vr(ACC+12,4)} offset:1024")
    k.e("s_waitcnt lgkmcnt(0)")
    k.e("s_barrier")
    k.e(f"ds_read_b128 {vr(ACC+8,4)}, v{VB2}"); k.e(f"ds_read_b128 {vr(ACC+12,4)}, v{VB2} offset:1024")
    k.e(f"s_add_u32 s41, s40, s{S_X1}")
    k.e("s_waitcnt lgkmcnt(0)")
    for j in range(8): k.e(f"v_add_f32 v{ACC+j}, v{ACC+j}, v{ACC+8+j}")
    k.e("s_nop 1")
    for j in range(4): k.e(f"v_permlane16_swap_b32 v{ACC+j}, v{ACC+4+j}")
    k.e("s_nop 1")
    for j in range(4):
        k.e(f"v_lshlrev_b32 v{BB}, 16, v{RX+j}"); k.e(f"v_and_b32 v{BB+1}, 0xffff0000, v{RX+j}")
        k.e(f"v_add_f32 v{ACC+2*j}, v{ACC+2*j}, v{BB}"); k.e(f"v_add_f32 v{ACC+2*j+1}, v{ACC+2*j+1}, v{BB+1}")
        k.e(f"v_cvt_pk_bf16_f32 v{RX+j}, v{ACC+2*j}, v{ACC+2*j+1}")
    if FS == "B": stamp(k, 5)
    k.e(f"buffer_store_dwordx4 {vr(RX,4)}, v{VR_}, {WS}, s41 offen sc1")
    publish(k, CB_DONE, 10, F_B, S_R, S_S, 24)
    if FS == "B": stamp(k, 6)
    k.e("s_branch L_B_end")
    k.label("L_B_idle")
    for i in range(CPA, 3): c_aload(k, i, "c")
    k.e("s_barrier")
    k.label("L_B_end")
    k.vm = vm_keep; k.lg = []
    NP2 = ENV("NP2", 4)
    for i in range(NP1, NP2): c_aload(k, i)
    return NP2

def phase_C(k, npre):
    k.c("================ phase C")
    VB1, VB2, VT = 5, 6, 7
    ACC, BB = 8, 56
    D = 6
    k.e(f"s_mul_i32 s39, s{S_RC}, {TILEB}")
    await_flags(k, F_B, S_RC, 8, (CB_DONE, 10))
    if FS in ("", "B", "C"): stamp(k, {"B": 7, "C": 1}.get(FS, 5))
    k.e(f"s_mul_i32 s36, s{S_W}, 6144"); k.e("s_add_u32 s37, s36, s39"); k.e(f"s_add_u32 s37, s37, s{S_X1}")
    for i in range(6):
        if i and i % 4 == 0: k.e("s_add_u32 s37, s37, 4096")
        k.e(f"buffer_load_dwordx4 {vr(8+4*i,4)}, v{V_L16}, {WS}, s37 offen offset:{(i%4)*1024} sc1")
    k.e(f"s_lshl_b32 s37, s{S_ROT}, 12"); k.e("s_sub_u32 s36, s36, s37"); k.e(f"s_add_u32 s36, s36, {TILEB}")
    k.e("s_mov_b32 s38, 0x3f803f80")
    for i in range(6):
        k.e(f"s_sub_u32 s37, s36, {TILEB}"); k.e(f"s_cmp_ge_u32 s36, {TILEB}"); k.e("s_cselect_b32 s36, s37, s36")
        k.e(f"v_add_u32 v{VB2}, s36, v{V_L16}")
        k.e(f"s_waitcnt vmcnt({5-i})")
        k.e(f"ds_write_b128 v{VB2}, {vr(8+4*i,4)}")
        if not SLC: stats_acc(k, 8+4*i, 44, i == 0, 38)
        k.e("s_add_u32 s36, s36, 1024")
    if SLC:
        k.e("s_waitcnt lgkmcnt(0)")
        lds_signal(k, CC_X, 46, byclass=True)
        for i in range(6): stats_acc(k, 8+4*i, 44, i == 0, 38)
    k.e(f"s_lshl_b32 s37, s{S_W}, 9"); k.e(f"v_lshlrev_b32 v{VB2}, 3, v{V_L}"); k.e(f"v_add_u32 v{VB2}, s37, v{VB2}"); k.e(f"v_add_u32 v{VB2}, {C_PM}, v{VB2}")
    k.e(f"ds_write_b64 v{VB2}, v[44:45]")
    k.label("L_C_s4")
    k.vm = []
    k.e(f"v_lshlrev_b32 v{VB1}, 10, v{V_G}"); k.e(f"v_lshl_add_u32 v{VB1}, v{V_M}, 4, v{VB1}")
    k.e("s_waitcnt lgkmcnt(0)")
    if SLC:
        lds_signal(k, CC_W1, 46)
        k.e("s_waitcnt lgkmcnt(0)")
    elif GXC:
        lds_signal(k, CC_X, 46, byclass=True)
        k.e("s_waitcnt lgkmcnt(0)")
    else:
        k.e("s_barrier")
    if FS in ("", "C"): stamp(k, {"C": 2}.get(FS, 6))
    k.lg = []
    def gate1(ks, query=False):
        if not GXC or ks % 6: return False
        if query: return True
        lds_wait(k, CC_X + ks//6, 4, EX)
    k.e(f"s_cmp_lg_u32 s{S_W}, 11"); k.e("s_cbranch_scc1 L_C_nocomb")
    if SLC: lds_wait(k, CC_W1, 12, 8, 1)
    elif GXC:
        for c in range(3): lds_wait(k, CC_X + c, 4, 8)
    stats_combine(k, C_PM, 8, VB2, C_ST, False, 12)
    lds_signal(k, CC_ST, 8)
    k.e("s_waitcnt lgkmcnt(0)"); k.lg = []
    k.label("L_C_nocomb")
    k.e(f"v_add_u32 v{VB2}, 49152, v{VB1}")
    def bread1(ks, mi, reg):
        off = ks*4096 + mi*256; base = VB1
        if off >= 49152: off -= 49152; base = VB2
        k.lds(f"ds_read_b128 {vr(reg,4)}, v{base} offset:{off}", ("b", ks))
    accf = lambda mi, t: ACC + 12*mi + 4*t
    bbf = lambda par, mi: BB + 16*par + 4*mi
    asf = lambda i_, t: AR + 12*(i_ % D) + 4*t
    order = [(mi, t) for mi in range(4) for t in range(3)]
    if ENV("ORD", 2) == 1: order = [(mi, t) for t in range(3) for mi in range(4)]
    if ENV("ORD", 2) == 2: order = [(mi, (t if mi % 2 == 0 else 2 - t)) for mi in range(4) for t in range(3)]
    if ENV("ORD", 2) == 3: order = [((mi if t % 2 == 0 else 3 - mi), t) for t in range(3) for mi in range(4)]
    DEFER = ENV("DEFER", 2)
    state = dict(n=npre)
    lim1 = ENV("LIM1", 18) if DEFER else 24
    def after1(ks):
        tgt = min(ks + 1 + D, lim1, state["n"] + 2)
        while state["n"] < tgt:
            c_aload(k, state["n"]); state["n"] += 1
            if DEFER == 1 and state["n"] == 18: lds_signal(k, CC_W1, EX)
    k.e(f"s_setprio {ENV('P1PRIO', 2)}")
    (gemm_loop_sp if ENV('SP', 2) & 1 else gemm_loop)(k, 18, order, accf, bbf, asf, bread1, 0, 4, after1, gate=gate1)
    k.e(f"s_setprio {ENV('GPRIO', 3)}")
    if FS == "C": stamp(k, 3)
    DEFN = ENV('DEFN', 12)
    sv2 = k.snapshot()
    def w2_check(final=False, first=False):
        if DEFER != 1: return
        lab = k.newlabel("L_w2")
        if not first:
            k.e("s_cmp_lg_u32 s56, 0"); k.e(f"s_cbranch_scc1 {lab}")
        else:
            k.e("s_mov_b32 s56, 0")
        k.e(f"s_add_u32 s36, s{S_CNT}, {4*CC_W1}")
        k.label(lab + "_p")
        k.e(f"v_mov_b32 v0, s36")
        k.e(f"ds_read_b32 v0, v0")
        k.e("s_waitcnt lgkmcnt(0)"); k.lg = []
        k.e(f"v_readfirstlane_b32 s37, v0")
        k.e("s_nop 3")
        k.e(f"s_cmp_ge_u32 s37, {DEFN}"); k.e(f"s_cbranch_scc1 {lab}_go")
        if final:
            k.e("s_sleep 4"); k.e(f"s_branch {lab}_p")
        else:
            k.e(f"s_branch {lab}")
        k.label(lab + "_go")
        k.vm = list(sv2[0])
        for i in range(18, 24): c_aload(k, i)
        k.e("s_mov_b32 s56, 1")
        k.label(lab)
    w2_check(first=True)
    lds_wait(k, CC_ST, 1, EX)
    CSR, B1R, T, STR = BB, BB+12, BB+24, EX
    k.e(f"s_lshr_b32 s40, s{S_W}, 1"); k.e(f"s_and_b32 s41, s{S_W}, 1"); k.e("s_mul_i32 s40, s40, 96")
    k.e("s_lshl_b32 s42, s41, 5"); k.e("s_add_u32 s42, s42, s40")
    k.e("s_lshl_b32 s43, s41, 4"); k.e("s_add_u32 s43, s43, s40"); k.e("s_add_u32 s43, s43, 64")
    k.e(f"v_lshlrev_b32 v{VB1}, 3, v{V_G}"); k.e(f"v_add_u32 v{VB1}, s42, v{VB1}")
    k.e(f"v_lshlrev_b32 v{VB2}, 2, v{V_G}"); k.e(f"v_add_u32 v{VB2}, s43, v{VB2}")
    k.e(f"s_mov_b32 s40, {C_CS}"); k.e(f"s_mov_b32 s41, {C_B1}")
    k.e(f"v_lshl_add_u32 v{VT}, v{VB1}, 2, s40")
    for j in range(2): k.lds(f"ds_read_b128 {vr(CSR+4*j,4)}, v{VT} offset:{16*j}", "cs")
    k.e(f"v_lshl_add_u32 v{VT}, v{VB2}, 2, s40")
    k.lds(f"ds_read_b128 {vr(CSR+8,4)}, v{VT}", "cs")
    k.e(f"v_lshl_add_u32 v{VT}, v{VB1}, 1, s41")
    k.lds(f"ds_read_b128 {vr(T,4)}, v{VT}", "cs")
    k.e(f"v_lshl_add_u32 v{VT}, v{VB2}, 1, s41")
    k.lds(f"ds_read_b64 {vr(T+4,2)}, v{VT}", "cs")
    k.e(f"v_lshlrev_b32 v{VB1}, 3, v{V_M}"); k.e(f"v_add_u32 v{VB1}, {C_ST}, v{VB1}")
    for mi in range(4): k.lds(f"ds_read_b64 {vr(STR+2*mi,2)}, v{VB1} offset:{128*mi}", "cs")
    k.e(f"s_bfe_u32 s40, s{S_W}, 0x10001"); k.e(f"s_and_b32 s41, s{S_W}, 1"); k.e("s_mul_i32 s40, s40, 3")
    k.e(f"s_sub_u32 s40, s40, s{S_ROT2}"); k.e("s_add_u32 s40, s40, 6")
    k.e(f"s_lshr_b32 s55, s{S_W}, 2"); k.e("s_mul_i32 s54, s55, 6")
    k.e("s_add_u32 s42, s40, s41"); k.e("s_sub_u32 s44, s42, 6"); k.e("s_cmp_ge_u32 s42, 6"); k.e("s_cselect_b32 s42, s44, s42")
    k.e("s_add_u32 s42, s42, s54"); k.e("s_lshl_b32 s42, s42, 12"); k.e(f"s_add_u32 s42, s42, {C_HB}")
    k.e("s_add_u32 s43, s40, 2"); k.e("s_sub_u32 s44, s43, 6"); k.e("s_cmp_ge_u32 s43, 6"); k.e("s_cselect_b32 s43, s44, s43")
    k.e("s_add_u32 s43, s43, s54"); k.e("s_lshl_b32 s43, s43, 12"); k.e("s_lshl_b32 s41, s41, 3"); k.e("s_add_u32 s43, s43, s41"); k.e(f"s_add_u32 s43, s43, {C_HB}")
    k.e(f"v_add_u32 v{VB1}, s42, v{V_L16}"); k.e(f"v_add_u32 v{VB2}, s43, v{V_L16}")
    c0 = -2.0 * math.sqrt(2.0/math.pi) * math.log2(math.e)
    c1 = c0 * 0.044715
    k.e(f"s_mov_b32 s44, {f32(c1)}"); k.e(f"v_mov_b32 v{VT}, {f32(c0)}")
    k.wait(lg=["cs"])
    for j in range(6):
        k.e(f"v_lshlrev_b32 v{B1R+2*j}, 16, v{T+j}"); k.e(f"v_and_b32 v{B1R+2*j+1}, 0xffff0000, v{T+j}")
    PK = ENV("PK", 0)
    if PK:
        k.e(f"s_mov_b32 s45, {f32(c1)}"); k.e(f"s_mov_b32 s50, {f32(c0)}"); k.e(f"s_mov_b32 s51, {f32(c0)}")
    for mi in range(4):
        a = accf(mi, 0)
        for (j0, n) in ((0, 8), (8, 4)):
            js = range(j0, j0+n)
            if ENV("NOGELU", 0) == 1:
                for j in js: k.e(f"v_mul_f32 v{T+j-j0}, v{a+j}, v{STR+2*mi}")
            elif ENV("NOGELU", 0) == 2:
                for j in js: k.e(f"v_fma_f32 v{T+j-j0}, v{STR+2*mi+1}, v{CSR+j}, v{B1R+j}")
                for j in js: k.e(f"v_fma_f32 v{a+j}, v{a+j}, v{STR+2*mi}, v{T+j-j0}")
                for j in js: k.e(f"v_mul_f32 v{T+j-j0}, v{a+j}, v{a+j}")
                for j in js: k.e(f"v_fma_f32 v{T+j-j0}, v{T+j-j0}, s44, v{VT}")
                for j in js: k.e(f"v_mul_f32 v{T+j-j0}, v{T+j-j0}, v{a+j}")
                for j in js: k.e(f"v_add_f32 v{T+j-j0}, 1.0, v{T+j-j0}")
                for j in js: k.e(f"v_mul_f32 v{T+j-j0}, 0.5, v{a+j}")
            elif not PK:
                for j in js: k.e(f"v_fma_f32 v{T+j-j0}, v{STR+2*mi+1}, v{CSR+j}, v{B1R+j}")
                for j in js: k.e(f"v_fma_f32 v{a+j}, v{a+j}, v{STR+2*mi}, v{T+j-j0}")
                for j in js: k.e(f"v_mul_f32 v{T+j-j0}, v{a+j}, v{a+j}")
                for j in js: k.e(f"v_fma_f32 v{T+j-j0}, v{T+j-j0}, s44, v{VT}")
                for j in js: k.e(f"v_mul_f32 v{T+j-j0}, v{T+j-j0}, v{a+j}")
                for j in js: k.e(f"v_exp_f32 v{T+j-j0}, v{T+j-j0}")
                for j in js: k.e(f"v_add_f32 v{T+j-j0}, 1.0, v{T+j-j0}")
                for j in js: k.e(f"v_rcp_f32 v{T+j-j0}, v{T+j-j0}")
                for j in js: k.e(f"v_mul_f32 v{T+j-j0}, v{T+j-j0}, v{a+j}")
            else:
                jp = range(j0, j0+n, 2)
                P = lambda r: vr(r, 2)
                st = P(STR+2*mi)
                for j in jp: k.e(f"v_pk_fma_f32 {P(T+j-j0)}, {st}, {P(CSR+j)}, {P(B1R+j)} op_sel:[1,0,0] op_sel_hi:[1,1,1]")
                for j in jp: k.e(f"v_pk_fma_f32 {P(a+j)}, {P(a+j)}, {st}, {P(T+j-j0)} op_sel:[0,0,0] op_sel_hi:[1,0,1]")
                for j in jp: k.e(f"v_pk_mul_f32 {P(T+j-j0)}, {P(a+j)}, s[44:45]")
                for j in jp: k.e(f"v_pk_fma_f32 {P(T+j-j0)}, {P(T+j-j0)}, {P(a+j)}, s[50:51]")
                for j in jp: k.e(f"v_pk_mul_f32 {P(T+j-j0)}, {P(T+j-j0)}, {P(a+j)}")
                for j in js: k.e(f"v_exp_f32 v{T+j-j0}, v{T+j-j0}")
                for j in jp: k.e(f"v_pk_add_f32 {P(T+j-j0)}, {P(T+j-j0)}, 1.0 op_sel_hi:[1,0]")
                for j in js: k.e(f"v_rcp_f32 v{T+j-j0}, v{T+j-j0}")
                for j in jp: k.e(f"v_pk_mul_f32 {P(T+j-j0)}, {P(T+j-j0)}, {P(a+j)}")
            for j in range(n//2): k.e(f"v_cvt_pk_bf16_f32 v{a+j0+j}, v{T+2*j}, v{T+2*j+1}")
            if j0 == 0: k.lds(f"ds_write_b128 v{VB1}, {vr(a,4)} offset:{mi*1024}", "hw")
            else: k.lds(f"ds_write_b64 v{VB2}, {vr(a+8,2)} offset:{mi*1024}", "hw")
            if DEFER == 2 and state["n"] < 24:
                c_aload(k, state["n"]); state["n"] += 1
        if mi < 3: w2_check()
    k.e(f"v_add_u32 v{VB1}, {C_HB}, v{V_L16}"); k.e(f"v_add_u32 v{VB2}, {C_HB+49152}, v{V_L16}")
    k.e("s_lshl_b32 s55, s55, 2"); k.e(f"s_add_u32 s55, s55, s{S_CNT}"); k.e(f"s_add_u32 s55, s55, {4*CC_H0}")
    k.e(f"v_mov_b32 v{EX+2}, s55"); k.e(f"v_mov_b32 v{EX+3}, 1")
    k.wait(lg0=True)
    k.e("s_mov_b64 exec, 1")
    k.e(f"ds_add_u32 v{EX+2}, v{EX+3}")
    k.e("s_mov_b64 exec, -1")
    k.e(f"s_setprio {ENV('P2PRIO', 0)}")
    if FS == "C": stamp(k, 4)
    w2_check(final=True)
    if FS == "C": stamp(k, 5)
    def gate(ks, query=False):
        if ks % 6: return False
        if query: return True
        lds_wait(k, CC_H0 + ks//6, 4, EX)
    def bread2(ks, mi, reg):
        off = (ks*4 + mi) * 1024; base = VB1
        if off >= 49152: off -= 49152; base = VB2
        k.lds(f"ds_read_b128 {vr(reg,4)}, v{base} offset:{off}", ("b", ks))
    def after2(ks):
        if 18 + ks + D < 36: c_aload(k, 18 + ks + D)
    (gemm_loop_sp if ENV('SP', 2) & 2 else gemm_loop)(k, 18, order, accf, bbf, asf, bread2, 18, 4, after2, gate=gate)
    k.e("s_setprio 0")
    if FS == "C": stamp(k, 6)
    if FS == "D": stamp(k, 1)
    k.e(f"v_lshlrev_b32 v{VB1}, 10, v{V_G}"); k.e(f"v_lshl_add_u32 v{VB1}, v{V_M}, 4, v{VB1}")
    k.e(f"v_lshrrev_b32 v{VB2}, 1, v{V_G}"); k.e(f"v_lshlrev_b32 v{VB2}, 10, v{VB2}"); k.e(f"v_and_b32 v{VT}, 31, v{V_L}")
    k.e(f"v_lshl_add_u32 v{VB2}, v{VT}, 4, v{VB2}")
    k.e(f"s_mul_i32 s40, s{S_SC}, {XB}"); k.e("s_add_u32 s40, s40, s39"); k.e(f"s_mul_i32 s41, s{S_W}, 6144"); k.e("s_add_u32 s40, s40, s41")
    k.e(f"s_add_u32 s40, s40, s{S_P}")
    k.e("s_add_u32 s41, s40, 4096")
    for mp in range(2):
        T2 = BB + 16 + 4*mp
        for mi in (2*mp, 2*mp+1):
            a = accf(mi, 0); T_ = BB + 4*mi
            for j in range(4): k.e(f"v_cvt_pk_bf16_f32 v{T_+j}, v{a+2*j}, v{a+2*j+1}")
            for j in range(2): k.e(f"v_cvt_pk_bf16_f32 v{T2+2*(mi&1)+j}, v{a+8+2*j}, v{a+8+2*j+1}")
            k.e(f"buffer_store_dwordx4 {vr(T_,4)}, v{VB1}, {WS}, s40 offen offset:{256*mi} sc1")
        k.e("s_nop 0")
        k.e(f"v_permlane16_swap_b32 v{T2}, v{T2+2}"); k.e(f"v_permlane16_swap_b32 v{T2+1}, v{T2+3}")
        k.e("s_nop 0")
        k.e(f"buffer_store_dwordx4 {vr(T2,4)}, v{VB2}, {WS}, s41 offen offset:{512*mp} sc1")
    k.e(f"s_mul_i32 s40, s{S_CL}, 24"); k.e(f"s_mul_i32 s41, s{S_S}, 3"); k.e("s_add_u32 s40, s40, s41"); k.e(f"s_add_u32 s40, s40, s{S_WL}")
    k.e("s_min_u32 s40, s40, 71"); k.e("s_lshl_b32 s40, s40, 4")
    k.e("s_load_dwordx4 s[52:55], s[20:21], s40")
    lds_signal(k, CC_K2, 8)
    publish(k, CC_DONE, 4, F_C, S_RC, S_SC, 8, byclass=True)
    if FS in ("", "C", "D"): stamp(k, {"D": 2}.get(FS, 7))

def phase_D(k):
    k.c("================ phase D (per class)")
    if ENV("DP", 0):
        k.e("s_setprio 3")
    k.e(f"s_cmp_lg_u32 s{S_WL}, 3"); k.e("s_cbranch_scc1 L_D_work")
    GD = ENV("GD", 0); GA = ENV("GA", 0)
    k.e(f"s_cmp_lg_u32 s{S_CL}, 0"); k.e("s_cbranch_scc1 L_D_g1")
    if GD == 0: lds_wait(k, CC_DONE + 1, 4, 8, 8)
    k.e("s_branch L_D_g2")
    k.label("L_D_g1")
    if GD < 2: lds_wait(k, CC_K2, 12, 8, 4)
    k.label("L_D_g2")
    lds_wait(k, CC_DONE, 4, 8, 1, byclass=True)
    k.e(f"s_lshl_b32 s39, s{S_R}, {GSH}"); k.e(f"s_lshl_b32 s38, s{S_CL}, {GSH+5}"); k.e("s_add_u32 s39, s39, s38"); k.e(f"s_add_u32 s39, s39, s{S_FL}")
    k.e(f"s_add_u32 s37, s39, {F_C}")
    k.e(f"v_lshlrev_b32 v8, {FSH}, v{V_L}")
    poll(k, 8, 37, 0xff, 12, ENV('PSD', 3))
    lds_signal(k, CD_GO, 10, byclass=True)
    k.e(f"s_cmp_lg_u32 s{S_LAY}, 0"); k.e("s_cbranch_scc1 L_D_idle")
    lds_wait(k, CD_DONE, 3, 10, 2, byclass=True)
    if not GA: lds_wait(k, CC_K2, 12, 10, 8)
    k.e(f"s_add_u32 s37, s39, {F_D}")
    k.e(f"s_cmp_eq_u32 s{S_R}, 0"); k.e(f"s_cselect_b32 s38, 0, {1 << GSH}"); k.e("s_sub_u32 s37, s37, s38"); k.e(f"s_sub_u32 s38, s38, {8 << FSH}")
    k.e(f"v_cmp_le_u32 vcc, 8, v{V_L}"); k.e("v_mov_b32 v9, s38")
    k.e("s_nop 0")
    k.e("v_cndmask_b32 v9, 0, v9, vcc"); k.e("v_add_u32 v8, v8, v9")
    poll(k, 8, 37, 0xffff, 12, ENV('PSD', 3))
    lds_signal(k, CA_GO, 10, byclass=True)
    k.e("s_waitcnt lgkmcnt(0)")
    k.e("s_branch L_D_idle")
    k.label("L_D_work")
    k.e(f"s_mul_i32 s39, s{S_R}, {TILEB}"); k.e("s_lshl_b32 s41, s40, 6"); k.e("s_add_u32 s41, s41, s39")
    lds_wait(k, CD_GO, 1, 8, 2, byclass=True)
    if FS == "D": stamp(k, 3)
    k.vm = []
    k.e(f"s_add_u32 s42, s41, s{S_X1}")
    k.vmem(f"buffer_load_dwordx4 v[40:43], v{V_L16}, {WS}, s42 offen sc1", "x1")
    k.e(f"s_add_u32 s42, s41, s{S_P}")
    for s in range(8):
        k.vmem(f"buffer_load_dwordx4 {vr(8+4*s,4)}, v{V_L16}, {WS}, s42 offen sc1", s)
        if s < 7: k.e(f"s_add_u32 s42, s42, {XB}")
    k.wait(vm=["x1"])
    for j in range(4):
        k.e(f"s_lshl_b32 s43, s{52+j}, 16"); k.e(f"s_and_b32 s44, s{52+j}, 0xffff0000")
        k.e(f"v_lshlrev_b32 v{48+2*j}, 16, v{40+j}"); k.e(f"v_and_b32 v{49+2*j}, 0xffff0000, v{40+j}")
        k.e(f"v_add_f32 v{48+2*j}, s43, v{48+2*j}"); k.e(f"v_add_f32 v{49+2*j}, s44, v{49+2*j}")
    for s in range(8):
        k.wait(vm=[s])
        for j in range(4):
            r = 8 + 4*s + j
            k.e(f"v_lshlrev_b32 v5, 16, v{r}"); k.e(f"v_and_b32 v6, 0xffff0000, v{r}")
            k.e(f"v_add_f32 v{48+2*j}, v{48+2*j}, v5"); k.e(f"v_add_f32 v{49+2*j}, v{49+2*j}, v6")
    for j in range(4): k.e(f"v_cvt_pk_bf16_f32 v{8+j}, v{48+2*j}, v{49+2*j}")
    if FS == "D": stamp(k, 4)
    k.e(f"s_cmp_lg_u32 s{S_LAY}, 0"); k.e("s_cbranch_scc1 L_D_final")
    k.e(f"s_add_u32 s42, s41, 0x{X2:x}")
    k.e(f"buffer_store_dwordx4 v[8:11], v{V_L16}, {WS}, s42 offen sc1")
    publish(k, CD_DONE, 3, F_D, S_R, S_S, 14, byclass=True)
    if FS == "D": stamp(k, 5)
    lds_wait(k, CA_GO, 1, 8, 2, byclass=True)
    if FS == "D": stamp(k, 6)
    k.e("s_branch L_D_idle")
    k.label("L_D_final")
    k.e("s_movk_i32 s42, 1152"); k.e(f"v_mul_u32_u24 v5, s42, v{V_L}")
    k.e("s_add_u32 s42, s39, s40")
    k.e("buffer_store_dwordx4 v[8:11], v5, s[16:19], s42 offen")
    k.label("L_D_idle")


def phase_P(k):
    k.c("================ phase P (weight re-layout), waves 0-5: job b, waves 6-11: job 256+b")
    L, L16, G, R, C = V_L, V_L16, V_G, 46, 47
    IN = "s[52:55]"
    k.e(f"v_bfe_u32 v{R}, v{L}, 2, 2"); k.e(f"v_and_b32 v{C}, 3, v{L}")
    k.e(f"s_cmp_ge_u32 s{S_W}, 6"); k.e(f"s_cselect_b32 s{S_SLOT}, 1, 0")
    k.e("s_add_u32 s36, s2, 64"); k.e("s_cmp_lt_u32 s2, 120"); k.e("s_cselect_b32 s36, s2, s36")
    k.e("s_add_u32 s37, s2, 216"); k.e("s_cmp_lt_u32 s2, 104"); k.e("s_cselect_b32 s37, 999, s37")
    k.e("s_add_u32 s38, s2, 120"); k.e("s_cmp_lt_u32 s2, 64"); k.e("s_cselect_b32 s37, s38, s37")
    k.e(f"s_cmp_eq_u32 s{S_SLOT}, 0"); k.e(f"s_cselect_b32 s{S_JOB}, s36, s37")
    k.e(f"s_mul_i32 s{S_LB}, s{S_SLOT}, 36864")
    k.e(f"s_mul_i32 s49, s{S_SLOT}, 6"); k.e(f"s_sub_u32 s49, s{S_W}, s49")
    k.e(f"s_and_b32 s45, s{S_JOB}, 7"); k.e(f"s_lshr_b32 s46, s{S_JOB}, 3")
    k.e(f"s_cmp_ge_u32 s{S_JOB}, {J_END}"); k.e("s_cbranch_scc1 L_P_done")
    k.e(f"s_and_b32 s36, s{S_JOB}, 0xfffe"); k.e("s_cmp_eq_u32 s36, 54"); k.e("s_cbranch_scc1 L_P_done")
    def dispatch(pfx):
        for bound, lab in ((J_X0, "wq"), (J_WO, "x0"), (J_W1, "wo"), (J_W2, "w1")):
            k.e(f"s_cmp_lt_u32 s{S_JOB}, {bound}"); k.e(f"s_cbranch_scc1 L_P{pfx}_{lab}")
        k.e(f"s_branch L_P{pfx}_w2")
    def pdma(i, voff, soff):
        k.e(f"s_add_u32 m0, s37, {6144*i}")
        k.e("s_nop 0")
        k.e(f"buffer_load_dwordx4 v{voff}, {IN}, {soff} offen nt lds")
    def lin_dma(n_i, per_row, nmax, pitch):
        k.e("s_lshl_b32 s36, s49, 6")
        for i in range(n_i):
            k.e(f"v_add_u32 v6, s36, v{L}")
            if i: k.e(f"v_add_u32 v6, {384*i}, v6")
            divmod_const(k, 7, 8, 6, per_row, nmax, 38)
            k.e(f"s_mov_b32 s38, {pitch}")
            k.e("v_mul_u32_u24 v7, s38, v7")
            k.e("v_lshl_add_u32 v7, v8, 4, v7")
            pdma(i, 7, "s40")
    def cont_dma():
        k.e("s_lshl_b32 s36, s49, 10"); k.e("s_add_u32 s40, s40, s36")
        for i in range(6):
            pdma(i, L16, "s40")
            if i < 5: k.e("s_add_u32 s40, s40, 6144")
    if ENV("WLATE", 0):
        k.e(f"s_cmp_lt_u32 s{S_JOB}, {J_W1 if ENV('WLATE', 0) == 1 else J_W2}"); k.e("s_cbranch_scc1 L_P_nl")
        get_tag(k)
        k.label("L_P_nl")
    k.e(f"s_lshl_b32 s37, s49, 10"); k.e(f"s_add_u32 s37, s37, s{S_LB}")
    dispatch("i")
    k.label("L_Pi_wq")
    srd(k, 52, 24, 0, 576*1728*2)
    sdivmod(k, 46, 45, S_JOB, 3, 56)
    k.e("s_mul_i32 s40, s46, %d" % (32*3456)); k.e("s_mul_i32 s36, s45, 1152"); k.e("s_add_u32 s40, s40, s36")
    lin_dma(6, 72, 2304, 3456)
    k.e("s_branch L_P_wait")
    k.label("L_Pi_x0")
    srd(k, 52, 22, 0, XB)
    k.e(f"s_sub_u32 s46, s46, {J_X0//8}"); k.e("s_lshl_b32 s45, s45, 3"); k.e("s_add_u32 s46, s46, s45")
    k.e("s_mul_i32 s40, s46, 36864")
    cont_dma()
    k.e("s_branch L_P_wait")
    k.label("L_Pi_wo")
    srd(k, 52, 26, 0, 576*576*2)
    k.e(f"s_sub_u32 s46, s46, {J_WO//8}")
    k.e("s_mul_i32 s40, s46, %d" % (72*1152)); k.e("s_mul_i32 s36, s45, 144"); k.e("s_add_u32 s40, s40, s36")
    lin_dma(2, 9, 768, 1152)
    k.e("s_branch L_P_wait")
    k.label("L_Pi_w1")
    srd(k, 52, 28, 0, 576*4608*2)
    k.e(f"s_sub_u32 s46, s46, {J_W1//8}")
    k.e("s_mul_i32 s40, s46, %d" % (32*9216)); k.e("s_mul_i32 s36, s45, 1152"); k.e("s_add_u32 s40, s40, s36")
    lin_dma(6, 72, 2304, 9216)
    k.e("s_branch L_P_wait")
    k.label("L_Pi_w2")
    srd(k, 52, 32, 0, 576*4608*2)
    k.e(f"s_sub_u32 s46, s46, {J_W2//8}")
    k.e("s_mul_i32 s40, s45, 18"); k.e("s_add_u32 s40, s40, s46"); k.e("s_mul_i32 s40, s40, 36864")
    cont_dma()
    k.label("L_P_wait")
    for j in range(4): k.e(f"v_mov_b32 v{40+j}, 0x3f803f80")
    k.e(f"s_lshl_b32 s36, s{S_SLOT}, 2"); k.e(f"s_add_u32 s36, s36, {CNT + 4*CP_LD}"); k.e("v_mov_b32 v8, s36"); k.e("v_mov_b32 v9, 1")
    k.e("s_waitcnt vmcnt(0)")
    k.e("s_mov_b64 exec, 1"); k.e("ds_add_u32 v8, v9"); k.e("s_mov_b64 exec, -1")
    k.label("L_P_spin")
    k.e("ds_read_b32 v9, v8"); k.e("s_waitcnt lgkmcnt(0)"); k.e("v_readfirstlane_b32 s36, v9"); k.e("s_nop 3")
    k.e("s_cmp_ge_u32 s36, 6"); k.e("s_cbranch_scc1 L_P_go"); k.e("s_sleep 2"); k.e("s_branch L_P_spin")
    k.label("L_P_go")
    k.e(f"s_lshl_b32 s39, s{S_W}, 10"); k.e("s_add_u32 s39, s39, 73728")
    k.e("s_lshl_b32 s48, s49, 1")
    k.label("L_P_vw")
    dispatch("p")
    def tr3(a6, a9, a10, a11):
        for t in range(2):
            k.e(f"ds_read_b64_tr_b16 v[{12+4*t}:{13+4*t}], v{a6} offset:{8*t}")
            k.e(f"ds_read_b64_tr_b16 v[{14+4*t}:{15+4*t}], v{a9} offset:{8*t}")
        k.e(f"ds_read_b64_tr_b16 v[20:21], v{a10}")
        k.e(f"ds_read_b64_tr_b16 v[22:23], v{a11}")
    k.label("L_Pp_w1")
    k.e("s_lshr_b32 s40, s48, 1"); k.e("s_and_b32 s41, s48, 1"); k.e("s_mul_i32 s40, s40, 96")
    k.e("s_lshl_b32 s42, s41, 5"); k.e("s_add_u32 s42, s42, s40")
    k.e("s_lshl_b32 s43, s41, 4"); k.e("s_add_u32 s43, s43, s40"); k.e("s_add_u32 s43, s43, 64")
    k.e(f"v_lshl_add_u32 v7, v{G}, 3, v{R}"); k.e("s_movk_i32 s38, 1152"); k.e("v_mul_u32_u24 v7, s38, v7"); k.e(f"v_add_u32 v7, s{S_LB}, v7")
    k.e("s_lshl_b32 s44, s42, 1"); k.e(f"v_lshl_add_u32 v6, v{C}, 4, v7"); k.e("v_add_u32 v6, s44, v6")
    k.e("s_lshl_b32 s44, s43, 1"); k.e(f"v_lshl_add_u32 v10, v{C}, 3, v7"); k.e("v_add_u32 v10, s44, v10")
    k.e("v_add_u32 v9, %d, v6" % (4*1152)); k.e("v_add_u32 v11, %d, v10" % (4*1152))
    tr3(6, 9, 10, 11)
    k.e("s_mul_i32 s47, s45, 12"); k.e("s_add_u32 s47, s47, s48"); k.e("s_mul_i32 s47, s47, 36"); k.e("s_add_u32 s47, s47, s46")
    k.e("s_mul_i32 s47, s47, 3072"); k.e(f"s_add_u32 s47, s47, 0x{WFF:x}")
    k.e("s_lshl_b32 s42, s41, 7"); k.e("s_add_u32 s42, s42, s39"); k.e("s_lshl_b32 s43, s41, 6"); k.e("s_add_u32 s43, s43, s39"); k.e("s_add_u32 s43, s43, 256")
    k.e(f"v_lshlrev_b32 v7, 5, v{G}"); k.e("v_add_u32 v7, s42, v7"); k.e(f"v_lshlrev_b32 v8, 4, v{G}"); k.e("v_add_u32 v8, s43, v8")
    for t in range(3):
        k.e(f"s_waitcnt lgkmcnt({4-2*t})")
        k.e(f"buffer_store_dwordx4 v[{12+4*t}:{15+4*t}], v{L16}, {WS}, s47 offen offset:{1024*t}{WST}")
        k.e(f"v_mfma_f32_16x16x32_bf16 v[{28+4*t}:{31+4*t}], v[{12+4*t}:{15+4*t}], v[40:43], 0")
    k.e("s_nop 7")
    k.e("ds_write_b128 v7, v[28:31]"); k.e("ds_write_b128 v7, v[32:35] offset:16"); k.e("ds_write_b128 v8, v[36:39]")
    k.e("s_waitcnt lgkmcnt(0)")
    k.e("s_branch L_P_next")
    k.label("L_Pp_wq")
    k.e(f"v_lshl_add_u32 v6, v{G}, 3, v{R}"); k.e("s_movk_i32 s38, 1152"); k.e("v_mul_u32_u24 v6, s38, v6")
    k.e(f"v_lshl_add_u32 v6, v{C}, 3, v6"); k.e("s_mul_i32 s38, s48, 96"); k.e(f"s_add_u32 s38, s38, s{S_LB}"); k.e("v_add_u32 v6, s38, v6")
    for t in range(3):
        k.e(f"ds_read_b64_tr_b16 v[{12+4*t}:{13+4*t}], v6 offset:{32*t}")
        k.e(f"ds_read_b64_tr_b16 v[{14+4*t}:{15+4*t}], v6 offset:{32*t+4*1152}")
    k.e("s_mul_i32 s40, s45, 9")
    for t in range(3):
        k.e(f"v_bfe_u32 v7, v{L}, 3, 1"); k.e("s_mul_i32 s38, s48, 6"); k.e(f"s_add_u32 s38, s38, {2*t}"); k.e("v_add_u32 v7, s38, v7")
        divmod_const(k, 8, 9, 7, 9, 72, 38)
        k.e("v_add_u32 v9, s40, v9")
        k.e("v_mul_u32_u24 v8, 28, v8"); k.e("v_add_u32 v8, v8, v9")
        k.e("v_lshrrev_b32 v9, 1, v8"); k.e("s_movk_i32 s38, %d" % (18*1024)); k.e("v_mul_u32_u24 v9, s38, v9")
        k.e("v_and_b32 v8, 1, v8"); k.e("v_lshl_add_u32 v9, v8, 7, v9")
        k.e(f"v_lshl_add_u32 v9, v{G}, 8, v9"); k.e(f"v_and_b32 v8, 7, v{L}"); k.e(f"v_lshl_add_u32 v{24+t}, v8, 4, v9")
    k.e("s_lshl_b32 s47, s46, 10")
    if WQF: k.e(f"s_add_u32 s47, s47, 0x{WQF:x}")
    k.e("s_and_b32 s42, s48, 1"); k.e("s_mul_i32 s42, s42, 192"); k.e("s_add_u32 s42, s42, s39")
    k.e(f"v_lshlrev_b32 v7, 4, v{G}"); k.e("v_add_u32 v7, s42, v7")
    k.e("s_waitcnt lgkmcnt(0)")
    for t in range(3):
        k.e(f"buffer_store_dwordx4 v[{12+4*t}:{15+4*t}], v{24+t}, {WS}, s47 offen sc1")
        k.e(f"v_mfma_f32_16x16x32_bf16 v[{28+4*t}:{31+4*t}], v[{12+4*t}:{15+4*t}], v[40:43], 0")
    k.e("s_nop 7")
    for t in range(3): k.e(f"ds_write_b128 v7, v[{28+4*t}:{31+4*t}] offset:{64*t}")
    k.e("s_waitcnt lgkmcnt(0)")
    k.e("s_branch L_P_next")
    k.label("L_Pp_w2")
    sdivmod(k, 40, 41, 46, 3, 18)
    k.e("s_cmp_eq_u32 s41, 2"); k.e("s_cselect_b32 s44, 2, 3"); k.e("s_movk_i32 s43, %d" % (4*1152)); k.e("s_cselect_b32 s43, %d, s43" % (16*1152))
    k.e(f"v_lshlrev_b32 v6, s44, v{G}"); k.e(f"v_add_u32 v6, v6, v{R}")
    k.e("s_movk_i32 s38, 1152"); k.e("v_mul_u32_u24 v6, s38, v6")
    k.e("s_mul_i32 s38, s48, 96"); k.e(f"s_add_u32 s38, s38, s{S_LB}"); k.e("v_add_u32 v6, s38, v6")
    k.e(f"v_lshl_add_u32 v10, v{C}, 3, v6"); k.e("v_add_u32 v10, 64, v10")
    k.e(f"v_lshl_add_u32 v6, v{C}, 4, v6")
    k.e("v_add_u32 v9, s43, v6"); k.e("v_add_u32 v11, s43, v10")
    tr3(6, 9, 10, 11)
    k.e("s_mul_i32 s47, s45, 12"); k.e("s_add_u32 s47, s47, s48"); k.e("s_mul_i32 s47, s47, 36"); k.e("s_add_u32 s47, s47, s46"); k.e("s_add_u32 s47, s47, 18")
    k.e("s_mul_i32 s47, s47, 3072"); k.e(f"s_add_u32 s47, s47, 0x{WFF:x}")
    for t in range(3):
        k.e(f"s_waitcnt lgkmcnt({4-2*t})")
        k.e(f"buffer_store_dwordx4 v[{12+4*t}:{15+4*t}], v{L16}, {WS}, s47 offen offset:{1024*t}{WST}")
    k.e("s_branch L_P_next")
    k.label("L_Pp_wo")
    k.e("s_lshl_b32 s44, s48, 2"); k.e(f"v_add_u32 v6, s44, v{G}"); k.e("v_min_u32 v6, 44, v6")
    divmod_const(k, 8, 7, 6, 5, 48, 38)
    k.e("v_lshrrev_b32 v9, 1, v8"); k.e("v_mul_u32_u24 v9, 18, v9")
    k.e("v_and_b32 v10, 1, v8"); k.e("v_lshl_add_u32 v9, v10, 3, v9")
    k.e(f"v_add_u32 v9, v9, v{R}")
    k.e("v_add_u32 v10, 4, v9")
    k.e(f"v_lshrrev_b32 v11, 1, v{R}"); k.e("v_mul_u32_u24 v11, 18, v11"); k.e(f"v_and_b32 v16, 1, v{R}")
    k.e("v_add3_u32 v11, v11, v16, 16")
    k.e("v_add_u32 v16, 36, v11")
    k.e("v_cmp_eq_u32 vcc, 8, v8")
    k.e("s_nop 1")
    k.e("v_cndmask_b32 v9, v9, v11, vcc"); k.e("v_cndmask_b32 v10, v10, v16, vcc")
    k.e("s_movk_i32 s38, 144"); k.e("v_mul_u32_u24 v9, s38, v9"); k.e("v_mul_u32_u24 v10, s38, v10")
    k.e("v_lshlrev_b32 v11, 5, v7"); k.e(f"v_lshl_add_u32 v11, v{C}, 3, v11"); k.e(f"v_add_u32 v11, s{S_LB}, v11")
    k.e("v_add_u32 v9, v9, v11"); k.e("v_add_u32 v10, v10, v11")
    k.e("ds_read_b64_tr_b16 v[12:13], v9")
    k.e("ds_read_b64_tr_b16 v[14:15], v10")
    k.e("s_movk_i32 s38, %d" % (18*1024)); k.e("v_mul_u32_u24 v7, s38, v7")
    k.e("s_mul_i32 s38, s46, 9"); k.e("v_add_u32 v8, s38, v8"); k.e("v_lshl_add_u32 v7, v8, 8, v7")
    k.e(f"v_lshl_add_u32 v7, v{V_M}, 4, v7")
    k.e("s_mul_i32 s44, s45, %d" % (5*18*1024)); k.e(f"s_add_u32 s44, s44, 0x{WOF:x}")
    k.e("s_waitcnt lgkmcnt(0)")
    k.e(f"buffer_store_dwordx4 v[12:15], v7, {WS}, s44 offen sc1")
    k.e("s_branch L_P_next")
    k.label("L_Pp_x0")
    k.e(f"v_and_b32 v6, 31, v{L}"); k.e(f"v_lshrrev_b32 v7, 5, v{L}")
    k.e("s_movk_i32 s38, 1152"); k.e("v_mul_u32_u24 v8, s38, v6"); k.e("v_lshl_add_u32 v8, v7, 4, v8")
    k.e("s_mul_i32 s38, s48, 96"); k.e(f"s_add_u32 s38, s38, s{S_LB}"); k.e("v_add_u32 v8, s38, v8")
    for i in range(3): k.e(f"ds_read_b128 v[{12+4*i}:{15+4*i}], v8 offset:{32*i}")
    k.e("v_lshlrev_b32 v9, 10, v7"); k.e("v_lshl_add_u32 v9, v6, 4, v9")
    k.e("s_lshr_b32 s40, s46, 1"); k.e(f"s_mul_i32 s40, s40, {TILEB}"); k.e("s_and_b32 s41, s46, 1"); k.e("s_lshl_b32 s41, s41, 9"); k.e("s_add_u32 s40, s40, s41")
    k.e("s_mul_i32 s41, s48, 6144"); k.e("s_add_u32 s40, s40, s41"); k.e(f"s_add_u32 s40, s40, 0x{X0P:x}"); k.e("s_add_u32 s41, s40, 4096")
    for i in range(3):
        k.e(f"s_waitcnt lgkmcnt({2-i})")
        k.e(f"buffer_store_dwordx4 v[{12+4*i}:{15+4*i}], v9, {WS}, s{40 if i < 2 else 41} offen offset:{2048*(i%2)} sc1")
    k.label("L_P_next")
    k.e("s_add_u32 s48, s48, 1"); k.e("s_bitcmp1_b32 s48, 0")
    k.e("s_nop 3")
    k.e("s_cbranch_scc1 L_P_vw")
    k.e(f"s_cmp_lt_u32 s{S_JOB}, {J_X0}"); k.e("s_cbranch_scc1 L_P_csq")
    k.e(f"s_cmp_lt_u32 s{S_JOB}, {J_W1}"); k.e("s_cbranch_scc1 L_P_tag")
    k.e(f"s_cmp_ge_u32 s{S_JOB}, {J_W2}"); k.e("s_cbranch_scc1 L_P_tag")
    k.e("s_mul_i32 s42, s46, %d" % (4608*4)); k.e("s_mul_i32 s40, s45, 2304"); k.e("s_add_u32 s42, s42, s40"); k.e(f"s_add_u32 s42, s42, 0x{CSP:x}")
    k.e("s_mul_i32 s40, s49, 384"); k.e("s_add_u32 s42, s42, s40")
    k.e(f"v_add_u32 v6, s39, v{L16}")
    k.e("s_waitcnt lgkmcnt(0)")
    k.e("ds_read_b128 v[28:31], v6")
    k.e("s_mov_b64 exec, 0xffffff")
    k.e("s_waitcnt lgkmcnt(0)")
    k.e(f"buffer_store_dwordx4 v[28:31], v{L16}, {WS}, s42 offen{WST}")
    k.e("s_mov_b64 exec, -1")
    k.e("s_branch L_P_tag")
    k.label("L_P_csq")
    k.e(f"s_mul_i32 s42, s{S_JOB}, 2304"); k.e(f"s_add_u32 s42, s42, 0x{CSQP:x}")
    k.e("s_mul_i32 s40, s49, 384"); k.e("s_add_u32 s42, s42, s40")
    k.e(f"v_add_u32 v6, s39, v{L16}")
    k.e("s_waitcnt lgkmcnt(0)")
    k.e("ds_read_b128 v[28:31], v6")
    k.e("s_mov_b64 exec, 0xffffff")
    k.e("s_waitcnt lgkmcnt(0)")
    k.e(f"buffer_store_dwordx4 v[28:31], v{L16}, {WS}, s42 offen sc1")
    k.e("s_mov_b64 exec, -1")
    k.label("L_P_tag")

def get_tag(k):
    lab = k.newlabel("L_tag")
    k.e("v_mov_b32 v8, 0")
    k.e("s_mov_b32 s38, 0x20000")
    k.label(lab)
    k.e("global_load_dwordx2 v[10:11], v8, s[34:35] sc1")
    k.e("s_waitcnt vmcnt(0)")
    k.e("v_readfirstlane_b32 s62, v10"); k.e("v_readfirstlane_b32 s63, v11")
    k.e("s_sub_u32 s38, s38, 1")
    k.e("s_cmp_eq_u32 s38, 0"); k.e(f"s_cbranch_scc1 {lab}_ok")
    k.e("s_and_b32 s36, s62, s63"); k.e("s_bitcmp1_b32 s36, 0"); k.e(f"s_cbranch_scc1 {lab}_ok")
    k.e("s_sleep 2"); k.e(f"s_branch {lab}")
    k.label(f"{lab}_ok")

def gen_main():
    name = NAME + "_kernel"
    k = K(); header(k, name, 256)
    k.e("s_load_dwordx2 s[22:23], s[0:1], 0")
    k.e("s_load_dwordx4 s[24:27], s[0:1], 8")
    k.e("s_load_dwordx4 s[28:31], s[0:1], 32")
    k.e("s_load_dwordx2 s[32:33], s[0:1], 48")
    k.e("s_load_dwordx4 s[4:7], s[0:1], 56")
    k.e("s_load_dwordx4 s[40:43], s[0:1], 72")
    k.e("s_memrealtime s[44:45]")
    wave_lane(k, V_L, S_W)
    k.e(f"v_lshlrev_b32 v{V_L16}, 4, v{V_L}")
    k.e(f"v_lshrrev_b32 v{V_G}, 4, v{V_L}"); k.e(f"v_and_b32 v{V_M}, 15, v{V_L}")
    k.e(f"s_cmp_lg_u32 s{S_W}, 0"); k.e("s_cbranch_scc1 L_M_nz")
    k.e(f"v_lshlrev_b32 v5, 3, v{V_L}"); k.e(f"v_add_u32 v5, {CNT}, v5"); k.e("v_mov_b32 v6, 0"); k.e("v_mov_b32 v7, 0"); k.e("ds_write_b64 v5, v[6:7]")
    k.label("L_M_nz")
    k.e("s_waitcnt lgkmcnt(0)")
    srd(k, 8, 42, 0, WSZ)
    srd(k, 12, 30, 0, 4608*2)
    srd(k, 16, 6, 0, XB)
    k.e("s_mov_b64 s[20:21], s[4:5]")
    k.e("s_mov_b64 s[34:35], s[40:41]")
    k.e(f"s_or_b32 s36, s2, s{S_W}"); k.e("s_cmp_lg_u32 s36, 0"); k.e("s_cbranch_scc1 L_M_nt")
    k.e("s_lshl_b32 s46, s45, 2"); k.e("s_lshr_b32 s47, s44, 31"); k.e("s_lshl_b32 s47, s47, 1"); k.e("s_or_b32 s46, s46, s47"); k.e("s_or_b32 s46, s46, 1")
    k.e("s_lshl_b32 s47, s44, 1"); k.e("s_or_b32 s47, s47, 1")
    k.e("v_mov_b32 v6, s47"); k.e("v_mov_b32 v7, s46"); k.e("v_mov_b32 v5, 0")
    k.e("s_mov_b64 exec, 1")
    k.e("global_store_dwordx2 v5, v[6:7], s[34:35] sc1")
    k.e("s_mov_b64 exec, -1")
    k.label("L_M_nt")
    if ENV("TLBW", 0):
        k.e(f"s_cmp_lg_u32 s{S_W}, 11"); k.e("s_cbranch_scc1 L_M_tw")
        k.e(f"v_lshlrev_b32 v5, 21, v{V_L}"); k.e("s_lshl_b32 s36, s2, 7"); k.e("v_add_u32 v5, s36, v5"); k.e("v_mov_b32 v6, 0")
        k.e(f"buffer_atomic_or v6, v5, {WS}, 0 offen sc1")
        k.label("L_M_tw")
    if ENV("CPRE", 0):
        k.e(f"s_cmp_lg_u32 s{S_W}, 11"); k.e("s_cbranch_scc1 L_M_cp")
        k.e("s_getpc_b64 s[46:47]")
        k.label("L_M_pc")
        k.e("s_lshr_b32 s36, s2, 3"); k.e("s_lshl_b32 s36, s36, 11")
        k.e(f"v_lshlrev_b32 v5, 5, v{V_L}"); k.e("v_add_u32 v5, s36, v5")
        k.e(f"s_mov_b32 s36, L_{name}_exit - L_M_pc - 4"); k.e("v_min_u32 v5, s36, v5")
        k.e("global_load_dword v0, v5, s[46:47]")
        k.label("L_M_cp")
    k.e("s_barrier")
    phase_P(k)
    get_tag(k)
    k.e(f"s_mov_b32 s{S_CNT}, {CNT}")
    if WREL:
        k.e(f"s_cmp_ge_u32 s{S_JOB}, {J_W1}"); k.e("s_cbranch_scc1 L_P_end")
    k.e(f"s_cmp_lt_u32 s{S_JOB}, {J_X0}"); k.e("s_cbranch_scc1 L_P_pq")
    publish(k, CP_DONE, 6, FLP, None, S_JOB, 8)
    k.e("s_branch L_P_end")
    k.label("L_P_pq")
    publish(k, CP_DONE, 6, FLQ, None, S_JOB, 8, repl=True)
    k.e("s_branch L_P_end")
    k.label("L_P_done")
    get_tag(k)
    k.label("L_P_end")
    if FS == "P": stamp(k, 1)
    def mapping2(Sx, ss, sr_, sidx):
        R = 32 // Sx; ng = 8 // Sx; lg = lambda x: x.bit_length() - 1
        k.e("s_and_b32 s36, s2, 7"); k.e("s_lshr_b32 s37, s2, 3")
        k.e(f"s_and_b32 s{ss}, s36, {ng-1}"); k.e(f"s_lshl_b32 s{ss}, s{ss}, {lg(Sx)}")
        k.e(f"s_and_b32 s38, s37, {Sx-1}"); k.e(f"s_add_u32 s{ss}, s{ss}, s38")
        k.e(f"s_lshr_b32 s{sr_}, s36, {lg(ng)}"); k.e(f"s_lshl_b32 s{sr_}, s{sr_}, {lg(R)}")
        k.e(f"s_lshr_b32 s{sidx}, s37, {lg(Sx)}"); k.e(f"s_add_u32 s{sr_}, s{sr_}, s{sidx}")
    mapping2(ENV('SX_L', 4), S_S, S_R, S_IDX)
    mapping2(SXC, S_SC, S_RC, S_IDX)
    rot18(k, S_IDX, S_ROT, 32 // SXC)
    sdivmod(k, 36, S_ROT2, S_IDX, 6, 32)
    if not ENV("ROT2", 0): k.e(f"s_mov_b32 s{S_ROT2}, 0")
    k.e(f"s_lshr_b32 s{S_CL}, s{S_W}, 2"); k.e(f"s_and_b32 s{S_WL}, s{S_W}, 3"); k.e(f"s_mov_b32 s{S_EARLY}, 0")
    k.e(f"s_mov_b32 s{S_LAY}, 0")
    k.e(f"s_mov_b32 s{S_XIN}, 0x{X0P:x}"); k.e(f"s_mov_b32 s{S_O}, 0x{O1:x}"); k.e(f"s_mov_b32 s{S_X1}, 0x{X1A:x}"); k.e(f"s_mov_b32 s{S_P}, 0x{P1:x}")
    k.e(f"s_mov_b32 s{S_FL}, 0x{FLG:x}"); k.e(f"s_mov_b32 s{S_CNT}, {CNT}")
    if ENV("PB4", 1): k.e("s_barrier")
    k.e(f"s_cmp_lg_u32 s{S_W}, 0"); k.e("s_cbranch_scc1 L_M_bar")
    k.e(f"s_lshl_b32 s36, s{S_R}, 1"); k.e("s_sub_u32 s36, s36, 1")
    k.e(f"v_add_u32 v9, s36, v{V_L}"); k.e("v_max_i32 v9, 0, v9")
    k.e("v_and_b32 v10, 7, v9"); k.e("v_lshrrev_b32 v9, 3, v9"); k.e("v_lshl_add_u32 v9, v10, 3, v9"); k.e(f"v_add_u32 v9, {J_X0}, v9")
    k.e("v_lshlrev_b32 v8, 7, v9")
    k.e(f"s_mov_b32 s37, 0x{FLP:x}")
    poll(k, 8, 37, 7, 10, ENV('PS2', 3))
    if EQ:
        lds_signal(k, CP_X, 10)
    k.label("L_M_bar")
    if FS == "P": stamp(k, 2)
    if EQ:
        k.e(f"s_cmp_lg_u32 s{S_W}, 9"); k.e("s_cbranch_scc1 L_M_nq")
        k.e("s_and_b32 s37, s2, 7"); k.e("s_lshl_b32 s37, s37, 6"); k.e(f"s_add_u32 s37, s37, {(FLQ-FLP)//128}"); k.e(f"v_add_u32 v44, s37, v{V_L}")
        k.e(f"s_add_u32 s37, s{S_S}, {J_WO - 8*54}"); k.e(f"v_lshlrev_b32 v45, 3, v{V_L}"); k.e("v_add_u32 v45, s37, v45")
        k.e(f"v_cmp_gt_u32 vcc, 54, v{V_L}")
        k.e("s_nop 1")
        k.e("v_cndmask_b32 v44, v45, v44, vcc"); k.e("v_lshlrev_b32 v44, 7, v44")
        k.e(f"s_mov_b32 s37, 0x{FLP:x}")
        sv = k.snapshot()
        poll(k, 44, 37, (1 << 62) - 1, 46, ENV('PS2', 3))
        k.restore(sv)
        k.e("s_mov_b32 s57, s36")
        lds_signal(k, CP_WQ - 0, 44)
        k.e("s_mov_b32 s36, s57")
        k.lg = []
        k.label("L_M_nq")
        lds_wait(k, CP_X, 1, 8, 1)
    else:
        k.e("s_barrier")
    if FS == "P": stamp(k, 3)
    k.label("L_layer")
    phase_A(k)
    npre = phase_B(k)
    phase_C(k, npre)
    phase_D(k)
    k.e(f"s_cmp_lg_u32 s{S_LAY}, 0"); k.e(f"s_cbranch_scc1 L_{name}_end")
    if STAMP and ENV("STAMP_L1", 0):
        k.e(f"s_branch L_{name}_end")
    k.e(f"s_mov_b32 s{S_LAY}, 1")
    k.e(f"s_cmp_lt_u32 s{S_CL}, {ENV('NEARLY', 0)}"); k.e(f"s_cselect_b32 s{S_EARLY}, 1, 0")
    k.e(f"s_mov_b32 s{S_XIN}, 0x{X2:x}"); k.e(f"s_mov_b32 s{S_O}, 0x{O2:x}"); k.e(f"s_mov_b32 s{S_X1}, 0x{X1B:x}"); k.e(f"s_mov_b32 s{S_P}, 0x{P2:x}")
    k.e(f"s_mov_b32 s{S_FL}, 0x{FLG+FLG_LAYER:x}"); k.e(f"s_mov_b32 s{S_CNT}, {CNT+128}")
    if STAMP: stamp(k, 0)
    k.e("s_branch L_layer")
    k.label(f"L_{name}_end")
    if STAMP:
        k.e("s_waitcnt vmcnt(0)")
        k.e(f"s_lshl_b32 s36, s{S_W}, 6"); k.e("v_mov_b32 v0, s36")
    stamp_end(k, KIDX[0]); KIDX[0] += 1
    k.label(f"L_{name}_exit")
    k.e("s_endpgm")
    return name, k.text(), desc(name, 168), (256, 768, LDS_TOTAL)

DOC = """;
"""
def main(out):
    n, t, d, (g, b, lds) = gen_main()
    ref = open(f"cdna_kernels/{NAME}.s.ref").read().splitlines()
    hdr = [l for l in ref if l.startswith(";") and "@launch" not in l and "Override" not in l and "grid=ceil" not in l]
    s = "\n".join(hdr) + "\n"
    if ENV("ASLIST", 1): s += f"; @launch kernel={n} grid=({g},1,1) block=({b},1,1) lds={lds}\n"
    else: s += f"; @launch grid=({g},1,1) block=({b},1,1) lds={lds}\n"
    s += DOC
    s += '.amdgcn_target "amdgcn-amd-amdhsa--gfx950"\n.text\n' + t + d
    open(out, "w").write(s)

if __name__ == "__main__":
    main(sys.argv[1] if len(sys.argv) > 1 else f"cdna_kernels/{NAME}.s")
```

```python
import sys, struct, math, os
from asmlib import *

NAME = "interleave_layers__sliding_local_dilated__dense_activation_gelu__prompt"
XB = 2048 * 1152
TILEB = 73728
WQF, WOF, WFF = 0x0, 0x200000, 0x300000
CS1, CSQ = 0xE00000, 0xE10000
ST0, ST1A, ST2, ST1B = 0xE40000, 0xE80000, 0xEC0000, 0xF00000
X0P = 0x4C00000
O1, X1A, X2, O2, X1B, P1, P2 = 0x1000000, 0x1400000, 0x1800000, 0x1C00000, 0x2000000, 0x2400000, 0x3800000
WQF_SZ, WOF_SZ, WFF_SZ = 8*14*18*1024, 8*5*18*1024, 8*12*36*3072
ST_SZ = 32*8*64*8
ENV = lambda n, d: int(os.environ.get(n, str(d)))
STAMP = ENV("STAMP", 0)
STAMP_BASE = 0x8000000

def f32(x):
    return "0x%08x" % struct.unpack("<I", struct.pack("<f", x))[0]

def srd(k, d, b, add, size):
    if add:
        k.e(f"s_add_u32 s{d}, s{b}, 0x{add:x}")
        k.e(f"s_addc_u32 s{d+1}, s{b+1}, 0")
    else:
        k.e(f"s_mov_b32 s{d}, s{b}")
        k.e(f"s_mov_b32 s{d+1}, s{b+1}")
    k.e(f"s_mov_b32 s{d+2}, 0x{size:x}")
    k.e(f"s_mov_b32 s{d+3}, 0x20000")

def stamp(k, i):
    if not STAMP: return
    k.e("s_waitcnt lgkmcnt(0)"); k.lg = []
    k.e(f"s_memtime s[84:85]")
    k.e(f"s_memrealtime s[86:87]")
    k.e("s_waitcnt lgkmcnt(0)")
    k.e(f"s_mov_b32 s{64+i}, s84"); k.e(f"s_mov_b32 s{74+i}, s86")
def stamp_begin(k):
    if not STAMP: return
    for i in range(1, 9):
        k.e(f"s_mov_b32 s{64+i}, 0"); k.e(f"s_mov_b32 s{74+i}, 0")
    stamp(k, 0)
def stamp_end(k, kidx):
    if not STAMP: return
    k.e("s_waitcnt vmcnt(0)")
    stamp(k, 8)
    k.e("s_load_dwordx2 s[88:89], s[0:1], 80")
    k.e("s_getreg_b32 s90, hwreg(HW_REG_XCC_ID)")
    k.e("s_waitcnt lgkmcnt(0)")
    k.e("s_mov_b64 exec, 1")
    k.e(f"s_add_u32 s88, s88, 0x{STAMP_BASE:x}"); k.e("s_addc_u32 s89, s89, 0")
    k.e(f"s_add_u32 s91, s2, {kidx*512}"); k.e("s_lshl_b32 s91, s91, 4")
    k.e("v_lshrrev_b32 v1, 6, v0"); k.e("v_add_u32 v1, s91, v1"); k.e("v_lshlrev_b32 v1, 7, v1")
    vals = [64+i for i in range(9)] + [90] + [74+i for i in range(9)] + [90]
    for j, sreg in enumerate(vals):
        k.e(f"v_mov_b32 v{2+j}, s{sreg}")
    for j in range(0, 20, 4):
        k.e(f"global_store_dwordx4 v1, v[{2+j}:{5+j}], s[88:89] offset:{4*j}")

KIDX = [0]
def header(k, name, nwg):
    k.lines.append(f".globl {name}\n.p2align 8\n.type {name},@function\n{name}:")
    k.e(f"s_cmp_ge_u32 s2, {nwg}")
    k.e(f"s_cbranch_scc1 L_{name}_exit")
    stamp_begin(k)
def footer(k, name):
    k.label(f"L_{name}_end")
    stamp_end(k, KIDX[0]); KIDX[0] += 1
    k.label(f"L_{name}_exit")
    k.e("s_endpgm")

def desc(name, vgpr, sgpr=96):
    acc = (vgpr + 3) // 4 * 4
    return f""".section .rodata,"a"
.p2align 6
.amdhsa_kernel {name}
  .amdhsa_next_free_vgpr {vgpr}
  .amdhsa_next_free_sgpr {sgpr}
  .amdhsa_accum_offset {acc}
  .amdhsa_group_segment_fixed_size 0
  .amdhsa_kernarg_size 88
  .amdhsa_user_sgpr_count 2
  .amdhsa_user_sgpr_kernarg_segment_ptr 1
  .amdhsa_system_sgpr_workgroup_id_x 1
  .amdhsa_float_denorm_mode_32 3
.end_amdhsa_kernel
.text
"""

def divmod_const(k, q, rem, x, d, nmax, stmp):
    m, sh = magic(d, nmax)
    k.e(f"s_mov_b32 s{stmp}, {m}")
    k.e(f"v_mul_u32_u24 v{q}, s{stmp}, v{x}")
    k.e(f"v_lshrrev_b32 v{q}, {sh}, v{q}")
    if rem is not None:
        if d <= 64:
            k.e(f"v_mul_u32_u24 v{rem}, {d}, v{q}")
        else:
            k.e(f"v_mul_u32_u24 v{rem}, 0x{d:x}, v{q}")
        k.e(f"v_sub_u32 v{rem}, v{x}, v{rem}")

def sdivmod(k, q, rem, x, d, nmax):
    m, sh = magic(d, nmax)
    k.e(f"s_mul_i32 s{q}, s{x}, {m}"); k.e(f"s_lshr_b32 s{q}, s{q}, {sh}")
    if rem is not None:
        k.e(f"s_mul_i32 s{rem}, s{q}, {d}"); k.e(f"s_sub_u32 s{rem}, s{x}, s{rem}")

MAP = dict(attn=ENV("SX_A", 4), wo=ENV("SX_B", 8), ffn=ENV("SX_C", 2))
def mapping(k, Sx, ss=15, sr_=16, sidx=12):
    R = 32 // Sx; ng = 8 // Sx
    lg = lambda x: x.bit_length() - 1
    k.e("s_and_b32 s10, s2, 7")
    k.e("s_lshr_b32 s11, s2, 3")
    k.e(f"s_and_b32 s{ss}, s10, {ng-1}")
    k.e(f"s_lshl_b32 s{ss}, s{ss}, {lg(Sx)}")
    k.e(f"s_and_b32 s13, s11, {Sx-1}")
    k.e(f"s_add_u32 s{ss}, s{ss}, s13")
    k.e(f"s_lshr_b32 s{sr_}, s10, {lg(ng)}")
    k.e(f"s_lshl_b32 s{sr_}, s{sr_}, {lg(R)}")
    k.e(f"s_lshr_b32 s{sidx}, s11, {lg(Sx)}")
    k.e(f"s_add_u32 s{sr_}, s{sr_}, s{sidx}")

def rot18(k, sidx, srot, R):
    if not ENV("ROT", 0):
        k.e(f"s_mov_b32 s{srot}, 0"); return
    if R <= 16:
        mult = {4: 4, 8: 2, 16: 1}[R]
        k.e(f"s_mul_i32 s{srot}, s{sidx}, {mult}")
    else:
        k.e(f"s_sub_u32 s{srot}, s{sidx}, 18"); k.e(f"s_cmp_ge_u32 s{sidx}, 18"); k.e(f"s_cselect_b32 s{srot}, s{srot}, s{sidx}")

def wave_lane(k, vlane, swave):
    k.e(f"v_lshrrev_b32 v{vlane}, 6, v0")
    k.e("s_nop 0")
    k.e(f"v_readfirstlane_b32 s{swave}, v{vlane}")
    k.e(f"v_and_b32 v{vlane}, 63, v0")

def touch(k, srd_, L, n_instr, swave_idx, nwaves, per_slab, slab_stride, sbase, nslab, t, dummy, gran=64):
    t0, t1, t2 = t[:3]
    nmax = 32 * nwaves * n_instr * 64
    k.e(f"s_lshr_b32 s58, s2, 3"); k.e(f"s_mul_i32 s58, s58, {nwaves}"); k.e(f"s_add_u32 s58, s58, s{swave_idx}"); k.e(f"s_mul_i32 s58, s58, {n_instr*64}")
    for j in range(n_instr):
        k.e(f"v_add_u32 v{t0}, s58, v{L}")
        if j: k.e(f"v_add_u32 v{t0}, {64*j}, v{t0}")
        m, sh = magic2(per_slab, nmax)
        k.e(f"s_mov_b32 s59, {m}"); k.e(f"v_mul_hi_u32 v{t1}, v{t0}, s59")
        if sh: k.e(f"v_lshrrev_b32 v{t1}, {sh}, v{t1}")
        k.e(f"s_mov_b32 s59, {per_slab}"); k.e(f"v_mul_u32_u24 v{t2}, s59, v{t1}"); k.e(f"v_sub_u32 v{t0}, v{t0}, v{t2}")
        k.e(f"s_mov_b32 s59, {slab_stride}"); k.e(f"v_mul_u32_u24 v{t2}, s59, v{t1}")
        k.e(f"v_lshl_add_u32 v{t0}, v{t0}, {gran.bit_length()-1}, v{t2}")
        k.e(f"v_cmp_gt_u32 vcc, {nslab}, v{t1}")
        k.e(f"v_mov_b32 v{t2}, 0x7ff00000")
        k.e("s_nop 0")
        k.e(f"v_cndmask_b32 v{t0}, v{t2}, v{t0}, vcc")
        k.vmem(f"buffer_load_dword v{dummy}, v{t0}, s[{srd_}:{srd_+3}], s{sbase} offen", "touch")

def magic2(d, nmax):
    for sh in range(0, 12):
        m = (1 << (32 + sh)) // d + 1
        if m >= (1 << 32): continue
        if all((x * m) >> (32 + sh) == x // d for x in range(0, nmax, 1)):
            return m, sh
    raise ValueError

def dma(k, m0expr, voff, srd_, soff, tag=None):
    for l in m0expr: k.e(l)
    k.e("s_nop 0")
    k.vmem(f"buffer_load_dwordx4 v{voff}, s[{srd_}:{srd_+3}], {soff} offen{os.environ.get('PLD', ' nt')} lds", tag)

CSQP = 0xEA0000
CSP = 0xE40000
FSH, GSH = 7, 10
FLG = 0xF00000
FLG_LAYER = 256 << GSH
F_A, F_B, F_C, F_D = 0, 32 << GSH, 64 << GSH, 160 << GSH
FLP = FLG + 2*FLG_LAYER
J_WQ, J_X0, J_WO, J_W1, J_W2, J_END = 0, 56, 120, 184, 328, 472

def gemm_loop(k, nks, order, acc, bbuf, aslot, bread, ks0, nm, after=None, pre=None, BD=1, atag=None, gate=None):
    atag = atag or (lambda ks: ("a", ks0 + ks))
    nb = BD + 1
    for d in range(min(BD, nks)):
        if gate: gate(d)
        for mi in range(nm): bread(d, mi, bbuf(d % nb, mi))
    if pre: pre()
    for ks in range(nks):
        late = gate is not None and ks + BD < nks and gate(ks + BD, True)
        if ks + BD < nks and not late:
            for mi in range(nm): bread(ks + BD, mi, bbuf((ks + BD) % nb, mi))
        k.wait(vm=[atag(ks)], lg=[("b", ks)])
        for (mi, t) in order:
            c = "0" if ks == 0 else vr(acc(mi, t), 4)
            k.e(f"v_mfma_f32_16x16x32_bf16 {vr(acc(mi,t),4)}, {vr(aslot(ks0+ks,t),4)}, {vr(bbuf(ks % nb,mi),4)}, {c}")
        if after: after(ks)
        if late:
            gate(ks + BD)
            for mi in range(nm): bread(ks + BD, mi, bbuf((ks + BD) % nb, mi))


def gemm_loop_sp(k, nks, order, acc, bbuf, aslot, bread, ks0, nm, after=None, gate=None):
    if gate: gate(0)
    for mi in range(nm): bread(0, mi, bbuf(0, mi))
    pend = []
    for ks in range(nks):
        late = gate is not None and ks + 1 < nks and gate(ks + 1, True)
        k.wait(vm=[("a", ks0 + ks)], lg=[("b", ks)])
        fill = []
        if ks + 1 < nks and not late:
            fill += [("b", mi) for mi in range(nm)]
        fill2 = [("c", c) for c in pend]; pend = []
        seq = []
        while fill or fill2:
            if fill: seq.append(fill.pop(0))
            if fill2: seq.append(fill2.pop(0))
        n = len(order)
        pos = {}
        for j, it in enumerate(seq):
            pos.setdefault(min(n-1, (j * (n-1)) // max(1, len(seq))), []).append(it)
        for j, (mi, t) in enumerate(order):
            c = "0" if ks == 0 else vr(acc(mi, t), 4)
            k.e(f"v_mfma_f32_16x16x32_bf16 {vr(acc(mi,t),4)}, {vr(aslot(ks0+ks,t),4)}, {vr(bbuf(ks % 2,mi),4)}, {c}")
            for kind, x in pos.get(j, []):
                if kind == "b": bread(ks + 1, x, bbuf((ks + 1) % 2, x))
                else:
                    k.lines += x[0]; k.vm += x[1]
        if after:
            l0 = len(k.lines); v0 = len(k.vm)
            after(ks)
            lines = k.lines[l0:]; tags = k.vm[v0:]
            del k.lines[l0:]; del k.vm[v0:]
            cur = []; ti = 0
            for l in lines:
                cur.append(l)
                if "buffer_load" in l:
                    pend.append([cur, [tags[ti]]]); ti += 1; cur = []
            if cur:
                if pend: pend[-1][0] += cur
                else: k.lines += cur
            if late or ks == nks - 1:
                for x in pend:
                    k.lines += x[0]; k.vm += x[1]
                pend = []
        if late:
            gate(ks + 1)
            for mi in range(nm): bread(ks + 1, mi, bbuf((ks + 1) % 2, mi))

FS = os.environ.get("FS", "")
CPA = ENV("CPA", 0)
RW = ENV("RW", 2)
GX = ENV("GX", 1)
GXC = ENV("GXC", 1)
SLC = ENV("SLC", 0)
assert ENV("ROT", 0) == 0
A_HL = 73728
A_QK = 92160
QP, QPL = 48, 3968
TSTR = 4 * QPL
A_VP = A_QK + 2*TSTR
VPP, VPL = 80, 6784
A_ST = A_VP + 4*VPL
A_PM, A_PH = A_QK, A_QK + 6144
B_XB = 73728
C_HB = 73728
C_CS = 155648
C_B1 = C_CS + 3072
A_CQ = C_B1 + 2048
C_ST = 147456
A_PQ = A_QK + 12288
C_PM = 98304
A_SCR = A_ST + 640
CNT = 163328
LDS_TOTAL = 163840
CA_ST, CA_DONE, CB_DONE, CC_ST, CC_W1, CC_H0, CC_DONE, CD_DONE, CC_K2, CD_GO, CA_GO, CA_W, CA_X, CC_X = 0, 1, 2, 3, 4, 5, 8, 11, 14, 16, 20, 15, 24, 28
S_CL, S_WL, S_EARLY = 60, 61, 57
WSZ = 0x5000000
SXC = MAP["ffn"]

S_W, S_LAY, S_XIN, S_O, S_X1, S_P, S_FL, S_R, S_S, S_RC, S_SC, S_IDX, S_CNT, S_ROT, S_ROT2 = 3, 22, 23, 24, 25, 26, 28, 29, 30, 31, 32, 33, 27, 34, 35
WS = "s[8:11]"
WSC = os.environ.get("WSC", " sc1")
WREL = ENV("WREL", 0)
WST = "" if WREL else " sc1"
FLQ = FLP + 65536
S_SLOT, S_JOB, S_LB = 56, 51, 50
CP_WQ = 27
CP_X = 31
EQ = ENV('EQ', 0)
CP_LD, CP_DONE = 64, 66
V_L, V_L16, V_G, V_M = 1, 2, 3, 4
AR, EX = 88, 160

def lds_signal(k, slot, vt, byclass=False):
    k.e(f"s_add_u32 s36, s{S_CNT}, {4*slot}")
    if byclass:
        k.e(f"s_lshl_b32 s37, s{S_CL}, 2"); k.e("s_add_u32 s36, s36, s37")
    k.e(f"v_mov_b32 v{vt}, s36"); k.e(f"v_mov_b32 v{vt+1}, 1")
    k.e("s_mov_b64 exec, 1")
    k.lds(f"ds_add_u32 v{vt}, v{vt+1}", "cnt")
    k.e("s_mov_b64 exec, -1")

def lds_wait(k, slot, n, vt, sleep=2, byclass=False):
    lab = k.newlabel("L_lw")
    k.e(f"s_add_u32 s36, s{S_CNT}, {4*slot}")
    if byclass:
        k.e(f"s_lshl_b32 s37, s{S_CL}, 2"); k.e("s_add_u32 s36, s36, s37")
    k.e(f"v_mov_b32 v{vt}, s36")
    k.label(lab)
    k.e(f"ds_read_b32 v{vt+1}, v{vt}")
    k.e("s_waitcnt lgkmcnt(0)"); k.lg = []
    k.e(f"v_readfirstlane_b32 s36, v{vt+1}")
    k.e("s_nop 3")
    k.e(f"s_cmp_ge_u32 s36, {n}"); k.e(f"s_cbranch_scc1 {lab}_ok")
    if ENV("LS", -1) >= 0: sleep = min(sleep, ENV("LS", -1))
    if ENV("LSM", 0): sleep = sleep * ENV("LSM", 0)
    k.e(f"s_sleep {sleep}")
    k.e(f"s_branch {lab}")
    k.label(f"{lab}_ok")

def SC(name):
    return "" if name in os.environ.get("NOSC", "").split(",") else " sc1"
def publish(k, slot, n, fbase, s_r, s_s, vt, byclass=False, sc=" sc1", repl=False):
    lab = k.newlabel("L_pub")
    k.e(f"s_add_u32 s36, s{S_CNT}, {4*slot}")
    if s_r is not None:
        k.e(f"s_lshl_b32 s37, s{s_r}, {GSH}"); k.e(f"s_lshl_b32 s38, s{s_s}, {FSH}"); k.e("s_add_u32 s37, s37, s38")
        k.e(f"s_add_u32 s37, s37, s{S_FL}"); k.e(f"s_add_u32 s37, s37, {fbase}")
    else:
        k.e(f"s_lshl_b32 s37, s{s_s}, {FSH}"); k.e(f"s_add_u32 s37, s37, 0x{fbase:x}")
        k.e(f"s_lshl_b32 s38, s{S_SLOT}, 2"); k.e("s_add_u32 s36, s36, s38")
    if byclass:
        k.e(f"s_lshl_b32 s38, s{S_CL}, 2"); k.e("s_add_u32 s36, s36, s38")
        k.e(f"s_lshl_b32 s38, s{S_CL}, {GSH+5}"); k.e("s_add_u32 s37, s37, s38")
    k.e("s_waitcnt vmcnt(0)"); k.vm = []
    k.e(f"v_mov_b32 v{vt}, s36"); k.e(f"v_mov_b32 v{vt+1}, 1")
    k.e("s_mov_b64 exec, 1")
    k.e(f"ds_add_rtn_u32 v{vt}, v{vt}, v{vt+1}")
    k.e("s_waitcnt lgkmcnt(0)"); k.lg = []
    k.e(f"v_readfirstlane_b32 s36, v{vt}")
    if repl: k.e("s_mov_b64 exec, 0xff")
    k.e(f"v_mov_b32 v{vt}, s62"); k.e(f"v_mov_b32 v{vt+1}, s63"); k.e(f"v_lshlrev_b32 v{vt+2}, 13, v{V_L}")
    k.e("s_nop 0")
    k.e(f"s_cmp_lg_u32 s36, {n-1}"); k.e(f"s_cbranch_scc1 {lab}")
    k.e(f"buffer_store_dwordx2 {vr(vt,2)}, v{vt+2}, {WS}, s37 offen{sc}")
    k.label(lab)
    k.e("s_mov_b64 exec, -1")

def poll(k, voff, soff, mask, vt, slp=None):
    assert vt % 2 == 0
    lab = k.newlabel("L_aw")
    k.e(f"s_mov_b32 exec_lo, 0x{mask & 0xffffffff:x}"); k.e(f"s_mov_b32 exec_hi, 0x{mask >> 32:x}")
    k.e("s_mov_b32 s38, 0x20000")
    k.label(lab)
    k.e(f"v_mov_b32 v{vt}, 0"); k.e(f"v_mov_b32 v{vt+1}, 0")
    k.e(f"buffer_atomic_or_x2 {vr(vt,2)}, v{voff}, {WS}, s{soff} offen sc0 sc1")
    k.e("s_waitcnt vmcnt(0)"); k.vm = []
    k.e(f"v_cmp_ne_u64 vcc, s[62:63], {vr(vt,2)}")
    k.e("s_sub_u32 s38, s38, 1")
    k.e("s_nop 3")
    k.e(f"s_cbranch_vccz {lab}_ok")
    k.e("s_cmp_eq_u32 s38, 0"); k.e(f"s_cbranch_scc1 {lab}_ok")
    k.e(f"s_sleep {ENV('PSLEEP', 3) if slp is None else slp}")
    k.e(f"s_branch {lab}")
    k.label(f"{lab}_ok")
    k.e("s_mov_b64 exec, -1")

def await_flags(k, fbase, s_r, vt, own=None):
    lab = k.newlabel("L_af")
    k.e(f"s_cmp_lg_u32 s{S_W}, {ENV('POLLW', 0)}"); k.e(f"s_cbranch_scc1 {lab}")
    lds_wait(k, own[0], own[1], vt, 1)
    k.e(f"s_lshl_b32 s37, s{s_r}, {GSH}"); k.e(f"s_add_u32 s37, s37, s{S_FL}"); k.e(f"s_add_u32 s37, s37, {fbase}")
    k.e(f"v_lshlrev_b32 v{vt}, {FSH}, v{V_L}")
    sv = k.snapshot()
    poll(k, vt, 37, 0xff, vt+2)
    k.restore(sv)
    k.label(lab)
    k.e("s_barrier")

def stats_acc(k, r4, va, first, sones):
    for j in range(4):
        c0 = "0" if (first and j == 0) else f"v{va}"
        c1 = "0" if (first and j == 0) else f"v{va+1}"
        k.e(f"v_dot2_f32_bf16 v{va}, v{r4+j}, s{sones}, {c0}")
        k.e(f"v_dot2_f32_bf16 v{va+1}, v{r4+j}, v{r4+j}, {c1}")

def stats_combine(k, src, R, vt, dst, halo, NP=12):
    k.e(f"v_lshlrev_b32 v{vt}, 3, v{V_L}"); k.e(f"v_add_u32 v{vt+1}, {src}, v{vt}")
    for p in range(NP): k.e(f"ds_read_b64 {vr(R+2*p,2)}, v{vt+1} offset:{512*p}")
    k.e("s_waitcnt lgkmcnt(0)")
    n = NP
    while n > 1:
        h = n // 2
        for j in range(h):
            k.e(f"v_add_f32 v{R+2*j}, v{R+2*j}, v{R+2*(n-1-j)}"); k.e(f"v_add_f32 v{R+2*j+1}, v{R+2*j+1}, v{R+2*(n-1-j)+1}")
        n -= h
    if halo:
        for op in ("v_permlane32_swap_b32", "v_permlane16_swap_b32"):
            k.e(f"v_mov_b32 v{R+2}, v{R}"); k.e(f"v_mov_b32 v{R+3}, v{R+1}")
            k.e("s_nop 1")
            k.e(f"{op} v{R}, v{R+2}"); k.e(f"{op} v{R+1}, v{R+3}")
            k.e("s_nop 1")
            k.e(f"v_add_f32 v{R}, v{R}, v{R+2}"); k.e(f"v_add_f32 v{R+1}, v{R+1}, v{R+3}")
        k.e(f"v_lshlrev_b32 v{vt}, 3, v{V_M}")
    k.e(f"v_mul_f32 v{R}, {f32(1/576)}, v{R}")
    k.e(f"v_mul_f32 v{R+1}, {f32(1/576)}, v{R+1}")
    k.e(f"v_fma_f32 v{R+1}, -v{R}, v{R}, v{R+1}")
    k.e(f"v_max_f32 v{R+1}, 0, v{R+1}")
    k.e(f"v_add_f32 v{R+1}, {f32(1e-5)}, v{R+1}")
    k.e(f"v_rsq_f32 v{R+2}, v{R+1}")
    k.e(f"v_add_u32 v{vt}, {dst}, v{vt}")
    k.e(f"v_mul_f32 v{R+3}, v{R}, v{R+2}")
    k.e(f"v_sub_f32 v{R+3}, 0, v{R+3}")
    k.e(f"ds_write_b64 v{vt}, {vr(R+2,2)}")
    k.e("s_waitcnt lgkmcnt(0)")

A_TILES = [9, 11, 4, 6, 0, 2, 13, 8, 0, 0, 0, 0]
def a_tile_setup(k):
    tab = sum(t << (4*i) for i, t in enumerate(A_TILES))
    k.e(f"s_mov_b32 s40, 0x{tab & 0xffffffff:x}"); k.e(f"s_mov_b32 s41, 0x{tab >> 32:x}")
    k.e(f"s_lshl_b32 s42, s{S_W}, 2"); k.e("s_lshr_b64 s[40:41], s[40:41], s42"); k.e("s_and_b32 s40, s40, 15")
    k.e(f"s_mul_i32 s41, s{S_S}, 14"); k.e("s_add_u32 s41, s41, s40")
    k.e(f"s_mul_i32 s42, s{S_W}, {2*6912}"); k.e(f"s_mul_i32 s43, s{S_S}, 288"); k.e("s_add_u32 s42, s42, s43"); k.e(f"s_add_u32 s42, s42, 0x{CSQP:x}")
    k.e("s_mul_i32 s41, s41, %d" % (18*1024))
    if WQF: k.e(f"s_add_u32 s41, s41, 0x{WQF:x}")
DA = ENV("DA", 6)
def a_load1(k, i):
    k.e(f"s_add_u32 s43, s41, {i*1024}")
    k.vmem(f"buffer_load_dwordx4 {vr(AR+4*i,4)}, v0, {WS}, s43 offen{WSC}", ("a", i))
def a_load2(k, i):
    k.e(f"s_add_u32 s43, s41, {i*1024}"); k.e(f"s_add_u32 s44, s41, {(18+i)*1024}")
    k.vmem(f"buffer_load_dwordx4 {vr(AR+8*(i%9),4)}, v{V_L16}, {WS}, s43 offen{WSC}", ("a0", i))
    k.vmem(f"buffer_load_dwordx4 {vr(AR+8*(i%9)+4,4)}, v{V_L16}, {WS}, s44 offen{WSC}", ("a", i))
def a_prefetch(k, lo1, hi1, lo2, hi2, cs):
    lab = k.newlabel("L_apf")
    sv = k.snapshot()
    if cs:
        k.e(f"s_cmp_lt_u32 s{S_W}, 9"); k.e("s_cselect_b32 s43, 0, 0x70000000"); k.e(f"s_cmp_eq_u32 s{S_LAY}, 0"); k.e("s_cselect_b32 s43, s43, 0x70000000")
        divmod_const(k, 6, None, V_L, 18, 64, 44)
        k.e(f"v_mul_u32_u24 v6, 0x{2304-288:x}, v6"); k.e(f"v_add_u32 v6, v6, v{V_L16}")
        k.e(f"v_or_b32 v6, s43, v6")
        k.e(f"s_add_u32 s43, s42, 6912")
        k.e(f"buffer_load_dwordx4 {vr(EX,4)}, v6, {WS}, s42 offen{WSC}")
        k.e(f"buffer_load_dwordx4 {vr(EX+4,4)}, v6, {WS}, s43 offen{WSC}")
    k.e(f"s_cmp_lt_u32 s{S_W}, 6"); k.e(f"s_cbranch_scc1 {lab}_d")
    k.e(f"s_cmp_ge_u32 s{S_W}, 8"); k.e(f"s_cbranch_scc1 {lab}_f")
    for i in range(lo1, hi1): a_load1(k, i)
    k.e(f"s_branch {lab}_e")
    k.label(f"{lab}_f")
    for i in range(lo1, min(hi1, 9)): b_load(k, i)
    k.e(f"s_branch {lab}_e")
    k.label(f"{lab}_d")
    for i in range(lo2, hi2): a_load2(k, i)
    k.label(f"{lab}_e")
    k.restore(sv)

def b_setup(k):
    k.e(f"s_min_u32 s59, s{S_W}, 9")
    k.e(f"s_cmp_ge_u32 s59, 5"); k.e("s_cselect_b32 s45, 1, 0"); k.e("s_mul_i32 s46, s45, 5"); k.e(f"s_sub_u32 s46, s59, s46")
    k.e(f"s_mul_i32 s58, s{S_S}, 5"); k.e("s_add_u32 s58, s58, s46"); k.e("s_mul_i32 s58, s58, %d" % (18*1024))
    k.e("s_mul_i32 s59, s45, 9216"); k.e("s_add_u32 s58, s58, s59"); k.e(f"s_add_u32 s58, s58, 0x{WOF:x}")
def b_load(k, i):
    if i and i % 4 == 0: k.e(f"s_add_u32 s58, s58, 4096")
    k.vmem(f"buffer_load_dwordx4 {vr(124+4*i,4)}, v{V_L16}, {WS}, s58 offen offset:{(i%4)*1024}{WSC}", ("wb", i))

def c_stream_init(k):
    k.e(f"s_mul_i32 s47, s{S_SC}, 12"); k.e(f"s_add_u32 s47, s47, s{S_W}"); k.e("s_mul_i32 s47, s47, %d" % (36*3072)); k.e(f"s_add_u32 s47, s47, 0x{WFF:x}")
    k.e(f"s_mul_i32 s48, s{S_ROT}, 3072"); k.e("s_add_u32 s48, s48, s47")
    k.e("s_add_u32 s49, s47, %d" % (18*3072))
def c_aload(k, i, tg="a"):
    if i >= 18 and (i - 18) % 6 == 0:
        k.e("s_mov_b32 s47, s49"); k.e(f"s_mul_i32 s48, s{S_ROT2}, 3072"); k.e("s_add_u32 s48, s48, s47"); k.e("s_add_u32 s49, s47, %d" % (6*3072))
    slot = i % 6
    for t in range(3):
        k.vmem(f"buffer_load_dwordx4 {vr(AR+12*slot+4*t,4)}, v{V_L16}, {WS}, s48 offen offset:{1024*t}{WSC}", (tg, i) if t == 2 else (tg + "_", i))
    k.e("s_add_u32 s48, s48, 3072"); k.e("s_cmp_eq_u32 s48, s49"); k.e("s_cselect_b32 s48, s47, s48")

def touch_w(k, swidx, nwaves, t, dummy):
    G = ENV("TGRAN", 128)
    total = SXC * 12 * 36 * 3072 // G
    ni = -(-total // (32 * nwaves * 64))
    ng = 8 // SXC
    k.e(f"s_and_b32 s36, s2, {ng-1}"); k.e(f"s_mul_i32 s36, s36, {SXC*12*36*3072}"); k.e(f"s_add_u32 s36, s36, 0x{WFF:x}")
    k.e("s_lshr_b32 s37, s2, 3"); k.e(f"s_mul_i32 s37, s37, {nwaves}"); k.e(f"s_add_u32 s37, s37, s{swidx}"); k.e(f"s_mul_i32 s37, s37, {ni*64}")
    k.e(f"s_mov_b32 s38, {total}")
    for j in range(ni):
        k.e(f"v_add_u32 v{t}, s37, v{V_L}")
        if j: k.e(f"v_add_u32 v{t}, {64*j}, v{t}")
        k.e(f"v_min_u32 v{t}, s38, v{t}")
        k.e(f"v_lshlrev_b32 v{t}, {G.bit_length()-1}, v{t}")
        k.vmem(f"buffer_load_dword v{dummy}, v{t}, {WS}, s36 offen", "touch")

def phase_A(k):
    k.c("================ phase A")
    ACC, BB = 8, 28
    VB1, VB2, VH = 5, 6, 7
    if FS in ("", "A"): stamp(k, 1)
    k.e(f"s_mul_i32 s39, s{S_R}, {TILEB}"); k.e(f"s_add_u32 s39, s39, s{S_XIN}")
    k.e(f"s_mul_i32 s36, s{S_W}, 6144"); k.e("s_add_u32 s37, s39, s36"); k.e("s_add_u32 s38, s37, 4096")
    k.vm = []
    for i in range(6):
        k.vmem(f"buffer_load_dwordx4 {vr(8+4*i,4)}, v{V_L16}, {WS}, s{37 if i < 4 else 38} offen offset:{(i%4)*1024} sc1", ("x", i))
    k.e(f"v_lshlrev_b32 v{VB1}, 10, v{V_G}"); k.e(f"v_lshl_add_u32 v{VB1}, v{V_M}, 4, v{VB1}")
    k.e(f"s_cmp_eq_u32 s{S_R}, 0"); k.e("s_cselect_b32 s38, 0x70000000, 0")
    k.e(f"v_add_u32 v{VH}, s38, v{VB1}")
    k.e(f"s_mul_i32 s50, s{S_CL}, 6"); k.e(f"s_add_u32 s50, s50, s{S_WL}")
    k.e("s_lshl_b32 s37, s50, 12"); k.e("s_add_u32 s37, s37, s39"); k.e(f"s_sub_u32 s37, s37, {TILEB-768}")
    k.vmem(f"buffer_load_dwordx4 {vr(32,4)}, v{VH}, {WS}, s37 offen sc1", ("x", 6))
    k.e(f"s_cmp_ge_u32 s{S_WL}, 2"); k.e("s_cselect_b32 s38, 0x70000000, 0"); k.e(f"v_or_b32 v{VB2}, s38, v{VH}")
    k.e(f"s_add_u32 s37, s37, {4*4096}")
    k.vmem(f"buffer_load_dwordx4 {vr(36,4)}, v{VB2}, {WS}, s37 offen sc1", ("x", 7))
    a_tile_setup(k)
    PA = 0
    E1, E2 = 18, 9
    b_setup(k)
    c_stream_init(k)
    if not EQ:
        k.e(f"s_cmp_lg_u32 s{S_LAY}, 0"); k.e("s_cbranch_scc1 L_A_np")
        k.e(f"s_cmp_lg_u32 s{S_W}, 9"); k.e("s_cbranch_scc1 L_A_np")
        k.e("s_and_b32 s37, s2, 7"); k.e("s_lshl_b32 s37, s37, 6"); k.e(f"s_add_u32 s37, s37, {(FLQ-FLP)//128}"); k.e(f"v_add_u32 v44, s37, v{V_L}")
        k.e(f"s_add_u32 s37, s{S_S}, {J_WO - 8*54}"); k.e(f"v_lshlrev_b32 v45, 3, v{V_L}"); k.e("v_add_u32 v45, s37, v45")
        k.e(f"v_cmp_gt_u32 vcc, 54, v{V_L}")
        k.e("s_nop 1")
        k.e("v_cndmask_b32 v44, v45, v44, vcc"); k.e("v_lshlrev_b32 v44, 7, v44")
        k.e(f"s_mov_b32 s37, 0x{FLP:x}")
        sv = k.snapshot()
        poll(k, 44, 37, (1 << 62) - 1, 46, ENV('PS2', 3))
        k.restore(sv)
        k.e("s_mov_b32 s57, s36")
        lds_signal(k, CP_WQ - 0, 44)
        k.e("s_mov_b32 s36, s57")
        k.lg = []
    k.label("L_A_np")
    if ENV("GA", 0):
        k.e(f"s_cmp_eq_u32 s{S_LAY}, 0"); k.e("s_cbranch_scc1 L_A_k2ok")
        k.e("s_mov_b32 s57, s36")
        lds_wait(k, CC_K2 - 32, 12, 44, 4)
        k.e("s_mov_b32 s36, s57")
        k.label("L_A_k2ok")
    SL = ENV("SL", 0)
    k.e("s_mov_b32 s38, 0x3f803f80")
    k.e(f"v_add_u32 v{VB2}, s36, v{V_L16}")
    for i in range(8):
        k.e(f"s_waitcnt vmcnt({7-i})")
        if i < 6:
            k.e(f"ds_write_b128 v{VB2}, {vr(8+4*i,4)} offset:{1024*i}")
            if not SL: stats_acc(k, 8+4*i, 40, i == 0, 38)
        else:
            if i == 6:
                k.e("s_lshl_b32 s37, s50, 10"); k.e(f"s_add_u32 s37, s37, {A_HL}"); k.e(f"v_add_u32 v{VB2}, s37, v{V_L16}")
                k.e(f"ds_write_b128 v{VB2}, {vr(8+4*i,4)}")
            if not SL: stats_acc(k, 8+4*i, 42, i == 6, 38)
    def late(fn): fn()
    k.e(f"s_cmp_ge_u32 s{S_WL}, 2"); k.e("s_cbranch_scc1 L_A_xs")
    k.e(f"ds_write_b128 v{VB2}, {vr(36,4)} offset:4096")
    k.label("L_A_xs")
    if SL:
        k.e("s_waitcnt lgkmcnt(0)")
        lds_signal(k, CA_X, 44, byclass=True)
        for i in range(8): stats_acc(k, 8+4*i, 40 if i < 6 else 42, i in (0, 6), 38)
    k.e(f"s_lshl_b32 s37, s{S_W}, 9"); k.e(f"v_lshlrev_b32 v{VB2}, 3, v{V_L}"); k.e(f"v_add_u32 v{VB2}, s37, v{VB2}"); k.e(f"v_add_u32 v{VB2}, {A_PM}, v{VB2}")
    k.e(f"ds_write_b64 v{VB2}, v[40:41]"); k.e(f"ds_write_b64 v{VB2}, v[42:43] offset:6144")
    k.e("s_waitcnt lgkmcnt(0)")
    if FS in ("", "A"): stamp(k, 2)
    if SL: lds_signal(k, CA_W, 44)
    else: lds_signal(k, CA_X, 44, byclass=True)
    k.e("s_waitcnt lgkmcnt(0)")
    k.lg = []
    k.e(f"s_cmp_lg_u32 s{S_LAY}, 0"); k.e("s_cbranch_scc1 L_A_wqok")
    lds_wait(k, CP_WQ, 1, 44)
    k.label("L_A_wqok")
    def gateA(ks, query=False):
        if not GX or ks % 6: return False
        if query: return True
        lds_wait(k, CA_X + ks//6, 4, EX)
    if FS == "G": stamp(k, 2)
    k.e(f"s_cmp_ge_u32 s{S_W}, 8"); k.e("s_cbranch_scc1 L_A_free")
    if ENV("DP", 0): k.e("s_setprio 0")
    k.e(f"v_add_u32 v{VB2}, 49152, v{VB1}")
    k.e(f"v_add_u32 v{VH}, {A_HL}, v{V_L16}")
    def mk_bread(mts):
        def bread(ks, mi, reg):
            mt = mts[mi]
            if mt == 0:
                k.lds(f"ds_read_b128 {vr(reg,4)}, v{VH} offset:{ks*1024}", ("b", ks))
            else:
                off = ks*4096 + (mt-1)*256; base = VB1
                if off >= 49152: off -= 49152; base = VB2
                k.lds(f"ds_read_b128 {vr(reg,4)}, v{base} offset:{off}", ("b", ks))
        return bread
    def epi_stats(mts, T):
        sa = T + 5; ST = T + 6
        if FS == "G": stamp(k, 4)
        lds_wait(k, CA_ST, 3, T)
        k.e(f"v_lshlrev_b32 v{sa}, 3, v{V_M}"); k.e(f"v_add_u32 v{sa}, {A_ST}, v{sa}")
        for mi, mt in enumerate(mts):
            k.lds(f"ds_read_b64 {vr(ST+2*mi,2)}, v{sa} offset:{mt*128}", "str")
    def epilogue(tadd, mts, accf, csr, vpath, T):
        a0, a1, p, H, t, sa = T, T+1, T+2, T+3, T+4, T+5
        ST = T + 6; U = T + 16
        k.e(f"v_lshlrev_b32 v{p}, 2, v{V_G}")
        k.e(f"s_add_u32 s36, s40, {tadd}"); k.e("s_lshl_b32 s36, s36, 4")
        k.e(f"v_add_u32 v{p}, s36, v{p}")
        k.e(f"s_mov_b32 s36, {A_CQ}"); k.e(f"v_lshl_add_u32 v{sa}, v{p}, 2, s36")
        k.lds(f"ds_read_b128 {vr(csr,4)}, v{sa}", "str")
        for a in (a0, a1):
            divmod_const(k, H, None, p, 18, 232, 36)
            if not vpath:
                k.e(f"s_movk_i32 s36, {QPL-36}")
                k.e(f"v_mul_u32_u24 v{a}, s36, v{H}")
                k.e(f"v_lshl_add_u32 v{a}, v{p}, 1, v{a}")
                k.e(f"v_mul_u32_u24 v{t}, {QP}, v{V_M}")
                k.e(f"s_mov_b32 s36, {A_QK}")
            else:
                k.e(f"s_movk_i32 s36, {VPL-72}")
                k.e(f"v_mul_u32_u24 v{a}, s36, v{H}")
                k.e(f"v_lshl_add_u32 v{a}, v{p}, 2, v{a}")
                k.e(f"v_mul_u32_u24 v{t}, 0x{VPP:x}, v{V_M}")
                k.e(f"s_mov_b32 s36, {A_VP - 8*VPL}")
            k.e(f"v_add3_u32 v{a}, v{a}, v{t}, s36")
            if a == a0: k.e(f"v_add_u32 v{p}, 2, v{p}")
        if vpath:
            k.e("s_mov_b32 s36, 0x05040100"); k.e("s_mov_b32 s37, 0x07060302")
        k.wait(lg=["str"])
        for mi, mt in enumerate(mts):
            r = accf(mi)
            for j in range(4):
                k.e(f"v_mul_f32 v{r+j}, v{r+j}, v{ST+2*mi}")
                k.e(f"v_fmac_f32 v{r+j}, v{ST+2*mi+1}, v{csr+j}")
            k.e(f"v_cvt_pk_bf16_f32 v{r}, v{r}, v{r+1}")
            k.e(f"v_cvt_pk_bf16_f32 v{r+1}, v{r+2}, v{r+3}")
            if not vpath:
                k.lds(f"ds_write_b32 v{a0}, v{r} offset:{mt*16*QP}", "qw")
                k.lds(f"ds_write_b32 v{a1}, v{r+1} offset:{mt*16*QP}", "qw")
        if vpath:
            for mi, mt in enumerate(mts):
                r = accf(mi); u = U + 4*(mi & 1)
                if mi:
                    rp = accf(mi-1)
                    k.e(f"v_mov_b32_dpp v{r+2}, v{rp} row_shl:14 row_mask:0xf bank_mask:0xf")
                    k.e(f"v_mov_b32_dpp v{r+3}, v{rp+1} row_shl:14 row_mask:0xf bank_mask:0xf")
                k.e(f"v_mov_b32_dpp v{r+2}, v{r} row_shr:2 row_mask:0xf bank_mask:0xf")
                k.e(f"v_mov_b32_dpp v{r+3}, v{r+1} row_shr:2 row_mask:0xf bank_mask:0xf")
                k.e(f"v_perm_b32 v{u}, v{r+2}, v{r}, s36"); k.e(f"v_perm_b32 v{u+1}, v{r+2}, v{r}, s37")
                k.e(f"v_perm_b32 v{u+2}, v{r+3}, v{r+1}, s36"); k.e(f"v_perm_b32 v{u+3}, v{r+3}, v{r+1}, s37")
                k.lds(f"ds_write_b64 v{a0}, {vr(u,2)} offset:{mt*16*VPP}", "qw")
                k.lds(f"ds_write_b64 v{a1}, {vr(u+2,2)} offset:{mt*16*VPP}", "qw")
    def ordA(nm):
        o = ENV("ORDA", 2)
        if o == 1: return [(mi, (t if mi % 2 == 0 else 1 - t)) for mi in range(nm) for t in range(2)]
        if o == 2: return [((mi if t == 0 else nm - 1 - mi), t) for t in range(2) for mi in range(nm)]
        return [(mi, t) for mi in range(nm) for t in range(2)]
    def pair_path(mts, accb, bb, bstride, BD):
        nm = len(mts)
        k.lg = []
        k.vm = []
        DA2 = ENV("DA2", 5)
        st = dict(c=0, b=0, n=PA//2)
        def ld(i):
            if i < E2: late(lambda: a_load2(k, i))
            else: a_load2(k, i)
        def pre():
            while st["n"] < DA2: ld(st["n"]); st["n"] += 1
        def after(ks):
            if FS == "G" and ks == 8: stamp(k, 3)
            while st["n"] < 18 and st["n"] <= ks + (DA2 if st["n"] < E2 else max(DA2, E2)):
                ld(st["n"]); st["n"] += 1
            if ks >= 9:
                free = 8*(ks - 8)
                while st["c"] < CPA and 12*(st["c"]+1) <= free:
                    c_aload(k, st["c"], "c"); st["c"] += 1
                while st["b"] < 9 and 36 + 4*(st["b"]+1) <= free:
                    b_load(k, st["b"]); st["b"] += 1
        pre()
        gemm_loop(k, 18, ordA(nm), lambda mi, t: accb + 4*nm*t + 4*mi, lambda par, mi: bb + bstride*par + 4*mi,
                  lambda i_, t: AR + 8*(i_ % 9) + 4*t, mk_bread(mts), 0, nm, after, None, BD=BD, gate=gateA)
        epi_stats(mts, bb)
    m5 = [0, 1, 2, 3, 4]; m4 = [1, 2, 3, 4]
    k.e(f"s_cmp_ge_u32 s{S_W}, 6"); k.e("s_cbranch_scc1 L_A_single")
    k.e(f"s_cmp_ge_u32 s{S_W}, 4"); k.e("s_cbranch_scc1 L_A_qpair")
    pair_path(m5, 8, 48, 20, 1)
    sv = k.snapshot()
    k.e(f"s_cmp_lt_u32 s{S_W}, 2"); k.e("s_cbranch_scc1 L_A_vpair")
    epilogue(0, m5, lambda mi: 8 + 4*mi, EX, False, 48)
    epilogue(1, m5, lambda mi: 28 + 4*mi, EX+4, False, 48)
    k.e("s_branch L_A_att")
    k.label("L_A_vpair")
    k.restore(sv)
    epilogue(0, m5, lambda mi: 8 + 4*mi, EX, True, 48)
    epilogue(1, m5, lambda mi: 28 + 4*mi, EX+4, True, 48)
    k.e("s_branch L_A_att")
    k.label("L_A_qpair")
    pair_path(m4, 8, 40, 16, 2)
    epilogue(0, m4, lambda mi: 8 + 4*mi, EX, False, 40)
    epilogue(1, m4, lambda mi: 24 + 4*mi, EX+4, False, 40)
    k.e("s_branch L_A_att")
    k.label("L_A_single")
    k.e("s_cmp_eq_u32 s40, 13"); k.e("s_cselect_b32 s36, 0xffffff7f, -1"); k.e(f"v_and_b32 v0, s36, v{V_L16}")
    k.lg = []
    k.vm = []
    def ld1(i):
        if i < E1: late(lambda: a_load1(k, i))
        else: a_load1(k, i)
    def pre1():
        for i in range(PA, DA): ld1(i)
    def after1(ks):
        if ks + DA < 18: ld1(ks + DA)
        if ks in (9, 11, 13) and (ks - 9)//2 < CPA: c_aload(k, (ks - 9)//2, "c")
        if ks >= 9: b_load(k, ks - 9)
    pre1()
    gemm_loop(k, 18, [(mi, 0) for mi in range(5)], lambda mi, t: ACC + 4*mi, lambda par, mi: BB + 20*par + 4*mi,
              lambda i_, t: AR + 4*i_, mk_bread(m5), 0, 5, after1, None, BD=2, gate=gateA)
    epi_stats(m5, 28)
    sv = k.snapshot()
    k.e("s_cmp_ge_u32 s40, 9"); k.e("s_cbranch_scc1 L_A_vp")
    epilogue(0, m5, lambda mi: ACC + 4*mi, EX, False, 28)
    k.e("s_branch L_A_att")
    k.label("L_A_vp")
    k.restore(sv)
    k.e("s_mov_b32 exec_hi, 0")
    k.e("s_nop 4")
    epilogue(0, m5, lambda mi: ACC + 4*mi, EX, True, 28)
    k.e("s_mov_b64 exec, -1")
    k.e("s_branch L_A_att")
    k.label("L_A_free")
    k.e(f"s_cmp_eq_u32 s{S_W}, 9"); k.e("s_cbranch_scc1 L_A_fr2")
    if SL: lds_wait(k, CA_W, 12, 8, 1)
    else:
        for c in range(3): lds_wait(k, CA_X + c, 4, 8)
    k.e(f"s_cmp_eq_u32 s{S_W}, 8"); k.e("s_cbranch_scc1 L_A_combq")
    k.e(f"s_cmp_eq_u32 s{S_W}, 11"); k.e("s_cbranch_scc1 L_A_combh")
    stats_combine(k, A_PM, 8, VB2, A_ST + 128, False)
    k.e("s_branch L_A_combd")
    k.label("L_A_combh")
    stats_combine(k, A_PH, 8, VB2, A_ST, True)
    k.e("s_branch L_A_combd")
    k.label("L_A_combq")
    k.e(f"s_cmp_lg_u32 s{S_LAY}, 0"); k.e("s_cbranch_scc1 L_A_combd")
    k.e(f"v_min_u32 v7, 53, v{V_L}")
    divmod_const(k, 6, None, 7, 18, 64, 44)
    k.e(f"v_mul_u32_u24 v6, 0x{2304-288:x}, v6"); k.e(f"v_lshl_add_u32 v6, v7, 4, v6")
    k.e(f"s_mul_i32 s42, s{S_S}, 288"); k.e(f"s_add_u32 s42, s42, 0x{CSQP:x}")
    for p in range(18):
        k.e(f"buffer_load_dwordx4 {vr(8+4*p,4)}, v6, {WS}, s42 offen{WSC}")
        if p < 17: k.e("s_add_u32 s42, s42, 6912")
    k.e(f"v_add_u32 v{VB2}, {A_CQ}, v{V_L16}")
    k.e("s_waitcnt vmcnt(0)")
    for p in range(1, 18):
        for j in range(4): k.e(f"v_add_f32 v{8+j}, v{8+j}, v{8+4*p+j}")
    k.e(f"ds_write_b128 v{VB2}, v[8:11]")
    k.e("s_waitcnt lgkmcnt(0)")
    k.label("L_A_combd")
    lds_signal(k, CA_ST, 8)
    k.e("s_waitcnt lgkmcnt(0)"); k.lg = []
    k.e("s_branch L_A_att")
    k.label("L_A_fr2")
    k.e(f"s_cmp_lg_u32 s{S_LAY}, 0"); k.e("s_cbranch_scc1 L_A_att")
    for c in range(3): lds_wait(k, CA_X + c, 4, 8)
    if WREL:
        k.e("s_cmp_lt_u32 s2, 104"); k.e("s_cbranch_scc1 L_A_norel")
        k.e("buffer_wbl2 sc1")
        k.e("s_waitcnt vmcnt(0)")
        k.e("s_cmp_lt_u32 s2, 120"); k.e("s_cselect_b32 exec_lo, 1, 3"); k.e("s_mov_b32 exec_hi, 0")
        k.e(f"v_mul_u32_u24 v10, 0x{152*8:x}, v{V_L}"); k.e("s_add_u32 s36, s2, 216"); k.e("s_lshl_b32 s36, s36, 3"); k.e("v_sub_u32 v10, s36, v10")
        k.e("v_mov_b32 v8, s62"); k.e("v_mov_b32 v9, s63"); k.e(f"s_mov_b32 s37, 0x{FLP:x}")
        k.e(f"buffer_store_dwordx2 v[8:9], v10, {WS}, s37 offen sc1")
        k.e("s_mov_b64 exec, -1")
        k.label("L_A_norel")
    k.e(f"s_lshl_b32 s37, s{S_SC}, 7"); k.e(f"s_add_u32 s37, s37, 0x{FLP + 128*J_W1:x}")
    k.e(f"v_lshlrev_b32 v8, 10, v{V_L}")
    poll(k, 8, 37, (1 << 36) - 1, 10, ENV('PS3', 24))
    k.label("L_A_att")
    if ENV("DP", 0): k.e("s_setprio 0")
    k.vm = []; k.lg = []
    k.e("s_waitcnt lgkmcnt(0)")
    if FS in ("", "A"): stamp(k, 3)
    if FS == "G": stamp(k, 5)
    k.e("s_barrier")
    if FS == "A": stamp(k, 4)
    if FS == "G": stamp(k, 6)
    k.e(f"s_cmp_ge_u32 s{S_W}, 8"); k.e("s_cbranch_scc1 L_A_cs")
    VI, VHH, VQ, VK, VV = 5, 6, 7, 86, 87
    Q, KK, VP_, OA, PP, T0 = 8, 20, 20, 68, EX, EX+4
    att_start = len(k.lines)
    VHD = EX+6
    k.e(f"s_lshl_b32 s41, s{S_W}, 3")
    k.e(f"v_and_b32 v{VI}, 7, v{V_L}"); k.e(f"v_add_u32 v{VI}, s41, v{VI}")
    k.e(f"v_lshrrev_b32 v{VHH}, 5, v{V_L}")
    k.e(f"v_bfe_u32 v{VHD}, v{V_L}, 3, 2")
    k.e(f"v_mul_u32_u24 v{VQ}, {QP}, v{VI}")
    k.e(f"v_mul_u32_u24 v{VK}, 0x{QPL:x}, v{VHD}")
    k.e(f"s_mov_b32 s36, {A_QK + 16*QP}")
    k.e(f"v_add3_u32 v{VQ}, v{VQ}, v{VK}, s36")
    k.e(f"v_mul_u32_u24 v{VK}, 0x{8*QP:x}, v{VHH}"); k.e(f"v_sub_u32 v{VK}, v{VQ}, v{VK}")
    k.e(f"v_lshlrev_b32 v{T0}, 3, v{VHH}"); k.e(f"v_sub_u32 v{T0}, v{VI}, v{T0}")
    k.e(f"v_add_u32 v{VV}, 12, v{T0}"); k.e(f"v_mul_u32_u24 v{VV}, 0x{VPP:x}, v{VV}")
    k.e(f"v_mul_u32_u24 v{T0+1}, 0x{VPL:x}, v{VHD}"); k.e(f"s_mov_b32 s36, {A_VP}"); k.e(f"v_add3_u32 v{VV}, v{VV}, v{T0+1}, s36")
    def rdvec(reg, va, off, tag):
        k.lds(f"ds_read_b128 {vr(reg,4)}, v{va} offset:{off}", tag)
        k.lds(f"ds_read_b128 {vr(reg+4,4)}, v{va} offset:{off+16}", tag)
        k.lds(f"ds_read_b128 {vr(reg+8,4)}, v{va} offset:{off+32}", tag)
    rdvec(Q, VQ, 0, "q")
    for j in range(4): rdvec(KK + 12*j, VK, TSTR - 2*j*QP, ("k", j))
    k.e(f"s_lshl_b32 s36, s{S_R}, 6"); k.e(f"v_add_u32 v{T0}, s36, v{T0}")
    for j in range(4):
        k.e(f"v_cmp_le_i32 s[{50+2*j}:{51+2*j}], {2*j}, v{T0}")
    k.wait(lg=["q", ("k", 1)])
    for jj in range(9):
        for j in range(2):
            c = "0" if jj == 0 else f"v{PP+j}"
            k.e(f"v_dot2_f32_bf16 v{PP+j}, v{Q+jj}, v{KK+12*j+jj}, {c}")
    def rdvp(pr):
        off = (4*VPP if pr == 0 else 0)
        for q4 in range(5):
            k.lds(f"ds_read_b128 {vr(VP_+24*pr+4*q4,4)}, v{VV} offset:{off+16*q4}", ("v", pr))
    rdvp(0)
    k.wait(lg=[("k", 3)])
    for jj in range(9):
        for j in range(2, 4):
            c = "0" if jj == 0 else f"v{PP+j}"
            k.e(f"v_dot2_f32_bf16 v{PP+j}, v{Q+jj}, v{KK+12*j+jj}, {c}")
    rdvp(1)
    sc = (18 ** -0.5) * math.log2(math.e)
    k.e(f"v_mov_b32 v{T0}, {f32(-1e30)}")
    k.e("s_nop 1")
    for j in range(4): k.e(f"v_mul_f32 v{PP+j}, {f32(sc)}, v{PP+j}")
    for j in range(4): k.e(f"v_cndmask_b32 v{PP+j}, v{T0}, v{PP+j}, s[{50+2*j}:{51+2*j}]")
    k.e(f"v_max3_f32 v{T0}, v{PP}, v{PP+1}, v{PP+2}")
    k.e(f"v_max_f32 v{T0}, v{T0}, v{PP+3}")
    k.e(f"v_mov_b32 v{T0+1}, v{T0}")
    k.e("s_nop 1")
    k.e(f"v_permlane32_swap_b32 v{T0}, v{T0+1}")
    k.e("s_nop 1")
    k.e(f"v_max_f32 v{T0}, v{T0}, v{T0+1}")
    for j in range(4): k.e(f"v_sub_f32 v{PP+j}, v{PP+j}, v{T0}")
    for j in range(4): k.e(f"v_exp_f32 v{PP+j}, v{PP+j}")
    k.e("s_nop 0")
    k.e(f"v_cvt_pk_bf16_f32 v{PP}, v{PP}, v{PP+1}")
    k.e(f"v_cvt_pk_bf16_f32 v{PP+2}, v{PP+2}, v{PP+3}")
    k.e("s_mov_b32 s36, 0x3f803f80")
    k.e(f"v_dot2_f32_bf16 v{T0}, v{PP}, s36, 0")
    k.e(f"v_dot2_f32_bf16 v{T0}, v{PP+2}, s36, v{T0}")
    k.wait(lg=[("v", 0)])
    for d in range(18): k.e(f"v_dot2_f32_bf16 v{OA+d}, v{VP_+d}, v{PP}, 0")
    k.e(f"v_mov_b32 v{T0+1}, v{T0}")
    k.wait(lg=[("v", 1)])
    for d in range(18): k.e(f"v_dot2_f32_bf16 v{OA+d}, v{VP_+24+d}, v{PP+2}, v{OA+d}")
    k.e(f"v_permlane32_swap_b32 v{T0}, v{T0+1}")
    k.e("s_nop 1")
    k.e(f"v_add_f32 v{T0}, v{T0}, v{T0+1}")
    k.e(f"v_rcp_f32 v{T0}, v{T0}")
    pairs = [(d, d+8) for d in range(8)] + [(16, 17)]
    for a, b_ in pairs: k.e(f"v_permlane32_swap_b32 v{OA+a}, v{OA+b_}")
    k.e("s_nop 1")
    for a, b_ in pairs: k.e(f"v_add_f32 v{OA+a}, v{OA+a}, v{OA+b_}")
    for a, b_ in pairs: k.e(f"v_mul_f32 v{OA+a}, v{OA+a}, v{T0}")
    k.e(f"v_cvt_pk_bf16_f32 v{Q+4}, v{OA+16}, v{OA+16}")
    k.e(f"v_lshlrev_b32 v{VI}, 4, v{VI}")
    k.e(f"v_lshl_add_u32 v{VHD}, v{VHD}, 1, v{VHH}")
    k.e(f"v_lshl_add_u32 v{VK}, v{VHD}, 1, v{VI}"); k.e(f"v_add_u32 v{VK}, {A_SCR}, v{VK}")
    k.e(f"ds_write_b16 v{VK}, v{Q+4}")
    k.e(f"v_add_u32 v{VV}, {A_SCR}, v{VI}")
    for j in range(4): k.e(f"v_cvt_pk_bf16_f32 v{Q+j}, v{OA+2*j}, v{OA+2*j+1}")
    k.e("s_waitcnt lgkmcnt(0)")
    k.e(f"ds_read_b128 {vr(Q+4,4)}, v{VV}")
    k.e(f"v_lshl_add_u32 v{VQ}, v{VHD}, 10, v{VI}")
    k.e(f"s_mul_i32 s36, s{S_S}, 9216"); k.e(f"s_mul_i32 s37, s{S_R}, {TILEB}"); k.e("s_add_u32 s36, s36, s37"); k.e(f"s_add_u32 s36, s36, s{S_O}")
    k.e("s_add_u32 s38, s36, 8192")
    if FS == "A": stamp(k, 5)
    k.e(f"buffer_store_dwordx4 {vr(Q,4)}, v{VQ}, {WS}, s36 offen{SC('o')}")
    k.e("s_mov_b64 exec, 0xff")
    k.e("s_waitcnt lgkmcnt(0)")
    k.e(f"buffer_store_dwordx4 {vr(Q+4,4)}, v{VI}, {WS}, s38 offen{SC('o')}")
    k.e("s_mov_b64 exec, -1")
    publish(k, CA_DONE, 8, F_A, S_R, S_S, 20, sc=SC('o'))
    if FS == "A": stamp(k, 6)
    for i in range(RW): c_aload(k, i, "c")
    k.vm = []
    k.e("s_branch L_A_end")
    k.label("L_A_cs")
    k.e(f"s_cmp_ge_u32 s{S_W}, 10"); k.e("s_cbranch_scc1 L_A_nb")
    for i in range(PA, 9): b_load(k, i)
    k.label("L_A_nb")
    for i in range(max(CPA, RW)): c_aload(k, i, "c")
    k.vm = []
    k.e(f"s_cmp_lg_u32 s{S_LAY}, 0"); k.e("s_cbranch_scc1 L_A_end")
    k.e(f"s_cmp_eq_u32 s{S_WL}, 3"); k.e("s_cbranch_scc1 L_A_b1")
    k.e(f"s_mul_i32 s36, s{S_SC}, 2304"); k.e(f"s_lshl_b32 s37, s{S_WL}, 10"); k.e(f"s_add_u32 s36, s36, 0x{CSP:x}")
    k.e(f"v_add_u32 v6, s37, v{V_L16}"); k.e("v_min_u32 v6, 0x8f0, v6")
    for i in range(18):
        k.e(f"buffer_load_dwordx4 {vr(8+4*i,4)}, v6, {WS}, s36 offen{WSC}")
        if i < 17: k.e(f"s_add_u32 s36, s36, {4608*4}")
    k.e(f"s_add_u32 s37, s37, {C_CS}"); k.e(f"v_add_u32 v5, s37, v{V_L16}")
    k.e("s_waitcnt vmcnt(0)")
    for i in range(17):
        for j in range(4): k.e(f"v_add_f32 v{76+j}, v{76+j}, v{8+4*i+j}")
    k.e("ds_write_b128 v5, v[76:79]")
    k.e("s_waitcnt lgkmcnt(0)")
    k.e("s_branch L_A_end")
    k.label("L_A_b1")
    k.e(f"s_mul_i32 s38, s{S_SC}, 1152"); k.e(f"s_mov_b32 m0, {C_B1}"); k.e("s_nop 0")
    k.e(f"buffer_load_dwordx4 v{V_L16}, s[12:15], s38 offen lds")
    k.e(f"buffer_load_dwordx4 v{V_L16}, s[12:15], s38 offen offset:1024 lds")
    k.e("s_waitcnt vmcnt(0)")
    k.label("L_A_end")

def phase_B(k):
    k.c("================ phase B")
    VB1, VB2, VR_ = 5, 6, 7
    ACC, BB, RX, WB = 8, 24, 72, 124
    k.vm = []; k.lg = []
    k.e(f"s_mul_i32 s39, s{S_R}, {TILEB}")
    k.e(f"s_cmp_ge_u32 s{S_W}, 5"); k.e("s_cselect_b32 s45, 1, 0"); k.e("s_mul_i32 s46, s45, 5"); k.e(f"s_sub_u32 s46, s{S_W}, s46")
    k.e(f"v_lshrrev_b32 v{VR_}, 1, v{V_G}"); k.e(f"v_lshlrev_b32 v{VR_}, 10, v{VR_}")
    k.e(f"v_and_b32 v{VB2}, 31, v{V_L}"); k.e(f"v_lshl_add_u32 v{VR_}, v{VB2}, 4, v{VR_}")
    k.e(f"s_mul_i32 s40, s{S_S}, 9216"); k.e("s_add_u32 s40, s40, s39"); k.e("s_lshl_b32 s41, s46, 11"); k.e("s_add_u32 s40, s40, s41")
    k.e("s_lshl_b32 s41, s45, 9"); k.e("s_add_u32 s40, s40, s41")
    k.e("s_cmp_eq_u32 s46, 4"); k.e("s_cselect_b32 s41, 2, 4"); k.e("s_cmp_gt_u32 s46, 4"); k.e("s_cselect_b32 s41, 0, s41")
    k.e(f"v_cmp_gt_u32 vcc, s41, v{V_G}")
    k.e(f"v_mov_b32 v{VB2}, 0x70000000")
    k.e(f"s_add_u32 s41, s40, s{S_XIN}")
    k.e(f"v_cndmask_b32 v{VR_}, v{VB2}, v{VR_}, vcc")
    k.vmem(f"buffer_load_dwordx4 {vr(RX,4)}, v{VR_}, {WS}, s41 offen sc1", "r")
    NP1 = 3
    await_flags(k, F_A, S_R, 8, (CA_DONE, 8))
    if FS in ("", "A", "B"): stamp(k, {"A": 7, "B": 1}.get(FS, 4))
    k.e(f"s_mul_i32 s36, s{S_W}, 6144"); k.e("s_add_u32 s37, s39, s36"); k.e(f"s_add_u32 s37, s37, s{S_O}")
    for i in range(6):
        if i % 4 == 0:
            k.e(f"s_add_u32 m0, s36, {1024*i}")
            k.e("s_nop 0") if i == 0 else k.e("s_add_u32 s37, s37, 4096")
        k.vmem(f"buffer_load_dwordx4 v{V_L16}, {WS}, s37 offen offset:{(i%4)*1024} sc1 lds", "o")
    k.e(f"v_lshlrev_b32 v{VB1}, 10, v{V_G}"); k.e(f"v_lshl_add_u32 v{VB1}, v{V_M}, 4, v{VB1}")
    k.e("s_mul_i32 s41, s45, %d" % (9*4096)); k.e(f"v_add_u32 v{VB1}, s41, v{VB1}")
    k.e("s_lshl_b32 s41, s45, 9"); k.e("s_xor_b32 s42, s41, 512")
    k.e(f"v_add_u32 v{VB2}, s42, v{VB1}"); k.e(f"v_add_u32 v{VB1}, s41, v{VB1}")
    k.wait(vm0=True)
    if FS == "B": stamp(k, 2)
    k.e("s_barrier")
    if FS == "B": stamp(k, 3)
    vm_keep = list(k.vm)
    k.e(f"s_cmp_ge_u32 s{S_W}, 10"); k.e("s_cbranch_scc1 L_B_idle")
    def bread(ks, mi, reg):
        k.lds(f"ds_read_b128 {vr(reg,4)}, v{VB1 if mi < 2 else VB2} offset:{ks*4096 + (mi&1)*256}", ("b", ks))
    stB = dict(n=max(CPA, RW))
    NB = min(stB["n"] + 3, 5) if RW else 3
    def afterB(ks):
        i = stB["n"]
        if i < NB and ((i < 3 and ks % 2 == 0) or (i >= 3 and ks >= 3*(i-3) + 2)):
            c_aload(k, i, "c"); stB["n"] += 1
    gemm_loop(k, 9, [(2, 0), (3, 0), (0, 0), (1, 0)], lambda mi, t: ACC + 4*mi, lambda par, mi: BB + 16*par + 4*mi, lambda i_, t: WB + 4*i_,
              bread, 0, 4, afterB, None, BD=2, atag=lambda ks: "none")
    k.e(f"s_lshl_b32 s41, s{S_W}, 11"); k.e(f"s_add_u32 s41, s41, {B_XB}"); k.e(f"v_add_u32 v{VB1}, s41, v{V_L16}")
    k.e(f"s_add_u32 s42, s{S_W}, 5"); k.e(f"s_sub_u32 s43, s{S_W}, 5"); k.e(f"s_cmp_ge_u32 s{S_W}, 5"); k.e("s_cselect_b32 s42, s43, s42")
    k.e("s_lshl_b32 s42, s42, 11"); k.e(f"s_add_u32 s42, s42, {B_XB}"); k.e(f"v_add_u32 v{VB2}, s42, v{V_L16}")
    k.e("s_nop 0")
    if FS == "B": stamp(k, 4)
    k.e(f"ds_write_b128 v{VB1}, {vr(ACC+8,4)}"); k.e(f"ds_write_b128 v{VB1}, {vr(ACC+12,4)} offset:1024")
    k.e("s_waitcnt lgkmcnt(0)")
    k.e("s_barrier")
    k.e(f"ds_read_b128 {vr(ACC+8,4)}, v{VB2}"); k.e(f"ds_read_b128 {vr(ACC+12,4)}, v{VB2} offset:1024")
    k.e(f"s_add_u32 s41, s40, s{S_X1}")
    k.e("s_waitcnt lgkmcnt(0)")
    for j in range(8): k.e(f"v_add_f32 v{ACC+j}, v{ACC+j}, v{ACC+8+j}")
    k.e("s_nop 1")
    for j in range(4): k.e(f"v_permlane16_swap_b32 v{ACC+j}, v{ACC+4+j}")
    k.e("s_nop 1")
    for j in range(4):
        k.e(f"v_lshlrev_b32 v{BB}, 16, v{RX+j}"); k.e(f"v_and_b32 v{BB+1}, 0xffff0000, v{RX+j}")
        k.e(f"v_add_f32 v{ACC+2*j}, v{ACC+2*j}, v{BB}"); k.e(f"v_add_f32 v{ACC+2*j+1}, v{ACC+2*j+1}, v{BB+1}")
        k.e(f"v_cvt_pk_bf16_f32 v{RX+j}, v{ACC+2*j}, v{ACC+2*j+1}")
    if FS == "B": stamp(k, 5)
    k.e(f"buffer_store_dwordx4 {vr(RX,4)}, v{VR_}, {WS}, s41 offen sc1")
    publish(k, CB_DONE, 10, F_B, S_R, S_S, 24)
    if FS == "B": stamp(k, 6)
    k.e("s_branch L_B_end")
    k.label("L_B_idle")
    for i in range(max(CPA, RW), NB): c_aload(k, i, "c")
    k.e("s_barrier")
    k.label("L_B_end")
    k.vm = vm_keep; k.lg = []
    NP2 = ENV("NP2", 4)
    assert stB["n"] == NB
    if RW: NP2 = min(6, NB + ENV("RX", 1))
    for i in range(NB, NP2): c_aload(k, i)
    return NP2

def phase_C(k, npre):
    k.c("================ phase C")
    VB1, VB2, VT = 5, 6, 7
    ACC, BB = 8, 56
    D = 6
    k.e(f"s_mul_i32 s39, s{S_RC}, {TILEB}")
    await_flags(k, F_B, S_RC, 8, (CB_DONE, 10))
    if FS in ("", "B", "C"): stamp(k, {"B": 7, "C": 1}.get(FS, 5))
    k.e(f"s_mul_i32 s36, s{S_W}, 6144"); k.e("s_add_u32 s37, s36, s39"); k.e(f"s_add_u32 s37, s37, s{S_X1}")
    for i in range(6):
        if i and i % 4 == 0: k.e("s_add_u32 s37, s37, 4096")
        k.e(f"buffer_load_dwordx4 {vr(8+4*i,4)}, v{V_L16}, {WS}, s37 offen offset:{(i%4)*1024} sc1")
    k.e(f"s_lshl_b32 s37, s{S_ROT}, 12"); k.e("s_sub_u32 s36, s36, s37"); k.e(f"s_add_u32 s36, s36, {TILEB}")
    k.e("s_mov_b32 s38, 0x3f803f80")
    for i in range(6):
        k.e(f"s_sub_u32 s37, s36, {TILEB}"); k.e(f"s_cmp_ge_u32 s36, {TILEB}"); k.e("s_cselect_b32 s36, s37, s36")
        k.e(f"v_add_u32 v{VB2}, s36, v{V_L16}")
        k.e(f"s_waitcnt vmcnt({5-i})")
        k.e(f"ds_write_b128 v{VB2}, {vr(8+4*i,4)}")
        if not SLC: stats_acc(k, 8+4*i, 44, i == 0, 38)
        k.e("s_add_u32 s36, s36, 1024")
    if SLC:
        k.e("s_waitcnt lgkmcnt(0)")
        lds_signal(k, CC_X, 46, byclass=True)
        for i in range(6): stats_acc(k, 8+4*i, 44, i == 0, 38)
    k.e(f"s_lshl_b32 s37, s{S_W}, 9"); k.e(f"v_lshlrev_b32 v{VB2}, 3, v{V_L}"); k.e(f"v_add_u32 v{VB2}, s37, v{VB2}"); k.e(f"v_add_u32 v{VB2}, {C_PM}, v{VB2}")
    k.e(f"ds_write_b64 v{VB2}, v[44:45]")
    k.label("L_C_s4")
    k.vm = []
    k.e(f"v_lshlrev_b32 v{VB1}, 10, v{V_G}"); k.e(f"v_lshl_add_u32 v{VB1}, v{V_M}, 4, v{VB1}")
    k.e("s_waitcnt lgkmcnt(0)")
    if SLC:
        lds_signal(k, CC_W1, 46)
        k.e("s_waitcnt lgkmcnt(0)")
    elif GXC:
        lds_signal(k, CC_X, 46, byclass=True)
        k.e("s_waitcnt lgkmcnt(0)")
    else:
        k.e("s_barrier")
    if FS in ("", "C"): stamp(k, {"C": 2}.get(FS, 6))
    k.lg = []
    def gate1(ks, query=False):
        if not GXC or ks % 6: return False
        if query: return True
        lds_wait(k, CC_X + ks//6, 4, EX)
    k.e(f"s_cmp_lg_u32 s{S_W}, 11"); k.e("s_cbranch_scc1 L_C_nocomb")
    if SLC: lds_wait(k, CC_W1, 12, 8, 1)
    elif GXC:
        for c in range(3): lds_wait(k, CC_X + c, 4, 8)
    stats_combine(k, C_PM, 8, VB2, C_ST, False, 12)
    lds_signal(k, CC_ST, 8)
    k.e("s_waitcnt lgkmcnt(0)"); k.lg = []
    k.label("L_C_nocomb")
    k.e(f"v_add_u32 v{VB2}, 49152, v{VB1}")
    def bread1(ks, mi, reg):
        off = ks*4096 + mi*256; base = VB1
        if off >= 49152: off -= 49152; base = VB2
        k.lds(f"ds_read_b128 {vr(reg,4)}, v{base} offset:{off}", ("b", ks))
    accf = lambda mi, t: ACC + 12*mi + 4*t
    bbf = lambda par, mi: BB + 16*par + 4*mi
    asf = lambda i_, t: AR + 12*(i_ % D) + 4*t
    order = [(mi, t) for mi in range(4) for t in range(3)]
    if ENV("ORD", 2) == 1: order = [(mi, t) for t in range(3) for mi in range(4)]
    if ENV("ORD", 2) == 2: order = [(mi, (t if mi % 2 == 0 else 2 - t)) for mi in range(4) for t in range(3)]
    if ENV("ORD", 2) == 3: order = [((mi if t % 2 == 0 else 3 - mi), t) for t in range(3) for mi in range(4)]
    DEFER = ENV("DEFER", 2)
    state = dict(n=npre)
    lim1 = ENV("LIM1", 18) if DEFER else 24
    def after1(ks):
        tgt = min(ks + 1 + D, lim1, state["n"] + 2)
        while state["n"] < tgt:
            c_aload(k, state["n"]); state["n"] += 1
            if DEFER == 1 and state["n"] == 18: lds_signal(k, CC_W1, EX)
    k.e(f"s_setprio {ENV('P1PRIO', 2)}")
    (gemm_loop_sp if ENV('SP', 2) & 1 else gemm_loop)(k, 18, order, accf, bbf, asf, bread1, 0, 4, after1, gate=gate1)
    k.e(f"s_setprio {ENV('GPRIO', 3)}")
    if FS == "C": stamp(k, 3)
    DEFN = ENV('DEFN', 12)
    sv2 = k.snapshot()
    def w2_check(final=False, first=False):
        if DEFER != 1: return
        lab = k.newlabel("L_w2")
        if not first:
            k.e("s_cmp_lg_u32 s56, 0"); k.e(f"s_cbranch_scc1 {lab}")
        else:
            k.e("s_mov_b32 s56, 0")
        k.e(f"s_add_u32 s36, s{S_CNT}, {4*CC_W1}")
        k.label(lab + "_p")
        k.e(f"v_mov_b32 v0, s36")
        k.e(f"ds_read_b32 v0, v0")
        k.e("s_waitcnt lgkmcnt(0)"); k.lg = []
        k.e(f"v_readfirstlane_b32 s37, v0")
        k.e("s_nop 3")
        k.e(f"s_cmp_ge_u32 s37, {DEFN}"); k.e(f"s_cbranch_scc1 {lab}_go")
        if final:
            k.e("s_sleep 4"); k.e(f"s_branch {lab}_p")
        else:
            k.e(f"s_branch {lab}")
        k.label(lab + "_go")
        k.vm = list(sv2[0])
        for i in range(18, 24): c_aload(k, i)
        k.e("s_mov_b32 s56, 1")
        k.label(lab)
    w2_check(first=True)
    lds_wait(k, CC_ST, 1, EX)
    CSR, B1R, T, STR = BB, BB+12, BB+24, EX
    k.e(f"s_lshr_b32 s40, s{S_W}, 1"); k.e(f"s_and_b32 s41, s{S_W}, 1"); k.e("s_mul_i32 s40, s40, 96")
    k.e("s_lshl_b32 s42, s41, 5"); k.e("s_add_u32 s42, s42, s40")
    k.e("s_lshl_b32 s43, s41, 4"); k.e("s_add_u32 s43, s43, s40"); k.e("s_add_u32 s43, s43, 64")
    k.e(f"v_lshlrev_b32 v{VB1}, 3, v{V_G}"); k.e(f"v_add_u32 v{VB1}, s42, v{VB1}")
    k.e(f"v_lshlrev_b32 v{VB2}, 2, v{V_G}"); k.e(f"v_add_u32 v{VB2}, s43, v{VB2}")
    k.e(f"s_mov_b32 s40, {C_CS}"); k.e(f"s_mov_b32 s41, {C_B1}")
    k.e(f"v_lshl_add_u32 v{VT}, v{VB1}, 2, s40")
    for j in range(2): k.lds(f"ds_read_b128 {vr(CSR+4*j,4)}, v{VT} offset:{16*j}", "cs")
    k.e(f"v_lshl_add_u32 v{VT}, v{VB2}, 2, s40")
    k.lds(f"ds_read_b128 {vr(CSR+8,4)}, v{VT}", "cs")
    k.e(f"v_lshl_add_u32 v{VT}, v{VB1}, 1, s41")
    k.lds(f"ds_read_b128 {vr(T,4)}, v{VT}", "cs")
    k.e(f"v_lshl_add_u32 v{VT}, v{VB2}, 1, s41")
    k.lds(f"ds_read_b64 {vr(T+4,2)}, v{VT}", "cs")
    k.e(f"v_lshlrev_b32 v{VB1}, 3, v{V_M}"); k.e(f"v_add_u32 v{VB1}, {C_ST}, v{VB1}")
    for mi in range(4): k.lds(f"ds_read_b64 {vr(STR+2*mi,2)}, v{VB1} offset:{128*mi}", "cs")
    k.e(f"s_bfe_u32 s40, s{S_W}, 0x10001"); k.e(f"s_and_b32 s41, s{S_W}, 1"); k.e("s_mul_i32 s40, s40, 3")
    k.e(f"s_sub_u32 s40, s40, s{S_ROT2}"); k.e("s_add_u32 s40, s40, 6")
    k.e(f"s_lshr_b32 s55, s{S_W}, 2"); k.e("s_mul_i32 s54, s55, 6")
    k.e("s_add_u32 s42, s40, s41"); k.e("s_sub_u32 s44, s42, 6"); k.e("s_cmp_ge_u32 s42, 6"); k.e("s_cselect_b32 s42, s44, s42")
    k.e("s_add_u32 s42, s42, s54"); k.e("s_lshl_b32 s42, s42, 12"); k.e(f"s_add_u32 s42, s42, {C_HB}")
    k.e("s_add_u32 s43, s40, 2"); k.e("s_sub_u32 s44, s43, 6"); k.e("s_cmp_ge_u32 s43, 6"); k.e("s_cselect_b32 s43, s44, s43")
    k.e("s_add_u32 s43, s43, s54"); k.e("s_lshl_b32 s43, s43, 12"); k.e("s_lshl_b32 s41, s41, 3"); k.e("s_add_u32 s43, s43, s41"); k.e(f"s_add_u32 s43, s43, {C_HB}")
    k.e(f"v_add_u32 v{VB1}, s42, v{V_L16}"); k.e(f"v_add_u32 v{VB2}, s43, v{V_L16}")
    c0 = -2.0 * math.sqrt(2.0/math.pi) * math.log2(math.e)
    c1 = c0 * 0.044715
    k.e(f"s_mov_b32 s44, {f32(c1)}"); k.e(f"v_mov_b32 v{VT}, {f32(c0)}")
    k.wait(lg=["cs"])
    for j in range(6):
        k.e(f"v_lshlrev_b32 v{B1R+2*j}, 16, v{T+j}"); k.e(f"v_and_b32 v{B1R+2*j+1}, 0xffff0000, v{T+j}")
    PK = ENV("PK", 0)
    if PK:
        k.e(f"s_mov_b32 s45, {f32(c1)}"); k.e(f"s_mov_b32 s50, {f32(c0)}"); k.e(f"s_mov_b32 s51, {f32(c0)}")
    for mi in range(4):
        a = accf(mi, 0)
        for (j0, n) in ((0, 8), (8, 4)):
            js = range(j0, j0+n)
            if ENV("NOGELU", 0) == 1:
                for j in js: k.e(f"v_mul_f32 v{T+j-j0}, v{a+j}, v{STR+2*mi}")
            elif ENV("NOGELU", 0) == 2:
                for j in js: k.e(f"v_fma_f32 v{T+j-j0}, v{STR+2*mi+1}, v{CSR+j}, v{B1R+j}")
                for j in js: k.e(f"v_fma_f32 v{a+j}, v{a+j}, v{STR+2*mi}, v{T+j-j0}")
                for j in js: k.e(f"v_mul_f32 v{T+j-j0}, v{a+j}, v{a+j}")
                for j in js: k.e(f"v_fma_f32 v{T+j-j0}, v{T+j-j0}, s44, v{VT}")
                for j in js: k.e(f"v_mul_f32 v{T+j-j0}, v{T+j-j0}, v{a+j}")
                for j in js: k.e(f"v_add_f32 v{T+j-j0}, 1.0, v{T+j-j0}")
                for j in js: k.e(f"v_mul_f32 v{T+j-j0}, 0.5, v{a+j}")
            elif not PK:
                for j in js: k.e(f"v_fma_f32 v{T+j-j0}, v{STR+2*mi+1}, v{CSR+j}, v{B1R+j}")
                for j in js: k.e(f"v_fma_f32 v{a+j}, v{a+j}, v{STR+2*mi}, v{T+j-j0}")
                for j in js: k.e(f"v_mul_f32 v{T+j-j0}, v{a+j}, v{a+j}")
                for j in js: k.e(f"v_fma_f32 v{T+j-j0}, v{T+j-j0}, s44, v{VT}")
                for j in js: k.e(f"v_mul_f32 v{T+j-j0}, v{T+j-j0}, v{a+j}")
                for j in js: k.e(f"v_exp_f32 v{T+j-j0}, v{T+j-j0}")
                for j in js: k.e(f"v_add_f32 v{T+j-j0}, 1.0, v{T+j-j0}")
                for j in js: k.e(f"v_rcp_f32 v{T+j-j0}, v{T+j-j0}")
                for j in js: k.e(f"v_mul_f32 v{T+j-j0}, v{T+j-j0}, v{a+j}")
            else:
                jp = range(j0, j0+n, 2)
                P = lambda r: vr(r, 2)
                st = P(STR+2*mi)
                for j in jp: k.e(f"v_pk_fma_f32 {P(T+j-j0)}, {st}, {P(CSR+j)}, {P(B1R+j)} op_sel:[1,0,0] op_sel_hi:[1,1,1]")
                for j in jp: k.e(f"v_pk_fma_f32 {P(a+j)}, {P(a+j)}, {st}, {P(T+j-j0)} op_sel:[0,0,0] op_sel_hi:[1,0,1]")
                for j in jp: k.e(f"v_pk_mul_f32 {P(T+j-j0)}, {P(a+j)}, s[44:45]")
                for j in jp: k.e(f"v_pk_fma_f32 {P(T+j-j0)}, {P(T+j-j0)}, {P(a+j)}, s[50:51]")
                for j in jp: k.e(f"v_pk_mul_f32 {P(T+j-j0)}, {P(T+j-j0)}, {P(a+j)}")
                for j in js: k.e(f"v_exp_f32 v{T+j-j0}, v{T+j-j0}")
                for j in jp: k.e(f"v_pk_add_f32 {P(T+j-j0)}, {P(T+j-j0)}, 1.0 op_sel_hi:[1,0]")
                for j in js: k.e(f"v_rcp_f32 v{T+j-j0}, v{T+j-j0}")
                for j in jp: k.e(f"v_pk_mul_f32 {P(T+j-j0)}, {P(T+j-j0)}, {P(a+j)}")
            for j in range(n//2): k.e(f"v_cvt_pk_bf16_f32 v{a+j0+j}, v{T+2*j}, v{T+2*j+1}")
            if j0 == 0: k.lds(f"ds_write_b128 v{VB1}, {vr(a,4)} offset:{mi*1024}", "hw")
            else: k.lds(f"ds_write_b64 v{VB2}, {vr(a+8,2)} offset:{mi*1024}", "hw")
            if DEFER == 2 and state["n"] < 24:
                c_aload(k, state["n"]); state["n"] += 1
        if mi < 3: w2_check()
    k.e(f"v_add_u32 v{VB1}, {C_HB}, v{V_L16}"); k.e(f"v_add_u32 v{VB2}, {C_HB+49152}, v{V_L16}")
    k.e("s_lshl_b32 s55, s55, 2"); k.e(f"s_add_u32 s55, s55, s{S_CNT}"); k.e(f"s_add_u32 s55, s55, {4*CC_H0}")
    k.e(f"v_mov_b32 v{EX+2}, s55"); k.e(f"v_mov_b32 v{EX+3}, 1")
    k.wait(lg0=True)
    k.e("s_mov_b64 exec, 1")
    k.e(f"ds_add_u32 v{EX+2}, v{EX+3}")
    k.e("s_mov_b64 exec, -1")
    k.e(f"s_setprio {ENV('P2PRIO', 0)}")
    if FS == "C": stamp(k, 4)
    w2_check(final=True)
    if FS == "C": stamp(k, 5)
    def gate(ks, query=False):
        if ks % 6: return False
        if query: return True
        lds_wait(k, CC_H0 + ks//6, 4, EX)
    def bread2(ks, mi, reg):
        off = (ks*4 + mi) * 1024; base = VB1
        if off >= 49152: off -= 49152; base = VB2
        k.lds(f"ds_read_b128 {vr(reg,4)}, v{base} offset:{off}", ("b", ks))
    def after2(ks):
        if 18 + ks + D < 36: c_aload(k, 18 + ks + D)
    (gemm_loop_sp if ENV('SP', 2) & 2 else gemm_loop)(k, 18, order, accf, bbf, asf, bread2, 18, 4, after2, gate=gate)
    k.e("s_setprio 0")
    if FS == "C": stamp(k, 6)
    if FS == "D": stamp(k, 1)
    k.e(f"v_lshlrev_b32 v{VB1}, 10, v{V_G}"); k.e(f"v_lshl_add_u32 v{VB1}, v{V_M}, 4, v{VB1}")
    k.e(f"v_lshrrev_b32 v{VB2}, 1, v{V_G}"); k.e(f"v_lshlrev_b32 v{VB2}, 10, v{VB2}"); k.e(f"v_and_b32 v{VT}, 31, v{V_L}")
    k.e(f"v_lshl_add_u32 v{VB2}, v{VT}, 4, v{VB2}")
    k.e(f"s_mul_i32 s40, s{S_SC}, {XB}"); k.e("s_add_u32 s40, s40, s39"); k.e(f"s_mul_i32 s41, s{S_W}, 6144"); k.e("s_add_u32 s40, s40, s41")
    k.e(f"s_add_u32 s40, s40, s{S_P}")
    k.e("s_add_u32 s41, s40, 4096")
    for mp in range(2):
        T2 = BB + 16 + 4*mp
        for mi in (2*mp, 2*mp+1):
            a = accf(mi, 0); T_ = BB + 4*mi
            for j in range(4): k.e(f"v_cvt_pk_bf16_f32 v{T_+j}, v{a+2*j}, v{a+2*j+1}")
            for j in range(2): k.e(f"v_cvt_pk_bf16_f32 v{T2+2*(mi&1)+j}, v{a+8+2*j}, v{a+8+2*j+1}")
            k.e(f"buffer_store_dwordx4 {vr(T_,4)}, v{VB1}, {WS}, s40 offen offset:{256*mi} sc1")
        k.e("s_nop 0")
        k.e(f"v_permlane16_swap_b32 v{T2}, v{T2+2}"); k.e(f"v_permlane16_swap_b32 v{T2+1}, v{T2+3}")
        k.e("s_nop 0")
        k.e(f"buffer_store_dwordx4 {vr(T2,4)}, v{VB2}, {WS}, s41 offen offset:{512*mp} sc1")
    k.e(f"s_mul_i32 s40, s{S_CL}, 24"); k.e(f"s_mul_i32 s41, s{S_S}, 3"); k.e("s_add_u32 s40, s40, s41"); k.e(f"s_add_u32 s40, s40, s{S_WL}")
    k.e("s_min_u32 s40, s40, 71"); k.e("s_lshl_b32 s40, s40, 4")
    k.e("s_load_dwordx4 s[52:55], s[20:21], s40")
    lds_signal(k, CC_K2, 8)
    publish(k, CC_DONE, 4, F_C, S_RC, S_SC, 8, byclass=True)
    if FS in ("", "C", "D"): stamp(k, {"D": 2}.get(FS, 7))

def phase_D(k):
    k.c("================ phase D (per class)")
    if ENV("DP", 0):
        k.e("s_setprio 3")
    k.e(f"s_cmp_lg_u32 s{S_WL}, 3"); k.e("s_cbranch_scc1 L_D_work")
    GD = ENV("GD", 0); GA = ENV("GA", 0)
    k.e(f"s_cmp_lg_u32 s{S_CL}, 0"); k.e("s_cbranch_scc1 L_D_g1")
    if GD == 0: lds_wait(k, CC_DONE + 1, 4, 8, 8)
    k.e("s_branch L_D_g2")
    k.label("L_D_g1")
    if GD < 2: lds_wait(k, CC_K2, 12, 8, 4)
    k.label("L_D_g2")
    lds_wait(k, CC_DONE, 4, 8, 1, byclass=True)
    k.e(f"s_lshl_b32 s39, s{S_R}, {GSH}"); k.e(f"s_lshl_b32 s38, s{S_CL}, {GSH+5}"); k.e("s_add_u32 s39, s39, s38"); k.e(f"s_add_u32 s39, s39, s{S_FL}")
    k.e(f"s_add_u32 s37, s39, {F_C}")
    k.e(f"v_lshlrev_b32 v8, {FSH}, v{V_L}")
    poll(k, 8, 37, 0xff, 12, ENV('PSD', 3))
    lds_signal(k, CD_GO, 10, byclass=True)
    k.e(f"s_cmp_lg_u32 s{S_LAY}, 0"); k.e("s_cbranch_scc1 L_D_idle")
    lds_wait(k, CD_DONE, 3, 10, 2, byclass=True)
    if not GA: lds_wait(k, CC_K2, 12, 10, 8)
    k.e(f"s_add_u32 s37, s39, {F_D}")
    k.e(f"s_cmp_eq_u32 s{S_R}, 0"); k.e(f"s_cselect_b32 s38, 0, {1 << GSH}"); k.e("s_sub_u32 s37, s37, s38"); k.e(f"s_sub_u32 s38, s38, {8 << FSH}")
    k.e(f"v_cmp_le_u32 vcc, 8, v{V_L}"); k.e("v_mov_b32 v9, s38")
    k.e("s_nop 0")
    k.e("v_cndmask_b32 v9, 0, v9, vcc"); k.e("v_add_u32 v8, v8, v9")
    poll(k, 8, 37, 0xffff, 12, ENV('PSD', 3))
    lds_signal(k, CA_GO, 10, byclass=True)
    k.e("s_waitcnt lgkmcnt(0)")
    k.e("s_branch L_D_idle")
    k.label("L_D_work")
    k.e(f"s_mul_i32 s39, s{S_R}, {TILEB}"); k.e("s_lshl_b32 s41, s40, 6"); k.e("s_add_u32 s41, s41, s39")
    lds_wait(k, CD_GO, 1, 8, 2, byclass=True)
    if FS == "D": stamp(k, 3)
    k.vm = []
    k.e(f"s_add_u32 s42, s41, s{S_X1}")
    k.vmem(f"buffer_load_dwordx4 v[40:43], v{V_L16}, {WS}, s42 offen sc1", "x1")
    k.e(f"s_add_u32 s42, s41, s{S_P}")
    for s in range(8):
        k.vmem(f"buffer_load_dwordx4 {vr(8+4*s,4)}, v{V_L16}, {WS}, s42 offen sc1", s)
        if s < 7: k.e(f"s_add_u32 s42, s42, {XB}")
    k.wait(vm=["x1"])
    for j in range(4):
        k.e(f"s_lshl_b32 s43, s{52+j}, 16"); k.e(f"s_and_b32 s44, s{52+j}, 0xffff0000")
        k.e(f"v_lshlrev_b32 v{48+2*j}, 16, v{40+j}"); k.e(f"v_and_b32 v{49+2*j}, 0xffff0000, v{40+j}")
        k.e(f"v_add_f32 v{48+2*j}, s43, v{48+2*j}"); k.e(f"v_add_f32 v{49+2*j}, s44, v{49+2*j}")
    for s in range(8):
        k.wait(vm=[s])
        for j in range(4):
            r = 8 + 4*s + j
            k.e(f"v_lshlrev_b32 v5, 16, v{r}"); k.e(f"v_and_b32 v6, 0xffff0000, v{r}")
            k.e(f"v_add_f32 v{48+2*j}, v{48+2*j}, v5"); k.e(f"v_add_f32 v{49+2*j}, v{49+2*j}, v6")
    for j in range(4): k.e(f"v_cvt_pk_bf16_f32 v{8+j}, v{48+2*j}, v{49+2*j}")
    if FS == "D": stamp(k, 4)
    k.e(f"s_cmp_lg_u32 s{S_LAY}, 0"); k.e("s_cbranch_scc1 L_D_final")
    k.e(f"s_add_u32 s42, s41, 0x{X2:x}")
    k.e(f"buffer_store_dwordx4 v[8:11], v{V_L16}, {WS}, s42 offen sc1")
    publish(k, CD_DONE, 3, F_D, S_R, S_S, 14, byclass=True)
    if FS == "D": stamp(k, 5)
    lds_wait(k, CA_GO, 1, 8, 2, byclass=True)
    if FS == "D": stamp(k, 6)
    k.e("s_branch L_D_idle")
    k.label("L_D_final")
    k.e("s_movk_i32 s42, 1152"); k.e(f"v_mul_u32_u24 v5, s42, v{V_L}")
    k.e("s_add_u32 s42, s39, s40")
    k.e("buffer_store_dwordx4 v[8:11], v5, s[16:19], s42 offen")
    k.label("L_D_idle")


def phase_P(k):
    k.c("================ phase P (weight re-layout), waves 0-5: job b, waves 6-11: job 256+b")
    L, L16, G, R, C = V_L, V_L16, V_G, 46, 47
    IN = "s[52:55]"
    k.e(f"v_bfe_u32 v{R}, v{L}, 2, 2"); k.e(f"v_and_b32 v{C}, 3, v{L}")
    k.e(f"s_cmp_ge_u32 s{S_W}, 6"); k.e(f"s_cselect_b32 s{S_SLOT}, 1, 0")
    k.e("s_add_u32 s36, s2, 64"); k.e("s_cmp_lt_u32 s2, 120"); k.e("s_cselect_b32 s36, s2, s36")
    k.e("s_add_u32 s37, s2, 216"); k.e("s_cmp_lt_u32 s2, 104"); k.e("s_cselect_b32 s37, 999, s37")
    k.e("s_add_u32 s38, s2, 120"); k.e("s_cmp_lt_u32 s2, 64"); k.e("s_cselect_b32 s37, s38, s37")
    k.e(f"s_cmp_eq_u32 s{S_SLOT}, 0"); k.e(f"s_cselect_b32 s{S_JOB}, s36, s37")
    k.e(f"s_mul_i32 s{S_LB}, s{S_SLOT}, 36864")
    k.e(f"s_mul_i32 s49, s{S_SLOT}, 6"); k.e(f"s_sub_u32 s49, s{S_W}, s49")
    k.e(f"s_and_b32 s45, s{S_JOB}, 7"); k.e(f"s_lshr_b32 s46, s{S_JOB}, 3")
    k.e(f"s_cmp_ge_u32 s{S_JOB}, {J_END}"); k.e("s_cbranch_scc1 L_P_done")
    k.e(f"s_and_b32 s36, s{S_JOB}, 0xfffe"); k.e("s_cmp_eq_u32 s36, 54"); k.e("s_cbranch_scc1 L_P_done")
    def dispatch(pfx):
        for bound, lab in ((J_X0, "wq"), (J_WO, "x0"), (J_W1, "wo"), (J_W2, "w1")):
            k.e(f"s_cmp_lt_u32 s{S_JOB}, {bound}"); k.e(f"s_cbranch_scc1 L_P{pfx}_{lab}")
        k.e(f"s_branch L_P{pfx}_w2")
    def pdma(i, voff, soff):
        k.e(f"s_add_u32 m0, s37, {6144*i}")
        k.e("s_nop 0")
        k.e(f"buffer_load_dwordx4 v{voff}, {IN}, {soff} offen nt lds")
    def lin_dma(n_i, per_row, nmax, pitch):
        k.e("s_lshl_b32 s36, s49, 6")
        for i in range(n_i):
            k.e(f"v_add_u32 v6, s36, v{L}")
            if i: k.e(f"v_add_u32 v6, {384*i}, v6")
            divmod_const(k, 7, 8, 6, per_row, nmax, 38)
            k.e(f"s_mov_b32 s38, {pitch}")
            k.e("v_mul_u32_u24 v7, s38, v7")
            k.e("v_lshl_add_u32 v7, v8, 4, v7")
            pdma(i, 7, "s40")
    def cont_dma():
        k.e("s_lshl_b32 s36, s49, 10"); k.e("s_add_u32 s40, s40, s36")
        for i in range(6):
            pdma(i, L16, "s40")
            if i < 5: k.e("s_add_u32 s40, s40, 6144")
    if ENV("WLATE", 0):
        k.e(f"s_cmp_lt_u32 s{S_JOB}, {J_W1 if ENV('WLATE', 0) == 1 else J_W2}"); k.e("s_cbranch_scc1 L_P_nl")
        get_tag(k)
        k.label("L_P_nl")
    k.e(f"s_lshl_b32 s37, s49, 10"); k.e(f"s_add_u32 s37, s37, s{S_LB}")
    dispatch("i")
    k.label("L_Pi_wq")
    srd(k, 52, 24, 0, 576*1728*2)
    sdivmod(k, 46, 45, S_JOB, 3, 56)
    k.e("s_mul_i32 s40, s46, %d" % (32*3456)); k.e("s_mul_i32 s36, s45, 1152"); k.e("s_add_u32 s40, s40, s36")
    lin_dma(6, 72, 2304, 3456)
    k.e("s_branch L_P_wait")
    k.label("L_Pi_x0")
    srd(k, 52, 22, 0, XB)
    k.e(f"s_sub_u32 s46, s46, {J_X0//8}"); k.e("s_lshl_b32 s45, s45, 3"); k.e("s_add_u32 s46, s46, s45")
    k.e("s_mul_i32 s40, s46, 36864")
    cont_dma()
    k.e("s_branch L_P_wait")
    k.label("L_Pi_wo")
    srd(k, 52, 26, 0, 576*576*2)
    k.e(f"s_sub_u32 s46, s46, {J_WO//8}")
    k.e("s_mul_i32 s40, s46, %d" % (72*1152)); k.e("s_mul_i32 s36, s45, 144"); k.e("s_add_u32 s40, s40, s36")
    lin_dma(2, 9, 768, 1152)
    k.e("s_branch L_P_wait")
    k.label("L_Pi_w1")
    srd(k, 52, 28, 0, 576*4608*2)
    k.e(f"s_sub_u32 s46, s46, {J_W1//8}")
    k.e("s_mul_i32 s40, s46, %d" % (32*9216)); k.e("s_mul_i32 s36, s45, 1152"); k.e("s_add_u32 s40, s40, s36")
    lin_dma(6, 72, 2304, 9216)
    k.e("s_branch L_P_wait")
    k.label("L_Pi_w2")
    srd(k, 52, 32, 0, 576*4608*2)
    k.e(f"s_sub_u32 s46, s46, {J_W2//8}")
    k.e("s_mul_i32 s40, s45, 18"); k.e("s_add_u32 s40, s40, s46"); k.e("s_mul_i32 s40, s40, 36864")
    cont_dma()
    k.label("L_P_wait")
    for j in range(4): k.e(f"v_mov_b32 v{40+j}, 0x3f803f80")
    k.e(f"s_lshl_b32 s36, s{S_SLOT}, 2"); k.e(f"s_add_u32 s36, s36, {CNT + 4*CP_LD}"); k.e("v_mov_b32 v8, s36"); k.e("v_mov_b32 v9, 1")
    k.e("s_waitcnt vmcnt(0)")
    k.e("s_mov_b64 exec, 1"); k.e("ds_add_u32 v8, v9"); k.e("s_mov_b64 exec, -1")
    k.label("L_P_spin")
    k.e("ds_read_b32 v9, v8"); k.e("s_waitcnt lgkmcnt(0)"); k.e("v_readfirstlane_b32 s36, v9"); k.e("s_nop 3")
    k.e("s_cmp_ge_u32 s36, 6"); k.e("s_cbranch_scc1 L_P_go"); k.e("s_sleep 2"); k.e("s_branch L_P_spin")
    k.label("L_P_go")
    k.e(f"s_lshl_b32 s39, s{S_W}, 10"); k.e("s_add_u32 s39, s39, 73728")
    k.e("s_lshl_b32 s48, s49, 1")
    k.label("L_P_vw")
    dispatch("p")
    def tr3(a6, a9, a10, a11):
        for t in range(2):
            k.e(f"ds_read_b64_tr_b16 v[{12+4*t}:{13+4*t}], v{a6} offset:{8*t}")
            k.e(f"ds_read_b64_tr_b16 v[{14+4*t}:{15+4*t}], v{a9} offset:{8*t}")
        k.e(f"ds_read_b64_tr_b16 v[20:21], v{a10}")
        k.e(f"ds_read_b64_tr_b16 v[22:23], v{a11}")
    k.label("L_Pp_w1")
    k.e("s_lshr_b32 s40, s48, 1"); k.e("s_and_b32 s41, s48, 1"); k.e("s_mul_i32 s40, s40, 96")
    k.e("s_lshl_b32 s42, s41, 5"); k.e("s_add_u32 s42, s42, s40")
    k.e("s_lshl_b32 s43, s41, 4"); k.e("s_add_u32 s43, s43, s40"); k.e("s_add_u32 s43, s43, 64")
    k.e(f"v_lshl_add_u32 v7, v{G}, 3, v{R}"); k.e("s_movk_i32 s38, 1152"); k.e("v_mul_u32_u24 v7, s38, v7"); k.e(f"v_add_u32 v7, s{S_LB}, v7")
    k.e("s_lshl_b32 s44, s42, 1"); k.e(f"v_lshl_add_u32 v6, v{C}, 4, v7"); k.e("v_add_u32 v6, s44, v6")
    k.e("s_lshl_b32 s44, s43, 1"); k.e(f"v_lshl_add_u32 v10, v{C}, 3, v7"); k.e("v_add_u32 v10, s44, v10")
    k.e("v_add_u32 v9, %d, v6" % (4*1152)); k.e("v_add_u32 v11, %d, v10" % (4*1152))
    tr3(6, 9, 10, 11)
    k.e("s_mul_i32 s47, s45, 12"); k.e("s_add_u32 s47, s47, s48"); k.e("s_mul_i32 s47, s47, 36"); k.e("s_add_u32 s47, s47, s46")
    k.e("s_mul_i32 s47, s47, 3072"); k.e(f"s_add_u32 s47, s47, 0x{WFF:x}")
    k.e("s_lshl_b32 s42, s41, 7"); k.e("s_add_u32 s42, s42, s39"); k.e("s_lshl_b32 s43, s41, 6"); k.e("s_add_u32 s43, s43, s39"); k.e("s_add_u32 s43, s43, 256")
    k.e(f"v_lshlrev_b32 v7, 5, v{G}"); k.e("v_add_u32 v7, s42, v7"); k.e(f"v_lshlrev_b32 v8, 4, v{G}"); k.e("v_add_u32 v8, s43, v8")
    for t in range(3):
        k.e(f"s_waitcnt lgkmcnt({4-2*t})")
        k.e(f"buffer_store_dwordx4 v[{12+4*t}:{15+4*t}], v{L16}, {WS}, s47 offen offset:{1024*t}{WST}")
        k.e(f"v_mfma_f32_16x16x32_bf16 v[{28+4*t}:{31+4*t}], v[{12+4*t}:{15+4*t}], v[40:43], 0")
    k.e("s_nop 7")
    k.e("ds_write_b128 v7, v[28:31]"); k.e("ds_write_b128 v7, v[32:35] offset:16"); k.e("ds_write_b128 v8, v[36:39]")
    k.e("s_waitcnt lgkmcnt(0)")
    k.e("s_branch L_P_next")
    k.label("L_Pp_wq")
    k.e(f"v_lshl_add_u32 v6, v{G}, 3, v{R}"); k.e("s_movk_i32 s38, 1152"); k.e("v_mul_u32_u24 v6, s38, v6")
    k.e(f"v_lshl_add_u32 v6, v{C}, 3, v6"); k.e("s_mul_i32 s38, s48, 96"); k.e(f"s_add_u32 s38, s38, s{S_LB}"); k.e("v_add_u32 v6, s38, v6")
    for t in range(3):
        k.e(f"ds_read_b64_tr_b16 v[{12+4*t}:{13+4*t}], v6 offset:{32*t}")
        k.e(f"ds_read_b64_tr_b16 v[{14+4*t}:{15+4*t}], v6 offset:{32*t+4*1152}")
    k.e("s_mul_i32 s40, s45, 9")
    for t in range(3):
        k.e(f"v_bfe_u32 v7, v{L}, 3, 1"); k.e("s_mul_i32 s38, s48, 6"); k.e(f"s_add_u32 s38, s38, {2*t}"); k.e("v_add_u32 v7, s38, v7")
        divmod_const(k, 8, 9, 7, 9, 72, 38)
        k.e("v_add_u32 v9, s40, v9")
        k.e("v_mul_u32_u24 v8, 28, v8"); k.e("v_add_u32 v8, v8, v9")
        k.e("v_lshrrev_b32 v9, 1, v8"); k.e("s_movk_i32 s38, %d" % (18*1024)); k.e("v_mul_u32_u24 v9, s38, v9")
        k.e("v_and_b32 v8, 1, v8"); k.e("v_lshl_add_u32 v9, v8, 7, v9")
        k.e(f"v_lshl_add_u32 v9, v{G}, 8, v9"); k.e(f"v_and_b32 v8, 7, v{L}"); k.e(f"v_lshl_add_u32 v{24+t}, v8, 4, v9")
    k.e("s_lshl_b32 s47, s46, 10")
    if WQF: k.e(f"s_add_u32 s47, s47, 0x{WQF:x}")
    k.e("s_and_b32 s42, s48, 1"); k.e("s_mul_i32 s42, s42, 192"); k.e("s_add_u32 s42, s42, s39")
    k.e(f"v_lshlrev_b32 v7, 4, v{G}"); k.e("v_add_u32 v7, s42, v7")
    k.e("s_waitcnt lgkmcnt(0)")
    for t in range(3):
        k.e(f"buffer_store_dwordx4 v[{12+4*t}:{15+4*t}], v{24+t}, {WS}, s47 offen sc1")
        k.e(f"v_mfma_f32_16x16x32_bf16 v[{28+4*t}:{31+4*t}], v[{12+4*t}:{15+4*t}], v[40:43], 0")
    k.e("s_nop 7")
    for t in range(3): k.e(f"ds_write_b128 v7, v[{28+4*t}:{31+4*t}] offset:{64*t}")
    k.e("s_waitcnt lgkmcnt(0)")
    k.e("s_branch L_P_next")
    k.label("L_Pp_w2")
    sdivmod(k, 40, 41, 46, 3, 18)
    k.e("s_cmp_eq_u32 s41, 2"); k.e("s_cselect_b32 s44, 2, 3"); k.e("s_movk_i32 s43, %d" % (4*1152)); k.e("s_cselect_b32 s43, %d, s43" % (16*1152))
    k.e(f"v_lshlrev_b32 v6, s44, v{G}"); k.e(f"v_add_u32 v6, v6, v{R}")
    k.e("s_movk_i32 s38, 1152"); k.e("v_mul_u32_u24 v6, s38, v6")
    k.e("s_mul_i32 s38, s48, 96"); k.e(f"s_add_u32 s38, s38, s{S_LB}"); k.e("v_add_u32 v6, s38, v6")
    k.e(f"v_lshl_add_u32 v10, v{C}, 3, v6"); k.e("v_add_u32 v10, 64, v10")
    k.e(f"v_lshl_add_u32 v6, v{C}, 4, v6")
    k.e("v_add_u32 v9, s43, v6"); k.e("v_add_u32 v11, s43, v10")
    tr3(6, 9, 10, 11)
    k.e("s_mul_i32 s47, s45, 12"); k.e("s_add_u32 s47, s47, s48"); k.e("s_mul_i32 s47, s47, 36"); k.e("s_add_u32 s47, s47, s46"); k.e("s_add_u32 s47, s47, 18")
    k.e("s_mul_i32 s47, s47, 3072"); k.e(f"s_add_u32 s47, s47, 0x{WFF:x}")
    for t in range(3):
        k.e(f"s_waitcnt lgkmcnt({4-2*t})")
        k.e(f"buffer_store_dwordx4 v[{12+4*t}:{15+4*t}], v{L16}, {WS}, s47 offen offset:{1024*t}{WST}")
    k.e("s_branch L_P_next")
    k.label("L_Pp_wo")
    k.e("s_lshl_b32 s44, s48, 2"); k.e(f"v_add_u32 v6, s44, v{G}"); k.e("v_min_u32 v6, 44, v6")
    divmod_const(k, 8, 7, 6, 5, 48, 38)
    k.e("v_lshrrev_b32 v9, 1, v8"); k.e("v_mul_u32_u24 v9, 18, v9")
    k.e("v_and_b32 v10, 1, v8"); k.e("v_lshl_add_u32 v9, v10, 3, v9")
    k.e(f"v_add_u32 v9, v9, v{R}")
    k.e("v_add_u32 v10, 4, v9")
    k.e(f"v_lshrrev_b32 v11, 1, v{R}"); k.e("v_mul_u32_u24 v11, 18, v11"); k.e(f"v_and_b32 v16, 1, v{R}")
    k.e("v_add3_u32 v11, v11, v16, 16")
    k.e("v_add_u32 v16, 36, v11")
    k.e("v_cmp_eq_u32 vcc, 8, v8")
    k.e("s_nop 1")
    k.e("v_cndmask_b32 v9, v9, v11, vcc"); k.e("v_cndmask_b32 v10, v10, v16, vcc")
    k.e("s_movk_i32 s38, 144"); k.e("v_mul_u32_u24 v9, s38, v9"); k.e("v_mul_u32_u24 v10, s38, v10")
    k.e("v_lshlrev_b32 v11, 5, v7"); k.e(f"v_lshl_add_u32 v11, v{C}, 3, v11"); k.e(f"v_add_u32 v11, s{S_LB}, v11")
    k.e("v_add_u32 v9, v9, v11"); k.e("v_add_u32 v10, v10, v11")
    k.e("ds_read_b64_tr_b16 v[12:13], v9")
    k.e("ds_read_b64_tr_b16 v[14:15], v10")
    k.e("s_movk_i32 s38, %d" % (18*1024)); k.e("v_mul_u32_u24 v7, s38, v7")
    k.e("s_mul_i32 s38, s46, 9"); k.e("v_add_u32 v8, s38, v8"); k.e("v_lshl_add_u32 v7, v8, 8, v7")
    k.e(f"v_lshl_add_u32 v7, v{V_M}, 4, v7")
    k.e("s_mul_i32 s44, s45, %d" % (5*18*1024)); k.e(f"s_add_u32 s44, s44, 0x{WOF:x}")
    k.e("s_waitcnt lgkmcnt(0)")
    k.e(f"buffer_store_dwordx4 v[12:15], v7, {WS}, s44 offen sc1")
    k.e("s_branch L_P_next")
    k.label("L_Pp_x0")
    k.e(f"v_and_b32 v6, 31, v{L}"); k.e(f"v_lshrrev_b32 v7, 5, v{L}")
    k.e("s_movk_i32 s38, 1152"); k.e("v_mul_u32_u24 v8, s38, v6"); k.e("v_lshl_add_u32 v8, v7, 4, v8")
    k.e("s_mul_i32 s38, s48, 96"); k.e(f"s_add_u32 s38, s38, s{S_LB}"); k.e("v_add_u32 v8, s38, v8")
    for i in range(3): k.e(f"ds_read_b128 v[{12+4*i}:{15+4*i}], v8 offset:{32*i}")
    k.e("v_lshlrev_b32 v9, 10, v7"); k.e("v_lshl_add_u32 v9, v6, 4, v9")
    k.e("s_lshr_b32 s40, s46, 1"); k.e(f"s_mul_i32 s40, s40, {TILEB}"); k.e("s_and_b32 s41, s46, 1"); k.e("s_lshl_b32 s41, s41, 9"); k.e("s_add_u32 s40, s40, s41")
    k.e("s_mul_i32 s41, s48, 6144"); k.e("s_add_u32 s40, s40, s41"); k.e(f"s_add_u32 s40, s40, 0x{X0P:x}"); k.e("s_add_u32 s41, s40, 4096")
    for i in range(3):
        k.e(f"s_waitcnt lgkmcnt({2-i})")
        k.e(f"buffer_store_dwordx4 v[{12+4*i}:{15+4*i}], v9, {WS}, s{40 if i < 2 else 41} offen offset:{2048*(i%2)} sc1")
    k.label("L_P_next")
    k.e("s_add_u32 s48, s48, 1"); k.e("s_bitcmp1_b32 s48, 0")
    k.e("s_nop 3")
    k.e("s_cbranch_scc1 L_P_vw")
    k.e(f"s_cmp_lt_u32 s{S_JOB}, {J_X0}"); k.e("s_cbranch_scc1 L_P_csq")
    k.e(f"s_cmp_lt_u32 s{S_JOB}, {J_W1}"); k.e("s_cbranch_scc1 L_P_tag")
    k.e(f"s_cmp_ge_u32 s{S_JOB}, {J_W2}"); k.e("s_cbranch_scc1 L_P_tag")
    k.e("s_mul_i32 s42, s46, %d" % (4608*4)); k.e("s_mul_i32 s40, s45, 2304"); k.e("s_add_u32 s42, s42, s40"); k.e(f"s_add_u32 s42, s42, 0x{CSP:x}")
    k.e("s_mul_i32 s40, s49, 384"); k.e("s_add_u32 s42, s42, s40")
    k.e(f"v_add_u32 v6, s39, v{L16}")
    k.e("s_waitcnt lgkmcnt(0)")
    k.e("ds_read_b128 v[28:31], v6")
    k.e("s_mov_b64 exec, 0xffffff")
    k.e("s_waitcnt lgkmcnt(0)")
    k.e(f"buffer_store_dwordx4 v[28:31], v{L16}, {WS}, s42 offen{WST}")
    k.e("s_mov_b64 exec, -1")
    k.e("s_branch L_P_tag")
    k.label("L_P_csq")
    k.e(f"s_mul_i32 s42, s{S_JOB}, 2304"); k.e(f"s_add_u32 s42, s42, 0x{CSQP:x}")
    k.e("s_mul_i32 s40, s49, 384"); k.e("s_add_u32 s42, s42, s40")
    k.e(f"v_add_u32 v6, s39, v{L16}")
    k.e("s_waitcnt lgkmcnt(0)")
    k.e("ds_read_b128 v[28:31], v6")
    k.e("s_mov_b64 exec, 0xffffff")
    k.e("s_waitcnt lgkmcnt(0)")
    k.e(f"buffer_store_dwordx4 v[28:31], v{L16}, {WS}, s42 offen sc1")
    k.e("s_mov_b64 exec, -1")
    k.label("L_P_tag")

def get_tag(k):
    lab = k.newlabel("L_tag")
    k.e("v_mov_b32 v8, 0")
    k.e("s_mov_b32 s38, 0x20000")
    k.label(lab)
    k.e("global_load_dwordx2 v[10:11], v8, s[34:35] sc1")
    k.e("s_waitcnt vmcnt(0)")
    k.e("v_readfirstlane_b32 s62, v10"); k.e("v_readfirstlane_b32 s63, v11")
    k.e("s_sub_u32 s38, s38, 1")
    k.e("s_cmp_eq_u32 s38, 0"); k.e(f"s_cbranch_scc1 {lab}_ok")
    k.e("s_and_b32 s36, s62, s63"); k.e("s_bitcmp1_b32 s36, 0"); k.e(f"s_cbranch_scc1 {lab}_ok")
    k.e("s_sleep 2"); k.e(f"s_branch {lab}")
    k.label(f"{lab}_ok")

def gen_main():
    name = NAME + "_kernel"
    k = K(); header(k, name, 256)
    k.e("s_load_dwordx2 s[22:23], s[0:1], 0")
    k.e("s_load_dwordx4 s[24:27], s[0:1], 8")
    k.e("s_load_dwordx4 s[28:31], s[0:1], 32")
    k.e("s_load_dwordx2 s[32:33], s[0:1], 48")
    k.e("s_load_dwordx4 s[4:7], s[0:1], 56")
    k.e("s_load_dwordx4 s[40:43], s[0:1], 72")
    k.e("s_memrealtime s[44:45]")
    wave_lane(k, V_L, S_W)
    k.e(f"v_lshlrev_b32 v{V_L16}, 4, v{V_L}")
    k.e(f"v_lshrrev_b32 v{V_G}, 4, v{V_L}"); k.e(f"v_and_b32 v{V_M}, 15, v{V_L}")
    k.e(f"s_cmp_lg_u32 s{S_W}, 0"); k.e("s_cbranch_scc1 L_M_nz")
    k.e(f"v_lshlrev_b32 v5, 3, v{V_L}"); k.e(f"v_add_u32 v5, {CNT}, v5"); k.e("v_mov_b32 v6, 0"); k.e("v_mov_b32 v7, 0"); k.e("ds_write_b64 v5, v[6:7]")
    k.label("L_M_nz")
    k.e("s_waitcnt lgkmcnt(0)")
    srd(k, 8, 42, 0, WSZ)
    srd(k, 12, 30, 0, 4608*2)
    srd(k, 16, 6, 0, XB)
    k.e("s_mov_b64 s[20:21], s[4:5]")
    k.e("s_mov_b64 s[34:35], s[40:41]")
    k.e(f"s_or_b32 s36, s2, s{S_W}"); k.e("s_cmp_lg_u32 s36, 0"); k.e("s_cbranch_scc1 L_M_nt")
    k.e("s_lshl_b32 s46, s45, 2"); k.e("s_lshr_b32 s47, s44, 31"); k.e("s_lshl_b32 s47, s47, 1"); k.e("s_or_b32 s46, s46, s47"); k.e("s_or_b32 s46, s46, 1")
    k.e("s_lshl_b32 s47, s44, 1"); k.e("s_or_b32 s47, s47, 1")
    k.e("v_mov_b32 v6, s47"); k.e("v_mov_b32 v7, s46"); k.e("v_mov_b32 v5, 0")
    k.e("s_mov_b64 exec, 1")
    k.e("global_store_dwordx2 v5, v[6:7], s[34:35] sc1")
    k.e("s_mov_b64 exec, -1")
    k.label("L_M_nt")
    if ENV("TLBW", 0):
        k.e(f"s_cmp_lg_u32 s{S_W}, 11"); k.e("s_cbranch_scc1 L_M_tw")
        k.e(f"v_lshlrev_b32 v5, 21, v{V_L}"); k.e("s_lshl_b32 s36, s2, 7"); k.e("v_add_u32 v5, s36, v5"); k.e("v_mov_b32 v6, 0")
        k.e(f"buffer_atomic_or v6, v5, {WS}, 0 offen sc1")
        k.label("L_M_tw")
    if ENV("CPRE", 0):
        k.e(f"s_cmp_lg_u32 s{S_W}, 11"); k.e("s_cbranch_scc1 L_M_cp")
        k.e("s_getpc_b64 s[46:47]")
        k.label("L_M_pc")
        k.e("s_lshr_b32 s36, s2, 3"); k.e("s_lshl_b32 s36, s36, 11")
        k.e(f"v_lshlrev_b32 v5, 5, v{V_L}"); k.e("v_add_u32 v5, s36, v5")
        k.e(f"s_mov_b32 s36, L_{name}_exit - L_M_pc - 4"); k.e("v_min_u32 v5, s36, v5")
        k.e("global_load_dword v0, v5, s[46:47]")
        k.label("L_M_cp")
    k.e("s_barrier")
    phase_P(k)
    get_tag(k)
    k.e(f"s_mov_b32 s{S_CNT}, {CNT}")
    if WREL:
        k.e(f"s_cmp_ge_u32 s{S_JOB}, {J_W1}"); k.e("s_cbranch_scc1 L_P_end")
    k.e(f"s_cmp_lt_u32 s{S_JOB}, {J_X0}"); k.e("s_cbranch_scc1 L_P_pq")
    publish(k, CP_DONE, 6, FLP, None, S_JOB, 8)
    k.e("s_branch L_P_end")
    k.label("L_P_pq")
    publish(k, CP_DONE, 6, FLQ, None, S_JOB, 8, repl=True)
    k.e("s_branch L_P_end")
    k.label("L_P_done")
    get_tag(k)
    k.label("L_P_end")
    if FS == "P": stamp(k, 1)
    def mapping2(Sx, ss, sr_, sidx):
        R = 32 // Sx; ng = 8 // Sx; lg = lambda x: x.bit_length() - 1
        k.e("s_and_b32 s36, s2, 7"); k.e("s_lshr_b32 s37, s2, 3")
        k.e(f"s_and_b32 s{ss}, s36, {ng-1}"); k.e(f"s_lshl_b32 s{ss}, s{ss}, {lg(Sx)}")
        k.e(f"s_and_b32 s38, s37, {Sx-1}"); k.e(f"s_add_u32 s{ss}, s{ss}, s38")
        k.e(f"s_lshr_b32 s{sr_}, s36, {lg(ng)}"); k.e(f"s_lshl_b32 s{sr_}, s{sr_}, {lg(R)}")
        k.e(f"s_lshr_b32 s{sidx}, s37, {lg(Sx)}"); k.e(f"s_add_u32 s{sr_}, s{sr_}, s{sidx}")
    mapping2(ENV('SX_L', 4), S_S, S_R, S_IDX)
    mapping2(SXC, S_SC, S_RC, S_IDX)
    rot18(k, S_IDX, S_ROT, 32 // SXC)
    sdivmod(k, 36, S_ROT2, S_IDX, 6, 32)
    if not ENV("ROT2", 0): k.e(f"s_mov_b32 s{S_ROT2}, 0")
    k.e(f"s_lshr_b32 s{S_CL}, s{S_W}, 2"); k.e(f"s_and_b32 s{S_WL}, s{S_W}, 3"); k.e(f"s_mov_b32 s{S_EARLY}, 0")
    k.e(f"s_mov_b32 s{S_LAY}, 0")
    k.e(f"s_mov_b32 s{S_XIN}, 0x{X0P:x}"); k.e(f"s_mov_b32 s{S_O}, 0x{O1:x}"); k.e(f"s_mov_b32 s{S_X1}, 0x{X1A:x}"); k.e(f"s_mov_b32 s{S_P}, 0x{P1:x}")
    k.e(f"s_mov_b32 s{S_FL}, 0x{FLG:x}"); k.e(f"s_mov_b32 s{S_CNT}, {CNT}")
    if ENV("PB4", 1): k.e("s_barrier")
    k.e(f"s_cmp_lg_u32 s{S_W}, 0"); k.e("s_cbranch_scc1 L_M_bar")
    k.e(f"s_lshl_b32 s36, s{S_R}, 1"); k.e("s_sub_u32 s36, s36, 1")
    k.e(f"v_add_u32 v9, s36, v{V_L}"); k.e("v_max_i32 v9, 0, v9")
    k.e("v_and_b32 v10, 7, v9"); k.e("v_lshrrev_b32 v9, 3, v9"); k.e("v_lshl_add_u32 v9, v10, 3, v9"); k.e(f"v_add_u32 v9, {J_X0}, v9")
    k.e("v_lshlrev_b32 v8, 7, v9")
    k.e(f"s_mov_b32 s37, 0x{FLP:x}")
    poll(k, 8, 37, 7, 10, ENV('PS2', 3))
    if EQ:
        lds_signal(k, CP_X, 10)
    k.label("L_M_bar")
    if FS == "P": stamp(k, 2)
    if EQ:
        k.e(f"s_cmp_lg_u32 s{S_W}, 9"); k.e("s_cbranch_scc1 L_M_nq")
        k.e("s_and_b32 s37, s2, 7"); k.e("s_lshl_b32 s37, s37, 6"); k.e(f"s_add_u32 s37, s37, {(FLQ-FLP)//128}"); k.e(f"v_add_u32 v44, s37, v{V_L}")
        k.e(f"s_add_u32 s37, s{S_S}, {J_WO - 8*54}"); k.e(f"v_lshlrev_b32 v45, 3, v{V_L}"); k.e("v_add_u32 v45, s37, v45")
        k.e(f"v_cmp_gt_u32 vcc, 54, v{V_L}")
        k.e("s_nop 1")
        k.e("v_cndmask_b32 v44, v45, v44, vcc"); k.e("v_lshlrev_b32 v44, 7, v44")
        k.e(f"s_mov_b32 s37, 0x{FLP:x}")
        sv = k.snapshot()
        poll(k, 44, 37, (1 << 62) - 1, 46, ENV('PS2', 3))
        k.restore(sv)
        k.e("s_mov_b32 s57, s36")
        lds_signal(k, CP_WQ - 0, 44)
        k.e("s_mov_b32 s36, s57")
        k.lg = []
        k.label("L_M_nq")
        lds_wait(k, CP_X, 1, 8, 1)
    else:
        k.e("s_barrier")
    if FS == "P": stamp(k, 3)
    k.label("L_layer")
    phase_A(k)
    npre = phase_B(k)
    phase_C(k, npre)
    phase_D(k)
    k.e(f"s_cmp_lg_u32 s{S_LAY}, 0"); k.e(f"s_cbranch_scc1 L_{name}_end")
    if STAMP and ENV("STAMP_L1", 0):
        k.e(f"s_branch L_{name}_end")
    k.e(f"s_mov_b32 s{S_LAY}, 1")
    k.e(f"s_cmp_lt_u32 s{S_CL}, {ENV('NEARLY', 0)}"); k.e(f"s_cselect_b32 s{S_EARLY}, 1, 0")
    k.e(f"s_mov_b32 s{S_XIN}, 0x{X2:x}"); k.e(f"s_mov_b32 s{S_O}, 0x{O2:x}"); k.e(f"s_mov_b32 s{S_X1}, 0x{X1B:x}"); k.e(f"s_mov_b32 s{S_P}, 0x{P2:x}")
    k.e(f"s_mov_b32 s{S_FL}, 0x{FLG+FLG_LAYER:x}"); k.e(f"s_mov_b32 s{S_CNT}, {CNT+128}")
    if STAMP: stamp(k, 0)
    k.e("s_branch L_layer")
    k.label(f"L_{name}_end")
    if STAMP:
        k.e("s_waitcnt vmcnt(0)")
        k.e(f"s_lshl_b32 s36, s{S_W}, 6"); k.e("v_mov_b32 v0, s36")
    stamp_end(k, KIDX[0]); KIDX[0] += 1
    k.label(f"L_{name}_exit")
    k.e("s_endpgm")
    return name, k.text(), desc(name, 168), (256, 768, LDS_TOTAL)

DOC = """;
"""
def main(out):
    n, t, d, (g, b, lds) = gen_main()
    ref = open(f"cdna_kernels/{NAME}.s.ref").read().splitlines()
    hdr = [l for l in ref if l.startswith(";") and "@launch" not in l and "Override" not in l and "grid=ceil" not in l]
    s = "\n".join(hdr) + "\n"
    if ENV("ASLIST", 1): s += f"; @launch kernel={n} grid=({g},1,1) block=({b},1,1) lds={lds}\n"
    else: s += f"; @launch grid=({g},1,1) block=({b},1,1) lds={lds}\n"
    s += DOC
    s += '.amdgcn_target "amdgcn-amd-amdhsa--gfx950"\n.text\n' + t + d
    open(out, "w").write(s)

if __name__ == "__main__":
    main(sys.argv[1] if len(sys.argv) > 1 else f"cdna_kernels/{NAME}.s")
```
